```python
import torch

def _softmax(x, axis=-1):
    return torch.softmax(x, dim=axis)
def _gelu(x):
    return torch.nn.functional.gelu(x, approximate="tanh")
def _silu(x):
    return torch.nn.functional.silu(x)
def _sigmoid(x):
    return torch.sigmoid(x)
def _layernorm(x, axis=-1, eps=1e-5):
    m = x.mean(dim=axis, keepdim=True)
    v = x.var(dim=axis, keepdim=True, unbiased=False)
    return (x - m) / torch.sqrt(v + eps)
def _scatter_add(tgt, idx, src, axis=0):
    return tgt.clone().index_add_(axis, idx, src)
def _segment_sum(src, seg, n):
    out = torch.zeros((n,) + src.shape[1:], dtype=src.dtype)
    return out.index_add_(0, seg, src)
def _pad(x, pw):
    flat = tuple(v for pair in reversed(pw) for v in pair)
    return torch.nn.functional.pad(x, flat)

kernel_name = 'recurrent_scan__grouped_kv_mqa__glu_gated_geglu__prompt'

def setup_inputs():

    _w = (lambda a: (lambda t: t.to(torch.bfloat16) if t.is_floating_point() else t)(torch.as_tensor(a)))
    def _A_setup():
        B, S, D, H = 1, 2048, 512, 32
        Dh = D // H
        return {
            "x": _w((lambda *s: torch.randn(*s, dtype=torch.bfloat16) * 0.05)(B, S, D)),
            "wq": _w((lambda *s: torch.randn(*s, dtype=torch.bfloat16) * 0.2)(D, H * Dh)),
            "wk": _w((lambda *s: torch.randn(*s, dtype=torch.bfloat16) * 0.2)(D, Dh)),
            "wv": _w((lambda *s: torch.randn(*s, dtype=torch.bfloat16) * 0.2)(D, Dh)),
            "wo": _w((lambda *s: torch.randn(*s, dtype=torch.bfloat16) * 0.2)(H * Dh, D)),
        }
    _A_in = _A_setup()

    def _B_setup():
        B, S, Dm, Df = 1, 2048, 512, 1792
        return {
            "x": _w((lambda *s: torch.randn(*s, dtype=torch.bfloat16) * 0.05)(B, S, Dm)),
            "w_gate": _w((lambda *s: torch.randn(*s, dtype=torch.bfloat16) * 0.1)(Dm, Df) * (Dm ** -0.5)),
            "w_up": _w((lambda *s: torch.randn(*s, dtype=torch.bfloat16) * 0.1)(Dm, Df) * (Dm ** -0.5)),
            "w_down": _w((lambda *s: torch.randn(*s, dtype=torch.bfloat16) * 0.1)(Df, Dm) * (Df ** -0.5)),
        }
    _B_in = _B_setup()

    return {
        "A_x": _A_in["x"],
        "A_wq": _A_in["wq"],
        "A_wk": _A_in["wk"],
        "A_wv": _A_in["wv"],
        "A_wo": _A_in["wo"],
        "B_x": _B_in["x"],
        "B_w_gate": _B_in["w_gate"],
        "B_w_up": _B_in["w_up"],
        "B_w_down": _B_in["w_down"],
    }

def reference(A_x, A_wq, A_wk, A_wv, A_wo, B_x, B_w_gate, B_w_up, B_w_down):
    def _A_ref(x, wq, wk, wv, wo):
        B, S, D = x.shape
        H = 32
        Dh = D // H
        q = (lambda x, *d: x.permute(*d))((x @ wq).reshape(B, S, H, Dh), 0, 2, 1, 3)
        k = x @ wk
        v = x @ wv
        scores = torch.einsum("bhqd,bkd->bhqk", q, k) * (Dh ** -0.5)
        p = _softmax(scores, axis=-1)
        o = torch.einsum("bhqk,bkd->bhqd", p, v)
        return (lambda x, *d: x.permute(*d))(o, 0, 2, 1, 3).reshape(B, S, H * Dh) @ wo

    def _B_ref(x, w_gate, w_up, w_down):
        g = torch.einsum("bsd,df->bsf", x, w_gate)
        u = torch.einsum("bsd,df->bsf", x, w_up)
        h = _gelu(g) * u
        return torch.einsum("bsf,fd->bsd", h, w_down)

    x = A_x
    xn = _layernorm(x, axis=-1)
    s = _A_ref(xn, A_wq, A_wk, A_wv, A_wo)
    g = _silu(_B_ref(xn, B_w_gate, B_w_up, B_w_down))
    return x + s * g
```

```python
import re, struct

def f2u(x):
    return struct.unpack("<I", struct.pack("<f", x))[0]

def vr(a, n=1):
    return f"v{a}" if n == 1 else f"v[{a}:{a+n-1}]"

def sr(a, n=1):
    return f"s{a}" if n == 1 else f"s[{a}:{a+n-1}]"

class Asm:
    def __init__(self):
        self.lines = []
    def __call__(self, s):
        for l in s.split("\n"):
            l = l.strip()
            if l:
                self.lines.append(l)
    def label(self, name):
        self.lines.append(name + ":")
    def nop(self, n):
        while n > 0:
            k = min(n, 16)
            self.lines.append(f"s_nop {k-1}")
            n -= k
    def text(self):
        out = []
        for l in self.lines:
            if l.endswith(":") or l.startswith("."):
                out.append(l)
            else:
                out.append("    " + l)
        return "\n".join(out) + "\n"

_reg = re.compile(r"(?<![\w])([vsa])(?:(\d+)|\[(\d+):(\d+)\])")
def regs(op):
    out = set()
    for m in _reg.finditer(op):
        k = m.group(1)
        if m.group(2) is not None:
            out.add((k, int(m.group(2))))
        else:
            for i in range(int(m.group(3)), int(m.group(4)) + 1):
                out.add((k, i))
    if re.search(r"\bvcc\b", op): out.add(("s", "vcc"))
    if re.search(r"\bm0\b", op): out.add(("s", "m0"))
    if re.search(r"\bexec\b", op): out.add(("s", "exec"))
    return out

TRANS = ("v_exp_f32", "v_log_f32", "v_rcp_f32", "v_rsq_f32", "v_sqrt_f32")
def parse(line):
    line = line.split(";")[0].strip()
    if not line or line.endswith(":") or line.startswith("."):
        return None
    p = line.split(None, 1)
    op = p[0]
    rest = p[1] if len(p) > 1 else ""
    ops = [x.strip() for x in re.split(r",\s*(?![^\[]*\])", rest)] if rest else []
    d = dict(op=op, line=line, w=set(), r=set(), kind="other", states=1)
    base = op.replace("_e32", "").replace("_e64", "")
    if op == "s_nop":
        d["states"] = int(ops[0]) + 1
        return d
    if op.startswith("v_mfma"):
        d["kind"] = "mfma"
        d["w"] = regs(ops[0]); d["A"] = regs(ops[1]) | regs(ops[2]); d["C"] = regs(ops[3])
        d["r"] = d["A"] | d["C"]
        if "32x32x16" in op: d["cls"], d["passes"] = "xdl", 8
        elif "32x32x8_bf16" in op: d["cls"], d["passes"] = "xdl", 8
        elif "16x16x32" in op: d["cls"], d["passes"] = "xdl", 4
        elif "32x32x2_f32" in op: d["cls"], d["passes"] = "sg", 16
        elif "16x16x4_f32" in op: d["cls"], d["passes"] = "sg", 8
        else: raise Exception("unknown mfma " + op)
        return d
    if op.startswith("v_"):
        d["kind"] = "valu"
        if base.startswith("v_cmp"):
            d["w"] = regs(ops[0]); d["r"] = set().union(*[regs(o) for o in ops[1:]])
        elif base.startswith("v_permlane"):
            d["w"] = regs(ops[0]) | regs(ops[1]); d["r"] = set(d["w"]); d["perm"] = True
        elif base in ("v_add_co_u32", "v_addc_co_u32"):
            d["w"] = regs(ops[0]) | regs(ops[1]); d["r"] = set().union(*[regs(o) for o in ops[2:]])
        else:
            d["w"] = regs(ops[0]); d["r"] = set().union(*[regs(o) for o in ops[1:]]) if len(ops) > 1 else set()
            if base in ("v_fmac_f32", "v_dot2c_f32_bf16", "v_writelane_b32"): d["r"] |= d["w"]
        d["trans"] = base in TRANS
        d["dot"] = base.startswith("v_dot")
        if op.endswith("_dpp"): d["perm"] = True
        d["rl"] = base in ("v_readfirstlane_b32", "v_readlane_b32")
        return d
    if op.startswith("ds_"):
        d["kind"] = "mem"
        if op.startswith("ds_read"):
            d["w"] = regs(ops[0]); d["r"] = regs(ops[1])
        else:
            d["r"] = set().union(*[regs(o) for o in ops])
        return d
    if op.startswith("buffer_") or op.startswith("global_"):
        d["kind"] = "mem"; d["vmem"] = True
        if op == "buffer_inv": return d
        lds = rest.rstrip().endswith(" lds") or "load_lds" in op
        if lds:
            d["r"] = set().union(*[regs(o) for o in ops]) | {("s", "m0")}; d["ldsdma"] = True
        elif "load" in op:
            d["w"] = regs(ops[0]); d["r"] = set().union(*[regs(o) for o in ops[1:]])
        else:
            d["r"] = set().union(*[regs(o) for o in ops])
            if "x4" in op or "x3" in op:
                d["wide"] = regs(ops[0]) if op.startswith("buffer") else regs(ops[1])
        return d
    if op.startswith("s_"):
        d["kind"] = "salu"
        if op.startswith("s_cmp") or op.startswith("s_cbranch") or op in ("s_waitcnt", "s_barrier", "s_branch", "s_setprio", "s_endpgm", "s_sleep"):
            d["r"] = set().union(*[regs(o) for o in ops]) if ops else set()
        else:
            d["w"] = regs(ops[0]); d["r"] = set().union(*[regs(o) for o in ops[1:]]) if len(ops) > 1 else set()
        return d
    raise Exception("cannot parse " + line)

XD = {2: 5, 4: 8, 8: 12, 16: 20}
SD = {2: 4, 4: 6, 8: 10, 16: 18}
def need(p, c):
    n = 0
    pv = {x for x in p["w"] if x[0] in "va"}
    ps = {x for x in p["w"] if x[0] == "s"}
    if p["kind"] == "valu":
        if c["kind"] == "mfma" and pv & c["r"]: n = max(n, 3 if p.get("dot") else 2)
        if c["kind"] == "valu":
            if p.get("trans") and not c.get("trans") and pv & c["r"]: n = max(n, 1)
            if c.get("perm") and pv & c["r"]: n = max(n, 2)
            if c.get("rl") and pv & c["r"]: n = max(n, 1)
            if ps & c["r"]: n = max(n, 2)
            if p.get("dot") and c["op"] != p["op"] and pv & (c["r"] | c["w"]): n = max(n, 3)
        if c["kind"] == "mem":
            if c.get("vmem") and ps & c["r"]: n = max(n, 5)
            if p.get("dot") and pv & c["r"]: n = max(n, 3)
            if p.get("trans") and pv & c["r"]: n = max(n, 1)
        if c["kind"] == "salu" and ps & c["r"]: n = max(n, 1)
    if p["kind"] == "salu":
        if c.get("ldsdma") and ("s", "m0") in p["w"]: n = max(n, 1)
    if p["kind"] == "mem" and p.get("wide"):
        if p["wide"] & c["w"]: n = max(n, 2)
    if p["kind"] == "mfma":
        T = XD if p["cls"] == "xdl" else SD
        ps_ = p["passes"]
        if c["kind"] == "mfma":
            if p["w"] & c["A"]: n = max(n, T[ps_])
            ov = p["w"] & (c["C"] | c["w"])
            if ov:
                same = (p["w"] == c["C"] and p["cls"] == c["cls"] and p["passes"] == c["passes"])
                if not same:
                    if p["cls"] == "xdl": n = max(n, {2: 4, 4: 6, 8: 10, 16: 18}[ps_])
                    elif c["cls"] == "sg": n = max(n, {2: 2, 4: 4, 8: 8, 16: 16}[ps_])
        elif c["kind"] in ("valu", "mem"):
            if p["w"] & (c["r"] | c["w"]): n = max(n, T[ps_])
            if c["kind"] == "valu" and p["cls"] == "xdl" and p["C"] & c["w"]: n = max(n, {2: 1, 4: 3, 8: 7, 16: 15}[ps_])
    return n

def check(lines, window=24):
    ins = []; labels = {}
    for l in lines:
        if l.endswith(":"):
            labels[l[:-1]] = len(ins); continue
        d = parse(l)
        if d: ins.append(d)
    errs = set()
    def walk(p, j, dist, depth):
        while j < len(ins) and dist < window:
            c = ins[j]
            n = need(p, c)
            if n > dist: errs.add((p["line"], c["line"], n, dist))
            dist += c["states"]
            if c["op"] == "s_endpgm": return
            if c["op"].startswith("s_cbranch") or c["op"] == "s_branch":
                tgt = c["line"].split()[1]
                if depth < 4: walk(p, labels[tgt], dist, depth + 1)
                if c["op"] == "s_branch": return
            j += 1
    for i, p in enumerate(ins):
        if p["w"] or p.get("wide"):
            walk(p, i + 1, 0, 0)
    return sorted(errs)
```

```python
import sys, math
from asmlib import Asm, vr, sr, f2u, check

NAME = "recurrent_scan__grouped_kv_mqa__glu_gated_geglu__prompt"

class Cfg:
    stamps = False
    stop = None
    force_fb = False
    shift = 90.0

WS_KV, WS_ST, WS_FL, WS_O, WS_H, WS_DBG = 0, 0x20000, 0x28000, 0x100000, 0x400000, 0xC00000
WS_SIZE = 0x1000000
L_X, L_G, L_U, L_R = 0, 49152, 98304, 147456
L_WD, L_WO, L_KV = 0, 32768, 98304
P_X, P_WQ, P_WK, P_WV, P_WO, P_WG, P_WU, P_WD, P_OUT, P_DBG, P_WS = 4, 6, 8, 10, 12, 16, 18, 20, 22, 24, 26
R_X, R_WKV, R_WD, R_WO, R_OUT, R_DBG, R_WS = 28, 32, 36, 40, 44, 48, 52
S_W, S_RB, S_CB, S_RT64, S_CT8 = 56, 57, 58, 59, 60
S_T16 = 61
S_VM = 62
S_XOFF = 64
S_M0X, S_M0W = 65, 66
S_ONES = 67
S_T0, S_T1, S_T2, S_T3 = 68, 69, 70, 71
S_OST = 72
S_FLG = 73
S_HST = 74
S_KQ, S_RT = 75, 76
S_WDO = 77
S_HLD = 78
S_W4K = 79
S_W2K = 80
S_SPIN = 81
S_WOO = 82
S_OLD = 83
S_EX = 84
S_TS = 86
S_CNT = 88
SPIN_MAX = 1 << 16

V_LANE = 1
V_STAMP = 255
V_L16 = 208

def mfma32(d, a, b, c):
    cs = "0" if c is None else vr(c, 16)
    return f"v_mfma_f32_32x32x16_bf16 {vr(d,16)}, {vr(a,4)}, {vr(b,4)}, {cs}"
def mfma16(d, a, b, c):
    cs = "0" if c is None else vr(c, 4)
    return f"v_mfma_f32_16x16x32_bf16 {vr(d,4)}, {vr(a,4)}, {vr(b,4)}, {cs}"

def gen(cfg):
    a = Asm()
    nst = [0]
    def stamp():
        if not cfg.stamps: return
        i = nst[0]; nst[0] += 1
        a(f"s_memrealtime {sr(S_TS,2)}\ns_waitcnt lgkmcnt(0)\nv_writelane_b32 v{V_STAMP}, s{S_TS}, {i}")
    def srd(r, p, size):
        a(f"s_mov_b32 s{r}, s{p}\ns_and_b32 s{r+1}, s{p+1}, 0xffff\ns_mov_b32 s{r+2}, {hex(size)}\ns_mov_b32 s{r+3}, 0x20000")

    a(f"s_cmp_ge_u32 s2, 256\ns_cbranch_scc1 L_end")
    a(f"s_load_dwordx16 s[4:19], s[0:1], 0\ns_load_dwordx8 s[20:27], s[0:1], 64")
    if cfg.stamps:
        a(f"v_mov_b32 v{V_STAMP}, 0")
    a(f"v_lshrrev_b32 v2, 6, v0\nv_and_b32 v{V_LANE}, 63, v0")
    a(f"v_readfirstlane_b32 s{S_W}, v2")
    a(f"""
    s_and_b32 s{S_T0}, s2, 7
    s_lshr_b32 s{S_T1}, s2, 3
    s_and_b32 s{S_T2}, s{S_T0}, 1
    s_lshl_b32 s{S_T2}, s{S_T2}, 3
    s_and_b32 s{S_CT8}, s{S_T1}, 7
    s_add_u32 s{S_RB}, s{S_T2}, s{S_CT8}
    s_lshr_b32 s{S_T1}, s{S_T1}, 3
    s_lshr_b32 s{S_T2}, s{S_T0}, 1
    s_lshl_b32 s{S_T2}, s{S_T2}, 2
    s_add_u32 s{S_CB}, s{S_T2}, s{S_T1}
    s_lshl_b32 s{S_T2}, s{S_T0}, 2
    s_add_u32 s{S_RT64}, s{S_T2}, s{S_T1}
    s_lshl_b32 s{S_T16}, s{S_RB}, 3
    s_lshr_b32 s{S_T2}, s{S_CB}, 1
    s_add_u32 s{S_T16}, s{S_T16}, s{S_T2}
    s_mov_b32 s{S_ONES}, 0x3f803f80
    s_lshl_b32 s{S_W4K}, s{S_W}, 12
    s_lshl_b32 s{S_W2K}, s{S_W}, 11
    s_lshl_b32 s{S_XOFF}, s{S_RB}, 17
    v_lshlrev_b32 v{V_L16}, 4, v{V_LANE}
    """)
    a(f"""
    v_and_b32 v5, 15, v{V_LANE}
    v_lshrrev_b32 v6, 4, v{V_LANE}
    v_lshlrev_b32 v3, 10, v5
    v_lshl_add_u32 v3, v6, 4, v3
    v_lshlrev_b32 v4, 3, v5
    v_lshl_add_u32 v4, v6, 8, v4
    s_add_u32 s{S_T3}, s{S_W4K}, {L_R}
    v_add_u32 v4, s{S_T3}, v4
    s_waitcnt lgkmcnt(0)
    """)
    stamp()
    srd(R_X, P_X, 0x200000)
    a(f"s_and_b32 s{S_T0}, s{S_CB}, 1\ns_cmp_eq_u32 s{S_T0}, 0\ns_cselect_b32 s{R_WKV}, s{P_WK}, s{P_WV}\ns_cselect_b32 s{R_WKV+1}, s{P_WK+1}, s{P_WV+1}")
    a(f"s_and_b32 s{R_WKV+1}, s{R_WKV+1}, 0xffff\ns_mov_b32 s{R_WKV+2}, 0x4000\ns_mov_b32 s{R_WKV+3}, 0x20000")
    PX, PW = 8, 24
    PACC, PCS, PRS, PSQ = 40, 44, 48, 52
    PONE, PSQP, PF1 = 56, 60, 61
    a(f"s_cmp_ge_u32 s{S_W}, 4\ns_cbranch_scc1 L_nopre_ld")
    a(f"s_lshl_b32 s{S_T0}, s{S_T16}, 14\ns_lshl_b32 s{S_T1}, s{S_W}, 8\ns_add_u32 s{S_T0}, s{S_T0}, s{S_T1}\ns_mov_b32 m0, s{S_T3}")
    for s in range(4):
        a(f"buffer_load_dwordx4 {vr(PX+4*s,4)}, v3, {sr(R_X,4)}, s{S_T0} offen offset:{64*s}")
    for e in range(4):
        a(f"buffer_load_dwordx4 v{V_L16}, {sr(R_WKV,4)}, s{S_W4K} offen offset:{1024*e} lds")
    a.label("L_nopre_ld")

    V_XD = 168
    V_WA = [[170, 172], [174, 176]]
    V_WST = [178, 180]
    a(f"""
    v_lshrrev_b32 v7, 3, v{V_LANE}
    v_lshrrev_b32 v62, 1, v7
    v_and_b32 v63, 7, v{V_LANE}
    v_xor_b32 v62, v62, v63
    v_lshlrev_b32 v62, 4, v62
    v_lshl_add_u32 v62, v7, 10, v62
    s_lshl_b32 s{S_T0}, s{S_W}, 14
    v_add_u32 v{V_XD}, s{S_T0}, v62
    v_xor_b32 v{V_XD+1}, 64, v{V_XD}
    v_add_u32 v{V_XD+1}, {8192-1024}, v{V_XD+1}
    """)
    def xdma(c):
        slot = (c + 2) % 3
        return [f"s_add_u32 m0, s{S_W2K}, {L_X + slot*16384}\ns_add_u32 s{S_T0}, s{S_XOFF}, {c*128}\n"
                f"buffer_load_dwordx4 v{V_XD}, {sr(R_X,4)}, s{S_T0} offen lds",
                f"buffer_load_dwordx4 v{V_XD+1}, {sr(R_X,4)}, s{S_T0} offen offset:1024 lds"]
    for l in xdma(0): a(l)
    a(f"""
    s_lshl_b32 s{S_T0}, s{S_W}, 3
    v_add_u32 v62, s{S_T0}, v6
    v_and_b32 v63, 1, v5
    v_lshlrev_b32 v63, 4, v63
    s_mul_i32 s{S_T1}, s{S_CB}, 224
    s_lshl_b32 s{S_T2}, s{S_CB}, 6
    v_lshrrev_b32 v182, 1, v5
    v_lshlrev_b32 v183, 1, v6
    v_xor_b32 v182, v182, v183
    v_mul_u32_u24 v184, 3584, v62
    v_add3_u32 v184, v184, s{S_T1}, v63
    v_lshlrev_b32 v185, 10, v62
    v_add3_u32 v185, v185, s{S_T2}, v63
    """)
    for img in range(2):
        pw = P_WG if img == 0 else P_WU
        A0, A1, ST = V_WA[img][0], V_WA[img][1], V_WST[img]
        a(f"""
        v_xor_b32 v186, {img}, v182
        v_lshl_add_u32 v187, v186, 5, v184
        v_add_u32 v188, {32*img}, v185
        v_cmp_eq_u32 vcc, 7, v186
        v_mov_b32 v189, s{pw}
        v_mov_b32 v190, s{pw+1}
        v_mov_b32 v191, s{P_WQ}
        v_mov_b32 v192, s{P_WQ+1}
        v_cndmask_b32 v194, v187, v188, vcc
        v_mov_b32 v195, 0
        v_cndmask_b32 v{A0}, v189, v191, vcc
        v_cndmask_b32 v{A0+1}, v190, v192, vcc
        v_mov_b32 v189, {64*3584}
        v_mov_b32 v190, {64*1024}
        v_lshl_add_u64 {vr(A0,2)}, v[194:195], 0, {vr(A0,2)}
        v_cndmask_b32 v{ST}, v189, v190, vcc
        v_mov_b32 v{ST+1}, 0
        v_lshrrev_b32 v194, 4, v{ST}
        v_subrev_u32 v194, 1024, v194
        v_lshl_add_u64 {vr(A1,2)}, v[194:195], 0, {vr(A0,2)}
        """)
    def wdma(c, img):
        slot = (c + 2) % 3
        A0, A1, ST = V_WA[img][0], V_WA[img][1], V_WST[img]
        adv = c < 7
        return [f"s_add_u32 m0, s{S_W2K}, {L_G + img*49152 + slot*16384}\ns_nop 0\n"
                f"global_load_lds_dwordx4 {vr(A0,2)}, off" + (f"\nv_lshl_add_u64 {vr(A0,2)}, {vr(ST,2)}, 0, {vr(A0,2)}" if adv else ""),
                f"global_load_lds_dwordx4 {vr(A1,2)}, off offset:1024" + (f"\nv_lshl_add_u64 {vr(A1,2)}, {vr(ST,2)}, 0, {vr(A1,2)}" if adv else "")]
    for img in range(2):
        for l in wdma(0, img): a(l)
    srd(R_WS, P_WS, WS_SIZE)
    a(f"""
    s_lshl_b32 s{S_T0}, s{S_RB}, 2
    s_lshr_b32 s{S_KQ}, s{S_W}, 1
    s_and_b32 s{S_RT}, s{S_W}, 1
    s_add_u32 s{S_T0}, s{S_T0}, s{S_KQ}
    s_lshl_b32 s{S_T0}, s{S_T0}, 5
    s_lshl_b32 s{S_T1}, s{S_CB}, 1
    s_add_u32 s{S_T0}, s{S_T0}, s{S_T1}
    s_add_u32 s{S_T0}, s{S_T0}, s{S_RT}
    s_lshl_b32 s{S_T0}, s{S_T0}, 10
    s_add_u32 s{S_OST}, s{S_T0}, {WS_O}
    s_lshl_b32 s{S_T0}, s{S_RB}, 4
    s_add_u32 s{S_T0}, s{S_T0}, s{S_CB}
    s_lshl_b32 s{S_T0}, s{S_T0}, 7
    s_lshl_b32 s{S_T1}, s{S_W}, 2
    s_add_u32 s{S_T0}, s{S_T0}, s{S_T1}
    s_add_u32 s{S_FLG}, s{S_T0}, {WS_FL}
    v_mov_b32 v196, -1
    v_mov_b32 v197, -1
    v_mov_b32 v198, -1
    v_mov_b32 v199, -1
    v_mov_b32 v200, 0
    buffer_store_dwordx4 v[196:199], v{V_L16}, {sr(R_WS,4)}, s{S_OST} offen sc1
    s_mov_b64 exec, 1
    buffer_store_dword v200, off, {sr(R_WS,4)}, s{S_FLG} sc1
    s_mov_b64 exec, -1
    """)
    for c in (1, 2):
        for l in xdma(c) + wdma(c, 0) + wdma(c, 1): a(l)
    srd(R_WD, P_WD, 1792 * 1024)
    srd(R_WO, P_WO, 512 * 1024)
    srd(R_OUT, P_OUT, 0x200000)
    srd(R_DBG, P_DBG, 256)
    V_XA, V_WR = 162, 166
    a(f"""
    v_and_b32 v62, 31, v{V_LANE}
    v_lshrrev_b32 v63, 5, v{V_LANE}
    v_bfe_u32 v182, v{V_LANE}, 1, 3
    v_xor_b32 v182, v182, v63
    v_lshlrev_b32 v182, 4, v182
    v_lshl_add_u32 v182, v62, 7, v182
    s_lshr_b32 s{S_T0}, s{S_W}, 2
    s_lshl_b32 s{S_T0}, s{S_T0}, 13
    v_add_u32 v{V_XA}, s{S_T0}, v182
    v_xor_b32 v{V_XA+1}, 32, v{V_XA}
    v_xor_b32 v{V_XA+2}, 64, v{V_XA}
    v_xor_b32 v{V_XA+3}, 96, v{V_XA}
    v_and_b32 v182, 1, v6
    v_bfe_u32 v183, v{V_LANE}, 2, 2
    v_lshl_add_u32 v184, v183, 1, v182
    s_and_b32 s{S_T0}, s{S_W}, 3
    s_lshl_b32 s{S_T0}, s{S_T0}, 1
    v_xor_b32 v184, s{S_T0}, v184
    v_lshlrev_b32 v184, 5, v184
    v_lshl_add_u32 v185, v63, 3, v183
    v_lshl_add_u32 v184, v185, 8, v184
    v_mul_u32_u24 v182, 49152, v182
    v_and_b32 v186, 1, v{V_LANE}
    v_bfe_u32 v187, v{V_LANE}, 1, 1
    v_lshl_add_u32 v186, v186, 1, v187
    v_lshlrev_b32 v209, 3, v186
    v_add3_u32 v184, v184, v182, v209
    v_add_u32 v{V_WR}, {L_G}, v184
    v_xor_b32 v{V_WR+1}, 32, v{V_WR}
    v_mov_b32 v160, 0
    v_mov_b32 v161, 0
    """)
    a(f"s_cmp_ge_u32 s{S_W}, 4\ns_cbranch_scc1 L_nopre")
    for i in range(4): a(f"v_mov_b32 v{PONE+i}, s{S_ONES}")
    a(f"v_mov_b32 v{PSQP}, 0\nv_mov_b32 v{PF1}, 1.0")
    a("s_waitcnt vmcnt(20)")
    stamp()
    for s in range(4):
        for t in range(2):
            a(f"ds_read_b64_tr_b16 {vr(PW+4*s+2*t,2)}, v4 offset:{1024*s+128*t}")
    for i in range(16):
        a(f"v_dot2c_f32_bf16 v{PSQP}, v{PX+i}, v{PX+i}")
    a(f"s_and_b32 s{S_T0}, s{S_CB}, 1\ns_cmp_eq_u32 s{S_T0}, 0\ns_waitcnt lgkmcnt(0)\ns_cbranch_scc0 L_preV")
    for form in range(2):
        if form == 1: a.label("L_preV")
        def mm(d, w, x, first):
            return mfma16(d, w, x, None if first else d) if form == 0 else mfma16(d, x, w, None if first else d)
        if form == 0: a(f"v_mfma_f32_16x16x4_f32 {vr(PSQ,4)}, v{PF1}, v{PSQP}, 0")
        else:         a(f"v_mfma_f32_16x16x4_f32 {vr(PSQ,4)}, v{PSQP}, v{PF1}, 0")
        for s in range(4):
            a(mm(PRS, PONE, PX + 4*s, s == 0))
            a(mm(PCS, PW + 4*s, PONE, s == 0))
            a(mm(PACC, PW + 4*s, PX + 4*s, s == 0))
        if form == 0: a("s_branch L_pre_w")
    a.label("L_pre_w")
    a(f"s_cmp_eq_u32 s{S_W}, 0\ns_cbranch_scc1 L_nopre")
    a(f"v_add_u32 v2, s{S_T3}, v{V_L16}")
    a.nop(4)
    for q, r in ((3, PSQ), (2, PRS), (1, PCS), (0, PACC)):
        a(f"ds_write_b128 v2, {vr(r,4)} offset:{1024*q}")
    a.label("L_nopre")
    if cfg.stamps and True:
        pass
    a("s_waitcnt vmcnt(14) lgkmcnt(0)\ns_barrier")
    nst[0] = 2
    stamp()

    ACC, XF, WF, CS = 64, 128, 144, 160
    def acc(ti, rt): return ACC + 32*ti + 16*rt
    def g1_reads(g):
        c, s = divmod(g, 4); slot = (c + 2) % 3; st = g & 1
        xr = [f"ds_read_b128 {vr(XF+8*st+4*rt,4)}, v{V_XA+s} offset:{slot*16384 + rt*4096}" for rt in range(2)]
        wr = [[f"ds_read_b64_tr_b16 {vr(WF+8*st+4*ti+2*t,2)}, v{V_WR+ti} offset:{slot*16384 + s*4096 + t*1024}" for t in range(2)] for ti in range(2)]
        return [wr[0][0], wr[0][1], xr[0], xr[1], wr[1][0], wr[1][1]]
    for l in g1_reads(0): a(l)

    a(f"s_cmp_lg_u32 s{S_W}, 0\ns_cbranch_scc1 L_nofin")
    T = 210
    RD = 212
    a(f"v_add_u32 v2, {L_R}, v{V_L16}")
    for w in (1, 2):
        for q in range(4):
            a(f"ds_read_b128 {vr(8 + 16*(w-1) + 4*q,4)}, v2 offset:{4096*w + 1024*q}")
    for q in range(4):
        a(f"ds_read_b128 {vr(RD + 4*q,4)}, v2 offset:{4096*3 + 1024*q}")
    a("s_waitcnt lgkmcnt(4)")
    for i in range(0, 16, 2):
        a(f"v_pk_add_f32 {vr(8+i,2)}, {vr(8+i,2)}, {vr(24+i,2)}")
    a("s_waitcnt lgkmcnt(0)")
    for i in range(0, 16, 2):
        a(f"v_pk_add_f32 {vr(PACC+i,2)}, {vr(PACC+i,2)}, {vr(RD+i,2)}")
    for i in range(0, 16, 2):
        a(f"v_pk_add_f32 {vr(PACC+i,2)}, {vr(PACC+i,2)}, {vr(8+i,2)}")
    for i in range(4):
        a(f"v_mul_f32 v{PRS+i}, {hex(f2u(-1.0/512))}, v{PRS+i}")
        a(f"v_mul_f32 v{PSQ+i}, {hex(f2u(1.0/512))}, v{PSQ+i}")
        a(f"v_fma_f32 v{PSQ+i}, -v{PRS+i}, v{PRS+i}, v{PSQ+i}")
        a(f"v_max_f32 v{PSQ+i}, 0, v{PSQ+i}")
        a(f"v_add_f32 v{PSQ+i}, {hex(f2u(1e-5))}, v{PSQ+i}")
        a(f"v_rsq_f32 v{8+i}, v{PSQ+i}")
        a(f"v_fmac_f32 v{PACC+i}, v{PRS+i}, v{PCS+i}")
    for i in range(4):
        a(f"v_mul_f32 v{PACC+i}, v{PACC+i}, v{8+i}")
    a(f"v_cvt_pk_bf16_f32 v12, v{PACC}, v{PACC+1}\nv_cvt_pk_bf16_f32 v13, v{PACC+2}, v{PACC+3}")
    a(f"""
    s_lshr_b32 s{S_T0}, s{S_T16}, 1
    s_lshl_b32 s{S_T0}, s{S_T0}, 11
    s_and_b32 s{S_T1}, s{S_T16}, 1
    v_lshrrev_b32 v14, 1, v6
    v_and_b32 v15, 1, v6
    s_and_b32 s{S_T2}, s{S_CB}, 1
    s_cmp_eq_u32 s{S_T2}, 0
    s_cbranch_scc0 L_pubV
    s_lshl_b32 s{S_T1}, s{S_T1}, 8
    s_add_u32 s{S_T0}, s{S_T0}, s{S_T1}
    v_lshl_add_u32 v14, v14, 5, v5
    v_lshlrev_b32 v14, 4, v14
    v_lshl_add_u32 v14, v15, 3, v14
    v_mov_b32 v16, v{PRS}
    v_mov_b32 v17, v{PSQ}
    v_lshlrev_b32 v18, 3, v5
    s_lshl_b32 s{S_T1}, s{S_T16}, 7
    s_add_u32 s{S_T1}, s{S_T1}, {WS_ST}
    s_mov_b64 exec, 0xffff
    buffer_store_dwordx2 v[16:17], v18, {sr(R_WS,4)}, s{S_T1} offen sc1
    s_mov_b64 exec, -1
    s_branch L_pub
    """)
    a.label("L_pubV")
    a(f"""
    s_lshl_b32 s{S_T1}, s{S_T1}, 9
    s_add_u32 s{S_T0}, s{S_T0}, s{S_T1}
    s_add_u32 s{S_T0}, s{S_T0}, 1024
    v_and_b32 v16, 3, v5
    v_bfe_u32 v17, v5, 2, 1
    v_lshl_add_u32 v16, v17, 3, v16
    v_bfe_u32 v17, v5, 3, 1
    v_lshl_add_u32 v16, v17, 2, v16
    v_lshl_add_u32 v16, v15, 4, v16
    v_lshlrev_b32 v16, 4, v16
    v_lshl_add_u32 v14, v14, 3, v16
    """)
    a.label("L_pub")
    a(f"buffer_store_dwordx2 v[12:13], v14, {sr(R_WS,4)}, s{S_T0} offen sc1")
    a.label("L_nofin")

    a(f"""
    s_mov_b32 s{S_VM}, 0xffff
    s_mov_b32 s{S_VM+1}, 0xffff
    s_lshl_b32 s{S_T0}, s{S_RB}, 2
    s_lshr_b32 s{S_T1}, s{S_W}, 2
    s_lshl_b32 s{S_T1}, s{S_T1}, 1
    s_add_u32 s{S_T0}, s{S_T0}, s{S_T1}
    s_mul_i32 s{S_T0}, s{S_T0}, 112
    s_mul_i32 s{S_T1}, s{S_CB}, 7
    s_add_u32 s{S_T0}, s{S_T0}, s{S_T1}
    s_and_b32 s{S_T1}, s{S_W}, 3
    s_lshl_b32 s{S_T1}, s{S_T1}, 1
    s_add_u32 s{S_T0}, s{S_T0}, s{S_T1}
    s_lshl_b32 s{S_T0}, s{S_T0}, 10
    s_add_u32 s{S_HST}, s{S_T0}, {WS_H}
    """)

    V_ST = 2
    V_WDD = 210
    def kvdma(c, start):
        slot = (c + 1) % 3
        return [f"s_add_u32 m0, s{S_W2K}, {L_KV + slot*16384}\ns_add_u32 s{S_T0}, s{S_W2K}, {WS_KV + start*2048}\n"
                f"buffer_load_dwordx4 v{V_L16}, {sr(R_WS,4)}, s{S_T0} offen sc1 lds",
                f"buffer_load_dwordx4 v{V_L16}, {sr(R_WS,4)}, s{S_T0} offen offset:1024 sc1 lds"]
    sizes = [8] + [7] * 8
    starts = [sum(sizes[:i]) for i in range(len(sizes))]
    pend = []
    for g in range(32):
        c, s = divmod(g, 4); st = g & 1
        last = g == 31
        if s == 3 and not last:
            if c == 0:
                a(f"s_cmp_eq_u32 s{S_W}, 0\ns_cbranch_scc1 L_w0c0\ns_waitcnt vmcnt(6)")
                a.label("L_w0c0")
                a("s_waitcnt vmcnt(7) lgkmcnt(0)")
            elif c == 6:
                a("s_waitcnt vmcnt(0) lgkmcnt(0)")
                a(f"s_cmp_lg_u32 s{S_W}, 0\ns_cbranch_scc1 L_sync1\ns_mov_b32 s{S_SPIN}, 0")
                a.label("L_sync1_chk")
                a(f"""
                v_cmp_ne_u32 vcc, 32, v7
                s_add_u32 s{S_SPIN}, s{S_SPIN}, 1
                s_cbranch_vccz L_sync1
                s_cmp_ge_u32 s{S_SPIN}, {SPIN_MAX}
                s_cbranch_scc1 L_sync1
                buffer_load_dword v7, v6, {sr(R_DBG,4)}, 0 offen sc1
                s_waitcnt vmcnt(0)
                s_branch L_sync1_chk
                """)
                a.label("L_sync1")
            else:
                a("s_waitcnt vmcnt(6) lgkmcnt(0)")
            a("s_barrier")
            if c == 1:
                a(f"""
                s_cmp_lg_u32 s{S_W}, 0
                s_cbranch_scc1 L_noarr
                s_and_b32 s{S_T0}, s2, 7
                s_lshl_b32 s{S_T0}, s{S_T0}, 5
                v_mov_b32 v7, 1
                v_and_b32 v6, 7, v{V_LANE}
                v_lshlrev_b32 v6, 5, v6
                s_mov_b64 exec, 1
                buffer_atomic_add v7, off, {sr(R_DBG,4)}, s{S_T0} sc1
                s_mov_b64 exec, -1
                """)
                a.label("L_noarr")
            if c + 3 <= 7:
                pend = xdma(c + 3) + wdma(c + 3, 0) + wdma(c + 3, 1)
            if c == 6:
                stamp()
                pend = [f"v_and_b32 v6, 31, v{V_LANE}\nv_lshlrev_b32 v6, 3, v6\ns_lshl_b32 s{S_T0}, s{S_RB}, 10\ns_lshr_b32 s{S_T1}, s{S_W}, 2\ns_lshl_b32 s{S_T1}, s{S_T1}, 9\n"
                        f"s_add_u32 s{S_T0}, s{S_T0}, s{S_T1}\ns_add_u32 s{S_T0}, s{S_T0}, {WS_ST}\n"
                        f"buffer_load_dwordx2 {vr(V_ST,2)}, v6, {sr(R_WS,4)}, s{S_T0} offen sc1",
                        f"buffer_load_dwordx2 {vr(V_ST+2,2)}, v6, {sr(R_WS,4)}, s{S_T0} offen offset:256 sc1"]
                pend += kvdma(0, starts[0]) + kvdma(1, starts[1])
        else:
            a("s_waitcnt lgkmcnt(0)")
        if c == 6 and s == 1:
            a(f"s_cmp_lg_u32 s{S_W}, 0\ns_cbranch_scc1 L_nopoll\nbuffer_load_dword v7, v6, {sr(R_DBG,4)}, 0 offen sc1")
            a.label("L_nopoll")
        rd = [] if last else g1_reads(g + 1)
        first = g == 0
        def mm(ti, rt): return mfma32(acc(ti, rt), WF + 8*st + 4*ti, XF + 8*st + 4*rt, None if first else acc(ti, rt))
        def dots(ti, k): return [f"v_dot2c_f32_bf16 v{CS+ti}, s{S_ONES}, v{WF+8*st+4*ti+k+i}" for i in range(2)]
        vm = [pend.pop(0) for _ in range(min(2, len(pend)))]
        seq = [mm(0, 0)] + rd[0:2] + dots(0, 0) + [mm(0, 1)] + rd[2:4] + dots(0, 2) + [mm(1, 1)] + rd[4:6] + dots(1, 0) + vm[0:1] + [mm(1, 0)] + dots(1, 2) + vm[1:2]
        for l in seq: a(l)
    assert not pend
    stamp()

    KG = 2.0 * math.sqrt(2.0 / math.pi) * math.log2(math.e)
    a("s_waitcnt vmcnt(4)")
    for rt in range(2):
        b = 8 + 4*rt
        a(f"v_rsq_f32 v{b+3}, v{V_ST+2*rt+1}")
    def rank1(ti, rt): return f"v_mfma_f32_32x32x2_f32 {vr(acc(ti,rt),16)}, v{CS+ti}, v{V_ST+2*rt}, {vr(acc(ti,rt),16)}"
    for rt in range(2):
        b = 8 + 4*rt
        a(f"v_mul_f32 v{b}, {hex(f2u(-KG))}, v{b+3}")
        a(f"v_mul_f32 v{b+2}, v{b+3}, v{b+3}")
        a(f"v_mul_f32 v{b+1}, {hex(f2u(0.044715))}, v{b}")
        a(f"v_mul_f32 v{b+1}, v{b+1}, v{b+2}")
        a(f"v_mul_f32 v{b+3}, {hex(f2u(0.25*math.log2(math.e)))}, v{b+3}")
    def gelu(ti, rt, tb):
        A = acc(ti, rt); b = 8 + 4*rt; vp = V_ST + 2*rt
        t1, t2, o = tb, tb + 8, tb + 16
        L = []
        for i in range(0, 8, 2): L.append(f"v_pk_mul_f32 {vr(t1+i,2)}, {vr(A+i,2)}, {vr(A+i,2)}")
        for i in range(0, 8, 2): L.append(f"v_pk_fma_f32 {vr(t1+i,2)}, {vr(t1+i,2)}, {vr(b,2)}, {vr(b,2)} op_sel:[0,1,0] op_sel_hi:[1,1,0]")
        for i in range(0, 8, 2): L.append(f"v_pk_mul_f32 {vr(t1+i,2)}, {vr(t1+i,2)}, {vr(A+i,2)}")
        for i in range(8): L.append(f"v_exp_f32 v{t1+i}, v{t1+i}")
        for i in range(0, 8, 2): L.append(f"v_pk_mul_f32 {vr(t2+i,2)}, {vr(A+i,2)}, {vr(A+8+i,2)}")
        for i in range(0, 8, 2): L.append(f"v_pk_fma_f32 {vr(t1+i,2)}, {vr(t1+i,2)}, {vr(vp,2)}, {vr(vp,2)} op_sel:[0,1,1] op_sel_hi:[1,1,1]")
        for i in range(8): L.append(f"v_rcp_f32 v{t1+i}, v{t1+i}")
        for i in range(0, 8, 2): L.append(f"v_pk_mul_f32 {vr(t2+i,2)}, {vr(t2+i,2)}, {vr(t1+i,2)}")
        for i in range(4): L.append(f"v_cvt_pk_bf16_f32 v{o+i}, v{t2+2*i}, v{t2+2*i+1}")
        so = S_HST if rt == 0 else S_T1
        L.append(f"buffer_store_dwordx4 {vr(o,4)}, v{V_L16}, {sr(R_WS,4)}, s{so} offen offset:{1024*ti} sc1")
        return L
    def qtile(rt, tb):
        A = acc(1, rt); b = 8 + 4*rt
        L = []
        for i in range(0, 16, 2): L.append(f"v_pk_mul_f32 {vr(A+i,2)}, {vr(A+i,2)}, {vr(b+2,2)} op_sel:[0,1] op_sel_hi:[1,1]")
        for i in range(8): L.append(f"v_cvt_pk_bf16_f32 v{tb+i}, v{A+2*i}, v{A+2*i+1}")
        for hd in range(2): L.append(f"ds_write_b128 v7, {vr(tb+4*hd,4)} offset:{2048*rt + 1024*hd}")
        return L
    a(f"s_add_u32 s{S_T1}, s{S_HST}, {112*1024}")
    a(rank1(0, 0)); a(rank1(0, 1))
    a(f"s_lshr_b32 s{S_T0}, s{S_W}, 2\ns_lshl_b32 s{S_T0}, s{S_T0}, 12\ns_add_u32 s{S_T0}, s{S_T0}, {L_R}\nv_add_u32 v7, s{S_T0}, v{V_L16}")
    a.nop(13)
    L = gelu(0, 0, 16)
    for l in L[:20]: a(l)
    a(rank1(1, 1))
    for l in L[20:]: a(l)
    L = gelu(0, 1, 40)
    for l in L[:4]: a(l)
    a(rank1(1, 0))
    for l in L[4:]: a(l)
    a(f"s_and_b32 s{S_T0}, s{S_W}, 3\ns_cmp_eq_u32 s{S_T0}, 3\ns_cbranch_scc1 L_qt")
    for l in gelu(1, 1, 16) + gelu(1, 0, 40): a(l)
    a("s_waitcnt vmcnt(6)\ns_branch L_epi_end")
    a.label("L_qt")
    for l in qtile(1, 24) + qtile(0, 48): a(l)
    a("s_waitcnt vmcnt(4)")
    a.label("L_epi_end")

    S0, S1, PP, OO, CC, QF, KF, VF = 16, 32, 48, 64, 80, 96, 100, 108
    YY, HF, DF = 128, 160, 192
    V_KA, V_VA, V_DA, V_XR, V_FO = 211, 212, 213, 216, 215
    a(f"""
    v_add_u32 v{V_KA}, {L_KV}, v{V_L16}
    v_and_b32 v2, 15, v{V_LANE}
    v_lshrrev_b32 v3, 5, v{V_LANE}
    v_lshl_add_u32 v2, v3, 4, v2
    v_lshlrev_b32 v2, 4, v2
    v_add_u32 v{V_VA}, {L_KV + 1024}, v2
    s_lshl_b32 s{S_T0}, s{S_W}, 10
    s_add_u32 s{S_T0}, s{S_T0}, {L_R}
    v_add_u32 v4, s{S_T0}, v{V_L16}
    v_and_b32 v5, 27, v{V_LANE}
    v_mov_b32 v6, s{S_ONES}
    v_cmp_eq_u32 vcc, 16, v5
    s_waitcnt lgkmcnt(0)
    s_barrier
    """)
    stamp()
    def kv_off(t):
        c = max(i for i in range(len(starts)) if starts[i] <= t)
        return ((c + 1) % 3) * 16384 + (t - starts[c]) * 2048
    a(f"ds_read_b128 {vr(QF,4)}, v4")
    a(f"ds_read_b128 {vr(KF,4)}, v{V_KA} offset:{kv_off(0)}")
    a(f"ds_read_b128 {vr(KF+4,4)}, v{V_KA} offset:{kv_off(1)}")
    a(f"v_cndmask_b32 v{VF}, 0, v6, vcc")
    for i in range(1, 16): a(f"v_mov_b32 v{VF+i}, v{VF}")
    a("s_waitcnt lgkmcnt(1)")
    a(mfma32(S1, KF, QF, None))
    a(f"""
    v_lshrrev_b32 v5, 3, v{V_LANE}
    v_and_b32 v6, 7, v{V_LANE}
    v_bfe_u32 v7, v{V_LANE}, 4, 1
    v_lshlrev_b32 v8, 2, v7
    v_xor_b32 v6, v6, v8
    v_lshlrev_b32 v6, 4, v6
    v_lshl_add_u32 v{V_WDD}, v5, 10, v6
    v_bfe_u32 v5, v{V_LANE}, 2, 2
    v_and_b32 v6, 2, v5
    v_xor_b32 v6, v6, v7
    v_xor_b32 v6, s{S_KQ}, v6
    v_lshl_add_u32 v5, v3, 3, v5
    v_lshlrev_b32 v5, 7, v5
    v_lshl_add_u32 v5, v6, 5, v5
    s_lshl_b32 s{S_T0}, s{S_KQ}, 13
    v_add3_u32 v{V_DA}, v5, s{S_T0}, v209
    v_xor_b32 v{V_DA+1}, 64, v{V_DA}
    """)
    def maxtree(src, dst, init=None):
        L = []
        if init is None:
            L.append(f"v_max3_f32 v{dst}, v{src}, v{src+1}, v{src+2}")
            L.append(f"v_max_f32 v{dst}, v{src+3}, v{dst}")
            k = 4
        else:
            k = 0
        for i in range(k, 16, 2): L.append(f"v_max3_f32 v{dst}, v{src+i}, v{src+i+1}, v{dst}")
        return L
    def setC(m, shift):
        a(f"v_mov_b32 v{m+1}, v{m}\ns_nop 1\nv_permlane32_swap_b32 v{m}, v{m+1}\nv_max_f32 v{m}, v{m}, v{m+1}")
        a(f"v_sub_f32 v{CC}, {hex(f2u(-shift)) if shift else 0}, v{m}")
        a(f"v_mov_b32 v{CC+1}, v{CC}")
        for i in range(2, 16, 2): a(f"v_mov_b64 {vr(CC+i,2)}, {vr(CC,2)}")
    for l in maxtree(S1, 8): a(l)
    setC(8, cfg.shift)
    a(f"""
    s_mul_i32 s{S_T0}, s{S_KQ}, {448*1024}
    s_lshl_b32 s{S_T1}, s{S_RT}, 15
    """)
    a(mfma32(S0, KF, QF, CC))
    a(f"""
    s_add_u32 s{S_T0}, s{S_T0}, s{S_T1}
    s_lshl_b32 s{S_T1}, s{S_CT8}, 7
    s_add_u32 s{S_WDO}, s{S_T0}, s{S_T1}
    s_lshl_b32 s{S_T0}, s{S_W}, 15
    s_add_u32 s{S_WOO}, s{S_T0}, s{S_T1}
    s_lshl_b32 s{S_T2}, s{S_RT64}, 1
    s_add_u32 s{S_T2}, s{S_T2}, s{S_RT}
    s_mul_i32 s{S_T0}, s{S_T2}, 112
    s_mul_i32 s{S_T3}, s{S_KQ}, 28
    s_add_u32 s{S_T0}, s{S_T0}, s{S_T3}
    s_lshl_b32 s{S_T0}, s{S_T0}, 10
    s_add_u32 s{S_HLD}, s{S_T0}, {WS_H}
    s_lshl_b32 s{S_T0}, s{S_T2}, 15
    s_lshl_b32 s{S_T3}, s{S_KQ}, 13
    s_add_u32 s{S_T3}, s{S_T0}, s{S_T3}
    s_add_u32 s{S_OLD}, s{S_T3}, {WS_O}
    s_add_u32 s{S_T0}, s{S_T0}, s{S_T1}
    s_lshl_b32 s{S_T1}, s{S_KQ}, 5
    s_add_u32 s{S_T0}, s{S_T0}, s{S_T1}
    v_and_b32 v5, 31, v{V_LANE}
    v_lshlrev_b32 v5, 10, v5
    v_lshl_add_u32 v5, v3, 4, v5
    v_add_u32 v{V_FO}, s{S_T0}, v5
    v_bfe_u32 v5, v{V_LANE}, 2, 2
    v_and_b32 v6, 3, v{V_LANE}
    v_lshlrev_b32 v6, 2, v6
    v_lshl_add_u32 v2, v5, 7, v6
    v_mov_b32 v4, 1
    """)

    def rowdma(rs, sbase, add, ldsbase, e):
        pre = f"s_add_u32 m0, s{S_W4K}, {ldsbase}\n"
        return pre + f"s_add_u32 s{S_T0}, s{sbase}, {add + e*7168}\nbuffer_load_dwordx4 v{V_WDD}, {sr(rs,4)}, s{S_T0} offen offset:{1024*e} lds"
    tbs = [starts[c] - 3 for c in range(1, len(starts))]
    def attention(half):
        sfx = "AB"[half]
        head = {t: [] for t in range(65)}
        bg = {t: [] for t in range(65)}
        for ci, tb in enumerate(tbs):
            if ci + 2 < len(starts):
                head[tb+1] += kvdma(ci + 2, starts[ci + 2])
            dload = ci
            if dload <= 6:
                w = [rowdma(R_WD, S_WDO, dload*65536, L_WD + (dload & 1)*32768, e) for e in range(4)]
                head[tb+1] += w[:1]; head[tb+2] += w[1:]
                hl = [f"buffer_load_dwordx4 {vr(HF + 16*(dload&1) + 4*j,4)}, v{V_L16}, {sr(R_WS,4)}, s{S_T1} offen offset:{1024*j} sc1" for j in range(4)]
                hl[0] = f"s_add_u32 s{S_T1}, s{S_HLD}, {dload*4096}\n" + hl[0]
                head[tb + (5 if dload == 0 else 3)] += hl
            else:
                w = [rowdma(R_WO, S_WOO, 0, L_WO, e) for e in range(4)]
                head[tb+1] += w[:2]; head[tb+2] += w[2:]
                head[tb+3] += [f"buffer_load_dwordx4 {vr(V_XR,4)}, v{V_FO}, {sr(R_X,4)}, 0 offen"]
            d = ci - 1
            if d >= 0:
                lh = [1, 1, 2, 3, 4, 5, 6, 6]; mb = [2, 2, 3, 4, 5, 6, 7, 8]
                for k in range(8):
                    j, ct = divmod(k, 2); fr = DF + 4 * (k & 3)
                    for t in range(2):
                        head[tb + lh[k]].append(f"ds_read_b64_tr_b16 {vr(fr+2*t,2)}, v{V_DA+ct} offset:{L_WD + (d&1)*32768 + j*2048 + t*512}")
                    bg[tb + mb[k]].append(mfma32(YY + 16*ct, fr, HF + 16*(d&1) + 4*j, None if (d == 0 and j == 0) else YY + 16*ct))
        w = [rowdma(R_WO, S_WOO, 256*1024, L_WO + 32768, e) for e in range(4)]
        head[0] += w[:2]; head[1] += w[2:]
        head[3] += [f"s_waitcnt vmcnt(0)\ns_mov_b64 exec, 1\nbuffer_store_dword v4, off, {sr(R_WS,4)}, s{S_FLG} sc1\ns_mov_b64 exec, -1"]
        tp = tbs[0] + 4
        poll = f"buffer_load_dword v3, v2, {sr(R_WS,4)}, s{S_T2} offen sc1"
        head[tp] += [f"s_lshr_b32 s{S_T2}, s{S_RT64}, 1\ns_lshl_b32 s{S_T2}, s{S_T2}, 11\ns_lshl_b32 s{S_T3}, s{S_KQ}, 9\ns_add_u32 s{S_T2}, s{S_T2}, s{S_T3}\n"
                     f"s_and_b32 s{S_T3}, s{S_RT64}, 1\ns_lshl_b32 s{S_T3}, s{S_T3}, 4\ns_add_u32 s{S_T2}, s{S_T2}, s{S_T3}\ns_add_u32 s{S_T2}, s{S_T2}, {WS_FL}\n" + poll]
        head[tp+1] = [f"s_mov_b32 s{S_SPIN}, 0\nL_hchk{sfx}:\ns_waitcnt vmcnt(0)\nv_cmp_ne_u32 vcc, 1, v3\ns_add_u32 s{S_SPIN}, s{S_SPIN}, 1\ns_cbranch_vccz L_hok{sfx}\n"
                      f"s_cmp_ge_u32 s{S_SPIN}, {SPIN_MAX}\ns_cbranch_scc1 L_hok{sfx}\n{poll}\ns_branch L_hchk{sfx}\nL_hok{sfx}:"] + head[tp+1]
        for t in range(64):
            par = t & 1
            sd, sn = (S0, S1) if par == 0 else (S1, S0)
            p, pp = PP + 8*par, PP + 8*(1 - par)
            isb = t in tbs
            if isb and half == 1: a("s_waitcnt vmcnt(0) lgkmcnt(0)\ns_barrier")
            else: a("s_waitcnt lgkmcnt(0)")
            if t + 2 < 64: a(f"ds_read_b128 {vr(KF+4*par,4)}, v{V_KA} offset:{kv_off(t+2)}")
            a(f"s_mov_b64 exec, {sr(S_VM,2)}")
            a(f"ds_read_b128 {vr(VF+8*par,4)}, v{V_VA} offset:{kv_off(t)}")
            a(f"ds_read_b128 {vr(VF+8*par+4,4)}, v{V_VA} offset:{kv_off(t)+512}")
            a("s_mov_b64 exec, -1")
            for l in head[t]: a(l)
            if isb and half == 0: a("s_waitcnt vmcnt(0)\ns_barrier")
            mf = []
            if t + 1 < 64: mf.append(mfma32(sn, KF + 4*(1-par), QF, CC))
            if t >= 1:
                vp = VF + 8*(1-par)
                mf.append(mfma32(OO, vp, pp, None if t == 1 else OO))
                mf += bg[t][:1]
                mf.append(mfma32(OO, vp + 4, pp + 4, OO))
                mf += bg[t][1:]
            a(".p2align 3")
            pos = {0: [], 1: [1], 2: [1, 4], 3: [1, 3, 6], 4: [1, 3, 5, 7], 5: [0, 2, 3.5, 5, 6.5]}[len(mf)]
            k = 0
            for i in range(8):
                if k < len(mf) and pos[k] == i: a(mf[k]); k += 1
                if i == 0 and half == 1:
                    a(f"v_exp_f32 v{sd}, v{sd}\ns_setprio 1\nv_exp_f32_e64 v{sd+1}, v{sd+1}")
                else:
                    a(f"v_exp_f32 v{sd+2*i}, v{sd+2*i}\nv_exp_f32 v{sd+2*i+1}, v{sd+2*i+1}")
                if k < len(mf) and pos[k] == i + 0.5: a(mf[k]); k += 1
                if i >= 1: a(f"v_cvt_pk_bf16_f32 v{p+i-1}, v{sd+2*i-2}, v{sd+2*i-1}")
            assert k == len(mf)
            a(f"v_cvt_pk_bf16_f32 v{p+7}, v{sd+14}, v{sd+15}")
            if half == 1: a("s_setprio 0")
        a("s_waitcnt lgkmcnt(0)\ns_nop 0")
        a(mfma32(OO, VF + 8, PP + 8, OO)); a(mfma32(OO, VF + 12, PP + 12, OO))
    a(f"s_cmp_ge_u32 s{S_W}, 4\ns_cbranch_scc1 L_attB")
    attention(0)
    a("s_branch L_att_end")
    a.label("L_attB")
    attention(1)
    a.label("L_att_end")
    stamp()
    a(f"s_lshl_b32 s{S_T0}, s{S_KQ}, 13\ns_add_u32 s{S_T0}, s{S_T0}, {L_WO}")
    a(f"v_add_u32 v{V_DA}, s{S_T0}, v{V_DA}\nv_xor_b32 v{V_DA+1}, 64, v{V_DA}")
    a(f"v_add_u32 v5, s{S_W2K}, v{V_L16}")
    a(f"s_mov_b32 s{S_T2}, {hex(f2u(2.0**120))}\ns_mov_b32 s{S_T3}, {hex(f2u(2.0**-105))}")
    a.nop(6)
    a(f"v_add_f32 v8, abs(v{OO}), abs(v{OO+1})")
    for i in range(2, 8): a(f"v_add_f32 v8, abs(v{OO+i}), v8")
    a(f"""
    v_add_f32 v9, v8, v{OO+8}
    v_cmp_gt_f32 {sr(S_EX,2)}, s{S_T3}, v8
    v_cmp_ngt_f32 vcc, s{S_T2}, v9
    s_nop 1
    s_or_b64 vcc, vcc, {sr(S_EX,2)}
    """)
    a("s_branch L_fb" if cfg.force_fb else "s_cbranch_scc1 L_fb")
    a.label("L_norm")
    a(f"v_rcp_f32 v8, v{OO+8}\ns_nop 0")
    for i in range(0, 8, 2): a(f"v_pk_mul_f32 {vr(OO+i,2)}, {vr(OO+i,2)}, v[8:9] op_sel_hi:[1,0]")
    for i in range(4): a(f"v_cvt_pk_bf16_f32 v{12+i}, v{OO+2*i}, v{OO+2*i+1}")
    for i in range(4): a(f"v_min_u32 v{12+i}, -2, v{12+i}")
    a(f"buffer_store_dwordx4 v[12:15], v{V_L16}, {sr(R_WS,4)}, s{S_OST} offen sc1")
    a("s_waitcnt vmcnt(1)\ns_barrier")
    def scatter(src, bases):
        for z in (1, 2, 3):
            a(f"v_xor_b32 v6, {z*4096}, v5" + (f"\nv_add_u32 v6, {bases[z-1]}, v6" if bases[z-1] >= 65536 - 1024 else ""))
            off = bases[z-1] if bases[z-1] < 65536 - 1024 else 0
            a(f"ds_write_b128 v6, {vr(src+8*z,4)} offset:{off}\nds_write_b128 v6, {vr(src+8*z+4,4)} offset:{off+1024}")
    def gather(dst, bases):
        for z in (1, 2, 3):
            if bases[z-1] >= 65536 - 1024:
                a(f"v_add_u32 v6, {bases[z-1]}, v5"); ad, off = 6, 0
            else:
                ad, off = 5, bases[z-1]
            a(f"ds_read_b128 {vr(dst+8*(z-1),4)}, v{ad} offset:{off}\nds_read_b128 {vr(dst+8*(z-1)+4,4)}, v{ad} offset:{off+1024}")
    def reduce(acc0, t):
        for i in range(0, 8, 2): a(f"v_pk_add_f32 {vr(t+i,2)}, {vr(t+i,2)}, {vr(t+8+i,2)}")
        for i in range(0, 8, 2): a(f"v_pk_add_f32 {vr(acc0+i,2)}, {vr(acc0+i,2)}, {vr(t+16+i,2)}")
        for i in range(0, 8, 2): a(f"v_pk_add_f32 {vr(acc0+i,2)}, {vr(acc0+i,2)}, {vr(t+i,2)}")
    ybases = [L_KV, L_KV + 16384, L_KV + 32768]
    sbases = [0, 16384, L_R]
    scatter(YY, ybases)
    WOF, OF, SS, TT = 16, 160, 80, 220
    for j in range(8):
        for ct in range(2):
            for t in range(2):
                a(f"ds_read_b64_tr_b16 {vr(WOF + 8*j + 4*ct + 2*t,2)}, v{V_DA+ct} offset:{j*2048 + t*512}")
            if j in (2, 5) and ct == 1: a("s_waitcnt lgkmcnt(4)")
    a(f"s_add_u32 s{S_T1}, s{S_OLD}, 4096\ns_mov_b32 s{S_SPIN}, 0")
    def oload(j): return f"buffer_load_dwordx4 {vr(OF+4*j,4)}, v{V_L16}, {sr(R_WS,4)}, s{S_OLD if j < 4 else S_T1} offen offset:{1024*(j&3)} sc1"
    a("s_waitcnt lgkmcnt(0)\ns_barrier")
    gather(TT, ybases)
    for j in range(8): a(oload(j))
    a("s_waitcnt lgkmcnt(0)")
    reduce(YY, TT)
    a(f"v_mov_b32 v8, {hex(f2u(-math.log2(math.e)))}")
    for i in range(0, 8, 2): a(f"v_pk_mul_f32 {vr(TT+i,2)}, {vr(YY+i,2)}, v[8:9] op_sel_hi:[1,0]")
    for i in range(8): a(f"v_exp_f32 v{TT+i}, v{TT+i}")
    for i in range(8): a(f"v_add_f32 v{TT+i}, 1.0, v{TT+i}")
    for i in range(8): a(f"v_rcp_f32 v{TT+i}, v{TT+i}")
    XU = 136
    for i in range(4): a(f"v_lshlrev_b32 v{XU+2*i}, 16, v{V_XR+i}\nv_and_b32 v{XU+2*i+1}, 0xffff0000, v{V_XR+i}")
    for i in range(0, 8, 2): a(f"v_pk_mul_f32 {vr(YY+i,2)}, {vr(YY+i,2)}, {vr(TT+i,2)}")
    stamp()
    for j in range(8):
        a.label(f"L_ochk{j}")
        a(f"""
        s_waitcnt vmcnt({7-j})
        v_max3_u32 v8, v{OF+4*j}, v{OF+4*j+1}, v{OF+4*j+2}
        v_max_u32 v8, v8, v{OF+4*j+3}
        v_cmp_eq_u32 vcc, -1, v8
        s_nop 0
        s_cbranch_vccnz L_oretry{j}
        """)
        a.label(f"L_ook{j}")
        for ct in range(2):
            a(mfma32(SS + 16*ct, WOF + 8*j + 4*ct, OF + 4*j, None if j == 0 else SS + 16*ct))
    stamp()
    a.nop(10)
    scatter(SS, sbases)
    a("s_waitcnt lgkmcnt(0)\ns_barrier")
    gather(TT, sbases)
    a("s_waitcnt lgkmcnt(0)")
    reduce(SS, TT)
    for i in range(0, 8, 2): a(f"v_pk_fma_f32 {vr(SS+i,2)}, {vr(SS+i,2)}, {vr(YY+i,2)}, {vr(XU+i,2)}")
    for i in range(4): a(f"v_cvt_pk_bf16_f32 v{12+i}, v{SS+2*i}, v{SS+2*i+1}")
    a(f"buffer_store_dwordx4 v[12:15], v{V_FO}, {sr(R_OUT,4)}, 0 offen")
    if cfg.stamps:
        a("s_waitcnt vmcnt(0)")
        stamp()
        a(f"s_lshl_b32 s{S_T0}, s2, 3\ns_add_u32 s{S_T0}, s{S_T0}, s{S_W}\ns_lshl_b32 s{S_T0}, s{S_T0}, 8\ns_add_u32 s{S_T0}, s{S_T0}, {WS_DBG}")
        a(f"v_lshlrev_b32 v2, 2, v{V_LANE}\nbuffer_store_dword v{V_STAMP}, v2, {sr(R_WS,4)}, s{S_T0} offen")
    a.label("L_end")
    a("s_endpgm")
    for j in range(8):
        a.label(f"L_oretry{j}")
        a(f"s_add_u32 s{S_SPIN}, s{S_SPIN}, 1\ns_cmp_ge_u32 s{S_SPIN}, {SPIN_MAX}\ns_cbranch_scc1 L_ook{j}")
        for k in range(j, 8): a(oload(k))
        a(f"s_branch L_ochk{j}")
    a.label("L_fb")
    a(f"v_mov_b32 v8, 0xff800000\ns_mov_b32 s{S_CNT}, {WS_KV}")
    a(f"v_subrev_u32 v10, {L_KV}, v{V_VA}")
    a.label("L_fb1")
    a(f"buffer_load_dwordx4 {vr(KF,4)}, v{V_L16}, {sr(R_WS,4)}, s{S_CNT} offen sc1\ns_waitcnt vmcnt(0)")
    a(mfma32(S0, KF, QF, None)); a.nop(12)
    for l in maxtree(S0, 8, init=True): a(l)
    a(f"s_add_u32 s{S_CNT}, s{S_CNT}, 2048\ns_cmp_lt_u32 s{S_CNT}, {WS_KV + 64*2048}\ns_cbranch_scc1 L_fb1")
    setC(8, 0.0)
    for i in range(16): a(f"v_mov_b32 v{OO+i}, 0")
    a(f"s_mov_b32 s{S_CNT}, {WS_KV}")
    a.label("L_fb2")
    a(f"buffer_load_dwordx4 {vr(KF,4)}, v{V_L16}, {sr(R_WS,4)}, s{S_CNT} offen sc1")
    a(f"s_mov_b64 exec, {sr(S_VM,2)}")
    a(f"buffer_load_dwordx4 {vr(VF,4)}, v10, {sr(R_WS,4)}, s{S_CNT} offen sc1")
    a(f"buffer_load_dwordx4 {vr(VF+4,4)}, v10, {sr(R_WS,4)}, s{S_CNT} offen offset:512 sc1")
    a("s_mov_b64 exec, -1\ns_waitcnt vmcnt(0)")
    a(mfma32(S0, KF, QF, CC)); a.nop(12)
    for i in range(16): a(f"v_exp_f32 v{S0+i}, v{S0+i}")
    for i in range(8): a(f"v_cvt_pk_bf16_f32 v{PP+i}, v{S0+2*i}, v{S0+2*i+1}")
    a.nop(2)
    a(mfma32(OO, VF, PP, OO)); a(mfma32(OO, VF + 4, PP + 4, OO))
    a(f"s_add_u32 s{S_CNT}, s{S_CNT}, 2048\ns_cmp_lt_u32 s{S_CNT}, {WS_KV + 64*2048}\ns_cbranch_scc1 L_fb2")
    a.nop(12)
    a("s_branch L_norm")
    return a

HEADER = open(f"cdna_kernels/{NAME}.s.ref").read().split("; Override launch")[0]
def wrap(a):
    s = HEADER + "; @launch grid=(256,1,1) block=(512,1,1) lds=163840\n"
    s += f""".amdgcn_target "amdgcn-amd-amdhsa--gfx950"
.text
.globl {NAME}_kernel
.p2align 8
.type {NAME}_kernel,@function
{NAME}_kernel:
"""
    s += a.text()
    s += f""".section .rodata,"a"
.p2align 6
.amdhsa_kernel {NAME}_kernel
  .amdhsa_next_free_vgpr 256
  .amdhsa_next_free_sgpr 96
  .amdhsa_accum_offset 256
  .amdhsa_group_segment_fixed_size 0
  .amdhsa_kernarg_size 96
  .amdhsa_user_sgpr_count 2
  .amdhsa_user_sgpr_kernarg_segment_ptr 1
  .amdhsa_system_sgpr_workgroup_id_x 1
.end_amdhsa_kernel
"""
    return s

if __name__ == "__main__":
    cfg = Cfg()
    out = sys.argv[1]
    for kv in sys.argv[2:]:
        k, v = kv.split("=")
        setattr(cfg, k, eval(v))
    a = gen(cfg)
    errs = check(a.lines)
    for e in errs: print("HAZARD need %d have %d:\n   %s\n   %s" % (e[2], e[3], e[0], e[1]))
    open(out, "w").write(wrap(a))
    print("wrote", out, len(a.lines), "lines", len(errs), "hazards")
```

```python
import sys, math
from asmlib import Asm, vr, sr, f2u, check

NAME = "recurrent_scan__grouped_kv_mqa__glu_gated_geglu__prompt"

class Cfg:
    stamps = False
    stop = None
    force_fb = False
    shift = 90.0
    nodot = False
    nodma = False
    nord = False
    vsum = 0

WS_KV, WS_ST, WS_FL, WS_O, WS_H, WS_DBG, WS_Q = 0, 0x20000, 0x28000, 0x100000, 0x400000, 0xC00000, 0xE00000
WS_SIZE = 0x1000000
L_X, L_G, L_U, L_R = 0, 49152, 98304, 147456
L_WD, L_WO, L_KV = 0, 32768, 98304
P_X, P_WQ, P_WK, P_WV, P_WO, P_WG, P_WU, P_WD, P_OUT, P_DBG, P_WS = 4, 6, 8, 10, 12, 16, 18, 20, 22, 24, 26
R_X, R_WKV, R_WD, R_WO, R_OUT, R_DBG, R_WS = 28, 32, 36, 40, 44, 48, 52
S_W, S_RB, S_CB, S_RT64, S_CT8 = 56, 57, 58, 59, 60
S_T16 = 61
S_VM = 62
S_XOFF = 64
S_ONES = 67
S_T0, S_T1, S_T2, S_T3 = 68, 69, 70, 71
S_OST = 72
S_FLG = 73
S_HST = 74
S_KQ, S_RT = 75, 76
S_WDO = 77
S_HLD = 78
S_W4K = 79
S_W2K = 80
S_SPIN = 81
S_WOO = 82
S_OLD = 83
S_EX = 84
S_TS = 86
S_CNT = 88
S_WSTEP = 89
S_TS2 = 90
R_W0, R_W1 = 92, 96
S_WOFF = 65
S_RH = 66
SPIN_MAX = 1 << 16

V_LANE = 1
V_STAMP = 255
V_L16 = 208

def mfma32(d, a, b, c):
    cs = "0" if c is None else vr(c, 16)
    return f"v_mfma_f32_32x32x16_bf16 {vr(d,16)}, {vr(a,4)}, {vr(b,4)}, {cs}"
def mfma16(d, a, b, c):
    cs = "0" if c is None else vr(c, 4)
    return f"v_mfma_f32_16x16x32_bf16 {vr(d,4)}, {vr(a,4)}, {vr(b,4)}, {cs}"

def gen(cfg):
    a = Asm()
    nst = [0]
    def stamp():
        if not cfg.stamps: return
        i = nst[0]; nst[0] += 1
        a(f"s_memrealtime {sr(S_TS,2)}\ns_memtime {sr(S_TS2,2)}\ns_waitcnt lgkmcnt(0)\nv_writelane_b32 v{V_STAMP}, s{S_TS}, {i}\nv_writelane_b32 v{V_STAMP}, s{S_TS2}, {32+i}")
    def srd(r, p, size):
        a(f"s_mov_b32 s{r}, s{p}\ns_and_b32 s{r+1}, s{p+1}, 0xffff\ns_mov_b32 s{r+2}, {hex(size)}\ns_mov_b32 s{r+3}, 0x20000")

    a.label("L_start")
    a(f"s_cmp_ge_u32 s2, 256\ns_cbranch_scc1 L_end")
    a(f"s_load_dwordx16 s[4:19], s[0:1], 0\ns_load_dwordx8 s[20:27], s[0:1], 64")
    if cfg.stamps:
        a(f"v_mov_b32 v{V_STAMP}, 0")
    a(f"v_lshrrev_b32 v2, 6, v0\nv_and_b32 v{V_LANE}, 63, v0")
    a(f"v_readfirstlane_b32 s{S_W}, v2")
    V_XD, V_WD = 168, 170
    a(f"""
    s_and_b32 s{S_T0}, s2, 7
    s_lshr_b32 s{S_T1}, s2, 3
    s_and_b32 s{S_T2}, s{S_T0}, 1
    s_lshl_b32 s{S_T2}, s{S_T2}, 3
    s_and_b32 s{S_CT8}, s{S_T1}, 7
    s_add_u32 s{S_RB}, s{S_T2}, s{S_CT8}
    s_lshr_b32 s{S_T1}, s{S_T1}, 3
    s_lshr_b32 s{S_T2}, s{S_T0}, 1
    s_lshl_b32 s{S_T2}, s{S_T2}, 2
    s_add_u32 s{S_CB}, s{S_T2}, s{S_T1}
    s_lshl_b32 s{S_T2}, s{S_T0}, 2
    s_add_u32 s{S_RT64}, s{S_T2}, s{S_T1}
    s_lshl_b32 s{S_T16}, s{S_RB}, 3
    s_lshr_b32 s{S_T2}, s{S_CB}, 1
    s_add_u32 s{S_T16}, s{S_T16}, s{S_T2}
    s_lshl_b32 s{S_W4K}, s{S_W}, 12
    s_lshl_b32 s{S_W2K}, s{S_W}, 11
    s_lshl_b32 s{S_XOFF}, s{S_RB}, 17
    s_lshl_b32 s{S_T0}, s{S_W}, 14
    s_add_u32 s{S_XOFF}, s{S_XOFF}, s{S_T0}
    v_lshlrev_b32 v{V_L16}, 4, v{V_LANE}
    v_and_b32 v5, 15, v{V_LANE}
    v_lshrrev_b32 v6, 4, v{V_LANE}
    v_lshrrev_b32 v7, 3, v{V_LANE}
    v_and_b32 v63, 7, v{V_LANE}
    v_xor_b32 v62, v6, v63
    v_lshlrev_b32 v62, 4, v62
    v_lshl_add_u32 v{V_XD}, v7, 10, v62
    v_xor_b32 v{V_XD+1}, 64, v{V_XD}
    v_add_u32 v{V_XD+1}, {8192-1024}, v{V_XD+1}
    s_movk_i32 s{S_T0}, 3584
    s_movk_i32 s{S_T1}, 256
    s_cmp_ge_u32 s{S_CB}, 14
    s_cselect_b32 s{S_T0}, 1024, s{S_T0}
    s_cselect_b32 s{S_T1}, 512, s{S_T1}
    s_cselect_b32 s{S_T2}, {14*512}, 0
    s_mul_i32 s{S_T1}, s{S_T1}, s{S_CB}
    s_sub_u32 s{S_T1}, s{S_T1}, s{S_T2}
    s_lshl_b32 s{S_WSTEP}, s{S_T0}, 6
    s_mul_i32 s{S_T2}, s{S_T0}, s{S_W}
    s_lshl_b32 s{S_T2}, s{S_T2}, 3
    s_add_u32 s{S_WOFF}, s{S_T1}, s{S_T2}
    v_lshlrev_b32 v62, 2, v6
    v_xor_b32 v62, v62, v5
    v_lshlrev_b32 v62, 4, v62
    v_mul_u32_u24 v63, s{S_T0}, v6
    v_add_u32 v{V_WD}, v62, v63
    v_xor_b32 v{V_WD+1}, 32, v{V_WD}
    s_lshl_b32 s{S_CNT}, s{S_T0}, 2
    s_sub_u32 s{S_CNT}, s{S_CNT}, 1024
    s_add_u32 s{S_T3}, s{S_W4K}, {L_R}
    s_mov_b32 s{R_X+2}, 0x200000
    s_mov_b32 s{R_X+3}, 0x20000
    s_mov_b32 s{R_WKV+2}, 0x4000
    s_mov_b32 s{R_WKV+3}, 0x20000
    s_lshl_b32 s{R_W0+2}, s{S_T0}, 9
    s_mov_b32 s{R_W0+3}, 0x20000
    s_mov_b32 s{R_W1+3}, 0x20000
    s_and_b32 s{S_T0}, s{S_CB}, 1
    s_waitcnt lgkmcnt(0)
    """)
    stamp()
    a(f"""
    s_mov_b32 s{R_X}, s{P_X}
    s_and_b32 s{R_X+1}, s{P_X+1}, 0xffff
    s_cmp_eq_u32 s{S_T0}, 0
    s_cselect_b32 s{R_WKV}, s{P_WK}, s{P_WV}
    s_cselect_b32 s{R_WKV+1}, s{P_WK+1}, s{P_WV+1}
    s_and_b32 s{R_WKV+1}, s{R_WKV+1}, 0xffff
    """)
    PX, PW = 8, 24
    PACC, PCS, PRS, PSQ = 40, 44, 48, 52
    PONE, PSQP, PF1 = 56, 60, 61
    L_PX = L_X + 16384
    a(f"s_cmp_ge_u32 s{S_W}, 4\ns_cbranch_scc1 L_nopre_ld")
    a(f"s_lshl_b32 s{S_T0}, s{S_T16}, 14\ns_lshl_b32 s{S_T1}, s{S_W}, 8\ns_add_u32 m0, s{S_W4K}, {L_PX}\ns_add_u32 s{S_T0}, s{S_T0}, s{S_T1}")
    for kb in range(2):
        if kb: a(f"s_add_u32 m0, s{S_W4K}, {L_PX + 2048}\ns_add_u32 s{S_T0}, s{S_T0}, 128")
        a(f"buffer_load_dwordx4 v{V_XD}, {sr(R_X,4)}, s{S_T0} offen lds")
        a(f"buffer_load_dwordx4 v{V_XD+1}, {sr(R_X,4)}, s{S_T0} offen offset:1024 lds")
    a(f"s_mov_b32 m0, s{S_T3}\ns_nop 0")
    for e in range(4):
        a(f"buffer_load_dwordx4 v{V_L16}, {sr(R_WKV,4)}, s{S_W4K} offen offset:{1024*e} lds")
    a.label("L_nopre_ld")
    def xdma(c):
        slot = (c + 2) % 3
        return [f"s_add_u32 m0, s{S_W2K}, {L_X + slot*16384}\ns_add_u32 s{S_T0}, s{S_XOFF}, {c*128}\n"
                f"buffer_load_dwordx4 v{V_XD}, {sr(R_X,4)}, s{S_T0} offen lds",
                f"buffer_load_dwordx4 v{V_XD+1}, {sr(R_X,4)}, s{S_T0} offen offset:1024 lds"]
    def wdma(c, img):
        slot = (c + 2) % 3
        r = R_W0 if img == 0 else R_W1
        return [f"s_add_u32 m0, s{S_W2K}, {L_G + img*49152 + slot*16384}\ns_add_u32 s{S_T0}, s{S_WOFF}, s{S_CNT}\n"
                f"buffer_load_dwordx4 v{V_WD+img}, {sr(r,4)}, s{S_WOFF} offen lds",
                f"buffer_load_dwordx4 v{V_WD+img}, {sr(r,4)}, s{S_T0} offen offset:1024 lds"
                + (f"\ns_add_u32 s{S_WOFF}, s{S_WOFF}, s{S_WSTEP}" if img == 1 else "")]
    for l in xdma(0): a(l)
    a(f"""
    s_add_u32 s{S_T0}, s{P_WQ}, 256
    s_addc_u32 s{S_T1}, s{P_WQ+1}, 0
    s_cmp_ge_u32 s{S_CB}, 14
    s_cselect_b32 s{R_W0}, s{P_WQ}, s{P_WG}
    s_cselect_b32 s{R_W0+1}, s{P_WQ+1}, s{P_WG+1}
    s_cselect_b32 s{R_W1}, s{S_T0}, s{P_WU}
    s_cselect_b32 s{R_W1+1}, s{S_T1}, s{P_WU+1}
    s_cselect_b32 s{S_T0}, 256, 0
    s_and_b32 s{R_W0+1}, s{R_W0+1}, 0xffff
    s_and_b32 s{R_W1+1}, s{R_W1+1}, 0xffff
    s_sub_u32 s{R_W1+2}, s{R_W0+2}, s{S_T0}
    """)
    for img in range(2):
        for l in wdma(0, img): a(l)
    a(f"s_getpc_b64 {sr(S_EX,2)}")
    a.label("L_pc")
    a(f"""
    s_lshr_b32 s{S_T0}, s2, 3
    s_lshl_b32 s{S_T0}, s{S_T0}, 3
    s_add_u32 s{S_T0}, s{S_T0}, s{S_W}
    s_lshl_b32 s{S_T0}, s{S_T0}, 8
    v_lshl_add_u32 v196, v{V_LANE}, 7, s{S_T0}
    v_min_u32 v196, L_code_end-L_pc-4, v196
    v_mov_b32 v197, 0
    v_lshl_add_u64 v[196:197], v[196:197], 0, {sr(S_EX,2)}
    s_mov_b64 exec, 3
    global_load_dword v201, v[196:197], off
    s_mov_b64 exec, -1
    """)
    srd(R_WS, P_WS, WS_SIZE)
    a(f"""
    s_lshr_b32 s{S_KQ}, s{S_W}, 1
    s_and_b32 s{S_RT}, s{S_W}, 1
    s_lshr_b32 s{S_RH}, s{S_W}, 2
    s_lshl_b32 s{S_T0}, s{S_RT64}, 1
    s_add_u32 s{S_T0}, s{S_T0}, s{S_RT}
    s_lshl_b32 s{S_T0}, s{S_T0}, 3
    s_add_u32 s{S_T0}, s{S_T0}, s{S_CT8}
    s_lshl_b32 s{S_T0}, s{S_T0}, 2
    s_add_u32 s{S_T0}, s{S_T0}, s{S_KQ}
    s_lshl_b32 s{S_T0}, s{S_T0}, 10
    s_add_u32 s{S_OST}, s{S_T0}, {WS_O}
    s_add_u32 s{S_T2}, s{S_T0}, {WS_Q}
    s_lshl_b32 s{S_T0}, s{S_RB}, 4
    s_add_u32 s{S_T0}, s{S_T0}, s{S_CB}
    s_lshl_b32 s{S_T0}, s{S_T0}, 7
    s_lshl_b32 s{S_T1}, s{S_W}, 2
    s_add_u32 s{S_T0}, s{S_T0}, s{S_T1}
    s_add_u32 s{S_FLG}, s{S_T0}, {WS_FL}
    v_mov_b32 v196, -1
    v_mov_b32 v197, -1
    v_mov_b32 v198, -1
    v_mov_b32 v199, -1
    v_mov_b32 v200, 0
    buffer_store_dwordx4 v[196:199], v{V_L16}, {sr(R_WS,4)}, s{S_OST} offen sc1
    buffer_store_dwordx4 v[196:199], v{V_L16}, {sr(R_WS,4)}, s{S_T2} offen sc1
    s_mov_b64 exec, 1
    buffer_store_dword v200, off, {sr(R_WS,4)}, s{S_FLG} sc1
    s_mov_b64 exec, -1
    s_mov_b32 s{S_ONES}, 0x3f803f80
    """)
    a(f"s_cmp_ge_u32 s{S_W}, 4\ns_cbranch_scc1 L_nopre")
    a(f"""
    v_lshlrev_b32 v4, 3, v5
    v_lshl_add_u32 v4, v6, 8, v4
    v_add_u32 v4, s{S_T3}, v4
    v_lshrrev_b32 v3, 1, v5
    v_xor_b32 v3, v3, v6
    v_lshlrev_b32 v3, 4, v3
    v_lshl_add_u32 v3, v5, 7, v3
    v_add_u32 v3, s{S_W4K}, v3
    v_xor_b32 v2, 64, v3
    """)
    for i in range(4): a(f"v_mov_b32 v{PONE+i}, s{S_ONES}")
    a(f"v_mov_b32 v{PSQP}, 0\nv_mov_b32 v{PF1}, 1.0")
    a("s_waitcnt vmcnt(10)")
    stamp()
    for s in range(4):
        a(f"ds_read_b128 {vr(PX+4*s,4)}, v{3 - (s & 1)} offset:{L_PX + 2048*(s >> 1)}")
    for s in range(4):
        for t in range(2):
            a(f"ds_read_b64_tr_b16 {vr(PW+4*s+2*t,2)}, v4 offset:{1024*s+128*t}")
    a("s_waitcnt lgkmcnt(8)")
    for i in range(16):
        a(f"v_dot2c_f32_bf16 v{PSQP}, v{PX+i}, v{PX+i}")
    a(f"s_and_b32 s{S_T0}, s{S_CB}, 1\ns_cmp_eq_u32 s{S_T0}, 0\ns_waitcnt lgkmcnt(0)\ns_cbranch_scc0 L_preV")
    for form in range(2):
        if form == 1: a.label("L_preV")
        def mm(d, w, x, first):
            return mfma16(d, w, x, None if first else d) if form == 0 else mfma16(d, x, w, None if first else d)
        if form == 0: a(f"v_mfma_f32_16x16x4_f32 {vr(PSQ,4)}, v{PF1}, v{PSQP}, 0")
        else:         a(f"v_mfma_f32_16x16x4_f32 {vr(PSQ,4)}, v{PSQP}, v{PF1}, 0")
        for s in range(4):
            a(mm(PRS, PONE, PX + 4*s, s == 0))
            a(mm(PCS, PW + 4*s, PONE, s == 0))
            a(mm(PACC, PW + 4*s, PX + 4*s, s == 0))
        if form == 0: a("s_branch L_pre_w")
    a.label("L_pre_w")
    a(f"s_cmp_eq_u32 s{S_W}, 0\ns_cbranch_scc1 L_nopre")
    a(f"v_add_u32 v2, s{S_T3}, v{V_L16}")
    a.nop(4)
    for q, r in ((3, PSQ), (2, PRS), (1, PCS), (0, PACC)):
        a(f"ds_write_b128 v2, {vr(r,4)} offset:{1024*q}")
    a.label("L_nopre")
    for l in xdma(1) + wdma(1, 0) + wdma(1, 1): a(l)
    srd(R_WD, P_WD, 1792 * 1024)
    srd(R_WO, P_WO, 512 * 1024)
    srd(R_OUT, P_OUT, 0x200000)
    srd(R_DBG, P_DBG, 256)
    V_XA, V_WR = 162, 166
    a(f"""
    v_and_b32 v62, 31, v{V_LANE}
    v_lshrrev_b32 v63, 5, v{V_LANE}
    v_bfe_u32 v182, v{V_LANE}, 1, 3
    v_xor_b32 v182, v182, v63
    v_lshlrev_b32 v182, 4, v182
    v_lshl_add_u32 v182, v62, 7, v182
    s_lshl_b32 s{S_T0}, s{S_RH}, 13
    v_add_u32 v{V_XA}, s{S_T0}, v182
    v_xor_b32 v{V_XA+1}, 32, v{V_XA}
    v_xor_b32 v{V_XA+2}, 64, v{V_XA}
    v_xor_b32 v{V_XA+3}, 96, v{V_XA}
    v_and_b32 v182, 1, v6
    v_bfe_u32 v183, v{V_LANE}, 2, 2
    v_lshl_add_u32 v184, v183, 1, v182
    s_and_b32 s{S_T0}, s{S_W}, 3
    s_lshl_b32 s{S_T0}, s{S_T0}, 1
    s_add_u32 s{S_T0}, s{S_T0}, s{S_RH}
    v_xor_b32 v184, s{S_T0}, v184
    v_lshlrev_b32 v184, 5, v184
    v_lshl_add_u32 v185, v63, 3, v183
    v_lshl_add_u32 v184, v185, 8, v184
    v_mul_u32_u24 v182, 49152, v182
    v_and_b32 v186, 1, v{V_LANE}
    v_bfe_u32 v187, v{V_LANE}, 1, 1
    v_lshl_add_u32 v186, v186, 1, v187
    v_lshlrev_b32 v209, 3, v186
    v_add3_u32 v184, v184, v182, v209
    v_add_u32 v{V_WR}, {L_G}, v184
    v_xor_b32 v{V_WR+1}, 32, v{V_WR}
    v_mov_b32 v160, 0
    v_mov_b32 v161, 0
    s_mov_b32 s{S_VM}, 0xffff
    s_mov_b32 s{S_VM+1}, 0xffff
    s_lshl_b32 s{S_T1}, s{S_RB}, 1
    s_add_u32 s{S_T1}, s{S_T1}, s{S_RH}
    s_cmp_ge_u32 s{S_CB}, 14
    s_cselect_b32 s{S_T2}, 64, 224
    s_mul_i32 s{S_T1}, s{S_T1}, s{S_T2}
    s_add_u32 s{S_T0}, s{S_T0}, s{S_T1}
    s_cmp_ge_u32 s{S_CB}, 14
    s_cselect_b32 s{S_T2}, 16, 8
    s_mul_i32 s{S_T1}, s{S_CB}, s{S_T2}
    s_mov_b32 s{S_T2}, {WS_H}
    s_cselect_b32 s{S_T2}, {WS_Q - 14*16*1024}, s{S_T2}
    s_add_u32 s{S_T0}, s{S_T0}, s{S_T1}
    s_lshl_b32 s{S_T0}, s{S_T0}, 10
    s_add_u32 s{S_HST}, s{S_T0}, s{S_T2}
    """)
    a("s_waitcnt vmcnt(10) lgkmcnt(0)\ns_barrier")
    nst[0] = 2
    stamp()

    ACC, XF, WF, CS = 64, 128, 144, 160
    def acc(ti, rt): return ACC + 32*ti + 16*rt
    def g1_reads(g):
        c, s = divmod(g, 4); slot = (c + 2) % 3; st = g & 1
        xr = [f"ds_read_b128 {vr(XF+8*st+4*rt,4)}, v{V_XA+s} offset:{slot*16384 + rt*4096}" for rt in range(2)]
        wr = [[f"ds_read_b64_tr_b16 {vr(WF+8*st+4*ti+2*t,2)}, v{V_WR+ti} offset:{slot*16384 + s*4096 + t*1024}" for t in range(2)] for ti in range(2)]
        return [wr[0][0], wr[0][1], xr[0], xr[1], wr[1][0], wr[1][1]]
    for l in g1_reads(0): a(l)

    a(f"s_cmp_lg_u32 s{S_W}, 0\ns_cbranch_scc1 L_nofin")
    T = 210
    RD = 212
    a(f"v_add_u32 v2, {L_R}, v{V_L16}")
    for w in (1, 2):
        for q in range(4):
            a(f"ds_read_b128 {vr(8 + 16*(w-1) + 4*q,4)}, v2 offset:{4096*w + 1024*q}")
    for q in range(4):
        a(f"ds_read_b128 {vr(RD + 4*q,4)}, v2 offset:{4096*3 + 1024*q}")
    a("s_waitcnt lgkmcnt(4)")
    for i in range(0, 16, 2):
        a(f"v_pk_add_f32 {vr(8+i,2)}, {vr(8+i,2)}, {vr(24+i,2)}")
    a("s_waitcnt lgkmcnt(0)")
    for i in range(0, 16, 2):
        a(f"v_pk_add_f32 {vr(PACC+i,2)}, {vr(PACC+i,2)}, {vr(RD+i,2)}")
    for i in range(0, 16, 2):
        a(f"v_pk_add_f32 {vr(PACC+i,2)}, {vr(PACC+i,2)}, {vr(8+i,2)}")
    for i in range(4):
        a(f"v_mul_f32 v{PRS+i}, {hex(f2u(-1.0/512))}, v{PRS+i}")
        a(f"v_mul_f32 v{PSQ+i}, {hex(f2u(1.0/512))}, v{PSQ+i}")
        a(f"v_fma_f32 v{PSQ+i}, -v{PRS+i}, v{PRS+i}, v{PSQ+i}")
        a(f"v_max_f32 v{PSQ+i}, 0, v{PSQ+i}")
        a(f"v_add_f32 v{PSQ+i}, {hex(f2u(1e-5))}, v{PSQ+i}")
        a(f"v_rsq_f32 v{8+i}, v{PSQ+i}")
        a(f"v_fmac_f32 v{PACC+i}, v{PRS+i}, v{PCS+i}")
    for i in range(4):
        a(f"v_mul_f32 v{PACC+i}, v{PACC+i}, v{8+i}")
    a(f"v_cvt_pk_bf16_f32 v12, v{PACC}, v{PACC+1}\nv_cvt_pk_bf16_f32 v13, v{PACC+2}, v{PACC+3}")
    a(f"""
    s_lshr_b32 s{S_T0}, s{S_T16}, 1
    s_lshl_b32 s{S_T0}, s{S_T0}, 11
    s_and_b32 s{S_T1}, s{S_T16}, 1
    v_lshrrev_b32 v14, 1, v6
    v_and_b32 v15, 1, v6
    s_and_b32 s{S_T2}, s{S_CB}, 1
    s_cmp_eq_u32 s{S_T2}, 0
    s_cbranch_scc0 L_pubV
    s_lshl_b32 s{S_T1}, s{S_T1}, 8
    s_add_u32 s{S_T0}, s{S_T0}, s{S_T1}
    v_lshl_add_u32 v14, v14, 5, v5
    v_lshlrev_b32 v14, 4, v14
    v_lshl_add_u32 v14, v15, 3, v14
    s_lshl_b32 s{S_T1}, s{S_T16}, 7
    s_add_u32 s{S_T1}, s{S_T1}, {WS_ST}
    s_branch L_pub
    """)
    a.label("L_pubV")
    a(f"""
    s_lshl_b32 s{S_T1}, s{S_T1}, 9
    s_add_u32 s{S_T0}, s{S_T0}, s{S_T1}
    s_add_u32 s{S_T0}, s{S_T0}, 1024
    v_and_b32 v16, 3, v5
    v_bfe_u32 v17, v5, 2, 1
    v_lshl_add_u32 v16, v17, 3, v16
    v_bfe_u32 v17, v5, 3, 1
    v_lshl_add_u32 v16, v17, 2, v16
    v_lshl_add_u32 v16, v15, 4, v16
    v_lshlrev_b32 v16, 4, v16
    v_lshl_add_u32 v14, v14, 3, v16
    s_mov_b32 s{S_T1}, {WS_SIZE}
    """)
    a.label("L_pub")
    a(f"""
    v_mov_b32 v16, v{PRS}
    v_mov_b32 v17, v{PSQ}
    v_lshlrev_b32 v18, 3, v5
    buffer_store_dwordx2 v[12:13], v14, {sr(R_WS,4)}, s{S_T0} offen sc1
    s_mov_b64 exec, 0xffff
    buffer_store_dwordx2 v[16:17], v18, {sr(R_WS,4)}, s{S_T1} offen sc1
    s_mov_b64 exec, -1
    """)
    a.label("L_nofin")

    V_ST = 2
    V_WDD = 210
    def kvdma(c, start):
        slot = (c + 1) % 3
        return [f"s_add_u32 m0, s{S_W2K}, {L_KV + slot*16384}\ns_add_u32 s{S_T0}, s{S_W2K}, {WS_KV + start*2048}\n"
                f"buffer_load_dwordx4 v{V_L16}, {sr(R_WS,4)}, s{S_T0} offen sc1 lds",
                f"buffer_load_dwordx4 v{V_L16}, {sr(R_WS,4)}, s{S_T0} offen offset:1024 sc1 lds"]
    sizes = [8] + [7] * 8
    starts = [sum(sizes[:i]) for i in range(len(sizes))]
    pend = xdma(2) + wdma(2, 0) + wdma(2, 1)
    for g in range(32):
        c, s = divmod(g, 4); st = g & 1
        last = g == 31
        if s == 3 and not last:
            if c == 0:
                a(f"s_cmp_eq_u32 s{S_W}, 0\ns_cbranch_scc1 L_w0c0\ns_waitcnt vmcnt(6)")
                a.label("L_w0c0")
                a("s_waitcnt vmcnt(8) lgkmcnt(0)")
            elif c == 6:
                a("s_waitcnt vmcnt(0) lgkmcnt(0)")
                a(f"s_cmp_lg_u32 s{S_W}, 0\ns_cbranch_scc1 L_sync1\ns_mov_b32 s{S_SPIN}, 0")
                a.label("L_sync1_chk")
                a(f"""
                v_cmp_gt_u32 vcc, 32, v7
                s_add_u32 s{S_SPIN}, s{S_SPIN}, 1
                s_cbranch_vccz L_sync1
                s_cmp_ge_u32 s{S_SPIN}, {SPIN_MAX}
                s_cbranch_scc1 L_sync1
                buffer_load_dword v7, v6, {sr(R_DBG,4)}, 0 offen sc1
                s_waitcnt vmcnt(0)
                s_branch L_sync1_chk
                """)
                a.label("L_sync1")
            else:
                a("s_waitcnt vmcnt(6) lgkmcnt(0)")
            a("s_barrier")
            if c == 1:
                a(f"""
                s_cmp_lg_u32 s{S_W}, 0
                s_cbranch_scc1 L_noarr
                s_and_b32 s{S_T0}, s2, 7
                s_lshl_b32 s{S_T0}, s{S_T0}, 5
                v_mov_b32 v7, 1
                v_and_b32 v6, 7, v{V_LANE}
                v_lshlrev_b32 v6, 5, v6
                s_mov_b64 exec, 1
                buffer_atomic_add v7, off, {sr(R_DBG,4)}, s{S_T0} sc1
                s_mov_b64 exec, -1
                """)
                a.label("L_noarr")
            if c + 3 <= 7 and not cfg.nodma:
                pend = xdma(c + 3) + wdma(c + 3, 0) + wdma(c + 3, 1)
            if c == 6:
                stamp()
                pend = [f"v_and_b32 v6, 31, v{V_LANE}\nv_lshlrev_b32 v6, 3, v6\ns_lshl_b32 s{S_T0}, s{S_RB}, 10\ns_lshl_b32 s{S_T1}, s{S_RH}, 9\n"
                        f"s_add_u32 s{S_T0}, s{S_T0}, s{S_T1}\ns_add_u32 s{S_T0}, s{S_T0}, {WS_ST}\n"
                        f"buffer_load_dwordx2 {vr(V_ST,2)}, v6, {sr(R_WS,4)}, s{S_T0} offen sc1",
                        f"buffer_load_dwordx2 {vr(V_ST+2,2)}, v6, {sr(R_WS,4)}, s{S_T0} offen offset:256 sc1"]
                pend += kvdma(0, starts[0]) + kvdma(1, starts[1])
        else:
            a("s_waitcnt lgkmcnt(0)")
        if c == 6 and s == 1:
            a(f"s_cmp_lg_u32 s{S_W}, 0\ns_cbranch_scc1 L_nopoll\nbuffer_load_dword v7, v6, {sr(R_DBG,4)}, 0 offen sc1")
            a.label("L_nopoll")
        rd = [] if last else g1_reads(g + 1)
        first = g == 0
        def mm(ti, rt): return mfma32(acc(ti, rt), WF + 8*st + 4*ti, XF + 8*st + 4*rt, None if first else acc(ti, rt))
        if cfg.nord: rd = []
        def dots(ti, k):
            r = WF + 8*st + 2*ti + k//2
            return [] if cfg.nodot else [f"v_and_b32 v8, 0xffff0000, v{r}", f"v_lshlrev_b32 v9, 16, v{r}", f"v_add_f32 v{CS}, v8, v{CS}", f"v_add_f32 v{CS+1}, v9, v{CS+1}"]
        vm = [pend.pop(0) for _ in range(min(2, len(pend)))]
        seq = [mm(0, 0)] + rd[0:2] + dots(0, 0) + [mm(0, 1)] + rd[2:4] + dots(0, 2) + [mm(1, 1)] + rd[4:6] + dots(1, 0) + vm[0:1] + [mm(1, 0)] + dots(1, 2) + vm[1:2]
        for l in seq: a(l)
    assert not pend
    stamp()

    KG = 2.0 * math.sqrt(2.0 / math.pi) * math.log2(math.e)
    S0, S1, PP, OO, CC, QF, KF, VF = 16, 32, 48, 64, 80, 124, 100, 108
    YY, HF, DF = 128, 160, 192
    QF = 220
    HO = HF + 16
    V_KA, V_VA, V_DA, V_XR, V_FO = 211, 212, 213, 216, 215
    RA, RBm = 128, 132
    def split_cs(src, dst):
        a(f"v_cvt_pk_bf16_f32 v{dst}, v{src}, v{src}\nv_and_b32 v6, 0xffff0000, v{dst}\nv_sub_f32 v6, v{src}, v6\nv_cvt_pk_bf16_f32 v{dst+1}, v6, v6")
    def rank1(ti, rt): return f"v_mfma_f32_32x32x8_bf16 {vr(acc(ti,rt),16)}, {vr(RA+2*ti,2)}, {vr(RBm+2*rt,2)}, {vr(acc(ti,rt),16)}"
    a(f"""
    v_add_f32 v{CS}, v{CS}, v{CS+1}
    s_lshl_b32 s{S_T0}, s{S_W}, 8
    s_add_u32 s{S_T0}, s{S_T0}, {L_R}
    v_lshl_add_u32 v7, v{V_LANE}, 2, s{S_T0}
    ds_write_b32 v7, v{CS}
    """)
    split_cs(CS, RA)
    a("v_xor_b32 v7, 1024, v7\ns_waitcnt vmcnt(4)")
    for rt in range(2):
        m = V_ST + 2*rt; d = RBm + 2*rt
        a(f"v_cvt_pk_bf16_f32 v{d}, v{m}, v{m}\nv_and_b32 v6, 0xffff0000, v{d}\nv_sub_f32 v6, v{m}, v6\nv_cvt_pk_bf16_f32 v{d}, v{m}, v6\nv_mov_b32 v{d+1}, v{d}")
    for rt in range(2):
        a(f"v_rsq_f32 v{48+8*rt+6}, v{V_ST+2*rt+1}")
    a(rank1(0, 0)); a(rank1(0, 1))
    for rt in range(2):
        b = 48 + 8*rt
        a(f"v_mul_f32 v{b}, {hex(f2u(-KG))}, v{b+6}")
        a(f"v_mul_f32 v{b+7}, v{b+6}, v{b+6}")
        a(f"v_mul_f32 v{b+2}, {hex(f2u(0.044715))}, v{b}")
        a(f"v_mul_f32 v{b+2}, v{b+2}, v{b+7}")
        a(f"v_mul_f32 v{b+4}, {hex(f2u(0.25*math.log2(math.e)))}, v{b+6}")
        a(f"v_mov_b32 v{b+1}, v{b}\nv_mov_b32 v{b+3}, v{b+2}\nv_mov_b32 v{b+5}, v{b+4}\nv_mov_b32 v{V_ST+2*rt}, v{V_ST+2*rt+1}")
    def gelu(ti, rt):
        A = acc(ti, rt); b = 48 + 8*rt; vp = V_ST + 2*rt
        t1, t2, o = 16, 24, HO + 8*ti + 4*rt
        L = []
        for i in range(0, 8, 2): L.append(f"v_pk_mul_f32 {vr(t1+i,2)}, {vr(A+i,2)}, {vr(A+i,2)}")
        for i in range(0, 8, 2): L.append(f"v_pk_fma_f32 {vr(t1+i,2)}, {vr(t1+i,2)}, {vr(b+2,2)}, {vr(b,2)}")
        for i in range(0, 8, 2): L.append(f"v_pk_mul_f32 {vr(t1+i,2)}, {vr(t1+i,2)}, {vr(A+i,2)}")
        for i in range(8): L.append(f"v_exp_f32 v{t1+i}, v{t1+i}")
        for i in range(0, 8, 2): L.append(f"v_pk_mul_f32 {vr(t2+i,2)}, {vr(A+i,2)}, {vr(A+8+i,2)}")
        for i in range(0, 8, 2): L.append(f"v_pk_fma_f32 {vr(t1+i,2)}, {vr(t1+i,2)}, {vr(vp,2)}, {vr(vp,2)}")
        for i in range(8): L.append(f"v_rcp_f32 v{t1+i}, v{t1+i}")
        for i in range(0, 8, 2): L.append(f"v_pk_mul_f32 {vr(t2+i,2)}, {vr(t2+i,2)}, {vr(t1+i,2)}")
        for i in range(4): L.append(f"v_cvt_pk_bf16_f32 v{o+i}, v{t2+2*i}, v{t2+2*i+1}")
        return L
    def qtile(ti, rt):
        A = acc(ti, rt); b = 48 + 8*rt; tb = 16 + 16*ti + 8*rt
        L = [f"s_xor_b32 s{S_T0}, s{S_HST}, {1024*ti}\ns_add_u32 s{S_T0}, s{S_T0}, {32768*rt}\ns_add_u32 s{S_T1}, s{S_T0}, 8192"]
        for hd in range(2):
            for i in range(8*hd, 8*hd + 8, 2): L.append(f"v_pk_mul_f32 {vr(A+i,2)}, {vr(A+i,2)}, {vr(b+4,2)}")
            for i in range(4*hd, 4*hd + 4): L.append(f"v_cvt_pk_bf16_f32 v{tb+i}, v{A+2*i}, v{A+2*i+1}")
            for i in range(4*hd, 4*hd + 4): L.append(f"v_min_u32 v{tb+i}, -2, v{tb+i}")
            L.append(f"buffer_store_dwordx4 {vr(tb+4*hd,4)}, v{V_L16}, {sr(R_WS,4)}, s{S_T0 + hd} offen sc1")
        return L
    qload = f"buffer_load_dwordx4 {vr(QF,4)}, v{V_L16}, {sr(R_WS,4)}, s{S_T2} offen sc1"
    a(f"s_add_u32 s{S_T2}, s{S_OST}, {WS_Q - WS_O}\ns_mov_b32 s{S_SPIN}, 0")
    a(f"s_cmp_ge_u32 s{S_CB}, 14\ns_cbranch_scc1 L_qt")
    for l in gelu(0, 0): a(l)
    a(f"s_waitcnt vmcnt(2) lgkmcnt(0)\ns_barrier\nds_read_b32 v{CS+1}, v7")
    L = gelu(0, 1)
    for l in L[:12]: a(l)
    a("s_waitcnt lgkmcnt(0)")
    split_cs(CS + 1, RA + 2)
    for l in L[12:14]: a(l)
    a(rank1(1, 1))
    for l in L[14:28]: a(l)
    a(rank1(1, 0))
    for l in L[28:]: a(l)
    for l in gelu(1, 1): a(l)
    a(qload)
    for l in gelu(1, 0): a(l)
    a("s_branch L_epi_end")
    a.label("L_qt")
    for l in qtile(0, 0): a(l)
    a(f"s_waitcnt vmcnt(4) lgkmcnt(0)\ns_barrier\nds_read_b32 v{CS+1}, v7\ns_waitcnt lgkmcnt(0)")
    split_cs(CS + 1, RA + 2)
    a("s_nop 1")
    a(rank1(1, 1)); a(rank1(1, 0))
    for l in qtile(0, 1) + qtile(1, 1) + qtile(1, 0): a(l)
    a(f"s_mov_b32 s{S_HST}, {WS_SIZE}")
    a(qload)
    a.label("L_epi_end")
    stamp()

    def kv_off(t):
        c = max(i for i in range(len(starts)) if starts[i] <= t)
        return ((c + 1) % 3) * 16384 + (t - starts[c]) * 2048
    a(f"""
    v_add_u32 v{V_KA}, {L_KV}, v{V_L16}
    v_and_b32 v5, 27, v{V_LANE}
    v_cmp_eq_u32 vcc, 16, v5
    ds_read_b128 {vr(KF,4)}, v{V_KA} offset:{kv_off(0)}
    ds_read_b128 {vr(KF+4,4)}, v{V_KA} offset:{kv_off(1)}
    v_mov_b32 v6, s{S_ONES}
    v_and_b32 v2, 15, v{V_LANE}
    v_lshrrev_b32 v3, 5, v{V_LANE}
    v_lshl_add_u32 v2, v3, 4, v2
    v_lshlrev_b32 v2, 4, v2
    v_add_u32 v{V_VA}, {L_KV + 1024}, v2
    v_cndmask_b32 v{VF}, 0, v6, vcc
    v_mov_b32 v{VF+1}, v{VF}
    """)
    for i in range(2, 16, 2): a(f"v_mov_b64 {vr(VF+i,2)}, {vr(VF,2)}")
    a.label("L_qchk")
    a(f"""
    s_waitcnt vmcnt(0) lgkmcnt(0)
    v_max3_u32 v8, v{QF}, v{QF+1}, v{QF+2}
    v_max_u32 v8, v8, v{QF+3}
    v_cmp_eq_u32 vcc, -1, v8
    s_add_u32 s{S_SPIN}, s{S_SPIN}, 1
    s_cbranch_vccz L_qok
    s_cmp_ge_u32 s{S_SPIN}, {SPIN_MAX}
    s_cbranch_scc1 L_qok
    {qload}
    s_branch L_qchk
    """)
    a.label("L_qok")
    stamp()
    a(mfma32(S1, KF, QF, None))
    a(f"""
    v_lshrrev_b32 v5, 3, v{V_LANE}
    v_and_b32 v6, 7, v{V_LANE}
    v_bfe_u32 v7, v{V_LANE}, 4, 1
    v_lshlrev_b32 v8, 2, v7
    v_xor_b32 v6, v6, v8
    v_lshlrev_b32 v6, 4, v6
    v_lshl_add_u32 v{V_WDD}, v5, 10, v6
    v_bfe_u32 v5, v{V_LANE}, 2, 2
    v_and_b32 v6, 2, v5
    v_xor_b32 v6, v6, v7
    v_xor_b32 v6, s{S_KQ}, v6
    v_lshl_add_u32 v5, v3, 3, v5
    v_lshlrev_b32 v5, 7, v5
    v_lshl_add_u32 v5, v6, 5, v5
    s_lshl_b32 s{S_T0}, s{S_KQ}, 13
    v_add3_u32 v{V_DA}, v5, s{S_T0}, v209
    v_xor_b32 v{V_DA+1}, 64, v{V_DA}
    """)
    def maxtree(src, dst, init=None):
        L = []
        if init is None:
            L.append(f"v_max3_f32 v{dst}, v{src}, v{src+1}, v{src+2}")
            L.append(f"v_max_f32 v{dst}, v{src+3}, v{dst}")
            k = 4
        else:
            k = 0
        for i in range(k, 16, 2): L.append(f"v_max3_f32 v{dst}, v{src+i}, v{src+i+1}, v{dst}")
        return L
    def setC(m, shift):
        a(f"v_mov_b32 v{m+1}, v{m}\ns_nop 1\nv_permlane32_swap_b32 v{m}, v{m+1}\nv_max_f32 v{m}, v{m}, v{m+1}")
        a(f"v_sub_f32 v{CC}, {hex(f2u(-shift)) if shift else 0}, v{m}")
        a(f"v_mov_b32 v{CC+1}, v{CC}")
        for i in range(2, 16, 2): a(f"v_mov_b64 {vr(CC+i,2)}, {vr(CC,2)}")
    for l in maxtree(S1, 8): a(l)
    setC(8, cfg.shift)
    a(f"""
    s_mul_i32 s{S_T0}, s{S_KQ}, {448*1024}
    s_lshl_b32 s{S_T1}, s{S_RT}, 15
    """)
    a(mfma32(S0, KF, QF, CC))
    a(f"""
    s_add_u32 s{S_T0}, s{S_T0}, s{S_T1}
    s_lshl_b32 s{S_T1}, s{S_CT8}, 7
    s_add_u32 s{S_WDO}, s{S_T0}, s{S_T1}
    s_lshl_b32 s{S_T0}, s{S_W}, 15
    s_add_u32 s{S_WOO}, s{S_T0}, s{S_T1}
    s_lshl_b32 s{S_T2}, s{S_RT64}, 1
    s_add_u32 s{S_T2}, s{S_T2}, s{S_RT}
    s_mul_i32 s{S_T0}, s{S_T2}, 112
    s_mul_i32 s{S_T3}, s{S_KQ}, 28
    s_add_u32 s{S_T0}, s{S_T0}, s{S_T3}
    s_lshl_b32 s{S_T0}, s{S_T0}, 10
    s_add_u32 s{S_HLD}, s{S_T0}, {WS_H}
    s_lshl_b32 s{S_T0}, s{S_T2}, 15
    s_lshl_b32 s{S_T3}, s{S_KQ}, 13
    s_add_u32 s{S_T3}, s{S_T0}, s{S_T3}
    s_add_u32 s{S_OLD}, s{S_T3}, {WS_O}
    s_add_u32 s{S_T0}, s{S_T0}, s{S_T1}
    s_lshl_b32 s{S_T1}, s{S_KQ}, 5
    s_add_u32 s{S_T0}, s{S_T0}, s{S_T1}
    v_and_b32 v5, 31, v{V_LANE}
    v_lshlrev_b32 v5, 10, v5
    v_lshl_add_u32 v5, v3, 4, v5
    v_add_u32 v{V_FO}, s{S_T0}, v5
    s_mul_i32 s{S_T0}, s{S_KQ}, 14
    v_min_u32 v5, 13, v{V_LANE}
    v_add_u32 v5, s{S_T0}, v5
    v_and_b32 v6, 3, v5
    v_lshrrev_b32 v5, 2, v5
    v_lshlrev_b32 v6, 2, v6
    v_lshl_add_u32 v2, v5, 7, v6
    v_mov_b32 v4, 1
    """)

    def rowdma(rs, sbase, add, ldsbase, e):
        pre = f"s_add_u32 m0, s{S_W4K}, {ldsbase}\n"
        return pre + f"s_add_u32 s{S_T0}, s{sbase}, {add + e*7168}\nbuffer_load_dwordx4 v{V_WDD}, {sr(rs,4)}, s{S_T0} offen offset:{1024*e} lds"
    tbs = [starts[c] - 3 for c in range(1, len(starts))]
    def attention(half):
        sfx = "AB"[half]
        head = {t: [] for t in range(66)}
        vm = {t: [] for t in range(66)}
        pre = {t: [] for t in range(66)}
        bg = {t: [] for t in range(66)}
        bwait = {}
        for ci, tb in enumerate(tbs):
            q = []
            if ci + 2 < len(starts): q += kvdma(ci + 2, starts[ci + 2])
            dload = ci
            if dload <= 6:
                q += [rowdma(R_WD, S_WDO, dload*65536, L_WD + (dload & 1)*32768, e) for e in range(4)]
                hl = [f"buffer_load_dwordx4 {vr(HF + 16*(dload&1) + 4*j,4)}, v{V_L16}, {sr(R_WS,4)}, s{S_T1} offen offset:{1024*j} sc1" for j in range(4)]
                hl[0] = f"s_add_u32 s{S_T1}, s{S_HLD}, {dload*4096}\n" + hl[0]
                o = 5 if dload == 0 else 4
                vm[tb + o] += hl[:2]; vm[tb + o + 1] += hl[2:]
                bwait[tbs[ci + 1]] = 4
                pre[tbs[ci + 1] + 1].append("s_waitcnt vmcnt(0)")
            else:
                q += [rowdma(R_WO, S_WOO, 0, L_WO, e) for e in range(4)]
                q += [f"buffer_load_dwordx4 {vr(V_XR,4)}, v{V_FO}, {sr(R_X,4)}, 0 offen"]
            for i, x in enumerate(q): vm[tb + 1 + i // 2].append(x)
            d = ci - 1
            if d >= 0:
                lh = [1, 1, 2, 3, 4, 5, 6, 6]; mb = [2, 2, 3, 4, 5, 6, 7, 8]
                for k in range(8):
                    j, ct = divmod(k, 2); fr = DF + 4 * (k & 3)
                    for t in range(2):
                        head[tb + lh[k]].append(f"ds_read_b64_tr_b16 {vr(fr+2*t,2)}, v{V_DA+ct} offset:{L_WD + (d&1)*32768 + j*2048 + t*512}")
                    bg[tb + mb[k]].append(mfma32(YY + 16*ct, fr, HF + 16*(d&1) + 4*j, None if (d == 0 and j == 0) else YY + 16*ct))
        for ti in range(2):
            for rt in range(2):
                vm[ti].append(f"s_xor_b32 s{S_T0}, s{S_HST}, {1024*ti}\ns_add_u32 s{S_T0}, s{S_T0}, {112*1024*rt}\n"
                              f"buffer_store_dwordx4 {vr(HO + 8*ti + 4*rt,4)}, v{V_L16}, {sr(R_WS,4)}, s{S_T0} offen sc1")
        w = [rowdma(R_WO, S_WOO, 256*1024, L_WO + 32768, e) for e in range(4)]
        vm[2] += w[:2]; vm[3] += w[2:]
        vm[4] += [f"s_waitcnt vmcnt(4)\ns_mov_b64 exec, 1\nbuffer_store_dword v4, off, {sr(R_WS,4)}, s{S_FLG} sc1\ns_mov_b64 exec, -1"]
        bwait[tbs[0]] = 5
        tp = tbs[0] + 4
        poll = f"buffer_load_dword v3, v2, {sr(R_WS,4)}, s{S_T2} offen sc1"
        vm[tp] += [f"s_lshr_b32 s{S_T2}, s{S_RT64}, 1\ns_lshl_b32 s{S_T2}, s{S_T2}, 11\n"
                   f"s_and_b32 s{S_T3}, s{S_RT64}, 1\ns_lshl_b32 s{S_T3}, s{S_T3}, 4\ns_add_u32 s{S_T2}, s{S_T2}, s{S_T3}\ns_add_u32 s{S_T2}, s{S_T2}, {WS_FL}\n" + poll]
        pre[tp+1] = [f"s_mov_b32 s{S_SPIN}, 0\nL_hchk{sfx}:\ns_waitcnt vmcnt(0)\nv_cmp_ne_u32 vcc, 1, v3\ns_add_u32 s{S_SPIN}, s{S_SPIN}, 1\ns_cbranch_vccz L_hok{sfx}\n"
                     f"s_cmp_ge_u32 s{S_SPIN}, {SPIN_MAX}\ns_cbranch_scc1 L_hok{sfx}\n{poll}\ns_branch L_hchk{sfx}\nL_hok{sfx}:"]
        for t in range(64):
            par = t & 1
            sd, sn = (S0, S1) if par == 0 else (S1, S0)
            p, pp = PP + 8*par, PP + 8*(1 - par)
            isb = t in tbs
            if cfg.stamps == 2 and t - 1 in tbs: stamp()
            if isb and half == 1: a(f"s_waitcnt vmcnt({bwait[t]}) lgkmcnt(0)\ns_barrier")
            else: a("s_waitcnt lgkmcnt(0)")
            assert not (isb and vm[t])
            for l in pre[t] + vm[t][:1]: a(l)
            if t + 2 < 64: a(f"ds_read_b128 {vr(KF+4*par,4)}, v{V_KA} offset:{kv_off(t+2)}")
            a(f"s_mov_b64 exec, {sr(S_VM,2)}")
            a(f"ds_read_b128 {vr(VF+8*par,4)}, v{V_VA} offset:{kv_off(t)}")
            a(f"ds_read_b128 {vr(VF+8*par+4,4)}, v{V_VA} offset:{kv_off(t)+512}")
            a("s_mov_b64 exec, -1")
            for l in head[t] + vm[t][1:]: a(l)
            if isb and half == 0: a(f"s_waitcnt vmcnt({bwait[t]})\ns_barrier")
            mf = []
            if t + 1 < 64: mf.append(mfma32(sn, KF + 4*(1-par), QF, CC))
            if t >= 1:
                vp = VF + 8*(1-par)
                mf.append(mfma32(OO, vp, pp, None if t == 1 else OO))
                mf += bg[t][:1]
                mf.append(mfma32(OO, vp + 4, pp + 4, OO))
                mf += bg[t][1:]
            a(".p2align 3")
            pos = {0: [], 1: [1], 2: [1, 4], 3: [1, 3, 6], 4: [1, 3, 5, 7], 5: [0, 2, 3.5, 5, 6.5]}[len(mf)]
            k = 0
            for i in range(8):
                if k < len(mf) and pos[k] == i: a(mf[k]); k += 1
                if i == 0 and half == 1:
                    a(f"v_exp_f32 v{sd}, v{sd}\ns_setprio 1\nv_exp_f32_e64 v{sd+1}, v{sd+1}")
                else:
                    a(f"v_exp_f32 v{sd+2*i}, v{sd+2*i}\nv_exp_f32 v{sd+2*i+1}, v{sd+2*i+1}")
                if k < len(mf) and pos[k] == i + 0.5: a(mf[k]); k += 1
                if i >= 1: a(f"v_cvt_pk_bf16_f32 v{p+i-1}, v{sd+2*i-2}, v{sd+2*i-1}")
            assert k == len(mf)
            a(f"v_cvt_pk_bf16_f32 v{p+7}, v{sd+14}, v{sd+15}")
            if half == 1: a("s_setprio 0")
        a("s_waitcnt lgkmcnt(0)\ns_nop 0")
        a(mfma32(OO, VF + 8, PP + 8, OO)); a(mfma32(OO, VF + 12, PP + 12, OO))
    a(f"s_cmp_ge_u32 s{S_W}, 4\ns_cbranch_scc1 L_attB")
    n0 = nst[0]
    attention(0)
    a("s_branch L_att_end")
    a.label("L_attB")
    nst[0] = n0
    attention(1)
    a.label("L_att_end")
    stamp()
    a(f"s_lshl_b32 s{S_T0}, s{S_KQ}, 13\ns_add_u32 s{S_T0}, s{S_T0}, {L_WO}")
    a(f"v_add_u32 v{V_DA}, s{S_T0}, v{V_DA}\nv_xor_b32 v{V_DA+1}, 64, v{V_DA}")
    a(f"v_add_u32 v5, s{S_W2K}, v{V_L16}")
    a(f"s_mov_b32 s{S_T2}, {hex(f2u(2.0**120))}\ns_mov_b32 s{S_T3}, {hex(f2u(2.0**-105))}")
    a.nop(6)
    a(f"v_add_f32 v8, abs(v{OO}), abs(v{OO+1})")
    for i in range(2, 8): a(f"v_add_f32 v8, abs(v{OO+i}), v8")
    a(f"""
    v_add_f32 v9, v8, v{OO+8}
    v_cmp_gt_f32 {sr(S_EX,2)}, s{S_T3}, v8
    v_cmp_ngt_f32 vcc, s{S_T2}, v9
    s_nop 1
    s_or_b64 vcc, vcc, {sr(S_EX,2)}
    """)
    a("s_branch L_fb" if cfg.force_fb else "s_cbranch_scc1 L_fb")
    a.label("L_norm")
    a(f"v_rcp_f32 v8, v{OO+8}\ns_nop 0\nv_mov_b32 v9, v8")
    for i in range(0, 8, 2): a(f"v_pk_mul_f32 {vr(OO+i,2)}, {vr(OO+i,2)}, v[8:9]")
    for i in range(4): a(f"v_cvt_pk_bf16_f32 v{12+i}, v{OO+2*i}, v{OO+2*i+1}")
    for i in range(4): a(f"v_min_u32 v{12+i}, -2, v{12+i}")
    a(f"buffer_store_dwordx4 v[12:15], v{V_L16}, {sr(R_WS,4)}, s{S_OST} offen sc1")
    a("s_waitcnt vmcnt(1)\ns_barrier")
    def scatter(src, bases):
        for z in (1, 2, 3):
            a(f"v_xor_b32 v6, {z*4096}, v5" + (f"\nv_add_u32 v6, {bases[z-1]}, v6" if bases[z-1] >= 65536 - 1024 else ""))
            off = bases[z-1] if bases[z-1] < 65536 - 1024 else 0
            a(f"ds_write_b128 v6, {vr(src+8*z,4)} offset:{off}\nds_write_b128 v6, {vr(src+8*z+4,4)} offset:{off+1024}")
    def gather(dst, bases):
        for z in (1, 2, 3):
            if bases[z-1] >= 65536 - 1024:
                a(f"v_add_u32 v6, {bases[z-1]}, v5"); ad, off = 6, 0
            else:
                ad, off = 5, bases[z-1]
            a(f"ds_read_b128 {vr(dst+8*(z-1),4)}, v{ad} offset:{off}\nds_read_b128 {vr(dst+8*(z-1)+4,4)}, v{ad} offset:{off+1024}")
    def reduce(acc0, t):
        for i in range(0, 8, 2): a(f"v_pk_add_f32 {vr(t+i,2)}, {vr(t+i,2)}, {vr(t+8+i,2)}")
        for i in range(0, 8, 2): a(f"v_pk_add_f32 {vr(acc0+i,2)}, {vr(acc0+i,2)}, {vr(t+16+i,2)}")
        for i in range(0, 8, 2): a(f"v_pk_add_f32 {vr(acc0+i,2)}, {vr(acc0+i,2)}, {vr(t+i,2)}")
    ybases = [L_KV, L_KV + 16384, L_KV + 32768]
    sbases = [0, 16384, L_R]
    scatter(YY, ybases)
    WOF, OF, SS, TT = 16, 160, 80, 224
    for j in range(8):
        for ct in range(2):
            for t in range(2):
                a(f"ds_read_b64_tr_b16 {vr(WOF + 8*j + 4*ct + 2*t,2)}, v{V_DA+ct} offset:{j*2048 + t*512}")
            if j in (2, 5) and ct == 1: a("s_waitcnt lgkmcnt(4)")
    a(f"s_add_u32 s{S_T1}, s{S_OLD}, 4096\ns_mov_b32 s{S_SPIN}, 0")
    def oload(j): return f"buffer_load_dwordx4 {vr(OF+4*j,4)}, v{V_L16}, {sr(R_WS,4)}, s{S_OLD if j < 4 else S_T1} offen offset:{1024*(j&3)} sc1"
    a("s_waitcnt lgkmcnt(0)\ns_barrier")
    gather(TT, ybases)
    for j in range(8): a(oload(j))
    a("s_waitcnt lgkmcnt(0)")
    reduce(YY, TT)
    a(f"v_mov_b32 v8, {hex(f2u(-math.log2(math.e)))}\nv_mov_b32 v9, v8")
    for i in range(0, 8, 2): a(f"v_pk_mul_f32 {vr(TT+i,2)}, {vr(YY+i,2)}, v[8:9]")
    for i in range(8): a(f"v_exp_f32 v{TT+i}, v{TT+i}")
    for i in range(8): a(f"v_add_f32 v{TT+i}, 1.0, v{TT+i}")
    for i in range(8): a(f"v_rcp_f32 v{TT+i}, v{TT+i}")
    XU = 136
    for i in range(4): a(f"v_lshlrev_b32 v{XU+2*i}, 16, v{V_XR+i}\nv_and_b32 v{XU+2*i+1}, 0xffff0000, v{V_XR+i}")
    for i in range(0, 8, 2): a(f"v_pk_mul_f32 {vr(YY+i,2)}, {vr(YY+i,2)}, {vr(TT+i,2)}")
    stamp()
    for j in range(8):
        a.label(f"L_ochk{j}")
        a(f"""
        s_waitcnt vmcnt({7-j})
        v_max3_u32 v8, v{OF+4*j}, v{OF+4*j+1}, v{OF+4*j+2}
        v_max_u32 v8, v8, v{OF+4*j+3}
        v_cmp_eq_u32 vcc, -1, v8
        s_nop 0
        s_cbranch_vccnz L_oretry{j}
        """)
        a.label(f"L_ook{j}")
        for ct in range(2):
            a(mfma32(SS + 16*ct, WOF + 8*j + 4*ct, OF + 4*j, None if j == 0 else SS + 16*ct))
    stamp()
    a.nop(10)
    scatter(SS, sbases)
    a("s_waitcnt lgkmcnt(0)\ns_barrier")
    gather(TT, sbases)
    a("s_waitcnt lgkmcnt(0)")
    reduce(SS, TT)
    for i in range(0, 8, 2): a(f"v_pk_fma_f32 {vr(SS+i,2)}, {vr(SS+i,2)}, {vr(YY+i,2)}, {vr(XU+i,2)}")
    for i in range(4): a(f"v_cvt_pk_bf16_f32 v{12+i}, v{SS+2*i}, v{SS+2*i+1}")
    a(f"buffer_store_dwordx4 v[12:15], v{V_FO}, {sr(R_OUT,4)}, 0 offen")
    if cfg.stamps:
        a("s_waitcnt vmcnt(0)")
        stamp()
        a(f"s_lshl_b32 s{S_T0}, s2, 3\ns_add_u32 s{S_T0}, s{S_T0}, s{S_W}\ns_lshl_b32 s{S_T0}, s{S_T0}, 8\ns_add_u32 s{S_T0}, s{S_T0}, {WS_DBG}")
        a(f"v_lshlrev_b32 v2, 2, v{V_LANE}\nbuffer_store_dword v{V_STAMP}, v2, {sr(R_WS,4)}, s{S_T0} offen")
    a.label("L_end")
    a("s_endpgm")
    for j in range(8):
        a.label(f"L_oretry{j}")
        a(f"s_add_u32 s{S_SPIN}, s{S_SPIN}, 1\ns_cmp_ge_u32 s{S_SPIN}, {SPIN_MAX}\ns_cbranch_scc1 L_ook{j}")
        for k in range(j, 8): a(oload(k))
        a(f"s_branch L_ochk{j}")
    a.label("L_fb")
    a(f"v_mov_b32 v8, 0xff800000\ns_mov_b32 s{S_CNT}, {WS_KV}")
    a(f"v_subrev_u32 v10, {L_KV}, v{V_VA}")
    a.label("L_fb1")
    a(f"buffer_load_dwordx4 {vr(KF,4)}, v{V_L16}, {sr(R_WS,4)}, s{S_CNT} offen sc1\ns_waitcnt vmcnt(0)")
    a(mfma32(S0, KF, QF, None)); a.nop(12)
    for l in maxtree(S0, 8, init=True): a(l)
    a(f"s_add_u32 s{S_CNT}, s{S_CNT}, 2048\ns_cmp_lt_u32 s{S_CNT}, {WS_KV + 64*2048}\ns_cbranch_scc1 L_fb1")
    setC(8, 0.0)
    for i in range(16): a(f"v_mov_b32 v{OO+i}, 0")
    a(f"s_mov_b32 s{S_CNT}, {WS_KV}")
    a.label("L_fb2")
    a(f"buffer_load_dwordx4 {vr(KF,4)}, v{V_L16}, {sr(R_WS,4)}, s{S_CNT} offen sc1")
    a(f"s_mov_b64 exec, {sr(S_VM,2)}")
    a(f"buffer_load_dwordx4 {vr(VF,4)}, v10, {sr(R_WS,4)}, s{S_CNT} offen sc1")
    a(f"buffer_load_dwordx4 {vr(VF+4,4)}, v10, {sr(R_WS,4)}, s{S_CNT} offen offset:512 sc1")
    a("s_mov_b64 exec, -1\ns_waitcnt vmcnt(0)")
    a(mfma32(S0, KF, QF, CC)); a.nop(12)
    for i in range(16): a(f"v_exp_f32 v{S0+i}, v{S0+i}")
    for i in range(8): a(f"v_cvt_pk_bf16_f32 v{PP+i}, v{S0+2*i}, v{S0+2*i+1}")
    a.nop(2)
    a(mfma32(OO, VF, PP, OO)); a(mfma32(OO, VF + 4, PP + 4, OO))
    a(f"s_add_u32 s{S_CNT}, s{S_CNT}, 2048\ns_cmp_lt_u32 s{S_CNT}, {WS_KV + 64*2048}\ns_cbranch_scc1 L_fb2")
    a.nop(12)
    a("s_branch L_norm")
    a.label("L_code_end")
    return a

HEADER = open(f"cdna_kernels/{NAME}.s.ref").read().split("; Override launch")[0]
def wrap(a):
    s = HEADER + "; @launch grid=(256,1,1) block=(512,1,1) lds=163840\n"
    s += f""".amdgcn_target "amdgcn-amd-amdhsa--gfx950"
.text
.globl {NAME}_kernel
.p2align 8
.type {NAME}_kernel,@function
{NAME}_kernel:
"""
    s += a.text()
    s += f""".section .rodata,"a"
.p2align 6
.amdhsa_kernel {NAME}_kernel
  .amdhsa_next_free_vgpr 256
  .amdhsa_next_free_sgpr 100
  .amdhsa_accum_offset 256
  .amdhsa_group_segment_fixed_size 0
  .amdhsa_kernarg_size 96
  .amdhsa_user_sgpr_count 2
  .amdhsa_user_sgpr_kernarg_segment_ptr 1
  .amdhsa_system_sgpr_workgroup_id_x 1
.end_amdhsa_kernel
"""
    return s

if __name__ == "__main__":
    cfg = Cfg()
    out = sys.argv[1]
    for kv in sys.argv[2:]:
        k, v = kv.split("=")
        setattr(cfg, k, eval(v))
    a = gen(cfg)
    errs = check(a.lines)
    for e in errs: print("HAZARD need %d have %d:\n   %s\n   %s" % (e[2], e[3], e[0], e[1]))
    open(out, "w").write(wrap(a))
    print("wrote", out, len(a.lines), "lines", len(errs), "hazards")
```

```python
import sys, math
from asmlib import Asm, vr, sr, f2u, check

NAME = "recurrent_scan__grouped_kv_mqa__glu_gated_geglu__prompt"

class Cfg:
    stamps = False
    stop = None
    force_fb = False
    shift = 90.0
    nodot = False
    nodma = False
    nord = False
    sizes = [8, 8, 7] + [6]*6 + [5]
    ilen = 6
    g_init = 3
    t_pf = 9
    t_wo = 14
    n_csa = 2
    lead0 = 12
    pf = True
    i_q = 7
    c_arr = 2
    lead = [8, 10, 12, 12, 12, 12]
    n_pre = (2, 4)
    n_fin = (7, 6)
    g_cs = (3, 4, 5, 6)
    g_csc = 9
    bprio = 3
    st_rate = 0.5
    t_flag = 9
    t_kv2 = 6
    m16 = False
    pp = 0
    pa = 2
    pv = (1, 1)
    ab = ''
    pad = None

WS_KV, WS_ST, WS_FL, WS_CS, WS_O, WS_H, WS_DBG, WS_Q = 0, 0x20000, 0x28000, 0x40000, 0x100000, 0x400000, 0xC00000, 0xE00000
WS_SIZE = 0x1000000
L_X, L_W, L_R = 0, 49152, 147456
L_WD, L_WO, L_KV = 0, 32768, 98304
P_X, P_WQ, P_WK, P_WV, P_WO, P_WG, P_WU, P_WD, P_OUT, P_DBG, P_WS = 4, 6, 8, 10, 12, 16, 18, 20, 22, 24, 26
R_X, R_WKV, R_WD, R_WO, R_OUT, R_DBG, R_WS = 28, 32, 36, 40, 44, 48, 52
S_W, S_RB, S_CB, S_RT64, S_CT8 = 56, 57, 58, 59, 60
S_T16 = 61
S_VM = 62
S_XOFF = 64
S_WOFF = 65
S_HW = 66
S_ONES = 67
S_T0, S_T1, S_T2, S_T3 = 68, 69, 70, 71
S_OST = 72
S_FLG = 73
S_HST = 74
S_KQ, S_RT = 75, 76
S_WDO = 77
S_HLD = 78
S_W4K = 79
S_W2K = 80
S_SPIN = 81
S_WOO = 82
S_OLD = 83
S_EX = 84
S_TS = 86
S_CNT = 88
S_WSTEP = 89
S_TS2 = 90
R_W, R_CW = 92, 96
S_H4K = 3
S_HSB = 14
S_M0W = 15
SPIN_MAX = 1 << 16

V_LANE = 1
V_STAMP = 255
V_L16, V_KA, V_WDD, V_VA, V_DA, V_PO, V_FO, V_XR, QF = 208, 209, 210, 211, 212, 214, 215, 216, 220

def mfma32(d, a, b, c):
    cs = "0" if c is None else vr(c, 16)
    return f"v_mfma_f32_32x32x16_bf16 {vr(d,16)}, {vr(a,4)}, {vr(b,4)}, {cs}"
def mfma16(d, a, b, c):
    cs = "0" if c is None else vr(c, 4)
    return f"v_mfma_f32_16x16x32_bf16 {vr(d,4)}, {vr(a,4)}, {vr(b,4)}, {cs}"

def gen(cfg):
    a = Asm()
    nst = [0]
    def stamp(final=False):
        if not cfg.stamps: return
        i = nst[0]; nst[0] += 1
        if cfg.stamps == 5:
            if final: i = 1
            elif i: return
        a(f"s_memrealtime {sr(S_TS,2)}\ns_memtime {sr(S_TS2,2)}\ns_waitcnt lgkmcnt(0)\nv_writelane_b32 v{V_STAMP}, s{S_TS}, {i}\nv_writelane_b32 v{V_STAMP}, s{S_TS2}, {32+i}")
    def pad(pt):
        if not cfg.pad or cfg.pad[0] != pt: return
        a(f"L_pad:\ns_memrealtime {sr(S_TS2,2)}\ns_waitcnt lgkmcnt(0)\ns_sub_u32 s{S_TS2}, s{S_TS2}, s{S_TS}\ns_cmp_lt_u32 s{S_TS2}, {int(cfg.pad[1]*100)}\ns_cbranch_scc1 L_pad")
    def srd(r, p, size):
        a(f"s_mov_b32 s{r}, s{p}\ns_and_b32 s{r+1}, s{p+1}, 0xffff\ns_mov_b32 s{r+2}, {hex(size)}\ns_mov_b32 s{r+3}, 0x20000")

    a(f"s_cmp_ge_u32 s2, 256\ns_cbranch_scc1 L_end")
    if cfg.pad: a(f"s_memrealtime {sr(S_TS,2)}")
    a(f"s_load_dwordx16 s[4:19], s[0:1], 0\ns_load_dwordx8 s[20:27], s[0:1], 64")
    if cfg.stamps:
        a(f"v_mov_b32 v{V_STAMP}, 0")
    a(f"v_lshrrev_b32 v2, 6, v0\nv_and_b32 v{V_LANE}, 63, v0")
    a(f"v_readfirstlane_b32 s{S_W}, v2")
    a(f"""
    s_and_b32 s{S_T0}, s2, 7
    s_lshr_b32 s{S_T1}, s2, 3
    s_and_b32 s{S_T2}, s{S_T0}, 1
    s_lshl_b32 s{S_T2}, s{S_T2}, 3
    s_and_b32 s{S_CT8}, s{S_T1}, 7
    s_add_u32 s{S_RB}, s{S_T2}, s{S_CT8}
    s_lshr_b32 s{S_T1}, s{S_T1}, 3
    s_lshr_b32 s{S_T2}, s{S_T0}, 1
    s_lshl_b32 s{S_T2}, s{S_T2}, 2
    s_add_u32 s{S_CB}, s{S_T2}, s{S_T1}
    s_lshl_b32 s{S_T2}, s{S_T0}, 2
    s_add_u32 s{S_RT64}, s{S_T2}, s{S_T1}
    s_and_b32 s{S_HW}, s{S_W}, 3
    s_lshl_b32 s{S_H4K}, s{S_HW}, 12
    v_lshlrev_b32 v{V_L16}, 4, v{V_LANE}
    s_mov_b32 s{R_X+2}, 0x200000
    s_mov_b32 s{R_X+3}, 0x20000
    s_cmp_ge_u32 s{S_W}, 4
    s_cbranch_scc1 L_helper
    """)

    sizes = cfg.sizes
    assert sum(sizes) == 64
    starts = [sum(sizes[:i]) for i in range(len(sizes))]
    S0, S1, PP, OO, CC, KF, VF = 16, 32, 48, 64, 80, 100, 108
    YY, HF, DF = 128, 160, 192
    HO = 160
    def kv_off(t):
        c = max(i for i in range(len(starts)) if starts[i] <= t)
        return ((c + 1) % 3) * 16384 + (t - starts[c]) * 2048
    qload = f"buffer_load_dwordx4 {vr(QF,4)}, v{V_L16}, {sr(R_WS,4)}, s{S_T2} offen sc1"

    XS = [0, 1, 2, 0, 1, 2, 0, 1]
    L_PX = L_X + 2*16384
    def common_setup():
        srd(R_WD, P_WD, 1792 * 1024)
        srd(R_WO, P_WO, 512 * 1024)
        srd(R_OUT, P_OUT, 0x200000)
        a(f"""
        s_lshl_b32 s{S_W4K}, s{S_W}, 12
        s_lshl_b32 s{S_W2K}, s{S_W}, 11
        s_mov_b32 s{S_VM}, 0xffff
        s_mov_b32 s{S_VM+1}, 0xffff
        s_lshr_b32 s{S_KQ}, s{S_W}, 1
        s_and_b32 s{S_RT}, s{S_W}, 1
        s_lshl_b32 s{S_T2}, s{S_RT64}, 1
        s_add_u32 s{S_T2}, s{S_T2}, s{S_RT}
        s_lshl_b32 s{S_T0}, s{S_T2}, 3
        s_add_u32 s{S_T0}, s{S_T0}, s{S_CT8}
        s_lshl_b32 s{S_T0}, s{S_T0}, 2
        s_add_u32 s{S_T0}, s{S_T0}, s{S_KQ}
        s_lshl_b32 s{S_T0}, s{S_T0}, 10
        s_add_u32 s{S_OST}, s{S_T0}, {WS_O}
        s_lshl_b32 s{S_T0}, s2, 7
        s_lshl_b32 s{S_T1}, s{S_W}, 2
        s_add_u32 s{S_T0}, s{S_T0}, s{S_T1}
        s_add_u32 s{S_FLG}, s{S_T0}, {WS_FL}
        s_mul_i32 s{S_T0}, s{S_KQ}, {448*1024}
        s_lshl_b32 s{S_T1}, s{S_RT}, 15
        s_add_u32 s{S_T0}, s{S_T0}, s{S_T1}
        s_lshl_b32 s{S_T1}, s{S_CT8}, 7
        s_add_u32 s{S_WDO}, s{S_T0}, s{S_T1}
        s_lshl_b32 s{S_T0}, s{S_W}, 15
        s_add_u32 s{S_WOO}, s{S_T0}, s{S_T1}
        s_mul_i32 s{S_T0}, s{S_T2}, 112
        s_mul_i32 s{S_T3}, s{S_KQ}, 28
        s_add_u32 s{S_T0}, s{S_T0}, s{S_T3}
        s_lshl_b32 s{S_T0}, s{S_T0}, 10
        s_add_u32 s{S_HLD}, s{S_T0}, {WS_H}
        s_lshl_b32 s{S_T0}, s{S_T2}, 15
        s_lshl_b32 s{S_T3}, s{S_KQ}, 13
        s_add_u32 s{S_T3}, s{S_T0}, s{S_T3}
        s_add_u32 s{S_OLD}, s{S_T3}, {WS_O}
        s_add_u32 s{S_T0}, s{S_T0}, s{S_T1}
        s_lshl_b32 s{S_T1}, s{S_KQ}, 5
        s_add_u32 s{S_T0}, s{S_T0}, s{S_T1}
        v_lshrrev_b32 v3, 5, v{V_LANE}
        v_and_b32 v5, 31, v{V_LANE}
        v_lshlrev_b32 v5, 10, v5
        v_lshl_add_u32 v5, v3, 4, v5
        v_add_u32 v{V_FO}, s{S_T0}, v5
        v_add_u32 v{V_KA}, {L_KV}, v{V_L16}
        v_and_b32 v2, 15, v{V_LANE}
        v_lshl_add_u32 v2, v3, 4, v2
        v_lshlrev_b32 v2, 4, v2
        v_add_u32 v{V_VA}, {L_KV + 1024}, v2
        v_lshrrev_b32 v5, 3, v{V_LANE}
        v_and_b32 v6, 7, v{V_LANE}
        v_bfe_u32 v7, v{V_LANE}, 4, 1
        v_lshlrev_b32 v8, 2, v7
        v_xor_b32 v6, v6, v8
        v_lshlrev_b32 v6, 4, v6
        v_lshl_add_u32 v{V_WDD}, v5, 10, v6
        v_and_b32 v2, 1, v{V_LANE}
        v_bfe_u32 v4, v{V_LANE}, 1, 1
        v_lshl_add_u32 v2, v2, 1, v4
        v_bfe_u32 v5, v{V_LANE}, 2, 2
        v_lshl_add_u32 v4, v3, 3, v5
        v_lshlrev_b32 v4, 7, v4
        v_lshl_add_u32 v4, v2, 3, v4
        v_and_b32 v6, 2, v5
        v_xor_b32 v6, v6, v7
        v_xor_b32 v6, s{S_KQ}, v6
        v_lshl_add_u32 v6, v6, 5, v4
        s_lshl_b32 s{S_T0}, s{S_KQ}, 13
        v_add_u32 v{V_DA}, s{S_T0}, v6
        v_xor_b32 v{V_DA+1}, 64, v{V_DA}
        """)
        a(f"""
        s_lshr_b32 s{S_T0}, s{S_RT64}, 4
        s_lshl_b32 s{S_T1}, s{S_KQ}, 1
        s_add_u32 s{S_T0}, s{S_T0}, s{S_T1}
        s_bfe_u32 s{S_T2}, s{S_RT64}, 0x30001
        s_lshl_b32 s{S_T2}, s{S_T2}, 3
        s_add_u32 s{S_T0}, s{S_T0}, s{S_T2}
        s_lshl_b32 s{S_T0}, s{S_T0}, 7
        v_and_b32 v2, 3, v{V_LANE}
        v_lshlrev_b32 v6, 2, v2
        v_lshl_add_u32 v6, v5, 13, v6
        v_add_u32 v6, s{S_T0}, v6
        s_and_b32 s{S_T0}, s2, 0xc7
        s_lshl_b32 s{S_T1}, s{S_T1}, 3
        s_add_u32 s{S_T0}, s{S_T0}, s{S_T1}
        s_lshl_b32 s{S_T0}, s{S_T0}, 7
        s_lshl_b32 s{S_T1}, s{S_RT}, 2
        s_add_u32 s{S_T0}, s{S_T0}, s{S_T1}
        v_and_b32 v8, 1, v5
        v_lshlrev_b32 v8, 10, v8
        v_lshl_add_u32 v8, v2, 3, v8
        v_cmp_gt_u32 vcc, 16, v{V_LANE}
        v_add_u32 v8, s{S_T0}, v8
        s_nop 0
        v_cndmask_b32 v{V_PO}, v8, v6, vcc
        """)

    def img_params(simg, sstride, soff):
        a(f"""
        s_lshr_b32 s{S_T0}, s{S_CB}, 2
        s_and_b32 s{S_T1}, s{S_CB}, 3
        s_mul_i32 s{soff}, s{S_T0}, 896
        s_lshl_b32 s{S_T2}, s{S_T1}, 8
        s_add_u32 s{soff}, s{soff}, s{S_T2}
        s_lshr_b32 s{S_T2}, s{simg}, 1
        s_lshl_b32 s{S_T1}, s{S_T1}, 1
        s_add_u32 s{S_T1}, s{S_T1}, s{S_T2}
        s_lshl_b32 s{S_T2}, s{S_T2}, 7
        s_add_u32 s{soff}, s{soff}, s{S_T2}
        s_lshl_b32 s{S_T0}, s{S_T0}, 1
        s_and_b32 s{S_T2}, s{simg}, 1
        s_add_u32 s{S_T0}, s{S_T0}, s{S_T2}
        s_lshl_b32 s{S_T0}, s{S_T0}, 7
        s_movk_i32 s{sstride}, 3584
        s_cmp_eq_u32 s{S_T1}, 7
        s_cselect_b32 s{soff}, s{S_T0}, s{soff}
        s_cselect_b32 s{sstride}, 1024, s{sstride}
        """)
    def img_srd(r, sstride):
        a(f"""
        s_cmp_eq_u32 s{S_T2}, 0
        s_cselect_b32 s{r}, s{P_WG}, s{P_WU}
        s_cselect_b32 s{r+1}, s{P_WG+1}, s{P_WU+1}
        s_cmp_eq_u32 s{S_T1}, 7
        s_cselect_b32 s{r}, s{P_WQ}, s{r}
        s_cselect_b32 s{r+1}, s{P_WQ+1}, s{r+1}
        s_and_b32 s{r+1}, s{r+1}, 0xffff
        s_lshl_b32 s{r+2}, s{sstride}, 9
        s_mov_b32 s{r+3}, 0x20000
        """)

    ACC, XF, WF, V_XA, V_WR = 16, 144, 176, 192, 196
    V_ST, V_CSL, V_K, RA, RBm = 224, 232, 236, 4, 198
    def acc(ti, rt): return ACC + 64*ti + 16*rt
    CL, CSUM = 224, 240
    L_CNT = L_W + 8192
    a(f"""
    v_and_b32 v5, 15, v{V_LANE}
    v_lshrrev_b32 v6, 4, v{V_LANE}
    v_lshrrev_b32 v7, 3, v{V_LANE}
    v_and_b32 v4, 7, v{V_LANE}
    v_xor_b32 v2, v6, v4
    v_lshlrev_b32 v2, 4, v2
    v_lshl_add_u32 v249, v7, 10, v2
    v_xor_b32 v250, 64, v249
    v_add_u32 v250, {8192-1024}, v250
    s_lshl_b32 s{S_T16}, s{S_RB}, 3
    s_lshr_b32 s{S_T2}, s{S_CB}, 1
    s_add_u32 s{S_T16}, s{S_T16}, s{S_T2}
    s_lshl_b32 s{S_T0}, s{S_T16}, 14
    s_lshl_b32 s{S_T1}, s{S_HW}, 8
    s_add_u32 s{S_XOFF}, s{S_T0}, s{S_T1}
    s_mov_b32 s{R_WKV+2}, 0x4000
    s_mov_b32 s{R_WKV+3}, 0x20000
    s_and_b32 s{S_CNT}, s{S_RB}, 3
    """)
    img_params(S_CNT, S_WSTEP, S_WOFF)
    a(f"""
    s_and_b32 s{S_T0}, s{S_RB}, 12
    s_add_u32 s{S_T0}, s{S_T0}, s{S_HW}
    s_lshl_b32 s{S_T0}, s{S_T0}, 3
    s_mul_i32 s{S_T0}, s{S_T0}, s{S_WSTEP}
    s_add_u32 s{S_WOFF}, s{S_T0}, s{S_WOFF}
    v_mul_u32_u24 v8, s{S_WSTEP}, v7
    v_lshl_add_u32 v248, v4, 4, v8
    s_add_u32 m0, s{S_H4K}, {L_PX}
    s_and_b32 s{S_T3}, s{S_CB}, 1
    s_waitcnt lgkmcnt(0)
    """)
    stamp()
    a(f"""
    s_mov_b32 s{R_X}, s{P_X}
    s_and_b32 s{R_X+1}, s{P_X+1}, 0xffff
    buffer_load_dwordx4 v249, {sr(R_X,4)}, s{S_XOFF} offen lds
    buffer_load_dwordx4 v250, {sr(R_X,4)}, s{S_XOFF} offen offset:1024 lds
    s_add_u32 m0, s{S_H4K}, {L_PX + 2048}
    s_add_u32 s{S_XOFF}, s{S_XOFF}, 128
    buffer_load_dwordx4 v249, {sr(R_X,4)}, s{S_XOFF} offen lds
    buffer_load_dwordx4 v250, {sr(R_X,4)}, s{S_XOFF} offen offset:1024 lds
    s_cmp_eq_u32 s{S_T3}, 0
    s_cselect_b32 s{R_WKV}, s{P_WK}, s{P_WV}
    s_cselect_b32 s{R_WKV+1}, s{P_WK+1}, s{P_WV+1}
    s_add_u32 m0, s{S_H4K}, {L_R}
    s_and_b32 s{R_WKV+1}, s{R_WKV+1}, 0xffff
    """)
    for e in range(4): a(f"buffer_load_dwordx4 v{V_L16}, {sr(R_WKV,4)}, s{S_H4K} offen offset:{1024*e} lds")
    img_srd(R_CW, S_WSTEP)
    a(f"s_lshl_b32 s{S_WSTEP}, s{S_WSTEP}, 7")
    csld = [f"buffer_load_dwordx4 {vr(CL+4*e,4)}, v248, {sr(R_CW,4)}, s{S_WOFF} offen\ns_add_u32 s{S_WOFF}, s{S_WOFF}, s{S_WSTEP}" for e in range(4)]
    for l in csld[:cfg.n_csa]: a(l)
    a(f"s_getpc_b64 {sr(S_EX,2)}")
    a.label("L_pc")
    a(f"""
    s_lshr_b32 s{S_T0}, s2, 3
    s_lshl_b32 s{S_T0}, s{S_T0}, 2
    s_add_u32 s{S_T0}, s{S_T0}, s{S_W}
    s_lshl_b32 s{S_T0}, s{S_T0}, 9
    v_lshl_add_u32 v2, v{V_LANE}, 7, s{S_T0}
    v_min_u32 v2, L_code_end-L_pc-4, v2
    v_mov_b32 v3, 0
    v_mov_b32 v10, 0
    v_mov_b32 v16, {L_CNT}
    v_lshl_add_u64 v[2:3], v[2:3], 0, {sr(S_EX,2)}
    ds_write_b32 v16, v10
    s_mov_b64 exec, 15
    global_load_dword v9, v[2:3], off
    s_mov_b64 exec, -1
    s_waitcnt lgkmcnt(0)
    s_barrier
    s_mov_b32 s{S_ONES}, 0x3f803f80
    s_add_u32 s{S_T3}, s{S_H4K}, {L_R}
    v_lshlrev_b32 v2, 3, v5
    v_lshl_add_u32 v2, v6, 8, v2
    v_add_u32 v253, s{S_T3}, v2
    v_lshrrev_b32 v3, 1, v5
    v_xor_b32 v3, v3, v6
    v_lshlrev_b32 v3, 4, v3
    v_lshl_add_u32 v3, v5, 7, v3
    v_add_u32 v251, s{S_H4K}, v3
    v_xor_b32 v252, 64, v251
    v_add_u32 v254, s{S_T3}, v{V_L16}
    v_mov_b32 v17, v5
    v_mov_b32 v18, v6
    """)
    srd(R_WS, P_WS, WS_SIZE)
    srd(R_DBG, P_DBG, 256)
    common_setup()
    a(f"""
    v_lshrrev_b32 v6, 1, v5
    v_lshl_add_u32 v6, v7, 1, v6
    v_xor_b32 v6, s{S_HW}, v6
    v_lshl_add_u32 v6, v6, 5, v4
    v_mul_u32_u24 v8, 24576, v7
    v_add_u32 v6, v6, v8
    v_add_u32 v{V_WR}, {L_W}, v6
    v_add_u32 v{V_WR+1}, {L_W + 49152}, v6
    v_and_b32 v2, 31, v{V_LANE}
    v_bfe_u32 v6, v{V_LANE}, 1, 3
    v_xor_b32 v6, v6, v3
    v_lshlrev_b32 v6, 4, v6
    v_lshl_add_u32 v{V_XA}, v2, 7, v6
    v_xor_b32 v{V_XA+1}, 32, v{V_XA}
    v_xor_b32 v{V_XA+2}, 64, v{V_XA}
    v_xor_b32 v{V_XA+3}, 96, v{V_XA}
    v_lshlrev_b32 v206, 3, v2
    v_and_b32 v6, 3, v{V_LANE}
    v_bfe_u32 v8, v{V_LANE}, 2, 1
    v_lshl_add_u32 v6, v8, 3, v6
    v_bfe_u32 v8, v{V_LANE}, 3, 1
    v_lshl_add_u32 v6, v8, 2, v6
    v_lshlrev_b32 v6, 4, v6
    v_lshl_add_u32 v6, v7, 10, v6
    v_lshl_add_u32 v207, v3, 13, v6
    s_lshr_b32 s{S_T0}, s{S_CB}, 2
    s_and_b32 s{S_T1}, s{S_CB}, 3
    s_mul_i32 s{S_T2}, s{S_RB}, 448
    s_mul_i32 s{S_T3}, s{S_T0}, 28
    s_add_u32 s{S_T2}, s{S_T2}, s{S_T3}
    s_lshl_b32 s{S_T3}, s{S_T1}, 3
    s_add_u32 s{S_T2}, s{S_T2}, s{S_T3}
    s_add_u32 s{S_T2}, s{S_T2}, s{S_HW}
    s_lshl_b32 s{S_T2}, s{S_T2}, 10
    s_add_u32 s{S_HST}, s{S_T2}, {WS_H}
    s_add_u32 s{S_HSB}, s{S_HST}, 4096
    s_lshl_b32 s{S_T2}, s{S_RB}, 7
    s_lshl_b32 s{S_T3}, s{S_T0}, 3
    s_add_u32 s{S_T2}, s{S_T2}, s{S_T3}
    s_add_u32 s{S_T2}, s{S_T2}, s{S_HW}
    s_lshl_b32 s{S_T2}, s{S_T2}, 10
    s_add_u32 s{S_T2}, s{S_T2}, {WS_Q}
    s_cmp_eq_u32 s{S_T1}, 3
    s_cselect_b32 s{S_HSB}, s{S_T2}, s{S_HSB}
    v_mov_b32 v10, 0
    v_mov_b32 v11, 1
    v_mov_b32 v12, -1
    v_mov_b32 v13, -1
    v_mov_b32 v14, -1
    v_mov_b32 v15, -1
    v_and_b32 v6, 7, v{V_LANE}
    v_lshl_add_u32 v6, v6, 1, v3
    v_lshl_add_u32 v6, v6, 1, v7
    v_bfe_u32 v8, v{V_LANE}, 3, 1
    v_lshl_add_u32 v6, v6, 1, v8
    v_lshlrev_b32 v8, 4, v6
    s_lshl_b32 s{S_T0}, s{S_CB}, 14
    s_lshl_b32 s{S_T1}, s{S_RB}, 10
    s_add_u32 s{S_T0}, s{S_T0}, s{S_T1}
    s_lshl_b32 s{S_T1}, s{S_HW}, 2
    s_add_u32 s{S_T0}, s{S_T0}, s{S_T1}
    s_add_u32 s{S_CNT}, s{S_T0}, {WS_CS}
    """)
    PX, PW, PACC, PCS, PRS, PSQ, PONE, PSQP, PF1, RD = 24, 40, 56, 60, 64, 68, 72, 76, 77, 80
    for i in range(4): a(f"v_mov_b32 v{PONE+i}, s{S_ONES}")
    init = [f"buffer_store_dwordx4 v[12:15], v{V_L16}, {sr(R_WS,4)}, s{S_T2} offen sc1",
            f"buffer_store_dwordx4 v[12:15], v{V_L16}, {sr(R_WS,4)}, s{S_T2} offen offset:2048 sc1",
            f"s_mov_b64 exec, 3\nbuffer_store_dword v10, v{V_L16}, {sr(R_WS,4)}, s{S_FLG} offen sc1\ns_mov_b64 exec, -1"]
    a(f"v_mov_b32 v202, 0\nv_mov_b32 v{PF1}, 1.0\nv_mov_b32 v{PSQP}, 0\ns_waitcnt vmcnt({cfg.n_csa + 1})")
    stamp()
    for s in range(4): a(f"ds_read_b128 {vr(PX+4*s,4)}, v{251 + (s & 1)} offset:{L_PX + 2048*(s >> 1)}")
    for s in range(4):
        for t in range(2): a(f"ds_read_b64_tr_b16 {vr(PW+4*s+2*t,2)}, v253 offset:{1024*s+128*t}")
    a("s_waitcnt lgkmcnt(8)")
    for i in range(16): a(f"v_dot2c_f32_bf16 v{PSQP}, v{PX+i}, v{PX+i}")
    a(f"s_and_b32 s{S_T0}, s{S_CB}, 1\ns_cmp_eq_u32 s{S_T0}, 0\ns_waitcnt lgkmcnt(0)\ns_cbranch_scc0 L_preV")
    for form in range(2):
        if form == 1: a.label("L_preV")
        def mm(d, w, x, first):
            return mfma16(d, w, x, None if first else d) if form == 0 else mfma16(d, x, w, None if first else d)
        a(f"v_mfma_f32_16x16x4_f32 {vr(PSQ,4)}, v{PF1}, v{PSQP}, 0" if form == 0 else f"v_mfma_f32_16x16x4_f32 {vr(PSQ,4)}, v{PSQP}, v{PF1}, 0")
        for s in range(4):
            a(mm(PRS, PONE, PX + 4*s, s == 0)); a(mm(PCS, PW + 4*s, PONE, s == 0)); a(mm(PACC, PW + 4*s, PX + 4*s, s == 0))
        if form == 0: a("s_branch L_pre_w")
    a.label("L_pre_w")
    a(f"s_cmp_eq_u32 s{S_HW}, 0\ns_cbranch_scc1 L_fin\ns_nop 3")
    for q, r in ((3, PSQ), (2, PRS), (1, PCS), (0, PACC)): a(f"ds_write_b128 v254, {vr(r,4)} offset:{1024*q}")
    a(f"s_waitcnt lgkmcnt(0)\ns_mov_b64 exec, 1\nds_add_u32 v16, v11\ns_mov_b64 exec, -1\ns_branch L_nofin")
    a.label("L_fin")
    a(f"ds_read_b32 v19, v16\ns_waitcnt lgkmcnt(0)\nv_cmp_gt_u32 vcc, 3, v19\ns_nop 0\ns_cbranch_vccnz L_fin")
    for w in (1, 2, 3):
        for q in range(4): a(f"ds_read_b128 {vr(RD + 16*(w-1) + 4*q,4)}, v254 offset:{4096*w + 1024*q}")
    for w in (1, 2, 3):
        a(f"s_waitcnt lgkmcnt({12 - 4*w})")
        for i in range(0, 16, 2): a(f"v_pk_add_f32 {vr(PACC+i,2)}, {vr(PACC+i,2)}, {vr(RD+16*(w-1)+i,2)}")
    for i in range(4):
        a(f"v_mul_f32 v{PRS+i}, {hex(f2u(-1.0/512))}, v{PRS+i}")
        a(f"v_mul_f32 v{PSQ+i}, {hex(f2u(1.0/512))}, v{PSQ+i}")
        a(f"v_fma_f32 v{PSQ+i}, -v{PRS+i}, v{PRS+i}, v{PSQ+i}")
        a(f"v_max_f32 v{PSQ+i}, 0, v{PSQ+i}")
        a(f"v_add_f32 v{PSQ+i}, {hex(f2u(1e-5))}, v{PSQ+i}")
        a(f"v_rsq_f32 v{PX+i}, v{PSQ+i}")
        a(f"v_fmac_f32 v{PACC+i}, v{PRS+i}, v{PCS+i}")
    for i in range(4): a(f"v_mul_f32 v{PACC+i}, v{PACC+i}, v{PX+i}")
    a(f"""
    v_cvt_pk_bf16_f32 v198, v{PACC}, v{PACC+1}
    v_cvt_pk_bf16_f32 v199, v{PACC+2}, v{PACC+3}
    s_lshr_b32 s{S_T0}, s{S_T16}, 1
    s_lshl_b32 s{S_T0}, s{S_T0}, 11
    s_and_b32 s{S_T3}, s{S_T16}, 1
    v_lshrrev_b32 v20, 1, v18
    v_and_b32 v21, 1, v18
    s_and_b32 s{S_T2}, s{S_CB}, 1
    s_cmp_eq_u32 s{S_T2}, 0
    s_cbranch_scc0 L_pubV
    s_lshl_b32 s{S_T3}, s{S_T3}, 8
    s_add_u32 s{S_T0}, s{S_T0}, s{S_T3}
    v_lshl_add_u32 v20, v20, 5, v17
    v_lshlrev_b32 v20, 4, v20
    v_lshl_add_u32 v20, v21, 3, v20
    s_lshl_b32 s{S_T1}, s{S_T16}, 7
    s_add_u32 s{S_T1}, s{S_T1}, {WS_ST}
    s_branch L_pub
    """)
    a.label("L_pubV")
    a(f"""
    s_lshl_b32 s{S_T3}, s{S_T3}, 9
    s_add_u32 s{S_T0}, s{S_T0}, s{S_T3}
    s_add_u32 s{S_T0}, s{S_T0}, 1024
    v_and_b32 v22, 3, v17
    v_bfe_u32 v23, v17, 2, 1
    v_lshl_add_u32 v22, v23, 3, v22
    v_bfe_u32 v23, v17, 3, 1
    v_lshl_add_u32 v22, v23, 2, v22
    v_lshl_add_u32 v22, v21, 4, v22
    v_lshlrev_b32 v22, 4, v22
    v_lshl_add_u32 v20, v20, 3, v22
    s_mov_b32 s{S_T1}, {WS_SIZE}
    """)
    a.label("L_pub")
    a(f"""
    v_mov_b32 v200, v{PRS}
    v_mov_b32 v201, v{PSQ}
    v_mov_b32 v202, v20
    s_mov_b32 s{S_EX}, s{S_T0}
    s_mov_b32 s{S_EX+1}, s{S_T1}
    """)
    a.label("L_nofin")
    init += [f"s_cmp_lg_u32 s{S_HW}, 0\ns_cbranch_scc1 L_nopub\nv_lshlrev_b32 v3, 3, v{V_LANE}\n"
             f"buffer_store_dwordx2 v[198:199], v202, {sr(R_WS,4)}, s{S_EX} offen sc1\ns_mov_b64 exec, 0xffff\n"
             f"buffer_store_dwordx2 v[200:201], v3, {sr(R_WS,4)}, s{S_EX+1} offen sc1\ns_mov_b64 exec, -1\nL_nopub:"]
    def cs_compute():
        L = ["s_waitcnt vmcnt(0)"]
        for i in range(4):
            L += [f"v_lshlrev_b32 v{CSUM+2*i}, 16, v{CL+i}", f"v_and_b32 v{CSUM+2*i+1}, 0xffff0000, v{CL+i}"]
            for e in range(1, 4):
                L += [f"v_lshlrev_b32 v2, 16, v{CL+4*e+i}", f"v_and_b32 v3, 0xffff0000, v{CL+4*e+i}", f"v_add_f32 v{CSUM+2*i}, v{CSUM+2*i}, v2", f"v_add_f32 v{CSUM+2*i+1}, v{CSUM+2*i+1}, v3"]
        L += [f"v_permlane32_swap_b32 v{CSUM+j}, v{CSUM+4+j}" for j in range(4)]
        L += [f"v_add_f32 v{CSUM+j}, v{CSUM+j}, v{CSUM+4+j}" for j in (0, 2, 1, 3)]
        L += [f"v_permlane16_swap_b32 v{CSUM}, v{CSUM+2}", "s_nop 0", f"v_permlane16_swap_b32 v{CSUM+1}, v{CSUM+3}"]
        L += [f"v_add_f32 v{CSUM}, v{CSUM}, v{CSUM+2}", f"v_add_f32 v{CSUM+1}, v{CSUM+1}, v{CSUM+3}", "s_nop 0"]
        L += [f"v_add_f32_dpp v2, v{CSUM}, v{CSUM} row_ror:8 row_mask:0xf bank_mask:0xf", f"v_add_f32_dpp v2, v{CSUM+1}, v{CSUM+1} row_ror:8 row_mask:0xf bank_mask:0xc"]
        L += [f"v_mov_b32 v203, v2"]
        return L
    init.insert(0, f"buffer_store_dword v203, v8, {sr(R_WS,4)}, s{S_CNT} offen sc1")
    for l in (cs_compute() if cfg.n_csa == 4 else csld[cfg.n_csa:]): a(l)
    a(f"s_add_u32 s{S_T2}, s{S_OST}, {WS_Q - WS_O}")
    if cfg.g_init == -1:
        assert cfg.n_csa == 4
        for l in init: a(l)
    a("s_barrier")
    nst[0] = 2
    stamp(); pad("b0")
    def g1_reads(g):
        c, s = divmod(g, 4); slot = (c + 2) % 3; st = g & 1
        xr = [f"ds_read_b128 {vr(XF+16*st+4*rt,4)}, v{V_XA+s} offset:{XS[c]*16384 + rt*4096}" for rt in range(4)]
        wr = [[f"ds_read_b64_tr_b16 {vr(WF+8*st+4*ti+2*t,2)}, v{V_WR+ti} offset:{slot*8192 + s*2048 + t*512}" for t in range(2)] for ti in range(2)]
        return [wr[0][0], wr[0][1], xr[0], wr[1][0], wr[1][1], xr[1], xr[2], xr[3]]
    for l in g1_reads(0): a(l)
    extra = {g: [] for g in range(32)}
    if cfg.g_init >= 0 and cfg.g_init & 3 != 3: extra[cfg.g_init] += init
    extra[4*cfg.c_arr + 3] += [f"s_cmp_lg_u32 s{S_W}, 0\ns_cbranch_scc1 L_noarr\ns_and_b32 s{S_T0}, s2, 7\ns_lshl_b32 s{S_T0}, s{S_T0}, 5\n"
                  f"s_mov_b64 exec, 1\nbuffer_atomic_add v11, off, {sr(R_DBG,4)}, s{S_T0} sc1\ns_mov_b64 exec, -1\nL_noarr:"]
    extra[26] += [f"s_lshl_b32 s{S_T0}, s{S_RB}, 10\ns_add_u32 s{S_T0}, s{S_T0}, {WS_ST}",
                  f"s_lshl_b32 s{S_T1}, s{S_CB}, 14\ns_lshl_b32 s{S_T3}, s{S_HW}, 8", f"s_add_u32 s{S_T1}, s{S_T1}, s{S_T3}\ns_add_u32 s{S_T1}, s{S_T1}, {WS_CS}\ns_add_u32 s{S_T3}, s{S_T1}, 4096"]
    ld = [f"buffer_load_dwordx4 {vr(V_CSL+8*ti+4*p,4)}, v207, {sr(R_WS,4)}, s{S_T3 if p else S_T1} offen offset:{2048*ti} sc1" for ti in range(2) for p in range(2)]
    ld += [f"buffer_load_dwordx2 {vr(V_ST+2*rt,2)}, v206, {sr(R_WS,4)}, s{S_T0} offen offset:{256*rt} sc1" for rt in range(4)]
    extra[27] += ld[:3]; extra[28] += ld[3:7]; extra[29] += ld[7:]
    def split2(src, dst, dup):
        if dup:
            return [f"v_cvt_pk_bf16_f32 v{dst}, v{src}, v{src}", f"v_and_b32 v2, 0xffff0000, v{dst}", f"v_sub_f32 v2, v{src}, v2", f"v_cvt_pk_bf16_f32 v{dst+1}, v2, v2"]
        return [f"v_cvt_pk_bf16_f32 v{dst}, v{src}, v{src}", f"v_and_b32 v2, 0xffff0000, v{dst}", f"v_sub_f32 v2, v{src}, v2", f"v_cvt_pk_bf16_f32 v{dst}, v{src}, v2", f"v_mov_b32 v{dst+1}, v{dst}"]
    prep = ["s_waitcnt vmcnt(0)"]
    for ti in range(2):
        prep += [f"v_add_f32 v{V_CSL+8*ti}, v{V_CSL+8*ti}, v{V_CSL+8*ti+i}" for i in range(1, 8)] + split2(V_CSL + 8*ti, RA + 2*ti, True)
    for rt in range(4): prep += split2(V_ST + 2*rt, RBm + 2*rt, False)
    for g in range(32):
        c, s = divmod(g, 4); st = g & 1
        last = g == 31
        a("s_waitcnt vmcnt(0) lgkmcnt(0)" if g == 4*cfg.c_arr + 3 else "s_waitcnt lgkmcnt(0)")
        rd = [] if last or cfg.nord else g1_reads(g + 1)
        gaps = [[] for _ in range(8)]
        o = 0
        if s == 3:
            gaps[0] = (cs_compute() if g == 3 and cfg.n_csa < 4 else []) + (init if g == cfg.g_init else []) + ["s_barrier"]; o = 1
        for i, l in enumerate(rd): gaps[o + i // 2].append(l)
        for i, l in enumerate(extra[g]): gaps[min(7, o + 4 + i)].append(l)
        if last:
            for i, l in enumerate(prep): gaps[1 + min(6, i // 6)].append(l)
        for k in range(8):
            rt, ti = divmod(k, 2)
            if cfg.m16:
                b = acc(ti, rt) + 8*(g & 1)
                a(mfma16(b, WF + 8*st + 4*ti, XF + 16*st + 4*rt, None if g < 2 else b))
                for l in gaps[k][:1]: a(l)
                a(mfma16(b + 4, WF + 8*st + 4*(1-ti), XF + 16*st + 4*(rt^1), None if g < 2 else b + 4))
                for l in gaps[k][1:]: a(l)
            else:
                a(mfma32(acc(ti, rt), WF + 8*st + 4*ti, XF + 16*st + 4*rt, None if g == 0 else acc(ti, rt)))
                for l in gaps[k]: a(l)
            if k == 0 and (g == 27 or (cfg.stamps == 4 and s == 3)): stamp()
    stamp(); pad("g1")
    KG = 2.0 * math.sqrt(2.0 / math.pi) * math.log2(math.e)
    def rank1(ti, rt): return f"v_mfma_f32_32x32x8_bf16 {vr(acc(ti,rt),16)}, {vr(RA+2*ti,2)}, {vr(RBm+2*rt,2)}, {vr(acc(ti,rt),16)}"
    def consts(rt):
        b = V_K + 4*rt; vp = V_ST + 2*rt
        return [f"v_rsq_f32 v3, v{vp+1}", f"v_mov_b32 v{vp}, v{vp+1}", f"v_mul_f32 v{b}, {hex(f2u(-KG))}, v3", f"v_mul_f32 v2, v3, v3",
                f"v_mul_f32 v{b+2}, {hex(f2u(0.044715))}, v{b}", f"v_mov_b32 v{b+1}, v{b}", f"v_mul_f32 v{b+2}, v{b+2}, v2", f"v_mov_b32 v{b+3}, v{b+2}"]
    def gelu(ti, rt, mf=()):
        A = acc(ti, rt); b = V_K + 4*rt; vp = V_ST + 2*rt
        t1, t2, o = 144, 152, HO + 16*ti + 4*rt
        mf = list(mf)
        L = [".p2align 3"]
        for i in range(0, 8, 2): L.append(f"v_pk_mul_f32 {vr(t1+i,2)}, {vr(A+i,2)}, {vr(A+i,2)}")
        for i in range(0, 8, 2): L.append(f"v_pk_fma_f32 {vr(t1+i,2)}, {vr(t1+i,2)}, {vr(b+2,2)}, {vr(b,2)}")
        for i in range(0, 8, 2): L.append(f"v_pk_mul_f32 {vr(t1+i,2)}, {vr(t1+i,2)}, {vr(A+i,2)}")
        L += mf[:1]
        for i in range(8): L.append(f"v_exp_f32 v{t1+i}, v{t1+i}")
        for i in range(0, 8, 2): L.append(f"v_pk_mul_f32 {vr(t2+i,2)}, {vr(A+i,2)}, {vr(A+8+i,2)}")
        for i in range(0, 8, 2): L.append(f"v_pk_fma_f32 {vr(t1+i,2)}, {vr(t1+i,2)}, {vr(vp,2)}, {vr(vp,2)}")
        L += mf[1:]
        for i in range(8): L.append(f"v_rcp_f32 v{t1+i}, v{t1+i}")
        for i in range(0, 8, 2): L.append(f"v_pk_mul_f32 {vr(t2+i,2)}, {vr(t2+i,2)}, {vr(t1+i,2)}")
        for i in range(4): L.append(f"v_cvt_pk_bf16_f32 v{o+i}, v{t2+2*i}, v{t2+2*i+1}")
        return L
    def qtile(rt):
        A = acc(1, rt); tb = 144 + 8*(rt & 1); b = V_K + 4*rt
        L = [f"v_mul_f32 v2, {hex(f2u(-0.25*math.log2(math.e)/KG))}, v{b}", f"s_add_u32 s{S_T0}, s{S_HSB}, {32768*rt}", f"s_add_u32 s{S_T1}, s{S_T0}, 4096"]
        for hd in range(2):
            for i in range(8*hd, 8*hd + 8): L.append(f"v_mul_f32 v{A+i}, v{A+i}, v2")
            for i in range(4*hd, 4*hd + 4): L.append(f"v_cvt_pk_bf16_f32 v{tb+i}, v{A+2*i}, v{A+2*i+1}")
            for i in range(4*hd, 4*hd + 4): L.append(f"v_min_u32 v{tb+i}, -2, v{tb+i}")
            L.append(f"buffer_store_dwordx4 {vr(tb+4*hd,4)}, v{V_L16}, {sr(R_WS,4)}, s{S_T0 + hd} offen sc1")
        return L
    a(f"s_and_b32 s{S_T1}, s{S_CB}, 3\ns_cmp_eq_u32 s{S_T1}, 3\ns_cbranch_scc1 L_qt")
    a(rank1(0, 0))
    for rt in range(4):
        for l in consts(rt): a(l)
    order = [(ti, rt) for rt in range(4) for ti in range(2)]
    for i, (ti, rt) in enumerate(order):
        if i == cfg.i_q: a("s_barrier\n" + qload)
        for l in gelu(ti, rt, [rank1(*order[i+1])] if i < 7 else []): a(l)
    a("s_branch L_join")
    a.label("L_qt")
    for rt in range(4):
        a(rank1(1, rt))
        for l in consts(rt): a(l)
    for rt in range(4):
        a(rank1(0, rt))
        for l in qtile(rt): a(l)
    a(f"s_mov_b32 s{S_HSB}, {WS_SIZE}")
    for rt in range(4):
        if rt == 3: a("s_barrier\n" + qload)
        for l in gelu(0, rt): a(l)
    a("s_branch L_join")

    a.label("L_helper")
    V_XD, V_WD = 192, 194
    PX, PW = 8, 24
    PACC, PCS, PRS, PSQ = 40, 44, 48, 52
    PONE, PSQP, PF1 = 56, 60, 61
    RD = 64
    a(f"""
    s_lshl_b32 s{S_XOFF}, s{S_RB}, 17
    s_lshl_b32 s{S_T0}, s{S_HW}, 15
    s_add_u32 s{S_XOFF}, s{S_XOFF}, s{S_T0}
    v_and_b32 v5, 15, v{V_LANE}
    v_lshrrev_b32 v6, 4, v{V_LANE}
    v_lshrrev_b32 v7, 3, v{V_LANE}
    v_and_b32 v63, 7, v{V_LANE}
    v_xor_b32 v62, v6, v63
    v_lshlrev_b32 v62, 4, v62
    v_lshl_add_u32 v{V_XD}, v7, 10, v62
    v_xor_b32 v{V_XD+1}, 64, v{V_XD}
    v_add_u32 v{V_XD+1}, {8192-1024}, v{V_XD+1}
    """)
    img_params(S_HW, S_WSTEP, S_WOFF)
    a(f"""
    v_and_b32 v62, 1, v6
    v_lshlrev_b32 v62, 1, v62
    v_xor_b32 v62, v62, v63
    s_lshl_b32 s{S_T0}, s{S_T2}, 2
    v_xor_b32 v62, s{S_T0}, v62
    v_lshlrev_b32 v62, 4, v62
    v_mul_u32_u24 v{V_WD}, s{S_WSTEP}, v7
    v_add_u32 v{V_WD}, v{V_WD}, v62
    s_waitcnt lgkmcnt(0)
    """)
    nst[0] = 0
    stamp()
    a(f"s_mov_b32 s{R_X}, s{P_X}\ns_and_b32 s{R_X+1}, s{P_X+1}, 0xffff")
    Q = []
    def issue(tag, text): a(text); Q.append(tag)
    def vwait(tag, more=""):
        n = len(Q) - 1 - max(i for i, t in enumerate(Q) if t == tag)
        a(f"s_waitcnt vmcnt({n})" + more)
    def xitems(c):
        slot = XS[c]
        return [(f"C{c}", f"s_add_u32 m0, s{S_H4K}, {L_X + slot*16384}\ns_add_u32 s{S_CNT}, s{S_XOFF}, {c*128 + (16384 - 2048)*(e >> 1)}\n"
                 f"buffer_load_dwordx4 v{V_XD + (e & 1)}, {sr(R_X,4)}, s{S_CNT} offen offset:{1024*e} lds") for e in range(4)]
    def witems(c):
        slot = (c + 2) % 3
        return [(f"C{c}", f"s_add_u32 m0, s{S_M0W}, {slot*8192 + e*1024}\n" + (f"s_add_u32 s{S_WOFF}, s{S_WOFF}, s{S_WSTEP}" if c + e else "s_nop 0") +
                 f"\nbuffer_load_dwordx4 v{V_WD}, {sr(R_W,4)}, s{S_WOFF} offen lds") for e in range(8)]
    stream = []
    for c in range(1, 8): stream += [(t, x if c < 3 or not cfg.nodma else 's_nop 0') for t, x in witems(c) + xitems(c)]
    pos = [0]
    def take(n):
        for _ in range(n):
            if pos[0] < len(stream): issue(*stream[pos[0]]); pos[0] += 1
    def upto(c):
        return min(len(stream), 12*(c + 1) + cfg.lead[c])
    def mix(lines, n):
        k = 0
        for i, l in enumerate(lines):
            while k < n and k * len(lines) <= i * n: take(1); k += 1
            a(l)
        take(n - k)
    img_srd(R_W, S_WSTEP)
    a(f"s_lshl_b32 s{S_WSTEP}, s{S_WSTEP}, 3\ns_mul_i32 s{S_M0W}, s{S_HW}, 24576\ns_add_u32 s{S_M0W}, s{S_M0W}, {L_W}")
    srd(R_WS, P_WS, WS_SIZE)
    srd(R_DBG, P_DBG, 256)
    a(f"s_mov_b32 s{S_ONES}, 0x3f803f80")
    common_setup()
    a("s_barrier")
    for it in xitems(0) + witems(0): issue(*it)
    def bar():
        if cfg.stamps == 4: stamp()
        a("s_barrier")
    take(cfg.lead0)
    nst[0] = 2; vwait("C0"); bar()
    for c in range(6):
        take(upto(c) - pos[0])
        vwait(f"C{c+1}"); bar()
    take(100)
    a(f"""
    s_waitcnt vmcnt(0)
    s_cmp_lg_u32 s{S_HW}, 0
    s_cbranch_scc1 L_sync1
    s_mov_b32 s{S_SPIN}, 0
    v_and_b32 v6, 7, v{V_LANE}
    v_lshlrev_b32 v6, 5, v6
    """)
    a.label("L_sync1_chk")
    a(f"""
    buffer_load_dword v7, v6, {sr(R_DBG,4)}, 0 offen sc1
    s_waitcnt vmcnt(0)
    v_cmp_gt_u32 vcc, 32, v7
    s_add_u32 s{S_SPIN}, s{S_SPIN}, 1
    s_cbranch_vccz L_sync1
    s_cmp_lt_u32 s{S_SPIN}, {SPIN_MAX}
    s_cbranch_scc1 L_sync1_chk
    """)
    a.label("L_sync1")
    if cfg.stamps != 4: nst[0] = 3
    stamp()
    a("s_barrier\ns_barrier")
    for c in range(2):
        slot = (c + 1) % 3
        a(f"s_add_u32 m0, s{S_H4K}, {L_KV + slot*16384}\ns_add_u32 s{S_T0}, s{S_H4K}, {WS_KV + starts[c]*2048}")
        for e in range(4):
            a(f"buffer_load_dwordx4 v{V_L16}, {sr(R_WS,4)}, s{S_T0} offen offset:{1024*e} sc1 lds")
    a(f"s_add_u32 s{S_T2}, s{S_OST}, {WS_Q - WS_O}")
    for i in range(4): a(f"v_mov_b32 v{12+i}, -1")
    a("v_mov_b32 v11, 1")
    a("s_barrier")
    a(qload)

    a.label("L_join")
    nst[0] = 12 if cfg.stamps == 4 else 5
    stamp()
    a(f"""
    v_and_b32 v5, 27, v{V_LANE}
    v_cmp_eq_u32 vcc, 16, v5
    v_mov_b32 v6, s{S_ONES}
    s_mov_b32 s{S_SPIN}, 0
    v_cndmask_b32 v{VF}, 0, v6, vcc
    v_mov_b32 v{VF+1}, v{VF}
    """)
    for i in range(2, 16, 2): a(f"v_mov_b64 {vr(VF+i,2)}, {vr(VF,2)}")
    a.label("L_qchk")
    a(f"""
    s_waitcnt vmcnt(0)
    v_max3_u32 v8, v{QF}, v{QF+1}, v{QF+2}
    v_max_u32 v8, v8, v{QF+3}
    v_cmp_eq_u32 vcc, -1, v8
    s_add_u32 s{S_SPIN}, s{S_SPIN}, 1
    s_cbranch_vccz L_qok
    s_cmp_ge_u32 s{S_SPIN}, {SPIN_MAX}
    s_cbranch_scc1 L_qok
    s_sleep 2
    {qload}
    s_branch L_qchk
    """)
    a.label("L_qok")
    a("s_barrier")
    stamp(); pad("att0")
    a(f"ds_read_b128 {vr(KF,4)}, v{V_KA} offset:{kv_off(0)}\nds_read_b128 {vr(KF+4,4)}, v{V_KA} offset:{kv_off(1)}\ns_waitcnt lgkmcnt(1)")
    a(mfma32(S1, KF, QF, None))
    a.nop(12)
    def maxtree(src, dst, init=None):
        L = []
        if init is None:
            L.append(f"v_max3_f32 v{dst}, v{src}, v{src+1}, v{src+2}")
            L.append(f"v_max_f32 v{dst}, v{src+3}, v{dst}")
            k = 4
        else:
            k = 0
        for i in range(k, 16, 2): L.append(f"v_max3_f32 v{dst}, v{src+i}, v{src+i+1}, v{dst}")
        return L
    def setC(m, shift):
        a(f"v_mov_b32 v{m+1}, v{m}\ns_nop 1\nv_permlane32_swap_b32 v{m}, v{m+1}\nv_max_f32 v{m}, v{m}, v{m+1}")
        a(f"v_sub_f32 v{CC}, {hex(f2u(-shift)) if shift else 0}, v{m}")
        a(f"v_mov_b32 v{CC+1}, v{CC}")
        for i in range(2, 16, 2): a(f"v_mov_b64 {vr(CC+i,2)}, {vr(CC,2)}")
    for l in maxtree(S1, 8): a(l)
    setC(8, cfg.shift)
    a("s_nop 1")
    a(mfma32(S0, KF, QF, CC))
    a.nop(4)

    def kvdma(c, half):
        slot = (c + 1) % 3
        L = (f"s_add_u32 m0, s{S_W2K}, {L_KV + slot*16384}\ns_add_u32 s{S_T0}, s{S_W2K}, {WS_KV + starts[c]*2048}\n")
        if half == 1 and sizes[c] < 8:
            L += f"s_cmp_ge_u32 s{S_W}, {sizes[c]}\ns_cselect_b32 s{S_T0}, {WS_SIZE}, s{S_T0}\n"
        return [L + f"buffer_load_dwordx4 v{V_L16}, {sr(R_WS,4)}, s{S_T0} offen sc1 lds",
                f"buffer_load_dwordx4 v{V_L16}, {sr(R_WS,4)}, s{S_T0} offen offset:1024 sc1 lds"]
    def rowdma(rs, sbase, add, ldsbase, e):
        pre = f"s_add_u32 m0, s{S_W4K}, {ldsbase}\n"
        return pre + f"s_add_u32 s{S_T0}, s{sbase}, {add + e*7168}\nbuffer_load_dwordx4 v{V_WDD}, {sr(rs,4)}, s{S_T0} offen offset:{1024*e} lds"
    tbs = [starts[c] - 3 for c in range(1, len(starts))]
    def attention(half):
        sfx = "AB"[half]
        head = {t: [] for t in range(66)}
        vm = {t: [] for t in range(66)}
        pre = {t: [] for t in range(66)}
        bg = {t: [] for t in range(66)}
        nb = len(tbs); c0 = nb - 7
        for ci, tb in enumerate(tbs):
            n = (tbs[ci+1] if ci + 1 < nb else 63) - tb
            q = []
            if ci + 2 < len(starts): q += [("D", x) for x in kvdma(ci + 2, half)]
            dload = ci - c0 + 1
            if 0 <= dload <= 6:
                q += [("D", rowdma(R_WD, S_WDO, dload*65536, L_WD + (dload & 1)*32768, e)) for e in range(4)]
                hl = [f"buffer_load_dwordx4 {vr(HF + 16*(dload&1) + 4*j,4)}, v{V_L16}, {sr(R_WS,4)}, s{S_T1} offen offset:{1024*j} sc1" for j in range(4)]
                hl[0] = f"s_add_u32 s{S_T1}, s{S_HLD}, {dload*4096}\n" + hl[0]
                o = n - 2 if dload == 0 else 4
                vm[tb + o] += [("H", x) for x in hl[:2]]; vm[tb + o + 1] += [("H", x) for x in hl[2:]]
                pre[tbs[ci + 1] + 2].append(("wait", "H"))
                if dload == 0: tp = tb + o - 1
            elif dload == 7:
                q += [("D", rowdma(R_WO, S_WOO, 0, L_WO, e)) for e in range(4)]
                q += [("D", f"buffer_load_dwordx4 {vr(V_XR,4)}, v{V_FO}, {sr(R_X,4)}, 0 offen")]
            o = 1 if ci else cfg.t_kv2 - tb
            for i, x in enumerate(q): vm[tb + o + i // 2].append(x)
            d = dload - 1
            if d >= 0:
                lh, mb = {7: ([1, 1, 2, 3, 4, 5, 6, 6], [2, 2, 3, 4, 5, 6, 7, 8]), 6: ([1, 1, 2, 3, 3, 4, 5, 5], [2, 2, 3, 4, 5, 5, 6, 7])}[cfg.ilen]
                for k in range(8):
                    j, ct = divmod(k, 2); fr = DF + 4 * (k & 3)
                    for t in range(2):
                        head[tb + lh[k]].append(f"ds_read_b64_tr_b16 {vr(fr+2*t,2)}, v{V_DA+ct} offset:{L_WD + (d&1)*32768 + j*2048 + t*512}")
                    bg[tb + mb[k]].append(mfma32(YY + 16*ct, fr, HF + 16*(d&1) + 4*j, None if (d == 0 and j == 0) else YY + 16*ct))
        st = []
        if half == 0:
            for rt in range(4):
                for ti in range(2):
                    st.append(f"s_add_u32 s{S_T3}, s{S_HSB if ti else S_HST}, {112*1024*rt}\n"
                              f"buffer_store_dwordx4 {vr(HO + 16*ti + 4*rt,4)}, v{V_L16}, {sr(R_WS,4)}, s{S_T3} offen sc1")
        st.append(f"buffer_store_dwordx4 v[12:15], v{V_L16}, {sr(R_WS,4)}, s{S_OST} offen sc1")
        hs = [t for t in range(64) if t not in tbs]
        for i, x in enumerate(st): vm[hs[int(i * cfg.st_rate)]].append(("S", x))
        if half == 1:
            pfl = [f"s_mul_i32 s{S_T0}, s2, 7168\ns_lshl_b32 s{S_T1}, s{S_HW}, 11\ns_add_u32 s{S_T0}, s{S_T0}, s{S_T1}\nbuffer_load_dwordx4 {vr(HF,4)}, v{V_L16}, {sr(R_WD,4)}, s{S_T0} offen",
                   f"buffer_load_dwordx4 {vr(HF+4,4)}, v{V_L16}, {sr(R_WD,4)}, s{S_T0} offen offset:1024",
                   f"s_lshl_b32 s{S_T1}, s2, 11\ns_lshl_b32 s{S_T3}, s{S_HW}, 9\ns_add_u32 s{S_T1}, s{S_T1}, s{S_T3}\ns_mov_b32 exec_hi, 0\nbuffer_load_dwordx4 {vr(HF+8,4)}, v{V_L16}, {sr(R_WO,4)}, s{S_T1} offen\ns_mov_b64 exec, -1"]
            vm[cfg.t_pf] += [("X", x) for x in pfl]
            for e in range(8):
                x = f"s_add_u32 m0, s{S_EX}, {L_WO + 32768 + e*1024}\ns_add_u32 s{S_T0}, s{S_EX+1}, {256*1024 + e*8192}\nbuffer_load_dwordx4 v{V_WDD}, {sr(R_WO,4)}, s{S_T0} offen lds"
                if e == 0: x = f"s_lshl_b32 s{S_EX+1}, s{S_HW}, 16\ns_lshl_b32 s{S_T0}, s{S_CT8}, 7\ns_add_u32 s{S_EX+1}, s{S_EX+1}, s{S_T0}\ns_lshl_b32 s{S_EX}, s{S_H4K}, 1\n" + x
                vm[cfg.t_wo + e // 2].append(("X", x))
        pre[cfg.t_flag].append(("wait", "S"))
        vm[cfg.t_flag].insert(0, ("F", f"s_mov_b64 exec, 1\nbuffer_store_dword v11, off, {sr(R_WS,4)}, s{S_FLG} sc1\ns_mov_b64 exec, -1"))
        poll = f"buffer_load_dword v3, v{V_PO}, {sr(R_WS,4)}, s{S_T2} offen sc1"
        vm[tp].append(("P", f"s_mov_b32 s{S_T2}, {WS_FL}\n" + poll))
        pre[tp+1].append(("text", f"s_mov_b32 s{S_SPIN}, 0\nL_hchk{sfx}:\ns_waitcnt vmcnt(0)\nv_cmp_ne_u32 vcc, 1, v3\ns_add_u32 s{S_SPIN}, s{S_SPIN}, 1\ns_cbranch_vccz L_hok{sfx}\n"
                     f"s_cmp_ge_u32 s{S_SPIN}, {SPIN_MAX}\ns_cbranch_scc1 L_hok{sfx}\n{poll}\ns_branch L_hchk{sfx}\nL_hok{sfx}:"))
        VQ = []
        def cnt(tag):
            idx = [i for i, x in enumerate(VQ) if x == tag]
            return min(63, len(VQ) - 1 - max(idx)) if idx else 63
        def emit_vm(L):
            for tag, x in L: a(x); VQ.append(tag)
        for t in range(tbs[1] + 1, 64):
            if 'v' in cfg.ab: vm[t] = []
            if 'r' in cfg.ab: head[t] = []
            if 'm' in cfg.ab: bg[t] = []
        for t in range(64):
            par = t & 1
            sd, sn = (S0, S1) if par == 0 else (S1, S0)
            p, pp = PP + 8*par, PP + 8*(1 - par)
            isb = t in tbs and not ('b' in cfg.ab and t > tbs[1])
            if cfg.stamps == 2 and t - 1 in tbs: stamp()
            if isb and half == 1: a(f"s_waitcnt vmcnt({cnt('D')}) lgkmcnt(0)\ns_barrier")
            else: a("s_waitcnt lgkmcnt(0)")
            assert not (isb and vm[t])
            for k, x in pre[t]: a(x if k == "text" else f"s_waitcnt vmcnt({cnt(x)})")
            emit_vm(vm[t][:1])
            if t + 2 < 64: a(f"ds_read_b128 {vr(KF+4*par,4)}, v{V_KA} offset:{kv_off(t+2)}")
            a(f"s_mov_b64 exec, {sr(S_VM,2)}")
            a(f"ds_read_b128 {vr(VF+8*par,4)}, v{V_VA} offset:{kv_off(t)}")
            a(f"ds_read_b128 {vr(VF+8*par+4,4)}, v{V_VA} offset:{kv_off(t)+512}")
            a("s_mov_b64 exec, -1")
            for l in head[t]: a(l)
            emit_vm(vm[t][1:])
            if isb and half == 0: a(f"s_waitcnt vmcnt({cnt('D')})\ns_barrier")
            mf = []
            if t + 1 < 64: mf.append(mfma32(sn, KF + 4*(1-par), QF, CC))
            if t >= 1:
                vp = VF + 8*(1-par)
                mf.append(mfma32(OO, vp, pp, None if t == 1 else OO))
                mf += bg[t][:1]
                mf.append(mfma32(OO, vp + 4, pp + 4, OO))
                mf += bg[t][1:]
            if cfg.stamps == 3: a(f"s_memtime {sr(S_TS,2)}")
            a(".p2align 3")
            pos = {0: [], 1: [1], 2: [1, 4], 3: [1, 3, 6], 4: [1, 3, 5, 7], 5: [0, 2, 3.5, 5, 6.5]}[len(mf)]
            k = 0
            for i in range(8):
                if k < len(mf) and pos[k] == i: a(mf[k]); k += 1
                if i == (cfg.pp if half else cfg.pa):
                    a(f"v_exp_f32 v{sd+2*i}, v{sd+2*i}\ns_setprio {cfg.pv[half]}\nv_exp_f32_e64 v{sd+2*i+1}, v{sd+2*i+1}")
                else:
                    a(f"v_exp_f32 v{sd+2*i}, v{sd+2*i}\nv_exp_f32 v{sd+2*i+1}, v{sd+2*i+1}")
                if k < len(mf) and pos[k] == i + 0.5: a(mf[k]); k += 1
                if i >= 1: a(f"v_cvt_pk_bf16_f32 v{p+i-1}, v{sd+2*i-2}, v{sd+2*i-1}")
            assert k == len(mf)
            a(f"v_cvt_pk_bf16_f32 v{p+7}, v{sd+14}, v{sd+15}")
            if cfg.stamps == 3: a(f"s_waitcnt lgkmcnt(0)\nv_writelane_b32 v253, s{S_TS}, {t}\nv_writelane_b32 v254, s{S_TS2}, {t}\ns_memtime {sr(S_TS2,2)}")
            if (cfg.pp if half else cfg.pa) is not None: a("s_setprio 0")
        a("s_waitcnt lgkmcnt(0)\ns_nop 0")
        a(mfma32(OO, VF + 8, PP + 8, OO)); a(mfma32(OO, VF + 12, PP + 12, OO))
    a(f"s_cmp_ge_u32 s{S_W}, 4\ns_cbranch_scc1 L_attB")
    n0 = nst[0]
    attention(0)
    a("s_branch L_att_end")
    a.label("L_attB")
    nst[0] = n0
    attention(1)
    a.label("L_att_end")
    stamp(); pad("att1")
    a(f"s_lshl_b32 s{S_T0}, s{S_KQ}, 13\ns_add_u32 s{S_T0}, s{S_T0}, {L_WO}")
    a(f"v_add_u32 v{V_DA}, s{S_T0}, v{V_DA}\nv_xor_b32 v{V_DA+1}, 64, v{V_DA}")
    a(f"v_add_u32 v5, s{S_W2K}, v{V_L16}")
    a(f"s_mov_b32 s{S_T2}, {hex(f2u(2.0**120))}\ns_mov_b32 s{S_T3}, {hex(f2u(2.0**-105))}")
    a.nop(6)
    a(f"v_add_f32 v8, abs(v{OO}), abs(v{OO+1})")
    for i in range(2, 8): a(f"v_add_f32 v8, abs(v{OO+i}), v8")
    a(f"""
    v_add_f32 v9, v8, v{OO+8}
    v_cmp_gt_f32 {sr(S_EX,2)}, s{S_T3}, v8
    v_cmp_ngt_f32 vcc, s{S_T2}, v9
    s_nop 1
    s_or_b64 vcc, vcc, {sr(S_EX,2)}
    """)
    a("s_branch L_fb" if cfg.force_fb else "s_cbranch_scc1 L_fb")
    a.label("L_norm")
    a(f"v_rcp_f32 v8, v{OO+8}\ns_nop 0\nv_mov_b32 v9, v8")
    for i in range(0, 8, 2): a(f"v_pk_mul_f32 {vr(OO+i,2)}, {vr(OO+i,2)}, v[8:9]")
    for i in range(4): a(f"v_cvt_pk_bf16_f32 v{12+i}, v{OO+2*i}, v{OO+2*i+1}")
    for i in range(4): a(f"v_min_u32 v{12+i}, -2, v{12+i}")
    a(f"buffer_store_dwordx4 v[12:15], v{V_L16}, {sr(R_WS,4)}, s{S_OST} offen sc1")
    a("s_waitcnt vmcnt(1)\ns_barrier")
    def scatter(src, bases):
        for z in (1, 2, 3):
            a(f"v_xor_b32 v6, {z*4096}, v5" + (f"\nv_add_u32 v6, {bases[z-1]}, v6" if bases[z-1] >= 65536 - 1024 else ""))
            off = bases[z-1] if bases[z-1] < 65536 - 1024 else 0
            a(f"ds_write_b128 v6, {vr(src+8*z,4)} offset:{off}\nds_write_b128 v6, {vr(src+8*z+4,4)} offset:{off+1024}")
    def gather(dst, bases):
        for z in (1, 2, 3):
            if bases[z-1] >= 65536 - 1024:
                a(f"v_add_u32 v6, {bases[z-1]}, v5"); ad, off = 6, 0
            else:
                ad, off = 5, bases[z-1]
            a(f"ds_read_b128 {vr(dst+8*(z-1),4)}, v{ad} offset:{off}\nds_read_b128 {vr(dst+8*(z-1)+4,4)}, v{ad} offset:{off+1024}")
    def reduce(acc0, t):
        for i in range(0, 8, 2): a(f"v_pk_add_f32 {vr(t+i,2)}, {vr(t+i,2)}, {vr(t+8+i,2)}")
        for i in range(0, 8, 2): a(f"v_pk_add_f32 {vr(acc0+i,2)}, {vr(acc0+i,2)}, {vr(t+16+i,2)}")
        for i in range(0, 8, 2): a(f"v_pk_add_f32 {vr(acc0+i,2)}, {vr(acc0+i,2)}, {vr(t+i,2)}")
    ybases = [L_KV, L_KV + 16384, L_KV + 32768]
    sbases = [0, 16384, L_R]
    scatter(YY, ybases)
    WOF, OF, SS, TT = 16, 160, 80, 224
    for j in range(8):
        for ct in range(2):
            for t in range(2):
                a(f"ds_read_b64_tr_b16 {vr(WOF + 8*j + 4*ct + 2*t,2)}, v{V_DA+ct} offset:{j*2048 + t*512}")
            if j in (2, 5) and ct == 1: a("s_waitcnt lgkmcnt(4)")
    a(f"s_add_u32 s{S_T1}, s{S_OLD}, 4096\ns_mov_b32 s{S_SPIN}, 0")
    def oload(j): return f"buffer_load_dwordx4 {vr(OF+4*j,4)}, v{V_L16}, {sr(R_WS,4)}, s{S_OLD if j < 4 else S_T1} offen offset:{1024*(j&3)} sc1"
    a("s_waitcnt lgkmcnt(0)\ns_barrier")
    gather(TT, ybases)
    for j in range(8): a(oload(j))
    a("s_waitcnt lgkmcnt(0)")
    reduce(YY, TT)
    a(f"v_mov_b32 v8, {hex(f2u(-math.log2(math.e)))}\nv_mov_b32 v9, v8")
    for i in range(0, 8, 2): a(f"v_pk_mul_f32 {vr(TT+i,2)}, {vr(YY+i,2)}, v[8:9]")
    for i in range(8): a(f"v_exp_f32 v{TT+i}, v{TT+i}")
    for i in range(8): a(f"v_add_f32 v{TT+i}, 1.0, v{TT+i}")
    for i in range(8): a(f"v_rcp_f32 v{TT+i}, v{TT+i}")
    XU = 136
    for i in range(4): a(f"v_lshlrev_b32 v{XU+2*i}, 16, v{V_XR+i}\nv_and_b32 v{XU+2*i+1}, 0xffff0000, v{V_XR+i}")
    for i in range(0, 8, 2): a(f"v_pk_mul_f32 {vr(YY+i,2)}, {vr(YY+i,2)}, {vr(TT+i,2)}")
    stamp()
    for j in range(8):
        a.label(f"L_ochk{j}")
        a(f"""
        s_waitcnt vmcnt({7-j})
        v_max3_u32 v8, v{OF+4*j}, v{OF+4*j+1}, v{OF+4*j+2}
        v_max_u32 v8, v8, v{OF+4*j+3}
        v_cmp_eq_u32 vcc, -1, v8
        s_nop 0
        s_cbranch_vccnz L_oretry{j}
        """)
        a.label(f"L_ook{j}")
        for ct in range(2):
            a(mfma32(SS + 16*ct, WOF + 8*j + 4*ct, OF + 4*j, None if j == 0 else SS + 16*ct))
    stamp()
    a.nop(10)
    scatter(SS, sbases)
    a("s_waitcnt lgkmcnt(0)\ns_barrier")
    gather(TT, sbases)
    a("s_waitcnt lgkmcnt(0)")
    reduce(SS, TT)
    for i in range(0, 8, 2): a(f"v_pk_fma_f32 {vr(SS+i,2)}, {vr(SS+i,2)}, {vr(YY+i,2)}, {vr(XU+i,2)}")
    for i in range(4): a(f"v_cvt_pk_bf16_f32 v{12+i}, v{SS+2*i}, v{SS+2*i+1}")
    a(f"buffer_store_dwordx4 v[12:15], v{V_FO}, {sr(R_OUT,4)}, 0 offen")
    if cfg.stamps:
        a("s_waitcnt vmcnt(0)")
        stamp(True)
        a(f"s_lshl_b32 s{S_T0}, s2, 3\ns_add_u32 s{S_T0}, s{S_T0}, s{S_W}\ns_lshl_b32 s{S_T0}, s{S_T0}, 8\ns_add_u32 s{S_T0}, s{S_T0}, {WS_DBG}")
        a(f"v_lshlrev_b32 v2, 2, v{V_LANE}\nbuffer_store_dword v{V_STAMP}, v2, {sr(R_WS,4)}, s{S_T0} offen")
        if cfg.stamps == 3:
            a(f"s_add_u32 s{S_T0}, s{S_T0}, 0x80000\nbuffer_store_dword v253, v2, {sr(R_WS,4)}, s{S_T0} offen\ns_add_u32 s{S_T0}, s{S_T0}, 0x80000\nbuffer_store_dword v254, v2, {sr(R_WS,4)}, s{S_T0} offen")
    pad("end")
    a.label("L_end")
    a("s_endpgm")
    for j in range(8):
        a.label(f"L_oretry{j}")
        a(f"s_add_u32 s{S_SPIN}, s{S_SPIN}, 1\ns_cmp_ge_u32 s{S_SPIN}, {SPIN_MAX}\ns_cbranch_scc1 L_ook{j}")
        for k in range(j, 8): a(oload(k))
        a(f"s_branch L_ochk{j}")
    a.label("L_fb")
    a(f"v_mov_b32 v8, 0xff800000\ns_mov_b32 s{S_CNT}, {WS_KV}")
    a(f"v_subrev_u32 v10, {L_KV}, v{V_VA}")
    a.label("L_fb1")
    a(f"buffer_load_dwordx4 {vr(KF,4)}, v{V_L16}, {sr(R_WS,4)}, s{S_CNT} offen sc1\ns_waitcnt vmcnt(0)")
    a(mfma32(S0, KF, QF, None)); a.nop(12)
    for l in maxtree(S0, 8, init=True): a(l)
    a(f"s_add_u32 s{S_CNT}, s{S_CNT}, 2048\ns_cmp_lt_u32 s{S_CNT}, {WS_KV + 64*2048}\ns_cbranch_scc1 L_fb1")
    setC(8, 0.0)
    for i in range(16): a(f"v_mov_b32 v{OO+i}, 0")
    a(f"s_mov_b32 s{S_CNT}, {WS_KV}")
    a.label("L_fb2")
    a(f"buffer_load_dwordx4 {vr(KF,4)}, v{V_L16}, {sr(R_WS,4)}, s{S_CNT} offen sc1")
    a(f"s_mov_b64 exec, {sr(S_VM,2)}")
    a(f"buffer_load_dwordx4 {vr(VF,4)}, v10, {sr(R_WS,4)}, s{S_CNT} offen sc1")
    a(f"buffer_load_dwordx4 {vr(VF+4,4)}, v10, {sr(R_WS,4)}, s{S_CNT} offen offset:512 sc1")
    a("s_mov_b64 exec, -1\ns_waitcnt vmcnt(0)")
    a(mfma32(S0, KF, QF, CC)); a.nop(12)
    for i in range(16): a(f"v_exp_f32 v{S0+i}, v{S0+i}")
    for i in range(8): a(f"v_cvt_pk_bf16_f32 v{PP+i}, v{S0+2*i}, v{S0+2*i+1}")
    a.nop(2)
    a(mfma32(OO, VF, PP, OO)); a(mfma32(OO, VF + 4, PP + 4, OO))
    a(f"s_add_u32 s{S_CNT}, s{S_CNT}, 2048\ns_cmp_lt_u32 s{S_CNT}, {WS_KV + 64*2048}\ns_cbranch_scc1 L_fb2")
    a.nop(12)
    a("s_branch L_norm")
    a.label("L_code_end")
    return a

HEADER = open(f"cdna_kernels/{NAME}.s.ref").read().split("; Override launch")[0]
def wrap(a):
    s = HEADER + "; @launch grid=(256,1,1) block=(512,1,1) lds=163840\n"
    s += f""".amdgcn_target "amdgcn-amd-amdhsa--gfx950"
.text
.globl {NAME}_kernel
.p2align 8
.type {NAME}_kernel,@function
{NAME}_kernel:
"""
    s += a.text()
    s += f""".section .rodata,"a"
.p2align 6
.amdhsa_kernel {NAME}_kernel
  .amdhsa_next_free_vgpr 256
  .amdhsa_next_free_sgpr 100
  .amdhsa_accum_offset 256
  .amdhsa_group_segment_fixed_size 0
  .amdhsa_kernarg_size 96
  .amdhsa_user_sgpr_count 2
  .amdhsa_user_sgpr_kernarg_segment_ptr 1
  .amdhsa_system_sgpr_workgroup_id_x 1
.end_amdhsa_kernel
"""
    return s

if __name__ == "__main__":
    cfg = Cfg()
    out = sys.argv[1]
    for kv in sys.argv[2:]:
        k, v = kv.split("=")
        setattr(cfg, k, eval(v))
    a = gen(cfg)
    errs = check(a.lines)
    for e in errs: print("HAZARD need %d have %d:\n   %s\n   %s" % (e[2], e[3], e[0], e[1]))
    open(out, "w").write(wrap(a))
    print("wrote", out, len(a.lines), "lines", len(errs), "hazards")
```

```python
import sys, math
from asmlib import Asm, vr, sr, f2u, check

NAME = "recurrent_scan__grouped_kv_mqa__glu_gated_geglu__prompt"

class Cfg:
    stamps = False
    stop = None
    force_fb = False
    shift = 90.0
    nodot = False
    nodma = False
    nord = False
    sizes = [8, 8, 7] + [6]*6 + [5]
    ilen = 6
    g_init = 3
    t_pf = 9
    t_wo = 14
    n_csa = 2
    lead0 = 12
    oflag = ''
    i_q = 7
    c_arr = 2
    lead = [8, 10, 12, 12, 12, 12]
    n_pre = (2, 4)
    n_fin = (7, 6)
    g_cs = (3, 4, 5, 6)
    g_csc = 9
    bprio = 3
    st_rate = 0.5
    t_flag = 9
    t_kv2 = 6
    m16 = False
    pp = 0
    pa = 2
    pv = (1, 1)
    ab = ''
    pad = None

WS_KV, WS_ST, WS_FL, WS_CS, WS_O, WS_H, WS_DBG, WS_Q = 0, 0x20000, 0x28000, 0x40000, 0x100000, 0x400000, 0xC00000, 0xE00000
WS_SIZE = 0x1000000
L_X, L_W, L_R = 0, 49152, 147456
L_WD, L_WO, L_KV = 0, 32768, 98304
P_X, P_WQ, P_WK, P_WV, P_WO, P_WG, P_WU, P_WD, P_OUT, P_DBG, P_WS = 4, 6, 8, 10, 12, 16, 18, 20, 22, 24, 26
R_X, R_WKV, R_WD, R_WO, R_OUT, R_DBG, R_WS = 28, 32, 36, 40, 44, 48, 52
S_W, S_RB, S_CB, S_RT64, S_CT8 = 56, 57, 58, 59, 60
S_T16 = 61
S_VM = 62
S_XOFF = 64
S_WOFF = 65
S_HW = 66
S_ONES = 67
S_T0, S_T1, S_T2, S_T3 = 68, 69, 70, 71
S_OST = 72
S_FLG = 73
S_HST = 74
S_KQ, S_RT = 75, 76
S_WDO = 77
S_HLD = 78
S_W4K = 79
S_W2K = 80
S_SPIN = 81
S_WOO = 82
S_OLD = 83
S_EX = 84
S_TS = 86
S_CNT = 88
S_WSTEP = 89
S_TS2 = 90
R_W, R_CW = 92, 96
S_H4K = 3
S_HSB = 14
S_M0W = 15
SPIN_MAX = 1 << 16

V_LANE = 1
V_STAMP = 255
V_L16, V_KA, V_WDD, V_VA, V_DA, V_PO, V_FO, V_XR, QF = 208, 209, 210, 211, 212, 214, 215, 216, 220

def mfma32(d, a, b, c):
    cs = "0" if c is None else vr(c, 16)
    return f"v_mfma_f32_32x32x16_bf16 {vr(d,16)}, {vr(a,4)}, {vr(b,4)}, {cs}"
def mfma16(d, a, b, c):
    cs = "0" if c is None else vr(c, 4)
    return f"v_mfma_f32_16x16x32_bf16 {vr(d,4)}, {vr(a,4)}, {vr(b,4)}, {cs}"

def gen(cfg):
    a = Asm()
    nst = [0]
    def stamp(final=False):
        if not cfg.stamps: return
        i = nst[0]; nst[0] += 1
        if cfg.stamps == 5:
            if final: i = 1
            elif i: return
        a(f"s_memrealtime {sr(S_TS,2)}\ns_memtime {sr(S_TS2,2)}\ns_waitcnt lgkmcnt(0)\nv_writelane_b32 v{V_STAMP}, s{S_TS}, {i}\nv_writelane_b32 v{V_STAMP}, s{S_TS2}, {32+i}")
    def pad(pt):
        if not cfg.pad or cfg.pad[0] != pt: return
        if len(cfg.pad) > 2:
            inv = cfg.pad[2] == 2
            a(f"s_and_b32 s{S_T0}, s{S_TS}, 0x7fffffff")
            if inv: a(f"s_not_b32 s{S_T0}, s{S_T0}")
            a(f"v_mov_b32 v2, s{S_T0}\ns_mov_b64 exec, 1\nbuffer_atomic_umax v2, off, {sr(R_DBG,4)}, 0 offset:4 sc1\ns_mov_b64 exec, -1")
            a(f"L_pad0:\ns_memrealtime {sr(S_TS2,2)}\ns_waitcnt lgkmcnt(0)\ns_sub_u32 s{S_TS2}, s{S_TS2}, s{S_TS}\ns_cmp_lt_u32 s{S_TS2}, {int(cfg.pad[1]*100) - 1500}\ns_cbranch_scc1 L_pad0")
            a(f"buffer_load_dword v2, off, {sr(R_DBG,4)}, 0 offset:4 sc1\ns_waitcnt vmcnt(0)\nv_readfirstlane_b32 s{S_T0}, v2\ns_nop 3")
            if inv: a(f"s_not_b32 s{S_T0}, s{S_T0}")
            a(f"s_and_b32 s{S_TS}, s{S_TS}, 0x80000000\ns_or_b32 s{S_TS}, s{S_TS}, s{S_T0}")
        a(f"L_pad:\ns_memrealtime {sr(S_TS2,2)}\ns_waitcnt lgkmcnt(0)\ns_sub_u32 s{S_TS2}, s{S_TS2}, s{S_TS}\ns_cmp_lt_u32 s{S_TS2}, {int(cfg.pad[1]*100)}\ns_cbranch_scc1 L_pad")
    def srd(r, p, size):
        a(f"s_mov_b32 s{r}, s{p}\ns_and_b32 s{r+1}, s{p+1}, 0xffff\ns_mov_b32 s{r+2}, {hex(size)}\ns_mov_b32 s{r+3}, 0x20000")

    a(f"s_cmp_ge_u32 s2, 256\ns_cbranch_scc1 L_end")
    if cfg.pad: a(f"s_memrealtime {sr(S_TS,2)}")
    a(f"s_load_dwordx16 s[4:19], s[0:1], 0\ns_load_dwordx8 s[20:27], s[0:1], 64")
    if cfg.stamps:
        a(f"v_mov_b32 v{V_STAMP}, 0")
    a(f"v_lshrrev_b32 v2, 6, v0\nv_and_b32 v{V_LANE}, 63, v0")
    a(f"v_readfirstlane_b32 s{S_W}, v2")
    a(f"""
    s_and_b32 s{S_T0}, s2, 7
    s_lshr_b32 s{S_T1}, s2, 3
    s_and_b32 s{S_T2}, s{S_T0}, 1
    s_lshl_b32 s{S_T2}, s{S_T2}, 3
    s_and_b32 s{S_CT8}, s{S_T1}, 7
    s_add_u32 s{S_RB}, s{S_T2}, s{S_CT8}
    s_lshr_b32 s{S_T1}, s{S_T1}, 3
    s_lshr_b32 s{S_T2}, s{S_T0}, 1
    s_lshl_b32 s{S_T2}, s{S_T2}, 2
    s_add_u32 s{S_CB}, s{S_T2}, s{S_T1}
    s_lshl_b32 s{S_T2}, s{S_T0}, 2
    s_add_u32 s{S_RT64}, s{S_T2}, s{S_T1}
    s_and_b32 s{S_HW}, s{S_W}, 3
    s_lshl_b32 s{S_H4K}, s{S_HW}, 12
    v_lshlrev_b32 v{V_L16}, 4, v{V_LANE}
    s_mov_b32 s{R_X+2}, 0x200000
    s_mov_b32 s{R_X+3}, 0x20000
    s_cmp_ge_u32 s{S_W}, 4
    s_cbranch_scc1 L_helper
    """)

    sizes = cfg.sizes
    assert sum(sizes) == 64
    starts = [sum(sizes[:i]) for i in range(len(sizes))]
    S0, S1, PP, OO, CC, KF, VF = 16, 32, 48, 64, 80, 100, 108
    YY, HF, DF = 128, 160, 192
    HO = 160
    def kv_off(t):
        c = max(i for i in range(len(starts)) if starts[i] <= t)
        return ((c + 1) % 3) * 16384 + (t - starts[c]) * 2048
    qload = f"buffer_load_dwordx4 {vr(QF,4)}, v{V_L16}, {sr(R_WS,4)}, s{S_T2} offen sc1"

    XS = [0, 1, 2, 0, 1, 2, 0, 1]
    L_PX = L_X + 2*16384
    def common_setup():
        srd(R_WD, P_WD, 1792 * 1024)
        srd(R_WO, P_WO, 512 * 1024)
        srd(R_OUT, P_OUT, 0x200000)
        a(f"""
        s_lshl_b32 s{S_W4K}, s{S_W}, 12
        s_lshl_b32 s{S_W2K}, s{S_W}, 11
        s_mov_b32 s{S_VM}, 0xffff
        s_mov_b32 s{S_VM+1}, 0xffff
        s_lshr_b32 s{S_KQ}, s{S_W}, 1
        s_and_b32 s{S_RT}, s{S_W}, 1
        s_lshl_b32 s{S_T2}, s{S_RT64}, 1
        s_add_u32 s{S_T2}, s{S_T2}, s{S_RT}
        s_lshl_b32 s{S_T0}, s{S_T2}, 3
        s_add_u32 s{S_T0}, s{S_T0}, s{S_CT8}
        s_lshl_b32 s{S_T0}, s{S_T0}, 2
        s_add_u32 s{S_T0}, s{S_T0}, s{S_KQ}
        s_lshl_b32 s{S_T0}, s{S_T0}, 10
        s_add_u32 s{S_OST}, s{S_T0}, {WS_O}
        s_lshl_b32 s{S_T0}, s2, 7
        s_lshl_b32 s{S_T1}, s{S_W}, 2
        s_add_u32 s{S_T0}, s{S_T0}, s{S_T1}
        s_add_u32 s{S_FLG}, s{S_T0}, {WS_FL}
        s_mul_i32 s{S_T0}, s{S_KQ}, {448*1024}
        s_lshl_b32 s{S_T1}, s{S_RT}, 15
        s_add_u32 s{S_T0}, s{S_T0}, s{S_T1}
        s_lshl_b32 s{S_T1}, s{S_CT8}, 7
        s_add_u32 s{S_WDO}, s{S_T0}, s{S_T1}
        s_lshl_b32 s{S_T0}, s{S_W}, 15
        s_add_u32 s{S_WOO}, s{S_T0}, s{S_T1}
        s_mul_i32 s{S_T0}, s{S_T2}, 112
        s_mul_i32 s{S_T3}, s{S_KQ}, 28
        s_add_u32 s{S_T0}, s{S_T0}, s{S_T3}
        s_lshl_b32 s{S_T0}, s{S_T0}, 10
        s_add_u32 s{S_HLD}, s{S_T0}, {WS_H}
        s_lshl_b32 s{S_T0}, s{S_T2}, 15
        s_lshl_b32 s{S_T3}, s{S_KQ}, 13
        s_add_u32 s{S_T3}, s{S_T0}, s{S_T3}
        s_add_u32 s{S_OLD}, s{S_T3}, {WS_O}
        s_add_u32 s{S_T0}, s{S_T0}, s{S_T1}
        s_lshl_b32 s{S_T1}, s{S_KQ}, 5
        s_add_u32 s{S_T0}, s{S_T0}, s{S_T1}
        v_lshrrev_b32 v3, 5, v{V_LANE}
        v_and_b32 v5, 31, v{V_LANE}
        v_lshlrev_b32 v5, 10, v5
        v_lshl_add_u32 v5, v3, 4, v5
        v_add_u32 v{V_FO}, s{S_T0}, v5
        v_add_u32 v{V_KA}, {L_KV}, v{V_L16}
        v_and_b32 v2, 15, v{V_LANE}
        v_lshl_add_u32 v2, v3, 4, v2
        v_lshlrev_b32 v2, 4, v2
        v_add_u32 v{V_VA}, {L_KV + 1024}, v2
        v_lshrrev_b32 v5, 3, v{V_LANE}
        v_and_b32 v6, 7, v{V_LANE}
        v_bfe_u32 v7, v{V_LANE}, 4, 1
        v_lshlrev_b32 v8, 2, v7
        v_xor_b32 v6, v6, v8
        v_lshlrev_b32 v6, 4, v6
        v_lshl_add_u32 v{V_WDD}, v5, 10, v6
        v_and_b32 v2, 1, v{V_LANE}
        v_bfe_u32 v4, v{V_LANE}, 1, 1
        v_lshl_add_u32 v2, v2, 1, v4
        v_bfe_u32 v5, v{V_LANE}, 2, 2
        v_lshl_add_u32 v4, v3, 3, v5
        v_lshlrev_b32 v4, 7, v4
        v_lshl_add_u32 v4, v2, 3, v4
        v_and_b32 v6, 2, v5
        v_xor_b32 v6, v6, v7
        v_xor_b32 v6, s{S_KQ}, v6
        v_lshl_add_u32 v6, v6, 5, v4
        s_lshl_b32 s{S_T0}, s{S_KQ}, 13
        v_add_u32 v{V_DA}, s{S_T0}, v6
        v_xor_b32 v{V_DA+1}, 64, v{V_DA}
        """)
        a(f"""
        s_lshr_b32 s{S_T0}, s{S_RT64}, 4
        s_lshl_b32 s{S_T1}, s{S_KQ}, 1
        s_add_u32 s{S_T0}, s{S_T0}, s{S_T1}
        s_bfe_u32 s{S_T2}, s{S_RT64}, 0x30001
        s_lshl_b32 s{S_T2}, s{S_T2}, 3
        s_add_u32 s{S_T0}, s{S_T0}, s{S_T2}
        s_lshl_b32 s{S_T0}, s{S_T0}, 7
        v_and_b32 v2, 3, v{V_LANE}
        v_lshlrev_b32 v6, 2, v2
        v_lshl_add_u32 v6, v5, 13, v6
        v_add_u32 v6, s{S_T0}, v6
        s_and_b32 s{S_T0}, s2, 0xc7
        s_lshl_b32 s{S_T1}, s{S_T1}, 3
        s_add_u32 s{S_T0}, s{S_T0}, s{S_T1}
        s_lshl_b32 s{S_T0}, s{S_T0}, 7
        s_lshl_b32 s{S_T1}, s{S_RT}, 2
        s_add_u32 s{S_T0}, s{S_T0}, s{S_T1}
        v_and_b32 v8, 1, v5
        v_lshlrev_b32 v8, 10, v8
        v_lshl_add_u32 v8, v2, 3, v8
        v_cmp_gt_u32 vcc, 16, v{V_LANE}
        v_add_u32 v8, s{S_T0}, v8
        s_nop 0
        v_cndmask_b32 v{V_PO}, v8, v6, vcc
        """)

    def img_params(simg, sstride, soff):
        a(f"""
        s_lshr_b32 s{S_T0}, s{S_CB}, 2
        s_and_b32 s{S_T1}, s{S_CB}, 3
        s_mul_i32 s{soff}, s{S_T0}, 896
        s_lshl_b32 s{S_T2}, s{S_T1}, 8
        s_add_u32 s{soff}, s{soff}, s{S_T2}
        s_lshr_b32 s{S_T2}, s{simg}, 1
        s_lshl_b32 s{S_T1}, s{S_T1}, 1
        s_add_u32 s{S_T1}, s{S_T1}, s{S_T2}
        s_lshl_b32 s{S_T2}, s{S_T2}, 7
        s_add_u32 s{soff}, s{soff}, s{S_T2}
        s_lshl_b32 s{S_T0}, s{S_T0}, 1
        s_and_b32 s{S_T2}, s{simg}, 1
        s_add_u32 s{S_T0}, s{S_T0}, s{S_T2}
        s_lshl_b32 s{S_T0}, s{S_T0}, 7
        s_movk_i32 s{sstride}, 3584
        s_cmp_eq_u32 s{S_T1}, 7
        s_cselect_b32 s{soff}, s{S_T0}, s{soff}
        s_cselect_b32 s{sstride}, 1024, s{sstride}
        """)
    def img_srd(r, sstride):
        a(f"""
        s_cmp_eq_u32 s{S_T2}, 0
        s_cselect_b32 s{r}, s{P_WG}, s{P_WU}
        s_cselect_b32 s{r+1}, s{P_WG+1}, s{P_WU+1}
        s_cmp_eq_u32 s{S_T1}, 7
        s_cselect_b32 s{r}, s{P_WQ}, s{r}
        s_cselect_b32 s{r+1}, s{P_WQ+1}, s{r+1}
        s_and_b32 s{r+1}, s{r+1}, 0xffff
        s_lshl_b32 s{r+2}, s{sstride}, 9
        s_mov_b32 s{r+3}, 0x20000
        """)

    ACC, XF, WF, V_XA, V_WR = 16, 144, 176, 192, 196
    V_ST, V_CSL, V_K, RA, RBm = 224, 232, 236, 4, 198
    def acc(ti, rt): return ACC + 64*ti + 16*rt
    CL, CSUM = 224, 240
    L_CNT = L_W + 8192
    a(f"""
    v_and_b32 v5, 15, v{V_LANE}
    v_lshrrev_b32 v6, 4, v{V_LANE}
    v_lshrrev_b32 v7, 3, v{V_LANE}
    v_and_b32 v4, 7, v{V_LANE}
    v_xor_b32 v2, v6, v4
    v_lshlrev_b32 v2, 4, v2
    v_lshl_add_u32 v249, v7, 10, v2
    v_xor_b32 v250, 64, v249
    v_add_u32 v250, {8192-1024}, v250
    s_lshl_b32 s{S_T16}, s{S_RB}, 3
    s_lshr_b32 s{S_T2}, s{S_CB}, 1
    s_add_u32 s{S_T16}, s{S_T16}, s{S_T2}
    s_lshl_b32 s{S_T0}, s{S_T16}, 14
    s_lshl_b32 s{S_T1}, s{S_HW}, 8
    s_add_u32 s{S_XOFF}, s{S_T0}, s{S_T1}
    s_mov_b32 s{R_WKV+2}, 0x4000
    s_mov_b32 s{R_WKV+3}, 0x20000
    s_and_b32 s{S_CNT}, s{S_RB}, 3
    """)
    img_params(S_CNT, S_WSTEP, S_WOFF)
    a(f"""
    s_and_b32 s{S_T0}, s{S_RB}, 12
    s_add_u32 s{S_T0}, s{S_T0}, s{S_HW}
    s_lshl_b32 s{S_T0}, s{S_T0}, 3
    s_mul_i32 s{S_T0}, s{S_T0}, s{S_WSTEP}
    s_add_u32 s{S_WOFF}, s{S_T0}, s{S_WOFF}
    v_mul_u32_u24 v8, s{S_WSTEP}, v7
    v_lshl_add_u32 v248, v4, 4, v8
    s_add_u32 m0, s{S_H4K}, {L_PX}
    s_and_b32 s{S_T3}, s{S_CB}, 1
    s_waitcnt lgkmcnt(0)
    """)
    stamp()
    a(f"""
    s_mov_b32 s{R_X}, s{P_X}
    s_and_b32 s{R_X+1}, s{P_X+1}, 0xffff
    buffer_load_dwordx4 v249, {sr(R_X,4)}, s{S_XOFF} offen lds
    buffer_load_dwordx4 v250, {sr(R_X,4)}, s{S_XOFF} offen offset:1024 lds
    s_add_u32 m0, s{S_H4K}, {L_PX + 2048}
    s_add_u32 s{S_XOFF}, s{S_XOFF}, 128
    buffer_load_dwordx4 v249, {sr(R_X,4)}, s{S_XOFF} offen lds
    buffer_load_dwordx4 v250, {sr(R_X,4)}, s{S_XOFF} offen offset:1024 lds
    s_cmp_eq_u32 s{S_T3}, 0
    s_cselect_b32 s{R_WKV}, s{P_WK}, s{P_WV}
    s_cselect_b32 s{R_WKV+1}, s{P_WK+1}, s{P_WV+1}
    s_add_u32 m0, s{S_H4K}, {L_R}
    s_and_b32 s{R_WKV+1}, s{R_WKV+1}, 0xffff
    """)
    for e in range(4): a(f"buffer_load_dwordx4 v{V_L16}, {sr(R_WKV,4)}, s{S_H4K} offen offset:{1024*e} lds")
    img_srd(R_CW, S_WSTEP)
    a(f"s_lshl_b32 s{S_WSTEP}, s{S_WSTEP}, 7")
    csld = [f"buffer_load_dwordx4 {vr(CL+4*e,4)}, v248, {sr(R_CW,4)}, s{S_WOFF} offen\ns_add_u32 s{S_WOFF}, s{S_WOFF}, s{S_WSTEP}" for e in range(4)]
    for l in csld[:cfg.n_csa]: a(l)
    a(f"s_getpc_b64 {sr(S_EX,2)}")
    a.label("L_pc")
    a(f"""
    s_lshr_b32 s{S_T0}, s2, 3
    s_lshl_b32 s{S_T0}, s{S_T0}, 2
    s_add_u32 s{S_T0}, s{S_T0}, s{S_W}
    s_lshl_b32 s{S_T0}, s{S_T0}, 9
    v_lshl_add_u32 v2, v{V_LANE}, 7, s{S_T0}
    v_min_u32 v2, L_code_end-L_pc-4, v2
    v_mov_b32 v3, 0
    v_mov_b32 v10, 0
    v_mov_b32 v16, {L_CNT}
    v_lshl_add_u64 v[2:3], v[2:3], 0, {sr(S_EX,2)}
    ds_write_b32 v16, v10
    s_mov_b64 exec, 15
    global_load_dword v9, v[2:3], off
    s_mov_b64 exec, -1
    s_waitcnt lgkmcnt(0)
    s_barrier
    s_mov_b32 s{S_ONES}, 0x3f803f80
    s_add_u32 s{S_T3}, s{S_H4K}, {L_R}
    v_lshlrev_b32 v2, 3, v5
    v_lshl_add_u32 v2, v6, 8, v2
    v_add_u32 v253, s{S_T3}, v2
    v_lshrrev_b32 v3, 1, v5
    v_xor_b32 v3, v3, v6
    v_lshlrev_b32 v3, 4, v3
    v_lshl_add_u32 v3, v5, 7, v3
    v_add_u32 v251, s{S_H4K}, v3
    v_xor_b32 v252, 64, v251
    v_add_u32 v254, s{S_T3}, v{V_L16}
    v_mov_b32 v17, v5
    v_mov_b32 v18, v6
    """)
    srd(R_WS, P_WS, WS_SIZE)
    srd(R_DBG, P_DBG, 256)
    common_setup()
    a(f"""
    v_lshrrev_b32 v6, 1, v5
    v_lshl_add_u32 v6, v7, 1, v6
    v_xor_b32 v6, s{S_HW}, v6
    v_lshl_add_u32 v6, v6, 5, v4
    v_mul_u32_u24 v8, 24576, v7
    v_add_u32 v6, v6, v8
    v_add_u32 v{V_WR}, {L_W}, v6
    v_add_u32 v{V_WR+1}, {L_W + 49152}, v6
    v_and_b32 v2, 31, v{V_LANE}
    v_bfe_u32 v6, v{V_LANE}, 1, 3
    v_xor_b32 v6, v6, v3
    v_lshlrev_b32 v6, 4, v6
    v_lshl_add_u32 v{V_XA}, v2, 7, v6
    v_xor_b32 v{V_XA+1}, 32, v{V_XA}
    v_xor_b32 v{V_XA+2}, 64, v{V_XA}
    v_xor_b32 v{V_XA+3}, 96, v{V_XA}
    v_lshlrev_b32 v206, 3, v2
    v_and_b32 v6, 3, v{V_LANE}
    v_bfe_u32 v8, v{V_LANE}, 2, 1
    v_lshl_add_u32 v6, v8, 3, v6
    v_bfe_u32 v8, v{V_LANE}, 3, 1
    v_lshl_add_u32 v6, v8, 2, v6
    v_lshlrev_b32 v6, 4, v6
    v_lshl_add_u32 v6, v7, 10, v6
    v_lshl_add_u32 v207, v3, 13, v6
    s_lshr_b32 s{S_T0}, s{S_CB}, 2
    s_and_b32 s{S_T1}, s{S_CB}, 3
    s_mul_i32 s{S_T2}, s{S_RB}, 448
    s_mul_i32 s{S_T3}, s{S_T0}, 28
    s_add_u32 s{S_T2}, s{S_T2}, s{S_T3}
    s_lshl_b32 s{S_T3}, s{S_T1}, 3
    s_add_u32 s{S_T2}, s{S_T2}, s{S_T3}
    s_add_u32 s{S_T2}, s{S_T2}, s{S_HW}
    s_lshl_b32 s{S_T2}, s{S_T2}, 10
    s_add_u32 s{S_HST}, s{S_T2}, {WS_H}
    s_add_u32 s{S_HSB}, s{S_HST}, 4096
    s_lshl_b32 s{S_T2}, s{S_RB}, 7
    s_lshl_b32 s{S_T3}, s{S_T0}, 3
    s_add_u32 s{S_T2}, s{S_T2}, s{S_T3}
    s_add_u32 s{S_T2}, s{S_T2}, s{S_HW}
    s_lshl_b32 s{S_T2}, s{S_T2}, 10
    s_add_u32 s{S_T2}, s{S_T2}, {WS_Q}
    s_cmp_eq_u32 s{S_T1}, 3
    s_cselect_b32 s{S_HSB}, s{S_T2}, s{S_HSB}
    v_mov_b32 v10, 0
    v_mov_b32 v11, 1
    v_mov_b32 v12, -1
    v_mov_b32 v13, -1
    v_mov_b32 v14, -1
    v_mov_b32 v15, -1
    v_and_b32 v6, 7, v{V_LANE}
    v_lshl_add_u32 v6, v6, 1, v3
    v_lshl_add_u32 v6, v6, 1, v7
    v_bfe_u32 v8, v{V_LANE}, 3, 1
    v_lshl_add_u32 v6, v6, 1, v8
    v_lshlrev_b32 v8, 4, v6
    s_lshl_b32 s{S_T0}, s{S_CB}, 14
    s_lshl_b32 s{S_T1}, s{S_RB}, 10
    s_add_u32 s{S_T0}, s{S_T0}, s{S_T1}
    s_lshl_b32 s{S_T1}, s{S_HW}, 2
    s_add_u32 s{S_T0}, s{S_T0}, s{S_T1}
    s_add_u32 s{S_CNT}, s{S_T0}, {WS_CS}
    """)
    PX, PW, PACC, PCS, PRS, PSQ, PONE, PSQP, PF1, RD = 24, 40, 56, 60, 64, 68, 72, 76, 77, 80
    for i in range(4): a(f"v_mov_b32 v{PONE+i}, s{S_ONES}")
    init = [f"buffer_store_dwordx4 v[12:15], v{V_L16}, {sr(R_WS,4)}, s{S_T2} offen sc1",
            f"buffer_store_dwordx4 v[12:15], v{V_L16}, {sr(R_WS,4)}, s{S_T2} offen offset:2048 sc1",
            f"s_mov_b64 exec, 3\nbuffer_store_dword v10, v{V_L16}, {sr(R_WS,4)}, s{S_FLG} offen sc1\ns_mov_b64 exec, -1"]
    a(f"v_mov_b32 v202, 0\nv_mov_b32 v{PF1}, 1.0\nv_mov_b32 v{PSQP}, 0\ns_waitcnt vmcnt({cfg.n_csa + 1})")
    stamp()
    for s in range(4): a(f"ds_read_b128 {vr(PX+4*s,4)}, v{251 + (s & 1)} offset:{L_PX + 2048*(s >> 1)}")
    for s in range(4):
        for t in range(2): a(f"ds_read_b64_tr_b16 {vr(PW+4*s+2*t,2)}, v253 offset:{1024*s+128*t}")
    a("s_waitcnt lgkmcnt(8)")
    for i in range(16): a(f"v_dot2c_f32_bf16 v{PSQP}, v{PX+i}, v{PX+i}")
    a(f"s_and_b32 s{S_T0}, s{S_CB}, 1\ns_cmp_eq_u32 s{S_T0}, 0\ns_waitcnt lgkmcnt(0)\ns_cbranch_scc0 L_preV")
    for form in range(2):
        if form == 1: a.label("L_preV")
        def mm(d, w, x, first):
            return mfma16(d, w, x, None if first else d) if form == 0 else mfma16(d, x, w, None if first else d)
        a(f"v_mfma_f32_16x16x4_f32 {vr(PSQ,4)}, v{PF1}, v{PSQP}, 0" if form == 0 else f"v_mfma_f32_16x16x4_f32 {vr(PSQ,4)}, v{PSQP}, v{PF1}, 0")
        for s in range(4):
            a(mm(PRS, PONE, PX + 4*s, s == 0)); a(mm(PCS, PW + 4*s, PONE, s == 0)); a(mm(PACC, PW + 4*s, PX + 4*s, s == 0))
        if form == 0: a("s_branch L_pre_w")
    a.label("L_pre_w")
    a(f"s_cmp_eq_u32 s{S_HW}, 0\ns_cbranch_scc1 L_fin\ns_nop 3")
    for q, r in ((3, PSQ), (2, PRS), (1, PCS), (0, PACC)): a(f"ds_write_b128 v254, {vr(r,4)} offset:{1024*q}")
    a(f"s_waitcnt lgkmcnt(0)\ns_mov_b64 exec, 1\nds_add_u32 v16, v11\ns_mov_b64 exec, -1\ns_branch L_nofin")
    a.label("L_fin")
    a(f"ds_read_b32 v19, v16\ns_waitcnt lgkmcnt(0)\nv_cmp_gt_u32 vcc, 3, v19\ns_nop 0\ns_cbranch_vccnz L_fin")
    for w in (1, 2, 3):
        for q in range(4): a(f"ds_read_b128 {vr(RD + 16*(w-1) + 4*q,4)}, v254 offset:{4096*w + 1024*q}")
    for w in (1, 2, 3):
        a(f"s_waitcnt lgkmcnt({12 - 4*w})")
        for i in range(0, 16, 2): a(f"v_pk_add_f32 {vr(PACC+i,2)}, {vr(PACC+i,2)}, {vr(RD+16*(w-1)+i,2)}")
    for i in range(4):
        a(f"v_mul_f32 v{PRS+i}, {hex(f2u(-1.0/512))}, v{PRS+i}")
        a(f"v_mul_f32 v{PSQ+i}, {hex(f2u(1.0/512))}, v{PSQ+i}")
        a(f"v_fma_f32 v{PSQ+i}, -v{PRS+i}, v{PRS+i}, v{PSQ+i}")
        a(f"v_max_f32 v{PSQ+i}, 0, v{PSQ+i}")
        a(f"v_add_f32 v{PSQ+i}, {hex(f2u(1e-5))}, v{PSQ+i}")
        a(f"v_rsq_f32 v{PX+i}, v{PSQ+i}")
        a(f"v_fmac_f32 v{PACC+i}, v{PRS+i}, v{PCS+i}")
    for i in range(4): a(f"v_mul_f32 v{PACC+i}, v{PACC+i}, v{PX+i}")
    a(f"""
    v_cvt_pk_bf16_f32 v198, v{PACC}, v{PACC+1}
    v_cvt_pk_bf16_f32 v199, v{PACC+2}, v{PACC+3}
    s_lshr_b32 s{S_T0}, s{S_T16}, 1
    s_lshl_b32 s{S_T0}, s{S_T0}, 11
    s_and_b32 s{S_T3}, s{S_T16}, 1
    v_lshrrev_b32 v20, 1, v18
    v_and_b32 v21, 1, v18
    s_and_b32 s{S_T2}, s{S_CB}, 1
    s_cmp_eq_u32 s{S_T2}, 0
    s_cbranch_scc0 L_pubV
    s_lshl_b32 s{S_T3}, s{S_T3}, 8
    s_add_u32 s{S_T0}, s{S_T0}, s{S_T3}
    v_lshl_add_u32 v20, v20, 5, v17
    v_lshlrev_b32 v20, 4, v20
    v_lshl_add_u32 v20, v21, 3, v20
    s_lshl_b32 s{S_T1}, s{S_T16}, 7
    s_add_u32 s{S_T1}, s{S_T1}, {WS_ST}
    s_branch L_pub
    """)
    a.label("L_pubV")
    a(f"""
    s_lshl_b32 s{S_T3}, s{S_T3}, 9
    s_add_u32 s{S_T0}, s{S_T0}, s{S_T3}
    s_add_u32 s{S_T0}, s{S_T0}, 1024
    v_and_b32 v22, 3, v17
    v_bfe_u32 v23, v17, 2, 1
    v_lshl_add_u32 v22, v23, 3, v22
    v_bfe_u32 v23, v17, 3, 1
    v_lshl_add_u32 v22, v23, 2, v22
    v_lshl_add_u32 v22, v21, 4, v22
    v_lshlrev_b32 v22, 4, v22
    v_lshl_add_u32 v20, v20, 3, v22
    s_mov_b32 s{S_T1}, {WS_SIZE}
    """)
    a.label("L_pub")
    a(f"""
    v_mov_b32 v200, v{PRS}
    v_mov_b32 v201, v{PSQ}
    v_mov_b32 v202, v20
    s_mov_b32 s{S_EX}, s{S_T0}
    s_mov_b32 s{S_EX+1}, s{S_T1}
    """)
    a.label("L_nofin")
    init += [f"s_cmp_lg_u32 s{S_HW}, 0\ns_cbranch_scc1 L_nopub\nv_lshlrev_b32 v3, 3, v{V_LANE}\n"
             f"buffer_store_dwordx2 v[198:199], v202, {sr(R_WS,4)}, s{S_EX} offen sc1\ns_mov_b64 exec, 0xffff\n"
             f"buffer_store_dwordx2 v[200:201], v3, {sr(R_WS,4)}, s{S_EX+1} offen sc1\ns_mov_b64 exec, -1\nL_nopub:"]
    def cs_compute():
        L = ["s_waitcnt vmcnt(0)"]
        for i in range(4):
            L += [f"v_lshlrev_b32 v{CSUM+2*i}, 16, v{CL+i}", f"v_and_b32 v{CSUM+2*i+1}, 0xffff0000, v{CL+i}"]
            for e in range(1, 4):
                L += [f"v_lshlrev_b32 v2, 16, v{CL+4*e+i}", f"v_and_b32 v3, 0xffff0000, v{CL+4*e+i}", f"v_add_f32 v{CSUM+2*i}, v{CSUM+2*i}, v2", f"v_add_f32 v{CSUM+2*i+1}, v{CSUM+2*i+1}, v3"]
        L += [f"v_permlane32_swap_b32 v{CSUM+j}, v{CSUM+4+j}" for j in range(4)]
        L += [f"v_add_f32 v{CSUM+j}, v{CSUM+j}, v{CSUM+4+j}" for j in (0, 2, 1, 3)]
        L += [f"v_permlane16_swap_b32 v{CSUM}, v{CSUM+2}", "s_nop 0", f"v_permlane16_swap_b32 v{CSUM+1}, v{CSUM+3}"]
        L += [f"v_add_f32 v{CSUM}, v{CSUM}, v{CSUM+2}", f"v_add_f32 v{CSUM+1}, v{CSUM+1}, v{CSUM+3}", "s_nop 0"]
        L += [f"v_add_f32_dpp v2, v{CSUM}, v{CSUM} row_ror:8 row_mask:0xf bank_mask:0xf", f"v_add_f32_dpp v2, v{CSUM+1}, v{CSUM+1} row_ror:8 row_mask:0xf bank_mask:0xc"]
        L += [f"v_mov_b32 v203, v2"]
        return L
    init.insert(0, f"buffer_store_dword v203, v8, {sr(R_WS,4)}, s{S_CNT} offen sc1")
    for l in (cs_compute() if cfg.n_csa == 4 else csld[cfg.n_csa:]): a(l)
    a(f"s_add_u32 s{S_T2}, s{S_OST}, {WS_Q - WS_O}")
    if cfg.g_init == -1:
        assert cfg.n_csa == 4
        for l in init: a(l)
    a("s_barrier")
    nst[0] = 2
    stamp(); pad("b0")
    def g1_reads(g):
        c, s = divmod(g, 4); slot = (c + 2) % 3; st = g & 1
        xr = [f"ds_read_b128 {vr(XF+16*st+4*rt,4)}, v{V_XA+s} offset:{XS[c]*16384 + rt*4096}" for rt in range(4)]
        wr = [[f"ds_read_b64_tr_b16 {vr(WF+8*st+4*ti+2*t,2)}, v{V_WR+ti} offset:{slot*8192 + s*2048 + t*512}" for t in range(2)] for ti in range(2)]
        return [wr[0][0], wr[0][1], xr[0], wr[1][0], wr[1][1], xr[1], xr[2], xr[3]]
    for l in g1_reads(0): a(l)
    extra = {g: [] for g in range(32)}
    if cfg.g_init >= 0 and cfg.g_init & 3 != 3: extra[cfg.g_init] += init
    extra[4*cfg.c_arr + 3] += [f"s_cmp_lg_u32 s{S_W}, 0\ns_cbranch_scc1 L_noarr\ns_and_b32 s{S_T0}, s2, 7\ns_lshl_b32 s{S_T0}, s{S_T0}, 5\n"
                  f"s_mov_b64 exec, 1\nbuffer_atomic_add v11, off, {sr(R_DBG,4)}, s{S_T0} sc1\ns_mov_b64 exec, -1\nL_noarr:"]
    extra[26] += [f"s_lshl_b32 s{S_T0}, s{S_RB}, 10\ns_add_u32 s{S_T0}, s{S_T0}, {WS_ST}",
                  f"s_lshl_b32 s{S_T1}, s{S_CB}, 14\ns_lshl_b32 s{S_T3}, s{S_HW}, 8", f"s_add_u32 s{S_T1}, s{S_T1}, s{S_T3}\ns_add_u32 s{S_T1}, s{S_T1}, {WS_CS}\ns_add_u32 s{S_T3}, s{S_T1}, 4096"]
    ld = [f"buffer_load_dwordx4 {vr(V_CSL+8*ti+4*p,4)}, v207, {sr(R_WS,4)}, s{S_T3 if p else S_T1} offen offset:{2048*ti} sc1" for ti in range(2) for p in range(2)]
    ld += [f"buffer_load_dwordx2 {vr(V_ST+2*rt,2)}, v206, {sr(R_WS,4)}, s{S_T0} offen offset:{256*rt} sc1" for rt in range(4)]
    extra[27] += ld[:3]; extra[28] += ld[3:7]; extra[29] += ld[7:]
    def split2(src, dst, dup):
        if dup:
            return [f"v_cvt_pk_bf16_f32 v{dst}, v{src}, v{src}", f"v_and_b32 v2, 0xffff0000, v{dst}", f"v_sub_f32 v2, v{src}, v2", f"v_cvt_pk_bf16_f32 v{dst+1}, v2, v2"]
        return [f"v_cvt_pk_bf16_f32 v{dst}, v{src}, v{src}", f"v_and_b32 v2, 0xffff0000, v{dst}", f"v_sub_f32 v2, v{src}, v2", f"v_cvt_pk_bf16_f32 v{dst}, v{src}, v2", f"v_mov_b32 v{dst+1}, v{dst}"]
    prep = ["s_waitcnt vmcnt(0)"]
    for ti in range(2):
        prep += [f"v_add_f32 v{V_CSL+8*ti}, v{V_CSL+8*ti}, v{V_CSL+8*ti+i}" for i in range(1, 8)] + split2(V_CSL + 8*ti, RA + 2*ti, True)
    for rt in range(4): prep += split2(V_ST + 2*rt, RBm + 2*rt, False)
    for g in range(32):
        c, s = divmod(g, 4); st = g & 1
        last = g == 31
        a("s_waitcnt vmcnt(0) lgkmcnt(0)" if g == 4*cfg.c_arr + 3 else "s_waitcnt lgkmcnt(0)")
        rd = [] if last or cfg.nord else g1_reads(g + 1)
        gaps = [[] for _ in range(8)]
        o = 0
        if s == 3:
            gaps[0] = (cs_compute() if g == 3 and cfg.n_csa < 4 else []) + (init if g == cfg.g_init else []) + ["s_barrier"]; o = 1
        for i, l in enumerate(rd): gaps[o + i // 2].append(l)
        for i, l in enumerate(extra[g]): gaps[min(7, o + 4 + i)].append(l)
        if last:
            for i, l in enumerate(prep): gaps[1 + min(6, i // 6)].append(l)
        for k in range(8):
            rt, ti = divmod(k, 2)
            if cfg.m16:
                b = acc(ti, rt) + 8*(g & 1)
                a(mfma16(b, WF + 8*st + 4*ti, XF + 16*st + 4*rt, None if g < 2 else b))
                for l in gaps[k][:1]: a(l)
                a(mfma16(b + 4, WF + 8*st + 4*(1-ti), XF + 16*st + 4*(rt^1), None if g < 2 else b + 4))
                for l in gaps[k][1:]: a(l)
            else:
                a(mfma32(acc(ti, rt), WF + 8*st + 4*ti, XF + 16*st + 4*rt, None if g == 0 else acc(ti, rt)))
                for l in gaps[k]: a(l)
            if k == 0 and (g == 27 or (cfg.stamps == 4 and s == 3)): stamp()
    stamp(); pad("g1")
    KG = 2.0 * math.sqrt(2.0 / math.pi) * math.log2(math.e)
    def rank1(ti, rt): return f"v_mfma_f32_32x32x8_bf16 {vr(acc(ti,rt),16)}, {vr(RA+2*ti,2)}, {vr(RBm+2*rt,2)}, {vr(acc(ti,rt),16)}"
    def consts(rt):
        b = V_K + 4*rt; vp = V_ST + 2*rt
        return [f"v_rsq_f32 v3, v{vp+1}", f"v_mov_b32 v{vp}, v{vp+1}", f"v_mul_f32 v{b}, {hex(f2u(-KG))}, v3", f"v_mul_f32 v2, v3, v3",
                f"v_mul_f32 v{b+2}, {hex(f2u(0.044715))}, v{b}", f"v_mov_b32 v{b+1}, v{b}", f"v_mul_f32 v{b+2}, v{b+2}, v2", f"v_mov_b32 v{b+3}, v{b+2}"]
    def gelu(ti, rt, mf=()):
        A = acc(ti, rt); b = V_K + 4*rt; vp = V_ST + 2*rt
        t1, t2, o = 144, 152, HO + 16*ti + 4*rt
        mf = list(mf)
        L = [".p2align 3"]
        for i in range(0, 8, 2): L.append(f"v_pk_mul_f32 {vr(t1+i,2)}, {vr(A+i,2)}, {vr(A+i,2)}")
        for i in range(0, 8, 2): L.append(f"v_pk_fma_f32 {vr(t1+i,2)}, {vr(t1+i,2)}, {vr(b+2,2)}, {vr(b,2)}")
        for i in range(0, 8, 2): L.append(f"v_pk_mul_f32 {vr(t1+i,2)}, {vr(t1+i,2)}, {vr(A+i,2)}")
        L += mf[:1]
        for i in range(8): L.append(f"v_exp_f32 v{t1+i}, v{t1+i}")
        for i in range(0, 8, 2): L.append(f"v_pk_mul_f32 {vr(t2+i,2)}, {vr(A+i,2)}, {vr(A+8+i,2)}")
        for i in range(0, 8, 2): L.append(f"v_pk_fma_f32 {vr(t1+i,2)}, {vr(t1+i,2)}, {vr(vp,2)}, {vr(vp,2)}")
        L += mf[1:]
        for i in range(8): L.append(f"v_rcp_f32 v{t1+i}, v{t1+i}")
        for i in range(0, 8, 2): L.append(f"v_pk_mul_f32 {vr(t2+i,2)}, {vr(t2+i,2)}, {vr(t1+i,2)}")
        for i in range(4): L.append(f"v_cvt_pk_bf16_f32 v{o+i}, v{t2+2*i}, v{t2+2*i+1}")
        return L
    def qtile(rt):
        A = acc(1, rt); tb = 144 + 8*(rt & 1); b = V_K + 4*rt
        L = [f"v_mul_f32 v2, {hex(f2u(-0.25*math.log2(math.e)/KG))}, v{b}", f"s_add_u32 s{S_T0}, s{S_HSB}, {32768*rt}", f"s_add_u32 s{S_T1}, s{S_T0}, 4096"]
        for hd in range(2):
            for i in range(8*hd, 8*hd + 8): L.append(f"v_mul_f32 v{A+i}, v{A+i}, v2")
            for i in range(4*hd, 4*hd + 4): L.append(f"v_cvt_pk_bf16_f32 v{tb+i}, v{A+2*i}, v{A+2*i+1}")
            for i in range(4*hd, 4*hd + 4): L.append(f"v_min_u32 v{tb+i}, -2, v{tb+i}")
            L.append(f"buffer_store_dwordx4 {vr(tb+4*hd,4)}, v{V_L16}, {sr(R_WS,4)}, s{S_T0 + hd} offen sc1")
        return L
    a(f"s_and_b32 s{S_T1}, s{S_CB}, 3\ns_cmp_eq_u32 s{S_T1}, 3\ns_cbranch_scc1 L_qt")
    a(rank1(0, 0))
    for rt in range(4):
        for l in consts(rt): a(l)
    order = [(ti, rt) for rt in range(4) for ti in range(2)]
    for i, (ti, rt) in enumerate(order):
        if i == cfg.i_q: a("s_barrier\n" + qload)
        for l in gelu(ti, rt, [rank1(*order[i+1])] if i < 7 else []): a(l)
    a("s_branch L_join")
    a.label("L_qt")
    for rt in range(4):
        a(rank1(1, rt))
        for l in consts(rt): a(l)
    for rt in range(4):
        a(rank1(0, rt))
        for l in qtile(rt): a(l)
    a(f"s_mov_b32 s{S_HSB}, {WS_SIZE}")
    for rt in range(4):
        if rt == 3: a("s_barrier\n" + qload)
        for l in gelu(0, rt): a(l)
    a("s_branch L_join")

    a.label("L_helper")
    V_XD, V_WD = 192, 194
    PX, PW = 8, 24
    PACC, PCS, PRS, PSQ = 40, 44, 48, 52
    PONE, PSQP, PF1 = 56, 60, 61
    RD = 64
    a(f"""
    s_lshl_b32 s{S_XOFF}, s{S_RB}, 17
    s_lshl_b32 s{S_T0}, s{S_HW}, 15
    s_add_u32 s{S_XOFF}, s{S_XOFF}, s{S_T0}
    v_and_b32 v5, 15, v{V_LANE}
    v_lshrrev_b32 v6, 4, v{V_LANE}
    v_lshrrev_b32 v7, 3, v{V_LANE}
    v_and_b32 v63, 7, v{V_LANE}
    v_xor_b32 v62, v6, v63
    v_lshlrev_b32 v62, 4, v62
    v_lshl_add_u32 v{V_XD}, v7, 10, v62
    v_xor_b32 v{V_XD+1}, 64, v{V_XD}
    v_add_u32 v{V_XD+1}, {8192-1024}, v{V_XD+1}
    """)
    img_params(S_HW, S_WSTEP, S_WOFF)
    a(f"""
    v_and_b32 v62, 1, v6
    v_lshlrev_b32 v62, 1, v62
    v_xor_b32 v62, v62, v63
    s_lshl_b32 s{S_T0}, s{S_T2}, 2
    v_xor_b32 v62, s{S_T0}, v62
    v_lshlrev_b32 v62, 4, v62
    v_mul_u32_u24 v{V_WD}, s{S_WSTEP}, v7
    v_add_u32 v{V_WD}, v{V_WD}, v62
    s_waitcnt lgkmcnt(0)
    """)
    nst[0] = 0
    stamp()
    a(f"s_mov_b32 s{R_X}, s{P_X}\ns_and_b32 s{R_X+1}, s{P_X+1}, 0xffff")
    Q = []
    def issue(tag, text): a(text); Q.append(tag)
    def vwait(tag, more=""):
        n = len(Q) - 1 - max(i for i, t in enumerate(Q) if t == tag)
        a(f"s_waitcnt vmcnt({n})" + more)
    def xitems(c):
        slot = XS[c]
        return [(f"C{c}", f"s_add_u32 m0, s{S_H4K}, {L_X + slot*16384}\ns_add_u32 s{S_CNT}, s{S_XOFF}, {c*128 + (16384 - 2048)*(e >> 1)}\n"
                 f"buffer_load_dwordx4 v{V_XD + (e & 1)}, {sr(R_X,4)}, s{S_CNT} offen offset:{1024*e} lds") for e in range(4)]
    def witems(c):
        slot = (c + 2) % 3
        return [(f"C{c}", f"s_add_u32 m0, s{S_M0W}, {slot*8192 + e*1024}\n" + (f"s_add_u32 s{S_WOFF}, s{S_WOFF}, s{S_WSTEP}" if c + e else "s_nop 0") +
                 f"\nbuffer_load_dwordx4 v{V_WD}, {sr(R_W,4)}, s{S_WOFF} offen lds") for e in range(8)]
    stream = []
    for c in range(1, 8): stream += [(t, x if c < 3 or not cfg.nodma else 's_nop 0') for t, x in witems(c) + xitems(c)]
    pos = [0]
    def take(n):
        for _ in range(n):
            if pos[0] < len(stream): issue(*stream[pos[0]]); pos[0] += 1
    def upto(c):
        return min(len(stream), 12*(c + 1) + cfg.lead[c])
    def mix(lines, n):
        k = 0
        for i, l in enumerate(lines):
            while k < n and k * len(lines) <= i * n: take(1); k += 1
            a(l)
        take(n - k)
    img_srd(R_W, S_WSTEP)
    a(f"s_lshl_b32 s{S_WSTEP}, s{S_WSTEP}, 3\ns_mul_i32 s{S_M0W}, s{S_HW}, 24576\ns_add_u32 s{S_M0W}, s{S_M0W}, {L_W}")
    srd(R_WS, P_WS, WS_SIZE)
    srd(R_DBG, P_DBG, 256)
    a(f"s_mov_b32 s{S_ONES}, 0x3f803f80")
    common_setup()
    a("s_barrier")
    for it in xitems(0) + witems(0): issue(*it)
    def bar():
        if cfg.stamps == 4: stamp()
        a("s_barrier")
    take(cfg.lead0)
    nst[0] = 2; vwait("C0"); bar()
    for c in range(6):
        take(upto(c) - pos[0])
        vwait(f"C{c+1}"); bar()
    take(100)
    a(f"""
    s_waitcnt vmcnt(0)
    s_cmp_lg_u32 s{S_HW}, 0
    s_cbranch_scc1 L_sync1
    s_mov_b32 s{S_SPIN}, 0
    v_and_b32 v6, 7, v{V_LANE}
    v_lshlrev_b32 v6, 5, v6
    """)
    a.label("L_sync1_chk")
    a(f"""
    buffer_load_dword v7, v6, {sr(R_DBG,4)}, 0 offen sc1
    s_waitcnt vmcnt(0)
    v_cmp_gt_u32 vcc, 32, v7
    s_add_u32 s{S_SPIN}, s{S_SPIN}, 1
    s_cbranch_vccz L_sync1
    s_cmp_lt_u32 s{S_SPIN}, {SPIN_MAX}
    s_cbranch_scc1 L_sync1_chk
    """)
    a.label("L_sync1")
    if cfg.stamps != 4: nst[0] = 3
    stamp()
    a("s_barrier\ns_barrier")
    for c in range(2):
        slot = (c + 1) % 3
        a(f"s_add_u32 m0, s{S_H4K}, {L_KV + slot*16384}\ns_add_u32 s{S_T0}, s{S_H4K}, {WS_KV + starts[c]*2048}")
        for e in range(4):
            a(f"buffer_load_dwordx4 v{V_L16}, {sr(R_WS,4)}, s{S_T0} offen offset:{1024*e} sc1 lds")
    a(f"s_add_u32 s{S_T2}, s{S_OST}, {WS_Q - WS_O}")
    for i in range(4): a(f"v_mov_b32 v{12+i}, -1")
    a("v_mov_b32 v11, 1")
    a("s_barrier")
    a(qload)

    a.label("L_join")
    nst[0] = 12 if cfg.stamps == 4 else 5
    stamp()
    a(f"""
    v_and_b32 v5, 27, v{V_LANE}
    v_cmp_eq_u32 vcc, 16, v5
    v_mov_b32 v6, s{S_ONES}
    s_mov_b32 s{S_SPIN}, 0
    v_cndmask_b32 v{VF}, 0, v6, vcc
    v_mov_b32 v{VF+1}, v{VF}
    """)
    for i in range(2, 16, 2): a(f"v_mov_b64 {vr(VF+i,2)}, {vr(VF,2)}")
    a.label("L_qchk")
    a(f"""
    s_waitcnt vmcnt(0)
    v_max3_u32 v8, v{QF}, v{QF+1}, v{QF+2}
    v_max_u32 v8, v8, v{QF+3}
    v_cmp_eq_u32 vcc, -1, v8
    s_add_u32 s{S_SPIN}, s{S_SPIN}, 1
    s_cbranch_vccz L_qok
    s_cmp_ge_u32 s{S_SPIN}, {SPIN_MAX}
    s_cbranch_scc1 L_qok
    s_sleep 2
    {qload}
    s_branch L_qchk
    """)
    a.label("L_qok")
    a("s_barrier")
    stamp(); pad("att0")
    a(f"ds_read_b128 {vr(KF,4)}, v{V_KA} offset:{kv_off(0)}\nds_read_b128 {vr(KF+4,4)}, v{V_KA} offset:{kv_off(1)}\ns_waitcnt lgkmcnt(1)")
    a(mfma32(S1, KF, QF, None))
    a.nop(12)
    def maxtree(src, dst, init=None):
        L = []
        if init is None:
            L.append(f"v_max3_f32 v{dst}, v{src}, v{src+1}, v{src+2}")
            L.append(f"v_max_f32 v{dst}, v{src+3}, v{dst}")
            k = 4
        else:
            k = 0
        for i in range(k, 16, 2): L.append(f"v_max3_f32 v{dst}, v{src+i}, v{src+i+1}, v{dst}")
        return L
    def setC(m, shift):
        a(f"v_mov_b32 v{m+1}, v{m}\ns_nop 1\nv_permlane32_swap_b32 v{m}, v{m+1}\nv_max_f32 v{m}, v{m}, v{m+1}")
        a(f"v_sub_f32 v{CC}, {hex(f2u(-shift)) if shift else 0}, v{m}")
        a(f"v_mov_b32 v{CC+1}, v{CC}")
        for i in range(2, 16, 2): a(f"v_mov_b64 {vr(CC+i,2)}, {vr(CC,2)}")
    for l in maxtree(S1, 8): a(l)
    setC(8, cfg.shift)
    a("s_nop 1")
    a(mfma32(S0, KF, QF, CC))
    a.nop(4)

    def kvdma(c, half):
        slot = (c + 1) % 3
        L = (f"s_add_u32 m0, s{S_W2K}, {L_KV + slot*16384}\ns_add_u32 s{S_T0}, s{S_W2K}, {WS_KV + starts[c]*2048}\n")
        if half == 1 and sizes[c] < 8:
            L += f"s_cmp_ge_u32 s{S_W}, {sizes[c]}\ns_cselect_b32 s{S_T0}, {WS_SIZE}, s{S_T0}\n"
        return [L + f"buffer_load_dwordx4 v{V_L16}, {sr(R_WS,4)}, s{S_T0} offen sc1 lds",
                f"buffer_load_dwordx4 v{V_L16}, {sr(R_WS,4)}, s{S_T0} offen offset:1024 sc1 lds"]
    def rowdma(rs, sbase, add, ldsbase, e):
        pre = f"s_add_u32 m0, s{S_W4K}, {ldsbase}\n"
        return pre + f"s_add_u32 s{S_T0}, s{sbase}, {add + e*7168}\nbuffer_load_dwordx4 v{V_WDD}, {sr(rs,4)}, s{S_T0} offen offset:{1024*e} lds"
    tbs = [starts[c] - 3 for c in range(1, len(starts))]
    def attention(half):
        sfx = "AB"[half]
        head = {t: [] for t in range(66)}
        vm = {t: [] for t in range(66)}
        pre = {t: [] for t in range(66)}
        bg = {t: [] for t in range(66)}
        nb = len(tbs); c0 = nb - 7
        for ci, tb in enumerate(tbs):
            n = (tbs[ci+1] if ci + 1 < nb else 63) - tb
            q = []
            if ci + 2 < len(starts): q += [("D", x) for x in kvdma(ci + 2, half)]
            dload = ci - c0 + 1
            if 0 <= dload <= 6:
                q += [("D", rowdma(R_WD, S_WDO, dload*65536, L_WD + (dload & 1)*32768, e)) for e in range(4)]
                hl = [f"buffer_load_dwordx4 {vr(HF + 16*(dload&1) + 4*j,4)}, v{V_L16}, {sr(R_WS,4)}, s{S_T1} offen offset:{1024*j} sc1" for j in range(4)]
                hl[0] = f"s_add_u32 s{S_T1}, s{S_HLD}, {dload*4096}\n" + hl[0]
                o = n - 2 if dload == 0 else 4
                vm[tb + o] += [("H", x) for x in hl[:2]]; vm[tb + o + 1] += [("H", x) for x in hl[2:]]
                pre[tbs[ci + 1] + 2].append(("wait", "H"))
                if dload == 0: tp = tb + o - 1
            elif dload == 7:
                q += [("D", rowdma(R_WO, S_WOO, 0, L_WO, e)) for e in range(4)]
                q += [("D", f"buffer_load_dwordx4 {vr(V_XR,4)}, v{V_FO}, {sr(R_X,4)}, 0 offen")]
            o = 1 if ci else cfg.t_kv2 - tb
            for i, x in enumerate(q): vm[tb + o + i // 2].append(x)
            d = dload - 1
            if d >= 0:
                lh, mb = {7: ([1, 1, 2, 3, 4, 5, 6, 6], [2, 2, 3, 4, 5, 6, 7, 8]), 6: ([1, 1, 2, 3, 3, 4, 5, 5], [2, 2, 3, 4, 5, 5, 6, 7])}[cfg.ilen]
                for k in range(8):
                    j, ct = divmod(k, 2); fr = DF + 4 * (k & 3)
                    for t in range(2):
                        head[tb + lh[k]].append(f"ds_read_b64_tr_b16 {vr(fr+2*t,2)}, v{V_DA+ct} offset:{L_WD + (d&1)*32768 + j*2048 + t*512}")
                    bg[tb + mb[k]].append(mfma32(YY + 16*ct, fr, HF + 16*(d&1) + 4*j, None if (d == 0 and j == 0) else YY + 16*ct))
        st = []
        if half == 0:
            for rt in range(4):
                for ti in range(2):
                    st.append(f"s_add_u32 s{S_T3}, s{S_HSB if ti else S_HST}, {112*1024*rt}\n"
                              f"buffer_store_dwordx4 {vr(HO + 16*ti + 4*rt,4)}, v{V_L16}, {sr(R_WS,4)}, s{S_T3} offen sc1")
        st.append(f"buffer_store_dwordx4 v[12:15], v{V_L16}, {sr(R_WS,4)}, s{S_OST} offen sc1")
        hs = [t for t in range(64) if t not in tbs]
        for i, x in enumerate(st): vm[hs[int(i * cfg.st_rate)]].append(("S", x))
        if half == 1:
            pfl = [f"s_mul_i32 s{S_T0}, s2, 7168\ns_lshl_b32 s{S_T1}, s{S_HW}, 11\ns_add_u32 s{S_T0}, s{S_T0}, s{S_T1}\nbuffer_load_dwordx4 {vr(HF,4)}, v{V_L16}, {sr(R_WD,4)}, s{S_T0} offen",
                   f"buffer_load_dwordx4 {vr(HF+4,4)}, v{V_L16}, {sr(R_WD,4)}, s{S_T0} offen offset:1024",
                   f"s_lshl_b32 s{S_T1}, s2, 11\ns_lshl_b32 s{S_T3}, s{S_HW}, 9\ns_add_u32 s{S_T1}, s{S_T1}, s{S_T3}\ns_mov_b32 exec_hi, 0\nbuffer_load_dwordx4 {vr(HF+8,4)}, v{V_L16}, {sr(R_WO,4)}, s{S_T1} offen\ns_mov_b64 exec, -1"]
            vm[cfg.t_pf] += [("X", x) for x in pfl]
            for e in range(8):
                x = f"s_add_u32 m0, s{S_EX}, {L_WO + 32768 + e*1024}\ns_add_u32 s{S_T0}, s{S_EX+1}, {256*1024 + e*8192}\nbuffer_load_dwordx4 v{V_WDD}, {sr(R_WO,4)}, s{S_T0} offen lds"
                if e == 0: x = f"s_lshl_b32 s{S_EX+1}, s{S_HW}, 16\ns_lshl_b32 s{S_T0}, s{S_CT8}, 7\ns_add_u32 s{S_EX+1}, s{S_EX+1}, s{S_T0}\ns_lshl_b32 s{S_EX}, s{S_H4K}, 1\n" + x
                vm[cfg.t_wo + e // 2].append(("X", x))
        pre[cfg.t_flag].append(("wait", "S"))
        vm[cfg.t_flag].insert(0, ("F", f"s_mov_b64 exec, 1\nbuffer_store_dword v11, off, {sr(R_WS,4)}, s{S_FLG} sc1\ns_mov_b64 exec, -1"))
        poll = f"buffer_load_dword v3, v{V_PO}, {sr(R_WS,4)}, s{S_T2} offen sc1"
        vm[tp].append(("P", f"s_mov_b32 s{S_T2}, {WS_FL}\n" + poll))
        pre[tp+1].append(("text", f"s_mov_b32 s{S_SPIN}, 0\nL_hchk{sfx}:\ns_waitcnt vmcnt(0)\nv_cmp_ne_u32 vcc, 1, v3\ns_add_u32 s{S_SPIN}, s{S_SPIN}, 1\ns_cbranch_vccz L_hok{sfx}\n"
                     f"s_cmp_ge_u32 s{S_SPIN}, {SPIN_MAX}\ns_cbranch_scc1 L_hok{sfx}\n{poll}\ns_branch L_hchk{sfx}\nL_hok{sfx}:"))
        VQ = []
        def cnt(tag):
            idx = [i for i, x in enumerate(VQ) if x == tag]
            return min(63, len(VQ) - 1 - max(idx)) if idx else 63
        def emit_vm(L):
            for tag, x in L: a(x); VQ.append(tag)
        for t in range(tbs[1] + 1, 64):
            if 'v' in cfg.ab: vm[t] = []
            if 'r' in cfg.ab: head[t] = []
            if 'm' in cfg.ab: bg[t] = []
        for t in range(64):
            par = t & 1
            sd, sn = (S0, S1) if par == 0 else (S1, S0)
            p, pp = PP + 8*par, PP + 8*(1 - par)
            isb = t in tbs and not ('b' in cfg.ab and t > tbs[1])
            if cfg.stamps == 2 and t - 1 in tbs: stamp()
            if isb and half == 1: a(f"s_waitcnt vmcnt({cnt('D')}) lgkmcnt(0)\ns_barrier")
            else: a("s_waitcnt lgkmcnt(0)")
            assert not (isb and vm[t])
            for k, x in pre[t]: a(x if k == "text" else f"s_waitcnt vmcnt({cnt(x)})")
            emit_vm(vm[t][:1])
            if t + 2 < 64: a(f"ds_read_b128 {vr(KF+4*par,4)}, v{V_KA} offset:{kv_off(t+2)}")
            a(f"s_mov_b64 exec, {sr(S_VM,2)}")
            a(f"ds_read_b128 {vr(VF+8*par,4)}, v{V_VA} offset:{kv_off(t)}")
            a(f"ds_read_b128 {vr(VF+8*par+4,4)}, v{V_VA} offset:{kv_off(t)+512}")
            a("s_mov_b64 exec, -1")
            for l in head[t]: a(l)
            emit_vm(vm[t][1:])
            if isb and half == 0: a(f"s_waitcnt vmcnt({cnt('D')})\ns_barrier")
            mf = []
            if t + 1 < 64: mf.append(mfma32(sn, KF + 4*(1-par), QF, CC))
            if t >= 1:
                vp = VF + 8*(1-par)
                mf.append(mfma32(OO, vp, pp, None if t == 1 else OO))
                mf += bg[t][:1]
                mf.append(mfma32(OO, vp + 4, pp + 4, OO))
                mf += bg[t][1:]
            if cfg.stamps == 3: a(f"s_memtime {sr(S_TS,2)}")
            a(".p2align 3")
            pos = {0: [], 1: [1], 2: [1, 4], 3: [1, 3, 6], 4: [1, 3, 5, 7], 5: [0, 2, 3.5, 5, 6.5]}[len(mf)]
            k = 0
            for i in range(8):
                if k < len(mf) and pos[k] == i: a(mf[k]); k += 1
                if i == (cfg.pp if half else cfg.pa):
                    a(f"v_exp_f32 v{sd+2*i}, v{sd+2*i}\ns_setprio {cfg.pv[half]}\nv_exp_f32_e64 v{sd+2*i+1}, v{sd+2*i+1}")
                else:
                    a(f"v_exp_f32 v{sd+2*i}, v{sd+2*i}\nv_exp_f32 v{sd+2*i+1}, v{sd+2*i+1}")
                if k < len(mf) and pos[k] == i + 0.5: a(mf[k]); k += 1
                if i >= 1: a(f"v_cvt_pk_bf16_f32 v{p+i-1}, v{sd+2*i-2}, v{sd+2*i-1}")
            assert k == len(mf)
            a(f"v_cvt_pk_bf16_f32 v{p+7}, v{sd+14}, v{sd+15}")
            if cfg.stamps == 3: a(f"s_waitcnt lgkmcnt(0)\nv_writelane_b32 v253, s{S_TS}, {t}\nv_writelane_b32 v254, s{S_TS2}, {t}\ns_memtime {sr(S_TS2,2)}")
            if (cfg.pp if half else cfg.pa) is not None: a("s_setprio 0")
        a("s_waitcnt lgkmcnt(0)\ns_nop 0")
        a(mfma32(OO, VF + 8, PP + 8, OO)); a(mfma32(OO, VF + 12, PP + 12, OO))
    a(f"s_cmp_ge_u32 s{S_W}, 4\ns_cbranch_scc1 L_attB")
    n0 = nst[0]
    attention(0)
    a("s_branch L_att_end")
    a.label("L_attB")
    nst[0] = n0
    attention(1)
    a.label("L_att_end")
    stamp(); pad("att1")
    a(f"s_lshl_b32 s{S_T0}, s{S_KQ}, 13\ns_add_u32 s{S_T0}, s{S_T0}, {L_WO}")
    a(f"v_add_u32 v{V_DA}, s{S_T0}, v{V_DA}\nv_xor_b32 v{V_DA+1}, 64, v{V_DA}")
    a(f"v_add_u32 v5, s{S_W2K}, v{V_L16}")
    a(f"s_mov_b32 s{S_T2}, {hex(f2u(2.0**120))}\ns_mov_b32 s{S_T3}, {hex(f2u(2.0**-105))}")
    a.nop(6)
    a(f"v_add_f32 v8, abs(v{OO}), abs(v{OO+1})")
    for i in range(2, 8): a(f"v_add_f32 v8, abs(v{OO+i}), v8")
    a(f"""
    v_add_f32 v9, v8, v{OO+8}
    v_cmp_gt_f32 {sr(S_EX,2)}, s{S_T3}, v8
    v_cmp_ngt_f32 vcc, s{S_T2}, v9
    s_nop 1
    s_or_b64 vcc, vcc, {sr(S_EX,2)}
    """)
    a("s_branch L_fb" if cfg.force_fb else "s_cbranch_scc1 L_fb")
    a.label("L_norm")
    a(f"v_rcp_f32 v8, v{OO+8}\ns_nop 0\nv_mov_b32 v9, v8")
    for i in range(0, 8, 2): a(f"v_pk_mul_f32 {vr(OO+i,2)}, {vr(OO+i,2)}, v[8:9]")
    for i in range(4): a(f"v_cvt_pk_bf16_f32 v{12+i}, v{OO+2*i}, v{OO+2*i+1}")
    for i in range(4): a(f"v_min_u32 v{12+i}, -2, v{12+i}")
    a(f"buffer_store_dwordx4 v[12:15], v{V_L16}, {sr(R_WS,4)}, s{S_OST} offen sc1")
    a("s_waitcnt vmcnt(1)\ns_barrier")
    def scatter(src, bases):
        for z in (1, 2, 3):
            a(f"v_xor_b32 v6, {z*4096}, v5" + (f"\nv_add_u32 v6, {bases[z-1]}, v6" if bases[z-1] >= 65536 - 1024 else ""))
            off = bases[z-1] if bases[z-1] < 65536 - 1024 else 0
            a(f"ds_write_b128 v6, {vr(src+8*z,4)} offset:{off}\nds_write_b128 v6, {vr(src+8*z+4,4)} offset:{off+1024}")
    def gather(dst, bases):
        for z in (1, 2, 3):
            if bases[z-1] >= 65536 - 1024:
                a(f"v_add_u32 v6, {bases[z-1]}, v5"); ad, off = 6, 0
            else:
                ad, off = 5, bases[z-1]
            a(f"ds_read_b128 {vr(dst+8*(z-1),4)}, v{ad} offset:{off}\nds_read_b128 {vr(dst+8*(z-1)+4,4)}, v{ad} offset:{off+1024}")
    def reduce(acc0, t):
        for i in range(0, 8, 2): a(f"v_pk_add_f32 {vr(t+i,2)}, {vr(t+i,2)}, {vr(t+8+i,2)}")
        for i in range(0, 8, 2): a(f"v_pk_add_f32 {vr(acc0+i,2)}, {vr(acc0+i,2)}, {vr(t+16+i,2)}")
        for i in range(0, 8, 2): a(f"v_pk_add_f32 {vr(acc0+i,2)}, {vr(acc0+i,2)}, {vr(t+i,2)}")
    ybases = [L_KV, L_KV + 16384, L_KV + 32768]
    sbases = [0, 16384, L_R]
    scatter(YY, ybases)
    WOF, OF, SS, TT = 16, 160, 80, 224
    for j in range(8):
        for ct in range(2):
            for t in range(2):
                a(f"ds_read_b64_tr_b16 {vr(WOF + 8*j + 4*ct + 2*t,2)}, v{V_DA+ct} offset:{j*2048 + t*512}")
            if j in (2, 5) and ct == 1: a("s_waitcnt lgkmcnt(4)")
    a(f"s_add_u32 s{S_T1}, s{S_OLD}, 4096\ns_mov_b32 s{S_SPIN}, 0")
    def oload(j): return f"buffer_load_dwordx4 {vr(OF+4*j,4)}, v{V_L16}, {sr(R_WS,4)}, s{S_OLD if j < 4 else S_T1} offen offset:{1024*(j&3)} sc1"
    a("s_waitcnt lgkmcnt(0)\ns_barrier")
    gather(TT, ybases)
    for j in range(8): a(oload(j))
    a("s_waitcnt lgkmcnt(0)")
    reduce(YY, TT)
    a(f"v_mov_b32 v8, {hex(f2u(-math.log2(math.e)))}\nv_mov_b32 v9, v8")
    for i in range(0, 8, 2): a(f"v_pk_mul_f32 {vr(TT+i,2)}, {vr(YY+i,2)}, v[8:9]")
    for i in range(8): a(f"v_exp_f32 v{TT+i}, v{TT+i}")
    for i in range(8): a(f"v_add_f32 v{TT+i}, 1.0, v{TT+i}")
    for i in range(8): a(f"v_rcp_f32 v{TT+i}, v{TT+i}")
    XU = 136
    for i in range(4): a(f"v_lshlrev_b32 v{XU+2*i}, 16, v{V_XR+i}\nv_and_b32 v{XU+2*i+1}, 0xffff0000, v{V_XR+i}")
    for i in range(0, 8, 2): a(f"v_pk_mul_f32 {vr(YY+i,2)}, {vr(YY+i,2)}, {vr(TT+i,2)}")
    stamp()
    for j in range(8):
        a.label(f"L_ochk{j}")
        a(f"""
        s_waitcnt vmcnt({7-j})
        v_max3_u32 v8, v{OF+4*j}, v{OF+4*j+1}, v{OF+4*j+2}
        v_max_u32 v8, v8, v{OF+4*j+3}
        v_cmp_eq_u32 vcc, -1, v8
        s_nop 0
        s_cbranch_vccnz L_oretry{j}
        """)
        a.label(f"L_ook{j}")
        for ct in range(2):
            a(mfma32(SS + 16*ct, WOF + 8*j + 4*ct, OF + 4*j, None if j == 0 else SS + 16*ct))
    stamp()
    a.nop(10)
    scatter(SS, sbases)
    a("s_waitcnt lgkmcnt(0)\ns_barrier")
    gather(TT, sbases)
    a("s_waitcnt lgkmcnt(0)")
    reduce(SS, TT)
    for i in range(0, 8, 2): a(f"v_pk_fma_f32 {vr(SS+i,2)}, {vr(SS+i,2)}, {vr(YY+i,2)}, {vr(XU+i,2)}")
    for i in range(4): a(f"v_cvt_pk_bf16_f32 v{12+i}, v{SS+2*i}, v{SS+2*i+1}")
    a(f"buffer_store_dwordx4 v[12:15], v{V_FO}, {sr(R_OUT,4)}, 0 offen {cfg.oflag}")
    if cfg.stamps:
        a("s_waitcnt vmcnt(0)")
        stamp(True)
        a(f"s_lshl_b32 s{S_T0}, s2, 3\ns_add_u32 s{S_T0}, s{S_T0}, s{S_W}\ns_lshl_b32 s{S_T0}, s{S_T0}, 8\ns_add_u32 s{S_T0}, s{S_T0}, {WS_DBG}")
        a(f"v_lshlrev_b32 v2, 2, v{V_LANE}\nbuffer_store_dword v{V_STAMP}, v2, {sr(R_WS,4)}, s{S_T0} offen")
        if cfg.stamps == 3:
            a(f"s_add_u32 s{S_T0}, s{S_T0}, 0x80000\nbuffer_store_dword v253, v2, {sr(R_WS,4)}, s{S_T0} offen\ns_add_u32 s{S_T0}, s{S_T0}, 0x80000\nbuffer_store_dword v254, v2, {sr(R_WS,4)}, s{S_T0} offen")
    pad("end")
    a.label("L_end")
    a("s_endpgm")
    for j in range(8):
        a.label(f"L_oretry{j}")
        a(f"s_add_u32 s{S_SPIN}, s{S_SPIN}, 1\ns_cmp_ge_u32 s{S_SPIN}, {SPIN_MAX}\ns_cbranch_scc1 L_ook{j}")
        for k in range(j, 8): a(oload(k))
        a(f"s_branch L_ochk{j}")
    a.label("L_fb")
    a(f"v_mov_b32 v8, 0xff800000\ns_mov_b32 s{S_CNT}, {WS_KV}")
    a(f"v_subrev_u32 v10, {L_KV}, v{V_VA}")
    a.label("L_fb1")
    a(f"buffer_load_dwordx4 {vr(KF,4)}, v{V_L16}, {sr(R_WS,4)}, s{S_CNT} offen sc1\ns_waitcnt vmcnt(0)")
    a(mfma32(S0, KF, QF, None)); a.nop(12)
    for l in maxtree(S0, 8, init=True): a(l)
    a(f"s_add_u32 s{S_CNT}, s{S_CNT}, 2048\ns_cmp_lt_u32 s{S_CNT}, {WS_KV + 64*2048}\ns_cbranch_scc1 L_fb1")
    setC(8, 0.0)
    for i in range(16): a(f"v_mov_b32 v{OO+i}, 0")
    a(f"s_mov_b32 s{S_CNT}, {WS_KV}")
    a.label("L_fb2")
    a(f"buffer_load_dwordx4 {vr(KF,4)}, v{V_L16}, {sr(R_WS,4)}, s{S_CNT} offen sc1")
    a(f"s_mov_b64 exec, {sr(S_VM,2)}")
    a(f"buffer_load_dwordx4 {vr(VF,4)}, v10, {sr(R_WS,4)}, s{S_CNT} offen sc1")
    a(f"buffer_load_dwordx4 {vr(VF+4,4)}, v10, {sr(R_WS,4)}, s{S_CNT} offen offset:512 sc1")
    a("s_mov_b64 exec, -1\ns_waitcnt vmcnt(0)")
    a(mfma32(S0, KF, QF, CC)); a.nop(12)
    for i in range(16): a(f"v_exp_f32 v{S0+i}, v{S0+i}")
    for i in range(8): a(f"v_cvt_pk_bf16_f32 v{PP+i}, v{S0+2*i}, v{S0+2*i+1}")
    a.nop(2)
    a(mfma32(OO, VF, PP, OO)); a(mfma32(OO, VF + 4, PP + 4, OO))
    a(f"s_add_u32 s{S_CNT}, s{S_CNT}, 2048\ns_cmp_lt_u32 s{S_CNT}, {WS_KV + 64*2048}\ns_cbranch_scc1 L_fb2")
    a.nop(12)
    a("s_branch L_norm")
    a.label("L_code_end")
    return a

HEADER = open(f"cdna_kernels/{NAME}.s.ref").read().split("; Override launch")[0]
def wrap(a):
    s = HEADER + "; @launch grid=(256,1,1) block=(512,1,1) lds=163840\n"
    s += f""".amdgcn_target "amdgcn-amd-amdhsa--gfx950"
.text
.globl {NAME}_kernel
.p2align 8
.type {NAME}_kernel,@function
{NAME}_kernel:
"""
    s += a.text()
    s += f""".section .rodata,"a"
.p2align 6
.amdhsa_kernel {NAME}_kernel
  .amdhsa_next_free_vgpr 256
  .amdhsa_next_free_sgpr 100
  .amdhsa_accum_offset 256
  .amdhsa_group_segment_fixed_size 0
  .amdhsa_kernarg_size 96
  .amdhsa_user_sgpr_count 2
  .amdhsa_user_sgpr_kernarg_segment_ptr 1
  .amdhsa_system_sgpr_workgroup_id_x 1
.end_amdhsa_kernel
"""
    return s

if __name__ == "__main__":
    cfg = Cfg()
    out = sys.argv[1]
    for kv in sys.argv[2:]:
        k, v = kv.split("=")
        setattr(cfg, k, eval(v))
    a = gen(cfg)
    errs = check(a.lines)
    for e in errs: print("HAZARD need %d have %d:\n   %s\n   %s" % (e[2], e[3], e[0], e[1]))
    open(out, "w").write(wrap(a))
    print("wrote", out, len(a.lines), "lines", len(errs), "hazards")
```

```python
import re, struct

def f2u(x):
    return struct.unpack("<I", struct.pack("<f", x))[0]

def vr(a, n=1):
    return f"v{a}" if n == 1 else f"v[{a}:{a+n-1}]"

def sr(a, n=1):
    return f"s{a}" if n == 1 else f"s[{a}:{a+n-1}]"

class Asm:
    def __init__(self):
        self.lines = []
    def __call__(self, s):
        for l in s.split("\n"):
            l = l.strip()
            if l:
                self.lines.append(l)
    def label(self, name):
        self.lines.append(name + ":")
    def nop(self, n):
        while n > 0:
            k = min(n, 16)
            self.lines.append(f"s_nop {k-1}")
            n -= k
    def text(self):
        out = []
        for l in self.lines:
            if l.endswith(":") or l.startswith(".") or l.startswith(";"):
                out.append(l)
            else:
                if l.startswith("s_sleep"): l += "                  ; back-off before polling again a hand-off that has not arrived yet"
                if l.startswith("s_call_b64") and "L_stub" in l: l += "    ; fetches the first line of that code page ahead of its use"
                if l.startswith("s_atomic_add"): l += "    ; this workgroup has published its K/V rows, statistics and column sums"
                out.append("    " + l)
        return "\n".join(out) + "\n"

_reg = re.compile(r"(?<![\w])([vsa])(?:(\d+)|\[(\d+):(\d+)\])")
def regs(op):
    out = set()
    for m in _reg.finditer(op):
        k = m.group(1)
        if m.group(2) is not None:
            out.add((k, int(m.group(2))))
        else:
            for i in range(int(m.group(3)), int(m.group(4)) + 1):
                out.add((k, i))
    if re.search(r"\bvcc\b", op): out.add(("s", "vcc"))
    if re.search(r"\bm0\b", op): out.add(("s", "m0"))
    if re.search(r"\bexec\b", op): out.add(("s", "exec"))
    return out

TRANS = ("v_exp_f32", "v_log_f32", "v_rcp_f32", "v_rsq_f32", "v_sqrt_f32")
def parse(line):
    line = line.split(";")[0].strip()
    if not line or line.endswith(":") or line.startswith("."):
        return None
    p = line.split(None, 1)
    op = p[0]
    rest = p[1] if len(p) > 1 else ""
    ops = [x.strip() for x in re.split(r",\s*(?![^\[]*\])", rest)] if rest else []
    d = dict(op=op, line=line, w=set(), r=set(), kind="other", states=1)
    base = op.replace("_e32", "").replace("_e64", "")
    if op == "s_nop":
        d["states"] = int(ops[0]) + 1
        return d
    if op.startswith("v_smfmac"):
        d["kind"] = "mfma"
        d["w"] = regs(ops[0]); d["A"] = regs(ops[1]) | regs(ops[2]) | regs(ops[3]); d["C"] = regs(ops[0])
        d["r"] = d["A"] | d["C"]; d["cls"], d["passes"] = "xdl", 8
        assert "32x32x32" in op
        return d
    if op.startswith("v_mfma"):
        d["kind"] = "mfma"
        d["w"] = regs(ops[0]); d["A"] = regs(ops[1]) | regs(ops[2]); d["C"] = regs(ops[3])
        d["r"] = d["A"] | d["C"]
        if "32x32x16" in op: d["cls"], d["passes"] = "xdl", 8
        elif "32x32x8_bf16" in op: d["cls"], d["passes"] = "xdl", 8
        elif "16x16x32" in op or "16x16x16_bf16" in op: d["cls"], d["passes"] = "xdl", 4
        elif "32x32x2_f32" in op: d["cls"], d["passes"] = "sg", 16
        elif "16x16x4_f32" in op: d["cls"], d["passes"] = "sg", 8
        else: raise Exception("unknown mfma " + op)
        return d
    if op.startswith("v_"):
        d["kind"] = "valu"
        if base.startswith("v_cmp"):
            d["w"] = regs(ops[0]); d["r"] = set().union(*[regs(o) for o in ops[1:]])
        elif base.startswith("v_permlane"):
            d["w"] = regs(ops[0]) | regs(ops[1]); d["r"] = set(d["w"]); d["perm"] = True
        elif base == "v_swap_b32":
            d["w"] = regs(ops[0]) | regs(ops[1]); d["r"] = set(d["w"])
        elif base in ("v_add_co_u32", "v_addc_co_u32"):
            d["w"] = regs(ops[0]) | regs(ops[1]); d["r"] = set().union(*[regs(o) for o in ops[2:]])
        else:
            d["w"] = regs(ops[0]); d["r"] = set().union(*[regs(o) for o in ops[1:]]) if len(ops) > 1 else set()
            if base in ("v_fmac_f32", "v_dot2c_f32_bf16", "v_writelane_b32"): d["r"] |= d["w"]
        d["trans"] = base in TRANS
        d["dot"] = base.startswith("v_dot")
        if op.endswith("_dpp"): d["perm"] = True
        d["rl"] = base in ("v_readfirstlane_b32", "v_readlane_b32")
        return d
    if op.startswith("ds_"):
        d["kind"] = "mem"
        if op.startswith("ds_read"):
            d["w"] = regs(ops[0]); d["r"] = regs(ops[1])
        else:
            d["r"] = set().union(*[regs(o) for o in ops])
            if "addtid" in op: d["ldsdma"] = True
        return d
    if op.startswith("buffer_") or op.startswith("global_"):
        d["kind"] = "mem"; d["vmem"] = True
        if op == "buffer_inv": return d
        lds = rest.rstrip().endswith(" lds") or "load_lds" in op
        if lds:
            d["r"] = set().union(*[regs(o) for o in ops]) | {("s", "m0")}; d["ldsdma"] = True
        elif "load" in op:
            d["w"] = regs(ops[0]); d["r"] = set().union(*[regs(o) for o in ops[1:]])
        else:
            d["r"] = set().union(*[regs(o) for o in ops])
            if "x4" in op or "x3" in op:
                d["wide"] = regs(ops[0]) if op.startswith("buffer") else regs(ops[1])
        return d
    if op.startswith("s_"):
        d["kind"] = "salu"
        if op.startswith("s_cmp") or op.startswith("s_bitcmp") or op.startswith("s_cbranch") or op in ("s_waitcnt", "s_barrier", "s_branch", "s_setprio", "s_endpgm", "s_sleep", "s_setpc_b64"):
            d["r"] = set().union(*[regs(o) for o in ops]) if ops else set()
        else:
            d["w"] = regs(ops[0]); d["r"] = set().union(*[regs(o) for o in ops[1:]]) if len(ops) > 1 else set()
        return d
    raise Exception("cannot parse " + line)

XD = {2: 5, 4: 8, 8: 12, 16: 20}
SD = {2: 4, 4: 6, 8: 10, 16: 18}
def need(p, c):
    n = 0
    pv = {x for x in p["w"] if x[0] in "va"}
    ps = {x for x in p["w"] if x[0] == "s"}
    if p["kind"] == "valu":
        if c["kind"] == "mfma" and pv & c["r"]: n = max(n, 3 if p.get("dot") else 2)
        if c["kind"] == "valu":
            if p.get("trans") and not c.get("trans") and pv & c["r"]: n = max(n, 1)
            if c.get("perm") and pv & c["r"]: n = max(n, 2)
            if c.get("rl") and pv & c["r"]: n = max(n, 1)
            if ps & c["r"]: n = max(n, 2)
            if p.get("dot") and c["op"] != p["op"] and pv & (c["r"] | c["w"]): n = max(n, 3)
        if c["kind"] == "mem":
            if c.get("vmem") and ps & c["r"]: n = max(n, 5)
            if p.get("dot") and pv & c["r"]: n = max(n, 3)
            if p.get("trans") and pv & c["r"]: n = max(n, 1)
        if c["kind"] == "salu" and ps & c["r"]: n = max(n, 1)
    if p["kind"] == "salu":
        if c.get("ldsdma") and ("s", "m0") in p["w"]: n = max(n, 1)
    if p["kind"] == "mem" and p.get("wide"):
        if p["wide"] & c["w"]: n = max(n, 2)
    if p["kind"] == "mfma":
        T = XD if p["cls"] == "xdl" else SD
        ps_ = p["passes"]
        if c["kind"] == "mfma":
            if p["w"] & c["A"]: n = max(n, T[ps_])
            ov = p["w"] & (c["C"] | c["w"])
            if ov:
                same = (p["w"] == c["C"] and p["cls"] == c["cls"] and p["passes"] == c["passes"])
                if not same:
                    if p["cls"] == "xdl": n = max(n, {2: 4, 4: 6, 8: 10, 16: 18}[ps_])
                    elif c["cls"] == "sg": n = max(n, {2: 2, 4: 4, 8: 8, 16: 16}[ps_])
        elif c["kind"] in ("valu", "mem"):
            if p["w"] & (c["r"] | c["w"]): n = max(n, T[ps_])
            if c["kind"] == "valu" and p["cls"] == "xdl" and p["C"] & c["w"]: n = max(n, {2: 1, 4: 3, 8: 7, 16: 15}[ps_])
    return n

def check(lines, window=24):
    ins = []; labels = {}
    for l in lines:
        if l.endswith(":") and not l.startswith(";"):
            labels[l[:-1]] = len(ins); continue
        d = parse(l)
        if d: ins.append(d)
    errs = set()
    def walk(p, j, dist, depth):
        while j < len(ins) and dist < window:
            c = ins[j]
            n = need(p, c)
            if n > dist: errs.add((p["line"], c["line"], n, dist))
            dist += c["states"]
            if c["op"] in ("s_endpgm", "s_setpc_b64"): return
            if c["op"].startswith("s_cbranch") or c["op"] == "s_branch":
                tgt = c["line"].split()[1]
                if depth < 4: walk(p, labels[tgt], dist, depth + 1)
                if c["op"] == "s_branch": return
            j += 1
    for i, p in enumerate(ins):
        if p["w"] or p.get("wide"):
            walk(p, i + 1, 0, 0)
    return sorted(errs)
```

```python
import sys, math
from asmlib import Asm, vr, sr, f2u, check

NAME = "recurrent_scan__grouped_kv_mqa__glu_gated_geglu__prompt"

class Cfg:
    stamps = False
    stop = None
    force_fb = False
    shift = 96.0
    nodot = False
    nodma = False
    nord = False
    sizes = [8, 8, 7] + [6]*6 + [5]
    ilen = 6
    g_init = 3
    t_pf = 9
    t_wo = 14
    n_csa = 2
    lead0 = 12
    oflag = ''
    n_early = (0, 99, 1)
    olate = 10
    yfirst = True
    n_g0 = 73
    i_q = 7
    c_arr = 2
    lead = [8, 10, 12, 12, 12, 12]
    n_pre = (2, 4)
    n_fin = (7, 6)
    g_cs = (3, 4, 5, 6)
    g_csc = 9
    bprio = 3
    st_rate = 0.5
    t_flag = 9
    t_kv2 = 6
    m16 = False
    pp = 0
    pos = [(2, 6, 12), (2, 6, 10, 14), (1, 4, 7, 10, 13)]
    pa = 4
    pv = (1, 1)
    ab = ''
    pad = None

WS_KV, WS_ST, WS_FL, WS_CS, WS_O, WS_H, WS_DBG, WS_Q = 0, 0x20000, 0x28000, 0x40000, 0x100000, 0x400000, 0xC00000, 0xE00000
WS_SIZE = 0x1000000
L_X, L_W, L_R = 0, 49152, 147456
L_KV, L_WD, L_WO = 0, 65536, 98304
P_X, P_WQ, P_WK, P_WV, P_WO, P_WG, P_WU, P_WD, P_OUT, P_DBG, P_WS = 4, 6, 8, 10, 12, 16, 18, 20, 22, 24, 26
R_X, R_WKV, R_WD, R_WO, R_OUT, R_DBG, R_WS = 28, 32, 36, 40, 44, 48, 52
S_W, S_RB, S_CB, S_RT64, S_CT8 = 56, 57, 58, 59, 60
S_T16 = 61
S_VM = 62
S_XOFF = 64
S_WOFF = 65
S_HW = 66
S_ONES = 67
S_T0, S_T1, S_T2, S_T3 = 68, 69, 70, 71
S_OST = 72
S_FLG = 73
S_HST = 74
S_KQ, S_RT = 75, 76
S_WDO = 77
S_HLD = 78
S_W4K = 79
S_W2K = 80
S_SPIN = 81
S_WOO = 82
S_OLD = 83
S_EX = 84
S_TS = 86
S_CNT = 88
S_WSTEP = 89
S_TS2 = 90
R_W, R_CW = 92, 96
S_H4K = 3
S_HSB = 14
S_M0W = 15
SPIN_MAX = 1 << 16

V_LANE = 1
V_STAMP = 255
V_L16, V_KA, V_WDD, V_VA, V_DA, V_PO, V_FO, V_XR, QF = 208, 209, 210, 211, 212, 214, 215, 216, 220
V_GA = 0

def mfma32(d, a, b, c):
    cs = "0" if c is None else vr(c, 16)
    return f"v_mfma_f32_32x32x16_bf16 {vr(d,16)}, {vr(a,4)}, {vr(b,4)}, {cs}"
V_IDX = 48
def smf(d, a, b):
    return f"v_smfmac_f32_32x32x32_bf16 {vr(d,16)}, {vr(a,4)}, {vr(b,8)}, v{V_IDX}"
def mfma16(d, a, b, c):
    cs = "0" if c is None else vr(c, 4)
    return f"v_mfma_f32_16x16x32_bf16 {vr(d,4)}, {vr(a,4)}, {vr(b,4)}, {cs}"

def gen(cfg):
    a = Asm()
    nst = [0]
    def stamp(final=False):
        if not cfg.stamps: return
        i = nst[0]; nst[0] += 1
        if cfg.stamps == 5:
            if final: i = 1
            elif i: return
        a(f"s_memrealtime {sr(S_TS,2)}\ns_memtime {sr(S_TS2,2)}\ns_waitcnt lgkmcnt(0)\nv_writelane_b32 v{V_STAMP}, s{S_TS}, {i}\nv_writelane_b32 v{V_STAMP}, s{S_TS2}, {32+i}")
    def pad(pt):
        if not cfg.pad or cfg.pad[0] != pt: return
        if len(cfg.pad) > 2:
            inv = cfg.pad[2] == 2
            a(f"s_and_b32 s{S_T0}, s{S_TS}, 0x7fffffff")
            if inv: a(f"s_not_b32 s{S_T0}, s{S_T0}")
            a(f"v_mov_b32 v2, s{S_T0}\ns_mov_b64 exec, 1\nbuffer_atomic_umax v2, off, {sr(R_DBG,4)}, 0 offset:4 sc1\ns_mov_b64 exec, -1")
            a(f"L_pad0:\ns_memrealtime {sr(S_TS2,2)}\ns_waitcnt lgkmcnt(0)\ns_sub_u32 s{S_TS2}, s{S_TS2}, s{S_TS}\ns_cmp_lt_u32 s{S_TS2}, {int(cfg.pad[1]*100) - 1500}\ns_cbranch_scc1 L_pad0")
            a(f"buffer_load_dword v2, off, {sr(R_DBG,4)}, 0 offset:4 sc1\ns_waitcnt vmcnt(0)\nv_readfirstlane_b32 s{S_T0}, v2\ns_nop 3")
            if inv: a(f"s_not_b32 s{S_T0}, s{S_T0}")
            a(f"s_and_b32 s{S_TS}, s{S_TS}, 0x80000000\ns_or_b32 s{S_TS}, s{S_TS}, s{S_T0}")
        a(f"L_pad:\ns_memrealtime {sr(S_TS2,2)}\ns_waitcnt lgkmcnt(0)\ns_sub_u32 s{S_TS2}, s{S_TS2}, s{S_TS}\ns_cmp_lt_u32 s{S_TS2}, {int(cfg.pad[1]*100)}\ns_cbranch_scc1 L_pad")
    def srd(r, p, size):
        a(f"s_mov_b32 s{r}, s{p}\ns_and_b32 s{r+1}, s{p+1}, 0xffff\ns_mov_b32 s{r+2}, {hex(size)}\ns_mov_b32 s{r+3}, 0x20000")

    a(f"s_cmp_ge_u32 s2, 256\ns_cbranch_scc1 L_end")
    if cfg.pad: a(f"s_memrealtime {sr(S_TS,2)}")
    a(f"s_load_dwordx16 s[4:19], s[0:1], 0\ns_load_dwordx8 s[20:27], s[0:1], 64")
    if cfg.stamps:
        a(f"v_mov_b32 v{V_STAMP}, 0")
    a(f"v_lshrrev_b32 v2, 6, v0\nv_and_b32 v{V_LANE}, 63, v0")
    a(f"v_readfirstlane_b32 s{S_W}, v2")
    a(f"""
    s_and_b32 s{S_T0}, s2, 7
    s_lshr_b32 s{S_T1}, s2, 3
    s_and_b32 s{S_T2}, s{S_T0}, 1
    s_lshl_b32 s{S_T2}, s{S_T2}, 3
    s_and_b32 s{S_CT8}, s{S_T1}, 7
    s_add_u32 s{S_RB}, s{S_T2}, s{S_CT8}
    s_lshr_b32 s{S_T1}, s{S_T1}, 3
    s_lshr_b32 s{S_T2}, s{S_T0}, 1
    s_lshl_b32 s{S_T2}, s{S_T2}, 2
    s_add_u32 s{S_CB}, s{S_T2}, s{S_T1}
    s_lshl_b32 s{S_T2}, s{S_T0}, 2
    s_add_u32 s{S_RT64}, s{S_T2}, s{S_T1}
    s_and_b32 s{S_HW}, s{S_W}, 3
    s_lshl_b32 s{S_H4K}, s{S_HW}, 12
    v_lshlrev_b32 v{V_L16}, 4, v{V_LANE}
    s_mov_b32 s{R_X+2}, 0x200000
    s_mov_b32 s{R_X+3}, 0x20000
    s_cmp_ge_u32 s{S_W}, 4
    s_cbranch_scc1 L_helper
    """)

    sizes = cfg.sizes
    assert sum(sizes) == 64
    starts = [sum(sizes[:i]) for i in range(len(sizes))]
    S0, S1, PP, OO, CC, KF, VF = 16, 32, 48, 64, 80, 100, 108
    YY, HF, DF = 128, 160, 192
    HO = 160
    def kv_off(t):
        c = max(i for i in range(len(starts)) if starts[i] <= t)
        return ((c + 1) % 3) * 16384 + (t - starts[c]) * 2048
    qload = f"buffer_load_dwordx4 {vr(QF,4)}, v{V_L16}, {sr(R_WS,4)}, s{S_T2} offen sc1"

    XS = [0, 1, 2, 0, 1, 2, 0, 1]
    L_PX = L_X + 2*16384
    def common_setup():
        srd(R_WD, P_WD, 1792 * 1024)
        srd(R_WO, P_WO, 512 * 1024)
        srd(R_OUT, P_OUT, 0x200000)
        a(f"""
        s_lshl_b32 s{S_W4K}, s{S_W}, 12
        s_lshl_b32 s{S_W2K}, s{S_W}, 11
        s_mov_b32 s{S_VM}, 0xffff
        s_mov_b32 s{S_VM+1}, 0xffff
        s_lshr_b32 s{S_KQ}, s{S_W}, 1
        s_and_b32 s{S_RT}, s{S_W}, 1
        s_lshl_b32 s{S_T2}, s{S_RT64}, 1
        s_add_u32 s{S_T2}, s{S_T2}, s{S_RT}
        s_lshl_b32 s{S_T0}, s{S_T2}, 3
        s_add_u32 s{S_T0}, s{S_T0}, s{S_CT8}
        s_lshl_b32 s{S_T0}, s{S_T0}, 2
        s_add_u32 s{S_T0}, s{S_T0}, s{S_KQ}
        s_lshl_b32 s{S_T0}, s{S_T0}, 10
        s_add_u32 s{S_OST}, s{S_T0}, {WS_O}
        s_lshl_b32 s{S_T0}, s2, 7
        s_lshl_b32 s{S_T1}, s{S_W}, 2
        s_add_u32 s{S_T0}, s{S_T0}, s{S_T1}
        s_add_u32 s{S_FLG}, s{S_T0}, {WS_FL}
        s_mul_i32 s{S_T0}, s{S_KQ}, {448*1024}
        s_lshl_b32 s{S_T1}, s{S_RT}, 15
        s_add_u32 s{S_T0}, s{S_T0}, s{S_T1}
        s_lshl_b32 s{S_T1}, s{S_CT8}, 7
        s_add_u32 s{S_WDO}, s{S_T0}, s{S_T1}
        s_lshl_b32 s{S_T0}, s{S_W}, 15
        s_add_u32 s{S_WOO}, s{S_T0}, s{S_T1}
        s_mul_i32 s{S_T0}, s{S_T2}, 112
        s_mul_i32 s{S_T3}, s{S_KQ}, 28
        s_add_u32 s{S_T0}, s{S_T0}, s{S_T3}
        s_lshl_b32 s{S_T0}, s{S_T0}, 10
        s_add_u32 s{S_HLD}, s{S_T0}, {WS_H}
        s_lshl_b32 s{S_T0}, s{S_T2}, 15
        s_lshl_b32 s{S_T3}, s{S_KQ}, 13
        s_add_u32 s{S_T3}, s{S_T0}, s{S_T3}
        s_add_u32 s{S_OLD}, s{S_T3}, {WS_O}
        s_add_u32 s{S_T0}, s{S_T3}, s{S_T1}
        v_lshrrev_b32 v3, 5, v{V_LANE}
        v_bfe_u32 v5, v{V_LANE}, 3, 1
        v_lshl_add_u32 v2, v3, 1, v5
        v_bfe_u32 v7, v{V_LANE}, 4, 1
        v_lshl_add_u32 v4, v7, 2, v2
        v_and_b32 v6, 7, v{V_LANE}
        v_lshlrev_b32 v8, 4, v6
        v_lshl_add_u32 v4, v4, 10, v8
        v_add_u32 v{V_FO}, s{S_T0}, v4
        v_lshlrev_b32 v2, 8, v2
        v_lshl_add_u32 v2, v7, 7, v2
        v_lshl_add_u32 v2, v5, 4, v2
        v_and_b32 v4, 3, v6
        v_lshl_add_u32 v2, v4, 5, v2
        v_lshrrev_b32 v4, 2, v6
        v_lshl_add_u32 v2, v4, 12, v2
        s_lshl_b32 s{S_T0}, s{S_RT}, 13
        s_lshl_b32 s{S_T1}, s{S_KQ}, 10
        s_add_u32 s{S_T0}, s{S_T0}, s{S_T1}
        v_add_u32 v{V_GA}, s{S_T0}, v2
        v_add_u32 v{V_KA}, {L_KV}, v{V_L16}
        v_and_b32 v2, 15, v{V_LANE}
        v_lshl_add_u32 v2, v3, 4, v2
        v_lshlrev_b32 v2, 4, v2
        v_add_u32 v{V_VA}, {L_KV + 1024}, v2
        v_lshrrev_b32 v5, 3, v{V_LANE}
        v_and_b32 v6, 7, v{V_LANE}
        v_bfe_u32 v7, v{V_LANE}, 4, 1
        v_lshlrev_b32 v8, 2, v7
        v_xor_b32 v6, v6, v8
        v_lshlrev_b32 v6, 4, v6
        v_lshl_add_u32 v{V_WDD}, v5, 10, v6
        v_and_b32 v2, 1, v{V_LANE}
        v_bfe_u32 v4, v{V_LANE}, 1, 1
        v_lshl_add_u32 v2, v2, 1, v4
        v_bfe_u32 v5, v{V_LANE}, 2, 2
        v_lshl_add_u32 v4, v3, 3, v5
        v_lshlrev_b32 v4, 7, v4
        v_and_b32 v6, 2, v5
        v_xor_b32 v6, v6, v7
        v_lshl_add_u32 v6, v6, 5, v4
        v_and_b32 v8, 3, v{V_LANE}
        v_lshl_add_u32 v6, v8, 3, v6
        v_lshl_add_u32 v4, v2, 3, v4
        s_lshl_b32 s{S_T0}, s{S_KQ}, 13
        s_add_u32 s{S_T0}, s{S_T0}, {L_WD}
        v_add_u32 v{V_DA}, s{S_T0}, v6
        v_xor_b32 v{V_DA+1}, 64, v{V_DA}
        """)
        a(f"""
        s_lshr_b32 s{S_T0}, s{S_RT64}, 4
        s_lshl_b32 s{S_T1}, s{S_KQ}, 1
        s_add_u32 s{S_T0}, s{S_T0}, s{S_T1}
        s_bfe_u32 s{S_T2}, s{S_RT64}, 0x30001
        s_lshl_b32 s{S_T2}, s{S_T2}, 3
        s_add_u32 s{S_T0}, s{S_T0}, s{S_T2}
        s_lshl_b32 s{S_T0}, s{S_T0}, 7
        v_and_b32 v2, 3, v{V_LANE}
        v_lshlrev_b32 v6, 2, v2
        v_lshl_add_u32 v6, v5, 13, v6
        v_add_u32 v6, s{S_T0}, v6
        s_and_b32 s{S_T0}, s2, 0xc7
        s_lshl_b32 s{S_T1}, s{S_T1}, 3
        s_add_u32 s{S_T0}, s{S_T0}, s{S_T1}
        s_lshl_b32 s{S_T0}, s{S_T0}, 7
        s_lshl_b32 s{S_T1}, s{S_RT}, 2
        s_add_u32 s{S_T0}, s{S_T0}, s{S_T1}
        v_and_b32 v8, 1, v5
        v_lshlrev_b32 v8, 10, v8
        v_lshl_add_u32 v8, v2, 3, v8
        v_cmp_gt_u32 vcc, 16, v{V_LANE}
        v_add_u32 v8, s{S_T0}, v8
        s_nop 0
        v_cndmask_b32 v{V_PO}, v8, v6, vcc
        """)

    def img_params(simg, sstride, soff):
        a(f"""
        s_lshr_b32 s{S_T0}, s{S_CB}, 2
        s_and_b32 s{S_T1}, s{S_CB}, 3
        s_mul_i32 s{soff}, s{S_T0}, 896
        s_lshl_b32 s{S_T2}, s{S_T1}, 8
        s_add_u32 s{soff}, s{soff}, s{S_T2}
        s_lshr_b32 s{S_T2}, s{simg}, 1
        s_lshl_b32 s{S_T1}, s{S_T1}, 1
        s_add_u32 s{S_T1}, s{S_T1}, s{S_T2}
        s_lshl_b32 s{S_T2}, s{S_T2}, 7
        s_add_u32 s{soff}, s{soff}, s{S_T2}
        s_lshl_b32 s{S_T0}, s{S_T0}, 1
        s_and_b32 s{S_T2}, s{simg}, 1
        s_add_u32 s{S_T0}, s{S_T0}, s{S_T2}
        s_lshl_b32 s{S_T0}, s{S_T0}, 7
        s_movk_i32 s{sstride}, 3584
        s_cmp_eq_u32 s{S_T1}, 7
        s_cselect_b32 s{soff}, s{S_T0}, s{soff}
        s_cselect_b32 s{sstride}, 1024, s{sstride}
        """)
    def img_srd(r, sstride):
        a(f"""
        s_cmp_eq_u32 s{S_T2}, 0
        s_cselect_b32 s{r}, s{P_WG}, s{P_WU}
        s_cselect_b32 s{r+1}, s{P_WG+1}, s{P_WU+1}
        s_cmp_eq_u32 s{S_T1}, 7
        s_cselect_b32 s{r}, s{P_WQ}, s{r}
        s_cselect_b32 s{r+1}, s{P_WQ+1}, s{r+1}
        s_and_b32 s{r+1}, s{r+1}, 0xffff
        s_lshl_b32 s{r+2}, s{sstride}, 9
        s_mov_b32 s{r+3}, 0x20000
        """)

    ACC, XF, WF, V_XA, V_WR = 16, 144, 176, 192, 196
    V_ST, V_CSL, V_K, RA, RBm = 224, 232, 236, 4, 198
    def acc(ti, rt): return ACC + 64*ti + 16*rt
    CL, CSUM = 224, 240
    L_CNT = L_W + 8192
    a(f"""
    v_and_b32 v5, 15, v{V_LANE}
    v_lshrrev_b32 v6, 4, v{V_LANE}
    v_lshrrev_b32 v7, 3, v{V_LANE}
    v_and_b32 v4, 7, v{V_LANE}
    v_xor_b32 v2, v6, v4
    v_lshlrev_b32 v2, 4, v2
    v_lshl_add_u32 v249, v7, 10, v2
    v_xor_b32 v250, 64, v249
    v_add_u32 v250, {8192-1024}, v250
    s_lshl_b32 s{S_T16}, s{S_RB}, 3
    s_lshr_b32 s{S_T2}, s{S_CB}, 1
    s_add_u32 s{S_T16}, s{S_T16}, s{S_T2}
    s_lshl_b32 s{S_T0}, s{S_T16}, 14
    s_lshl_b32 s{S_T1}, s{S_HW}, 8
    s_add_u32 s{S_XOFF}, s{S_T0}, s{S_T1}
    s_mov_b32 s{R_WKV+2}, 0x4000
    s_mov_b32 s{R_WKV+3}, 0x20000
    s_and_b32 s{S_CNT}, s{S_RB}, 3
    """)
    img_params(S_CNT, S_WSTEP, S_WOFF)
    a(f"""
    s_and_b32 s{S_T0}, s{S_RB}, 12
    s_add_u32 s{S_T0}, s{S_T0}, s{S_HW}
    s_lshl_b32 s{S_T0}, s{S_T0}, 3
    s_mul_i32 s{S_T0}, s{S_T0}, s{S_WSTEP}
    s_add_u32 s{S_WOFF}, s{S_T0}, s{S_WOFF}
    v_mul_u32_u24 v8, s{S_WSTEP}, v7
    v_lshl_add_u32 v248, v4, 4, v8
    s_add_u32 m0, s{S_H4K}, {L_PX}
    s_and_b32 s{S_T3}, s{S_CB}, 1
    s_waitcnt lgkmcnt(0)
    """)
    stamp()
    a(f"""
    s_mov_b32 s{R_X}, s{P_X}
    s_and_b32 s{R_X+1}, s{P_X+1}, 0xffff
    buffer_load_dwordx4 v249, {sr(R_X,4)}, s{S_XOFF} offen lds
    buffer_load_dwordx4 v250, {sr(R_X,4)}, s{S_XOFF} offen offset:1024 lds
    s_add_u32 m0, s{S_H4K}, {L_PX + 2048}
    s_add_u32 s{S_XOFF}, s{S_XOFF}, 128
    buffer_load_dwordx4 v249, {sr(R_X,4)}, s{S_XOFF} offen lds
    buffer_load_dwordx4 v250, {sr(R_X,4)}, s{S_XOFF} offen offset:1024 lds
    s_cmp_eq_u32 s{S_T3}, 0
    s_cselect_b32 s{R_WKV}, s{P_WK}, s{P_WV}
    s_cselect_b32 s{R_WKV+1}, s{P_WK+1}, s{P_WV+1}
    s_add_u32 m0, s{S_H4K}, {L_R}
    s_and_b32 s{R_WKV+1}, s{R_WKV+1}, 0xffff
    """)
    for e in range(4): a(f"buffer_load_dwordx4 v{V_L16}, {sr(R_WKV,4)}, s{S_H4K} offen offset:{1024*e} lds")
    img_srd(R_CW, S_WSTEP)
    a(f"s_lshl_b32 s{S_WSTEP}, s{S_WSTEP}, 7")
    csld = [f"buffer_load_dwordx4 {vr(CL+4*e,4)}, v248, {sr(R_CW,4)}, s{S_WOFF} offen\ns_add_u32 s{S_WOFF}, s{S_WOFF}, s{S_WSTEP}" for e in range(4)]
    for l in csld[:cfg.n_csa]: a(l)
    a(f"s_getpc_b64 {sr(S_EX,2)}")
    a.label("L_pc")
    a(f"""
    s_lshr_b32 s{S_T0}, s2, 3
    s_lshl_b32 s{S_T0}, s{S_T0}, 2
    s_add_u32 s{S_T0}, s{S_T0}, s{S_W}
    s_lshl_b32 s{S_T0}, s{S_T0}, 9
    v_lshl_add_u32 v2, v{V_LANE}, 7, s{S_T0}
    v_min_u32 v2, L_code_end-L_pc-4, v2
    v_mov_b32 v3, 0
    v_mov_b32 v10, 0
    v_mov_b32 v16, {L_CNT}
    v_lshl_add_u64 v[2:3], v[2:3], 0, {sr(S_EX,2)}
    ds_write_b32 v16, v10
    s_mov_b64 exec, 15
    global_load_dword v9, v[2:3], off
    s_mov_b64 exec, -1
    s_waitcnt lgkmcnt(0)
    s_barrier
    s_mov_b32 s{S_ONES}, 0x3f803f80
    s_add_u32 s{S_T3}, s{S_H4K}, {L_R}
    v_lshlrev_b32 v2, 3, v5
    v_lshl_add_u32 v2, v6, 8, v2
    v_add_u32 v253, s{S_T3}, v2
    v_lshrrev_b32 v3, 1, v5
    v_xor_b32 v3, v3, v6
    v_lshlrev_b32 v3, 4, v3
    v_lshl_add_u32 v3, v5, 7, v3
    v_add_u32 v251, s{S_H4K}, v3
    v_xor_b32 v252, 64, v251
    v_add_u32 v254, s{S_T3}, v{V_L16}
    v_mov_b32 v17, v5
    v_mov_b32 v18, v6
    """)
    srd(R_WS, P_WS, WS_SIZE)
    srd(R_DBG, P_DBG, 256)
    common_setup()
    a(f"""
    v_lshrrev_b32 v6, 1, v5
    v_lshl_add_u32 v6, v7, 1, v6
    v_xor_b32 v6, s{S_HW}, v6
    v_lshl_add_u32 v6, v6, 5, v4
    v_mul_u32_u24 v8, 24576, v7
    v_add_u32 v6, v6, v8
    v_add_u32 v{V_WR}, {L_W}, v6
    v_add_u32 v{V_WR+1}, {L_W + 49152}, v6
    v_and_b32 v2, 31, v{V_LANE}
    v_bfe_u32 v6, v{V_LANE}, 1, 3
    v_xor_b32 v6, v6, v3
    v_lshlrev_b32 v6, 4, v6
    v_lshl_add_u32 v{V_XA}, v2, 7, v6
    v_xor_b32 v{V_XA+1}, 32, v{V_XA}
    v_xor_b32 v{V_XA+2}, 64, v{V_XA}
    v_xor_b32 v{V_XA+3}, 96, v{V_XA}
    v_lshlrev_b32 v206, 3, v2
    v_and_b32 v6, 3, v{V_LANE}
    v_bfe_u32 v8, v{V_LANE}, 2, 1
    v_lshl_add_u32 v6, v8, 3, v6
    v_bfe_u32 v8, v{V_LANE}, 3, 1
    v_lshl_add_u32 v6, v8, 2, v6
    v_lshlrev_b32 v6, 4, v6
    v_lshl_add_u32 v6, v7, 10, v6
    v_lshl_add_u32 v207, v3, 13, v6
    s_lshr_b32 s{S_T0}, s{S_CB}, 2
    s_and_b32 s{S_T1}, s{S_CB}, 3
    s_mul_i32 s{S_T2}, s{S_RB}, 448
    s_mul_i32 s{S_T3}, s{S_T0}, 28
    s_add_u32 s{S_T2}, s{S_T2}, s{S_T3}
    s_lshl_b32 s{S_T3}, s{S_T1}, 3
    s_add_u32 s{S_T2}, s{S_T2}, s{S_T3}
    s_add_u32 s{S_T2}, s{S_T2}, s{S_HW}
    s_lshl_b32 s{S_T2}, s{S_T2}, 10
    s_add_u32 s{S_HST}, s{S_T2}, {WS_H}
    s_add_u32 s{S_HSB}, s{S_HST}, 4096
    s_lshl_b32 s{S_T2}, s{S_RB}, 7
    s_lshl_b32 s{S_T3}, s{S_T0}, 3
    s_add_u32 s{S_T2}, s{S_T2}, s{S_T3}
    s_add_u32 s{S_T2}, s{S_T2}, s{S_HW}
    s_lshl_b32 s{S_T2}, s{S_T2}, 10
    s_add_u32 s{S_T2}, s{S_T2}, {WS_Q}
    s_cmp_eq_u32 s{S_T1}, 3
    s_cselect_b32 s{S_HSB}, s{S_T2}, s{S_HSB}
    v_mov_b32 v10, 0
    v_mov_b32 v11, 1
    v_mov_b32 v12, -1
    v_mov_b32 v13, -1
    v_mov_b32 v14, -1
    v_mov_b32 v15, -1
    v_and_b32 v6, 7, v{V_LANE}
    v_lshl_add_u32 v6, v6, 1, v3
    v_lshl_add_u32 v6, v6, 1, v7
    v_bfe_u32 v8, v{V_LANE}, 3, 1
    v_lshl_add_u32 v6, v6, 1, v8
    v_lshlrev_b32 v8, 4, v6
    s_lshl_b32 s{S_T0}, s{S_CB}, 14
    s_lshl_b32 s{S_T1}, s{S_RB}, 10
    s_add_u32 s{S_T0}, s{S_T0}, s{S_T1}
    s_lshl_b32 s{S_T1}, s{S_HW}, 2
    s_add_u32 s{S_T0}, s{S_T0}, s{S_T1}
    s_add_u32 s{S_CNT}, s{S_T0}, {WS_CS}
    """)
    PX, PW, PACC, PCS, PRS, PSQ, PONE, PSQP, PF1, RD = 24, 40, 56, 60, 64, 68, 72, 76, 77, 80
    for i in range(4): a(f"v_mov_b32 v{PONE+i}, s{S_ONES}")
    init = [f"buffer_store_dwordx4 v[12:15], v{V_L16}, {sr(R_WS,4)}, s{S_T2} offen sc1",
            f"buffer_store_dwordx4 v[12:15], v{V_L16}, {sr(R_WS,4)}, s{S_T2} offen offset:2048 sc1",
            f"s_mov_b64 exec, 3\nbuffer_store_dword v10, v{V_L16}, {sr(R_WS,4)}, s{S_FLG} offen sc1\ns_mov_b64 exec, -1"]
    a(f"v_mov_b32 v202, 0\nv_mov_b32 v{PF1}, 1.0\nv_mov_b32 v{PSQP}, 0\ns_waitcnt vmcnt({cfg.n_csa + 1})")
    stamp()
    for s in range(4): a(f"ds_read_b128 {vr(PX+4*s,4)}, v{251 + (s & 1)} offset:{L_PX + 2048*(s >> 1)}")
    for s in range(4):
        for t in range(2): a(f"ds_read_b64_tr_b16 {vr(PW+4*s+2*t,2)}, v253 offset:{1024*s+128*t}")
    a("s_waitcnt lgkmcnt(8)")
    for i in range(16): a(f"v_dot2c_f32_bf16 v{PSQP}, v{PX+i}, v{PX+i}")
    a(f"s_and_b32 s{S_T0}, s{S_CB}, 1\ns_cmp_eq_u32 s{S_T0}, 0\ns_waitcnt lgkmcnt(0)\ns_cbranch_scc0 L_preV")
    for form in range(2):
        if form == 1: a.label("L_preV")
        def mm(d, w, x, first):
            return mfma16(d, w, x, None if first else d) if form == 0 else mfma16(d, x, w, None if first else d)
        a(f"v_mfma_f32_16x16x4_f32 {vr(PSQ,4)}, v{PF1}, v{PSQP}, 0" if form == 0 else f"v_mfma_f32_16x16x4_f32 {vr(PSQ,4)}, v{PSQP}, v{PF1}, 0")
        for s in range(4):
            a(mm(PRS, PONE, PX + 4*s, s == 0)); a(mm(PCS, PW + 4*s, PONE, s == 0)); a(mm(PACC, PW + 4*s, PX + 4*s, s == 0))
        if form == 0: a("s_branch L_pre_w")
    a.label("L_pre_w")
    a(f"s_cmp_eq_u32 s{S_HW}, 0\ns_cbranch_scc1 L_fin\ns_nop 3")
    for q, r in ((3, PSQ), (2, PRS), (1, PCS), (0, PACC)): a(f"ds_write_b128 v254, {vr(r,4)} offset:{1024*q}")
    a(f"s_waitcnt lgkmcnt(0)\ns_mov_b64 exec, 1\nds_add_u32 v16, v11\ns_mov_b64 exec, -1\ns_branch L_nofin")
    a.label("L_fin")
    a(f"ds_read_b32 v19, v16\ns_waitcnt lgkmcnt(0)\nv_cmp_gt_u32 vcc, 3, v19\ns_nop 0\ns_cbranch_vccnz L_fin")
    for w in (1, 2, 3):
        for q in range(4): a(f"ds_read_b128 {vr(RD + 16*(w-1) + 4*q,4)}, v254 offset:{4096*w + 1024*q}")
    for w in (1, 2, 3):
        a(f"s_waitcnt lgkmcnt({12 - 4*w})")
        for i in range(0, 16, 2): a(f"v_pk_add_f32 {vr(PACC+i,2)}, {vr(PACC+i,2)}, {vr(RD+16*(w-1)+i,2)}")
    for i in range(4):
        a(f"v_mul_f32 v{PRS+i}, {hex(f2u(-1.0/512))}, v{PRS+i}")
        a(f"v_mul_f32 v{PSQ+i}, {hex(f2u(1.0/512))}, v{PSQ+i}")
        a(f"v_fma_f32 v{PSQ+i}, -v{PRS+i}, v{PRS+i}, v{PSQ+i}")
        a(f"v_max_f32 v{PSQ+i}, 0, v{PSQ+i}")
        a(f"v_add_f32 v{PSQ+i}, {hex(f2u(1e-5))}, v{PSQ+i}")
        a(f"v_rsq_f32 v{PX+i}, v{PSQ+i}")
        a(f"v_fmac_f32 v{PACC+i}, v{PRS+i}, v{PCS+i}")
    for i in range(4): a(f"v_mul_f32 v{PACC+i}, v{PACC+i}, v{PX+i}")
    a(f"""
    v_cvt_pk_bf16_f32 v198, v{PACC}, v{PACC+1}
    v_cvt_pk_bf16_f32 v199, v{PACC+2}, v{PACC+3}
    s_lshr_b32 s{S_T0}, s{S_T16}, 1
    s_lshl_b32 s{S_T0}, s{S_T0}, 11
    s_and_b32 s{S_T3}, s{S_T16}, 1
    v_lshrrev_b32 v20, 1, v18
    v_and_b32 v21, 1, v18
    s_and_b32 s{S_T2}, s{S_CB}, 1
    s_cmp_eq_u32 s{S_T2}, 0
    s_cbranch_scc0 L_pubV
    s_lshl_b32 s{S_T3}, s{S_T3}, 8
    s_add_u32 s{S_T0}, s{S_T0}, s{S_T3}
    v_lshl_add_u32 v20, v20, 5, v17
    v_lshlrev_b32 v20, 4, v20
    v_lshl_add_u32 v20, v21, 3, v20
    s_lshl_b32 s{S_T1}, s{S_T16}, 7
    s_add_u32 s{S_T1}, s{S_T1}, {WS_ST}
    s_branch L_pub
    """)
    a.label("L_pubV")
    a(f"""
    s_lshl_b32 s{S_T3}, s{S_T3}, 9
    s_add_u32 s{S_T0}, s{S_T0}, s{S_T3}
    s_add_u32 s{S_T0}, s{S_T0}, 1024
    v_and_b32 v22, 3, v17
    v_bfe_u32 v23, v17, 2, 1
    v_lshl_add_u32 v22, v23, 3, v22
    v_bfe_u32 v23, v17, 3, 1
    v_lshl_add_u32 v22, v23, 2, v22
    v_lshl_add_u32 v22, v20, 4, v22
    v_lshlrev_b32 v22, 4, v22
    v_lshl_add_u32 v20, v21, 3, v22
    s_mov_b32 s{S_T1}, {WS_SIZE}
    """)
    a.label("L_pub")
    a(f"""
    v_mov_b32 v200, v{PRS}
    v_mov_b32 v201, v{PSQ}
    v_mov_b32 v202, v20
    s_mov_b32 s{S_EX}, s{S_T0}
    s_mov_b32 s{S_EX+1}, s{S_T1}
    """)
    a.label("L_nofin")
    init += [f"s_cmp_lg_u32 s{S_HW}, 0\ns_cbranch_scc1 L_nopub\nv_lshlrev_b32 v3, 3, v{V_LANE}\n"
             f"buffer_store_dwordx2 v[198:199], v202, {sr(R_WS,4)}, s{S_EX} offen sc1\ns_mov_b64 exec, 0xffff\n"
             f"buffer_store_dwordx2 v[200:201], v3, {sr(R_WS,4)}, s{S_EX+1} offen sc1\ns_mov_b64 exec, -1\nL_nopub:"]
    def cs_compute():
        L = ["s_waitcnt vmcnt(0)"]
        for i in range(4):
            L += [f"v_lshlrev_b32 v{CSUM+2*i}, 16, v{CL+i}", f"v_and_b32 v{CSUM+2*i+1}, 0xffff0000, v{CL+i}"]
            for e in range(1, 4):
                L += [f"v_lshlrev_b32 v2, 16, v{CL+4*e+i}", f"v_and_b32 v3, 0xffff0000, v{CL+4*e+i}", f"v_add_f32 v{CSUM+2*i}, v{CSUM+2*i}, v2", f"v_add_f32 v{CSUM+2*i+1}, v{CSUM+2*i+1}, v3"]
        L += [f"v_permlane32_swap_b32 v{CSUM+j}, v{CSUM+4+j}" for j in range(4)]
        L += [f"v_add_f32 v{CSUM+j}, v{CSUM+j}, v{CSUM+4+j}" for j in (0, 2, 1, 3)]
        L += [f"v_permlane16_swap_b32 v{CSUM}, v{CSUM+2}", "s_nop 0", f"v_permlane16_swap_b32 v{CSUM+1}, v{CSUM+3}"]
        L += [f"v_add_f32 v{CSUM}, v{CSUM}, v{CSUM+2}", f"v_add_f32 v{CSUM+1}, v{CSUM+1}, v{CSUM+3}", "s_nop 0"]
        L += [f"v_add_f32_dpp v2, v{CSUM}, v{CSUM} row_ror:8 row_mask:0xf bank_mask:0xf", f"v_add_f32_dpp v2, v{CSUM+1}, v{CSUM+1} row_ror:8 row_mask:0xf bank_mask:0xc"]
        L += [f"v_mov_b32 v203, v2"]
        return L
    init.insert(0, f"buffer_store_dword v203, v8, {sr(R_WS,4)}, s{S_CNT} offen sc1")
    for l in (cs_compute() if cfg.n_csa == 4 else csld[cfg.n_csa:]): a(l)
    a(f"s_add_u32 s{S_T2}, s{S_OST}, {WS_Q - WS_O}")
    if cfg.g_init == -1:
        assert cfg.n_csa == 4
        for l in init: a(l)
    a("s_barrier")
    nst[0] = 2
    stamp(); pad("b0")
    def g1_reads(g):
        c, s = divmod(g, 4); slot = (c + 2) % 3; st = g & 1
        xr = [f"ds_read_b128 {vr(XF+16*st+4*rt,4)}, v{V_XA+s} offset:{XS[c]*16384 + rt*4096}" for rt in range(4)]
        wr = [[f"ds_read_b64_tr_b16 {vr(WF+8*st+4*ti+2*t,2)}, v{V_WR+ti} offset:{slot*8192 + s*2048 + t*512}" for t in range(2)] for ti in range(2)]
        return [wr[0][0], wr[0][1], xr[0], wr[1][0], wr[1][1], xr[1], xr[2], xr[3]]
    for l in g1_reads(0): a(l)
    extra = {g: [] for g in range(32)}
    if cfg.g_init >= 0 and cfg.g_init & 3 != 3: extra[cfg.g_init] += init
    extra[4*cfg.c_arr + 3] += [f"s_cmp_lg_u32 s{S_W}, 0\ns_cbranch_scc1 L_noarr\ns_and_b32 s{S_T0}, s2, 7\ns_lshl_b32 s{S_T0}, s{S_T0}, 5\n"
                  f"s_mov_b64 exec, 1\nbuffer_atomic_add v11, off, {sr(R_DBG,4)}, s{S_T0} sc1\ns_mov_b64 exec, -1\nL_noarr:"]
    extra[26] += [f"s_lshl_b32 s{S_T0}, s{S_RB}, 10\ns_add_u32 s{S_T0}, s{S_T0}, {WS_ST}",
                  f"s_lshl_b32 s{S_T1}, s{S_CB}, 14\ns_lshl_b32 s{S_T3}, s{S_HW}, 8", f"s_add_u32 s{S_T1}, s{S_T1}, s{S_T3}\ns_add_u32 s{S_T1}, s{S_T1}, {WS_CS}\ns_add_u32 s{S_T3}, s{S_T1}, 4096"]
    ld = [f"buffer_load_dwordx4 {vr(V_CSL+8*ti+4*p,4)}, v207, {sr(R_WS,4)}, s{S_T3 if p else S_T1} offen offset:{2048*ti} sc1" for ti in range(2) for p in range(2)]
    ld += [f"buffer_load_dwordx2 {vr(V_ST+2*rt,2)}, v206, {sr(R_WS,4)}, s{S_T0} offen offset:{256*rt} sc1" for rt in range(4)]
    extra[27] += ld[:3]; extra[28] += ld[3:7]; extra[29] += ld[7:]
    def split2(src, dst, dup):
        if dup:
            return [f"v_cvt_pk_bf16_f32 v{dst}, v{src}, v{src}", f"v_and_b32 v2, 0xffff0000, v{dst}", f"v_sub_f32 v2, v{src}, v2", f"v_cvt_pk_bf16_f32 v{dst+1}, v2, v2"]
        return [f"v_cvt_pk_bf16_f32 v{dst}, v{src}, v{src}", f"v_and_b32 v2, 0xffff0000, v{dst}", f"v_sub_f32 v2, v{src}, v2", f"v_cvt_pk_bf16_f32 v{dst}, v{src}, v2", f"v_mov_b32 v{dst+1}, v{dst}"]
    prep = ["s_waitcnt vmcnt(0)"]
    for ti in range(2):
        prep += [f"v_add_f32 v{V_CSL+8*ti}, v{V_CSL+8*ti}, v{V_CSL+8*ti+i}" for i in range(1, 8)] + split2(V_CSL + 8*ti, RA + 2*ti, True)
    for rt in range(4): prep += split2(V_ST + 2*rt, RBm + 2*rt, False)
    for g in range(32):
        c, s = divmod(g, 4); st = g & 1
        last = g == 31
        a("s_waitcnt vmcnt(0) lgkmcnt(0)" if g == 4*cfg.c_arr + 3 else "s_waitcnt lgkmcnt(0)")
        rd = [] if last or cfg.nord else g1_reads(g + 1)
        gaps = [[] for _ in range(8)]
        o = 0
        if s == 3:
            gaps[0] = (cs_compute() if g == 3 and cfg.n_csa < 4 else []) + (init if g == cfg.g_init else []) + ["s_barrier"]; o = 1
        for i, l in enumerate(rd): gaps[o + i // 2].append(l)
        for i, l in enumerate(extra[g]): gaps[min(7, o + 4 + i)].append(l)
        if last:
            for i, l in enumerate(prep): gaps[1 + min(6, i // 6)].append(l)
        for k in range(8):
            rt, ti = divmod(k, 2)
            if cfg.m16:
                b = acc(ti, rt) + 8*(g & 1)
                a(mfma16(b, WF + 8*st + 4*ti, XF + 16*st + 4*rt, None if g < 2 else b))
                for l in gaps[k][:1]: a(l)
                a(mfma16(b + 4, WF + 8*st + 4*(1-ti), XF + 16*st + 4*(rt^1), None if g < 2 else b + 4))
                for l in gaps[k][1:]: a(l)
            else:
                a(mfma32(acc(ti, rt), WF + 8*st + 4*ti, XF + 16*st + 4*rt, None if g == 0 else acc(ti, rt)))
                for l in gaps[k]: a(l)
            if k == 0 and (g == 27 or (cfg.stamps == 4 and s == 3)): stamp()
    stamp(); pad("g1")
    KG = 2.0 * math.sqrt(2.0 / math.pi) * math.log2(math.e)
    def rank1(ti, rt): return f"v_mfma_f32_32x32x8_bf16 {vr(acc(ti,rt),16)}, {vr(RA+2*ti,2)}, {vr(RBm+2*rt,2)}, {vr(acc(ti,rt),16)}"
    def consts(rt):
        b = V_K + 4*rt; vp = V_ST + 2*rt
        return [f"v_rsq_f32 v3, v{vp+1}", f"v_mov_b32 v{vp}, v{vp+1}", f"v_mul_f32 v{b}, {hex(f2u(-KG))}, v3", f"v_mul_f32 v2, v3, v3",
                f"v_mul_f32 v{b+2}, {hex(f2u(0.044715))}, v{b}", f"v_mov_b32 v{b+1}, v{b}", f"v_mul_f32 v{b+2}, v{b+2}, v2", f"v_mov_b32 v{b+3}, v{b+2}"]
    def gelu(ti, rt, mf=()):
        A = acc(ti, rt); b = V_K + 4*rt; vp = V_ST + 2*rt
        t1, t2, o = 144, 152, HO + 16*ti + 4*rt
        mf = list(mf)
        L = [".p2align 3"]
        for i in range(0, 8, 2): L.append(f"v_pk_mul_f32 {vr(t1+i,2)}, {vr(A+i,2)}, {vr(A+i,2)}")
        for i in range(0, 8, 2): L.append(f"v_pk_fma_f32 {vr(t1+i,2)}, {vr(t1+i,2)}, {vr(b+2,2)}, {vr(b,2)}")
        for i in range(0, 8, 2): L.append(f"v_pk_mul_f32 {vr(t1+i,2)}, {vr(t1+i,2)}, {vr(A+i,2)}")
        L += mf[:1]
        for i in range(8): L.append(f"v_exp_f32 v{t1+i}, v{t1+i}")
        for i in range(0, 8, 2): L.append(f"v_pk_mul_f32 {vr(t2+i,2)}, {vr(A+i,2)}, {vr(A+8+i,2)}")
        for i in range(0, 8, 2): L.append(f"v_pk_fma_f32 {vr(t1+i,2)}, {vr(t1+i,2)}, {vr(vp,2)}, {vr(vp,2)}")
        L += mf[1:]
        for i in range(8): L.append(f"v_rcp_f32 v{t1+i}, v{t1+i}")
        for i in range(0, 8, 2): L.append(f"v_pk_mul_f32 {vr(t2+i,2)}, {vr(t2+i,2)}, {vr(t1+i,2)}")
        for i in range(4): L.append(f"v_cvt_pk_bf16_f32 v{o+i}, v{t2+2*i}, v{t2+2*i+1}")
        return L
    def qtile(rt):
        A = acc(1, rt); tb = 144 + 8*(rt & 1); b = V_K + 4*rt
        L = [f"v_mul_f32 v2, {hex(f2u(-0.25*math.log2(math.e)/KG))}, v{b}", f"s_add_u32 s{S_T0}, s{S_HSB}, {32768*rt}", f"s_add_u32 s{S_T1}, s{S_T0}, 4096"]
        for hd in range(2):
            for i in range(8*hd, 8*hd + 8): L.append(f"v_mul_f32 v{A+i}, v{A+i}, v2")
            for i in range(4*hd, 4*hd + 4): L.append(f"v_cvt_pk_bf16_f32 v{tb+i}, v{A+2*i}, v{A+2*i+1}")
            for i in range(4*hd, 4*hd + 4): L.append(f"v_min_u32 v{tb+i}, -2, v{tb+i}")
            L.append(f"buffer_store_dwordx4 {vr(tb+4*hd,4)}, v{V_L16}, {sr(R_WS,4)}, s{S_T0 + hd} offen sc1")
        return L
    a(f"s_and_b32 s{S_T1}, s{S_CB}, 3\ns_cmp_eq_u32 s{S_T1}, 3\ns_cbranch_scc1 L_qt")
    a(rank1(0, 0))
    for rt in range(4):
        for l in consts(rt): a(l)
    order = [(ti, rt) for rt in range(4) for ti in range(2)]
    for i, (ti, rt) in enumerate(order):
        if i == cfg.i_q: a("s_barrier\n" + qload)
        for l in gelu(ti, rt, [rank1(*order[i+1])] if i < 7 else []): a(l)
    a("s_branch L_join")
    a.label("L_qt")
    for rt in range(4):
        a(rank1(1, rt))
        for l in consts(rt): a(l)
    for rt in range(4):
        a(rank1(0, rt))
        for l in qtile(rt): a(l)
    a(f"s_mov_b32 s{S_HSB}, {WS_SIZE}")
    for rt in range(4):
        if rt == 3: a("s_barrier\n" + qload)
        for l in gelu(0, rt): a(l)
    a("s_branch L_join")

    a.label("L_helper")
    V_XD, V_WD = 192, 194
    PX, PW = 8, 24
    PACC, PCS, PRS, PSQ = 40, 44, 48, 52
    PONE, PSQP, PF1 = 56, 60, 61
    RD = 64
    a(f"""
    s_lshl_b32 s{S_XOFF}, s{S_RB}, 17
    s_lshl_b32 s{S_T0}, s{S_HW}, 15
    s_add_u32 s{S_XOFF}, s{S_XOFF}, s{S_T0}
    v_and_b32 v5, 15, v{V_LANE}
    v_lshrrev_b32 v6, 4, v{V_LANE}
    v_lshrrev_b32 v7, 3, v{V_LANE}
    v_and_b32 v63, 7, v{V_LANE}
    v_xor_b32 v62, v6, v63
    v_lshlrev_b32 v62, 4, v62
    v_lshl_add_u32 v{V_XD}, v7, 10, v62
    v_xor_b32 v{V_XD+1}, 64, v{V_XD}
    v_add_u32 v{V_XD+1}, {8192-1024}, v{V_XD+1}
    """)
    img_params(S_HW, S_WSTEP, S_WOFF)
    a(f"""
    v_and_b32 v62, 1, v6
    v_lshlrev_b32 v62, 1, v62
    v_xor_b32 v62, v62, v63
    s_lshl_b32 s{S_T0}, s{S_T2}, 2
    v_xor_b32 v62, s{S_T0}, v62
    v_lshlrev_b32 v62, 4, v62
    v_mul_u32_u24 v{V_WD}, s{S_WSTEP}, v7
    v_add_u32 v{V_WD}, v{V_WD}, v62
    s_waitcnt lgkmcnt(0)
    """)
    nst[0] = 0
    stamp()
    a(f"s_mov_b32 s{R_X}, s{P_X}\ns_and_b32 s{R_X+1}, s{P_X+1}, 0xffff")
    Q = []
    def issue(tag, text): a(text); Q.append(tag)
    def vwait(tag, more=""):
        n = len(Q) - 1 - max(i for i, t in enumerate(Q) if t == tag)
        a(f"s_waitcnt vmcnt({n})" + more)
    def xitems(c):
        slot = XS[c]
        return [(f"C{c}", f"s_add_u32 m0, s{S_H4K}, {L_X + slot*16384}\ns_add_u32 s{S_CNT}, s{S_XOFF}, {c*128 + (16384 - 2048)*(e >> 1)}\n"
                 f"buffer_load_dwordx4 v{V_XD + (e & 1)}, {sr(R_X,4)}, s{S_CNT} offen offset:{1024*e} lds") for e in range(4)]
    def witems(c):
        slot = (c + 2) % 3
        return [(f"C{c}", f"s_add_u32 m0, s{S_M0W}, {slot*8192 + e*1024}\n" + (f"s_add_u32 s{S_WOFF}, s{S_WOFF}, s{S_WSTEP}" if c + e else "s_nop 0") +
                 f"\nbuffer_load_dwordx4 v{V_WD}, {sr(R_W,4)}, s{S_WOFF} offen lds") for e in range(8)]
    stream = []
    for c in range(1, 8): stream += [(t, x if c < 3 or not cfg.nodma else 's_nop 0') for t, x in witems(c) + xitems(c)]
    pos = [0]
    def take(n):
        for _ in range(n):
            if pos[0] < len(stream): issue(*stream[pos[0]]); pos[0] += 1
    def upto(c):
        return min(len(stream), 12*(c + 1) + cfg.lead[c])
    def mix(lines, n):
        k = 0
        for i, l in enumerate(lines):
            while k < n and k * len(lines) <= i * n: take(1); k += 1
            a(l)
        take(n - k)
    img_srd(R_W, S_WSTEP)
    a(f"s_lshl_b32 s{S_WSTEP}, s{S_WSTEP}, 3\ns_mul_i32 s{S_M0W}, s{S_HW}, 24576\ns_add_u32 s{S_M0W}, s{S_M0W}, {L_W}")
    srd(R_WS, P_WS, WS_SIZE)
    srd(R_DBG, P_DBG, 256)
    a(f"s_mov_b32 s{S_ONES}, 0x3f803f80")
    common_setup()
    a("s_barrier")
    for it in xitems(0) + witems(0): issue(*it)
    def bar():
        if cfg.stamps == 4: stamp()
        a("s_barrier")
    take(cfg.lead0)
    nst[0] = 2; vwait("C0"); bar()
    for c in range(6):
        take(upto(c) - pos[0])
        vwait(f"C{c+1}"); bar()
    take(100)
    a(f"""
    s_waitcnt vmcnt(0)
    s_cmp_lg_u32 s{S_HW}, 0
    s_cbranch_scc1 L_sync1
    s_mov_b32 s{S_SPIN}, 0
    v_and_b32 v6, 7, v{V_LANE}
    v_lshlrev_b32 v6, 5, v6
    """)
    a.label("L_sync1_chk")
    a(f"""
    buffer_load_dword v7, v6, {sr(R_DBG,4)}, 0 offen sc1
    s_waitcnt vmcnt(0)
    v_cmp_gt_u32 vcc, 32, v7
    s_add_u32 s{S_SPIN}, s{S_SPIN}, 1
    s_cbranch_vccz L_sync1
    s_cmp_lt_u32 s{S_SPIN}, {SPIN_MAX}
    s_cbranch_scc1 L_sync1_chk
    """)
    a.label("L_sync1")
    if cfg.stamps != 4: nst[0] = 3
    stamp()
    a("s_barrier\ns_barrier")
    for c in range(2):
        slot = (c + 1) % 3
        a(f"s_add_u32 m0, s{S_H4K}, {L_KV + slot*16384}\ns_add_u32 s{S_T0}, s{S_H4K}, {WS_KV + starts[c]*2048}")
        for e in range(4):
            a(f"buffer_load_dwordx4 v{V_L16}, {sr(R_WS,4)}, s{S_T0} offen offset:{1024*e} sc1 lds")
    a(f"s_add_u32 s{S_T2}, s{S_OST}, {WS_Q - WS_O}")
    for i in range(4): a(f"v_mov_b32 v{12+i}, -1")
    a("v_mov_b32 v11, 1")
    a("s_barrier")
    a(qload)

    a.label("L_join")
    nst[0] = 12 if cfg.stamps == 4 else 5
    stamp()
    a(f"""
    v_and_b32 v5, 27, v{V_LANE}
    v_cmp_eq_u32 vcc, 16, v5
    v_mov_b32 v6, s{S_ONES}
    s_mov_b32 s{S_SPIN}, 0
    v_cndmask_b32 v{VF}, 0, v6, vcc
    v_mov_b32 v{VF+1}, v{VF}
    """)
    for i in range(2, 16, 2): a(f"v_mov_b64 {vr(VF+i,2)}, {vr(VF,2)}")
    for i in range(0, 16, 2): a(f"v_mov_b64 {vr(OO+i,2)}, 0")
    a(f"v_mov_b32 v{V_IDX}, 0xdddddddd")
    a.label("L_qchk")
    a(f"""
    s_waitcnt vmcnt(0)
    v_max3_u32 v8, v{QF}, v{QF+1}, v{QF+2}
    v_max_u32 v8, v8, v{QF+3}
    v_cmp_eq_u32 vcc, -1, v8
    s_add_u32 s{S_SPIN}, s{S_SPIN}, 1
    s_cbranch_vccz L_qok
    s_cmp_ge_u32 s{S_SPIN}, {SPIN_MAX}
    s_cbranch_scc1 L_qok
    s_sleep 2
    {qload}
    s_branch L_qchk
    """)
    a.label("L_qok")
    a("s_barrier")
    stamp(); pad("att0")
    a(f"ds_read_b128 {vr(KF,4)}, v{V_KA} offset:{kv_off(0)}\nds_read_b128 {vr(KF+4,4)}, v{V_KA} offset:{kv_off(1)}\ns_waitcnt lgkmcnt(1)")
    a(mfma32(S1, KF, QF, None))
    a(f"s_mov_b64 exec, {sr(S_VM,2)}\nds_read_b128 {vr(VF,4)}, v{V_VA} offset:{kv_off(0)}\ns_mov_b64 exec, -1")
    a.nop(9)
    def maxtree(src, dst, init=None):
        L = []
        if init is None:
            L.append(f"v_max3_f32 v{dst}, v{src}, v{src+1}, v{src+2}")
            L.append(f"v_max_f32 v{dst}, v{src+3}, v{dst}")
            k = 4
        else:
            k = 0
        for i in range(k, 16, 2): L.append(f"v_max3_f32 v{dst}, v{src+i}, v{src+i+1}, v{dst}")
        return L
    def setC(m, shift):
        a(f"v_mov_b32 v{m+1}, v{m}\ns_nop 1\nv_permlane32_swap_b32 v{m}, v{m+1}\nv_max_f32 v{m}, v{m}, v{m+1}")
        a(f"v_sub_f32 v{CC}, {hex(f2u(-shift)) if shift else 0}, v{m}")
        a(f"v_mov_b32 v{CC+1}, v{CC}")
        for i in range(2, 16, 2): a(f"v_mov_b64 {vr(CC+i,2)}, {vr(CC,2)}")
    for l in maxtree(S1, 8): a(l)
    setC(8, cfg.shift)
    a("s_nop 1")
    a(mfma32(S0, KF, QF, CC))
    a.nop(4)

    def kvdma(c, half):
        slot = (c + 1) % 3
        L = (f"s_add_u32 m0, s{S_W2K}, {L_KV + slot*16384}\ns_add_u32 s{S_T0}, s{S_W2K}, {WS_KV + starts[c]*2048}\n")
        if half == 1 and sizes[c] < 8:
            L += f"s_cmp_ge_u32 s{S_W}, {sizes[c]}\ns_cselect_b32 s{S_T0}, {WS_SIZE}, s{S_T0}\n"
        return [L + f"buffer_load_dwordx4 v{V_L16}, {sr(R_WS,4)}, s{S_T0} offen sc1 lds",
                f"buffer_load_dwordx4 v{V_L16}, {sr(R_WS,4)}, s{S_T0} offen offset:1024 sc1 lds"]
    def rowdma(rs, sbase, add, ldsbase, e):
        pre = f"s_add_u32 m0, s{S_W4K}, {ldsbase}\n"
        return pre + f"s_add_u32 s{S_T0}, s{sbase}, {add + e*7168}\nbuffer_load_dwordx4 v{V_WDD}, {sr(rs,4)}, s{S_T0} offen offset:{1024*e} lds"
    tbs = [starts[c] - 3 for c in range(1, len(starts))]
    def attention(half):
        sfx = "AB"[half]
        head = {t: [] for t in range(66)}
        vm = {t: [] for t in range(66)}
        pre = {t: [] for t in range(66)}
        bg = {t: [] for t in range(66)}
        nb = len(tbs); c0 = nb - 7
        for ci, tb in enumerate(tbs):
            n = (tbs[ci+1] if ci + 1 < nb else 63) - tb
            q = []
            if ci + 2 < len(starts): q += [("D", x) for x in kvdma(ci + 2, half)]
            dload = ci - c0 + 1
            if 0 <= dload <= 6:
                q += [("D", rowdma(R_WD, S_WDO, dload*65536, L_WD + (dload & 1)*32768, e)) for e in range(4)]
                hl = [f"buffer_load_dwordx4 {vr(HF + 16*(dload&1) + 4*j,4)}, v{V_L16}, {sr(R_WS,4)}, s{S_T1} offen offset:{1024*j} sc1" for j in range(4)]
                hl[0] = f"s_add_u32 s{S_T1}, s{S_HLD}, {dload*4096}\n" + hl[0]
                o = n - 2 if dload == 0 else 4
                vm[tb + o] += [("H", x) for x in hl[:2]]; vm[tb + o + 1] += [("H", x) for x in hl[2:]]
                pre[tbs[ci + 1] + 2].append(("wait", "H"))
                if dload == 0: tp = tb + o - 1
            elif dload == 7:
                q += [("D", rowdma(R_WO, S_WOO, 0, L_WO, e)) for e in range(4)]
                q += [("D", f"buffer_load_dwordx4 {vr(V_XR,4)}, v{V_FO}, {sr(R_X,4)}, 0 offen")]
            o = 1 if ci else cfg.t_kv2 - tb
            for i, x in enumerate(q): vm[tb + o + i // 2].append(x)
            d = dload - 1
            if d >= 0:
                lh, mb = {7: ([1, 1, 2, 3, 4, 5, 6, 6], [2, 2, 3, 4, 5, 6, 7, 8]), 6: ([1, 1, 2, 3, 3, 4, 5, 5], [2, 2, 3, 4, 5, 5, 6, 7])}[cfg.ilen]
                for k in range(8):
                    j, ct = divmod(k, 2); fr = DF + 4 * (k & 3)
                    for t in range(2):
                        head[tb + lh[k]].append(f"ds_read_b64_tr_b16 {vr(fr+2*t,2)}, v{V_DA+ct} offset:{(d&1)*32768 + j*2048 + t*512}")
                    bg[tb + mb[k]].append(mfma32(YY + 16*ct, HF + 16*(d&1) + 4*j, fr, None if (d == 0 and j == 0) else YY + 16*ct))
        st = []
        if half == 0:
            for rt in range(4):
                for ti in range(2):
                    st.append(f"s_add_u32 s{S_T3}, s{S_HSB if ti else S_HST}, {112*1024*rt}\n"
                              f"buffer_store_dwordx4 {vr(HO + 16*ti + 4*rt,4)}, v{V_L16}, {sr(R_WS,4)}, s{S_T3} offen sc1")
        st.append(f"buffer_store_dwordx4 v[12:15], v{V_L16}, {sr(R_WS,4)}, s{S_OST} offen sc1")
        hs = [t for t in range(64) if t not in tbs]
        for i, x in enumerate(st): vm[hs[int(i * cfg.st_rate)]].append(("S", x))
        if half == 1:
            pfl = [f"s_mul_i32 s{S_T0}, s2, 7168\ns_lshl_b32 s{S_T1}, s{S_HW}, 11\ns_add_u32 s{S_T0}, s{S_T0}, s{S_T1}\nbuffer_load_dwordx4 {vr(HF,4)}, v{V_L16}, {sr(R_WD,4)}, s{S_T0} offen",
                   f"buffer_load_dwordx4 {vr(HF+4,4)}, v{V_L16}, {sr(R_WD,4)}, s{S_T0} offen offset:1024",
                   f"s_lshl_b32 s{S_T1}, s2, 11\ns_lshl_b32 s{S_T3}, s{S_HW}, 9\ns_add_u32 s{S_T1}, s{S_T1}, s{S_T3}\ns_mov_b32 exec_hi, 0\nbuffer_load_dwordx4 {vr(HF+8,4)}, v{V_L16}, {sr(R_WO,4)}, s{S_T1} offen\ns_mov_b64 exec, -1"]
            vm[cfg.t_pf] += [("X", x) for x in pfl]
            for e in range(8):
                x = f"s_add_u32 m0, s{S_EX}, {L_WO + 32768 + e*1024}\ns_add_u32 s{S_T0}, s{S_EX+1}, {256*1024 + e*8192}\nbuffer_load_dwordx4 v{V_WDD}, {sr(R_WO,4)}, s{S_T0} offen lds"
                if e == 0: x = f"s_lshl_b32 s{S_EX+1}, s{S_HW}, 16\ns_lshl_b32 s{S_T0}, s{S_CT8}, 7\ns_add_u32 s{S_EX+1}, s{S_EX+1}, s{S_T0}\ns_lshl_b32 s{S_EX}, s{S_H4K}, 1\n" + x
                vm[cfg.t_wo + e // 2].append(("X", x))
        pre[cfg.t_flag].append(("wait", "S"))
        vm[cfg.t_flag].insert(0, ("F", f"s_mov_b64 exec, 1\nbuffer_store_dword v11, off, {sr(R_WS,4)}, s{S_FLG} sc1\ns_mov_b64 exec, -1"))
        poll = f"buffer_load_dword v3, v{V_PO}, {sr(R_WS,4)}, s{S_T2} offen sc1"
        vm[tp].append(("P", f"s_mov_b32 s{S_T2}, {WS_FL}\n" + poll))
        if 'p' not in cfg.ab: pre[tp+1].append(("text", f"s_mov_b32 s{S_SPIN}, 0\nL_hchk{sfx}:\ns_waitcnt vmcnt(0)\nv_cmp_ne_u32 vcc, 1, v3\ns_add_u32 s{S_SPIN}, s{S_SPIN}, 1\ns_cbranch_vccz L_hok{sfx}\n"
                     f"s_cmp_ge_u32 s{S_SPIN}, {SPIN_MAX}\ns_cbranch_scc1 L_hok{sfx}\n{poll}\ns_branch L_hchk{sfx}\nL_hok{sfx}:"))
        VQ = []
        def cnt(tag):
            idx = [i for i, x in enumerate(VQ) if x == tag]
            return min(63, len(VQ) - 1 - max(idx)) if idx else 63
        def emit_vm(L):
            for tag, x in L: a(x); VQ.append(tag)
        for t in range(tbs[2] + 1, 64):
            if 'v' in cfg.ab: vm[t] = [x for x in vm[t] if 'sc1 lds' in x[1]]
            if 'h' in cfg.ab: vm[t] = [x for x in vm[t] if x[0] != 'H']
            if 'r' in cfg.ab: head[t] = []
            if 'm' in cfg.ab: bg[t] = []
        for t in range(64):
            par = t & 1
            sd, sn = (S0, S1) if par == 0 else (S1, S0)
            p, pp = PP + 8*par, PP + 8*(1 - par)
            isb = t in tbs and not ('b' in cfg.ab and t > tbs[2])
            if cfg.stamps == 2 and t - 1 in tbs: stamp()
            if isb and half == 1: a(f"s_waitcnt vmcnt({cnt('D')}) lgkmcnt(0)\ns_barrier")
            else: a("s_waitcnt lgkmcnt(0)")
            assert not (isb and vm[t])
            for k, x in pre[t]: a(x if k == "text" else f"s_waitcnt vmcnt({cnt(x)})")
            emit_vm(vm[t][:1])
            if t + 2 < 64: a(f"ds_read_b128 {vr(KF+4*par,4)}, v{V_KA} offset:{kv_off(t+2)}")
            a(f"s_mov_b64 exec, {sr(S_VM,2)}")
            if t + 1 < 64: a(f"ds_read_b128 {vr(VF+8*(1-par),4)}, v{V_VA} offset:{kv_off(t+1)}")
            a(f"ds_read_b128 {vr(VF+8*par+4,4)}, v{V_VA} offset:{kv_off(t)+512}")
            a("s_mov_b64 exec, -1")
            for l in head[t]: a(l)
            emit_vm(vm[t][1:])
            if isb and half == 0: a(f"s_waitcnt vmcnt({cnt('D')})\ns_barrier")
            pos = cfg.pos[len(bg[t])]
            sl = [smf(OO, VF + 8*(1-par) + 4, sn + 8) if t >= 1 else None, mfma32(sn, KF + 4*(1-par), QF, CC) if t + 1 < 64 else None]
            sl += bg[t][:1] + [smf(OO, VF + 8*par, sd)] + bg[t][1:]
            at = {p: m for p, m in zip(pos, sl) if m}
            if cfg.stamps == 3: a(f"s_memtime {sr(S_TS,2)}")
            a(".p2align 3")
            odd = False
            for i in range(16):
                if i in at: a(at[i])
                pr = i == (cfg.pp if half else cfg.pa)
                wide = (i + 1 in at) and (odd == pr)
                a(f"v_exp_f32{'_e64' if wide else ''} v{sd+i}, v{sd+i}")
                if not wide: odd = not odd
                if pr: a(f"s_setprio {cfg.pv[half]}"); odd = not odd
            if cfg.stamps == 3: a(f"s_waitcnt lgkmcnt(0)\nv_writelane_b32 v253, s{S_TS}, {t}\nv_writelane_b32 v254, s{S_TS2}, {t}\ns_memtime {sr(S_TS2,2)}")
            if (cfg.pp if half else cfg.pa) is not None: a("s_setprio 0")
        a("s_waitcnt lgkmcnt(0)\ns_nop 0")
        a(smf(OO, VF + 12, S1 + 8))
    a(f"s_cmp_ge_u32 s{S_W}, 4\ns_cbranch_scc1 L_attB")
    n0 = nst[0]
    attention(0)
    a("s_branch L_att_end")
    a.label("L_attB")
    nst[0] = n0
    attention(1)
    a.label("L_att_end")
    stamp(); pad("att1")
    a(f"s_lshl_b32 s{S_T0}, s{S_KQ}, 13\ns_add_u32 s{S_T0}, s{S_T0}, {L_WO - L_WD}")
    a(f"v_add_u32 v{V_DA}, s{S_T0}, v{V_DA}\nv_xor_b32 v{V_DA+1}, 64, v{V_DA}\nv_xor_b32 v5, 16, v{V_GA}")
    a(f"s_mov_b32 s{S_T2}, {hex(f2u(2.0**120))}\ns_mov_b32 s{S_T3}, {hex(f2u(2.0**-(cfg.shift + 15)))}")
    a(f"s_add_u32 s{S_T1}, s{S_OLD}, 4096\ns_mov_b32 s{S_SPIN}, 0\ns_lshl_b32 s{S_T0}, s{S_W}, 13\ns_mov_b32 m0, s{S_T0}")
    a.nop(1)
    a(f"v_rcp_f32 v10, v{OO+8}")
    a(f"v_add_f32 v8, abs(v{OO}), abs(v{OO+1})")
    for i in range(2, 8): a(f"v_add_f32 v8, abs(v{OO+i}), v8")
    a(f"""
    v_add_f32 v9, v8, v{OO+8}
    v_cmp_gt_f32 {sr(S_EX,2)}, s{S_T3}, v8
    v_cmp_ngt_f32 vcc, s{S_T2}, v9
    v_mov_b32 v11, v10
    s_or_b64 vcc, vcc, {sr(S_EX,2)}
    """)
    a("s_branch L_fb" if cfg.force_fb else "s_cbranch_scc1 L_fb")
    a.label("L_norm")
    for i in range(0, 8, 2): a(f"v_pk_mul_f32 {vr(OO+i,2)}, {vr(OO+i,2)}, v[10:11]")
    for i in range(4): a(f"v_cvt_pk_bf16_f32 v{12+i}, v{OO+2*i}, v{OO+2*i+1}")
    for i in range(4): a(f"v_min_u32 v{12+i}, -2, v{12+i}")
    a(f"buffer_store_dwordx4 v[12:15], v{V_L16}, {sr(R_WS,4)}, s{S_OST} offen sc1")
    WOF, OF, SS, XU, TT = 16, 160, 80, 224, 232
    def oload(j): return f"buffer_load_dwordx4 {vr(OF+4*j,4)}, v{V_L16}, {sr(R_WS,4)}, s{S_OLD if j < 4 else S_T1} offen offset:{1024*(j&3)} sc1"
    ne = cfg.n_early
    for j in range(ne[0]): a(oload(j))
    if cfg.stamps == 6: stamp()
    a(f"s_waitcnt vmcnt({1 + ne[0]})\ns_barrier")
    if cfg.stamps == 6: stamp()
    L = [f"ds_read_b64_tr_b16 {vr(WOF + 8*j + 4*ct + 2*t,2)}, v{V_DA+ct} offset:{j*2048 + t*512}" for j in range(8) for ct in range(2) for t in range(2)]
    W = [f"ds_write_addtid_b32 v{YY+i} offset:{256*i}" for i in range(32)]
    L = W + L if cfg.yfirst else L + W
    k = ne[0]
    for i, l in enumerate(L):
        a(l)
        if i >= ne[1] and (i - ne[1]) % ne[2] == 0 and k < 8: a(oload(k)); k += 1
    if cfg.olate == 0:
        for j in range(k, 8): a(oload(j))
    a(f"s_add_u32 m0, s{S_T0}, 7940\ns_mov_b32 s{S_EX}, 0xff00ff00\ns_mov_b32 s{S_EX+1}, 0xff00ff00\ns_waitcnt lgkmcnt(0)\ns_barrier")
    if cfg.stamps == 6: stamp()
    def gather(dst, ad):
        for p in range(4):
            a(f"ds_read_b128 {vr(dst+8*p,4)}, v{ad[0]} offset:{16384*p}\nds_read_b128 {vr(dst+8*p+4,4)}, v{ad[1]} offset:{16384*p}")
    gather(YY, (V_GA, 5))
    a(f"s_mov_b64 exec, {sr(S_EX,2)}\nv_swap_b32 v{V_XR}, v{V_XR+2}\nv_swap_b32 v{V_XR+1}, v{V_XR+3}\ns_mov_b64 exec, -1")
    a(f"v_add_u32 v6, 0x10000, v{V_GA}\nv_add_u32 v7, 0x10000, v5")
    G = [f"v_lshlrev_b32 v{XU+2*i}, 16, v{V_XR+i}" for i in range(4)] + [f"v_and_b32 v{XU+2*i+1}, 0xffff0000, v{V_XR+i}" for i in range(4)]
    G += ["s_waitcnt lgkmcnt(0)"]
    for p in (1, 2, 3): G += [f"v_add_f32 v{YY+i}, v{YY+i}, v{YY+8*p+i}" for i in range(8)]
    G += [f"v_mul_f32 v{TT+i}, {hex(f2u(-math.log2(math.e)))}, v{YY+i}" for i in range(8)]
    G += [f"v_exp_f32 v{TT+i}, v{TT+i}" for i in range(8)]
    G += [f"v_add_f32 v{TT+i}, 1.0, v{TT+i}" for i in range(8)]
    G += [f"v_rcp_f32 v{TT+i}, v{TT+i}" for i in range(8)]
    G += [f"v_mul_f32 v{YY+i}, v{YY+i}, v{TT+i}" for i in range(8)]
    if cfg.olate:
        g0 = G[:cfg.n_g0]
        st_ = max(1, (len(g0) - cfg.olate + 1) // 8)
        for i, l in enumerate(g0):
            if i >= cfg.olate - 1 and (i - cfg.olate + 1) % st_ == 0 and k < 8: a(oload(k)); k += 1
            a(l)
        for j in range(k, 8): a(oload(j))
    else:
        for l in G[:cfg.n_g0]: a(l)
    G = G[cfg.n_g0:]
    stamp()
    per = max(1, -(-len(G) // 15))
    for j in range(8):
        a.label(f"L_ochk{j}")
        a(f"""
        s_waitcnt vmcnt({7-j})
        v_max3_u32 v8, v{OF+4*j}, v{OF+4*j+1}, v{OF+4*j+2}
        v_max_u32 v8, v8, v{OF+4*j+3}
        v_cmp_eq_u32 vcc, -1, v8
        s_nop 0
        s_cbranch_vccnz L_oretry{j}
        """)
        a.label(f"L_ook{j}")
        for ct in range(2):
            a(mfma32(SS + 16*ct, OF + 4*j, WOF + 8*j + 4*ct, None if j == 0 else SS + 16*ct))
            for l in G[:per]: a(l)
            G = G[per:]
    stamp()
    a.nop(11)
    for i in range(32): a(f"ds_write_addtid_b32 v{SS+i} offset:{57596 + 256*i}")
    a("s_waitcnt lgkmcnt(0)\ns_barrier")
    if cfg.stamps == 6: stamp()
    gather(OF, (6, 7))
    a("s_waitcnt lgkmcnt(4)")
    for i in range(0, 8, 2): a(f"v_pk_add_f32 {vr(OF+i,2)}, {vr(OF+i,2)}, {vr(OF+8+i,2)}")
    a("s_waitcnt lgkmcnt(0)")
    for i in range(0, 8, 2): a(f"v_pk_add_f32 {vr(OF+16+i,2)}, {vr(OF+16+i,2)}, {vr(OF+24+i,2)}")
    for i in range(0, 8, 2): a(f"v_pk_add_f32 {vr(OF+i,2)}, {vr(OF+i,2)}, {vr(OF+16+i,2)}")
    for i in range(0, 8, 2): a(f"v_pk_fma_f32 {vr(OF+i,2)}, {vr(OF+i,2)}, {vr(YY+i,2)}, {vr(XU+i,2)}")
    for i in range(4): a(f"v_cvt_pk_bf16_f32 v{12+i}, v{OF+2*i}, v{OF+2*i+1}")
    a(f"s_mov_b64 exec, {sr(S_EX,2)}\nv_swap_b32 v12, v14\nv_swap_b32 v13, v15\ns_mov_b64 exec, -1")
    a(f"buffer_store_dwordx4 v[12:15], v{V_FO}, {sr(R_OUT,4)}, 0 offen {cfg.oflag}")
    if cfg.stamps == 6: stamp()
    if cfg.stamps:
        a("s_waitcnt vmcnt(0)")
        stamp(True)
        if cfg.stamps == 6: a(f"s_add_u32 s{S_SPIN}, s{S_SPIN}, 1\nv_writelane_b32 v{V_STAMP}, s{S_SPIN}, 63")
        a(f"s_lshl_b32 s{S_T0}, s2, 3\ns_add_u32 s{S_T0}, s{S_T0}, s{S_W}\ns_lshl_b32 s{S_T0}, s{S_T0}, 8\ns_add_u32 s{S_T0}, s{S_T0}, {WS_DBG}")
        a(f"v_lshlrev_b32 v2, 2, v{V_LANE}\nbuffer_store_dword v{V_STAMP}, v2, {sr(R_WS,4)}, s{S_T0} offen")
        if cfg.stamps == 3:
            a(f"s_add_u32 s{S_T0}, s{S_T0}, 0x80000\nbuffer_store_dword v253, v2, {sr(R_WS,4)}, s{S_T0} offen\ns_add_u32 s{S_T0}, s{S_T0}, 0x80000\nbuffer_store_dword v254, v2, {sr(R_WS,4)}, s{S_T0} offen")
    pad("end")
    a.label("L_end")
    a("s_endpgm")
    for j in range(8):
        a.label(f"L_oretry{j}")
        a(f"s_add_u32 s{S_SPIN}, s{S_SPIN}, 1\ns_cmp_ge_u32 s{S_SPIN}, {SPIN_MAX}\ns_cbranch_scc1 L_ook{j}")
        for k in range(j, 8): a(oload(k))
        a(f"s_branch L_ochk{j}")
    a.label("L_fb")
    a(f"v_mov_b32 v8, 0xff800000\ns_mov_b32 s{S_CNT}, {WS_KV}")
    a(f"v_subrev_u32 v10, {L_KV}, v{V_VA}")
    a.label("L_fb1")
    a(f"buffer_load_dwordx4 {vr(KF,4)}, v{V_L16}, {sr(R_WS,4)}, s{S_CNT} offen sc1\ns_waitcnt vmcnt(0)")
    a(mfma32(S0, KF, QF, None)); a.nop(12)
    for l in maxtree(S0, 8, init=True): a(l)
    a(f"s_add_u32 s{S_CNT}, s{S_CNT}, 2048\ns_cmp_lt_u32 s{S_CNT}, {WS_KV + 64*2048}\ns_cbranch_scc1 L_fb1")
    setC(8, 0.0)
    for i in range(16): a(f"v_mov_b32 v{OO+i}, 0")
    a(f"s_mov_b32 s{S_CNT}, {WS_KV}")
    a.label("L_fb2")
    a(f"buffer_load_dwordx4 {vr(KF,4)}, v{V_L16}, {sr(R_WS,4)}, s{S_CNT} offen sc1")
    a(f"s_mov_b64 exec, {sr(S_VM,2)}")
    a(f"buffer_load_dwordx4 {vr(VF,4)}, v10, {sr(R_WS,4)}, s{S_CNT} offen sc1")
    a(f"buffer_load_dwordx4 {vr(VF+4,4)}, v10, {sr(R_WS,4)}, s{S_CNT} offen offset:512 sc1")
    a("s_mov_b64 exec, -1\ns_waitcnt vmcnt(0)")
    a(mfma32(S0, KF, QF, CC)); a.nop(12)
    for i in range(16): a(f"v_exp_f32 v{S0+i}, v{S0+i}")
    a.nop(2)
    a(smf(OO, VF, S0)); a(smf(OO, VF + 4, S0 + 8))
    a(f"s_add_u32 s{S_CNT}, s{S_CNT}, 2048\ns_cmp_lt_u32 s{S_CNT}, {WS_KV + 64*2048}\ns_cbranch_scc1 L_fb2")
    a.nop(12)
    a(f"v_rcp_f32 v10, v{OO+8}\ns_nop 0\nv_mov_b32 v11, v10\ns_branch L_norm")
    a.label("L_code_end")
    return a

HEADER = open(f"cdna_kernels/{NAME}.s.ref").read().split("; Override launch")[0]
def wrap(a):
    s = HEADER + "; @launch grid=(256,1,1) block=(512,1,1) lds=163840\n"
    s += f""".amdgcn_target "amdgcn-amd-amdhsa--gfx950"
.text
.globl {NAME}_kernel
.p2align 8
.type {NAME}_kernel,@function
{NAME}_kernel:
"""
    s += a.text()
    s += f""".section .rodata,"a"
.p2align 6
.amdhsa_kernel {NAME}_kernel
  .amdhsa_next_free_vgpr 256
  .amdhsa_next_free_sgpr 100
  .amdhsa_accum_offset 256
  .amdhsa_group_segment_fixed_size 0
  .amdhsa_kernarg_size 96
  .amdhsa_user_sgpr_count 2
  .amdhsa_user_sgpr_kernarg_segment_ptr 1
  .amdhsa_system_sgpr_workgroup_id_x 1
.end_amdhsa_kernel
"""
    return s

if __name__ == "__main__":
    cfg = Cfg()
    out = sys.argv[1]
    for kv in sys.argv[2:]:
        k, v = kv.split("=")
        setattr(cfg, k, eval(v))
    a = gen(cfg)
    errs = check(a.lines)
    for e in errs: print("HAZARD need %d have %d:\n   %s\n   %s" % (e[2], e[3], e[0], e[1]))
    open(out, "w").write(wrap(a))
    print("wrote", out, len(a.lines), "lines", len(errs), "hazards")
```

```python
import sys, math
from asmlib import Asm, vr, sr, f2u, check

NAME = "recurrent_scan__grouped_kv_mqa__glu_gated_geglu__prompt"

class Cfg:
    stamps = False
    stop = None
    force_fb = False
    shift = 96.0
    nodot = False
    nodma = False
    nord = False
    sizes = [8, 8, 7] + [6]*6 + [5]
    ilen = 6
    g_init = 3
    t_pf = -1
    t_wo = (7, 8, 8, 10, 10, 11, 11, 12)
    t_wd0 = (15, 15, 16, 17)
    t_poll = 16
    bmid = 4
    lh = (1, 2, 3, 3, 4, 5, 6, 6)
    mb = (2, 3, 4, 5, 5, 6, 7, 7)
    dpos = (1, 1, 2, 2, 3, 4)
    hpos = (4, 5, 5, 6)
    hwait = {0: 0, 1: 3}
    t_h0 = (18, 18, 19, 20)
    t_chk = 18
    pbar = 1
    n_csa = 2
    lead0 = 12
    oflag = 'sc1'
    n_wo63 = 6
    nt = ''
    t_code = (7, 43)
    ofast = 0
    olate = 1
    yfirst = True
    n_gb = 1
    n_b0 = 0
    oswap = False
    t_tr = 30
    n_gp = 8
    i_q = 5
    i_qb = 3
    kv_early = 1
    mord = 0
    g_early = True
    mswap = False
    c_arr = 2
    lead = [8, 10, 12, 12, 12, 12]
    n_pre = (2, 4)
    n_fin = (7, 6)
    g_cs = (3, 4, 5, 6)
    g_csc = 9
    bprio = 3
    st_rate = 0.5
    t_flag = 9
    t_kv2 = 6
    m16 = False
    pp = 0
    pos = [(2, 6, 12), (2, 6, 10, 14), (1, 4, 7, 10, 13)]
    pa = 4
    pv = (1, 1)
    ab = ''
    pad = None

WS_KV, WS_ST, WS_FL, WS_CS, WS_O, WS_H, WS_DBG, WS_Q = 0, 0x20000, 0x28000, 0x40000, 0x100000, 0x400000, 0xC00000, 0xE00000
WS_SIZE = 0x1000000
L_X, L_W, L_R = 0, 49152, 147456
L_KV, L_WD, L_WO = 0, 65536, 98304
P_X, P_WQ, P_WK, P_WV, P_WO, P_WG, P_WU, P_WD, P_OUT, P_DBG, P_WS = 4, 6, 8, 10, 12, 16, 18, 20, 22, 24, 26
R_X, R_WKV, R_WD, R_WO, R_OUT, R_DBG, R_WS = 28, 32, 36, 40, 44, 48, 52
S_W, S_RB, S_CB, S_RT64, S_CT8 = 56, 57, 58, 59, 60
S_T16 = 61
S_VM = 62
S_XOFF = 64
S_WOFF = 65
S_HW = 66
S_ONES = 67
S_T0, S_T1, S_T2, S_T3 = 68, 69, 70, 71
S_OST = 72
S_FLG = 73
S_HST = 74
S_KQ, S_RT = 75, 76
S_WDO = 77
S_HLD = 78
S_W4K = 79
S_W2K = 80
S_SPIN = 81
S_WOO = 82
S_OLD = 83
S_EX = 84
S_TS = 86
S_CNT = 88
S_WSTEP = 89
S_TS2 = 90
R_W, R_CW = 92, 96
S_H4K = 3
S_HSB = 14
S_M0W = 15
SPIN_MAX = 1 << 18

V_LANE = 1
V_STAMP = 255
V_L16, V_KA, V_WDD, V_VA, V_DA, V_PO, V_FO, V_XR, QF = 208, 209, 210, 211, 212, 214, 215, 216, 220
V_GA = 0

def mfma32(d, a, b, c):
    cs = "0" if c is None else vr(c, 16)
    return f"v_mfma_f32_32x32x16_bf16 {vr(d,16)}, {vr(a,4)}, {vr(b,4)}, {cs}"
V_IDX = 48
def smf(d, a, b):
    return f"v_smfmac_f32_32x32x32_bf16 {vr(d,16)}, {vr(a,4)}, {vr(b,8)}, v{V_IDX}"
def mfma16(d, a, b, c):
    cs = "0" if c is None else vr(c, 4)
    return f"v_mfma_f32_16x16x32_bf16 {vr(d,4)}, {vr(a,4)}, {vr(b,4)}, {cs}"

def gen(cfg):
    a = Asm()
    nst = [0]
    def stamp(final=False, name=None):
        if not cfg.stamps: return
        i = nst[0]; nst[0] += 1
        if cfg.stamps in (8, 9) and i and not final: return
        if cfg.stamps == 7:
            if isinstance(name, int): i = name
            elif final: i = 9
            elif name == "b0": i = 7
            elif name == "g1": i = 8
            elif i: return
        elif isinstance(name, int):
            nst[0] -= 1; return
        if cfg.stamps == 5:
            marks = {"b0": 2, "g1": 3, "att0": 4, "att1": 5}
            if final: i = 1
            elif name in marks: i = marks[name]
            elif i: return
        a(f"s_memrealtime {sr(S_TS,2)}\ns_memtime {sr(S_TS2,2)}\ns_waitcnt lgkmcnt(0)\nv_writelane_b32 v{V_STAMP}, s{S_TS}, {i}\nv_writelane_b32 v{V_STAMP}, s{S_TS2}, {32+i}")
    ncs = [0]
    CSR = list(range(4, 28, 2)) + [32, 34, 92, 94, 96, 98]
    def cstamp(mode=8):
        if cfg.stamps != mode: return
        a(f"s_memtime {sr(CSR[ncs[0]], 2)}"); ncs[0] += 1
    def pad(pt):
        if not cfg.pad or cfg.pad[0] != pt: return
        if len(cfg.pad) > 2:
            inv = cfg.pad[2] == 2
            a(f"s_and_b32 s{S_T0}, s{S_TS}, 0x7fffffff")
            if inv: a(f"s_not_b32 s{S_T0}, s{S_T0}")
            a(f"v_mov_b32 v2, s{S_T0}\ns_mov_b64 exec, 1\nbuffer_atomic_umax v2, off, {sr(R_DBG,4)}, 0 offset:4 sc1\ns_mov_b64 exec, -1")
            a(f"L_pad0:\ns_memrealtime {sr(S_TS2,2)}\ns_waitcnt lgkmcnt(0)\ns_sub_u32 s{S_TS2}, s{S_TS2}, s{S_TS}\ns_cmp_lt_u32 s{S_TS2}, {int(cfg.pad[1]*100) - 1500}\ns_cbranch_scc1 L_pad0")
            a(f"buffer_load_dword v2, off, {sr(R_DBG,4)}, 0 offset:4 sc1\ns_waitcnt vmcnt(0)\nv_readfirstlane_b32 s{S_T0}, v2\ns_nop 3")
            if inv: a(f"s_not_b32 s{S_T0}, s{S_T0}")
            a(f"s_and_b32 s{S_TS}, s{S_TS}, 0x80000000\ns_or_b32 s{S_TS}, s{S_TS}, s{S_T0}")
        a(f"L_pad{len(a.lines)}:\ns_memrealtime {sr(S_TS2,2)}\ns_waitcnt lgkmcnt(0)\ns_sub_u32 s{S_TS2}, s{S_TS2}, s{S_TS}\ns_cmp_lt_u32 s{S_TS2}, {int(cfg.pad[1]*100)}\ns_cbranch_scc1 L_pad{len(a.lines)}")
    def srd(r, p, size):
        a(f"s_mov_b32 s{r}, s{p}\ns_and_b32 s{r+1}, s{p+1}, 0xffff\ns_mov_b32 s{r+2}, {hex(size)}\ns_mov_b32 s{r+3}, 0x20000")

    a(f"s_cmp_ge_u32 s2, 256\ns_cbranch_scc1 L_end")
    if cfg.pad: a(f"s_memrealtime {sr(S_TS,2)}")
    a(f"s_load_dwordx16 s[4:19], s[0:1], 0\ns_load_dwordx8 s[20:27], s[0:1], 64")
    if cfg.stamps:
        a(f"v_mov_b32 v{V_STAMP}, 0")
    a(f"v_lshrrev_b32 v2, 6, v0\nv_and_b32 v{V_LANE}, 63, v0")
    a(f"s_getpc_b64 {sr(S_EX,2)}")
    a.label("L_pc")
    a(f"""
    v_readfirstlane_b32 s{S_W}, v2
    s_and_b32 s{S_T0}, s2, 0xf8
    v_add_u32 v2, s{S_T0}, v2
    v_lshl_add_u32 v2, v2, 1, v{V_LANE}
    v_lshlrev_b32 v252, 7, v2
    v_min_u32 v252, L_code_end-L_pc-4, v252
    v_mov_b32 v253, 0
    v_lshl_add_u64 v[252:253], v[252:253], 0, {sr(S_EX,2)}
    s_mov_b64 exec, 3
    global_load_dword v9, v[252:253], off
    s_mov_b64 exec, -1
    """)
    a(f"""
    s_and_b32 s{S_T0}, s2, 7
    s_lshr_b32 s{S_T1}, s2, 3
    s_and_b32 s{S_T2}, s{S_T0}, 1
    s_lshl_b32 s{S_T2}, s{S_T2}, 3
    s_and_b32 s{S_CT8}, s{S_T1}, 7
    s_add_u32 s{S_RB}, s{S_T2}, s{S_CT8}
    s_lshr_b32 s{S_T1}, s{S_T1}, 3
    s_lshr_b32 s{S_T2}, s{S_T0}, 1
    s_lshl_b32 s{S_T2}, s{S_T2}, 2
    s_add_u32 s{S_CB}, s{S_T2}, s{S_T1}
    s_lshl_b32 s{S_T2}, s{S_T0}, 2
    s_add_u32 s{S_RT64}, s{S_T2}, s{S_T1}
    s_and_b32 s{S_HW}, s{S_W}, 3
    s_lshl_b32 s{S_H4K}, s{S_HW}, 12
    v_lshlrev_b32 v{V_L16}, 4, v{V_LANE}
    s_mov_b32 s{R_X+2}, 0x200000
    s_mov_b32 s{R_X+3}, 0x20000
    s_cmp_ge_u32 s{S_W}, 4
    s_cbranch_scc1 L_helper
    """)

    sizes = cfg.sizes
    assert sum(sizes) == 64
    starts = [sum(sizes[:i]) for i in range(len(sizes))]
    S0, S1, PP, OO, CC, KF, VF = 16, 32, 48, 64, 80, 100, 108
    YY, HF, DF = 128, 160, 192
    HO = 160
    V_OA = 62
    WOF = [50, 54, 58, 96, 124] + list(range(224, 252, 4)) + [176, 180, 184, 188]
    wo_rd = [f"ds_read_b64_tr_b16 {vr(WOF[2*j+ct] + 2*t,2)}, v{V_OA+ct} offset:{j*2048 + t*512}" for j in range(8) for ct in range(2) for t in range(2)]
    def kv_off(t):
        c = max(i for i in range(len(starts)) if starts[i] <= t)
        return ((c + 1) % 3) * 16384 + (t - starts[c]) * 2048
    qload = f"buffer_load_dwordx4 {vr(QF,4)}, v{V_L16}, {sr(R_WS,4)}, s{S_T2} offen sc1"

    XS = [2, 0, 1, 2, 0, 1, 2, 0]
    L_PX = L_X + XS[2]*16384
    def setup_ids():
        a(f"""
        s_lshr_b32 s{S_KQ}, s{S_W}, 1
        s_and_b32 s{S_RT}, s{S_W}, 1
        s_lshl_b32 s{S_T2}, s{S_RT64}, 1
        s_add_u32 s{S_T2}, s{S_T2}, s{S_RT}
        s_lshl_b32 s{S_T0}, s{S_T2}, 3
        s_add_u32 s{S_T0}, s{S_T0}, s{S_CT8}
        s_lshl_b32 s{S_T0}, s{S_T0}, 2
        s_add_u32 s{S_T0}, s{S_T0}, s{S_KQ}
        s_lshl_b32 s{S_T0}, s{S_T0}, 10
        s_add_u32 s{S_OST}, s{S_T0}, {WS_O}
        s_lshl_b32 s{S_T0}, s2, 7
        s_lshl_b32 s{S_T1}, s{S_W}, 2
        s_add_u32 s{S_T0}, s{S_T0}, s{S_T1}
        s_add_u32 s{S_FLG}, s{S_T0}, {WS_FL}
        """)
    def common_setup():
        srd(R_WD, P_WD, 1792 * 1024)
        srd(R_WO, P_WO, 512 * 1024)
        srd(R_OUT, P_OUT, 0x200000)
        a(f"""
        s_lshl_b32 s{S_W4K}, s{S_W}, 12
        s_lshl_b32 s{S_W2K}, s{S_W}, 11
        s_mov_b32 s{S_VM}, 0xffff
        s_mov_b32 s{S_VM+1}, 0xffff
        s_lshl_b32 s{S_T2}, s{S_RT64}, 1
        s_add_u32 s{S_T2}, s{S_T2}, s{S_RT}
        s_mul_i32 s{S_T0}, s{S_KQ}, {448*1024}
        s_lshl_b32 s{S_T1}, s{S_RT}, 15
        s_add_u32 s{S_T0}, s{S_T0}, s{S_T1}
        s_lshl_b32 s{S_T1}, s{S_CT8}, 7
        s_add_u32 s{S_WDO}, s{S_T0}, s{S_T1}
        s_lshl_b32 s{S_T0}, s{S_W}, 15
        s_add_u32 s{S_WOO}, s{S_T0}, s{S_T1}
        s_and_b32 s{S_T0}, s{S_CT8}, {1 if cfg.oswap else 0}
        s_lshl_b32 s{S_T16}, s{S_T0}, 18
        s_add_u32 s{S_WOO}, s{S_WOO}, s{S_T16}
        s_mul_i32 s{S_T0}, s{S_T2}, 112
        s_mul_i32 s{S_T3}, s{S_KQ}, 28
        s_add_u32 s{S_T0}, s{S_T0}, s{S_T3}
        s_lshl_b32 s{S_T0}, s{S_T0}, 10
        s_add_u32 s{S_HLD}, s{S_T0}, {WS_H}
        s_lshl_b32 s{S_T0}, s{S_T2}, 15
        s_lshl_b32 s{S_T3}, s{S_KQ}, 13
        s_add_u32 s{S_T3}, s{S_T0}, s{S_T3}
        s_lshr_b32 s{S_T0}, s{S_T16}, 4
        s_xor_b32 s{S_OLD}, s{S_T3}, s{S_T0}
        s_add_u32 s{S_OLD}, s{S_OLD}, {WS_O}
        s_add_u32 s{S_T0}, s{S_T3}, s{S_T1}
        v_lshrrev_b32 v3, 5, v{V_LANE}
        v_bfe_u32 v5, v{V_LANE}, 3, 1
        v_lshl_add_u32 v2, v3, 1, v5
        v_bfe_u32 v7, v{V_LANE}, 4, 1
        v_lshl_add_u32 v4, v7, 2, v2
        v_and_b32 v6, 7, v{V_LANE}
        v_lshlrev_b32 v8, 4, v6
        v_lshl_add_u32 v4, v4, 10, v8
        v_add_u32 v{V_FO}, s{S_T0}, v4
        v_lshlrev_b32 v2, 8, v2
        v_lshl_add_u32 v2, v7, 7, v2
        v_lshl_add_u32 v2, v5, 4, v2
        v_and_b32 v4, 3, v6
        v_lshl_add_u32 v2, v4, 5, v2
        v_lshrrev_b32 v4, 2, v6
        v_lshl_add_u32 v2, v4, 12, v2
        s_lshl_b32 s{S_T0}, s{S_RT}, 13
        s_lshl_b32 s{S_T1}, s{S_KQ}, 10
        s_add_u32 s{S_T0}, s{S_T0}, s{S_T1}
        v_add_u32 v{V_GA}, s{S_T0}, v2
        v_add_u32 v{V_KA}, {L_KV}, v{V_L16}
        v_and_b32 v2, 15, v{V_LANE}
        v_lshl_add_u32 v2, v3, 4, v2
        v_lshlrev_b32 v2, 4, v2
        v_add_u32 v{V_VA}, {L_KV + 1024}, v2
        v_lshrrev_b32 v5, 3, v{V_LANE}
        v_and_b32 v6, 7, v{V_LANE}
        v_bfe_u32 v7, v{V_LANE}, 4, 1
        v_lshlrev_b32 v8, 2, v7
        v_xor_b32 v6, v6, v8
        v_lshlrev_b32 v6, 4, v6
        v_lshl_add_u32 v{V_WDD}, v5, 10, v6
        v_and_b32 v2, 1, v{V_LANE}
        v_bfe_u32 v4, v{V_LANE}, 1, 1
        v_lshl_add_u32 v2, v2, 1, v4
        v_bfe_u32 v5, v{V_LANE}, 2, 2
        v_lshl_add_u32 v4, v3, 3, v5
        v_lshlrev_b32 v4, 7, v4
        v_and_b32 v6, 2, v5
        v_xor_b32 v6, v6, v7
        v_lshl_add_u32 v6, v6, 5, v4
        v_and_b32 v8, 3, v{V_LANE}
        v_lshl_add_u32 v6, v8, 3, v6
        v_lshl_add_u32 v4, v2, 3, v4
        s_lshl_b32 s{S_T0}, s{S_KQ}, 13
        s_add_u32 s{S_T0}, s{S_T0}, {L_WD}
        v_add_u32 v{V_DA}, s{S_T0}, v6
        v_xor_b32 v{V_DA+1}, 64, v{V_DA}
        """)
        a(f"""
        s_lshr_b32 s{S_T0}, s{S_RT64}, 4
        s_lshl_b32 s{S_T1}, s{S_KQ}, 1
        s_add_u32 s{S_T0}, s{S_T0}, s{S_T1}
        s_bfe_u32 s{S_T2}, s{S_RT64}, 0x30001
        s_lshl_b32 s{S_T2}, s{S_T2}, 3
        s_add_u32 s{S_T0}, s{S_T0}, s{S_T2}
        s_lshl_b32 s{S_T0}, s{S_T0}, 7
        v_and_b32 v2, 3, v{V_LANE}
        v_lshlrev_b32 v6, 2, v2
        v_lshl_add_u32 v6, v5, 13, v6
        v_add_u32 v6, s{S_T0}, v6
        s_lshr_b32 s{S_T0}, s{S_T16}, 16
        s_xor_b32 s{S_T1}, s{S_T1}, s{S_T0}
        s_and_b32 s{S_T0}, s2, 0xc7
        s_lshl_b32 s{S_T1}, s{S_T1}, 3
        s_add_u32 s{S_T0}, s{S_T0}, s{S_T1}
        s_lshl_b32 s{S_T0}, s{S_T0}, 7
        s_lshl_b32 s{S_T1}, s{S_RT}, 2
        s_add_u32 s{S_T0}, s{S_T0}, s{S_T1}
        v_and_b32 v8, 1, v5
        v_lshlrev_b32 v8, 10, v8
        v_lshl_add_u32 v8, v2, 3, v8
        v_cmp_gt_u32 vcc, 16, v{V_LANE}
        v_add_u32 v8, s{S_T0}, v8
        s_nop 0
        v_cndmask_b32 v{V_PO}, v8, v6, vcc
        """)

    def img_params(simg, sstride, soff):
        a(f"""
        s_lshr_b32 s{S_T0}, s{S_CB}, 2
        s_and_b32 s{S_T1}, s{S_CB}, 3
        s_mul_i32 s{soff}, s{S_T0}, 896
        s_lshl_b32 s{S_T2}, s{S_T1}, 8
        s_add_u32 s{soff}, s{soff}, s{S_T2}
        s_lshr_b32 s{S_T2}, s{simg}, 1
        s_lshl_b32 s{S_T1}, s{S_T1}, 1
        s_add_u32 s{S_T1}, s{S_T1}, s{S_T2}
        s_lshl_b32 s{S_T2}, s{S_T2}, 7
        s_add_u32 s{soff}, s{soff}, s{S_T2}
        s_lshl_b32 s{S_T0}, s{S_T0}, 1
        s_and_b32 s{S_T2}, s{simg}, 1
        s_add_u32 s{S_T0}, s{S_T0}, s{S_T2}
        s_lshl_b32 s{S_T0}, s{S_T0}, 7
        s_movk_i32 s{sstride}, 3584
        s_cmp_eq_u32 s{S_T1}, 7
        s_cselect_b32 s{soff}, s{S_T0}, s{soff}
        s_cselect_b32 s{sstride}, 1024, s{sstride}
        """)
    def img_srd(r, sstride):
        a(f"""
        s_cmp_eq_u32 s{S_T2}, 0
        s_cselect_b32 s{r}, s{P_WG}, s{P_WU}
        s_cselect_b32 s{r+1}, s{P_WG+1}, s{P_WU+1}
        s_cmp_eq_u32 s{S_T1}, 7
        s_cselect_b32 s{r}, s{P_WQ}, s{r}
        s_cselect_b32 s{r+1}, s{P_WQ+1}, s{r+1}
        s_and_b32 s{r+1}, s{r+1}, 0xffff
        s_lshl_b32 s{r+2}, s{sstride}, 9
        s_mov_b32 s{r+3}, 0x20000
        """)

    ACC, XF, WF, V_XA, V_WR = 16, 144, 176, 192, 196
    V_RW, RA = 216, 4
    def acc(ti, rt): return ACC + 64*ti + 16*rt
    CL, CSUM = 224, 240
    L_CNT = L_W + 8192
    a(f"""
    v_and_b32 v5, 15, v{V_LANE}
    v_lshrrev_b32 v6, 4, v{V_LANE}
    v_lshrrev_b32 v7, 3, v{V_LANE}
    v_and_b32 v4, 7, v{V_LANE}
    v_xor_b32 v2, v6, v4
    v_lshlrev_b32 v2, 4, v2
    v_lshl_add_u32 v249, v7, 10, v2
    v_xor_b32 v250, 64, v249
    v_add_u32 v250, {8192-1024}, v250
    s_lshl_b32 s{S_T16}, s{S_RB}, 3
    s_lshr_b32 s{S_T2}, s{S_CB}, 1
    s_add_u32 s{S_T16}, s{S_T16}, s{S_T2}
    s_lshl_b32 s{S_T0}, s{S_T16}, 14
    s_lshl_b32 s{S_T1}, s{S_HW}, 8
    s_add_u32 s{S_XOFF}, s{S_T0}, s{S_T1}
    s_mov_b32 s{R_WKV+2}, 0x4000
    s_mov_b32 s{R_WKV+3}, 0x20000
    s_and_b32 s{S_CNT}, s{S_RB}, 3
    """)
    img_params(S_CNT, S_WSTEP, S_WOFF)
    a(f"""
    s_and_b32 s{S_T0}, s{S_RB}, 12
    s_add_u32 s{S_T0}, s{S_T0}, s{S_HW}
    s_lshl_b32 s{S_T0}, s{S_T0}, 3
    s_mul_i32 s{S_T0}, s{S_T0}, s{S_WSTEP}
    s_add_u32 s{S_WOFF}, s{S_T0}, s{S_WOFF}
    v_mul_u32_u24 v8, s{S_WSTEP}, v7
    v_lshl_add_u32 v248, v4, 4, v8
    s_add_u32 m0, s{S_H4K}, {L_PX}
    s_and_b32 s{S_T3}, s{S_CB}, 1
    s_waitcnt lgkmcnt(0)
    """)
    stamp()
    a(f"""
    s_mov_b32 s{R_X}, s{P_X}
    s_and_b32 s{R_X+1}, s{P_X+1}, 0xffff
    buffer_load_dwordx4 v249, {sr(R_X,4)}, s{S_XOFF} offen {'nt ' if 'p' in cfg.nt else ''}lds
    buffer_load_dwordx4 v250, {sr(R_X,4)}, s{S_XOFF} offen offset:1024 {'nt ' if 'p' in cfg.nt else ''}lds
    s_add_u32 m0, s{S_H4K}, {L_PX + 2048}
    s_add_u32 s{S_XOFF}, s{S_XOFF}, 128
    buffer_load_dwordx4 v249, {sr(R_X,4)}, s{S_XOFF} offen {'nt ' if 'p' in cfg.nt else ''}lds
    buffer_load_dwordx4 v250, {sr(R_X,4)}, s{S_XOFF} offen offset:1024 {'nt ' if 'p' in cfg.nt else ''}lds
    s_cmp_eq_u32 s{S_T3}, 0
    s_cselect_b32 s{R_WKV}, s{P_WK}, s{P_WV}
    s_cselect_b32 s{R_WKV+1}, s{P_WK+1}, s{P_WV+1}
    s_add_u32 m0, s{S_H4K}, {L_R}
    s_and_b32 s{R_WKV+1}, s{R_WKV+1}, 0xffff
    """)
    for e in range(4): a(f"buffer_load_dwordx4 v{V_L16}, {sr(R_WKV,4)}, s{S_H4K} offen offset:{1024*e} lds")
    img_srd(R_CW, S_WSTEP)
    a(f"s_lshl_b32 s{S_WSTEP}, s{S_WSTEP}, 7")
    csld = [f"buffer_load_dwordx4 {vr(CL+4*e,4)}, v248, {sr(R_CW,4)}, s{S_WOFF} offen{' nt' if 'c' in cfg.nt else ''}\ns_add_u32 s{S_WOFF}, s{S_WOFF}, s{S_WSTEP}" for e in range(4)]
    for l in csld[:cfg.n_csa]: a(l)
    a(f"""
    v_mov_b32 v10, 0
    v_mov_b32 v16, {L_CNT}
    ds_write_b32 v16, v10
    s_waitcnt lgkmcnt(0)
    """)
    stamp(name=1)
    a("s_barrier")
    stamp(name=2)
    a(f"""
    s_mov_b32 s{S_ONES}, 0x3f803f80
    s_add_u32 s{S_T3}, s{S_H4K}, {L_R}
    v_lshlrev_b32 v2, 3, v5
    v_lshl_add_u32 v2, v6, 8, v2
    v_add_u32 v130, s{S_T3}, v2
    v_lshrrev_b32 v3, 1, v5
    v_xor_b32 v3, v3, v6
    v_lshlrev_b32 v3, 4, v3
    v_lshl_add_u32 v3, v5, 7, v3
    v_add_u32 v128, s{S_H4K}, v3
    v_xor_b32 v129, 64, v128
    v_add_u32 v131, s{S_T3}, v{V_L16}
    v_mov_b32 v11, 1
    v_lshrrev_b32 v3, 5, v{V_LANE}
    v_and_b32 v7, 1, v6
    v_and_b32 v2, 1, v{V_LANE}
    v_bfe_u32 v4, v{V_LANE}, 1, 1
    v_lshl_add_u32 v2, v2, 1, v4
    v_bfe_u32 v8, v{V_LANE}, 2, 2
    v_lshl_add_u32 v4, v3, 3, v8
    v_lshlrev_b32 v4, 7, v4
    v_lshl_add_u32 v4, v2, 3, v4
    v_lshrrev_b32 v8, 1, v8
    v_lshl_add_u32 v8, v7, 1, v8
    v_xor_b32 v8, s{S_HW}, v8
    v_lshl_add_u32 v8, v8, 5, v4
    v_mul_u32_u24 v2, 24576, v7
    v_add_u32 v8, v8, v2
    v_add_u32 v{V_WR}, {L_W}, v8
    v_add_u32 v{V_WR+1}, {L_W + 49152}, v8
    v_and_b32 v2, 31, v{V_LANE}
    v_bfe_u32 v8, v{V_LANE}, 1, 3
    v_xor_b32 v8, v8, v3
    v_lshlrev_b32 v8, 4, v8
    v_lshl_add_u32 v{V_XA}, v2, 7, v8
    v_xor_b32 v{V_XA+1}, 32, v{V_XA}
    v_xor_b32 v{V_XA+2}, 64, v{V_XA}
    v_xor_b32 v{V_XA+3}, 96, v{V_XA}
    s_lshr_b32 s{S_EX}, s{S_T16}, 1
    s_lshl_b32 s{S_EX}, s{S_EX}, 11
    s_and_b32 s{S_T3}, s{S_T16}, 1
    s_and_b32 s{S_T2}, s{S_CB}, 1
    s_cmp_eq_u32 s{S_T2}, 0
    s_cbranch_scc0 L_pubV
    s_lshl_b32 s{S_T3}, s{S_T3}, 8
    s_add_u32 s{S_EX}, s{S_EX}, s{S_T3}
    v_lshl_add_u32 v2, v3, 5, v5
    s_lshl_b32 s{S_EX+1}, s{S_T16}, 7
    s_add_u32 s{S_EX+1}, s{S_EX+1}, {WS_ST}
    s_branch L_pub
    """)
    a.label("L_pubV")
    a(f"""
    s_lshl_b32 s{S_T3}, s{S_T3}, 9
    s_add_u32 s{S_EX}, s{S_EX}, s{S_T3}
    s_add_u32 s{S_EX}, s{S_EX}, 1024
    v_and_b32 v2, 3, v5
    v_bfe_u32 v4, v5, 2, 1
    v_lshl_add_u32 v2, v4, 3, v2
    v_bfe_u32 v4, v5, 3, 1
    v_lshl_add_u32 v2, v4, 2, v2
    v_lshl_add_u32 v2, v3, 4, v2
    s_mov_b32 s{S_EX+1}, {WS_SIZE}
    """)
    a.label("L_pub")
    a("v_lshlrev_b32 v2, 4, v2\nv_lshl_add_u32 v202, v7, 3, v2")
    def capture(fn):
        n = len(a.lines); fn(); L = a.lines[n:]; del a.lines[n:]; return L
    def part1():
        srd(R_WS, P_WS, WS_SIZE)
        a(f"""
        v_and_b32 v6, 7, v{V_LANE}
        v_lshrrev_b32 v4, 4, v{V_LANE}
        v_lshl_add_u32 v6, v6, 2, v4
        v_bfe_u32 v4, v{V_LANE}, 3, 1
        v_lshl_add_u32 v6, v6, 1, v4
        v_lshlrev_b32 v204, 4, v6
        s_lshl_b32 s{S_T0}, s{S_CB}, 14
        s_lshl_b32 s{S_T1}, s{S_RB}, 10
        s_add_u32 s{S_T0}, s{S_T0}, s{S_T1}
        s_lshl_b32 s{S_T1}, s{S_HW}, 2
        s_add_u32 s{S_T0}, s{S_T0}, s{S_T1}
        s_add_u32 s{S_CNT}, s{S_T0}, {WS_CS}
        v_mov_b32 v12, -1
        v_mov_b32 v13, -1
        v_mov_b32 v14, -1
        v_mov_b32 v15, -1
        """)
        setup_ids()
        a(f"s_add_u32 s{S_T2}, s{S_OST}, {WS_Q - WS_O}")
    def part2():
        srd(R_DBG, P_DBG, 256)
        common_setup()
        a(f"""
        v_add_u32 v206, {L_R}, v{V_L16}
        s_lshl_b32 s{S_T0}, s{S_HW}, 10
        v_add_u32 v207, s{S_T0}, v206
        s_lshr_b32 s{S_T0}, s{S_CB}, 2
        s_and_b32 s{S_T1}, s{S_CB}, 3
        s_mul_i32 s{S_T2}, s{S_RB}, 448
        s_mul_i32 s{S_T3}, s{S_T0}, 28
        s_add_u32 s{S_T2}, s{S_T2}, s{S_T3}
        s_lshl_b32 s{S_T3}, s{S_T1}, 3
        s_add_u32 s{S_T2}, s{S_T2}, s{S_T3}
        s_add_u32 s{S_T2}, s{S_T2}, s{S_HW}
        s_lshl_b32 s{S_T2}, s{S_T2}, 10
        s_add_u32 s{S_HST}, s{S_T2}, {WS_H}
        s_add_u32 s{S_HSB}, s{S_HST}, 4096
        s_lshl_b32 s{S_T2}, s{S_RB}, 7
        s_lshl_b32 s{S_T3}, s{S_T0}, 3
        s_add_u32 s{S_T2}, s{S_T2}, s{S_T3}
        s_add_u32 s{S_T2}, s{S_T2}, s{S_HW}
        s_lshl_b32 s{S_T2}, s{S_T2}, 10
        s_add_u32 s{S_T2}, s{S_T2}, {WS_Q}
        """)
    defer1 = capture(part1)
    defer2 = capture(part2) + [f"s_cmp_eq_u32 s{S_T1}, 3\ns_cselect_b32 s{S_HSB}, s{S_T2}, s{S_HSB}"]
    PX, PW, PACC, PCS, PRS, PSQ, PONE, PSQP, PF1, RD = 24, 40, 56, 60, 64, 68, 72, 76, 77, 80
    for i in range(4): a(f"v_mov_b32 v{PONE+i}, s{S_ONES}")
    init = [f"buffer_store_dwordx4 v[12:15], v{V_L16}, {sr(R_WS,4)}, s{S_T2} offen sc1",
            f"buffer_store_dwordx4 v[12:15], v{V_L16}, {sr(R_WS,4)}, s{S_T2} offen offset:2048 sc1",
            f"s_mov_b64 exec, 3\nbuffer_store_dword v10, v{V_L16}, {sr(R_WS,4)}, s{S_FLG} offen sc1\ns_mov_b64 exec, -1"]
    stamp(name=3)
    a(f"v_mov_b32 v{PF1}, 1.0\nv_mov_b32 v{PSQP}, 0\ns_waitcnt vmcnt({cfg.n_csa})")
    stamp(); stamp(name=4)
    for s in range(4): a(f"ds_read_b128 {vr(PX+4*s,4)}, v{128 + (s & 1)} offset:{L_PX + 2048*(s >> 1)}")
    for s in range(4):
        for t in range(2): a(f"ds_read_b64_tr_b16 {vr(PW+4*s+2*t,2)}, v130 offset:{1024*s+128*t}")
    a("s_waitcnt lgkmcnt(8)")
    for i in range(16): a(f"v_dot2c_f32_bf16 v{PSQP}, v{PX+i}, v{PX+i}")
    a(f"s_and_b32 s{S_T0}, s{S_CB}, 1\ns_cmp_eq_u32 s{S_T0}, 0\ns_waitcnt lgkmcnt(0)\ns_cbranch_scc0 L_preV")
    for form in range(2):
        if form == 1: a.label("L_preV")
        def mm(d, w, x, first):
            return mfma16(d, w, x, None if first else d) if form == 0 else mfma16(d, x, w, None if first else d)
        a(f"v_mfma_f32_16x16x4_f32 {vr(PSQ,4)}, v{PF1}, v{PSQP}, 0" if form == 0 else f"v_mfma_f32_16x16x4_f32 {vr(PSQ,4)}, v{PSQP}, v{PF1}, 0")
        for s in range(4):
            a(mm(PRS, PONE, PX + 4*s, s == 0)); a(mm(PCS, PW + 4*s, PONE, s == 0)); a(mm(PACC, PW + 4*s, PX + 4*s, s == 0))
        if form == 0: a("s_branch L_pre_w")
    a.label("L_pre_w")
    a(f"s_cmp_eq_u32 s{S_HW}, 0\ns_cbranch_scc1 L_fin\ns_nop 3")
    for q, r in ((3, PSQ), (2, PRS), (1, PCS), (0, PACC)): a(f"ds_write_b128 v131, {vr(r,4)} offset:{1024*q}")
    a(f"s_waitcnt lgkmcnt(0)\ns_mov_b64 exec, 1\nds_add_u32 v16, v11\ns_mov_b64 exec, -1\ns_branch L_nofin")
    a.label("L_fin")
    a(f"ds_read_b32 v19, v16\ns_waitcnt lgkmcnt(0)\nv_cmp_gt_u32 vcc, 3, v19\ns_nop 0\ns_cbranch_vccnz L_fin")
    for w in (1, 2, 3):
        for q in range(4): a(f"ds_read_b128 {vr(RD + 16*(w-1) + 4*q,4)}, v131 offset:{4096*w + 1024*q}")
    for w in (1, 2, 3):
        a(f"s_waitcnt lgkmcnt({12 - 4*w})")
        for i in range(0, 16, 2): a(f"v_pk_add_f32 {vr(PACC+i,2)}, {vr(PACC+i,2)}, {vr(RD+16*(w-1)+i,2)}")
    for i in range(4):
        a(f"v_mul_f32 v{PRS+i}, {hex(f2u(-1.0/512))}, v{PRS+i}")
        a(f"v_mul_f32 v{PSQ+i}, {hex(f2u(1.0/512))}, v{PSQ+i}")
        a(f"v_fma_f32 v{PSQ+i}, -v{PRS+i}, v{PRS+i}, v{PSQ+i}")
        a(f"v_max_f32 v{PSQ+i}, 0, v{PSQ+i}")
        a(f"v_add_f32 v{PSQ+i}, {hex(f2u(1e-5))}, v{PSQ+i}")
        a(f"v_rsq_f32 v{PX+i}, v{PSQ+i}")
        a(f"v_fmac_f32 v{PACC+i}, v{PRS+i}, v{PCS+i}")
    for i in range(4): a(f"v_mul_f32 v{PACC+i}, v{PACC+i}, v{PX+i}")
    a(f"""
    v_cvt_pk_bf16_f32 v198, v{PACC}, v{PACC+1}
    v_cvt_pk_bf16_f32 v199, v{PACC+2}, v{PACC+3}
    v_mov_b32 v200, v{PRS}
    v_mov_b32 v201, v{PSQ}
    """)
    a.label("L_nofin")
    stamp(name=5)
    init += [f"s_cmp_lg_u32 s{S_HW}, 0\ns_cbranch_scc1 L_nopub\nv_lshlrev_b32 v3, 3, v{V_LANE}\n"
             f"buffer_store_dwordx2 v[198:199], v202, {sr(R_WS,4)}, s{S_EX} offen sc1\ns_mov_b64 exec, 0xffff\n"
             f"buffer_store_dwordx2 v[200:201], v3, {sr(R_WS,4)}, s{S_EX+1} offen sc1\ns_mov_b64 exec, -1\nL_nopub:"]
    def cs_compute():
        L = ["s_waitcnt vmcnt(0)"]
        for i in range(4):
            L += [f"v_lshlrev_b32 v{CSUM+2*i}, 16, v{CL+i}", f"v_and_b32 v{CSUM+2*i+1}, 0xffff0000, v{CL+i}"]
            for e in range(1, 4):
                L += [f"v_lshlrev_b32 v2, 16, v{CL+4*e+i}", f"v_and_b32 v3, 0xffff0000, v{CL+4*e+i}", f"v_add_f32 v{CSUM+2*i}, v{CSUM+2*i}, v2", f"v_add_f32 v{CSUM+2*i+1}, v{CSUM+2*i+1}, v3"]
        L += [f"v_permlane32_swap_b32 v{CSUM+j}, v{CSUM+4+j}" for j in range(4)]
        L += [f"v_add_f32 v{CSUM+j}, v{CSUM+j}, v{CSUM+4+j}" for j in (0, 2, 1, 3)]
        L += [f"v_permlane16_swap_b32 v{CSUM}, v{CSUM+2}", "s_nop 0", f"v_permlane16_swap_b32 v{CSUM+1}, v{CSUM+3}"]
        L += [f"v_add_f32 v{CSUM}, v{CSUM}, v{CSUM+2}", f"v_add_f32 v{CSUM+1}, v{CSUM+1}, v{CSUM+3}", "s_nop 0"]
        L += [f"v_add_f32_dpp v2, v{CSUM}, v{CSUM} row_ror:8 row_mask:0xf bank_mask:0xf", f"v_add_f32_dpp v2, v{CSUM+1}, v{CSUM+1} row_ror:8 row_mask:0xf bank_mask:0xc"]
        L += [f"v_mov_b32 v203, v2"]
        return L
    init.insert(0, f"buffer_store_dword v203, v204, {sr(R_WS,4)}, s{S_CNT} offen sc1")
    for l in (cs_compute() if cfg.n_csa == 4 else csld[cfg.n_csa:]): a(l)
    assert cfg.g_init == 3
    stamp(name=6)
    a("s_barrier")
    nst[0] = 2
    stamp(name="b0"); pad("b0")
    def g1_reads(g):
        c, s = divmod(g, 4); slot = (c + 2) % 3; st = g & 1
        xr = [f"ds_read_b128 {vr(XF+16*st+4*rt,4)}, v{V_XA+s} offset:{XS[c]*16384 + rt*4096}" for rt in range(4)]
        wr = [[f"ds_read_b64_tr_b16 {vr(WF+8*st+4*ti+2*t,2)}, v{V_WR+ti} offset:{slot*8192 + s*2048 + t*512}" for t in range(2)] for ti in range(2)]
        return [wr[0][0], wr[0][1], xr[0], wr[1][0], wr[1][1], xr[1], xr[2], xr[3]]
    for l in g1_reads(0): a(l)
    extra = {g: [] for g in range(32)}
    if cfg.g_init >= 0 and cfg.g_init & 3 != 3: extra[cfg.g_init] += init
    extra[4*cfg.c_arr + 3] += [f"s_cmp_lg_u32 s{S_W}, 0\ns_cbranch_scc1 L_noarr\ns_and_b32 s{S_EX}, s2, 7\ns_lshl_b32 s{S_EX}, s{S_EX}, 5\n"
                  f"s_mov_b64 exec, 1\nbuffer_atomic_add v11, off, {sr(R_DBG,4)}, s{S_EX} sc1\ns_mov_b64 exec, -1\nL_noarr:"]
    def split2(src, dst, dup):
        if dup:
            return [f"v_cvt_pk_bf16_f32 v{dst}, v{src}, v{src}", f"v_and_b32 v2, 0xffff0000, v{dst}", f"v_sub_f32 v2, v{src}, v2", f"v_cvt_pk_bf16_f32 v{dst+1}, v2, v2"]
        return [f"v_cvt_pk_bf16_f32 v{dst}, v{src}, v{src}", f"v_and_b32 v2, 0xffff0000, v{dst}", f"v_sub_f32 v2, v{src}, v2", f"v_cvt_pk_bf16_f32 v{dst}, v{src}, v2", f"v_mov_b32 v{dst+1}, v{dst}"]
    prep = [f"ds_read_b128 {vr(RA,4)}, v207 offset:8192"] + [f"ds_read_b128 {vr(V_RW+4*i,4)}, v206 offset:{1024*i}" for i in range(8)]
    for g in range(32):
        c, s = divmod(g, 4); st = g & 1
        last = g == 31
        a("s_waitcnt vmcnt(0) lgkmcnt(0)" if g == 4*cfg.c_arr + 3 else "s_waitcnt lgkmcnt(0)")
        rd = [] if last or cfg.nord else g1_reads(g + 1)
        gaps = [[] for _ in range(8)]
        o = 0
        if s == 3:
            gaps[0] = (cs_compute() if g == 3 and cfg.n_csa < 4 else []) + (init if g == cfg.g_init else []) + ["s_barrier"]; o = 1
        for i, l in enumerate(rd): gaps[o + i // 2].append(l)
        for i, l in enumerate(extra[g]): gaps[min(7, o + 4 + i)].append(l)
        dl = defer1 if g < 3 else defer2
        for k in range(o + 4, 8):
            if not gaps[k]:
                gaps[k] = dl[:5]; del dl[:5]
        assert not (g >= 2 and defer1) and not (g >= 25 and defer2)
        if last:
            for i, l in enumerate(prep): gaps[1 + i // 2].append(l)
        for k in range(8):
            rt, ti = divmod(k, 2)
            if cfg.mord == 1: ti ^= rt & 1
            if cfg.mord == 2: ti, rt = divmod(k, 4); rt = 3 - rt if ti else rt
            if cfg.m16:
                b = acc(ti, rt) + 8*(g & 1)
                a(mfma16(b, WF + 8*st + 4*ti, XF + 16*st + 4*rt, None if g < 2 else b))
                for l in gaps[k][:1]: a(l)
                a(mfma16(b + 4, WF + 8*st + 4*(1-ti), XF + 16*st + 4*(rt^1), None if g < 2 else b + 4))
                for l in gaps[k][1:]: a(l)
            else:
                if cfg.mswap: a(mfma32(acc(ti, rt), XF + 16*st + 4*rt, WF + 8*st + 4*ti, None if g == 0 else acc(ti, rt)))
                else: a(mfma32(acc(ti, rt), WF + 8*st + 4*ti, XF + 16*st + 4*rt, None if g == 0 else acc(ti, rt)))
                for l in gaps[k]: a(l)
            if k == 0 and (g == 27 or (cfg.stamps == 4 and s == 3)): stamp()
    stamp(name="g1"); pad("g1")
    KG = 2.0 * math.sqrt(2.0 / math.pi) * math.log2(math.e)
    def rank1(ti, rt): return f"v_mfma_f32_32x32x8_bf16 {vr(acc(ti,rt),16)}, {vr(RA+2*ti,2)}, {vr(V_RW+8*rt,2)}, {vr(acc(ti,rt),16)}"
    def gelu(ti, rt, mf=()):
        A = acc(ti, rt); b = V_RW + 8*rt + 4; vp = V_RW + 8*rt + 2
        t1, t2, o = 144, 152, HO + 16*ti + 4*rt
        mf = list(mf)
        L = [".p2align 3"]
        for i in range(0, 8, 2): L.append(f"v_pk_mul_f32 {vr(t1+i,2)}, {vr(A+i,2)}, {vr(A+i,2)}")
        for i in range(0, 8, 2): L.append(f"v_pk_fma_f32 {vr(t1+i,2)}, {vr(t1+i,2)}, {vr(b+2,2)}, {vr(b,2)}")
        for i in range(0, 8, 2): L.append(f"v_pk_mul_f32 {vr(t1+i,2)}, {vr(t1+i,2)}, {vr(A+i,2)}")
        L += mf[:1]
        for i in range(8): L.append(f"v_exp_f32 v{t1+i}, v{t1+i}")
        for i in range(0, 8, 2): L.append(f"v_pk_mul_f32 {vr(t2+i,2)}, {vr(A+i,2)}, {vr(A+8+i,2)}")
        for i in range(0, 8, 2): L.append(f"v_pk_fma_f32 {vr(t1+i,2)}, {vr(t1+i,2)}, {vr(vp,2)}, {vr(vp,2)}")
        L += mf[1:]
        for i in range(8): L.append(f"v_rcp_f32 v{t1+i}, v{t1+i}")
        for i in range(0, 8, 2): L.append(f"v_pk_mul_f32 {vr(t2+i,2)}, {vr(t2+i,2)}, {vr(t1+i,2)}")
        for i in range(4): L.append(f"v_cvt_pk_bf16_f32 v{o+i}, v{t2+2*i}, v{t2+2*i+1}")
        return L
    def qtile(rt):
        A = acc(1, rt); tb = 144 + 8*(rt & 1); b = 198 + 2*rt
        L = [f"s_add_u32 s{S_T0}, s{S_HSB}, {32768*rt}", f"s_add_u32 s{S_T1}, s{S_T0}, 4096"]
        for hd in range(2):
            for i in range(8*hd, 8*hd + 8, 2): L.append(f"v_pk_mul_f32 {vr(A+i,2)}, {vr(A+i,2)}, {vr(b,2)}")
            for i in range(4*hd, 4*hd + 4): L.append(f"v_cvt_pk_bf16_f32 v{tb+i}, v{A+2*i}, v{A+2*i+1}")
            for i in range(4*hd, 4*hd + 4): L.append(f"v_min_u32 v{tb+i}, -2, v{tb+i}")
            L.append(f"buffer_store_dwordx4 {vr(tb+4*hd,4)}, v{V_L16}, {sr(R_WS,4)}, s{S_T0 + hd} offen sc1")
        return L
    L_HQ = L_KV + 49152
    def att_regs():
        a(f"""
        v_and_b32 v5, 27, v{V_LANE}
        v_cmp_eq_u32 vcc, 16, v5
        v_mov_b32 v6, s{S_ONES}
        v_mov_b32 v{V_IDX}, 0xdddddddd
        v_cndmask_b32 v{VF}, 0, v6, vcc
        v_mov_b32 v{VF+1}, v{VF}
        """)
        for i in range(2, 16, 2): a(f"v_mov_b64 {vr(VF+i,2)}, {vr(VF,2)}")
        for i in range(0, 16, 2): a(f"v_mov_b64 {vr(OO+i,2)}, 0")
        a(f"s_lshl_b32 s{S_T0}, s{S_KQ}, 13\ns_add_u32 s{S_T0}, s{S_T0}, {L_WO - L_WD}\nv_add_u32 v{V_OA}, s{S_T0}, v{V_DA}\nv_xor_b32 v{V_OA+1}, 64, v{V_OA}")
        a(f"s_lshl_b32 s{S_T0}, s{S_HW}, 11\nv_add_u32 v7, s{S_T0}, v{V_L16}")
    def kv_first():
        a(f"ds_read_b128 {vr(KF,4)}, v{V_KA} offset:{kv_off(0)}\nds_read_b128 {vr(KF+4,4)}, v{V_KA} offset:{kv_off(1)}")
        a(f"s_mov_b64 exec, {sr(S_VM,2)}\nds_read_b128 {vr(VF,4)}, v{V_VA} offset:{kv_off(0)}\ns_mov_b64 exec, -1")
    a(f"s_and_b32 s{S_T1}, s{S_CB}, 3\ns_cmp_eq_u32 s{S_T1}, 3\ns_waitcnt lgkmcnt(0)\ns_cbranch_scc1 L_qt")
    a(rank1(0, 0))
    a.nop(12)
    order = [(ti, rt) for rt in range(4) for ti in range(2)]
    for i, (ti, rt) in enumerate(order):
        if i == cfg.i_q: a("s_barrier")
        for l in gelu(ti, rt, [rank1(*order[i+1])] if i < 7 else []): a(l)
    a("s_branch L_joinA")
    a.label("L_qt")
    for rt in range(4):
        a(rank1(1, rt))
        a(f"v_mul_f32 v{198+2*rt}, {hex(f2u(-0.25*math.log2(math.e)/KG))}, v{V_RW+8*rt+4}\nv_mov_b32 v{199+2*rt}, v{198+2*rt}")
    a(".p2align 3")
    for rt in range(4):
        for l in qtile(rt): a(l)
    a(rank1(0, 0))
    a(f"s_mov_b32 s{S_HSB}, {WS_SIZE}")
    a.nop(11)
    for rt in range(4):
        if rt == cfg.i_qb: a("s_barrier")
        for l in gelu(0, rt, [rank1(0, rt + 1)] if rt < 3 else []): a(l)
    a.label("L_joinA")
    nst[0] = 12 if cfg.stamps == 4 else 5
    stamp()
    att_regs()
    kv_first()
    a("s_barrier")
    stamp(name="att0"); pad("att0")
    a(f"ds_read_b128 {vr(QF,4)}, v7 offset:{L_HQ}")
    for i in range(4): a(f"ds_read_b128 {vr(CC+4*i,4)}, v7 offset:{L_HQ + 1024}")
    a("s_waitcnt lgkmcnt(0)")
    a(mfma32(S0, KF, QF, CC))
    a("s_nop 3\ns_branch L_attA")

    a.label("L_helper")
    V_XD, V_WD = 192, 194
    PX, PW = 8, 24
    PACC, PCS, PRS, PSQ = 40, 44, 48, 52
    PONE, PSQP, PF1 = 56, 60, 61
    RD = 64
    a(f"""
    s_lshl_b32 s{S_XOFF}, s{S_RB}, 17
    s_lshl_b32 s{S_T0}, s{S_HW}, 15
    s_add_u32 s{S_XOFF}, s{S_XOFF}, s{S_T0}
    v_and_b32 v5, 15, v{V_LANE}
    v_lshrrev_b32 v6, 4, v{V_LANE}
    v_lshrrev_b32 v7, 3, v{V_LANE}
    v_and_b32 v63, 7, v{V_LANE}
    v_xor_b32 v62, v6, v63
    v_lshlrev_b32 v62, 4, v62
    v_lshl_add_u32 v{V_XD}, v7, 10, v62
    v_xor_b32 v{V_XD+1}, 64, v{V_XD}
    v_add_u32 v{V_XD+1}, {8192-1024}, v{V_XD+1}
    """)
    img_params(S_HW, S_WSTEP, S_WOFF)
    a(f"""
    v_and_b32 v62, 1, v6
    v_lshlrev_b32 v62, 1, v62
    v_xor_b32 v62, v62, v63
    s_lshl_b32 s{S_T0}, s{S_T2}, 2
    v_xor_b32 v62, s{S_T0}, v62
    v_lshlrev_b32 v62, 4, v62
    v_mul_u32_u24 v{V_WD}, s{S_WSTEP}, v7
    v_add_u32 v{V_WD}, v{V_WD}, v62
    s_waitcnt lgkmcnt(0)
    """)
    nst[0] = 0
    stamp()
    a(f"s_mov_b32 s{R_X}, s{P_X}\ns_and_b32 s{R_X+1}, s{P_X+1}, 0xffff")
    Q = []
    def issue(tag, text): a(text); Q.append(tag)
    def vwait(tag, more=""):
        n = len(Q) - 1 - max(i for i, t in enumerate(Q) if t == tag)
        a(f"s_waitcnt vmcnt({n})" + more)
    def xitems(c):
        slot = XS[c]
        return [(f"C{c}", f"s_add_u32 m0, s{S_H4K}, {L_X + slot*16384}\ns_add_u32 s{S_CNT}, s{S_XOFF}, {c*128 + (16384 - 2048)*(e >> 1)}\n"
                 f"buffer_load_dwordx4 v{V_XD + (e & 1)}, {sr(R_X,4)}, s{S_CNT} offen offset:{1024*e} {'nt ' if 'x' in cfg.nt else ''}lds") for e in range(4)]
    def witems(c):
        slot = (c + 2) % 3
        return [(f"C{c}", f"s_add_u32 m0, s{S_M0W}, {slot*8192 + e*1024}\n" + (f"s_add_u32 s{S_WOFF}, s{S_WOFF}, s{S_WSTEP}" if c + e else "s_nop 0") +
                 f"\nbuffer_load_dwordx4 v{V_WD}, {sr(R_W,4)}, s{S_WOFF} offen {'nt ' if 'w' in cfg.nt else ''}lds") for e in range(8)]
    stream = []
    for c in range(1, 8): stream += [(t, x if c < 3 or not cfg.nodma else 's_nop 0') for t, x in witems(c) + xitems(c)]
    pos = [0]
    def take(n):
        for _ in range(n):
            if pos[0] < len(stream): issue(*stream[pos[0]]); pos[0] += 1
    def upto(c):
        return min(len(stream), 12*(c + 1) + cfg.lead[c])
    def mix(lines, n):
        k = 0
        for i, l in enumerate(lines):
            while k < n and k * len(lines) <= i * n: take(1); k += 1
            a(l)
        take(n - k)
    img_srd(R_W, S_WSTEP)
    a(f"s_lshl_b32 s{S_WSTEP}, s{S_WSTEP}, 3\ns_mul_i32 s{S_M0W}, s{S_HW}, 24576\ns_add_u32 s{S_M0W}, s{S_M0W}, {L_W}")
    stamp(name=1)
    a("s_barrier")
    for it in xitems(0) + witems(0): issue(*it)
    stamp(name=3)
    def bar():
        if cfg.stamps == 4: stamp()
        a("s_barrier")
    take(cfg.lead0)
    stamp(name=4)
    nst[0] = 2; vwait("C0"); stamp(name=6); bar()
    def b_setup():
        srd(R_WS, P_WS, WS_SIZE)
        srd(R_DBG, P_DBG, 256)
        a(f"s_mov_b32 s{S_ONES}, 0x3f803f80")
        setup_ids()
        common_setup()
        a(f"""
        v_and_b32 v2, 31, v{V_LANE}
        v_lshlrev_b32 v206, 3, v2
        v_and_b32 v6, 3, v{V_LANE}
        v_bfe_u32 v8, v{V_LANE}, 2, 1
        v_lshl_add_u32 v6, v8, 3, v6
        v_bfe_u32 v8, v{V_LANE}, 3, 1
        v_lshl_add_u32 v6, v8, 2, v6
        v_lshlrev_b32 v6, 4, v6
        v_lshl_add_u32 v6, v7, 10, v6
        v_lshl_add_u32 v207, v3, 13, v6
        v_mov_b32 v11, 1
        """)
        for i in range(4): a(f"v_mov_b32 v{12+i}, -1")
        att_regs()
    bs = capture(b_setup)
    nbs = -(-len(bs) // 3)
    pfl = [f"s_mul_i32 s{S_T0}, s2, 7168\ns_lshl_b32 s{S_T1}, s{S_HW}, 11\ns_add_u32 s{S_T0}, s{S_T0}, s{S_T1}\nbuffer_load_dwordx4 {vr(HF,4)}, v{V_L16}, {sr(R_WD,4)}, s{S_T0} offen",
           f"buffer_load_dwordx4 {vr(HF+4,4)}, v{V_L16}, {sr(R_WD,4)}, s{S_T0} offen offset:1024",
           f"s_lshl_b32 s{S_T1}, s2, 11\ns_lshl_b32 s{S_T3}, s{S_HW}, 9\ns_add_u32 s{S_T1}, s{S_T1}, s{S_T3}\ns_mov_b32 exec_hi, 0\nbuffer_load_dwordx4 {vr(HF+8,4)}, v{V_L16}, {sr(R_WO,4)}, s{S_T1} offen\ns_mov_b64 exec, -1"]
    spoll = f"buffer_load_dword v8, v6, {sr(R_DBG,4)}, s{S_T2} offen sc1"
    def first_poll():
        a(f"v_and_b32 v6, 7, v{V_LANE}\nv_lshlrev_b32 v6, 5, v6\ns_lshl_b32 s{S_T2}, s{S_HW}, 8")
        issue("P", spoll)
        if cfg.t_pf < 0:
            for x in pfl: issue("PF", x)
    for c in range(6):
        if c in (2, 3, 4): mix(bs[(c-2)*nbs:(c-1)*nbs], upto(c) - pos[0])
        take(upto(c) - pos[0])
        if c == 5 and cfg.t_pf == -1: first_poll()
        vwait(f"C{c+1}"); bar()
    assert pos[0] == len(stream)
    if cfg.t_pf != -1:
        if cfg.t_pf >= 0: vwait("C7")
        first_poll()
    vwait("P")
    a(f"s_cmp_lg_u32 s{S_HW}, 0\ns_cbranch_scc1 L_sync1\ns_mov_b32 s{S_SPIN}, 0")
    a.label("L_sync1_chk")
    a(f"""
    v_cmp_gt_u32 vcc, 32, v8
    s_add_u32 s{S_SPIN}, s{S_SPIN}, 1
    s_cbranch_vccz L_sync1
    s_cmp_ge_u32 s{S_SPIN}, {SPIN_MAX}
    s_cbranch_scc1 L_sync1
    {spoll}
    s_waitcnt vmcnt(0)
    s_branch L_sync1_chk
    """)
    a.label("L_sync1")
    if cfg.stamps != 4: nst[0] = 3
    stamp()
    def maxtree(src, dst, init=None):
        L = []
        if init is None:
            L.append(f"v_max3_f32 v{dst}, v{src}, v{src+1}, v{src+2}")
            L.append(f"v_max_f32 v{dst}, v{src+3}, v{dst}")
            k = 4
        else:
            k = 0
        for i in range(k, 16, 2): L.append(f"v_max3_f32 v{dst}, v{src+i}, v{src+i+1}, v{dst}")
        return L
    def setC(m, shift):
        a(f"v_mov_b32 v{m+1}, v{m}\ns_nop 1\nv_permlane32_swap_b32 v{m}, v{m+1}\nv_max_f32 v{m}, v{m}, v{m+1}")
        a(f"v_sub_f32 v{CC}, {hex(f2u(-shift)) if shift else 0}, v{m}")
        a(f"v_mov_b32 v{CC+1}, v{CC}")
        for i in range(2, 16, 2): a(f"v_mov_b64 {vr(CC+i,2)}, {vr(CC,2)}")
    a(f"""
    s_lshl_b32 s{S_T3}, s{S_HW}, 8
    s_lshl_b32 s{S_T0}, s{S_RB}, 10
    s_add_u32 s{S_T0}, s{S_T0}, s{S_T3}
    s_add_u32 s{S_T0}, s{S_T0}, {WS_ST}
    s_lshl_b32 s{S_T1}, s{S_CB}, 14
    s_add_u32 s{S_T1}, s{S_T1}, s{S_T3}
    s_add_u32 s{S_T1}, s{S_T1}, {WS_CS}
    s_add_u32 s{S_T3}, s{S_T1}, 4096
    s_setprio 2
    s_barrier
    """)
    BS, BC, BO = 128, 132, 148
    a(f"buffer_load_dwordx2 {vr(BS,2)}, v206, {sr(R_WS,4)}, s{S_T0} offen sc1")
    for ti in range(2):
        for p in range(2): a(f"buffer_load_dwordx4 {vr(BC+8*ti+4*p,4)}, v207, {sr(R_WS,4)}, s{S_T3 if p else S_T1} offen offset:{2048*ti} sc1")
    nk = 8 if cfg.kv_early == 2 else 0
    if nk:
        for c in range(2):
            slot = (c + 1) % 3
            a(f"s_add_u32 m0, s{S_H4K}, {L_KV + slot*16384}\ns_add_u32 s{S_T0}, s{S_H4K}, {WS_KV + starts[c]*2048}")
            for e in range(4):
                a(f"buffer_load_dwordx4 v{V_L16}, {sr(R_WS,4)}, s{S_T0} offen offset:{1024*e} sc1 lds")
    a(f"v_add_u32 v4, {L_R}, v7\ns_lshl_b32 s{S_T0}, s{S_HW}, 10\ns_add_u32 s{S_T0}, s{S_T0}, {L_R + 8192}\nv_add_u32 v5, s{S_T0}, v{V_L16}\ns_waitcnt vmcnt({4 + nk})")
    a(f"v_rsq_f32 v3, v{BS+1}")
    for l in split2(BS, BO, False): a(l)
    a(f"""
    v_mov_b32 v{BO+2}, v{BS+1}
    v_mov_b32 v{BO+3}, v{BS+1}
    v_mul_f32 v{BO+4}, {hex(f2u(-KG))}, v3
    v_mul_f32 v2, v3, v3
    v_mul_f32 v{BO+6}, {hex(f2u(0.044715))}, v{BO+4}
    v_mov_b32 v{BO+5}, v{BO+4}
    v_mul_f32 v{BO+6}, v{BO+6}, v2
    v_mov_b32 v{BO+7}, v{BO+6}
    ds_write_b128 v4, {vr(BO,4)}
    ds_write_b128 v4, {vr(BO+4,4)} offset:1024
    s_waitcnt vmcnt({nk})
    """)
    for ti in range(2):
        for i in range(1, 8): a(f"v_add_f32 v{BC+8*ti}, v{BC+8*ti}, v{BC+8*ti+i}")
        for l in split2(BC + 8*ti, BO + 8 + 2*ti, True): a(l)
    a(f"ds_write_b128 v5, {vr(BO+8,4)}\ns_setprio 0")
    if cfg.kv_early == 1:
        for c in range(2):
            slot = (c + 1) % 3
            a(f"s_add_u32 m0, s{S_H4K}, {L_KV + slot*16384}\ns_add_u32 s{S_T0}, s{S_H4K}, {WS_KV + starts[c]*2048}")
            for e in range(4):
                a(f"buffer_load_dwordx4 v{V_L16}, {sr(R_WS,4)}, s{S_T0} offen offset:{1024*e} sc1 lds")
    a("s_waitcnt lgkmcnt(0)")
    a("s_barrier")
    if cfg.kv_early == 0:
        for c in range(2):
            slot = (c + 1) % 3
            a(f"s_add_u32 m0, s{S_H4K}, {L_KV + slot*16384}\ns_add_u32 s{S_T0}, s{S_H4K}, {WS_KV + starts[c]*2048}")
            for e in range(4):
                a(f"buffer_load_dwordx4 v{V_L16}, {sr(R_WS,4)}, s{S_T0} offen offset:{1024*e} sc1 lds")
    QP = 128
    qload = (f"buffer_load_dwordx4 {vr(QP,4)}, v{V_L16}, {sr(R_WS,4)}, s{S_T2} offen sc1\n"
             f"buffer_load_dwordx4 {vr(QF,4)}, v{V_L16}, {sr(R_WS,4)}, s{S_T2} offen offset:2048 sc1")
    a(f"s_add_u32 s{S_T2}, s{S_OST}, {WS_Q - WS_O - 2048}\ns_mov_b32 s{S_SPIN}, 0\ns_waitcnt vmcnt(0)\ns_barrier\ns_setprio 2")
    a(qload)
    kv_first()
    nst[0] = 12 if cfg.stamps == 4 else 5
    stamp()
    a.label("L_qchk")
    a(f"""
    s_waitcnt vmcnt(0) lgkmcnt(0)
    v_max3_u32 v8, v{QF}, v{QF+1}, v{QF+2}
    v_max3_u32 v8, v8, v{QF+3}, v{QP}
    v_max3_u32 v8, v8, v{QP+1}, v{QP+2}
    v_max_u32 v8, v8, v{QP+3}
    v_cmp_eq_u32 vcc, -1, v8
    s_add_u32 s{S_SPIN}, s{S_SPIN}, 1
    s_cbranch_vccz L_qok
    s_cmp_ge_u32 s{S_SPIN}, {SPIN_MAX}
    s_cbranch_scc1 L_qok
    s_sleep 2
    {qload}
    s_branch L_qchk
    """)
    a.label("L_qok")
    if cfg.stamps == 1:
        n0 = nst[0]; nst[0] = 4; stamp(); nst[0] = n0
        a(f"v_writelane_b32 v{V_STAMP}, s{S_SPIN}, 63")
    a(mfma32(S0, KF, QP, None)); a(mfma32(S1, KF, QF, None))
    a(f"ds_write_b128 v7, {vr(QP,4)} offset:{L_HQ}")
    a.nop(10)
    for l in maxtree(S0, 8): a(l)
    a(f"v_mov_b32 v9, v8\ns_nop 1\nv_permlane32_swap_b32 v8, v9\nv_max_f32 v8, v8, v9\nv_sub_f32 v{QP+4}, {hex(f2u(-cfg.shift))}, v8")
    a(f"v_mov_b32 v{QP+5}, v{QP+4}\nv_mov_b64 {vr(QP+6,2)}, {vr(QP+4,2)}\nds_write_b128 v7, {vr(QP+4,4)} offset:{L_HQ + 1024}")
    for l in maxtree(S1, 8): a(l)
    if cfg.g_early:
        a("s_waitcnt lgkmcnt(0)\ns_barrier")
        stamp(name="att0"); pad("att0")
    setC(8, cfg.shift)
    a("s_waitcnt lgkmcnt(0)\ns_setprio 0")
    a(mfma32(S0, KF, QF, CC))
    if not cfg.g_early:
        a("s_barrier")
        stamp(name="att0"); pad("att0")
    a("s_nop 3\ns_branch L_attB")

    def kvdma(c, half):
        slot = (c + 1) % 3
        L = (f"s_add_u32 m0, s{S_W2K}, {L_KV + slot*16384}\ns_add_u32 s{S_T0}, s{S_W2K}, {WS_KV + starts[c]*2048}\n")
        if half == 1 and sizes[c] < 8:
            L += f"s_cmp_ge_u32 s{S_W}, {sizes[c]}\ns_cselect_b32 s{S_T0}, {WS_SIZE}, s{S_T0}\n"
        return [L + f"buffer_load_dwordx4 v{V_L16}, {sr(R_WS,4)}, s{S_T0} offen sc1 lds",
                f"buffer_load_dwordx4 v{V_L16}, {sr(R_WS,4)}, s{S_T0} offen offset:1024 sc1 lds"]
    def rowdma(rs, sbase, add, ldsbase, e):
        pre = f"s_add_u32 m0, s{S_W4K}, {ldsbase}\n"
        return pre + f"s_add_u32 s{S_T0}, s{sbase}, {add + e*7168}\nbuffer_load_dwordx4 v{V_WDD}, {sr(rs,4)}, s{S_T0} offen offset:{1024*e} lds"
    tbs = [starts[c] - 3 for c in range(1, len(starts))]
    late = []
    def attention(half):
        sfx = "AB"[half]
        head = {t: [] for t in range(66)}
        vm = {t: [] for t in range(66)}
        pre = {t: [] for t in range(66)}
        bg = {t: [] for t in range(66)}
        nb = len(tbs); c0 = nb - 7
        lh, mb = cfg.lh, cfg.mb
        for ci, tb in enumerate(tbs):
            q = []
            if ci + 2 < len(starts): q += [("D", x) for x in kvdma(ci + 2, half)]
            dload = ci - c0 + 1
            if 0 <= dload <= 6:
                wq_ = [rowdma(R_WD, S_WDO, dload*65536, L_WD + (dload & 1)*32768, e) for e in range(4)]
                if dload == 0:
                    for e in range(4): vm[cfg.t_wd0[e]].append(("D", wq_[e]))
                else: q += [("D", x) for x in wq_]
                hl = [f"buffer_load_dwordx4 {vr(HF + 16*(dload&1) + 4*j,4)}, v{V_L16}, {sr(R_WS,4)}, s{S_T1} offen offset:{1024*j} sc1" for j in range(4)]
                hl[0] = f"s_add_u32 s{S_T1}, s{S_HLD}, {dload*4096}\n" + hl[0]
            elif dload == 7:
                q += [("D", rowdma(R_WO, S_WOO, 0, L_WO, e)) for e in range(4)]
                q += [("D", f"buffer_load_dwordx4 {vr(V_XR,4)}, v{V_FO}, {sr(R_X,4)}, 0 offen")]
            for i, x in enumerate(q): vm[tb + cfg.dpos[i] if ci else cfg.t_kv2].append(x)
            if 0 <= dload <= 6:
                for j in range(4):
                    vm[cfg.t_h0[j] if dload == 0 else tb + cfg.hpos[j]].append((f"H{dload}{j}", hl[j]))
                    if j in cfg.hwait: pre[tbs[ci + 1] + mb[2*j]].append(("wait", f"H{dload}{cfg.hwait[j]}"))
            d = dload - 1
            if d >= 0:
                for k in range(8):
                    j, ct = divmod(k, 2); fr = DF + 4 * (k & 3)
                    for t in range(2):
                        head[tb + lh[k]].append(f"ds_read_b64_tr_b16 {vr(fr+2*t,2)}, v{V_DA+ct} offset:{(d&1)*32768 + j*2048 + t*512}")
                    bg[tb + mb[k]].append(mfma32(YY + 16*ct, HF + 16*(d&1) + 4*j, fr, None if (d == 0 and j == 0) else YY + 16*ct))
        assert min(cfg.t_h0) >= cfg.t_chk and max(lh) <= 6 and max(mb) <= 7 and all(m > l for m, l in zip(mb, lh))
        assert all(lh[k+4] > mb[k] and lh[k] + 6 > mb[k+4] for k in range(4)) and all(cfg.hpos[j] + 6 > mb[2*j+1] for j in range(4))
        st = []
        if half == 0:
            for rt in range(4):
                for ti in range(2):
                    st.append(f"s_add_u32 s{S_T3}, s{S_HSB if ti else S_HST}, {112*1024*rt}\n"
                              f"buffer_store_dwordx4 {vr(HO + 16*ti + 4*rt,4)}, v{V_L16}, {sr(R_WS,4)}, s{S_T3} offen sc1")
        st.append(f"buffer_store_dwordx4 v[12:15], v{V_L16}, {sr(R_WS,4)}, s{S_OST} offen sc1")
        hs = list(range(64))
        for i, x in enumerate(st): vm[hs[int(i * cfg.st_rate)]].append(("S", x))
        if half == 1:
            if cfg.t_pf >= 0: vm[cfg.t_pf] += [("X", x) for x in pfl]
            for e in range(8):
                x = f"s_add_u32 m0, s{S_EX}, {L_WO + 32768 + e*1024}\ns_add_u32 s{S_T0}, s{S_EX+1}, {e*8192}\nbuffer_load_dwordx4 v{V_WDD}, {sr(R_WO,4)}, s{S_T0} offen lds"
                if e == 0: x = f"s_lshl_b32 s{S_EX+1}, s{S_HW}, 16\ns_lshl_b32 s{S_T0}, s{S_CT8}, 7\ns_add_u32 s{S_EX+1}, s{S_EX+1}, s{S_T0}\ns_xor_b32 s{S_T0}, s{S_T16}, 0x40000\ns_add_u32 s{S_EX+1}, s{S_EX+1}, s{S_T0}\ns_lshl_b32 s{S_EX}, s{S_H4K}, 1\n" + x
                vm[cfg.t_wo[e]].append(("D", x))
            assert max(cfg.t_wo) <= tbs[1]
            for i in range(6): head[tbs[1] + 2 + i] += wo_rd[4*i:4*i+4]
            head[61] += wo_rd[24:26]; head[63] += wo_rd[26:]
        else:
            head[63] += wo_rd[:cfg.n_wo63]
        for t in cfg.t_code: vm[t].append(("X", "s_mov_b64 exec, 3\nglobal_load_dword v254, v[252:253], off\ns_mov_b64 exec, -1"))
        pre[cfg.t_flag].append(("wait", "S"))
        vm[cfg.t_flag].insert(0, ("F", f"s_mov_b64 exec, 1\nbuffer_store_dword v11, off, {sr(R_WS,4)}, s{S_FLG} sc1\ns_mov_b64 exec, -1"))
        poll = f"buffer_load_dword v3, v{V_PO}, {sr(R_WS,4)}, s{S_T2} offen sc1"
        vm[cfg.t_poll].append(("P", f"s_mov_b32 s{S_T2}, {WS_FL}\n" + poll))
        assert cfg.t_poll <= cfg.t_chk - 2
        pre[cfg.t_chk - 1].append(("wait", "P"))
        pre[cfg.t_chk].append(("text", f"s_cbranch_vccnz L_hspin{sfx}\nL_hok{sfx}:"))
        late.append(f"L_hspin{sfx}:\ns_mov_b32 s{S_SPIN}, 0\nL_hchk{sfx}:\n{poll}\ns_waitcnt vmcnt(0)\nv_cmp_ne_u32 vcc, 1, v3\ns_add_u32 s{S_SPIN}, s{S_SPIN}, 1\ns_cbranch_vccz L_hok{sfx}\n"
                    f"s_cmp_lt_u32 s{S_SPIN}, {SPIN_MAX}\ns_cbranch_scc1 L_hchk{sfx}\ns_branch L_hok{sfx}")
        VQ = []
        def cnt(tag):
            idx = [i for i, x in enumerate(VQ) if x == tag]
            return min(63, len(VQ) - 1 - max(idx)) if idx else 63
        def emit_vm(L):
            for tag, x in L: a(x); VQ.append(tag)
        for t in range(tbs[2] + 1, 64):
            if 'v' in cfg.ab: vm[t] = [x for x in vm[t] if 'sc1 lds' in x[1]]
            if 'h' in cfg.ab: vm[t] = [x for x in vm[t] if x[0] != 'H']
            if 'r' in cfg.ab: head[t] = []
            if 'm' in cfg.ab: bg[t] = []
        for t in range(64):
            par = t & 1
            sd, sn = (S0, S1) if par == 0 else (S1, S0)
            p, pp = PP + 8*par, PP + 8*(1 - par)
            isb = (t in tbs and not ('b' in cfg.ab and t > tbs[2])) or t == 62
            if cfg.stamps == 2 and t - 1 in tbs: stamp()
            midb = isb and half == 1
            if half == 0 and (t - 1 in tbs or t == 63): a(f"s_waitcnt vmcnt({cnt('D')}) lgkmcnt(0)\ns_barrier")
            else: a("s_waitcnt lgkmcnt(0)")
            for k, x in pre[t]: a(x if k == "text" else f"s_waitcnt vmcnt({cnt(x)})")
            emit_vm(vm[t][:1])
            if t + 2 < 64: a(f"ds_read_b128 {vr(KF+4*par,4)}, v{V_KA} offset:{kv_off(t+2)}")
            a(f"s_mov_b64 exec, {sr(S_VM,2)}")
            if t + 1 < 64: a(f"ds_read_b128 {vr(VF+8*(1-par),4)}, v{V_VA} offset:{kv_off(t+1)}")
            a(f"ds_read_b128 {vr(VF+8*par+4,4)}, v{V_VA} offset:{kv_off(t)+512}")
            a("s_mov_b64 exec, -1")
            for l in head[t]: a(l)
            emit_vm(vm[t][1:])
            if t == 0: ncs[0] = 0
            if cfg.t_tr <= t < cfg.t_tr + 9: cstamp(9)
            pos = cfg.pos[len(bg[t])]
            sl = [smf(OO, VF + 8*(1-par) + 4, sn + 8) if t >= 1 else None, mfma32(sn, KF + 4*(1-par), QF, CC) if t + 1 < 64 else None]
            sl += bg[t][:1] + [smf(OO, VF + 8*par, sd)] + bg[t][1:]
            at = {p: m for p, m in zip(pos, sl) if m}
            a(".p2align 3")
            odd = False
            for i in range(16):
                if i in at: a(at[i])
                if midb and i == cfg.bmid: a(f"s_waitcnt vmcnt({cnt('D')}) lgkmcnt(0)\ns_barrier")
                pr = i == (cfg.pp if half else cfg.pa)
                wide = (i + 1 in at) and (odd == pr)
                a(f"v_exp_f32{'_e64' if wide else ''} v{sd+i}, v{sd+i}")
                if not wide: odd = not odd
                if pr: a(f"s_setprio {cfg.pv[half]}"); odd = not odd
            if cfg.stamps == 3: a(f"s_waitcnt lgkmcnt(0)\nv_writelane_b32 v253, s{S_TS}, {t}\nv_writelane_b32 v254, s{S_TS2}, {t}\ns_memtime {sr(S_TS2,2)}")
            if t == cfg.t_chk - 1: a("v_cmp_ne_u32 vcc, 1, v3")
            if (cfg.pp if half else cfg.pa) is not None: a("s_setprio 0")
            if cfg.t_tr <= t < cfg.t_tr + 9: cstamp(9)
        a("s_waitcnt lgkmcnt(0)\ns_nop 0")
        a(smf(OO, VF + 12, S1 + 8))
    OF, SS, XU, TT = 16, 64, 160, 168
    def oload(j): return f"buffer_load_dwordx4 {vr(OF+4*j,4)}, v{V_L16}, {sr(R_WS,4)}, s{S_OLD if j < 4 else S_T1} offen offset:{1024*(j&3)} sc1"
    def normalize():
        for i in range(0, 8, 2): a(f"v_pk_mul_f32 {vr(OO+i,2)}, {vr(OO+i,2)}, v[10:11]")
        for i in range(4): a(f"v_cvt_pk_bf16_f32 v{12+i}, v{OO+2*i}, v{OO+2*i+1}")
    def tail(half):
        sfx = "AB"[half]
        if cfg.stamps == 8: ncs[0] = 0
        stamp(name="att1"); pad("att1")
        cstamp()
        a(f"s_mov_b32 s{S_T2}, {hex(f2u(2.0**120))}\ns_mov_b32 s{S_T3}, {hex(f2u(2.0**-(cfg.shift + 18)))}")
        a(f"s_add_u32 s{S_T1}, s{S_OLD}, 4096\ns_mov_b32 s{S_SPIN}, 0\ns_lshl_b32 s{S_T0}, s{S_W}, 13\ns_mov_b32 m0, s{S_T0}")
        a.nop(6)
        a(f"""
        v_rcp_f32 v10, v{OO+8}
        v_maximum3_f32 v8, abs(v{OO}), abs(v{OO+1}), abs(v{OO+2})
        v_maximum3_f32 v9, abs(v{OO+3}), abs(v{OO+4}), abs(v{OO+5})
        v_maximum3_f32 v8, abs(v{OO+6}), abs(v{OO+7}), v8
        v_maximum3_f32 v6, v8, v9, v{OO+8}
        v_max_f32 v8, v8, v9
        v_cmp_ngt_f32 vcc, s{S_T2}, v6
        v_cmp_gt_f32 {sr(S_EX,2)}, s{S_T3}, v8
        v_mov_b32 v11, v10
        s_or_b64 vcc, vcc, {sr(S_EX,2)}
        """)
        a("s_branch L_fb" if cfg.force_fb else "s_cbranch_scc1 L_fb")
        normalize()
        a.label(f"L_ost{sfx}")
        a(f"buffer_store_dwordx4 v[12:15], v{V_L16}, {sr(R_WS,4)}, s{S_OST} offen sc1")
        cstamp()
        if half == 0:
            for l in wo_rd[cfg.n_wo63:]: a(l)
        for i in range(32): a(f"ds_write_addtid_b32 v{YY+i} offset:{32768 + 256*i}")
        cstamp()
        a(f"""
        v_xor_b32 v5, 16, v{V_GA}
        v_add_u32 v6, 0x10000, v{V_GA}
        v_add_u32 v7, 0x10000, v5
        s_mov_b32 s{S_EX}, 0xff00ff00
        s_mov_b32 s{S_EX+1}, 0xff00ff00
        s_mov_b64 exec, {sr(S_EX,2)}
        v_swap_b32 v{V_XR}, v{V_XR+2}
        v_swap_b32 v{V_XR+1}, v{V_XR+3}
        s_mov_b64 exec, -1
        """)
        for i in range(4): a(f"v_lshlrev_b32 v{XU+2*i}, 16, v{V_XR+i}\nv_and_b32 v{XU+2*i+1}, 0xffff0000, v{V_XR+i}")
        a("s_waitcnt lgkmcnt(0)\ns_barrier")
        if half: a(f"s_add_u32 m0, s{S_T0}, 7940")
        cstamp()
        yr = [f"ds_read_b128 {vr(YY+8*p+4*e,4)}, v{((V_GA, 5), (6, 7))[p >> 1][e]} offset:{(32768 + 16384*p) & 0xffff}" for p in range(4) for e in range(2)]
        G = ["s_waitcnt lgkmcnt(0)"]
        for p in (1, 2, 3): G += [f"v_add_f32 v{YY+i}, v{YY+i}, v{YY+8*p+i}" for i in range(8)]
        G += [f"v_mul_f32 v{TT+i}, {hex(f2u(-math.log2(math.e)))}, v{YY+i}" for i in range(8)]
        G += [f"v_exp_f32 v{TT+i}, v{TT+i}" for i in range(8)]
        G += [f"v_add_f32 v{TT+i}, 1.0, v{TT+i}" for i in range(8)]
        G += [f"v_rcp_f32 v{TT+i}, v{TT+i}" for i in range(8)]
        G += [f"v_mul_f32 v{YY+i}, v{YY+i}, v{TT+i}" for i in range(8)]
        if half:
            for l in yr: a(l)
            for j in range(cfg.n_b0): a(oload(j))
            for l in G[:cfg.n_gb]: a(l)
            G = G[cfg.n_gb:]
            for j in range(cfg.n_b0, 8):
                a(oload(j))
                for l in G[:cfg.n_gp]: a(l)
                G = G[cfg.n_gp:]
            for l in G: a(l)
        else:
            for j in range(8): a(oload(j)); a(yr[j])
        a.label(f"L_omm{sfx}")
        cstamp()
        for j in range(8):
            a(f"s_waitcnt vmcnt({7-j})")
            if j in (0, 3, 7): cstamp()
            a(mfma32(SS, OF + 4*j, WOF[2*j], None if j == 0 else SS))
            a(f"v_max3_u32 v8, v{OF+4*j}, v{OF+4*j+1}, v{OF+4*j+2 if j == 0 else 8}\nv_max3_u32 v8, v{OF+4*j+2}, v{OF+4*j+3}, v8")
            if j == 7: a("v_cmp_eq_u32 vcc, -1, v8")
            a(mfma32(SS + 16, OF + 4*j, WOF[2*j + 1], None if j == 0 else SS + 16))
        a(f"s_cbranch_vccnz L_oretry{sfx}")
        a.label(f"L_ook{sfx}")
        a.nop(7)
        for i in range(32): a(f"ds_write_addtid_b32 v{SS+i} offset:{(57596 if half else 0) + 256*i}")
        if not half:
            for l in G: a(l)
    a.label("L_attA")
    n0 = nst[0]
    attention(0)
    tail(0)
    a("s_branch L_fin2")
    a.label("L_attB")
    nst[0] = n0
    attention(1)
    tail(1)
    a.label("L_fin2")
    a("s_waitcnt lgkmcnt(0)\ns_barrier")
    if cfg.stamps == 6: stamp()
    cstamp()
    for p in range(4):
        for e in range(2): a(f"ds_read_b128 {vr(OF+8*p+4*e,4)}, v{((V_GA, 5), (6, 7))[p >> 1][e]} offset:{16384*p}")
    a("s_waitcnt lgkmcnt(0)" if cfg.stamps == 8 else "s_waitcnt lgkmcnt(4)")
    for i in range(0, 8, 2): a(f"v_pk_add_f32 {vr(OF+i,2)}, {vr(OF+i,2)}, {vr(OF+8+i,2)}")
    a("s_waitcnt lgkmcnt(0)")
    for i in range(0, 8, 2): a(f"v_pk_add_f32 {vr(OF+16+i,2)}, {vr(OF+16+i,2)}, {vr(OF+24+i,2)}")
    for i in range(0, 8, 2): a(f"v_pk_add_f32 {vr(OF+i,2)}, {vr(OF+i,2)}, {vr(OF+16+i,2)}")
    for i in range(0, 8, 2): a(f"v_pk_fma_f32 {vr(OF+i,2)}, {vr(OF+i,2)}, {vr(YY+i,2)}, {vr(XU+i,2)}")
    for i in range(4): a(f"v_cvt_pk_bf16_f32 v{12+i}, v{OF+2*i}, v{OF+2*i+1}")
    a(f"s_mov_b64 exec, {sr(S_EX,2)}\nv_swap_b32 v12, v14\nv_swap_b32 v13, v15\ns_mov_b64 exec, -1")
    a(f"buffer_store_dwordx4 v[12:15], v{V_FO}, {sr(R_OUT,4)}, 0 offen {cfg.oflag}")
    if cfg.stamps == 6: stamp()
    cstamp()
    if cfg.stamps:
        a("s_waitcnt vmcnt(0)")
        cstamp()
        stamp(True)
        for i in range(ncs[0]): a(f"v_writelane_b32 v{V_STAMP}, s{CSR[i]}, {40+i}")
        if cfg.stamps == 6: a(f"s_add_u32 s{S_SPIN}, s{S_SPIN}, 1\nv_writelane_b32 v{V_STAMP}, s{S_SPIN}, 63")
        a(f"s_lshl_b32 s{S_T0}, s2, 3\ns_add_u32 s{S_T0}, s{S_T0}, s{S_W}\ns_lshl_b32 s{S_T0}, s{S_T0}, 8\ns_add_u32 s{S_T0}, s{S_T0}, {WS_DBG}")
        a(f"v_lshlrev_b32 v2, 2, v{V_LANE}\nbuffer_store_dword v{V_STAMP}, v2, {sr(R_WS,4)}, s{S_T0} offen")
        if cfg.stamps == 3:
            a(f"s_add_u32 s{S_T0}, s{S_T0}, 0x80000\nbuffer_store_dword v253, v2, {sr(R_WS,4)}, s{S_T0} offen\ns_add_u32 s{S_T0}, s{S_T0}, 0x80000\nbuffer_store_dword v254, v2, {sr(R_WS,4)}, s{S_T0} offen")
    pad("end")
    a.label("L_end")
    a("s_endpgm")
    for l in late: a(l)
    for sfx in "AB":
        a.label(f"L_oretry{sfx}")
        a(f"s_add_u32 s{S_SPIN}, s{S_SPIN}, 1\ns_cmp_ge_u32 s{S_SPIN}, {SPIN_MAX}\ns_cbranch_scc1 L_ook{sfx}")
        for k in range(8): a(oload(k))
        a(f"s_branch L_omm{sfx}")
    a.label("L_fb")
    a(f"v_mov_b32 v8, 0xff800000\ns_mov_b32 s{S_CNT}, {WS_KV}")
    a(f"v_subrev_u32 v10, {L_KV}, v{V_VA}")
    a.label("L_fb1")
    a(f"buffer_load_dwordx4 {vr(KF,4)}, v{V_L16}, {sr(R_WS,4)}, s{S_CNT} offen sc1\ns_waitcnt vmcnt(0)")
    a(mfma32(S0, KF, QF, None)); a.nop(12)
    for l in maxtree(S0, 8, init=True): a(l)
    a(f"s_add_u32 s{S_CNT}, s{S_CNT}, 2048\ns_cmp_lt_u32 s{S_CNT}, {WS_KV + 64*2048}\ns_cbranch_scc1 L_fb1")
    setC(8, 0.0)
    for i in range(16): a(f"v_mov_b32 v{OO+i}, 0")
    a(f"s_mov_b32 s{S_CNT}, {WS_KV}")
    a.label("L_fb2")
    a(f"buffer_load_dwordx4 {vr(KF,4)}, v{V_L16}, {sr(R_WS,4)}, s{S_CNT} offen sc1")
    a(f"s_mov_b64 exec, {sr(S_VM,2)}")
    a(f"buffer_load_dwordx4 {vr(VF,4)}, v10, {sr(R_WS,4)}, s{S_CNT} offen sc1")
    a(f"buffer_load_dwordx4 {vr(VF+4,4)}, v10, {sr(R_WS,4)}, s{S_CNT} offen offset:512 sc1")
    a("s_mov_b64 exec, -1\ns_waitcnt vmcnt(0)")
    a(mfma32(S0, KF, QF, CC)); a.nop(12)
    for i in range(16): a(f"v_exp_f32 v{S0+i}, v{S0+i}")
    a.nop(2)
    a(smf(OO, VF, S0)); a(smf(OO, VF + 4, S0 + 8))
    a(f"s_add_u32 s{S_CNT}, s{S_CNT}, 2048\ns_cmp_lt_u32 s{S_CNT}, {WS_KV + 64*2048}\ns_cbranch_scc1 L_fb2")
    a.nop(12)
    a(f"v_rcp_f32 v10, v{OO+8}\ns_nop 0\nv_mov_b32 v11, v10")
    normalize()
    for i in range(4): a(f"v_min_u32 v{12+i}, -2, v{12+i}")
    a(f"s_cmp_ge_u32 s{S_W}, 4\ns_cbranch_scc1 L_ostB\ns_branch L_ostA")
    a.label("L_code_end")
    return a

HEADER = open(f"cdna_kernels/{NAME}.s.ref").read().split("; Override launch")[0]
def wrap(a):
    s = HEADER + "; @launch grid=(256,1,1) block=(512,1,1) lds=163840\n"
    s += f""".amdgcn_target "amdgcn-amd-amdhsa--gfx950"
.text
.globl {NAME}_kernel
.p2align 8
.type {NAME}_kernel,@function
{NAME}_kernel:
"""
    s += a.text()
    s += f""".section .rodata,"a"
.p2align 6
.amdhsa_kernel {NAME}_kernel
  .amdhsa_next_free_vgpr 256
  .amdhsa_next_free_sgpr 100
  .amdhsa_accum_offset 256
  .amdhsa_group_segment_fixed_size 0
  .amdhsa_kernarg_size 96
  .amdhsa_user_sgpr_count 2
  .amdhsa_user_sgpr_kernarg_segment_ptr 1
  .amdhsa_system_sgpr_workgroup_id_x 1
.end_amdhsa_kernel
"""
    return s

if __name__ == "__main__":
    cfg = Cfg()
    out = sys.argv[1]
    for kv in sys.argv[2:]:
        k, v = kv.split("=")
        setattr(cfg, k, eval(v))
    a = gen(cfg)
    errs = check(a.lines)
    for e in errs: print("HAZARD need %d have %d:\n   %s\n   %s" % (e[2], e[3], e[0], e[1]))
    open(out, "w").write(wrap(a))
    print("wrote", out, len(a.lines), "lines", len(errs), "hazards")
```

```python
import sys, math
from asmlib import Asm, vr, sr, f2u, check

NAME = "recurrent_scan__grouped_kv_mqa__glu_gated_geglu__prompt"

class Cfg:
    stamps = False
    stop = None
    force_fb = False
    shift = 96.0
    nodot = False
    nodma = False
    nord = False
    sizes = [8, 8, 7] + [6]*6 + [5]
    ilen = 6
    g_init = 0
    t_pf = -1
    t_wo = (7, 8, 8, 10, 10, 11, 11, 12)
    t_wd0 = (15, 15, 16, 17)
    t_poll = 16
    bmid = 4
    lh = (1, 2, 3, 3, 4, 5, 6, 6)
    mb = (2, 3, 4, 5, 5, 6, 7, 7)
    dpos = (1, 1, 2, 2, 3, 4)
    hpos = (4, 5, 5, 6)
    hwait = {0: 0, 1: 3}
    t_h0 = (18, 18, 19, 20)
    t_chk = 18
    pbar = 1
    n_csa = 4
    lead0 = 12
    oflag = 'sc1'
    n_wo63 = 6
    nt = ''
    t_code = (7, 43)
    ofast = 0
    olate = 1
    yfirst = True
    n_gb = 1
    n_b0 = 0
    oswap = False
    t_tr = 30
    n_gp = 8
    i_q = 4
    i_qb = 1
    n_poll = 0
    e6 = 0
    pf_first = True
    bp = 0
    g_h = 29
    c_st = (0, 2)
    gpos = 0
    g_tr = 4
    mord = 0
    g_early = True
    mswap = False
    c_arr = 1
    lead = [8, 10, 12, 12, 12, 12]
    n_pre = (2, 4)
    n_fin = (7, 6)
    g_cs = (3, 4, 5, 6)
    g_csc = 9
    bprio = 3
    st_rate = 0.5
    t_flag = 9
    t_kv2 = 6
    m16 = False
    pp = 0
    pos = [(2, 6, 12), (2, 6, 10, 14), (1, 4, 7, 10, 13)]
    pa = 4
    pv = (1, 1)
    ab = ''
    pad = None

WS_KV, WS_ST, WS_FL, WS_CS, WS_O, WS_H, WS_DBG, WS_Q = 0, 0x80000, 0x28000, 0x40000, 0x100000, 0x400000, 0xC00000, 0xE00000
WS_SIZE = 0x1000000
L_X, L_W, L_R = 0, 49152, 147456
L_KV, L_WD, L_WO = 0, 65536, 98304
P_X, P_WQ, P_WK, P_WV, P_WO, P_WG, P_WU, P_WD, P_OUT, P_DBG, P_WS = 4, 6, 8, 10, 12, 16, 18, 20, 22, 24, 26
R_X, R_WKV, R_WD, R_WO, R_OUT, R_DBG, R_WS = 28, 32, 36, 40, 44, 48, 52
S_W, S_RB, S_CB, S_RT64, S_CT8 = 56, 57, 58, 59, 60
S_T16 = 61
S_VM = 62
S_XOFF = 64
S_WOFF = 65
S_HW = 66
S_ONES = 67
S_T0, S_T1, S_T2, S_T3 = 68, 69, 70, 71
S_OST = 72
S_FLG = 73
S_HST = 74
S_KQ, S_RT = 75, 76
S_WDO = 77
S_HLD = 78
S_W4K = 79
S_W2K = 80
S_SPIN = 81
S_WOO = 82
S_OLD = 83
S_EX = 84
S_TS = 86
S_CNT = 88
S_WSTEP = 89
S_TS2 = 90
R_W, R_CW = 92, 96
S_H4K = 3
S_HSB = 14
S_M0W = 15
SPIN_MAX = 1 << 18

V_LANE = 1
V_STAMP = 255
V_L16, V_KA, V_WDD, V_VA, V_DA, V_PO, V_FO, V_XR, QF = 208, 209, 210, 211, 212, 214, 215, 216, 220
V_GA = 0

def mfma32(d, a, b, c):
    cs = "0" if c is None else vr(c, 16)
    return f"v_mfma_f32_32x32x16_bf16 {vr(d,16)}, {vr(a,4)}, {vr(b,4)}, {cs}"
V_IDX = 48
def smf(d, a, b):
    return f"v_smfmac_f32_32x32x32_bf16 {vr(d,16)}, {vr(a,4)}, {vr(b,8)}, v{V_IDX}"
def mfma16(d, a, b, c):
    cs = "0" if c is None else vr(c, 4)
    return f"v_mfma_f32_16x16x32_bf16 {vr(d,4)}, {vr(a,4)}, {vr(b,4)}, {cs}"

def gen(cfg):
    a = Asm()
    nst = [0]
    def stamp(final=False, name=None):
        if not cfg.stamps: return
        i = nst[0]; nst[0] += 1
        if cfg.stamps in (8, 9, 10, 11) and i and not final: return
        if cfg.stamps == 7:
            if isinstance(name, int): i = name
            elif final: i = 9
            elif name == "b0": i = 7
            elif name == "g1": i = 8
            elif i: return
        elif isinstance(name, int):
            nst[0] -= 1; return
        if cfg.stamps == 5:
            marks = {"b0": 2, "g1": 3, "att0": 4, "att1": 5}
            if final: i = 1
            elif name in marks: i = marks[name]
            elif i: return
        a(f"s_memrealtime {sr(S_TS,2)}\ns_memtime {sr(S_TS2,2)}\ns_waitcnt lgkmcnt(0)\nv_writelane_b32 v{V_STAMP}, s{S_TS}, {i}\nv_writelane_b32 v{V_STAMP}, s{S_TS2}, {32+i}")
    ncs = [0]
    CSR = list(range(4, 28, 2)) + [32, 34, 92, 94, 96, 98]
    def cstamp(mode=8):
        if cfg.stamps != mode: return
        a(f"s_memtime {sr(CSR[ncs[0]], 2)}"); ncs[0] += 1
    def pad(pt):
        if not cfg.pad or cfg.pad[0] != pt: return
        if len(cfg.pad) > 2:
            inv = cfg.pad[2] == 2
            a(f"s_and_b32 s{S_T0}, s{S_TS}, 0x7fffffff")
            if inv: a(f"s_not_b32 s{S_T0}, s{S_T0}")
            a(f"v_mov_b32 v2, s{S_T0}\ns_mov_b64 exec, 1\nbuffer_atomic_umax v2, off, {sr(R_DBG,4)}, 0 offset:4 sc1\ns_mov_b64 exec, -1")
            a(f"L_pad0:\ns_memrealtime {sr(S_TS2,2)}\ns_waitcnt lgkmcnt(0)\ns_sub_u32 s{S_TS2}, s{S_TS2}, s{S_TS}\ns_cmp_lt_u32 s{S_TS2}, {int(cfg.pad[1]*100) - 1500}\ns_cbranch_scc1 L_pad0")
            a(f"buffer_load_dword v2, off, {sr(R_DBG,4)}, 0 offset:4 sc1\ns_waitcnt vmcnt(0)\nv_readfirstlane_b32 s{S_T0}, v2\ns_nop 3")
            if inv: a(f"s_not_b32 s{S_T0}, s{S_T0}")
            a(f"s_and_b32 s{S_TS}, s{S_TS}, 0x80000000\ns_or_b32 s{S_TS}, s{S_TS}, s{S_T0}")
        a(f"L_pad{len(a.lines)}:\ns_memrealtime {sr(S_TS2,2)}\ns_waitcnt lgkmcnt(0)\ns_sub_u32 s{S_TS2}, s{S_TS2}, s{S_TS}\ns_cmp_lt_u32 s{S_TS2}, {int(cfg.pad[1]*100)}\ns_cbranch_scc1 L_pad{len(a.lines)}")
    def srd(r, p, size):
        a(f"s_mov_b32 s{r}, s{p}\ns_and_b32 s{r+1}, s{p+1}, 0xffff\ns_mov_b32 s{r+2}, {hex(size)}\ns_mov_b32 s{r+3}, 0x20000")

    a(f"s_cmp_ge_u32 s2, 256\ns_cbranch_scc1 L_end")
    if cfg.pad: a(f"s_memrealtime {sr(S_TS,2)}")
    a(f"s_load_dwordx16 s[4:19], s[0:1], 0\ns_load_dwordx8 s[20:27], s[0:1], 64")
    if cfg.stamps:
        a(f"v_mov_b32 v{V_STAMP}, 0")
    a(f"v_lshrrev_b32 v2, 6, v0\nv_and_b32 v{V_LANE}, 63, v0")
    a(f"s_getpc_b64 {sr(S_EX,2)}")
    a.label("L_pc")
    a(f"""
    v_readfirstlane_b32 s{S_W}, v2
    s_and_b32 s{S_T0}, s2, 0xf8
    v_add_u32 v2, s{S_T0}, v2
    v_lshl_add_u32 v2, v2, 1, v{V_LANE}
    v_lshlrev_b32 v252, 7, v2
    v_min_u32 v252, L_code_end-L_pc-4, v252
    v_mov_b32 v253, 0
    v_lshl_add_u64 v[252:253], v[252:253], 0, {sr(S_EX,2)}
    s_mov_b64 exec, 3
    global_load_dword v9, v[252:253], off
    s_mov_b64 exec, -1
    """)
    a(f"""
    s_and_b32 s{S_T0}, s2, 7
    s_lshr_b32 s{S_T1}, s2, 3
    s_and_b32 s{S_T2}, s{S_T0}, 1
    s_lshl_b32 s{S_T2}, s{S_T2}, 3
    s_and_b32 s{S_CT8}, s{S_T1}, 7
    s_add_u32 s{S_RB}, s{S_T2}, s{S_CT8}
    s_lshr_b32 s{S_T1}, s{S_T1}, 3
    s_lshr_b32 s{S_T2}, s{S_T0}, 1
    s_lshl_b32 s{S_T2}, s{S_T2}, 2
    s_add_u32 s{S_CB}, s{S_T2}, s{S_T1}
    s_lshl_b32 s{S_T2}, s{S_T0}, 2
    s_add_u32 s{S_RT64}, s{S_T2}, s{S_T1}
    s_and_b32 s{S_HW}, s{S_W}, 3
    s_lshl_b32 s{S_H4K}, s{S_HW}, 12
    v_lshlrev_b32 v{V_L16}, 4, v{V_LANE}
    s_mov_b32 s{R_X+2}, 0x200000
    s_mov_b32 s{R_X+3}, 0x20000
    s_cmp_ge_u32 s{S_W}, 4
    s_cbranch_scc1 L_helper
    """)

    sizes = cfg.sizes
    assert sum(sizes) == 64
    starts = [sum(sizes[:i]) for i in range(len(sizes))]
    S0, S1, PP, OO, CC, KF, VF = 16, 32, 48, 64, 80, 100, 108
    YY, HF, DF = 128, 160, 192
    HO = 160
    V_OA = 62
    WOF = [50, 54, 58, 96, 124] + list(range(224, 252, 4)) + [176, 180, 184, 188]
    wo_rd = [f"ds_read_b64_tr_b16 {vr(WOF[2*j+ct] + 2*t,2)}, v{V_OA+ct} offset:{j*2048 + t*512}" for j in range(8) for ct in range(2) for t in range(2)]
    def kv_off(t):
        c = max(i for i in range(len(starts)) if starts[i] <= t)
        return ((c + 1) % 3) * 16384 + (t - starts[c]) * 2048
    qload = f"buffer_load_dwordx4 {vr(QF,4)}, v{V_L16}, {sr(R_WS,4)}, s{S_T2} offen sc1"

    XS = [2, 0, 1, 2, 0, 1, 2, 0]
    L_PX = L_X + XS[2]*16384
    def setup_ids():
        a(f"""
        s_lshr_b32 s{S_KQ}, s{S_W}, 1
        s_and_b32 s{S_RT}, s{S_W}, 1
        s_lshl_b32 s{S_T2}, s{S_RT64}, 1
        s_add_u32 s{S_T2}, s{S_T2}, s{S_RT}
        s_lshl_b32 s{S_T0}, s{S_T2}, 3
        s_add_u32 s{S_T0}, s{S_T0}, s{S_CT8}
        s_lshl_b32 s{S_T0}, s{S_T0}, 2
        s_add_u32 s{S_T0}, s{S_T0}, s{S_KQ}
        s_lshl_b32 s{S_T0}, s{S_T0}, 10
        s_add_u32 s{S_OST}, s{S_T0}, {WS_O}
        s_lshl_b32 s{S_T0}, s2, 7
        s_lshl_b32 s{S_T1}, s{S_W}, 2
        s_add_u32 s{S_T0}, s{S_T0}, s{S_T1}
        s_add_u32 s{S_FLG}, s{S_T0}, {WS_FL}
        """)
    def common_setup():
        srd(R_WD, P_WD, 1792 * 1024)
        srd(R_WO, P_WO, 512 * 1024)
        srd(R_OUT, P_OUT, 0x200000)
        a(f"""
        s_lshl_b32 s{S_W4K}, s{S_W}, 12
        s_lshl_b32 s{S_W2K}, s{S_W}, 11
        s_mov_b32 s{S_VM}, 0xffff
        s_mov_b32 s{S_VM+1}, 0xffff
        s_lshl_b32 s{S_T2}, s{S_RT64}, 1
        s_add_u32 s{S_T2}, s{S_T2}, s{S_RT}
        s_mul_i32 s{S_T0}, s{S_KQ}, {448*1024}
        s_lshl_b32 s{S_T1}, s{S_RT}, 15
        s_add_u32 s{S_T0}, s{S_T0}, s{S_T1}
        s_lshl_b32 s{S_T1}, s{S_CT8}, 7
        s_add_u32 s{S_WDO}, s{S_T0}, s{S_T1}
        s_lshl_b32 s{S_T0}, s{S_W}, 15
        s_add_u32 s{S_WOO}, s{S_T0}, s{S_T1}
        s_and_b32 s{S_T0}, s{S_CT8}, {1 if cfg.oswap else 0}
        s_lshl_b32 s{S_T16}, s{S_T0}, 18
        s_add_u32 s{S_WOO}, s{S_WOO}, s{S_T16}
        s_mul_i32 s{S_T0}, s{S_T2}, 112
        s_mul_i32 s{S_T3}, s{S_KQ}, 28
        s_add_u32 s{S_T0}, s{S_T0}, s{S_T3}
        s_lshl_b32 s{S_T0}, s{S_T0}, 10
        s_add_u32 s{S_HLD}, s{S_T0}, {WS_H}
        s_lshl_b32 s{S_T0}, s{S_T2}, 15
        s_lshl_b32 s{S_T3}, s{S_KQ}, 13
        s_add_u32 s{S_T3}, s{S_T0}, s{S_T3}
        s_lshr_b32 s{S_T0}, s{S_T16}, 4
        s_xor_b32 s{S_OLD}, s{S_T3}, s{S_T0}
        s_add_u32 s{S_OLD}, s{S_OLD}, {WS_O}
        s_add_u32 s{S_T0}, s{S_T3}, s{S_T1}
        v_lshrrev_b32 v3, 5, v{V_LANE}
        v_bfe_u32 v5, v{V_LANE}, 3, 1
        v_lshl_add_u32 v2, v3, 1, v5
        v_bfe_u32 v7, v{V_LANE}, 4, 1
        v_lshl_add_u32 v4, v7, 2, v2
        v_and_b32 v6, 7, v{V_LANE}
        v_lshlrev_b32 v8, 4, v6
        v_lshl_add_u32 v4, v4, 10, v8
        v_add_u32 v{V_FO}, s{S_T0}, v4
        v_lshlrev_b32 v2, 8, v2
        v_lshl_add_u32 v2, v7, 7, v2
        v_lshl_add_u32 v2, v5, 4, v2
        v_and_b32 v4, 3, v6
        v_lshl_add_u32 v2, v4, 5, v2
        v_lshrrev_b32 v4, 2, v6
        v_lshl_add_u32 v2, v4, 12, v2
        s_lshl_b32 s{S_T0}, s{S_RT}, 13
        s_lshl_b32 s{S_T1}, s{S_KQ}, 10
        s_add_u32 s{S_T0}, s{S_T0}, s{S_T1}
        v_add_u32 v{V_GA}, s{S_T0}, v2
        v_add_u32 v{V_KA}, {L_KV}, v{V_L16}
        v_and_b32 v2, 15, v{V_LANE}
        v_lshl_add_u32 v2, v3, 4, v2
        v_lshlrev_b32 v2, 4, v2
        v_add_u32 v{V_VA}, {L_KV + 1024}, v2
        v_lshrrev_b32 v5, 3, v{V_LANE}
        v_and_b32 v6, 7, v{V_LANE}
        v_bfe_u32 v7, v{V_LANE}, 4, 1
        v_lshlrev_b32 v8, 2, v7
        v_xor_b32 v6, v6, v8
        v_lshlrev_b32 v6, 4, v6
        v_lshl_add_u32 v{V_WDD}, v5, 10, v6
        v_and_b32 v2, 1, v{V_LANE}
        v_bfe_u32 v4, v{V_LANE}, 1, 1
        v_lshl_add_u32 v2, v2, 1, v4
        v_bfe_u32 v5, v{V_LANE}, 2, 2
        v_lshl_add_u32 v4, v3, 3, v5
        v_lshlrev_b32 v4, 7, v4
        v_and_b32 v6, 2, v5
        v_xor_b32 v6, v6, v7
        v_lshl_add_u32 v6, v6, 5, v4
        v_and_b32 v8, 3, v{V_LANE}
        v_lshl_add_u32 v6, v8, 3, v6
        v_lshl_add_u32 v4, v2, 3, v4
        s_lshl_b32 s{S_T0}, s{S_KQ}, 13
        s_add_u32 s{S_T0}, s{S_T0}, {L_WD}
        v_add_u32 v{V_DA}, s{S_T0}, v6
        v_xor_b32 v{V_DA+1}, 64, v{V_DA}
        """)
        a(f"""
        s_lshr_b32 s{S_T0}, s{S_RT64}, 4
        s_lshl_b32 s{S_T1}, s{S_KQ}, 1
        s_add_u32 s{S_T0}, s{S_T0}, s{S_T1}
        s_bfe_u32 s{S_T2}, s{S_RT64}, 0x30001
        s_lshl_b32 s{S_T2}, s{S_T2}, 3
        s_add_u32 s{S_T0}, s{S_T0}, s{S_T2}
        s_lshl_b32 s{S_T0}, s{S_T0}, 7
        v_and_b32 v2, 3, v{V_LANE}
        v_lshlrev_b32 v6, 2, v2
        v_lshl_add_u32 v6, v5, 13, v6
        v_add_u32 v6, s{S_T0}, v6
        s_lshr_b32 s{S_T0}, s{S_T16}, 16
        s_xor_b32 s{S_T1}, s{S_T1}, s{S_T0}
        s_and_b32 s{S_T0}, s2, 0xc7
        s_lshl_b32 s{S_T1}, s{S_T1}, 3
        s_add_u32 s{S_T0}, s{S_T0}, s{S_T1}
        s_lshl_b32 s{S_T0}, s{S_T0}, 7
        s_lshl_b32 s{S_T1}, s{S_RT}, 2
        s_add_u32 s{S_T0}, s{S_T0}, s{S_T1}
        v_and_b32 v8, 1, v5
        v_lshlrev_b32 v8, 10, v8
        v_lshl_add_u32 v8, v2, 3, v8
        v_cmp_gt_u32 vcc, 16, v{V_LANE}
        v_add_u32 v8, s{S_T0}, v8
        s_nop 0
        v_cndmask_b32 v{V_PO}, v8, v6, vcc
        """)

    def img_params(simg, sstride, soff):
        a(f"""
        s_lshr_b32 s{S_T0}, s{S_CB}, 2
        s_and_b32 s{S_T1}, s{S_CB}, 3
        s_mul_i32 s{soff}, s{S_T0}, 896
        s_lshl_b32 s{S_T2}, s{S_T1}, 8
        s_add_u32 s{soff}, s{soff}, s{S_T2}
        s_lshr_b32 s{S_T2}, s{simg}, 1
        s_lshl_b32 s{S_T1}, s{S_T1}, 1
        s_add_u32 s{S_T1}, s{S_T1}, s{S_T2}
        s_lshl_b32 s{S_T2}, s{S_T2}, 7
        s_add_u32 s{soff}, s{soff}, s{S_T2}
        s_lshl_b32 s{S_T0}, s{S_T0}, 1
        s_and_b32 s{S_T2}, s{simg}, 1
        s_add_u32 s{S_T0}, s{S_T0}, s{S_T2}
        s_lshl_b32 s{S_T0}, s{S_T0}, 7
        s_movk_i32 s{sstride}, 3584
        s_cmp_eq_u32 s{S_T1}, 7
        s_cselect_b32 s{soff}, s{S_T0}, s{soff}
        s_cselect_b32 s{sstride}, 1024, s{sstride}
        """)
    def img_srd(r, sstride):
        a(f"""
        s_cmp_eq_u32 s{S_T2}, 0
        s_cselect_b32 s{r}, s{P_WG}, s{P_WU}
        s_cselect_b32 s{r+1}, s{P_WG+1}, s{P_WU+1}
        s_cmp_eq_u32 s{S_T1}, 7
        s_cselect_b32 s{r}, s{P_WQ}, s{r}
        s_cselect_b32 s{r+1}, s{P_WQ+1}, s{r+1}
        s_and_b32 s{r+1}, s{r+1}, 0xffff
        s_lshl_b32 s{r+2}, s{sstride}, 9
        s_mov_b32 s{r+3}, 0x20000
        """)

    ACC, XF, WF, V_XA, V_WR = 16, 144, 176, 248, 250
    RWP, RWQ, RA = 216, 232, 2
    L_RA = L_W + 8192
    def acc(ti, rt): return ACC + 64*ti + 16*rt
    KG = 2.0 * math.sqrt(2.0 / math.pi) * math.log2(math.e)
    CL, CSUM = 224, 240
    L_CNT = L_W + 8192
    a(f"""
    v_and_b32 v5, 15, v{V_LANE}
    v_lshrrev_b32 v6, 4, v{V_LANE}
    v_lshrrev_b32 v7, 3, v{V_LANE}
    v_and_b32 v4, 7, v{V_LANE}
    v_xor_b32 v2, v6, v4
    v_lshlrev_b32 v2, 4, v2
    v_lshl_add_u32 v132, v7, 10, v2
    v_xor_b32 v133, 64, v132
    v_add_u32 v133, {8192-1024}, v133
    s_lshl_b32 s{S_T16}, s{S_RB}, 3
    s_lshr_b32 s{S_T2}, s{S_CB}, 1
    s_add_u32 s{S_T16}, s{S_T16}, s{S_T2}
    s_lshl_b32 s{S_T0}, s{S_T16}, 14
    s_lshl_b32 s{S_T1}, s{S_HW}, 8
    s_add_u32 s{S_XOFF}, s{S_T0}, s{S_T1}
    s_mov_b32 s{R_WKV+2}, 0x4000
    s_mov_b32 s{R_WKV+3}, 0x20000
    s_and_b32 s{S_CNT}, s{S_RB}, 3
    """)
    img_params(S_CNT, S_WSTEP, S_WOFF)
    a(f"""
    s_and_b32 s{S_T0}, s{S_RB}, 12
    s_add_u32 s{S_T0}, s{S_T0}, s{S_HW}
    s_lshl_b32 s{S_T0}, s{S_T0}, 3
    s_mul_i32 s{S_T0}, s{S_T0}, s{S_WSTEP}
    s_add_u32 s{S_WOFF}, s{S_T0}, s{S_WOFF}
    v_mul_u32_u24 v8, s{S_WSTEP}, v7
    v_lshl_add_u32 v134, v4, 4, v8
    s_add_u32 m0, s{S_H4K}, {L_PX}
    s_and_b32 s{S_T3}, s{S_CB}, 1
    s_waitcnt lgkmcnt(0)
    """)
    stamp()
    a(f"""
    s_mov_b32 s{R_X}, s{P_X}
    s_and_b32 s{R_X+1}, s{P_X+1}, 0xffff
    buffer_load_dwordx4 v132, {sr(R_X,4)}, s{S_XOFF} offen {'nt ' if 'p' in cfg.nt else ''}lds
    buffer_load_dwordx4 v133, {sr(R_X,4)}, s{S_XOFF} offen offset:1024 {'nt ' if 'p' in cfg.nt else ''}lds
    s_add_u32 m0, s{S_H4K}, {L_PX + 2048}
    s_add_u32 s{S_XOFF}, s{S_XOFF}, 128
    buffer_load_dwordx4 v132, {sr(R_X,4)}, s{S_XOFF} offen {'nt ' if 'p' in cfg.nt else ''}lds
    buffer_load_dwordx4 v133, {sr(R_X,4)}, s{S_XOFF} offen offset:1024 {'nt ' if 'p' in cfg.nt else ''}lds
    s_cmp_eq_u32 s{S_T3}, 0
    s_cselect_b32 s{R_WKV}, s{P_WK}, s{P_WV}
    s_cselect_b32 s{R_WKV+1}, s{P_WK+1}, s{P_WV+1}
    s_add_u32 m0, s{S_H4K}, {L_R}
    s_and_b32 s{R_WKV+1}, s{R_WKV+1}, 0xffff
    """)
    for e in range(4): a(f"buffer_load_dwordx4 v{V_L16}, {sr(R_WKV,4)}, s{S_H4K} offen offset:{1024*e} lds")
    img_srd(R_CW, S_WSTEP)
    a(f"s_lshl_b32 s{S_WSTEP}, s{S_WSTEP}, 7")
    csld = [f"buffer_load_dwordx4 {vr(CL+4*e,4)}, v134, {sr(R_CW,4)}, s{S_WOFF} offen{' nt' if 'c' in cfg.nt else ''}\ns_add_u32 s{S_WOFF}, s{S_WOFF}, s{S_WSTEP}" for e in range(4)]
    for l in csld[:cfg.n_csa]: a(l)
    a(f"""
    v_mov_b32 v10, 0
    v_mov_b32 v16, {L_CNT}
    ds_write_b32 v16, v10
    s_waitcnt lgkmcnt(0)
    """)
    stamp(name=1)
    a("s_barrier")
    stamp(name=2)
    a(f"""
    s_mov_b32 s{S_ONES}, 0x3f803f80
    s_add_u32 s{S_T3}, s{S_H4K}, {L_R}
    v_lshlrev_b32 v2, 3, v5
    v_lshl_add_u32 v2, v6, 8, v2
    v_add_u32 v130, s{S_T3}, v2
    v_lshrrev_b32 v3, 1, v5
    v_xor_b32 v3, v3, v6
    v_lshlrev_b32 v3, 4, v3
    v_lshl_add_u32 v3, v5, 7, v3
    v_mov_b32 v{V_XA}, v3
    v_xor_b32 v{V_XA+1}, 64, v3
    v_add_u32 v128, s{S_H4K}, v3
    v_xor_b32 v129, 64, v128
    v_add_u32 v131, s{S_T3}, v{V_L16}
    v_mov_b32 v11, 1
    v_mov_b32 v223, 1
    v_lshrrev_b32 v3, 5, v{V_LANE}
    v_and_b32 v7, 1, v6
    v_bfe_u32 v8, v{V_LANE}, 2, 2
    v_lshl_add_u32 v4, v6, 3, v8
    v_lshlrev_b32 v4, 7, v4
    v_and_b32 v2, 3, v{V_LANE}
    v_lshl_add_u32 v4, v2, 3, v4
    v_lshrrev_b32 v8, 1, v8
    v_lshl_add_u32 v8, v7, 1, v8
    v_xor_b32 v8, s{S_HW}, v8
    v_lshl_add_u32 v8, v8, 5, v4
    v_add_u32 v{V_WR}, {L_W}, v8
    v_add_u32 v{V_WR+1}, {L_W + 49152}, v8
    s_lshr_b32 s{S_EX}, s{S_T16}, 1
    s_lshl_b32 s{S_EX}, s{S_EX}, 11
    s_and_b32 s{S_T3}, s{S_T16}, 1
    s_and_b32 s{S_T2}, s{S_CB}, 1
    s_cmp_eq_u32 s{S_T2}, 0
    s_cbranch_scc0 L_pubV
    s_lshl_b32 s{S_T3}, s{S_T3}, 8
    s_add_u32 s{S_EX}, s{S_EX}, s{S_T3}
    v_lshl_add_u32 v2, v3, 5, v5
    s_lshl_b32 s{S_EX+1}, s{S_T16}, 10
    s_add_u32 s{S_EX+1}, s{S_EX+1}, {WS_ST}
    s_branch L_pub
    """)
    a.label("L_pubV")
    a(f"""
    s_lshl_b32 s{S_T3}, s{S_T3}, 9
    s_add_u32 s{S_EX}, s{S_EX}, s{S_T3}
    s_add_u32 s{S_EX}, s{S_EX}, 1024
    v_and_b32 v2, 3, v5
    v_bfe_u32 v4, v5, 2, 1
    v_lshl_add_u32 v2, v4, 3, v2
    v_bfe_u32 v4, v5, 3, 1
    v_lshl_add_u32 v2, v4, 2, v2
    v_lshl_add_u32 v2, v3, 4, v2
    s_mov_b32 s{S_EX+1}, {WS_SIZE}
    """)
    a.label("L_pub")
    a("v_lshlrev_b32 v2, 4, v2\nv_lshl_add_u32 v220, v7, 3, v2")
    def capture(fn):
        n = len(a.lines); fn(); L = a.lines[n:]; del a.lines[n:]; return L
    def part1():
        srd(R_WS, P_WS, WS_SIZE)
        a(f"""
        v_and_b32 v6, 7, v{V_LANE}
        v_lshrrev_b32 v4, 4, v{V_LANE}
        v_lshl_add_u32 v6, v6, 2, v4
        v_bfe_u32 v4, v{V_LANE}, 3, 1
        v_lshl_add_u32 v6, v6, 1, v4
        v_lshlrev_b32 v222, 2, v6
        s_lshl_b32 s{S_T0}, s{S_CB}, 14
        s_lshl_b32 s{S_T1}, s{S_RB}, 10
        s_add_u32 s{S_T0}, s{S_T0}, s{S_T1}
        s_lshl_b32 s{S_T1}, s{S_HW}, 8
        s_add_u32 s{S_T0}, s{S_T0}, s{S_T1}
        s_add_u32 s{S_CNT}, s{S_T0}, {WS_CS}
        """)
    def part2():
        srd(R_DBG, P_DBG, 256)
        setup_ids()
        for i in range(4): a(f"v_mov_b32 v{12+i}, -1")
        common_setup()
        a(f"""
        v_and_b32 v2, 0xff, v{V_L16}
        v_add_u32 v11, {L_R + 256}, v2
        v_xor_b32 v6, v3, v7
        v_lshl_add_u32 v2, v6, 9, v2
        v_add_u32 v10, {L_R}, v2
        s_lshl_b32 s{S_T0}, s{S_HW}, 11
        v_add_u32 v254, s{S_T0}, v{V_L16}
        s_lshr_b32 s{S_T0}, s{S_CB}, 2
        s_and_b32 s{S_T1}, s{S_CB}, 3
        s_mul_i32 s{S_T2}, s{S_RB}, 448
        s_mul_i32 s{S_T3}, s{S_T0}, 28
        s_add_u32 s{S_T2}, s{S_T2}, s{S_T3}
        s_lshl_b32 s{S_T3}, s{S_T1}, 3
        s_add_u32 s{S_T2}, s{S_T2}, s{S_T3}
        s_add_u32 s{S_T2}, s{S_T2}, s{S_HW}
        s_lshl_b32 s{S_T2}, s{S_T2}, 10
        s_add_u32 s{S_HST}, s{S_T2}, {WS_H}
        s_add_u32 s{S_HSB}, s{S_HST}, 4096
        s_lshl_b32 s{S_T2}, s{S_RB}, 7
        s_lshl_b32 s{S_T3}, s{S_T0}, 3
        s_add_u32 s{S_T2}, s{S_T2}, s{S_T3}
        s_add_u32 s{S_T2}, s{S_T2}, s{S_HW}
        s_lshl_b32 s{S_T2}, s{S_T2}, 10
        s_add_u32 s{S_T2}, s{S_T2}, {WS_Q}
        """)
    defer1 = capture(part1)
    defer2 = capture(part2) + [f"s_cmp_eq_u32 s{S_T1}, 3\ns_cselect_b32 s{S_HSB}, s{S_T2}, s{S_HSB}"]
    PX, PW, PACC, PCS, PRS, PSQ, PONE, PSQP, PF1, RD = 24, 40, 56, 60, 64, 68, 72, 76, 77, 80
    for i in range(4): a(f"v_mov_b32 v{PONE+i}, s{S_ONES}")
    init = []
    stamp(name=3)
    a(f"v_mov_b32 v{PF1}, 1.0\nv_mov_b32 v{PSQP}, 0\ns_waitcnt vmcnt({cfg.n_csa})")
    stamp(); stamp(name=4)
    for s in range(4): a(f"ds_read_b128 {vr(PX+4*s,4)}, v{128 + (s & 1)} offset:{L_PX + 2048*(s >> 1)}")
    for s in range(4):
        for t in range(2): a(f"ds_read_b64_tr_b16 {vr(PW+4*s+2*t,2)}, v130 offset:{1024*s+128*t}")
    a("s_waitcnt lgkmcnt(8)")
    for i in range(16): a(f"v_dot2c_f32_bf16 v{PSQP}, v{PX+i}, v{PX+i}")
    a(f"s_and_b32 s{S_T0}, s{S_CB}, 1\ns_cmp_eq_u32 s{S_T0}, 0\ns_waitcnt lgkmcnt(0)\ns_cbranch_scc0 L_preV")
    for form in range(2):
        if form == 1: a.label("L_preV")
        def mm(d, w, x, first):
            return mfma16(d, w, x, None if first else d) if form == 0 else mfma16(d, x, w, None if first else d)
        a(f"v_mfma_f32_16x16x4_f32 {vr(PSQ,4)}, v{PF1}, v{PSQP}, 0" if form == 0 else f"v_mfma_f32_16x16x4_f32 {vr(PSQ,4)}, v{PSQP}, v{PF1}, 0")
        for s in range(4):
            a(mm(PRS, PONE, PX + 4*s, s == 0)); a(mm(PCS, PW + 4*s, PONE, s == 0)); a(mm(PACC, PW + 4*s, PX + 4*s, s == 0))
        if form == 0: a("s_branch L_pre_w")
    a.label("L_pre_w")
    a(f"s_cmp_eq_u32 s{S_HW}, 0\ns_cbranch_scc1 L_fin\ns_nop 3")
    for q, r in ((3, PSQ), (2, PRS), (1, PCS), (0, PACC)): a(f"ds_write_b128 v131, {vr(r,4)} offset:{1024*q}")
    a(f"s_waitcnt lgkmcnt(0)\ns_mov_b64 exec, 1\nds_add_u32 v16, v11\ns_mov_b64 exec, -1\ns_branch L_nofin")
    a.label("L_fin")
    a(f"ds_read_b32 v19, v16\ns_waitcnt lgkmcnt(0)\nv_cmp_gt_u32 vcc, 3, v19\ns_nop 0\ns_cbranch_vccnz L_fin")
    for w in (1, 2, 3):
        for q in range(4): a(f"ds_read_b128 {vr(RD + 16*(w-1) + 4*q,4)}, v131 offset:{4096*w + 1024*q}")
    for w in (1, 2, 3):
        a(f"s_waitcnt lgkmcnt({12 - 4*w})")
        for i in range(0, 16, 2): a(f"v_pk_add_f32 {vr(PACC+i,2)}, {vr(PACC+i,2)}, {vr(RD+16*(w-1)+i,2)}")
    for i in range(4):
        a(f"v_mul_f32 v{PRS+i}, {hex(f2u(-1.0/512))}, v{PRS+i}")
        a(f"v_mul_f32 v{PSQ+i}, {hex(f2u(1.0/512))}, v{PSQ+i}")
        a(f"v_fma_f32 v{PSQ+i}, -v{PRS+i}, v{PRS+i}, v{PSQ+i}")
        a(f"v_max_f32 v{PSQ+i}, 0, v{PSQ+i}")
        a(f"v_add_f32 v{PSQ+i}, {hex(f2u(1e-5))}, v{PSQ+i}")
        a(f"v_rsq_f32 v{PX+i}, v{PSQ+i}")
        a(f"v_fmac_f32 v{PACC+i}, v{PRS+i}, v{PCS+i}")
    for i in range(4): a(f"v_mul_f32 v{PACC+i}, v{PACC+i}, v{PX+i}")
    a(f"""
    v_cvt_pk_bf16_f32 v216, v{PACC}, v{PACC+1}
    v_cvt_pk_bf16_f32 v217, v{PACC+2}, v{PACC+3}
    v_cvt_pk_bf16_f32 v12, v{PRS}, v{PRS}
    v_and_b32 v2, 0xffff0000, v12
    v_sub_f32 v2, v{PRS}, v2
    v_cvt_pk_bf16_f32 v12, v{PRS}, v2
    v_mov_b32 v14, v{PSQ}
    s_mov_b32 exec_lo, 0
    v_mov_b32 v12, 0
    s_and_b32 s{S_T0}, s{S_T16}, 1
    s_sub_u32 exec_lo, s{S_T0}, 1
    s_mov_b32 exec_hi, exec_lo
    v_swap_b32 v12, v14
    s_mov_b32 exec_lo, 0xffff0000
    s_mov_b32 exec_hi, 0
    v_mul_f32 v12, {hex(f2u(-KG))}, v{PX}
    v_mul_f32 v2, v{PX}, v{PX}
    v_mul_f32 v14, {hex(f2u(0.044715))}, v12
    v_mul_f32 v14, v14, v2
    s_mov_b64 exec, -1
    v_mov_b32 v13, v12
    v_mov_b32 v15, v14
    """)
    a.label("L_nofin")
    stamp(name=5)
    init += [f"s_cmp_lg_u32 s{S_HW}, 0\ns_cbranch_scc1 L_nopub\n"
             f"buffer_store_dwordx2 v[216:217], v220, {sr(R_WS,4)}, s{S_EX} offen sc1\n"
             f"buffer_store_dwordx4 v[12:15], v{V_L16}, {sr(R_WS,4)}, s{S_EX+1} offen sc1\nL_nopub:"]
    def cs_compute():
        L = ["s_waitcnt vmcnt(0)"]
        for i in range(4):
            L += [f"v_lshlrev_b32 v{CSUM+2*i}, 16, v{CL+i}", f"v_and_b32 v{CSUM+2*i+1}, 0xffff0000, v{CL+i}"]
            for e in range(1, 4):
                L += [f"v_lshlrev_b32 v2, 16, v{CL+4*e+i}", f"v_and_b32 v3, 0xffff0000, v{CL+4*e+i}", f"v_add_f32 v{CSUM+2*i}, v{CSUM+2*i}, v2", f"v_add_f32 v{CSUM+2*i+1}, v{CSUM+2*i+1}, v3"]
        L += [f"v_permlane32_swap_b32 v{CSUM+j}, v{CSUM+4+j}" for j in range(4)]
        L += [f"v_add_f32 v{CSUM+j}, v{CSUM+j}, v{CSUM+4+j}" for j in (0, 2, 1, 3)]
        L += [f"v_permlane16_swap_b32 v{CSUM}, v{CSUM+2}", "s_nop 0", f"v_permlane16_swap_b32 v{CSUM+1}, v{CSUM+3}"]
        L += [f"v_add_f32 v{CSUM}, v{CSUM}, v{CSUM+2}", f"v_add_f32 v{CSUM+1}, v{CSUM+1}, v{CSUM+3}", "s_nop 0"]
        L += [f"v_add_f32_dpp v2, v{CSUM}, v{CSUM} row_ror:8 row_mask:0xf bank_mask:0xf", f"v_add_f32_dpp v2, v{CSUM+1}, v{CSUM+1} row_ror:8 row_mask:0xf bank_mask:0xc"]
        L += [f"v_mov_b32 v221, v2"]
        return L
    init.insert(0, f"buffer_store_dword v221, v222, {sr(R_WS,4)}, s{S_CNT} offen sc1")
    if cfg.g_init < 3:
        for l in defer1: a(l)
        defer1.clear()
    for l in (cs_compute() if cfg.n_csa == 4 else csld[cfg.n_csa:]): a(l)
    if cfg.g_init < 3:
        assert cfg.n_csa == 4
    if cfg.g_init == -1:
        for l in init: a(l)
    stamp(name=6)
    a("s_barrier")
    nst[0] = 2
    stamp(name="b0"); pad("b0")
    HS = [divmod(g, 2) for g in range(28)] + [(14, 0), (15, 0), (14, 1), (15, 1)]
    def wf(K, mt): return WF + 16*((K + 1) & 1) + 4*mt
    def x_reads(g):
        K, nh = HS[g]
        return [f"ds_read_b128 {vr(XF+16*(g&1)+4*i,4)}, v{V_XA+(K&1)} offset:{XS[K>>1]*16384 + (4*nh+i)*2048}" for i in range(4)]
    def w_reads(K):
        slot = ((K >> 1) + 2) % 3
        return [f"ds_read_b64_tr_b16 {vr(wf(K,mt)+2*t,2)}, v{V_WR+(mt>>1)} offset:{(mt&1)*24576 + slot*8192 + (K&1)*4096 + t*512}" for mt in range(4) for t in range(2)]
    def mm(g, mt, i):
        K, nh = HS[g]; nt = 4*nh + i
        d = acc(mt >> 1, nt >> 1) + 8*(mt & 1) + 4*(nt & 1)
        return mfma16(d, wf(K, mt), XF + 16*(g&1) + 4*i, None if K == 0 else d)
    def rw_reads(rt, dst): return [f"ds_read_b128 {vr(dst+4*i,4)}, v{10 + (i >> 1)} offset:{2048*rt + 1024*(i & 1)}" for i in range(4)]
    op_reads = [f"ds_read_b128 {vr(RA+4*i,4)}, v254 offset:{L_RA + 1024*i}" for i in range(2)] + rw_reads(0, RWP) + rw_reads(1, RWQ)
    def rank1(ti, rt, rw): return mfma32(acc(ti, rt), RA + 4*ti, rw + 2, acc(ti, rt))
    def split2(src, dst, dup):
        if dup:
            return [f"v_cvt_pk_bf16_f32 v{dst}, v{src}, v{src}", f"v_and_b32 v2, 0xffff0000, v{dst}", f"v_sub_f32 v2, v{src}, v2", f"v_cvt_pk_bf16_f32 v{dst+1}, v2, v2"]
        return [f"v_cvt_pk_bf16_f32 v{dst}, v{src}, v{src}", f"v_and_b32 v2, 0xffff0000, v{dst}", f"v_sub_f32 v2, v{src}, v2", f"v_cvt_pk_bf16_f32 v{dst}, v{src}, v2", f"v_mov_b32 v{dst+1}, v{dst}"]
    arrive = (f"s_cmp_lg_u32 s{S_W}, 0\ns_cbranch_scc1 L_noarr\ns_and_b32 s{S_EX}, s2, 7\ns_lshl_b32 s{S_EX}, s{S_EX}, 5\n"
              f"s_mov_b64 exec, 1\nbuffer_atomic_add v223, off, {sr(R_DBG,4)}, s{S_EX} sc1\ns_mov_b64 exec, -1\nL_noarr:")
    w = w_reads(0)
    for l in w[:2] + x_reads(0) + w[2:]: a(l)
    def half_step(g):
        K, nh = HS[g]
        neww = g == 0 or HS[g-1][0] < K and g != 31
        gaps = [[] for _ in range(16)]
        o = 0
        if g & 3 == 3 and g < 28 or g == cfg.g_h:
            gaps[0] = (cs_compute() if g == 3 and cfg.n_csa < 4 else []) + (init if g == cfg.g_init else []) + ["s_barrier"]; o = 1
        rd = x_reads(g + 1) if g < 31 else rw_reads(2, WF + 16)
        if g < 29 and HS[g+1][0] > K:
            w = w_reads(K + 1); rd = w[:2] + rd + w[2:]
        if g == cfg.g_h: rd += op_reads
        if cfg.nord: rd = []
        for i, l in enumerate(rd): gaps[o + i].append(l)
        if neww:
            top = "lgkmcnt(4)"
            gaps[7].append(f"s_waitcnt lgkmcnt({min(len(rd), 8 - o)})")
        else: top = "lgkmcnt(10)" if g == cfg.g_h + 1 else "lgkmcnt(0)"
        a("s_waitcnt " + ("vmcnt(0) " if g == 4*cfg.c_arr + 3 else "") + top)
        if g == 4*cfg.c_arr + 3: gaps[14].append(arrive)
        if g == cfg.g_init and g != 3: gaps[9].append(init[0]); gaps[12].append(init[1])
        dl = defer1 if g < 3 and cfg.g_init == 3 or g <= cfg.g_init else defer2
        for k in range(16):
            if not gaps[k]:
                gaps[k] = dl[:2]; del dl[:2]
        assert not (g >= 2 and defer1) and not (g >= 27 and defer2)
        for k in range(16):
            a(mm(g, k >> 2, k & 3))
            for l in gaps[k]: a(l)
            if g == 31 and k == 3: a(("s_waitcnt lgkmcnt(4)\n" if cfg.g_h == 30 else "") + rank1(0, 0, RWP))
            if k == 0 and (g == 27 or (cfg.stamps == 4 and g & 3 == 3)): stamp()
            if k == 15 and g >= cfg.g_tr and g & 1 == 0 and cfg.stamps == 10 and ncs[0] < 6: a(f"s_memtime {sr([32, 34, 92, 94, 96, 98][ncs[0]], 2)}"); ncs[0] += 1
    for g in range(30): half_step(g)
    def swaps(o): return [f"v_permlane16_swap_b32 v{o}, v{o+2}", f"v_permlane16_swap_b32 v{o+1}, v{o+3}"]
    def gelu(ti, rt, rw, mf=(), pre=()):
        A = acc(ti, rt)
        def b(i): return rw + 8 + 4*(i >> 2)
        def vp(i): return rw + 6*(i >> 2)
        t1, t2, o = 144, 152, HO + 16*ti + 4*rt
        L = [".p2align 3"]
        for i in range(0, 8, 2): L.append(f"v_pk_mul_f32 {vr(t1+i,2)}, {vr(A+i,2)}, {vr(A+i,2)}")
        L += pre
        for i in range(0, 8, 2): L.append(f"v_pk_fma_f32 {vr(t1+i,2)}, {vr(t1+i,2)}, {vr(b(i)+2,2)}, {vr(b(i),2)}")
        for i in range(0, 8, 2): L.append(f"v_pk_mul_f32 {vr(t1+i,2)}, {vr(t1+i,2)}, {vr(A+i,2)}")
        L += mf
        for i in range(8): L.append(f"v_exp_f32 v{t1+i}, v{t1+i}")
        for i in range(0, 8, 2): L.append(f"v_pk_mul_f32 {vr(t2+i,2)}, {vr(A+i,2)}, {vr(A+8+i,2)}")
        for i in range(0, 8, 2): L.append(f"v_pk_fma_f32 {vr(t1+i,2)}, {vr(t1+i,2)}, {vr(vp(i),2)}, {vr(vp(i),2)}")
        for i in range(8): L.append(f"v_rcp_f32 v{t1+i}, v{t1+i}")
        for i in range(0, 8, 2): L.append(f"v_pk_mul_f32 {vr(t2+i,2)}, {vr(t2+i,2)}, {vr(t1+i,2)}")
        for i in range(4): L.append(f"v_cvt_pk_bf16_f32 v{o+i}, v{t2+2*i}, v{t2+2*i+1}")
        return L
    def qtile(rt, rw):
        A = acc(1, rt); qs = hex(f2u(-0.25*math.log2(math.e)/KG))
        L = [f"v_mul_f32 v{12+i}, {qs}, v{rw + 8 + 4*(i >> 1)}" for i in range(4)]
        L += [f"s_add_u32 s{S_T0}, s{S_HSB}, {32768*rt}", f"s_add_u32 s{S_T1}, s{S_T0}, 4096"]
        for hd in range(2):
            h = A + 8*hd
            for i in range(0, 8, 2): L.append(f"v_pk_mul_f32 {vr(h+i,2)}, {vr(h+i,2)}, {vr(12 + 2*(i >> 2),2)}")
            for i in range(4): L.append(f"v_cvt_pk_bf16_f32 v{h+i}, v{h+2*i}, v{h+2*i+1}")
            for i in (0, 2, 1, 3): L.append(f"v_min_u32 v{h+i}, -2, v{h+i}")
            L += [swaps(h)[0], "s_nop 0", swaps(h)[1]]
            L.append(f"buffer_store_dwordx4 {vr(h,4)}, v{V_L16}, {sr(R_WS,4)}, s{S_T0 + hd} offen sc1")
        return L
    L_HQ = L_KV + 49152
    def att_regs():
        a(f"""
        v_and_b32 v5, 27, v{V_LANE}
        v_cmp_eq_u32 vcc, 16, v5
        v_mov_b32 v6, s{S_ONES}
        v_mov_b32 v{V_IDX}, 0xdddddddd
        v_mov_b32 v11, 1
        v_cndmask_b32 v{VF}, 0, v6, vcc
        v_mov_b32 v{VF+1}, v{VF}
        """)
        for i in range(2, 16, 2): a(f"v_mov_b64 {vr(VF+i,2)}, {vr(VF,2)}")
        for i in range(0, 16, 2): a(f"v_mov_b64 {vr(OO+i,2)}, 0")
        a(f"s_lshl_b32 s{S_T0}, s{S_KQ}, 13\ns_add_u32 s{S_T0}, s{S_T0}, {L_WO - L_WD}\nv_add_u32 v{V_OA}, s{S_T0}, v{V_DA}\nv_xor_b32 v{V_OA+1}, 64, v{V_OA}")
    def kv_first():
        a(f"ds_read_b128 {vr(KF,4)}, v{V_KA} offset:{kv_off(0)}\nds_read_b128 {vr(KF+4,4)}, v{V_KA} offset:{kv_off(1)}")
        a(f"s_mov_b64 exec, {sr(S_VM,2)}\nds_read_b128 {vr(VF,4)}, v{V_VA} offset:{kv_off(0)}\ns_mov_b64 exec, -1")
    a(f"s_and_b32 s{S_T1}, s{S_CB}, 3\ns_cmp_eq_u32 s{S_T1}, 3\ns_cbranch_scc1 L_qt")
    half_step(30); half_step(31)
    n0 = nst[0]
    stamp(name="g1"); pad("g1")
    RWS = [RWP, RWQ, WF + 16, RWP]
    order = [(ti, rt) for rt in range(4) for ti in range(2)]
    for i, (ti, rt) in enumerate(order):
        if i == 2:
            for l in rw_reads(3, RWS[3]): a(l)
        if i in (3, 5): a("s_waitcnt lgkmcnt(0)")
        if i == cfg.i_q: a("s_barrier")
        nx = order[i+1] if i < 7 else None
        pv = order[i-1] if i else None
        for l in gelu(ti, rt, RWS[rt], [rank1(*nx, RWS[nx[1]])] if nx else [], swaps(HO + 16*pv[0] + 4*pv[1]) if pv else []): a(l)
    a("s_nop 1")
    for l in swaps(HO + 16 + 12): a(l)
    a("s_branch L_joinA")
    a.label("L_qt")
    RWS = [RWP, RWQ, acc(1, 0), acc(1, 1)]
    if cfg.g_h == 30:
        a("s_barrier")
        for l in op_reads: a(l)
    for l in x_reads(31): a(l)
    a("s_waitcnt lgkmcnt(4)\ns_nop 0")
    a(rank1(1, 0, RWP)); a(rank1(1, 1, RWQ))
    a.nop(5)
    for rt in range(2):
        for l in qtile(rt, RWS[rt]): a(l)
    a("s_waitcnt lgkmcnt(0)")
    rd = rw_reads(2, RWS[2]) + rw_reads(3, RWS[3])
    for g in (30, 31):
        for k in range(8, 16):
            a(mm(g, k >> 2, k & 3))
            if rd: a(rd.pop(0))
    a("s_waitcnt lgkmcnt(0)\ns_nop 3")
    a(rank1(1, 2, RWS[2])); a(rank1(1, 3, RWS[3]))
    a.nop(5)
    for rt in (2, 3):
        for l in qtile(rt, RWS[rt]): a(l)
    a(rank1(0, 0, RWP))
    for g in (30, 31):
        for k in range(8): a(mm(g, k >> 2, k & 3))
    nst[0] = n0
    stamp(name="g1")
    a(f"s_mov_b32 s{S_HSB}, {WS_SIZE}")
    for i in range(4): a(f"v_mov_b32 v{12+i}, -1")
    for rt in range(4):
        if rt == cfg.i_qb: a("s_barrier")
        for l in gelu(0, rt, RWS[rt], [rank1(0, rt + 1, RWS[rt + 1])] if rt < 3 else [], swaps(HO + 4*(rt - 1)) if rt else []): a(l)
    a("s_nop 1")
    for l in swaps(HO + 12): a(l)
    a.label("L_joinA")
    nst[0] = 12 if cfg.stamps == 4 else 5
    stamp()
    if not cfg.gpos:
        att_regs()
        kv_first()
    a("s_barrier")
    stamp(name="att0"); pad("att0")
    a(f"ds_read_b128 {vr(QF,4)}, v254 offset:{L_HQ}")
    for i in range(4): a(f"ds_read_b128 {vr(CC+4*i,4)}, v254 offset:{L_HQ + 1024}")
    if cfg.gpos:
        att_regs()
        kv_first()
    a("s_waitcnt lgkmcnt(0)")
    a(mfma32(S0, KF, QF, CC))
    a("s_nop 3\ns_branch L_attA")

    a.label("L_helper")
    V_XD, V_WD = 192, 194
    PX, PW = 8, 24
    PACC, PCS, PRS, PSQ = 40, 44, 48, 52
    PONE, PSQP, PF1 = 56, 60, 61
    RD = 64
    a(f"""
    s_lshl_b32 s{S_XOFF}, s{S_RB}, 17
    s_lshl_b32 s{S_T0}, s{S_HW}, 15
    s_add_u32 s{S_XOFF}, s{S_XOFF}, s{S_T0}
    v_and_b32 v5, 15, v{V_LANE}
    v_lshrrev_b32 v6, 4, v{V_LANE}
    v_lshrrev_b32 v7, 3, v{V_LANE}
    v_and_b32 v63, 7, v{V_LANE}
    v_xor_b32 v62, v6, v63
    v_lshlrev_b32 v62, 4, v62
    v_lshl_add_u32 v{V_XD}, v7, 10, v62
    v_xor_b32 v{V_XD+1}, 64, v{V_XD}
    v_add_u32 v{V_XD+1}, {8192-1024}, v{V_XD+1}
    """)
    img_params(S_HW, S_WSTEP, S_WOFF)
    a(f"""
    v_and_b32 v62, 1, v6
    v_lshlrev_b32 v62, 1, v62
    v_xor_b32 v62, v62, v63
    v_lshlrev_b32 v62, 4, v62
    v_mul_u32_u24 v{V_WD}, s{S_WSTEP}, v7
    v_add_u32 v{V_WD}, v{V_WD}, v62
    v_xor_b32 v{V_WD+1}, 64, v{V_WD}
    s_waitcnt lgkmcnt(0)
    """)
    nst[0] = 0
    stamp()
    a(f"s_mov_b32 s{R_X}, s{P_X}\ns_and_b32 s{R_X+1}, s{P_X+1}, 0xffff")
    Q = []
    def issue(tag, text): a(text); Q.append(tag)
    def vwait(tag, more=""):
        n = len(Q) - 1 - max(i for i, t in enumerate(Q) if t == tag)
        a(f"s_waitcnt vmcnt({n})" + more)
    def xitems(c):
        slot = XS[c]
        return [(f"C{c}", f"s_add_u32 m0, s{S_H4K}, {L_X + slot*16384}\ns_add_u32 s{S_CNT}, s{S_XOFF}, {c*128 + (16384 - 2048)*(e >> 1)}\n"
                 f"buffer_load_dwordx4 v{V_XD + (e & 1)}, {sr(R_X,4)}, s{S_CNT} offen offset:{1024*e} {'nt ' if 'x' in cfg.nt else ''}lds") for e in range(4)]
    def witems(c):
        slot = (c + 2) % 3
        return [(f"C{c}", f"s_add_u32 m0, s{S_M0W}, {slot*8192 + e*1024}\n" + (f"s_add_u32 s{S_WOFF}, s{S_WOFF}, s{S_WSTEP}" if c + e else "s_nop 0") +
                 f"\nbuffer_load_dwordx4 v{V_WD + (e & 1)}, {sr(R_W,4)}, s{S_WOFF} offen {'nt ' if 'w' in cfg.nt else ''}lds") for e in range(8)]
    stream = []
    for c in range(1, 8): stream += [(t, x if c < 3 or not cfg.nodma else 's_nop 0') for t, x in witems(c) + xitems(c)]
    pos = [0]
    def take(n):
        for _ in range(n):
            if pos[0] < len(stream): issue(*stream[pos[0]]); pos[0] += 1
    def upto(c):
        return min(len(stream), 12*(c + 1) + cfg.lead[c])
    def mix(lines, n):
        k = 0
        for i, l in enumerate(lines):
            while k < n and k * len(lines) <= i * n: take(1); k += 1
            a(l)
        take(n - k)
    img_srd(R_W, S_WSTEP)
    a(f"s_lshl_b32 s{S_WSTEP}, s{S_WSTEP}, 3\ns_mul_i32 s{S_M0W}, s{S_HW}, 24576\ns_add_u32 s{S_M0W}, s{S_M0W}, {L_W}")
    stamp(name=1)
    a("s_barrier")
    for it in xitems(0) + witems(0): issue(*it)
    stamp(name=3)
    def bar():
        if cfg.stamps == 4: stamp()
        a("s_barrier")
    take(cfg.lead0)
    stamp(name=4)
    nst[0] = 2; vwait("C0"); stamp(name=6); bar()
    BC, BO, BZ = 132, 224, 240
    def b_init():
        srd(R_WS, P_WS, WS_SIZE)
        setup_ids()
        for i in range(4): a(f"v_mov_b32 v{12+i}, -1")
        a(f"v_mov_b32 v10, 0\ns_add_u32 s{S_T2}, s{S_OST}, {WS_Q - WS_O - 2048}\ns_sub_u32 s{S_T3}, s{S_FLG}, 16")
    def b_stores():
        issue("ST", f"buffer_store_dwordx4 v[12:15], v{V_L16}, {sr(R_WS,4)}, s{S_T2} offen sc1")
        issue("ST", f"buffer_store_dwordx4 v[12:15], v{V_L16}, {sr(R_WS,4)}, s{S_T2} offen offset:2048 sc1")
        issue("ST", f"s_mov_b64 exec, 3\nbuffer_store_dword v10, v{V_L16}, {sr(R_WS,4)}, s{S_T3} offen sc1\ns_mov_b64 exec, -1")
    def b_setup():
        srd(R_DBG, P_DBG, 256)
        a(f"s_mov_b32 s{S_ONES}, 0x3f803f80")
        common_setup()
        a(f"""
        v_lshrrev_b32 v6, 4, v{V_LANE}
        v_bfe_u32 v2, v{V_LANE}, 1, 1
        v_lshl_add_u32 v6, v2, 2, v6
        v_and_b32 v2, 1, v{V_LANE}
        v_lshl_add_u32 v6, v2, 5, v6
        v_lshlrev_b32 v6, 4, v6
        v_bfe_u32 v2, v{V_LANE}, 2, 2
        v_lshl_add_u32 v6, v2, 11, v6
        s_lshr_b32 s{S_T0}, s{S_HW}, 1
        s_lshl_b32 s{S_T0}, s{S_T0}, 10
        s_and_b32 s{S_T1}, s{S_HW}, 1
        s_lshl_b32 s{S_T1}, s{S_T1}, 8
        s_add_u32 s{S_T0}, s{S_T0}, s{S_T1}
        v_add_u32 v204, s{S_T0}, v6
        """)
        for i in (0, 1, 4, 5): a(f"v_mov_b32 v{BZ+i}, 0")
        att_regs()
        a(f"s_lshl_b32 s{S_T0}, s{S_HW}, 11\nv_add_u32 v7, s{S_T0}, v{V_L16}")
    bs = capture(b_setup)
    nbs = -(-len(bs) // 3)
    pfl = [f"s_mul_i32 s{S_T0}, s2, 7168\ns_lshl_b32 s{S_T1}, s{S_HW}, 11\ns_add_u32 s{S_T0}, s{S_T0}, s{S_T1}\nbuffer_load_dwordx4 {vr(176,4)}, v{V_L16}, {sr(R_WD,4)}, s{S_T0} offen",
           f"buffer_load_dwordx4 {vr(180,4)}, v{V_L16}, {sr(R_WD,4)}, s{S_T0} offen offset:1024",
           f"s_lshl_b32 s{S_T1}, s2, 11\ns_lshl_b32 s{S_T3}, s{S_HW}, 9\ns_add_u32 s{S_T1}, s{S_T1}, s{S_T3}\ns_mov_b32 exec_hi, 0\nbuffer_load_dwordx4 {vr(184,4)}, v{V_L16}, {sr(R_WO,4)}, s{S_T1} offen\ns_mov_b64 exec, -1"]
    spoll = f"buffer_load_dword v8, v6, {sr(R_DBG,4)}, 0 offen sc1"
    for c in range(6):
        if c == cfg.c_st[0]:
            mix(capture(b_init), cfg.c_st[1]); b_stores()
        if c in (2, 3, 4): mix(bs[(c-2)*nbs:(c-1)*nbs], upto(c) - pos[0])
        if c == 5:
            take(cfg.n_poll)
            a(f"v_and_b32 v6, 7, v{V_LANE}\nv_lshlrev_b32 v6, 5, v6")
            issue("P", spoll)
        take(upto(c) - pos[0])
        if c == cfg.c_arr: vwait("ST")
        vwait(f"C{c+1}"); bar()
    assert pos[0] == len(stream)
    ncs[0] = 0; cstamp(11)
    a(f"""
    s_lshl_b32 s{S_T3}, s{S_HW}, 11
    s_add_u32 m0, s{S_T3}, {L_R}
    s_lshl_b32 s{S_EX}, s{S_RB}, 13
    s_add_u32 s{S_EX}, s{S_EX}, s{S_T3}
    s_add_u32 s{S_EX}, s{S_EX}, {WS_ST}
    s_lshl_b32 s{S_T3}, s{S_HW}, 10
    s_lshl_b32 s{S_EX+1}, s{S_CB}, 14
    s_add_u32 s{S_EX+1}, s{S_EX+1}, s{S_T3}
    s_add_u32 s{S_EX+1}, s{S_EX+1}, {WS_CS}
    s_mov_b32 s{S_SPIN}, 0
    """)
    vwait("P")
    a.label("L_sync1_chk")
    a(f"""
    v_cmp_gt_u32 vcc, 32, v8
    s_add_u32 s{S_SPIN}, s{S_SPIN}, 1
    s_cbranch_vccz L_sync1
    s_cmp_ge_u32 s{S_SPIN}, {SPIN_MAX}
    s_cbranch_scc1 L_sync1
    {spoll}
    s_waitcnt vmcnt(0)
    s_branch L_sync1_chk
    """)
    a.label("L_sync1")
    if cfg.stamps != 4: nst[0] = 3
    stamp(); cstamp(11)
    def maxtree(src, dst, init=None):
        L = []
        if init is None:
            L.append(f"v_max3_f32 v{dst}, v{src}, v{src+1}, v{src+2}")
            L.append(f"v_max_f32 v{dst}, v{src+3}, v{dst}")
            k = 4
        else:
            k = 0
        for i in range(k, 16, 2): L.append(f"v_max3_f32 v{dst}, v{src+i}, v{src+i+1}, v{dst}")
        return L
    def setC(m, shift):
        a(f"v_mov_b32 v{m+1}, v{m}\ns_nop 1\nv_permlane32_swap_b32 v{m}, v{m+1}\nv_max_f32 v{m}, v{m}, v{m+1}")
        a(f"v_sub_f32 v{CC}, {hex(f2u(-shift)) if shift else 0}, v{m}")
        a(f"v_mov_b32 v{CC+1}, v{CC}")
        for i in range(2, 16, 2): a(f"v_mov_b64 {vr(CC+i,2)}, {vr(CC,2)}")
    for e in range(4):
        if e: a(f"s_add_u32 s{S_EX+1}, s{S_EX+1}, 4096")
        a(f"buffer_load_dwordx4 {vr(BC+4*e,4)}, v{V_L16}, {sr(R_WS,4)}, s{S_EX+1} offen sc1")
    for i in range(2): a(f"buffer_load_dwordx4 v{V_L16}, {sr(R_WS,4)}, s{S_EX} offen offset:{1024*i} sc1 lds")
    npf = 3 if cfg.pf_first else 0
    for x in pfl[:npf]: a(x)
    cstamp(11)
    if cfg.e6 == 0: a(f"s_waitcnt vmcnt({6 + npf})\ns_barrier")
    a(f"s_setprio {cfg.bp}\ns_waitcnt vmcnt({2 + npf})")
    cstamp(11)
    for e in range(1, 4):
        for i in (0, 2, 1, 3): a(f"v_add_f32 v{BC+i}, v{BC+i}, v{BC+4*e+i}")
    a(f"""
    v_permlane32_swap_b32 v{BC}, v{BC+2}
    s_nop 0
    v_permlane32_swap_b32 v{BC+1}, v{BC+3}
    v_add_f32 v{BC}, v{BC}, v{BC+2}
    v_add_f32 v{BC+1}, v{BC+1}, v{BC+3}
    s_nop 1
    v_permlane16_swap_b32 v{BC}, v{BC+1}
    v_add_f32 v{BC}, v{BC}, v{BC+1}
    """)
    for l in split2(BC, BZ + 2, True): a(l)
    a(f"ds_write_b128 v204, {vr(BZ+2,4)} offset:{L_RA}\nds_write_b128 v204, {vr(BZ,4)} offset:{L_RA + 128}")
    cstamp(11)
    for x in pfl[npf:]: a(x)
    a("s_waitcnt vmcnt(3)")
    ncs[0] += 1; cstamp(11)
    a("s_setprio 0\ns_waitcnt lgkmcnt(0)")
    cstamp(11)
    if cfg.e6 == 2: a("s_barrier")
    cstamp(11)
    a("s_barrier")
    for c in range(2):
        slot = (c + 1) % 3
        a(f"s_add_u32 m0, s{S_H4K}, {L_KV + slot*16384}\ns_add_u32 s{S_T0}, s{S_H4K}, {WS_KV + starts[c]*2048}")
        for e in range(4):
            a(f"buffer_load_dwordx4 v{V_L16}, {sr(R_WS,4)}, s{S_T0} offen offset:{1024*e} sc1 lds")
    QP = 128
    qload = (f"buffer_load_dwordx4 {vr(QP,4)}, v{V_L16}, {sr(R_WS,4)}, s{S_T2} offen sc1\n"
             f"buffer_load_dwordx4 {vr(QF,4)}, v{V_L16}, {sr(R_WS,4)}, s{S_T2} offen offset:2048 sc1")
    a(f"s_add_u32 s{S_T2}, s{S_OST}, {WS_Q - WS_O - 2048}\ns_mov_b32 s{S_SPIN}, 0\ns_waitcnt vmcnt(0)\ns_barrier\ns_setprio 2")
    a(qload)
    kv_first()
    nst[0] = 12 if cfg.stamps == 4 else 5
    stamp()
    a.label("L_qchk")
    a(f"""
    s_waitcnt vmcnt(0) lgkmcnt(0)
    v_max3_u32 v8, v{QF}, v{QF+1}, v{QF+2}
    v_max3_u32 v8, v8, v{QF+3}, v{QP}
    v_max3_u32 v8, v8, v{QP+1}, v{QP+2}
    v_max_u32 v8, v8, v{QP+3}
    v_cmp_eq_u32 vcc, -1, v8
    s_add_u32 s{S_SPIN}, s{S_SPIN}, 1
    s_cbranch_vccz L_qok
    s_cmp_ge_u32 s{S_SPIN}, {SPIN_MAX}
    s_cbranch_scc1 L_qok
    s_sleep 2
    {qload}
    s_branch L_qchk
    """)
    a.label("L_qok")
    if cfg.stamps == 1:
        n0 = nst[0]; nst[0] = 4; stamp(); nst[0] = n0
        a(f"v_writelane_b32 v{V_STAMP}, s{S_SPIN}, 63")
    a(mfma32(S0, KF, QP, None)); a(mfma32(S1, KF, QF, None))
    a(f"ds_write_b128 v7, {vr(QP,4)} offset:{L_HQ}")
    a.nop(10)
    for l in maxtree(S0, 8): a(l)
    a(f"v_mov_b32 v9, v8\ns_nop 1\nv_permlane32_swap_b32 v8, v9\nv_max_f32 v8, v8, v9\nv_sub_f32 v{QP+4}, {hex(f2u(-cfg.shift))}, v8")
    a(f"v_mov_b32 v{QP+5}, v{QP+4}\nv_mov_b64 {vr(QP+6,2)}, {vr(QP+4,2)}\nds_write_b128 v7, {vr(QP+4,4)} offset:{L_HQ + 1024}")
    for l in maxtree(S1, 8): a(l)
    if cfg.g_early:
        a("s_waitcnt lgkmcnt(0)\ns_barrier")
        stamp(name="att0"); pad("att0")
    setC(8, cfg.shift)
    a("s_waitcnt lgkmcnt(0)\ns_setprio 0")
    a(mfma32(S0, KF, QF, CC))
    if not cfg.g_early:
        a("s_barrier")
        stamp(name="att0"); pad("att0")
    a("s_nop 3\ns_branch L_attB")

    def kvdma(c, half):
        slot = (c + 1) % 3
        L = (f"s_add_u32 m0, s{S_W2K}, {L_KV + slot*16384}\ns_add_u32 s{S_T0}, s{S_W2K}, {WS_KV + starts[c]*2048}\n")
        if half == 1 and sizes[c] < 8:
            L += f"s_cmp_ge_u32 s{S_W}, {sizes[c]}\ns_cselect_b32 s{S_T0}, {WS_SIZE}, s{S_T0}\n"
        return [L + f"buffer_load_dwordx4 v{V_L16}, {sr(R_WS,4)}, s{S_T0} offen sc1 lds",
                f"buffer_load_dwordx4 v{V_L16}, {sr(R_WS,4)}, s{S_T0} offen offset:1024 sc1 lds"]
    def rowdma(rs, sbase, add, ldsbase, e):
        pre = f"s_add_u32 m0, s{S_W4K}, {ldsbase}\n"
        return pre + f"s_add_u32 s{S_T0}, s{sbase}, {add + e*7168}\nbuffer_load_dwordx4 v{V_WDD}, {sr(rs,4)}, s{S_T0} offen offset:{1024*e} lds"
    tbs = [starts[c] - 3 for c in range(1, len(starts))]
    late = []
    def attention(half):
        sfx = "AB"[half]
        head = {t: [] for t in range(66)}
        vm = {t: [] for t in range(66)}
        pre = {t: [] for t in range(66)}
        bg = {t: [] for t in range(66)}
        nb = len(tbs); c0 = nb - 7
        lh, mb = cfg.lh, cfg.mb
        for ci, tb in enumerate(tbs):
            q = []
            if ci + 2 < len(starts): q += [("D", x) for x in kvdma(ci + 2, half)]
            dload = ci - c0 + 1
            if 0 <= dload <= 6:
                wq_ = [rowdma(R_WD, S_WDO, dload*65536, L_WD + (dload & 1)*32768, e) for e in range(4)]
                if dload == 0:
                    for e in range(4): vm[cfg.t_wd0[e]].append(("D", wq_[e]))
                else: q += [("D", x) for x in wq_]
                hl = [f"buffer_load_dwordx4 {vr(HF + 16*(dload&1) + 4*j,4)}, v{V_L16}, {sr(R_WS,4)}, s{S_T1} offen offset:{1024*j} sc1" for j in range(4)]
                hl[0] = f"s_add_u32 s{S_T1}, s{S_HLD}, {dload*4096}\n" + hl[0]
            elif dload == 7:
                q += [("D", rowdma(R_WO, S_WOO, 0, L_WO, e)) for e in range(4)]
                q += [("D", f"buffer_load_dwordx4 {vr(V_XR,4)}, v{V_FO}, {sr(R_X,4)}, 0 offen")]
            for i, x in enumerate(q): vm[tb + cfg.dpos[i] if ci else cfg.t_kv2].append(x)
            if 0 <= dload <= 6:
                for j in range(4):
                    vm[cfg.t_h0[j] if dload == 0 else tb + cfg.hpos[j]].append((f"H{dload}{j}", hl[j]))
                    if j in cfg.hwait: pre[tbs[ci + 1] + mb[2*j]].append(("wait", f"H{dload}{cfg.hwait[j]}"))
            d = dload - 1
            if d >= 0:
                for k in range(8):
                    j, ct = divmod(k, 2); fr = DF + 4 * (k & 3)
                    for t in range(2):
                        head[tb + lh[k]].append(f"ds_read_b64_tr_b16 {vr(fr+2*t,2)}, v{V_DA+ct} offset:{(d&1)*32768 + j*2048 + t*512}")
                    bg[tb + mb[k]].append(mfma32(YY + 16*ct, HF + 16*(d&1) + 4*j, fr, None if (d == 0 and j == 0) else YY + 16*ct))
        assert min(cfg.t_h0) >= cfg.t_chk and max(lh) <= 6 and max(mb) <= 7 and all(m > l for m, l in zip(mb, lh))
        assert all(lh[k+4] > mb[k] and lh[k] + 6 > mb[k+4] for k in range(4)) and all(cfg.hpos[j] + 6 > mb[2*j+1] for j in range(4))
        st = []
        if half == 0:
            for rt in range(4):
                for ti in range(2):
                    st.append(f"s_add_u32 s{S_T3}, s{S_HSB if ti else S_HST}, {112*1024*rt}\n"
                              f"buffer_store_dwordx4 {vr(HO + 16*ti + 4*rt,4)}, v{V_L16}, {sr(R_WS,4)}, s{S_T3} offen sc1")
        st.append(f"buffer_store_dwordx4 v[12:15], v{V_L16}, {sr(R_WS,4)}, s{S_OST} offen sc1")
        hs = list(range(64))
        for i, x in enumerate(st): vm[hs[int(i * cfg.st_rate)]].append(("S", x))
        if half == 1:
            if cfg.t_pf >= 0: vm[cfg.t_pf] += [("X", x) for x in pfl]
            for e in range(8):
                x = f"s_add_u32 m0, s{S_EX}, {L_WO + 32768 + e*1024}\ns_add_u32 s{S_T0}, s{S_EX+1}, {e*8192}\nbuffer_load_dwordx4 v{V_WDD}, {sr(R_WO,4)}, s{S_T0} offen lds"
                if e == 0: x = f"s_lshl_b32 s{S_EX+1}, s{S_HW}, 16\ns_lshl_b32 s{S_T0}, s{S_CT8}, 7\ns_add_u32 s{S_EX+1}, s{S_EX+1}, s{S_T0}\ns_xor_b32 s{S_T0}, s{S_T16}, 0x40000\ns_add_u32 s{S_EX+1}, s{S_EX+1}, s{S_T0}\ns_lshl_b32 s{S_EX}, s{S_H4K}, 1\n" + x
                vm[cfg.t_wo[e]].append(("D", x))
            assert max(cfg.t_wo) <= tbs[1]
            for i in range(6): head[tbs[1] + 2 + i] += wo_rd[4*i:4*i+4]
            head[61] += wo_rd[24:26]; head[63] += wo_rd[26:]
        else:
            head[63] += wo_rd[:cfg.n_wo63]
        for t in cfg.t_code: vm[t].append(("X", "s_mov_b64 exec, 3\nglobal_load_dword v254, v[252:253], off\ns_mov_b64 exec, -1"))
        pre[cfg.t_flag].append(("wait", "S"))
        vm[cfg.t_flag].insert(0, ("F", f"s_mov_b64 exec, 1\nbuffer_store_dword v11, off, {sr(R_WS,4)}, s{S_FLG} sc1\ns_mov_b64 exec, -1"))
        poll = f"buffer_load_dword v3, v{V_PO}, {sr(R_WS,4)}, s{S_T2} offen sc1"
        vm[cfg.t_poll].append(("P", f"s_mov_b32 s{S_T2}, {WS_FL}\n" + poll))
        assert cfg.t_poll <= cfg.t_chk - 2
        pre[cfg.t_chk - 1].append(("wait", "P"))
        pre[cfg.t_chk].append(("text", f"s_cbranch_vccnz L_hspin{sfx}\nL_hok{sfx}:"))
        late.append(f"L_hspin{sfx}:\ns_mov_b32 s{S_SPIN}, 0\nL_hchk{sfx}:\n{poll}\ns_waitcnt vmcnt(0)\nv_cmp_ne_u32 vcc, 1, v3\ns_add_u32 s{S_SPIN}, s{S_SPIN}, 1\ns_cbranch_vccz L_hok{sfx}\n"
                    f"s_cmp_lt_u32 s{S_SPIN}, {SPIN_MAX}\ns_cbranch_scc1 L_hchk{sfx}\ns_branch L_hok{sfx}")
        VQ = []
        def cnt(tag):
            idx = [i for i, x in enumerate(VQ) if x == tag]
            return min(63, len(VQ) - 1 - max(idx)) if idx else 63
        def emit_vm(L):
            for tag, x in L: a(x); VQ.append(tag)
        for t in range(tbs[2] + 1, 64):
            if 'v' in cfg.ab: vm[t] = [x for x in vm[t] if 'sc1 lds' in x[1]]
            if 'h' in cfg.ab: vm[t] = [x for x in vm[t] if x[0] != 'H']
            if 'r' in cfg.ab: head[t] = []
            if 'm' in cfg.ab: bg[t] = []
        for t in range(64):
            par = t & 1
            sd, sn = (S0, S1) if par == 0 else (S1, S0)
            p, pp = PP + 8*par, PP + 8*(1 - par)
            isb = (t in tbs and not ('b' in cfg.ab and t > tbs[2])) or t == 62
            if cfg.stamps == 2 and t - 1 in tbs: stamp()
            midb = isb and half == 1
            if half == 0 and (t - 1 in tbs or t == 63): a(f"s_waitcnt vmcnt({cnt('D')}) lgkmcnt(0)\ns_barrier")
            else: a("s_waitcnt lgkmcnt(0)")
            for k, x in pre[t]: a(x if k == "text" else f"s_waitcnt vmcnt({cnt(x)})")
            emit_vm(vm[t][:1])
            if t + 2 < 64: a(f"ds_read_b128 {vr(KF+4*par,4)}, v{V_KA} offset:{kv_off(t+2)}")
            a(f"s_mov_b64 exec, {sr(S_VM,2)}")
            if t + 1 < 64: a(f"ds_read_b128 {vr(VF+8*(1-par),4)}, v{V_VA} offset:{kv_off(t+1)}")
            a(f"ds_read_b128 {vr(VF+8*par+4,4)}, v{V_VA} offset:{kv_off(t)+512}")
            a("s_mov_b64 exec, -1")
            for l in head[t]: a(l)
            emit_vm(vm[t][1:])
            if t == 0 and cfg.stamps == 9: ncs[0] = 0
            if cfg.t_tr <= t < cfg.t_tr + 9: cstamp(9)
            pos = cfg.pos[len(bg[t])]
            sl = [smf(OO, VF + 8*(1-par) + 4, sn + 8) if t >= 1 else None, mfma32(sn, KF + 4*(1-par), QF, CC) if t + 1 < 64 else None]
            sl += bg[t][:1] + [smf(OO, VF + 8*par, sd)] + bg[t][1:]
            at = {p: m for p, m in zip(pos, sl) if m}
            a(".p2align 3")
            odd = False
            for i in range(16):
                if i in at: a(at[i])
                if midb and i == cfg.bmid: a(f"s_waitcnt vmcnt({cnt('D')}) lgkmcnt(0)\ns_barrier")
                pr = i == (cfg.pp if half else cfg.pa)
                wide = (i + 1 in at) and (odd == pr)
                a(f"v_exp_f32{'_e64' if wide else ''} v{sd+i}, v{sd+i}")
                if not wide: odd = not odd
                if pr: a(f"s_setprio {cfg.pv[half]}"); odd = not odd
            if cfg.stamps == 3: a(f"s_waitcnt lgkmcnt(0)\nv_writelane_b32 v253, s{S_TS}, {t}\nv_writelane_b32 v254, s{S_TS2}, {t}\ns_memtime {sr(S_TS2,2)}")
            if t == cfg.t_chk - 1: a("v_cmp_ne_u32 vcc, 1, v3")
            if (cfg.pp if half else cfg.pa) is not None: a("s_setprio 0")
            if cfg.t_tr <= t < cfg.t_tr + 9: cstamp(9)
        a("s_waitcnt lgkmcnt(0)\ns_nop 0")
        a(smf(OO, VF + 12, S1 + 8))
    OF, SS, XU, TT = 16, 64, 160, 168
    def oload(j): return f"buffer_load_dwordx4 {vr(OF+4*j,4)}, v{V_L16}, {sr(R_WS,4)}, s{S_OLD if j < 4 else S_T1} offen offset:{1024*(j&3)} sc1"
    def normalize():
        for i in range(0, 8, 2): a(f"v_pk_mul_f32 {vr(OO+i,2)}, {vr(OO+i,2)}, v[10:11]")
        for i in range(4): a(f"v_cvt_pk_bf16_f32 v{12+i}, v{OO+2*i}, v{OO+2*i+1}")
    def tail(half):
        sfx = "AB"[half]
        if cfg.stamps == 8: ncs[0] = 0
        stamp(name="att1"); pad("att1")
        cstamp()
        a(f"s_mov_b32 s{S_T2}, {hex(f2u(2.0**120))}\ns_mov_b32 s{S_T3}, {hex(f2u(2.0**-(cfg.shift + 18)))}")
        a(f"s_add_u32 s{S_T1}, s{S_OLD}, 4096\ns_mov_b32 s{S_SPIN}, 0\ns_lshl_b32 s{S_T0}, s{S_W}, 13\ns_mov_b32 m0, s{S_T0}")
        a.nop(6)
        a(f"""
        v_rcp_f32 v10, v{OO+8}
        v_maximum3_f32 v8, abs(v{OO}), abs(v{OO+1}), abs(v{OO+2})
        v_maximum3_f32 v9, abs(v{OO+3}), abs(v{OO+4}), abs(v{OO+5})
        v_maximum3_f32 v8, abs(v{OO+6}), abs(v{OO+7}), v8
        v_maximum3_f32 v6, v8, v9, v{OO+8}
        v_max_f32 v8, v8, v9
        v_cmp_ngt_f32 vcc, s{S_T2}, v6
        v_cmp_gt_f32 {sr(S_EX,2)}, s{S_T3}, v8
        v_mov_b32 v11, v10
        s_or_b64 vcc, vcc, {sr(S_EX,2)}
        """)
        a("s_branch L_fb" if cfg.force_fb else "s_cbranch_scc1 L_fb")
        normalize()
        a.label(f"L_ost{sfx}")
        a(f"buffer_store_dwordx4 v[12:15], v{V_L16}, {sr(R_WS,4)}, s{S_OST} offen sc1")
        cstamp()
        if half == 0:
            for l in wo_rd[cfg.n_wo63:]: a(l)
        for i in range(32): a(f"ds_write_addtid_b32 v{YY+i} offset:{32768 + 256*i}")
        cstamp()
        a(f"""
        v_xor_b32 v5, 16, v{V_GA}
        v_add_u32 v6, 0x10000, v{V_GA}
        v_add_u32 v7, 0x10000, v5
        s_mov_b32 s{S_EX}, 0xff00ff00
        s_mov_b32 s{S_EX+1}, 0xff00ff00
        s_mov_b64 exec, {sr(S_EX,2)}
        v_swap_b32 v{V_XR}, v{V_XR+2}
        v_swap_b32 v{V_XR+1}, v{V_XR+3}
        s_mov_b64 exec, -1
        """)
        for i in range(4): a(f"v_lshlrev_b32 v{XU+2*i}, 16, v{V_XR+i}\nv_and_b32 v{XU+2*i+1}, 0xffff0000, v{V_XR+i}")
        a("s_waitcnt lgkmcnt(0)\ns_barrier")
        if half: a(f"s_add_u32 m0, s{S_T0}, 7940")
        cstamp()
        yr = [f"ds_read_b128 {vr(YY+8*p+4*e,4)}, v{((V_GA, 5), (6, 7))[p >> 1][e]} offset:{(32768 + 16384*p) & 0xffff}" for p in range(4) for e in range(2)]
        G = ["s_waitcnt lgkmcnt(0)"]
        for p in (1, 2, 3): G += [f"v_add_f32 v{YY+i}, v{YY+i}, v{YY+8*p+i}" for i in range(8)]
        G += [f"v_mul_f32 v{TT+i}, {hex(f2u(-math.log2(math.e)))}, v{YY+i}" for i in range(8)]
        G += [f"v_exp_f32 v{TT+i}, v{TT+i}" for i in range(8)]
        G += [f"v_add_f32 v{TT+i}, 1.0, v{TT+i}" for i in range(8)]
        G += [f"v_rcp_f32 v{TT+i}, v{TT+i}" for i in range(8)]
        G += [f"v_mul_f32 v{YY+i}, v{YY+i}, v{TT+i}" for i in range(8)]
        if half:
            for l in yr: a(l)
            for j in range(cfg.n_b0): a(oload(j))
            for l in G[:cfg.n_gb]: a(l)
            G = G[cfg.n_gb:]
            for j in range(cfg.n_b0, 8):
                a(oload(j))
                for l in G[:cfg.n_gp]: a(l)
                G = G[cfg.n_gp:]
            for l in G: a(l)
        else:
            for j in range(8): a(oload(j)); a(yr[j])
        a.label(f"L_omm{sfx}")
        cstamp()
        for j in range(8):
            a(f"s_waitcnt vmcnt({7-j})")
            if j in (0, 3, 7): cstamp()
            a(mfma32(SS, OF + 4*j, WOF[2*j], None if j == 0 else SS))
            a(f"v_max3_u32 v8, v{OF+4*j}, v{OF+4*j+1}, v{OF+4*j+2 if j == 0 else 8}\nv_max3_u32 v8, v{OF+4*j+2}, v{OF+4*j+3}, v8")
            if j == 7: a("v_cmp_eq_u32 vcc, -1, v8")
            a(mfma32(SS + 16, OF + 4*j, WOF[2*j + 1], None if j == 0 else SS + 16))
        a(f"s_cbranch_vccnz L_oretry{sfx}")
        a.label(f"L_ook{sfx}")
        a.nop(7)
        for i in range(32): a(f"ds_write_addtid_b32 v{SS+i} offset:{(57596 if half else 0) + 256*i}")
        if not half:
            for l in G: a(l)
    a.label("L_attA")
    n0 = nst[0]
    attention(0)
    tail(0)
    a("s_branch L_fin2")
    a.label("L_attB")
    nst[0] = n0
    attention(1)
    tail(1)
    a.label("L_fin2")
    a("s_waitcnt lgkmcnt(0)\ns_barrier")
    if cfg.stamps == 6: stamp()
    cstamp()
    for p in range(4):
        for e in range(2): a(f"ds_read_b128 {vr(OF+8*p+4*e,4)}, v{((V_GA, 5), (6, 7))[p >> 1][e]} offset:{16384*p}")
    a("s_waitcnt lgkmcnt(0)" if cfg.stamps == 8 else "s_waitcnt lgkmcnt(4)")
    for i in range(0, 8, 2): a(f"v_pk_add_f32 {vr(OF+i,2)}, {vr(OF+i,2)}, {vr(OF+8+i,2)}")
    a("s_waitcnt lgkmcnt(0)")
    for i in range(0, 8, 2): a(f"v_pk_add_f32 {vr(OF+16+i,2)}, {vr(OF+16+i,2)}, {vr(OF+24+i,2)}")
    for i in range(0, 8, 2): a(f"v_pk_add_f32 {vr(OF+i,2)}, {vr(OF+i,2)}, {vr(OF+16+i,2)}")
    for i in range(0, 8, 2): a(f"v_pk_fma_f32 {vr(OF+i,2)}, {vr(OF+i,2)}, {vr(YY+i,2)}, {vr(XU+i,2)}")
    for i in range(4): a(f"v_cvt_pk_bf16_f32 v{12+i}, v{OF+2*i}, v{OF+2*i+1}")
    a(f"s_mov_b64 exec, {sr(S_EX,2)}\nv_swap_b32 v12, v14\nv_swap_b32 v13, v15\ns_mov_b64 exec, -1")
    a(f"buffer_store_dwordx4 v[12:15], v{V_FO}, {sr(R_OUT,4)}, 0 offen {cfg.oflag}")
    if cfg.stamps == 6: stamp()
    cstamp()
    if cfg.stamps:
        a("s_waitcnt vmcnt(0)")
        cstamp()
        stamp(True)
        for i in range(ncs[0]): a(f"v_writelane_b32 v{V_STAMP}, s{CSR[i]}, {40+i}")
        if cfg.stamps == 10:
            for i in range(6): a(f"v_writelane_b32 v{V_STAMP}, s{[32, 34, 92, 94, 96, 98][i]}, {40+i}")
        if cfg.stamps == 6: a(f"s_add_u32 s{S_SPIN}, s{S_SPIN}, 1\nv_writelane_b32 v{V_STAMP}, s{S_SPIN}, 63")
        a(f"s_lshl_b32 s{S_T0}, s2, 3\ns_add_u32 s{S_T0}, s{S_T0}, s{S_W}\ns_lshl_b32 s{S_T0}, s{S_T0}, 8\ns_add_u32 s{S_T0}, s{S_T0}, {WS_DBG}")
        a(f"v_lshlrev_b32 v2, 2, v{V_LANE}\nbuffer_store_dword v{V_STAMP}, v2, {sr(R_WS,4)}, s{S_T0} offen")
        if cfg.stamps == 3:
            a(f"s_add_u32 s{S_T0}, s{S_T0}, 0x80000\nbuffer_store_dword v253, v2, {sr(R_WS,4)}, s{S_T0} offen\ns_add_u32 s{S_T0}, s{S_T0}, 0x80000\nbuffer_store_dword v254, v2, {sr(R_WS,4)}, s{S_T0} offen")
    pad("end")
    a.label("L_end")
    a("s_endpgm")
    for l in late: a(l)
    for sfx in "AB":
        a.label(f"L_oretry{sfx}")
        a(f"s_add_u32 s{S_SPIN}, s{S_SPIN}, 1\ns_cmp_ge_u32 s{S_SPIN}, {SPIN_MAX}\ns_cbranch_scc1 L_ook{sfx}")
        for k in range(8): a(oload(k))
        a(f"s_branch L_omm{sfx}")
    a.label("L_fb")
    a(f"v_mov_b32 v8, 0xff800000\ns_mov_b32 s{S_CNT}, {WS_KV}")
    a(f"v_subrev_u32 v10, {L_KV}, v{V_VA}")
    a.label("L_fb1")
    a(f"buffer_load_dwordx4 {vr(KF,4)}, v{V_L16}, {sr(R_WS,4)}, s{S_CNT} offen sc1\ns_waitcnt vmcnt(0)")
    a(mfma32(S0, KF, QF, None)); a.nop(12)
    for l in maxtree(S0, 8, init=True): a(l)
    a(f"s_add_u32 s{S_CNT}, s{S_CNT}, 2048\ns_cmp_lt_u32 s{S_CNT}, {WS_KV + 64*2048}\ns_cbranch_scc1 L_fb1")
    setC(8, 0.0)
    for i in range(16): a(f"v_mov_b32 v{OO+i}, 0")
    a(f"s_mov_b32 s{S_CNT}, {WS_KV}")
    a.label("L_fb2")
    a(f"buffer_load_dwordx4 {vr(KF,4)}, v{V_L16}, {sr(R_WS,4)}, s{S_CNT} offen sc1")
    a(f"s_mov_b64 exec, {sr(S_VM,2)}")
    a(f"buffer_load_dwordx4 {vr(VF,4)}, v10, {sr(R_WS,4)}, s{S_CNT} offen sc1")
    a(f"buffer_load_dwordx4 {vr(VF+4,4)}, v10, {sr(R_WS,4)}, s{S_CNT} offen offset:512 sc1")
    a("s_mov_b64 exec, -1\ns_waitcnt vmcnt(0)")
    a(mfma32(S0, KF, QF, CC)); a.nop(12)
    for i in range(16): a(f"v_exp_f32 v{S0+i}, v{S0+i}")
    a.nop(2)
    a(smf(OO, VF, S0)); a(smf(OO, VF + 4, S0 + 8))
    a(f"s_add_u32 s{S_CNT}, s{S_CNT}, 2048\ns_cmp_lt_u32 s{S_CNT}, {WS_KV + 64*2048}\ns_cbranch_scc1 L_fb2")
    a.nop(12)
    a(f"v_rcp_f32 v10, v{OO+8}\ns_nop 0\nv_mov_b32 v11, v10")
    normalize()
    for i in range(4): a(f"v_min_u32 v{12+i}, -2, v{12+i}")
    a(f"s_cmp_ge_u32 s{S_W}, 4\ns_cbranch_scc1 L_ostB\ns_branch L_ostA")
    a.label("L_code_end")
    return a

HEADER = open(f"cdna_kernels/{NAME}.s.ref").read().split("; Override launch")[0]
def wrap(a):
    s = HEADER + "; @launch grid=(256,1,1) block=(512,1,1) lds=163840\n"
    s += f""".amdgcn_target "amdgcn-amd-amdhsa--gfx950"
.text
.globl {NAME}_kernel
.p2align 8
.type {NAME}_kernel,@function
{NAME}_kernel:
"""
    s += a.text()
    s += f""".section .rodata,"a"
.p2align 6
.amdhsa_kernel {NAME}_kernel
  .amdhsa_next_free_vgpr 256
  .amdhsa_next_free_sgpr 100
  .amdhsa_accum_offset 256
  .amdhsa_group_segment_fixed_size 0
  .amdhsa_kernarg_size 96
  .amdhsa_user_sgpr_count 2
  .amdhsa_user_sgpr_kernarg_segment_ptr 1
  .amdhsa_system_sgpr_workgroup_id_x 1
.end_amdhsa_kernel
"""
    return s

if __name__ == "__main__":
    cfg = Cfg()
    out = sys.argv[1]
    for kv in sys.argv[2:]:
        k, v = kv.split("=")
        setattr(cfg, k, eval(v))
    a = gen(cfg)
    errs = check(a.lines)
    for e in errs: print("HAZARD need %d have %d:\n   %s\n   %s" % (e[2], e[3], e[0], e[1]))
    open(out, "w").write(wrap(a))
    print("wrote", out, len(a.lines), "lines", len(errs), "hazards")
```

```python
import sys, math
from asmlib import Asm, vr, sr, f2u, check

NAME = "recurrent_scan__grouped_kv_mqa__glu_gated_geglu__prompt"

class Cfg:
    stamps = False
    stop = None
    force_fb = False
    shift = 101.0
    upd = (7,)
    updm = 1
    updl = True
    cf = ('', '', '')
    nodot = False
    nodma = False
    nord = False
    sizes = [8, 8, 7] + [6]*6 + [5]
    ilen = 6
    g_init = 0
    t_pf = -1
    t_wo = (7, 8, 8, 10, 10, 11, 11, 12)
    t_wd0 = (15, 15, 16, 17)
    t_poll = 16
    bmid = 4
    lh = (1, 2, 3, 3, 4, 5, 6, 6)
    mb = (2, 3, 4, 5, 5, 6, 7, 7)
    dpos = (1, 1, 2, 2, 3, 4)
    hpos = (4, 5, 5, 6)
    hwait = {0: 0, 1: 3}
    t_h0 = (18, 18, 19, 20)
    t_chk = 18
    pbar = 1
    n_csa = 4
    lead0 = 12
    oflag = 'sc1'
    n_wo63 = 6
    nt = 'c'
    t_code = (7, 43)
    ofast = 0
    olate = 1
    yfirst = True
    n_gb = 1
    n_b0 = 0
    oswap = False
    t_tr = 30
    n_gp = 8
    i_q = 4
    i_qb = 1
    n_poll = 0
    e6 = 0
    pf_first = True
    bp = 0
    g_h = 29
    c_st = (0, 2)
    gpos = 0
    g_tr = 4
    mord = 0
    g_early = True
    mswap = False
    c_arr = 1
    lead = [8, 10, 12, 12, 12, 12]
    n_pre = (2, 4)
    n_fin = (7, 6)
    g_cs = (3, 4, 5, 6)
    g_csc = 9
    bprio = 3
    st_rate = 0.5
    t_flag = 9
    t_kv2 = 6
    m16 = False
    pp = 0
    pos = [(2, 6, 12), (2, 6, 10, 14), (1, 4, 7, 10, 13)]
    pa = 4
    pv = (1, 1)
    ab = ''
    pad = None

WS_KV, WS_ST, WS_FL, WS_CS, WS_O, WS_H, WS_DBG, WS_Q = 0, 0x80000, 0x28000, 0x40000, 0x100000, 0x400000, 0xC00000, 0xE00000
WS_SIZE = 0x1000000
L_X, L_W, L_R = 0, 49152, 147456
L_KV, L_WD, L_WO = 0, 65536, 98304
P_X, P_WQ, P_WK, P_WV, P_WO, P_WG, P_WU, P_WD, P_OUT, P_DBG, P_WS = 4, 6, 8, 10, 12, 16, 18, 20, 22, 24, 26
R_X, R_WKV, R_WD, R_WO, R_OUT, R_DBG, R_WS = 28, 32, 36, 40, 44, 48, 52
S_W, S_RB, S_CB, S_RT64, S_CT8 = 56, 57, 58, 59, 60
S_T16 = 61
S_VM = 62
S_XOFF = 64
S_WOFF = 65
S_HW = 66
S_ONES = 67
S_T0, S_T1, S_T2, S_T3 = 68, 69, 70, 71
S_OST = 72
S_FLG = 73
S_HST = 74
S_KQ, S_RT = 75, 76
S_WDO = 77
S_HLD = 78
S_W4K = 79
S_W2K = 80
S_SPIN = 81
S_WOO = 82
S_OLD = 83
S_EX = 84
S_TS = 86
S_CNT = 88
S_WSTEP = 89
S_TS2 = 90
R_W, R_CW = 92, 96
S_H4K = 3
S_HSB = 14
S_M0W = 15
SPIN_MAX = 1 << 18

V_LANE = 1
V_STAMP = 255
V_L16, V_KA, V_WDD, V_VA, V_DA, V_PO, V_FO, V_XR, QF = 208, 209, 210, 211, 212, 214, 215, 216, 220
V_GA = 0

def mfma32(d, a, b, c):
    cs = "0" if c is None else vr(c, 16)
    return f"v_mfma_f32_32x32x16_bf16 {vr(d,16)}, {vr(a,4)}, {vr(b,4)}, {cs}"
V_IDX = 48
def smf(d, a, b):
    return f"v_smfmac_f32_32x32x32_bf16 {vr(d,16)}, {vr(a,4)}, {vr(b,8)}, v{V_IDX}"
def mfma16(d, a, b, c):
    cs = "0" if c is None else vr(c, 4)
    return f"v_mfma_f32_16x16x32_bf16 {vr(d,4)}, {vr(a,4)}, {vr(b,4)}, {cs}"

def gen(cfg):
    a = Asm()
    nst = [0]
    def stamp(final=False, name=None):
        if not cfg.stamps: return
        i = nst[0]; nst[0] += 1
        if cfg.stamps in (8, 9, 10, 11) and i and not final: return
        if cfg.stamps == 7:
            if isinstance(name, int): i = name
            elif final: i = 9
            elif name == "b0": i = 7
            elif name == "g1": i = 8
            elif i: return
        elif isinstance(name, int):
            nst[0] -= 1; return
        if cfg.stamps == 5:
            marks = {"b0": 2, "g1": 3, "att0": 4, "att1": 5}
            if final: i = 1
            elif name in marks: i = marks[name]
            elif i: return
        a(f"s_memrealtime {sr(S_TS,2)}\ns_memtime {sr(S_TS2,2)}\ns_waitcnt lgkmcnt(0)\nv_writelane_b32 v{V_STAMP}, s{S_TS}, {i}\nv_writelane_b32 v{V_STAMP}, s{S_TS2}, {32+i}")
    ncs = [0]
    CSR = list(range(4, 28, 2)) + [32, 34, 92, 94, 96, 98]
    def cstamp(mode=8):
        if cfg.stamps != mode: return
        a(f"s_memtime {sr(CSR[ncs[0]], 2)}"); ncs[0] += 1
    def pad(pt):
        if not cfg.pad or cfg.pad[0] != pt: return
        if len(cfg.pad) > 2:
            inv = cfg.pad[2] == 2
            a(f"s_and_b32 s{S_T0}, s{S_TS}, 0x7fffffff")
            if inv: a(f"s_not_b32 s{S_T0}, s{S_T0}")
            a(f"v_mov_b32 v2, s{S_T0}\ns_mov_b64 exec, 1\nbuffer_atomic_umax v2, off, {sr(R_DBG,4)}, 0 offset:4 sc1\ns_mov_b64 exec, -1")
            a(f"L_pad0:\ns_memrealtime {sr(S_TS2,2)}\ns_waitcnt lgkmcnt(0)\ns_sub_u32 s{S_TS2}, s{S_TS2}, s{S_TS}\ns_cmp_lt_u32 s{S_TS2}, {int(cfg.pad[1]*100) - 1500}\ns_cbranch_scc1 L_pad0")
            a(f"buffer_load_dword v2, off, {sr(R_DBG,4)}, 0 offset:4 sc1\ns_waitcnt vmcnt(0)\nv_readfirstlane_b32 s{S_T0}, v2\ns_nop 3")
            if inv: a(f"s_not_b32 s{S_T0}, s{S_T0}")
            a(f"s_and_b32 s{S_TS}, s{S_TS}, 0x80000000\ns_or_b32 s{S_TS}, s{S_TS}, s{S_T0}")
        a(f"L_pad{len(a.lines)}:\ns_memrealtime {sr(S_TS2,2)}\ns_waitcnt lgkmcnt(0)\ns_sub_u32 s{S_TS2}, s{S_TS2}, s{S_TS}\ns_cmp_lt_u32 s{S_TS2}, {int(cfg.pad[1]*100)}\ns_cbranch_scc1 L_pad{len(a.lines)}")
    def srd(r, p, size):
        a(f"s_mov_b32 s{r}, s{p}\ns_and_b32 s{r+1}, s{p+1}, 0xffff\ns_mov_b32 s{r+2}, {hex(size)}\ns_mov_b32 s{r+3}, 0x20000")

    a(f"s_cmp_ge_u32 s2, 256\ns_cbranch_scc1 L_end")
    if cfg.pad: a(f"s_memrealtime {sr(S_TS,2)}")
    a(f"s_load_dwordx16 s[4:19], s[0:1], 0\ns_load_dwordx8 s[20:27], s[0:1], 64")
    if cfg.stamps:
        a(f"v_mov_b32 v{V_STAMP}, 0")
    a(f"v_lshrrev_b32 v2, 6, v0\nv_and_b32 v{V_LANE}, 63, v0")
    a(f"s_getpc_b64 {sr(S_EX,2)}")
    a.label("L_pc")
    a(f"""
    v_readfirstlane_b32 s{S_W}, v2
    s_and_b32 s{S_T0}, s2, 0xf8
    v_add_u32 v2, s{S_T0}, v2
    v_lshl_add_u32 v2, v2, 1, v{V_LANE}
    v_lshlrev_b32 v252, 7, v2
    v_min_u32 v252, L_code_end-L_pc-4, v252
    v_mov_b32 v253, 0
    v_lshl_add_u64 v[252:253], v[252:253], 0, {sr(S_EX,2)}
    s_mov_b64 exec, 3
    global_load_dword v9, v[252:253], off
    s_mov_b64 exec, -1
    """)
    a(f"""
    s_and_b32 s{S_T0}, s2, 7
    s_lshr_b32 s{S_T1}, s2, 3
    s_and_b32 s{S_CT8}, s{S_T1}, 7
    s_and_b32 s{S_RB}, s{S_T1}, 15
    s_lshr_b32 s{S_T2}, s2, 7
    s_lshl_b32 s{S_CB}, s{S_T0}, 1
    s_add_u32 s{S_CB}, s{S_CB}, s{S_T2}
    s_lshr_b32 s{S_T1}, s{S_T1}, 3
    s_lshl_b32 s{S_T2}, s{S_T0}, 2
    s_add_u32 s{S_RT64}, s{S_T2}, s{S_T1}
    s_and_b32 s{S_HW}, s{S_W}, 3
    s_lshl_b32 s{S_H4K}, s{S_HW}, 12
    v_lshlrev_b32 v{V_L16}, 4, v{V_LANE}
    s_mov_b32 s{R_X+2}, 0x200000
    s_mov_b32 s{R_X+3}, 0x20000
    s_cmp_ge_u32 s{S_W}, 4
    s_cbranch_scc1 L_helper
    """)

    sizes = cfg.sizes
    assert sum(sizes) == 64
    starts = [sum(sizes[:i]) for i in range(len(sizes))]
    S0, S1, PP, OO, CC, KF, VF = 16, 32, 48, 64, 80, 100, 108
    YY, HF, DF = 128, 160, 192
    HO = 160
    V_OA = 62
    WOF = [50, 54, 58, 96, 124] + list(range(224, 252, 4)) + [176, 180, 184, 188]
    wo_rd = [f"ds_read_b64_tr_b16 {vr(WOF[2*j+ct] + 2*t,2)}, v{V_OA+ct} offset:{j*2048 + t*512}" for j in range(8) for ct in range(2) for t in range(2)]
    def kv_off(t):
        c = max(i for i in range(len(starts)) if starts[i] <= t)
        return ((c + 1) % 3) * 16384 + (t - starts[c]) * 2048
    qload = f"buffer_load_dwordx4 {vr(QF,4)}, v{V_L16}, {sr(R_WS,4)}, s{S_T2} offen sc1"

    XS = [2, 0, 1, 2, 0, 1, 2, 0]
    L_PX = L_X + XS[2]*16384
    def setup_ids():
        a(f"""
        s_lshr_b32 s{S_KQ}, s{S_W}, 1
        s_and_b32 s{S_RT}, s{S_W}, 1
        s_lshl_b32 s{S_T2}, s{S_RT64}, 1
        s_add_u32 s{S_T2}, s{S_T2}, s{S_RT}
        s_lshl_b32 s{S_T0}, s{S_T2}, 3
        s_add_u32 s{S_T0}, s{S_T0}, s{S_CT8}
        s_lshl_b32 s{S_T0}, s{S_T0}, 2
        s_add_u32 s{S_T0}, s{S_T0}, s{S_KQ}
        s_lshl_b32 s{S_T0}, s{S_T0}, 10
        s_add_u32 s{S_OST}, s{S_T0}, {WS_O}
        s_lshl_b32 s{S_T0}, s2, 7
        s_lshl_b32 s{S_T1}, s{S_W}, 2
        s_add_u32 s{S_T0}, s{S_T0}, s{S_T1}
        s_add_u32 s{S_FLG}, s{S_T0}, {WS_FL}
        """)
    def common_setup():
        srd(R_WD, P_WD, 1792 * 1024)
        srd(R_WO, P_WO, 512 * 1024)
        srd(R_OUT, P_OUT, 0x200000)
        a(f"""
        s_lshl_b32 s{S_W4K}, s{S_W}, 12
        s_lshl_b32 s{S_W2K}, s{S_W}, 11
        s_mov_b32 s{S_VM}, 0xffff
        s_mov_b32 s{S_VM+1}, 0xffff
        s_lshl_b32 s{S_T2}, s{S_RT64}, 1
        s_add_u32 s{S_T2}, s{S_T2}, s{S_RT}
        s_mul_i32 s{S_T0}, s{S_KQ}, {448*1024}
        s_lshl_b32 s{S_T1}, s{S_RT}, 15
        s_add_u32 s{S_T0}, s{S_T0}, s{S_T1}
        s_lshl_b32 s{S_T1}, s{S_CT8}, 7
        s_add_u32 s{S_WDO}, s{S_T0}, s{S_T1}
        s_lshl_b32 s{S_T0}, s{S_W}, 15
        s_add_u32 s{S_WOO}, s{S_T0}, s{S_T1}
        s_and_b32 s{S_T0}, s{S_CT8}, {1 if cfg.oswap else 0}
        s_lshl_b32 s{S_T16}, s{S_T0}, 18
        s_add_u32 s{S_WOO}, s{S_WOO}, s{S_T16}
        s_mul_i32 s{S_T0}, s{S_T2}, 112
        s_mul_i32 s{S_T3}, s{S_KQ}, 28
        s_add_u32 s{S_T0}, s{S_T0}, s{S_T3}
        s_lshl_b32 s{S_T0}, s{S_T0}, 10
        s_add_u32 s{S_HLD}, s{S_T0}, {WS_H}
        s_lshl_b32 s{S_T0}, s{S_T2}, 15
        s_lshl_b32 s{S_T3}, s{S_KQ}, 13
        s_add_u32 s{S_T3}, s{S_T0}, s{S_T3}
        s_lshr_b32 s{S_T0}, s{S_T16}, 4
        s_xor_b32 s{S_OLD}, s{S_T3}, s{S_T0}
        s_add_u32 s{S_OLD}, s{S_OLD}, {WS_O}
        s_add_u32 s{S_T0}, s{S_T3}, s{S_T1}
        v_lshrrev_b32 v3, 5, v{V_LANE}
        v_bfe_u32 v5, v{V_LANE}, 3, 1
        v_lshl_add_u32 v2, v3, 1, v5
        v_bfe_u32 v7, v{V_LANE}, 4, 1
        v_lshl_add_u32 v4, v7, 2, v2
        v_and_b32 v6, 7, v{V_LANE}
        v_lshlrev_b32 v8, 4, v6
        v_lshl_add_u32 v4, v4, 10, v8
        v_add_u32 v{V_FO}, s{S_T0}, v4
        v_lshlrev_b32 v2, 8, v2
        v_lshl_add_u32 v2, v7, 7, v2
        v_lshl_add_u32 v2, v5, 4, v2
        v_and_b32 v4, 3, v6
        v_lshl_add_u32 v2, v4, 5, v2
        v_lshrrev_b32 v4, 2, v6
        v_lshl_add_u32 v2, v4, 12, v2
        s_lshl_b32 s{S_T0}, s{S_RT}, 13
        s_lshl_b32 s{S_T1}, s{S_KQ}, 10
        s_add_u32 s{S_T0}, s{S_T0}, s{S_T1}
        v_add_u32 v{V_GA}, s{S_T0}, v2
        v_add_u32 v{V_KA}, {L_KV}, v{V_L16}
        v_and_b32 v2, 15, v{V_LANE}
        v_lshl_add_u32 v2, v3, 4, v2
        v_lshlrev_b32 v2, 4, v2
        v_add_u32 v{V_VA}, {L_KV + 1024}, v2
        v_lshrrev_b32 v5, 3, v{V_LANE}
        v_and_b32 v6, 7, v{V_LANE}
        v_bfe_u32 v7, v{V_LANE}, 4, 1
        v_lshlrev_b32 v8, 2, v7
        v_xor_b32 v6, v6, v8
        v_lshlrev_b32 v6, 4, v6
        v_lshl_add_u32 v{V_WDD}, v5, 10, v6
        v_and_b32 v2, 1, v{V_LANE}
        v_bfe_u32 v4, v{V_LANE}, 1, 1
        v_lshl_add_u32 v2, v2, 1, v4
        v_bfe_u32 v5, v{V_LANE}, 2, 2
        v_lshl_add_u32 v4, v3, 3, v5
        v_lshlrev_b32 v4, 7, v4
        v_and_b32 v6, 2, v5
        v_xor_b32 v6, v6, v7
        v_lshl_add_u32 v6, v6, 5, v4
        v_and_b32 v8, 3, v{V_LANE}
        v_lshl_add_u32 v6, v8, 3, v6
        v_lshl_add_u32 v4, v2, 3, v4
        s_lshl_b32 s{S_T0}, s{S_KQ}, 13
        s_add_u32 s{S_T0}, s{S_T0}, {L_WD}
        v_add_u32 v{V_DA}, s{S_T0}, v6
        v_xor_b32 v{V_DA+1}, 64, v{V_DA}
        """)
        a(f"""
        s_lshr_b32 s{S_T0}, s{S_RT64}, 1
        s_lshl_b32 s{S_T0}, s{S_T0}, 3
        s_lshl_b32 s{S_T1}, s{S_KQ}, 1
        s_add_u32 s{S_T0}, s{S_T0}, s{S_T1}
        s_lshl_b32 s{S_T0}, s{S_T0}, 7
        v_and_b32 v2, 3, v{V_LANE}
        v_lshlrev_b32 v6, 2, v2
        v_and_b32 v8, 1, v5
        v_lshl_add_u32 v6, v8, 14, v6
        v_lshrrev_b32 v8, 1, v5
        v_lshl_add_u32 v6, v8, 7, v6
        v_add_u32 v6, s{S_T0}, v6
        s_lshr_b32 s{S_T0}, s{S_T16}, 16
        s_xor_b32 s{S_T1}, s{S_T1}, s{S_T0}
        s_and_b32 s{S_T0}, s2, 0xc7
        s_lshl_b32 s{S_T1}, s{S_T1}, 3
        s_add_u32 s{S_T0}, s{S_T0}, s{S_T1}
        s_lshl_b32 s{S_T0}, s{S_T0}, 7
        s_lshl_b32 s{S_T1}, s{S_RT}, 2
        s_add_u32 s{S_T0}, s{S_T0}, s{S_T1}
        v_and_b32 v8, 1, v5
        v_lshlrev_b32 v8, 10, v8
        v_lshl_add_u32 v8, v2, 3, v8
        v_cmp_gt_u32 vcc, 16, v{V_LANE}
        v_add_u32 v8, s{S_T0}, v8
        s_nop 0
        v_cndmask_b32 v{V_PO}, v8, v6, vcc
        """)

    def img_params(simg, sstride, soff):
        a(f"""
        s_lshr_b32 s{S_T0}, s{S_CB}, 2
        s_and_b32 s{S_T1}, s{S_CB}, 3
        s_mul_i32 s{soff}, s{S_T0}, 896
        s_lshl_b32 s{S_T2}, s{S_T1}, 8
        s_add_u32 s{soff}, s{soff}, s{S_T2}
        s_lshr_b32 s{S_T2}, s{simg}, 1
        s_lshl_b32 s{S_T1}, s{S_T1}, 1
        s_add_u32 s{S_T1}, s{S_T1}, s{S_T2}
        s_lshl_b32 s{S_T2}, s{S_T2}, 7
        s_add_u32 s{soff}, s{soff}, s{S_T2}
        s_lshl_b32 s{S_T0}, s{S_T0}, 1
        s_and_b32 s{S_T2}, s{simg}, 1
        s_add_u32 s{S_T0}, s{S_T0}, s{S_T2}
        s_lshl_b32 s{S_T0}, s{S_T0}, 7
        s_movk_i32 s{sstride}, 3584
        s_cmp_eq_u32 s{S_T1}, 7
        s_cselect_b32 s{soff}, s{S_T0}, s{soff}
        s_cselect_b32 s{sstride}, 1024, s{sstride}
        """)
    def img_srd(r, sstride):
        a(f"""
        s_cmp_eq_u32 s{S_T2}, 0
        s_cselect_b32 s{r}, s{P_WG}, s{P_WU}
        s_cselect_b32 s{r+1}, s{P_WG+1}, s{P_WU+1}
        s_cmp_eq_u32 s{S_T1}, 7
        s_cselect_b32 s{r}, s{P_WQ}, s{r}
        s_cselect_b32 s{r+1}, s{P_WQ+1}, s{r+1}
        s_and_b32 s{r+1}, s{r+1}, 0xffff
        s_lshl_b32 s{r+2}, s{sstride}, 9
        s_mov_b32 s{r+3}, 0x20000
        """)

    ACC, XF, WF, V_XA, V_WR = 16, 144, 176, 248, 250
    RWP, RWQ, RA = 216, 232, 2
    L_RA = L_W + 8192
    def acc(ti, rt): return ACC + 64*ti + 16*rt
    KG = 2.0 * math.sqrt(2.0 / math.pi) * math.log2(math.e)
    CL, CSUM = 224, 240
    L_CNT = L_W + 8192
    a(f"""
    v_and_b32 v5, 15, v{V_LANE}
    v_lshrrev_b32 v6, 4, v{V_LANE}
    v_lshrrev_b32 v7, 3, v{V_LANE}
    v_and_b32 v4, 7, v{V_LANE}
    v_xor_b32 v2, v6, v4
    v_lshlrev_b32 v2, 4, v2
    v_lshl_add_u32 v132, v7, 10, v2
    v_xor_b32 v133, 64, v132
    v_add_u32 v133, {8192-1024}, v133
    s_lshl_b32 s{S_T16}, s{S_RB}, 3
    s_lshr_b32 s{S_T2}, s{S_CB}, 1
    s_add_u32 s{S_T16}, s{S_T16}, s{S_T2}
    s_lshl_b32 s{S_T0}, s{S_T16}, 14
    s_lshl_b32 s{S_T1}, s{S_HW}, 8
    s_add_u32 s{S_XOFF}, s{S_T0}, s{S_T1}
    s_mov_b32 s{R_WKV+2}, 0x4000
    s_mov_b32 s{R_WKV+3}, 0x20000
    s_and_b32 s{S_CNT}, s{S_RB}, 3
    """)
    img_params(S_CNT, S_WSTEP, S_WOFF)
    a(f"""
    s_and_b32 s{S_T0}, s{S_RB}, 12
    s_add_u32 s{S_T0}, s{S_T0}, s{S_HW}
    s_lshl_b32 s{S_T0}, s{S_T0}, 3
    s_mul_i32 s{S_T0}, s{S_T0}, s{S_WSTEP}
    s_add_u32 s{S_WOFF}, s{S_T0}, s{S_WOFF}
    v_mul_u32_u24 v8, s{S_WSTEP}, v7
    v_lshl_add_u32 v134, v4, 4, v8
    s_add_u32 m0, s{S_H4K}, {L_PX}
    s_and_b32 s{S_T3}, s{S_CB}, 1
    s_waitcnt lgkmcnt(0)
    """)
    stamp()
    a(f"""
    s_mov_b32 s{R_X}, s{P_X}
    s_and_b32 s{R_X+1}, s{P_X+1}, 0xffff
    buffer_load_dwordx4 v132, {sr(R_X,4)}, s{S_XOFF} offen {'nt ' if 'p' in cfg.nt else ''}lds
    buffer_load_dwordx4 v133, {sr(R_X,4)}, s{S_XOFF} offen offset:1024 {'nt ' if 'p' in cfg.nt else ''}lds
    s_add_u32 m0, s{S_H4K}, {L_PX + 2048}
    s_add_u32 s{S_XOFF}, s{S_XOFF}, 128
    buffer_load_dwordx4 v132, {sr(R_X,4)}, s{S_XOFF} offen {'nt ' if 'p' in cfg.nt else ''}lds
    buffer_load_dwordx4 v133, {sr(R_X,4)}, s{S_XOFF} offen offset:1024 {'nt ' if 'p' in cfg.nt else ''}lds
    s_cmp_eq_u32 s{S_T3}, 0
    s_cselect_b32 s{R_WKV}, s{P_WK}, s{P_WV}
    s_cselect_b32 s{R_WKV+1}, s{P_WK+1}, s{P_WV+1}
    s_add_u32 m0, s{S_H4K}, {L_R}
    s_and_b32 s{R_WKV+1}, s{R_WKV+1}, 0xffff
    """)
    for e in range(4): a(f"buffer_load_dwordx4 v{V_L16}, {sr(R_WKV,4)}, s{S_H4K} offen offset:{1024*e} lds")
    img_srd(R_CW, S_WSTEP)
    a(f"s_lshl_b32 s{S_WSTEP}, s{S_WSTEP}, 7")
    csld = [f"buffer_load_dwordx4 {vr(CL+4*e,4)}, v134, {sr(R_CW,4)}, s{S_WOFF} offen{' nt' if 'c' in cfg.nt else ''}\ns_add_u32 s{S_WOFF}, s{S_WOFF}, s{S_WSTEP}" for e in range(4)]
    for l in csld[:cfg.n_csa]: a(l)
    a(f"""
    v_mov_b32 v10, 0
    v_mov_b32 v16, {L_CNT}
    ds_write_b32 v16, v10
    s_waitcnt lgkmcnt(0)
    """)
    stamp(name=1)
    a("s_barrier")
    stamp(name=2)
    a(f"""
    s_mov_b32 s{S_ONES}, 0x3f803f80
    s_add_u32 s{S_T3}, s{S_H4K}, {L_R}
    v_lshlrev_b32 v2, 3, v5
    v_lshl_add_u32 v2, v6, 8, v2
    v_add_u32 v130, s{S_T3}, v2
    v_lshrrev_b32 v3, 1, v5
    v_xor_b32 v3, v3, v6
    v_lshlrev_b32 v3, 4, v3
    v_lshl_add_u32 v3, v5, 7, v3
    v_mov_b32 v{V_XA}, v3
    v_xor_b32 v{V_XA+1}, 64, v3
    v_add_u32 v128, s{S_H4K}, v3
    v_xor_b32 v129, 64, v128
    v_add_u32 v131, s{S_T3}, v{V_L16}
    v_mov_b32 v11, 1
    v_mov_b32 v223, 1
    v_lshrrev_b32 v3, 5, v{V_LANE}
    v_and_b32 v7, 1, v6
    v_bfe_u32 v8, v{V_LANE}, 2, 2
    v_lshl_add_u32 v4, v6, 3, v8
    v_lshlrev_b32 v4, 7, v4
    v_and_b32 v2, 3, v{V_LANE}
    v_lshl_add_u32 v4, v2, 3, v4
    v_lshrrev_b32 v8, 1, v8
    v_lshl_add_u32 v8, v7, 1, v8
    v_xor_b32 v8, s{S_HW}, v8
    v_lshl_add_u32 v8, v8, 5, v4
    v_add_u32 v{V_WR}, {L_W}, v8
    v_add_u32 v{V_WR+1}, {L_W + 49152}, v8
    s_lshr_b32 s{S_EX}, s{S_T16}, 1
    s_lshl_b32 s{S_EX}, s{S_EX}, 11
    s_and_b32 s{S_T3}, s{S_T16}, 1
    s_and_b32 s{S_T2}, s{S_CB}, 1
    s_cmp_eq_u32 s{S_T2}, 0
    s_cbranch_scc0 L_pubV
    s_lshl_b32 s{S_T3}, s{S_T3}, 8
    s_add_u32 s{S_EX}, s{S_EX}, s{S_T3}
    v_lshl_add_u32 v2, v3, 5, v5
    s_lshl_b32 s{S_EX+1}, s{S_T16}, 10
    s_add_u32 s{S_EX+1}, s{S_EX+1}, {WS_ST}
    s_branch L_pub
    """)
    a.label("L_pubV")
    a(f"""
    s_lshl_b32 s{S_T3}, s{S_T3}, 9
    s_add_u32 s{S_EX}, s{S_EX}, s{S_T3}
    s_add_u32 s{S_EX}, s{S_EX}, 1024
    v_and_b32 v2, 3, v5
    v_bfe_u32 v4, v5, 2, 1
    v_lshl_add_u32 v2, v4, 3, v2
    v_bfe_u32 v4, v5, 3, 1
    v_lshl_add_u32 v2, v4, 2, v2
    v_lshl_add_u32 v2, v3, 4, v2
    s_mov_b32 s{S_EX+1}, {WS_SIZE}
    """)
    a.label("L_pub")
    a("v_lshlrev_b32 v2, 4, v2\nv_lshl_add_u32 v220, v7, 3, v2")
    def capture(fn):
        n = len(a.lines); fn(); L = a.lines[n:]; del a.lines[n:]; return L
    def part1():
        srd(R_WS, P_WS, WS_SIZE)
        a(f"""
        v_and_b32 v6, 7, v{V_LANE}
        v_lshrrev_b32 v4, 4, v{V_LANE}
        v_lshl_add_u32 v6, v6, 2, v4
        v_bfe_u32 v4, v{V_LANE}, 3, 1
        v_lshl_add_u32 v6, v6, 1, v4
        v_lshlrev_b32 v222, 2, v6
        s_lshl_b32 s{S_T0}, s{S_CB}, 14
        s_lshl_b32 s{S_T1}, s{S_RB}, 10
        s_add_u32 s{S_T0}, s{S_T0}, s{S_T1}
        s_lshl_b32 s{S_T1}, s{S_HW}, 8
        s_add_u32 s{S_T0}, s{S_T0}, s{S_T1}
        s_add_u32 s{S_CNT}, s{S_T0}, {WS_CS}
        """)
    def part2():
        srd(R_DBG, P_DBG, 256)
        setup_ids()
        for i in range(4): a(f"v_mov_b32 v{12+i}, -1")
        common_setup()
        a(f"""
        v_and_b32 v2, 0xff, v{V_L16}
        v_add_u32 v11, {L_R + 256}, v2
        v_xor_b32 v6, v3, v7
        v_lshl_add_u32 v2, v6, 9, v2
        v_add_u32 v10, {L_R}, v2
        s_lshl_b32 s{S_T0}, s{S_HW}, 11
        v_add_u32 v254, s{S_T0}, v{V_L16}
        s_lshr_b32 s{S_T0}, s{S_CB}, 2
        s_and_b32 s{S_T1}, s{S_CB}, 3
        s_mul_i32 s{S_T2}, s{S_RB}, 448
        s_mul_i32 s{S_T3}, s{S_T0}, 28
        s_add_u32 s{S_T2}, s{S_T2}, s{S_T3}
        s_lshl_b32 s{S_T3}, s{S_T1}, 3
        s_add_u32 s{S_T2}, s{S_T2}, s{S_T3}
        s_add_u32 s{S_T2}, s{S_T2}, s{S_HW}
        s_lshl_b32 s{S_T2}, s{S_T2}, 10
        s_add_u32 s{S_HST}, s{S_T2}, {WS_H}
        s_add_u32 s{S_HSB}, s{S_HST}, 4096
        s_lshl_b32 s{S_T2}, s{S_RB}, 7
        s_lshl_b32 s{S_T3}, s{S_T0}, 3
        s_add_u32 s{S_T2}, s{S_T2}, s{S_T3}
        s_add_u32 s{S_T2}, s{S_T2}, s{S_HW}
        s_lshl_b32 s{S_T2}, s{S_T2}, 10
        s_add_u32 s{S_T2}, s{S_T2}, {WS_Q}
        """)
    defer1 = capture(part1)
    defer2 = capture(part2) + [f"s_cmp_eq_u32 s{S_T1}, 3\ns_cselect_b32 s{S_HSB}, s{S_T2}, s{S_HSB}"]
    PX, PW, PACC, PCS, PRS, PSQ, PONE, PSQP, PF1, RD = 24, 40, 56, 60, 64, 68, 72, 76, 77, 80
    for i in range(4): a(f"v_mov_b32 v{PONE+i}, s{S_ONES}")
    init = []
    stamp(name=3)
    a(f"v_mov_b32 v{PF1}, 1.0\nv_mov_b32 v{PSQP}, 0\ns_waitcnt vmcnt({cfg.n_csa})")
    stamp(); stamp(name=4)
    for s in range(4): a(f"ds_read_b128 {vr(PX+4*s,4)}, v{128 + (s & 1)} offset:{L_PX + 2048*(s >> 1)}")
    for s in range(4):
        for t in range(2): a(f"ds_read_b64_tr_b16 {vr(PW+4*s+2*t,2)}, v130 offset:{1024*s+128*t}")
    a("s_waitcnt lgkmcnt(8)")
    for i in range(16): a(f"v_dot2c_f32_bf16 v{PSQP}, v{PX+i}, v{PX+i}")
    a(f"s_and_b32 s{S_T0}, s{S_CB}, 1\ns_cmp_eq_u32 s{S_T0}, 0\ns_waitcnt lgkmcnt(0)\ns_cbranch_scc0 L_preV")
    for form in range(2):
        if form == 1: a.label("L_preV")
        def mm(d, w, x, first):
            return mfma16(d, w, x, None if first else d) if form == 0 else mfma16(d, x, w, None if first else d)
        a(f"v_mfma_f32_16x16x4_f32 {vr(PSQ,4)}, v{PF1}, v{PSQP}, 0" if form == 0 else f"v_mfma_f32_16x16x4_f32 {vr(PSQ,4)}, v{PSQP}, v{PF1}, 0")
        for s in range(4):
            a(mm(PRS, PONE, PX + 4*s, s == 0)); a(mm(PCS, PW + 4*s, PONE, s == 0)); a(mm(PACC, PW + 4*s, PX + 4*s, s == 0))
        if form == 0: a("s_branch L_pre_w")
    a.label("L_pre_w")
    a(f"s_cmp_eq_u32 s{S_HW}, 0\ns_cbranch_scc1 L_fin\ns_nop 3")
    for q, r in ((3, PSQ), (2, PRS), (1, PCS), (0, PACC)): a(f"ds_write_b128 v131, {vr(r,4)} offset:{1024*q}")
    a(f"s_waitcnt lgkmcnt(0)\ns_mov_b64 exec, 1\nds_add_u32 v16, v11\ns_mov_b64 exec, -1\ns_branch L_nofin")
    a.label("L_fin")
    a(f"ds_read_b32 v19, v16\ns_waitcnt lgkmcnt(0)\nv_cmp_gt_u32 vcc, 3, v19\ns_nop 0\ns_cbranch_vccnz L_fin")
    for w in (1, 2, 3):
        for q in range(4): a(f"ds_read_b128 {vr(RD + 16*(w-1) + 4*q,4)}, v131 offset:{4096*w + 1024*q}")
    for w in (1, 2, 3):
        a(f"s_waitcnt lgkmcnt({12 - 4*w})")
        for i in range(0, 16, 2): a(f"v_pk_add_f32 {vr(PACC+i,2)}, {vr(PACC+i,2)}, {vr(RD+16*(w-1)+i,2)}")
    for i in range(4):
        a(f"v_mul_f32 v{PRS+i}, {hex(f2u(-1.0/512))}, v{PRS+i}")
        a(f"v_mul_f32 v{PSQ+i}, {hex(f2u(1.0/512))}, v{PSQ+i}")
        a(f"v_fma_f32 v{PSQ+i}, -v{PRS+i}, v{PRS+i}, v{PSQ+i}")
        a(f"v_max_f32 v{PSQ+i}, 0, v{PSQ+i}")
        a(f"v_add_f32 v{PSQ+i}, {hex(f2u(1e-5))}, v{PSQ+i}")
        a(f"v_rsq_f32 v{PX+i}, v{PSQ+i}")
        a(f"v_fmac_f32 v{PACC+i}, v{PRS+i}, v{PCS+i}")
    a(f"s_and_b32 s{S_T0}, s{S_CB}, 1\ns_lshl_b32 s{S_T0}, s{S_T0}, 4")
    for i in range(4): a(f"v_mul_f32 v{PACC+i}, v{PACC+i}, v{PX+i}")
    for i in range(4): a(f"v_ldexp_f32 v{PACC+i}, v{PACC+i}, s{S_T0}")
    a(f"""
    v_cvt_pk_bf16_f32 v216, v{PACC}, v{PACC+1}
    v_cvt_pk_bf16_f32 v217, v{PACC+2}, v{PACC+3}
    v_cvt_pk_bf16_f32 v12, v{PRS}, v{PRS}
    v_and_b32 v2, 0xffff0000, v12
    v_sub_f32 v2, v{PRS}, v2
    v_cvt_pk_bf16_f32 v12, v{PRS}, v2
    v_mov_b32 v14, v{PSQ}
    s_mov_b32 exec_lo, 0
    v_mov_b32 v12, 0
    s_and_b32 s{S_T0}, s{S_T16}, 1
    s_sub_u32 exec_lo, s{S_T0}, 1
    s_mov_b32 exec_hi, exec_lo
    v_swap_b32 v12, v14
    s_mov_b32 exec_lo, 0xffff0000
    s_mov_b32 exec_hi, 0
    v_mul_f32 v12, {hex(f2u(-KG))}, v{PX}
    v_mul_f32 v2, v{PX}, v{PX}
    v_mul_f32 v14, {hex(f2u(0.044715))}, v12
    v_mul_f32 v14, v14, v2
    s_mov_b64 exec, -1
    v_mov_b32 v13, v12
    v_mov_b32 v15, v14
    """)
    a.label("L_nofin")
    stamp(name=5)
    init += [f"s_cmp_lg_u32 s{S_HW}, 0\ns_cbranch_scc1 L_nopub\n"
             f"buffer_store_dwordx2 v[216:217], v220, {sr(R_WS,4)}, s{S_EX} offen sc1\n"
             f"buffer_store_dwordx4 v[12:15], v{V_L16}, {sr(R_WS,4)}, s{S_EX+1} offen sc1\nL_nopub:"]
    def cs_compute():
        L = ["s_waitcnt vmcnt(0)"]
        for i in range(4):
            L += [f"v_lshlrev_b32 v{CSUM+2*i}, 16, v{CL+i}", f"v_and_b32 v{CSUM+2*i+1}, 0xffff0000, v{CL+i}"]
            for e in range(1, 4):
                L += [f"v_lshlrev_b32 v2, 16, v{CL+4*e+i}", f"v_and_b32 v3, 0xffff0000, v{CL+4*e+i}", f"v_add_f32 v{CSUM+2*i}, v{CSUM+2*i}, v2", f"v_add_f32 v{CSUM+2*i+1}, v{CSUM+2*i+1}, v3"]
        L += [f"v_permlane32_swap_b32 v{CSUM+j}, v{CSUM+4+j}" for j in range(4)]
        L += [f"v_add_f32 v{CSUM+j}, v{CSUM+j}, v{CSUM+4+j}" for j in (0, 2, 1, 3)]
        L += [f"v_permlane16_swap_b32 v{CSUM}, v{CSUM+2}", "s_nop 0", f"v_permlane16_swap_b32 v{CSUM+1}, v{CSUM+3}"]
        L += [f"v_add_f32 v{CSUM}, v{CSUM}, v{CSUM+2}", f"v_add_f32 v{CSUM+1}, v{CSUM+1}, v{CSUM+3}", "s_nop 0"]
        L += [f"v_add_f32_dpp v2, v{CSUM}, v{CSUM} row_ror:8 row_mask:0xf bank_mask:0xf", f"v_add_f32_dpp v2, v{CSUM+1}, v{CSUM+1} row_ror:8 row_mask:0xf bank_mask:0xc"]
        L += [f"v_mov_b32 v221, v2"]
        return L
    init.insert(0, f"buffer_store_dword v221, v222, {sr(R_WS,4)}, s{S_CNT} offen sc1")
    if cfg.g_init < 3:
        for l in defer1: a(l)
        defer1.clear()
    for l in (cs_compute() if cfg.n_csa == 4 else csld[cfg.n_csa:]): a(l)
    if cfg.g_init < 3:
        assert cfg.n_csa == 4
    if cfg.g_init == -1:
        for l in init: a(l)
    stamp(name=6)
    a("s_barrier")
    nst[0] = 2
    stamp(name="b0"); pad("b0")
    HS = [divmod(g, 2) for g in range(28)] + [(14, 0), (15, 0), (14, 1), (15, 1)]
    def wf(K, mt): return WF + 16*((K + 1) & 1) + 4*mt
    def x_reads(g):
        K, nh = HS[g]
        return [f"ds_read_b128 {vr(XF+16*(g&1)+4*i,4)}, v{V_XA+(K&1)} offset:{XS[K>>1]*16384 + (4*nh+i)*2048}" for i in range(4)]
    def w_reads(K):
        slot = ((K >> 1) + 2) % 3
        return [f"ds_read_b64_tr_b16 {vr(wf(K,mt)+2*t,2)}, v{V_WR+(mt>>1)} offset:{(mt&1)*24576 + slot*8192 + (K&1)*4096 + t*512}" for mt in range(4) for t in range(2)]
    def mm(g, mt, i):
        K, nh = HS[g]; nt = 4*nh + i
        d = acc(mt >> 1, nt >> 1) + 8*(mt & 1) + 4*(nt & 1)
        return mfma16(d, wf(K, mt), XF + 16*(g&1) + 4*i, None if K == 0 else d)
    def rw_reads(rt, dst): return [f"ds_read_b128 {vr(dst+4*i,4)}, v{10 + (i >> 1)} offset:{2048*rt + 1024*(i & 1)}" for i in range(4)]
    op_reads = [f"ds_read_b128 {vr(RA+4*i,4)}, v254 offset:{L_RA + 1024*i}" for i in range(2)] + rw_reads(0, RWP) + rw_reads(1, RWQ)
    def rank1(ti, rt, rw): return mfma32(acc(ti, rt), RA + 4*ti, rw + 2, acc(ti, rt))
    def split2(src, dst, dup):
        if dup:
            return [f"v_cvt_pk_bf16_f32 v{dst}, v{src}, v{src}", f"v_and_b32 v2, 0xffff0000, v{dst}", f"v_sub_f32 v2, v{src}, v2", f"v_cvt_pk_bf16_f32 v{dst+1}, v2, v2"]
        return [f"v_cvt_pk_bf16_f32 v{dst}, v{src}, v{src}", f"v_and_b32 v2, 0xffff0000, v{dst}", f"v_sub_f32 v2, v{src}, v2", f"v_cvt_pk_bf16_f32 v{dst}, v{src}, v2", f"v_mov_b32 v{dst+1}, v{dst}"]
    arrive = (f"s_cmp_lg_u32 s{S_W}, 0\ns_cbranch_scc1 L_noarr\ns_and_b32 s{S_EX}, s2, 7\ns_lshl_b32 s{S_EX}, s{S_EX}, 5\n"
              f"s_mov_b64 exec, 1\nbuffer_atomic_add v223, off, {sr(R_DBG,4)}, s{S_EX} sc1\ns_mov_b64 exec, -1\nL_noarr:")
    w = w_reads(0)
    for l in w[:2] + x_reads(0) + w[2:]: a(l)
    def half_step(g):
        K, nh = HS[g]
        neww = g == 0 or HS[g-1][0] < K and g != 31
        gaps = [[] for _ in range(16)]
        o = 0
        if g & 3 == 3 and g < 28 or g == cfg.g_h:
            gaps[0] = (cs_compute() if g == 3 and cfg.n_csa < 4 else []) + (init if g == cfg.g_init else []) + ["s_barrier"]; o = 1
        rd = x_reads(g + 1) if g < 31 else rw_reads(2, WF + 16)
        if g < 29 and HS[g+1][0] > K:
            w = w_reads(K + 1); rd = w[:2] + rd + w[2:]
        if g == cfg.g_h: rd += op_reads
        if cfg.nord: rd = []
        for i, l in enumerate(rd): gaps[o + i].append(l)
        if neww:
            top = "lgkmcnt(4)"
            gaps[7].append(f"s_waitcnt lgkmcnt({min(len(rd), 8 - o)})")
        else: top = "lgkmcnt(10)" if g == cfg.g_h + 1 else "lgkmcnt(0)"
        a("s_waitcnt " + ("vmcnt(0) " if g == 4*cfg.c_arr + 3 else "") + top)
        if g == 4*cfg.c_arr + 3: gaps[14].append(arrive)
        if g == cfg.g_init and g != 3: gaps[9].append(init[0]); gaps[12].append(init[1])
        dl = defer1 if g < 3 and cfg.g_init == 3 or g <= cfg.g_init else defer2
        for k in range(16):
            if not gaps[k]:
                gaps[k] = dl[:2]; del dl[:2]
        assert not (g >= 2 and defer1) and not (g >= 27 and defer2)
        for k in range(16):
            a(mm(g, k >> 2, k & 3))
            for l in gaps[k]: a(l)
            if g == 31 and k == 3: a(("s_waitcnt lgkmcnt(4)\n" if cfg.g_h == 30 else "") + rank1(0, 0, RWP))
            if k == 0 and (g == 27 or (cfg.stamps == 4 and g & 3 == 3)): stamp()
            if k == 15 and g >= cfg.g_tr and g & 1 == 0 and cfg.stamps == 10 and ncs[0] < 6: a(f"s_memtime {sr([32, 34, 92, 94, 96, 98][ncs[0]], 2)}"); ncs[0] += 1
    for g in range(30): half_step(g)
    def swaps(o): return [f"v_permlane16_swap_b32 v{o}, v{o+2}", f"v_permlane16_swap_b32 v{o+1}, v{o+3}"]
    def gelu(ti, rt, rw, mf=(), pre=()):
        A = acc(ti, rt)
        def b(i): return rw + 8 + 4*(i >> 2)
        def vp(i): return rw + 6*(i >> 2)
        t1, t2, o = 144, 152, HO + 16*ti + 4*rt
        L = [".p2align 3"]
        for i in range(0, 8, 2): L.append(f"v_pk_mul_f32 {vr(t1+i,2)}, {vr(A+i,2)}, {vr(A+i,2)}")
        L += pre
        for i in range(0, 8, 2): L.append(f"v_pk_fma_f32 {vr(t1+i,2)}, {vr(t1+i,2)}, {vr(b(i)+2,2)}, {vr(b(i),2)}")
        for i in range(0, 8, 2): L.append(f"v_pk_mul_f32 {vr(t1+i,2)}, {vr(t1+i,2)}, {vr(A+i,2)}")
        L += mf
        for i in range(8): L.append(f"v_exp_f32 v{t1+i}, v{t1+i}")
        for i in range(0, 8, 2): L.append(f"v_pk_mul_f32 {vr(t2+i,2)}, {vr(A+i,2)}, {vr(A+8+i,2)}")
        for i in range(0, 8, 2): L.append(f"v_pk_fma_f32 {vr(t1+i,2)}, {vr(t1+i,2)}, {vr(vp(i),2)}, {vr(vp(i),2)}")
        for i in range(8): L.append(f"v_rcp_f32 v{t1+i}, v{t1+i}")
        for i in range(0, 8, 2): L.append(f"v_pk_mul_f32 {vr(t2+i,2)}, {vr(t2+i,2)}, {vr(t1+i,2)}")
        for i in range(4): L.append(f"v_cvt_pk_bf16_f32 v{o+i}, v{t2+2*i}, v{t2+2*i+1}")
        return L
    def qtile(rt, rw):
        A = acc(1, rt); qs = hex(f2u(-0.25*math.log2(math.e)/KG))
        L = [f"v_mul_f32 v{12+i}, {qs}, v{rw + 8 + 4*(i >> 1)}" for i in range(4)]
        L += [f"s_add_u32 s{S_T0}, s{S_HSB}, {32768*rt}", f"s_add_u32 s{S_T1}, s{S_T0}, 4096"]
        for hd in range(2):
            h = A + 8*hd
            for i in range(0, 8, 2): L.append(f"v_pk_mul_f32 {vr(h+i,2)}, {vr(h+i,2)}, {vr(12 + 2*(i >> 2),2)}")
            for i in range(4): L.append(f"v_cvt_pk_bf16_f32 v{h+i}, v{h+2*i}, v{h+2*i+1}")
            for i in (0, 2, 1, 3): L.append(f"v_min_u32 v{h+i}, -2, v{h+i}")
            L += [swaps(h)[0], "s_nop 0", swaps(h)[1]]
            L.append(f"buffer_store_dwordx4 {vr(h,4)}, v{V_L16}, {sr(R_WS,4)}, s{S_T0 + hd} offen sc1")
        return L
    L_HQ = L_KV + 49152
    def att_regs():
        a(f"""
        v_and_b32 v5, 27, v{V_LANE}
        v_cmp_eq_u32 vcc, 16, v5
        v_mov_b32 v6, 0x47804780
        v_mov_b32 v{V_IDX}, 0xdddddddd
        v_mov_b32 v11, 1
        v_mov_b32 v49, 0.5
        v_cndmask_b32 v{VF}, 0, v6, vcc
        v_mov_b32 v{VF+1}, v{VF}
        """)
        for i in range(2, 16, 2): a(f"v_mov_b64 {vr(VF+i,2)}, {vr(VF,2)}")
        for i in range(0, 16, 2): a(f"v_mov_b64 {vr(OO+i,2)}, 0")
        a(f"s_lshl_b32 s{S_T0}, s{S_KQ}, 13\ns_add_u32 s{S_T0}, s{S_T0}, {L_WO - L_WD}\nv_add_u32 v{V_OA}, s{S_T0}, v{V_DA}\nv_xor_b32 v{V_OA+1}, 64, v{V_OA}")
    def kv_first():
        a(f"ds_read_b128 {vr(KF,4)}, v{V_KA} offset:{kv_off(0)}\nds_read_b128 {vr(KF+4,4)}, v{V_KA} offset:{kv_off(1)}")
        a(f"s_mov_b64 exec, {sr(S_VM,2)}\nds_read_b128 {vr(VF,4)}, v{V_VA} offset:{kv_off(0)}\ns_mov_b64 exec, -1")
    a(f"s_and_b32 s{S_T1}, s{S_CB}, 3\ns_cmp_eq_u32 s{S_T1}, 3\ns_cbranch_scc1 L_qt")
    half_step(30); half_step(31)
    n0 = nst[0]
    stamp(name="g1"); pad("g1")
    RWS = [RWP, RWQ, WF + 16, RWP]
    order = [(ti, rt) for rt in range(4) for ti in range(2)]
    for i, (ti, rt) in enumerate(order):
        if i == 2:
            for l in rw_reads(3, RWS[3]): a(l)
        if i in (3, 5): a("s_waitcnt lgkmcnt(0)")
        if i == cfg.i_q: a("s_barrier")
        nx = order[i+1] if i < 7 else None
        pv = order[i-1] if i else None
        for l in gelu(ti, rt, RWS[rt], [rank1(*nx, RWS[nx[1]])] if nx else [], swaps(HO + 16*pv[0] + 4*pv[1]) if pv else []): a(l)
    a("s_nop 1")
    for l in swaps(HO + 16 + 12): a(l)
    a("s_branch L_joinA")
    a.label("L_qt")
    RWS = [RWP, RWQ, acc(1, 0), acc(1, 1)]
    if cfg.g_h == 30:
        a("s_barrier")
        for l in op_reads: a(l)
    for l in x_reads(31): a(l)
    a("s_waitcnt lgkmcnt(4)\ns_nop 0")
    a(rank1(1, 0, RWP)); a(rank1(1, 1, RWQ))
    a.nop(5)
    for rt in range(2):
        for l in qtile(rt, RWS[rt]): a(l)
    a("s_waitcnt lgkmcnt(0)")
    rd = rw_reads(2, RWS[2]) + rw_reads(3, RWS[3])
    for g in (30, 31):
        for k in range(8, 16):
            a(mm(g, k >> 2, k & 3))
            if rd: a(rd.pop(0))
    a("s_waitcnt lgkmcnt(0)\ns_nop 3")
    a(rank1(1, 2, RWS[2])); a(rank1(1, 3, RWS[3]))
    a.nop(5)
    for rt in (2, 3):
        for l in qtile(rt, RWS[rt]): a(l)
    a(rank1(0, 0, RWP))
    for g in (30, 31):
        for k in range(8): a(mm(g, k >> 2, k & 3))
    nst[0] = n0
    stamp(name="g1")
    a(f"s_mov_b32 s{S_HSB}, {WS_SIZE}")
    for i in range(4): a(f"v_mov_b32 v{12+i}, -1")
    for rt in range(4):
        if rt == cfg.i_qb: a("s_barrier")
        for l in gelu(0, rt, RWS[rt], [rank1(0, rt + 1, RWS[rt + 1])] if rt < 3 else [], swaps(HO + 4*(rt - 1)) if rt else []): a(l)
    a("s_nop 1")
    for l in swaps(HO + 12): a(l)
    a.label("L_joinA")
    nst[0] = 12 if cfg.stamps == 4 else 5
    stamp()
    if not cfg.gpos:
        att_regs()
        kv_first()
    a("s_barrier")
    stamp(name="att0"); pad("att0")
    a(f"ds_read_b128 {vr(QF,4)}, v254 offset:{L_HQ}")
    for i in range(4): a(f"ds_read_b128 {vr(CC+4*i,4)}, v254 offset:{L_HQ + 1024}")
    if cfg.gpos:
        att_regs()
        kv_first()
    a("s_waitcnt lgkmcnt(0)")
    a(mfma32(S0, KF, QF, CC))
    a("s_nop 3\ns_branch L_attA")

    a.label("L_helper")
    V_XD, V_WD = 192, 194
    PX, PW = 8, 24
    PACC, PCS, PRS, PSQ = 40, 44, 48, 52
    PONE, PSQP, PF1 = 56, 60, 61
    RD = 64
    a(f"""
    s_lshl_b32 s{S_XOFF}, s{S_RB}, 17
    s_lshl_b32 s{S_T0}, s{S_HW}, 15
    s_add_u32 s{S_XOFF}, s{S_XOFF}, s{S_T0}
    v_and_b32 v5, 15, v{V_LANE}
    v_lshrrev_b32 v6, 4, v{V_LANE}
    v_lshrrev_b32 v7, 3, v{V_LANE}
    v_and_b32 v63, 7, v{V_LANE}
    v_xor_b32 v62, v6, v63
    v_lshlrev_b32 v62, 4, v62
    v_lshl_add_u32 v{V_XD}, v7, 10, v62
    v_xor_b32 v{V_XD+1}, 64, v{V_XD}
    v_add_u32 v{V_XD+1}, {8192-1024}, v{V_XD+1}
    """)
    img_params(S_HW, S_WSTEP, S_WOFF)
    a(f"""
    v_and_b32 v62, 1, v6
    v_lshlrev_b32 v62, 1, v62
    v_xor_b32 v62, v62, v63
    v_lshlrev_b32 v62, 4, v62
    v_mul_u32_u24 v{V_WD}, s{S_WSTEP}, v7
    v_add_u32 v{V_WD}, v{V_WD}, v62
    v_xor_b32 v{V_WD+1}, 64, v{V_WD}
    s_waitcnt lgkmcnt(0)
    """)
    nst[0] = 0
    stamp()
    a(f"s_mov_b32 s{R_X}, s{P_X}\ns_and_b32 s{R_X+1}, s{P_X+1}, 0xffff")
    Q = []
    def issue(tag, text): a(text); Q.append(tag)
    def vwait(tag, more=""):
        n = len(Q) - 1 - max(i for i, t in enumerate(Q) if t == tag)
        a(f"s_waitcnt vmcnt({n})" + more)
    def xitems(c):
        slot = XS[c]
        return [(f"C{c}", f"s_add_u32 m0, s{S_H4K}, {L_X + slot*16384}\ns_add_u32 s{S_CNT}, s{S_XOFF}, {c*128 + (16384 - 2048)*(e >> 1)}\n"
                 f"buffer_load_dwordx4 v{V_XD + (e & 1)}, {sr(R_X,4)}, s{S_CNT} offen offset:{1024*e} {cfg.cf[1]} lds") for e in range(4)]
    def witems(c):
        slot = (c + 2) % 3
        return [(f"C{c}", f"s_add_u32 m0, s{S_M0W}, {slot*8192 + e*1024}\n" + (f"s_add_u32 s{S_WOFF}, s{S_WOFF}, s{S_WSTEP}" if c + e else "s_nop 0") +
                 f"\nbuffer_load_dwordx4 v{V_WD + (e & 1)}, {sr(R_W,4)}, s{S_WOFF} offen {cfg.cf[0]} lds") for e in range(8)]
    stream = []
    for c in range(1, 8): stream += [(t, x if c < 3 or not cfg.nodma else 's_nop 0') for t, x in witems(c) + xitems(c)]
    pos = [0]
    def take(n):
        for _ in range(n):
            if pos[0] < len(stream): issue(*stream[pos[0]]); pos[0] += 1
    def upto(c):
        return min(len(stream), 12*(c + 1) + cfg.lead[c])
    def mix(lines, n):
        k = 0
        for i, l in enumerate(lines):
            while k < n and k * len(lines) <= i * n: take(1); k += 1
            a(l)
        take(n - k)
    img_srd(R_W, S_WSTEP)
    a(f"s_lshl_b32 s{S_WSTEP}, s{S_WSTEP}, 3\ns_mul_i32 s{S_M0W}, s{S_HW}, 24576\ns_add_u32 s{S_M0W}, s{S_M0W}, {L_W}")
    stamp(name=1)
    a("s_barrier")
    for it in xitems(0) + witems(0): issue(*it)
    stamp(name=3)
    def bar():
        if cfg.stamps == 4: stamp()
        a("s_barrier")
    take(cfg.lead0)
    stamp(name=4)
    nst[0] = 2; vwait("C0"); stamp(name=6); bar()
    BC, BO, BZ = 132, 224, 240
    def b_init():
        srd(R_WS, P_WS, WS_SIZE)
        setup_ids()
        for i in range(4): a(f"v_mov_b32 v{12+i}, -1")
        a(f"v_mov_b32 v10, 0\ns_add_u32 s{S_T2}, s{S_OST}, {WS_Q - WS_O - 2048}\ns_sub_u32 s{S_T3}, s{S_FLG}, 16")
    def b_stores():
        issue("ST", f"buffer_store_dwordx4 v[12:15], v{V_L16}, {sr(R_WS,4)}, s{S_T2} offen sc1")
        issue("ST", f"buffer_store_dwordx4 v[12:15], v{V_L16}, {sr(R_WS,4)}, s{S_T2} offen offset:2048 sc1")
        issue("ST", f"s_mov_b64 exec, 3\nbuffer_store_dword v10, v{V_L16}, {sr(R_WS,4)}, s{S_T3} offen sc1\ns_mov_b64 exec, -1")
    def b_setup():
        srd(R_DBG, P_DBG, 256)
        a(f"s_mov_b32 s{S_ONES}, 0x3f803f80")
        common_setup()
        a(f"""
        v_lshrrev_b32 v6, 4, v{V_LANE}
        v_bfe_u32 v2, v{V_LANE}, 1, 1
        v_lshl_add_u32 v6, v2, 2, v6
        v_and_b32 v2, 1, v{V_LANE}
        v_lshl_add_u32 v6, v2, 5, v6
        v_lshlrev_b32 v6, 4, v6
        v_bfe_u32 v2, v{V_LANE}, 2, 2
        v_lshl_add_u32 v6, v2, 11, v6
        s_lshr_b32 s{S_T0}, s{S_HW}, 1
        s_lshl_b32 s{S_T0}, s{S_T0}, 10
        s_and_b32 s{S_T1}, s{S_HW}, 1
        s_lshl_b32 s{S_T1}, s{S_T1}, 8
        s_add_u32 s{S_T0}, s{S_T0}, s{S_T1}
        v_add_u32 v204, s{S_T0}, v6
        """)
        for i in (0, 1, 4, 5): a(f"v_mov_b32 v{BZ+i}, 0")
        att_regs()
        a(f"s_lshl_b32 s{S_T0}, s{S_HW}, 11\nv_add_u32 v7, s{S_T0}, v{V_L16}")
    bs = capture(b_setup)
    nbs = -(-len(bs) // 3)
    pfl = [f"s_mul_i32 s{S_T0}, s2, 7168\ns_lshl_b32 s{S_T1}, s{S_HW}, 11\ns_add_u32 s{S_T0}, s{S_T0}, s{S_T1}\nbuffer_load_dwordx4 {vr(176,4)}, v{V_L16}, {sr(R_WD,4)}, s{S_T0} offen",
           f"buffer_load_dwordx4 {vr(180,4)}, v{V_L16}, {sr(R_WD,4)}, s{S_T0} offen offset:1024",
           f"s_lshl_b32 s{S_T1}, s2, 11\ns_lshl_b32 s{S_T3}, s{S_HW}, 9\ns_add_u32 s{S_T1}, s{S_T1}, s{S_T3}\ns_mov_b32 exec_hi, 0\nbuffer_load_dwordx4 {vr(184,4)}, v{V_L16}, {sr(R_WO,4)}, s{S_T1} offen\ns_mov_b64 exec, -1"]
    spoll = f"buffer_load_dword v8, v6, {sr(R_DBG,4)}, s{S_T2} offen sc1"
    for c in range(6):
        if c == cfg.c_st[0]:
            mix(capture(b_init), cfg.c_st[1]); b_stores()
        if c in (2, 3, 4): mix(bs[(c-2)*nbs:(c-1)*nbs], upto(c) - pos[0])
        if c == 5:
            take(cfg.n_poll)
            a(f"v_and_b32 v6, 7, v{V_LANE}\nv_lshlrev_b32 v6, 5, v6\ns_lshl_b32 s{S_T2}, s{S_HW}, 8")
            issue("P", spoll)
        take(upto(c) - pos[0])
        if c == cfg.c_arr: vwait("ST")
        if c == 5:
            vwait("P")
            a(f"s_cmp_lg_u32 s{S_HW}, 0\ns_cbranch_scc1 L_sync1\ns_mov_b32 s{S_SPIN}, 0")
            a.label("L_sync1_chk")
            a(f"""
            v_cmp_gt_u32 vcc, 32, v8
            s_add_u32 s{S_SPIN}, s{S_SPIN}, 1
            s_cbranch_vccz L_sync1
            s_cmp_ge_u32 s{S_SPIN}, {SPIN_MAX}
            s_cbranch_scc1 L_sync1
            s_sleep 4
            {spoll}
            s_waitcnt vmcnt(0)
            s_branch L_sync1_chk
            """)
            a.label("L_sync1")
        vwait(f"C{c+1}"); bar()
    assert pos[0] == len(stream)
    ncs[0] = 0; cstamp(11)
    a(f"""
    s_lshl_b32 s{S_T3}, s{S_HW}, 11
    s_add_u32 m0, s{S_T3}, {L_R}
    s_lshl_b32 s{S_EX}, s{S_RB}, 13
    s_add_u32 s{S_EX}, s{S_EX}, s{S_T3}
    s_add_u32 s{S_EX}, s{S_EX}, {WS_ST}
    s_lshl_b32 s{S_T3}, s{S_HW}, 10
    s_lshl_b32 s{S_EX+1}, s{S_CB}, 14
    s_add_u32 s{S_EX+1}, s{S_EX+1}, s{S_T3}
    s_add_u32 s{S_EX+1}, s{S_EX+1}, {WS_CS}
    """)
    if cfg.stamps != 4: nst[0] = 3
    stamp(); cstamp(11)
    def maxtree(src, dst, init=None):
        L = []
        if init is None:
            L.append(f"v_max3_f32 v{dst}, v{src}, v{src+1}, v{src+2}")
            L.append(f"v_max_f32 v{dst}, v{src+3}, v{dst}")
            k = 4
        else:
            k = 0
        for i in range(k, 16, 2): L.append(f"v_max3_f32 v{dst}, v{src+i}, v{src+i+1}, v{dst}")
        return L
    def setC(m, shift):
        a(f"v_mov_b32 v{m+1}, v{m}\ns_nop 1\nv_permlane32_swap_b32 v{m}, v{m+1}\nv_max_f32 v{m}, v{m}, v{m+1}")
        a(f"v_sub_f32 v{CC}, {hex(f2u(-shift)) if shift else 0}, v{m}")
        a(f"v_mov_b32 v{CC+1}, v{CC}")
        for i in range(2, 16, 2): a(f"v_mov_b64 {vr(CC+i,2)}, {vr(CC,2)}")
    for e in range(4):
        if e: a(f"s_add_u32 s{S_EX+1}, s{S_EX+1}, 4096")
        a(f"buffer_load_dwordx4 {vr(BC+4*e,4)}, v{V_L16}, {sr(R_WS,4)}, s{S_EX+1} offen sc1")
    for i in range(2): a(f"buffer_load_dwordx4 v{V_L16}, {sr(R_WS,4)}, s{S_EX} offen offset:{1024*i} sc1 lds")
    npf = 3 if cfg.pf_first else 0
    for x in pfl[:npf]: a(x)
    cstamp(11)
    if cfg.e6 == 0: a(f"s_waitcnt vmcnt({6 + npf})\ns_barrier")
    a(f"s_setprio {cfg.bp}\ns_waitcnt vmcnt({2 + npf})")
    cstamp(11)
    for e in range(1, 4):
        for i in (0, 2, 1, 3): a(f"v_add_f32 v{BC+i}, v{BC+i}, v{BC+4*e+i}")
    a(f"""
    v_permlane32_swap_b32 v{BC}, v{BC+2}
    s_nop 0
    v_permlane32_swap_b32 v{BC+1}, v{BC+3}
    v_add_f32 v{BC}, v{BC}, v{BC+2}
    v_add_f32 v{BC+1}, v{BC+1}, v{BC+3}
    s_nop 1
    v_permlane16_swap_b32 v{BC}, v{BC+1}
    v_add_f32 v{BC}, v{BC}, v{BC+1}
    """)
    for l in split2(BC, BZ + 2, True): a(l)
    a(f"ds_write_b128 v204, {vr(BZ+2,4)} offset:{L_RA}\nds_write_b128 v204, {vr(BZ,4)} offset:{L_RA + 128}")
    cstamp(11)
    for x in pfl[npf:]: a(x)
    a("s_waitcnt vmcnt(3)")
    ncs[0] += 1; cstamp(11)
    a("s_setprio 0\ns_waitcnt lgkmcnt(0)")
    cstamp(11)
    if cfg.e6 == 2: a("s_barrier")
    cstamp(11)
    a("s_barrier")
    for c in range(2):
        slot = (c + 1) % 3
        a(f"s_add_u32 m0, s{S_H4K}, {L_KV + slot*16384}\ns_add_u32 s{S_T0}, s{S_H4K}, {WS_KV + starts[c]*2048}")
        for e in range(4):
            a(f"buffer_load_dwordx4 v{V_L16}, {sr(R_WS,4)}, s{S_T0} offen offset:{1024*e} sc1 lds")
    QP = 128
    qload = (f"buffer_load_dwordx4 {vr(QP,4)}, v{V_L16}, {sr(R_WS,4)}, s{S_T2} offen sc1\n"
             f"buffer_load_dwordx4 {vr(QF,4)}, v{V_L16}, {sr(R_WS,4)}, s{S_T2} offen offset:2048 sc1")
    a(f"s_add_u32 s{S_T2}, s{S_OST}, {WS_Q - WS_O - 2048}\ns_mov_b32 s{S_SPIN}, 0\ns_waitcnt vmcnt(0)\ns_barrier\ns_setprio 2")
    a(qload)
    kv_first()
    nst[0] = 12 if cfg.stamps == 4 else 5
    stamp()
    a.label("L_qchk")
    a(f"""
    s_waitcnt vmcnt(0) lgkmcnt(0)
    v_max3_u32 v8, v{QF}, v{QF+1}, v{QF+2}
    v_max3_u32 v8, v8, v{QF+3}, v{QP}
    v_max3_u32 v8, v8, v{QP+1}, v{QP+2}
    v_max_u32 v8, v8, v{QP+3}
    v_cmp_eq_u32 vcc, -1, v8
    s_add_u32 s{S_SPIN}, s{S_SPIN}, 1
    s_cbranch_vccz L_qok
    s_cmp_ge_u32 s{S_SPIN}, {SPIN_MAX}
    s_cbranch_scc1 L_qok
    s_sleep 2
    {qload}
    s_branch L_qchk
    """)
    a.label("L_qok")
    if cfg.stamps == 1:
        n0 = nst[0]; nst[0] = 4; stamp(); nst[0] = n0
        a(f"v_writelane_b32 v{V_STAMP}, s{S_SPIN}, 63")
    a(mfma32(S0, KF, QP, None)); a(mfma32(S1, KF, QF, None))
    a(f"ds_write_b128 v7, {vr(QP,4)} offset:{L_HQ}")
    a.nop(10)
    for l in maxtree(S0, 8): a(l)
    a(f"v_mov_b32 v9, v8\ns_nop 1\nv_permlane32_swap_b32 v8, v9\nv_max_f32 v8, v8, v9\nv_sub_f32 v{QP+4}, {hex(f2u(-cfg.shift))}, v8")
    a(f"v_mov_b32 v{QP+5}, v{QP+4}\nv_mov_b64 {vr(QP+6,2)}, {vr(QP+4,2)}\nds_write_b128 v7, {vr(QP+4,4)} offset:{L_HQ + 1024}")
    for l in maxtree(S1, 8): a(l)
    if cfg.g_early:
        a("s_waitcnt lgkmcnt(0)\ns_barrier")
        stamp(name="att0"); pad("att0")
    setC(8, cfg.shift)
    a("s_waitcnt lgkmcnt(0)\ns_setprio 0")
    a(mfma32(S0, KF, QF, CC))
    if not cfg.g_early:
        a("s_barrier")
        stamp(name="att0"); pad("att0")
    a("s_nop 3\ns_branch L_attB")

    def kvdma(c, half):
        slot = (c + 1) % 3
        L = (f"s_add_u32 m0, s{S_W2K}, {L_KV + slot*16384}\ns_add_u32 s{S_T0}, s{S_W2K}, {WS_KV + starts[c]*2048}\n")
        if half == 1 and sizes[c] < 8:
            L += f"s_cmp_ge_u32 s{S_W}, {sizes[c]}\ns_cselect_b32 s{S_T0}, {WS_SIZE}, s{S_T0}\n"
        return [L + f"buffer_load_dwordx4 v{V_L16}, {sr(R_WS,4)}, s{S_T0} offen sc1 lds",
                f"buffer_load_dwordx4 v{V_L16}, {sr(R_WS,4)}, s{S_T0} offen offset:1024 sc1 lds"]
    def rowdma(rs, sbase, add, ldsbase, e):
        pre = f"s_add_u32 m0, s{S_W4K}, {ldsbase}\n"
        return pre + f"s_add_u32 s{S_T0}, s{sbase}, {add + e*7168}\nbuffer_load_dwordx4 v{V_WDD}, {sr(rs,4)}, s{S_T0} offen offset:{1024*e} {cfg.cf[2]} lds"
    tbs = [starts[c] - 3 for c in range(1, len(starts))]
    late = []
    def attention(half):
        sfx = "AB"[half]
        head = {t: [] for t in range(66)}
        vm = {t: [] for t in range(66)}
        pre = {t: [] for t in range(66)}
        bg = {t: [] for t in range(66)}
        nb = len(tbs); c0 = nb - 7
        lh, mb = cfg.lh, cfg.mb
        for ci, tb in enumerate(tbs):
            q = []
            if ci + 2 < len(starts): q += [("D", x) for x in kvdma(ci + 2, half)]
            dload = ci - c0 + 1
            if 0 <= dload <= 6:
                wq_ = [rowdma(R_WD, S_WDO, dload*65536, L_WD + (dload & 1)*32768, e) for e in range(4)]
                if dload == 0:
                    for e in range(4): vm[cfg.t_wd0[e]].append(("D", wq_[e]))
                else: q += [("D", x) for x in wq_]
                hl = [f"buffer_load_dwordx4 {vr(HF + 16*(dload&1) + 4*j,4)}, v{V_L16}, {sr(R_WS,4)}, s{S_T1} offen offset:{1024*j} sc1" for j in range(4)]
                hl[0] = f"s_add_u32 s{S_T1}, s{S_HLD}, {dload*4096}\n" + hl[0]
            elif dload == 7:
                q += [("D", rowdma(R_WO, S_WOO, 0, L_WO, e)) for e in range(4)]
                q += [("D", f"buffer_load_dwordx4 {vr(V_XR,4)}, v{V_FO}, {sr(R_X,4)}, 0 offen")]
            for i, x in enumerate(q): vm[tb + cfg.dpos[i] if ci else cfg.t_kv2].append(x)
            if 0 <= dload <= 6:
                for j in range(4):
                    vm[cfg.t_h0[j] if dload == 0 else tb + cfg.hpos[j]].append((f"H{dload}{j}", hl[j]))
                    if j in cfg.hwait: pre[tbs[ci + 1] + mb[2*j]].append(("wait", f"H{dload}{cfg.hwait[j]}"))
            d = dload - 1
            if d >= 0:
                for k in range(8):
                    j, ct = divmod(k, 2); fr = DF + 4 * (k & 3)
                    for t in range(2):
                        head[tb + lh[k]].append(f"ds_read_b64_tr_b16 {vr(fr+2*t,2)}, v{V_DA+ct} offset:{(d&1)*32768 + j*2048 + t*512}")
                    bg[tb + mb[k]].append(mfma32(YY + 16*ct, HF + 16*(d&1) + 4*j, fr, None if (d == 0 and j == 0) else YY + 16*ct))
        assert min(cfg.t_h0) >= cfg.t_chk and max(lh) <= 6 and max(mb) <= 7 and all(m > l for m, l in zip(mb, lh))
        assert all(lh[k+4] > mb[k] and lh[k] + 6 > mb[k+4] for k in range(4)) and all(cfg.hpos[j] + 6 > mb[2*j+1] for j in range(4))
        st = []
        if half == 0:
            for rt in range(4):
                for ti in range(2):
                    st.append(f"s_add_u32 s{S_T3}, s{S_HSB if ti else S_HST}, {112*1024*rt}\n"
                              f"buffer_store_dwordx4 {vr(HO + 16*ti + 4*rt,4)}, v{V_L16}, {sr(R_WS,4)}, s{S_T3} offen sc1")
        st.append(f"buffer_store_dwordx4 v[12:15], v{V_L16}, {sr(R_WS,4)}, s{S_OST} offen sc1")
        hs = list(range(64))
        for i, x in enumerate(st): vm[hs[int(i * cfg.st_rate)]].append(("S", x))
        if half == 1:
            if cfg.t_pf >= 0: vm[cfg.t_pf] += [("X", x) for x in pfl]
            for e in range(8):
                x = f"s_add_u32 m0, s{S_EX}, {L_WO + 32768 + e*1024}\ns_add_u32 s{S_T0}, s{S_EX+1}, {e*8192}\nbuffer_load_dwordx4 v{V_WDD}, {sr(R_WO,4)}, s{S_T0} offen lds"
                if e == 0: x = f"s_lshl_b32 s{S_EX+1}, s{S_HW}, 16\ns_lshl_b32 s{S_T0}, s{S_CT8}, 7\ns_add_u32 s{S_EX+1}, s{S_EX+1}, s{S_T0}\ns_xor_b32 s{S_T0}, s{S_T16}, 0x40000\ns_add_u32 s{S_EX+1}, s{S_EX+1}, s{S_T0}\ns_lshl_b32 s{S_EX}, s{S_H4K}, 1\n" + x
                vm[cfg.t_wo[e]].append(("D", x))
            assert max(cfg.t_wo) <= tbs[1]
            for i in range(6): head[tbs[1] + 2 + i] += wo_rd[4*i:4*i+4]
            head[61] += wo_rd[24:26]; head[63] += wo_rd[26:]
        else:
            head[63] += wo_rd[:cfg.n_wo63]
        for t in cfg.t_code: vm[t].append(("X", "s_mov_b64 exec, 3\nglobal_load_dword v254, v[252:253], off\ns_mov_b64 exec, -1"))
        pre[cfg.t_flag].append(("wait", "S"))
        vm[cfg.t_flag].insert(0, ("F", f"s_mov_b64 exec, 1\nbuffer_store_dword v11, off, {sr(R_WS,4)}, s{S_FLG} sc1\ns_mov_b64 exec, -1"))
        poll = f"buffer_load_dword v3, v{V_PO}, {sr(R_WS,4)}, s{S_T2} offen sc1"
        vm[cfg.t_poll].append(("P", f"s_mov_b32 s{S_T2}, {WS_FL}\n" + poll))
        assert cfg.t_poll <= cfg.t_chk - 2
        pre[cfg.t_chk - 1].append(("wait", "P"))
        pre[cfg.t_chk].append(("text", f"s_cbranch_vccnz L_hspin{sfx}\nL_hok{sfx}:"))
        late.append(f"L_hspin{sfx}:\ns_mov_b32 s{S_SPIN}, 0\nL_hchk{sfx}:\ns_sleep 2\n{poll}\ns_waitcnt vmcnt(0)\nv_cmp_ne_u32 vcc, 1, v3\ns_add_u32 s{S_SPIN}, s{S_SPIN}, 1\ns_cbranch_vccz L_hok{sfx}\n"
                    f"s_cmp_lt_u32 s{S_SPIN}, {SPIN_MAX}\ns_cbranch_scc1 L_hchk{sfx}\ns_branch L_hok{sfx}")
        VQ = []
        def cnt(tag):
            idx = [i for i, x in enumerate(VQ) if x == tag]
            return min(63, len(VQ) - 1 - max(idx)) if idx else 63
        def emit_vm(L):
            for tag, x in L: a(x); VQ.append(tag)
        for t in range(tbs[2] + 1, 64):
            if 'v' in cfg.ab: vm[t] = [x for x in vm[t] if 'sc1 lds' in x[1]]
            if 'h' in cfg.ab: vm[t] = [x for x in vm[t] if x[0] != 'H']
            if 'r' in cfg.ab: head[t] = []
            if 'm' in cfg.ab: bg[t] = []
        for t in range(64):
            par = t & 1
            sd, sn = (S0, S1) if par == 0 else (S1, S0)
            p, pp = PP + 8*par, PP + 8*(1 - par)
            isb = (t in tbs and not ('b' in cfg.ab and t > tbs[2])) or t == 62
            if cfg.stamps == 2 and t - 1 in tbs: stamp()
            midb = isb and half == 1
            if half == 0 and (t - 1 in tbs or t == 63): a(f"s_waitcnt vmcnt({cnt('D')}) lgkmcnt(0)\ns_barrier")
            else: a("s_waitcnt lgkmcnt(0)")
            for k, x in pre[t]: a(x if k == "text" else f"s_waitcnt vmcnt({cnt(x)})")
            emit_vm(vm[t][:1])
            if not ('L' in cfg.ab and t & 2) and not ('Z' in cfg.ab and t > 2):
                if t + 2 < 64: a(f"ds_read_b128 {vr(KF+4*par,4)}, v{V_KA} offset:{kv_off(t+2)}")
                a(f"s_mov_b64 exec, {sr(S_VM,2)}")
                if t + 1 < 64: a(f"ds_read_b128 {vr(VF+8*(1-par),4)}, v{V_VA} offset:{kv_off(t+1)}")
                a(f"ds_read_b128 {vr(VF+8*par+4,4)}, v{V_VA} offset:{kv_off(t)+512}")
                a("s_mov_b64 exec, -1")
            for l in head[t]: a(l)
            emit_vm(vm[t][1:])
            if t == 0 and cfg.stamps == 9: ncs[0] = 0
            if cfg.t_tr <= t < cfg.t_tr + 9: cstamp(9)
            pos = cfg.pos[len(bg[t])]
            sl = [smf(OO, VF + 8*(1-par) + 4, sn + 8) if t >= 1 else None, mfma32(sn, KF + 4*(1-par), QF, CC) if t + 1 < 64 else None]
            sl += bg[t][:1] + [smf(OO, VF + 8*par, sd)] + bg[t][1:]
            at = {p: m for p, m in zip(pos, sl) if m}
            if t in cfg.upd:
                assert len(sl) == 3
                at = {1: f"v_frexp_exp_i32_f32_e64 v4, v{OO+8}", 2: sl[0], 3: f"v_sub_u32 v4, {17 - int(cfg.shift)}, v4\nv_cvt_f32_i32_e64 v5, v4", 5: sl[1],
                      8: f"v_mfma_f32_32x32x2_f32 {vr(CC,16)}, v49, v5, {vr(CC,16)}", 15: sl[2]}
                if cfg.updm >= 1:
                    mv = [f"v_mov_b32 v{CC+1}, v{CC}"] + [f"v_mov_b64 {vr(CC+i,2)}, {vr(CC,2)}" for i in range(2, 16, 2)] if cfg.updm == 1 else [f"v_mov_b32 v{CC+i}, v{CC}" for i in range(1, 16)]
                    del at[8], at[15]
                    at[12] = "\n".join([f"v_add_f32{'_e64' if cfg.updm == 1 else ''} v{CC}, v{CC}, v5"] + mv)
                    at[13] = sl[2]
                if cfg.updl: at[3] = f"v_sub_u32 v4, {17 - int(cfg.shift)}, v4\nv_max_i32 v4, 0xffffff82, v4\nv_cvt_f32_i32_e64 v5, v4\nv_ldexp_f32 v4, 1.0, v4"
            if t - 2 in cfg.upd:
                assert len(sl) == 3
                at = {2: sl[0], 6: sl[1], 13: "\n".join((f"v_mul_f32{'_e64' if i == 0 else ''} v{OO+i}, v{OO+i}, v4" if cfg.updl else f"v_ldexp_f32 v{OO+i}, v{OO+i}, v4") for i in range(9)), 15: sl[2]}
            a(".p2align 3")
            odd = False
            for i in range(16):
                if i in at: a(at[i])
                if midb and i == cfg.bmid: a(f"s_waitcnt vmcnt({cnt('D')}) lgkmcnt(0)\ns_barrier")
                pr = i == (cfg.pp if half else cfg.pa)
                wide = (i + 1 in at) and (odd == pr)
                a(f"v_exp_f32{'_e64' if wide else ''} v{sd+i}, v{sd+i}")
                if not wide: odd = not odd
                if pr: a(f"s_setprio {cfg.pv[half]}"); odd = not odd
            if cfg.stamps == 3: a(f"s_waitcnt lgkmcnt(0)\nv_writelane_b32 v253, s{S_TS}, {t}\nv_writelane_b32 v254, s{S_TS2}, {t}\ns_memtime {sr(S_TS2,2)}")
            if t == cfg.t_chk - 1: a("v_cmp_ne_u32 vcc, 1, v3")
            if (cfg.pp if half else cfg.pa) is not None: a("s_setprio 0")
            if cfg.t_tr <= t < cfg.t_tr + 9: cstamp(9)
        a("s_waitcnt lgkmcnt(0)\ns_nop 0")
        a(smf(OO, VF + 12, S1 + 8))
    OF, SS, XU, TT = 16, 64, 160, 168
    def oload(j): return f"buffer_load_dwordx4 {vr(OF+4*j,4)}, v{V_L16}, {sr(R_WS,4)}, s{S_OLD if j < 4 else S_T1} offen offset:{1024*(j&3)} sc1"
    def normalize():
        for i in range(0, 8, 2): a(f"v_pk_mul_f32 {vr(OO+i,2)}, {vr(OO+i,2)}, v[10:11]")
        for i in range(4): a(f"v_cvt_pk_bf16_f32 v{12+i}, v{OO+2*i}, v{OO+2*i+1}")
    def tail(half):
        sfx = "AB"[half]
        if cfg.stamps == 8: ncs[0] = 0
        stamp(name="att1"); pad("att1")
        cstamp()
        a(f"s_mov_b32 s{S_T2}, {hex(f2u(2.0**120))}\ns_mov_b32 s{S_T3}, {hex(f2u(2.0**-106))}")
        a(f"s_add_u32 s{S_T1}, s{S_OLD}, 4096\ns_mov_b32 s{S_SPIN}, 0\ns_lshl_b32 s{S_T0}, s{S_W}, 13\ns_mov_b32 m0, s{S_T0}")
        a.nop(6)
        a(f"""
        v_rcp_f32 v10, v{OO+8}
        v_maximum3_f32 v8, abs(v{OO}), abs(v{OO+1}), abs(v{OO+2})
        v_maximum3_f32 v9, abs(v{OO+3}), abs(v{OO+4}), abs(v{OO+5})
        v_maximum3_f32 v8, abs(v{OO+6}), abs(v{OO+7}), v8
        v_maximum3_f32 v6, v8, v9, v{OO+8}
        v_max_f32 v8, v8, v9
        v_cmp_ngt_f32 vcc, s{S_T2}, v6
        v_cmp_gt_f32 {sr(S_EX,2)}, s{S_T3}, v8
        v_mov_b32 v11, v10
        s_or_b64 vcc, vcc, {sr(S_EX,2)}
        """)
        a("s_branch L_fb" if cfg.force_fb else "s_nop 0" if cfg.ab else "s_cbranch_scc1 L_fb")
        normalize()
        a.label(f"L_ost{sfx}")
        a(f"buffer_store_dwordx4 v[12:15], v{V_L16}, {sr(R_WS,4)}, s{S_OST} offen sc1")
        cstamp()
        if half == 0:
            for l in wo_rd[cfg.n_wo63:]: a(l)
        for i in range(32): a(f"ds_write_addtid_b32 v{YY+i} offset:{32768 + 256*i}")
        cstamp()
        a(f"""
        v_xor_b32 v5, 16, v{V_GA}
        v_add_u32 v6, 0x10000, v{V_GA}
        v_add_u32 v7, 0x10000, v5
        s_mov_b32 s{S_EX}, 0xff00ff00
        s_mov_b32 s{S_EX+1}, 0xff00ff00
        s_mov_b64 exec, {sr(S_EX,2)}
        v_swap_b32 v{V_XR}, v{V_XR+2}
        v_swap_b32 v{V_XR+1}, v{V_XR+3}
        s_mov_b64 exec, -1
        """)
        for i in range(4): a(f"v_lshlrev_b32 v{XU+2*i}, 16, v{V_XR+i}\nv_and_b32 v{XU+2*i+1}, 0xffff0000, v{V_XR+i}")
        for i in range(0, 32, 2): a(f"v_mov_b64 {vr(SS+i,2)}, 0")
        a(f"s_mov_b32 s{S_CNT}, 0\ns_waitcnt lgkmcnt(0)\ns_barrier")
        if half: a(f"s_add_u32 m0, s{S_T0}, 7940")
        cstamp()
        yr = [f"ds_read_b128 {vr(YY+8*p+4*e,4)}, v{((V_GA, 5), (6, 7))[p >> 1][e]} offset:{(32768 + 16384*p) & 0xffff}" for p in range(4) for e in range(2)]
        G = ["s_waitcnt lgkmcnt(0)"]
        for p in (1, 2, 3): G += [f"v_add_f32 v{YY+i}, v{YY+i}, v{YY+8*p+i}" for i in range(8)]
        G += [f"v_mul_f32 v{TT+i}, {hex(f2u(-math.log2(math.e)))}, v{YY+i}" for i in range(8)]
        G += [f"v_exp_f32 v{TT+i}, v{TT+i}" for i in range(8)]
        G += [f"v_add_f32 v{TT+i}, 1.0, v{TT+i}" for i in range(8)]
        G += [f"v_rcp_f32 v{TT+i}, v{TT+i}" for i in range(8)]
        G += [f"v_mul_f32 v{YY+i}, v{YY+i}, v{TT+i}" for i in range(8)]
        if half:
            for l in yr: a(l)
            for j in range(cfg.n_b0): a(oload(j))
            for l in G[:cfg.n_gb]: a(l)
            G = G[cfg.n_gb:]
            for j in range(cfg.n_b0, 8):
                a(oload(j))
                for l in G[:cfg.n_gp]: a(l)
                G = G[cfg.n_gp:]
            for l in G: a(l)
        else:
            for j in range(8): a(oload(j)); a(yr[j])
        cstamp()
        def chk(j): return f"v_max3_u32 v8, v{OF+4*j}, v{OF+4*j+1}, v{OF+4*j+2}\nv_max_u32 v8, v{OF+4*j+3}, v8\nv_cmp_eq_u32 vcc, -1, v8"
        def nxt(j): return f"s_waitcnt vmcnt({7-j})\n" + chk(j) if j < 8 else f"s_cmp_lg_u32 s{S_CNT}, 0"
        a(nxt(0) + "\ns_nop 0")
        for j in range(8):
            a(f"s_cbranch_vccnz L_omiss{sfx}{j}")
            if j in (0, 3, 7): cstamp()
            a(mfma32(SS, OF + 4*j, WOF[2*j], SS))
            a(nxt(j + 1))
            a(mfma32(SS + 16, OF + 4*j, WOF[2*j + 1], SS + 16))
            a.label(f"L_onext{sfx}{j}")
            late.append(f"L_omiss{sfx}{j}:\ns_bitset1_b32 s{S_CNT}, {j}\n{nxt(j + 1)}\ns_branch L_onext{sfx}{j}")
        a(f"s_cbranch_scc1 L_ofix{sfx}")
        a.label(f"L_ook{sfx}")
        a.nop(9)
        F = f"L_ofix{sfx}:\ns_add_u32 s{S_SPIN}, s{S_SPIN}, 1\ns_cmp_ge_u32 s{S_SPIN}, {SPIN_MAX}\ns_cbranch_scc1 L_ook{sfx}\n"
        for j in range(8): F += f"s_bitcmp1_b32 s{S_CNT}, {j}\ns_cbranch_scc0 L_ofa{sfx}{j}\n{oload(j)}\nL_ofa{sfx}{j}:\n"
        F += "s_waitcnt vmcnt(0)\n"
        for j in range(8):
            F += (f"s_bitcmp1_b32 s{S_CNT}, {j}\ns_cbranch_scc0 L_ofb{sfx}{j}\n{chk(j)}\ns_nop 0\ns_cbranch_vccnz L_ofb{sfx}{j}\ns_bitset0_b32 s{S_CNT}, {j}\n"
                  + mfma32(SS, OF + 4*j, WOF[2*j], SS) + "\n" + mfma32(SS + 16, OF + 4*j, WOF[2*j + 1], SS + 16) + f"\nL_ofb{sfx}{j}:\n")
        F += f"s_cmp_lg_u32 s{S_CNT}, 0\ns_cbranch_scc0 L_ook{sfx}\ns_sleep 1\ns_branch L_ofix{sfx}"
        late.append(F)
        for i in range(32): a(f"ds_write_addtid_b32 v{SS+i} offset:{(57596 if half else 0) + 256*i}")
        if not half:
            for l in G: a(l)
    a.label("L_attA")
    n0 = nst[0]
    attention(0)
    tail(0)
    a("s_branch L_fin2")
    a.label("L_attB")
    nst[0] = n0
    attention(1)
    tail(1)
    a.label("L_fin2")
    a("s_waitcnt lgkmcnt(0)\ns_barrier")
    if cfg.stamps == 6: stamp()
    cstamp()
    for p in range(4):
        for e in range(2): a(f"ds_read_b128 {vr(OF+8*p+4*e,4)}, v{((V_GA, 5), (6, 7))[p >> 1][e]} offset:{16384*p}")
    a("s_waitcnt lgkmcnt(0)" if cfg.stamps == 8 else "s_waitcnt lgkmcnt(4)")
    for i in range(0, 8, 2): a(f"v_pk_add_f32 {vr(OF+i,2)}, {vr(OF+i,2)}, {vr(OF+8+i,2)}")
    a("s_waitcnt lgkmcnt(0)")
    for i in range(0, 8, 2): a(f"v_pk_add_f32 {vr(OF+16+i,2)}, {vr(OF+16+i,2)}, {vr(OF+24+i,2)}")
    for i in range(0, 8, 2): a(f"v_pk_add_f32 {vr(OF+i,2)}, {vr(OF+i,2)}, {vr(OF+16+i,2)}")
    for i in range(0, 8, 2): a(f"v_pk_fma_f32 {vr(OF+i,2)}, {vr(OF+i,2)}, {vr(YY+i,2)}, {vr(XU+i,2)}")
    for i in range(4): a(f"v_cvt_pk_bf16_f32 v{12+i}, v{OF+2*i}, v{OF+2*i+1}")
    a(f"s_mov_b64 exec, {sr(S_EX,2)}\nv_swap_b32 v12, v14\nv_swap_b32 v13, v15\ns_mov_b64 exec, -1")
    a(f"buffer_store_dwordx4 v[12:15], v{V_FO}, {sr(R_OUT,4)}, 0 offen {cfg.oflag}")
    if cfg.stamps == 6: stamp()
    cstamp()
    if cfg.stamps:
        a("s_waitcnt vmcnt(0)")
        cstamp()
        stamp(True)
        for i in range(ncs[0]): a(f"v_writelane_b32 v{V_STAMP}, s{CSR[i]}, {40+i}")
        if cfg.stamps == 10:
            for i in range(6): a(f"v_writelane_b32 v{V_STAMP}, s{[32, 34, 92, 94, 96, 98][i]}, {40+i}")
        if cfg.stamps == 6: a(f"s_add_u32 s{S_SPIN}, s{S_SPIN}, 1\nv_writelane_b32 v{V_STAMP}, s{S_SPIN}, 63")
        a(f"s_lshl_b32 s{S_T0}, s2, 3\ns_add_u32 s{S_T0}, s{S_T0}, s{S_W}\ns_lshl_b32 s{S_T0}, s{S_T0}, 8\ns_add_u32 s{S_T0}, s{S_T0}, {WS_DBG}")
        a(f"v_lshlrev_b32 v2, 2, v{V_LANE}\nbuffer_store_dword v{V_STAMP}, v2, {sr(R_WS,4)}, s{S_T0} offen")
        if cfg.stamps == 3:
            a(f"s_add_u32 s{S_T0}, s{S_T0}, 0x80000\nbuffer_store_dword v253, v2, {sr(R_WS,4)}, s{S_T0} offen\ns_add_u32 s{S_T0}, s{S_T0}, 0x80000\nbuffer_store_dword v254, v2, {sr(R_WS,4)}, s{S_T0} offen")
    pad("end")
    a.label("L_end")
    a("s_endpgm")
    for l in late: a(l)
    a.label("L_fb")
    a(f"v_mov_b32 v8, 0xff800000\ns_mov_b32 s{S_CNT}, {WS_KV}")
    a(f"v_subrev_u32 v10, {L_KV}, v{V_VA}")
    a.label("L_fb1")
    a(f"buffer_load_dwordx4 {vr(KF,4)}, v{V_L16}, {sr(R_WS,4)}, s{S_CNT} offen sc1\ns_waitcnt vmcnt(0)")
    a(mfma32(S0, KF, QF, None)); a.nop(12)
    for l in maxtree(S0, 8, init=True): a(l)
    a(f"s_add_u32 s{S_CNT}, s{S_CNT}, 2048\ns_cmp_lt_u32 s{S_CNT}, {WS_KV + 64*2048}\ns_cbranch_scc1 L_fb1")
    setC(8, 0.0)
    for i in range(16): a(f"v_mov_b32 v{OO+i}, 0")
    a(f"s_mov_b32 s{S_CNT}, {WS_KV}")
    a.label("L_fb2")
    a(f"buffer_load_dwordx4 {vr(KF,4)}, v{V_L16}, {sr(R_WS,4)}, s{S_CNT} offen sc1")
    a(f"s_mov_b64 exec, {sr(S_VM,2)}")
    a(f"buffer_load_dwordx4 {vr(VF,4)}, v10, {sr(R_WS,4)}, s{S_CNT} offen sc1")
    a(f"buffer_load_dwordx4 {vr(VF+4,4)}, v10, {sr(R_WS,4)}, s{S_CNT} offen offset:512 sc1")
    a("s_mov_b64 exec, -1\ns_waitcnt vmcnt(0)")
    a(mfma32(S0, KF, QF, CC)); a.nop(12)
    for i in range(16): a(f"v_exp_f32 v{S0+i}, v{S0+i}")
    a.nop(2)
    a(smf(OO, VF, S0)); a(smf(OO, VF + 4, S0 + 8))
    a(f"s_add_u32 s{S_CNT}, s{S_CNT}, 2048\ns_cmp_lt_u32 s{S_CNT}, {WS_KV + 64*2048}\ns_cbranch_scc1 L_fb2")
    a.nop(12)
    a(f"v_rcp_f32 v10, v{OO+8}\ns_nop 0\nv_mov_b32 v11, v10")
    normalize()
    for i in range(4): a(f"v_min_u32 v{12+i}, -2, v{12+i}")
    a(f"s_cmp_ge_u32 s{S_W}, 4\ns_cbranch_scc1 L_ostB\ns_branch L_ostA")
    a.label("L_code_end")
    return a

HEADER = open(f"cdna_kernels/{NAME}.s.ref").read().split("; Override launch")[0]
def wrap(a):
    s = HEADER + "; @launch grid=(256,1,1) block=(512,1,1) lds=163840\n"
    s += f""".amdgcn_target "amdgcn-amd-amdhsa--gfx950"
.text
.globl {NAME}_kernel
.p2align 8
.type {NAME}_kernel,@function
{NAME}_kernel:
"""
    s += a.text()
    s += f""".section .rodata,"a"
.p2align 6
.amdhsa_kernel {NAME}_kernel
  .amdhsa_next_free_vgpr 256
  .amdhsa_next_free_sgpr 100
  .amdhsa_accum_offset 256
  .amdhsa_group_segment_fixed_size 0
  .amdhsa_kernarg_size 96
  .amdhsa_user_sgpr_count 2
  .amdhsa_user_sgpr_kernarg_segment_ptr 1
  .amdhsa_system_sgpr_workgroup_id_x 1
.end_amdhsa_kernel
"""
    return s

if __name__ == "__main__":
    cfg = Cfg()
    out = sys.argv[1]
    for kv in sys.argv[2:]:
        k, v = kv.split("=")
        setattr(cfg, k, eval(v))
    a = gen(cfg)
    errs = check(a.lines)
    for e in errs: print("HAZARD need %d have %d:\n   %s\n   %s" % (e[2], e[3], e[0], e[1]))
    open(out, "w").write(wrap(a))
    print("wrote", out, len(a.lines), "lines", len(errs), "hazards")
```

```python
import sys, math
from asmlib import Asm, vr, sr, f2u, check

NAME = "recurrent_scan__grouped_kv_mqa__glu_gated_geglu__prompt"

class Cfg:
    stamps = False
    stop = None
    force_fb = False
    shift = 101.0
    upd = (7,)
    brks = None
    pages = True
    touch = True
    far = ('L_attA', 'L_attB')
    odelay = 1
    xmap = 0
    t_out = 0
    cs_late = True
    n_cs0 = 2
    wfix = False
    stub = 's_nop 0\n'
    updm = 1
    updl = True
    cf = ('', '', '')
    nodot = False
    nodma = False
    nord = False
    sizes = [8, 8, 7] + [6]*6 + [5]
    ilen = 6
    g_init = 0
    t_pf = -1
    t_wo = (7, 8, 8, 10, 10, 11, 11, 12)
    t_wd0 = (15, 15, 16, 17)
    t_poll = 16
    bmid = 4
    lh = (1, 2, 3, 3, 4, 5, 6, 6)
    mb = (2, 3, 4, 5, 5, 6, 7, 7)
    dpos = (1, 1, 2, 2, 3, 4)
    hpos = (4, 5, 5, 6)
    hwait = {0: 0, 1: 3}
    t_h0 = (18, 18, 19, 20)
    t_chk = 18
    pbar = 1
    n_csa = 4
    lead0 = 8
    oflag = 'sc1'
    n_wo63 = 6
    nt = ''
    t_code = (7, 43)
    ofast = 0
    olate = 1
    yfirst = True
    n_gb = 1
    n_b0 = 0
    oswap = False
    t_tr = 30
    n_gp = 8
    i_q = 4
    i_qb = 1
    n_poll = 0
    e6 = 0
    pf_first = True
    bp = 0
    g_h = 29
    c_st = (0, 2)
    gpos = 0
    g_tr = 4
    mord = 0
    g_early = True
    mswap = False
    c_arr = 1
    lead = [8, 10, 12, 12, 12, 12]
    n_pre = (2, 4)
    n_fin = (7, 6)
    g_cs = (3, 4, 5, 6)
    g_csc = 9
    bprio = 3
    st_rate = 0.5
    t_flag = 9
    t_kv2 = 6
    m16 = False
    pp = 0
    pos = [(2, 6, 12), (2, 6, 10, 14), (1, 4, 7, 10, 13)]
    pa = 4
    pv = (1, 1)
    ab = ''
    pad = None

WS_KV, WS_ST, WS_FL, WS_CS, WS_O, WS_H, WS_DBG, WS_Q = 0, 0x80000, 0x28000, 0x40000, 0x100000, 0x400000, 0xC00000, 0xE00000
WS_SIZE = 0x1000000
L_X, L_W, L_R = 0, 49152, 147456
L_KV, L_WD, L_WO = 0, 65536, 98304
P_X, P_WQ, P_WK, P_WV, P_WO, P_WG, P_WU, P_WD, P_OUT, P_DBG, P_WS = 4, 6, 8, 10, 12, 16, 18, 20, 22, 24, 26
R_X, R_WKV, R_WD, R_WO, R_OUT, R_DBG, R_WS = 28, 32, 36, 40, 44, 48, 52
S_W, S_RB, S_CB, S_RT64, S_CT8 = 56, 57, 58, 59, 60
S_T16 = 61
S_VM = 62
S_XOFF = 64
S_WOFF = 65
S_HW = 66
S_ONES = 67
S_T0, S_T1, S_T2, S_T3 = 68, 69, 70, 71
S_OST = 72
S_FLG = 73
S_HST = 74
S_KQ, S_RT = 75, 76
S_WDO = 77
S_HLD = 78
S_W4K = 79
S_W2K = 80
S_SPIN = 81
S_WOO = 82
S_OLD = 83
S_EX = 84
S_TS = 86
S_CNT = 88
S_WSTEP = 89
S_TS2 = 90
S_RET = 0
R_W, R_CW = 92, 96
S_H4K = 3
S_HSB = 14
S_M0W = 15
SPIN_MAX = 1 << 18

V_LANE = 1
V_STAMP = 255
V_L16, V_KA, V_WDD, V_VA, V_DA, V_PO, V_FO, V_XR, QF = 208, 209, 210, 211, 212, 214, 215, 216, 220
V_GA = 0

def mfma32(d, a, b, c):
    cs = "0" if c is None else vr(c, 16)
    return f"v_mfma_f32_32x32x16_bf16 {vr(d,16)}, {vr(a,4)}, {vr(b,4)}, {cs}"
V_IDX = 48
def smf(d, a, b):
    return f"v_smfmac_f32_32x32x32_bf16 {vr(d,16)}, {vr(a,4)}, {vr(b,8)}, v{V_IDX}"
def mfma16(d, a, b, c):
    cs = "0" if c is None else vr(c, 4)
    return f"v_mfma_f32_16x16x32_bf16 {vr(d,4)}, {vr(a,4)}, {vr(b,4)}, {cs}"

def gen(cfg):
    a = Asm()
    nst = [0]
    def stamp(final=False, name=None):
        if not cfg.stamps: return
        i = nst[0]; nst[0] += 1
        if cfg.stamps in (8, 9, 10, 11) and i and not final: return
        if cfg.stamps == 7:
            if isinstance(name, int): i = name
            elif final: i = 9
            elif name == "b0": i = 7
            elif name == "g1": i = 8
            elif i: return
        elif isinstance(name, int):
            nst[0] -= 1; return
        if cfg.stamps == 5:
            marks = {"b0": 2, "g1": 3, "att0": 4, "att1": 5}
            if final: i = 1
            elif name in marks: i = marks[name]
            elif i: return
        a(f"s_memrealtime {sr(S_TS,2)}\ns_memtime {sr(S_TS2,2)}\ns_waitcnt lgkmcnt(0)\nv_writelane_b32 v{V_STAMP}, s{S_TS}, {i}\nv_writelane_b32 v{V_STAMP}, s{S_TS2}, {32+i}")
    nbrk = [0]
    def brk(kind):
        i = nbrk[0]; nbrk[0] += 1
        if cfg.brks is None: a.label(f"L_brk_{kind}_{i}")
        elif i in cfg.brks:
            a(f"s_branch L_pg{i}\n.p2align 12\nL_stub{i}:\n" + cfg.stub + f"s_setpc_b64 {sr(S_RET,2)}\nL_pg{i}:")
    FAR = {"L_qt": "e", "L_joinA": "e", "L_attA": "a", "L_attB": "a", "L_fin2": "a"}
    def far(label, fall=False):
        if label in cfg.far:
            if fall: a(f"s_branch {label}")
            a(f".p2align 6\nL_stub{label}:\ns_nop 0\ns_setpc_b64 {sr(S_RET,2)}")
        a.label(label)
    def touch(kinds, first, n, maxn):
        ids = [] if cfg.brks is None else [i for i, k in cfg.brks.items() if k in kinds] + [l for l, k in FAR.items() if k in kinds and l in cfg.far]
        assert len(ids) <= maxn
        for j in range(maxn):
            if j < len(ids) and cfg.touch: a(f"s_cmp_eq_u32 s{S_HW}, {first + j % n}\ns_cbranch_scc0 L_nt{ids[j]}\ns_call_b64 {sr(S_RET,2)}, L_stub{ids[j]}\nL_nt{ids[j]}:")
            elif cfg.brks is None: a("s_nop 0\ns_nop 0\ns_nop 0")
    ncs = [0]
    CSR = [4, 6, 8, 10, 12] + list(range(16, 28, 2)) + [32, 34, 92, 94, 96, 98, 48]
    def cstamp(mode=8):
        if cfg.stamps != mode: return
        a(f"s_memtime {sr(CSR[ncs[0]], 2)}"); ncs[0] += 1
    def pad(pt):
        if not cfg.pad or cfg.pad[0] != pt: return
        if len(cfg.pad) > 2:
            inv = cfg.pad[2] == 2
            a(f"s_and_b32 s{S_T0}, s{S_TS}, 0x7fffffff")
            if inv: a(f"s_not_b32 s{S_T0}, s{S_T0}")
            a(f"v_mov_b32 v2, s{S_T0}\ns_mov_b64 exec, 1\nbuffer_atomic_umax v2, off, {sr(R_DBG,4)}, 0 offset:4 sc1\ns_mov_b64 exec, -1")
            a(f"L_pad0:\ns_memrealtime {sr(S_TS2,2)}\ns_waitcnt lgkmcnt(0)\ns_sub_u32 s{S_TS2}, s{S_TS2}, s{S_TS}\ns_cmp_lt_u32 s{S_TS2}, {int(cfg.pad[1]*100) - 1500}\ns_cbranch_scc1 L_pad0")
            a(f"buffer_load_dword v2, off, {sr(R_DBG,4)}, 0 offset:4 sc1\ns_waitcnt vmcnt(0)\nv_readfirstlane_b32 s{S_T0}, v2\ns_nop 3")
            if inv: a(f"s_not_b32 s{S_T0}, s{S_T0}")
            a(f"s_and_b32 s{S_TS}, s{S_TS}, 0x80000000\ns_or_b32 s{S_TS}, s{S_TS}, s{S_T0}")
        a(f"L_pad{len(a.lines)}:\ns_memrealtime {sr(S_TS2,2)}\ns_waitcnt lgkmcnt(0)\ns_sub_u32 s{S_TS2}, s{S_TS2}, s{S_TS}\ns_cmp_lt_u32 s{S_TS2}, {int(cfg.pad[1]*100)}\ns_cbranch_scc1 L_pad{len(a.lines)}")
    def srd(r, p, size):
        a(f"s_mov_b32 s{r}, s{p}\ns_and_b32 s{r+1}, s{p+1}, 0xffff\ns_mov_b32 s{r+2}, {hex(size)}\ns_mov_b32 s{r+3}, 0x20000")

    a(f"s_cmp_ge_u32 s2, 256\ns_cbranch_scc1 L_end")
    if cfg.pad: a(f"s_memrealtime {sr(S_TS,2)}")
    a(f"s_load_dwordx16 s[4:19], s[0:1], 0\ns_load_dwordx8 s[20:27], s[0:1], 64")
    if cfg.stamps:
        a(f"v_mov_b32 v{V_STAMP}, 0")
    a(f"v_lshrrev_b32 v2, 6, v0\nv_and_b32 v{V_LANE}, 63, v0")
    a(f"s_getpc_b64 {sr(S_EX,2)}")
    a.label("L_pc")
    a(f"""
    v_readfirstlane_b32 s{S_W}, v2
    s_and_b32 s{S_T0}, s2, 0xf8
    v_add_u32 v2, s{S_T0}, v2
    v_lshl_add_u32 v2, v2, 1, v{V_LANE}
    v_lshlrev_b32 v252, 7, v2
    v_min_u32 v252, L_code_end-L_pc-4, v252
    v_mov_b32 v253, 0
    v_lshl_add_u64 v[252:253], v[252:253], 0, {sr(S_EX,2)}
    s_mov_b64 exec, 3
    global_load_dword v9, v[252:253], off
    s_mov_b64 exec, -1
    """)
    a(f"""
    s_and_b32 s{S_T0}, s2, 7
    s_lshr_b32 s{S_T1}, s2, 3
    s_and_b32 s{S_CT8}, s{S_T1}, 7
    """)
    if cfg.xmap == 1:
        a(f"""
        s_and_b32 s{S_RB}, s{S_T1}, 15
        s_lshr_b32 s{S_T2}, s2, 7
        s_lshl_b32 s{S_CB}, s{S_T0}, 1
        s_add_u32 s{S_CB}, s{S_CB}, s{S_T2}
        s_lshr_b32 s{S_T1}, s{S_T1}, 3
        """)
    else:
        a(f"""
        s_and_b32 s{S_T2}, s{S_T0}, 1
        s_lshl_b32 s{S_T2}, s{S_T2}, 3
        s_add_u32 s{S_RB}, s{S_T2}, s{S_CT8}
        s_lshr_b32 s{S_T1}, s{S_T1}, 3
        s_lshr_b32 s{S_T2}, s{S_T0}, 1
        s_lshl_b32 s{S_T2}, s{S_T2}, 2
        s_add_u32 s{S_CB}, s{S_T2}, s{S_T1}
        """)
    a(f"""
    s_lshl_b32 s{S_T2}, s{S_T0}, 2
    s_add_u32 s{S_RT64}, s{S_T2}, s{S_T1}
    s_and_b32 s{S_HW}, s{S_W}, 3
    s_lshl_b32 s{S_H4K}, s{S_HW}, 12
    v_lshlrev_b32 v{V_L16}, 4, v{V_LANE}
    s_mov_b32 s{R_X+2}, 0x200000
    s_mov_b32 s{R_X+3}, 0x20000
    s_cmp_ge_u32 s{S_W}, 4
    s_cbranch_scc1 L_helper
    """)

    sizes = cfg.sizes
    assert sum(sizes) == 64
    starts = [sum(sizes[:i]) for i in range(len(sizes))]
    S0, S1, PP, OO, CC, KF, VF = 16, 32, 48, 64, 80, 100, 108
    YY, HF, DF = 128, 160, 192
    HO = 160
    V_OA = 62
    WOF = [50, 54, 58, 96, 124] + list(range(224, 252, 4)) + [176, 180, 184, 188]
    wo_rd = [f"ds_read_b64_tr_b16 {vr(WOF[2*j+ct] + 2*t,2)}, v{V_OA+ct} offset:{j*2048 + t*512}" for j in range(8) for ct in range(2) for t in range(2)]
    def kv_off(t):
        c = max(i for i in range(len(starts)) if starts[i] <= t)
        return ((c + 1) % 3) * 16384 + (t - starts[c]) * 2048
    qload = f"buffer_load_dwordx4 {vr(QF,4)}, v{V_L16}, {sr(R_WS,4)}, s{S_T2} offen sc1"

    XS = [2, 0, 1, 2, 0, 1, 2, 0]
    L_PX = L_X + XS[2]*16384
    def setup_ids():
        a(f"""
        s_lshr_b32 s{S_KQ}, s{S_W}, 1
        s_and_b32 s{S_RT}, s{S_W}, 1
        s_lshl_b32 s{S_T2}, s{S_RT64}, 1
        s_add_u32 s{S_T2}, s{S_T2}, s{S_RT}
        s_lshl_b32 s{S_T0}, s{S_T2}, 3
        s_add_u32 s{S_T0}, s{S_T0}, s{S_CT8}
        s_lshl_b32 s{S_T0}, s{S_T0}, 2
        s_add_u32 s{S_T0}, s{S_T0}, s{S_KQ}
        s_lshl_b32 s{S_T0}, s{S_T0}, 10
        s_add_u32 s{S_OST}, s{S_T0}, {WS_O}
        s_lshl_b32 s{S_T0}, s2, 7
        s_lshl_b32 s{S_T1}, s{S_W}, 2
        s_add_u32 s{S_T0}, s{S_T0}, s{S_T1}
        s_add_u32 s{S_FLG}, s{S_T0}, {WS_FL}
        """)
    def common_setup():
        srd(R_WD, P_WD, 1792 * 1024)
        srd(R_WO, P_WO, 512 * 1024)
        srd(R_OUT, P_OUT, 0x200000)
        a(f"""
        s_lshl_b32 s{S_W4K}, s{S_W}, 12
        s_lshl_b32 s{S_W2K}, s{S_W}, 11
        s_mov_b32 s{S_VM}, 0xffff
        s_mov_b32 s{S_VM+1}, 0xffff
        s_lshl_b32 s{S_T2}, s{S_RT64}, 1
        s_add_u32 s{S_T2}, s{S_T2}, s{S_RT}
        s_mul_i32 s{S_T0}, s{S_KQ}, {448*1024}
        s_lshl_b32 s{S_T1}, s{S_RT}, 15
        s_add_u32 s{S_T0}, s{S_T0}, s{S_T1}
        s_lshl_b32 s{S_T1}, s{S_CT8}, 7
        s_add_u32 s{S_WDO}, s{S_T0}, s{S_T1}
        s_lshl_b32 s{S_T0}, s{S_W}, 15
        s_add_u32 s{S_WOO}, s{S_T0}, s{S_T1}
        s_and_b32 s{S_T0}, s{S_CT8}, {1 if cfg.oswap else 0}
        s_lshl_b32 s{S_T16}, s{S_T0}, 18
        s_add_u32 s{S_WOO}, s{S_WOO}, s{S_T16}
        s_mul_i32 s{S_T0}, s{S_T2}, 112
        s_mul_i32 s{S_T3}, s{S_KQ}, 28
        s_add_u32 s{S_T0}, s{S_T0}, s{S_T3}
        s_lshl_b32 s{S_T0}, s{S_T0}, 10
        s_add_u32 s{S_HLD}, s{S_T0}, {WS_H}
        s_lshl_b32 s{S_T0}, s{S_T2}, 15
        s_lshl_b32 s{S_T3}, s{S_KQ}, 13
        s_add_u32 s{S_T3}, s{S_T0}, s{S_T3}
        s_lshr_b32 s{S_T0}, s{S_T16}, 4
        s_xor_b32 s{S_OLD}, s{S_T3}, s{S_T0}
        s_add_u32 s{S_OLD}, s{S_OLD}, {WS_O}
        s_add_u32 s{S_T0}, s{S_T3}, s{S_T1}
        v_lshrrev_b32 v3, 5, v{V_LANE}
        v_bfe_u32 v5, v{V_LANE}, 3, 1
        v_lshl_add_u32 v2, v3, 1, v5
        v_bfe_u32 v7, v{V_LANE}, 4, 1
        v_lshl_add_u32 v4, v7, 2, v2
        v_and_b32 v6, 7, v{V_LANE}
        v_lshlrev_b32 v8, 4, v6
        v_lshl_add_u32 v4, v4, 10, v8
        v_add_u32 v{V_FO}, s{S_T0}, v4
        v_lshlrev_b32 v2, 8, v2
        v_lshl_add_u32 v2, v7, 7, v2
        v_lshl_add_u32 v2, v5, 4, v2
        v_and_b32 v4, 3, v6
        v_lshl_add_u32 v2, v4, 5, v2
        v_lshrrev_b32 v4, 2, v6
        v_lshl_add_u32 v2, v4, 12, v2
        s_lshl_b32 s{S_T0}, s{S_RT}, 13
        s_lshl_b32 s{S_T1}, s{S_KQ}, 10
        s_add_u32 s{S_T0}, s{S_T0}, s{S_T1}
        v_add_u32 v{V_GA}, s{S_T0}, v2
        v_add_u32 v{V_KA}, {L_KV}, v{V_L16}
        v_and_b32 v2, 15, v{V_LANE}
        v_lshl_add_u32 v2, v3, 4, v2
        v_lshlrev_b32 v2, 4, v2
        v_add_u32 v{V_VA}, {L_KV + 1024}, v2
        v_lshrrev_b32 v5, 3, v{V_LANE}
        v_and_b32 v6, 7, v{V_LANE}
        v_bfe_u32 v7, v{V_LANE}, 4, 1
        v_lshlrev_b32 v8, 2, v7
        v_xor_b32 v6, v6, v8
        v_lshlrev_b32 v6, 4, v6
        v_lshl_add_u32 v{V_WDD}, v5, 10, v6
        v_and_b32 v2, 1, v{V_LANE}
        v_bfe_u32 v4, v{V_LANE}, 1, 1
        v_lshl_add_u32 v2, v2, 1, v4
        v_bfe_u32 v5, v{V_LANE}, 2, 2
        v_lshl_add_u32 v4, v3, 3, v5
        v_lshlrev_b32 v4, 7, v4
        v_and_b32 v6, 2, v5
        v_xor_b32 v6, v6, v7
        v_lshl_add_u32 v6, v6, 5, v4
        v_and_b32 v8, 3, v{V_LANE}
        v_lshl_add_u32 v6, v8, 3, v6
        v_lshl_add_u32 v4, v2, 3, v4
        s_lshl_b32 s{S_T0}, s{S_KQ}, 13
        s_add_u32 s{S_T0}, s{S_T0}, {L_WD}
        v_add_u32 v{V_DA}, s{S_T0}, v6
        v_xor_b32 v{V_DA+1}, 64, v{V_DA}
        """)
        a(f"""
        s_lshr_b32 s{S_T0}, s{S_RT64}, 1
        s_lshl_b32 s{S_T0}, s{S_T0}, 3
        s_lshl_b32 s{S_T1}, s{S_KQ}, 1
        s_add_u32 s{S_T0}, s{S_T0}, s{S_T1}
        s_lshl_b32 s{S_T0}, s{S_T0}, 7
        v_and_b32 v2, 3, v{V_LANE}
        v_lshlrev_b32 v6, 2, v2
        v_and_b32 v8, 1, v5
        v_lshl_add_u32 v6, v8, 14, v6
        v_lshrrev_b32 v8, 1, v5
        v_lshl_add_u32 v6, v8, 7, v6
        """ if cfg.xmap == 1 else f"""
        s_lshr_b32 s{S_T0}, s{S_RT64}, 4
        s_lshl_b32 s{S_T1}, s{S_KQ}, 1
        s_add_u32 s{S_T0}, s{S_T0}, s{S_T1}
        s_bfe_u32 s{S_T2}, s{S_RT64}, 0x30001
        s_lshl_b32 s{S_T2}, s{S_T2}, 3
        s_add_u32 s{S_T0}, s{S_T0}, s{S_T2}
        s_lshl_b32 s{S_T0}, s{S_T0}, 7
        v_and_b32 v2, 3, v{V_LANE}
        v_lshlrev_b32 v6, 2, v2
        v_lshl_add_u32 v6, v5, 13, v6
        """)
        a(f"""
        v_add_u32 v6, s{S_T0}, v6
        s_lshr_b32 s{S_T0}, s{S_T16}, 16
        s_xor_b32 s{S_T1}, s{S_T1}, s{S_T0}
        s_and_b32 s{S_T0}, s2, 0xc7
        s_lshl_b32 s{S_T1}, s{S_T1}, 3
        s_add_u32 s{S_T0}, s{S_T0}, s{S_T1}
        s_lshl_b32 s{S_T0}, s{S_T0}, 7
        s_lshl_b32 s{S_T1}, s{S_RT}, 2
        s_add_u32 s{S_T0}, s{S_T0}, s{S_T1}
        v_and_b32 v8, 1, v5
        v_lshlrev_b32 v8, 10, v8
        v_lshl_add_u32 v8, v2, 3, v8
        v_cmp_gt_u32 vcc, 16, v{V_LANE}
        v_add_u32 v8, s{S_T0}, v8
        s_nop 0
        v_cndmask_b32 v{V_PO}, v8, v6, vcc
        """)

    def img_params(simg, sstride, soff):
        a(f"""
        s_lshr_b32 s{S_T0}, s{S_CB}, 2
        s_and_b32 s{S_T1}, s{S_CB}, 3
        s_mul_i32 s{soff}, s{S_T0}, 896
        s_lshl_b32 s{S_T2}, s{S_T1}, 8
        s_add_u32 s{soff}, s{soff}, s{S_T2}
        s_lshr_b32 s{S_T2}, s{simg}, 1
        s_lshl_b32 s{S_T1}, s{S_T1}, 1
        s_add_u32 s{S_T1}, s{S_T1}, s{S_T2}
        s_lshl_b32 s{S_T2}, s{S_T2}, 7
        s_add_u32 s{soff}, s{soff}, s{S_T2}
        s_lshl_b32 s{S_T0}, s{S_T0}, 1
        s_and_b32 s{S_T2}, s{simg}, 1
        s_add_u32 s{S_T0}, s{S_T0}, s{S_T2}
        s_lshl_b32 s{S_T0}, s{S_T0}, 7
        s_movk_i32 s{sstride}, 3584
        s_cmp_eq_u32 s{S_T1}, 7
        s_cselect_b32 s{soff}, s{S_T0}, s{soff}
        s_cselect_b32 s{sstride}, 1024, s{sstride}
        """)
    def img_srd(r, sstride):
        a(f"""
        s_cmp_eq_u32 s{S_T2}, 0
        s_cselect_b32 s{r}, s{P_WG}, s{P_WU}
        s_cselect_b32 s{r+1}, s{P_WG+1}, s{P_WU+1}
        s_cmp_eq_u32 s{S_T1}, 7
        s_cselect_b32 s{r}, s{P_WQ}, s{r}
        s_cselect_b32 s{r+1}, s{P_WQ+1}, s{r+1}
        s_and_b32 s{r+1}, s{r+1}, 0xffff
        s_lshl_b32 s{r+2}, s{sstride}, 9
        s_mov_b32 s{r+3}, 0x20000
        """)

    ACC, XF, WF, V_XA, V_WR = 16, 144, 176, 248, 250
    RWP, RWQ, RA = 216, 232, 2
    L_RA = L_W + 8192
    def acc(ti, rt): return ACC + 64*ti + 16*rt
    KG = 2.0 * math.sqrt(2.0 / math.pi) * math.log2(math.e)
    CL, CSUM = 224, 240
    L_CNT = L_W + 8192
    a(f"""
    v_and_b32 v5, 15, v{V_LANE}
    v_lshrrev_b32 v6, 4, v{V_LANE}
    v_lshrrev_b32 v7, 3, v{V_LANE}
    v_and_b32 v4, 7, v{V_LANE}
    v_xor_b32 v2, v6, v4
    v_lshlrev_b32 v2, 4, v2
    v_lshl_add_u32 v132, v7, 10, v2
    v_xor_b32 v133, 64, v132
    v_add_u32 v133, {8192-1024}, v133
    s_lshl_b32 s{S_T16}, s{S_RB}, 3
    s_lshr_b32 s{S_T2}, s{S_CB}, 1
    s_add_u32 s{S_T16}, s{S_T16}, s{S_T2}
    s_lshl_b32 s{S_T0}, s{S_T16}, 14
    s_lshl_b32 s{S_T1}, s{S_HW}, 8
    s_add_u32 s{S_XOFF}, s{S_T0}, s{S_T1}
    s_mov_b32 s{R_WKV+2}, 0x4000
    s_mov_b32 s{R_WKV+3}, 0x20000
    s_and_b32 s{S_CNT}, s{S_RB}, 3
    """)
    img_params(S_CNT, S_WSTEP, S_WOFF)
    a(f"""
    s_and_b32 s{S_T0}, s{S_RB}, 12
    s_add_u32 s{S_T0}, s{S_T0}, s{S_HW}
    s_lshl_b32 s{S_T0}, s{S_T0}, 3
    s_mul_i32 s{S_T0}, s{S_T0}, s{S_WSTEP}
    s_add_u32 s{S_WOFF}, s{S_T0}, s{S_WOFF}
    v_mul_u32_u24 v8, s{S_WSTEP}, v7
    v_lshl_add_u32 v134, v4, 4, v8
    s_add_u32 m0, s{S_H4K}, {L_PX}
    s_and_b32 s{S_T3}, s{S_CB}, 1
    s_waitcnt lgkmcnt(0)
    """)
    stamp()
    a(f"""
    s_mov_b32 s{R_X}, s{P_X}
    s_and_b32 s{R_X+1}, s{P_X+1}, 0xffff
    buffer_load_dwordx4 v132, {sr(R_X,4)}, s{S_XOFF} offen {'nt ' if 'p' in cfg.nt else ''}lds
    buffer_load_dwordx4 v133, {sr(R_X,4)}, s{S_XOFF} offen offset:1024 {'nt ' if 'p' in cfg.nt else ''}lds
    s_add_u32 m0, s{S_H4K}, {L_PX + 2048}
    s_add_u32 s{S_XOFF}, s{S_XOFF}, 128
    buffer_load_dwordx4 v132, {sr(R_X,4)}, s{S_XOFF} offen {'nt ' if 'p' in cfg.nt else ''}lds
    buffer_load_dwordx4 v133, {sr(R_X,4)}, s{S_XOFF} offen offset:1024 {'nt ' if 'p' in cfg.nt else ''}lds
    s_cmp_eq_u32 s{S_T3}, 0
    s_cselect_b32 s{R_WKV}, s{P_WK}, s{P_WV}
    s_cselect_b32 s{R_WKV+1}, s{P_WK+1}, s{P_WV+1}
    s_add_u32 m0, s{S_H4K}, {L_R}
    s_and_b32 s{R_WKV+1}, s{R_WKV+1}, 0xffff
    """)
    for e in range(4): a(f"buffer_load_dwordx4 v{V_L16}, {sr(R_WKV,4)}, s{S_H4K} offen offset:{1024*e} lds")
    img_srd(R_CW, S_WSTEP)
    a(f"s_lshl_b32 s{S_WSTEP}, s{S_WSTEP}, 7")
    csld = [f"buffer_load_dwordx4 {vr(CL+4*e,4)}, v134, {sr(R_CW,4)}, s{S_WOFF} offen{' nt' if 'c' in cfg.nt else ''}\ns_add_u32 s{S_WOFF}, s{S_WOFF}, s{S_WSTEP}" for e in range(4)]
    for l in csld[:min(cfg.n_csa, cfg.n_cs0)]: a(l)
    a(f"""
    v_mov_b32 v10, 0
    v_mov_b32 v16, {L_CNT}
    ds_write_b32 v16, v10
    s_waitcnt lgkmcnt(0)
    """)
    if cfg.n_cs0 >= cfg.n_csa:
        stamp(name=1)
        a("s_barrier")
        stamp(name=2)
    a(f"""
    s_mov_b32 s{S_ONES}, 0x3f803f80
    s_add_u32 s{S_T3}, s{S_H4K}, {L_R}
    v_lshlrev_b32 v2, 3, v5
    v_lshl_add_u32 v2, v6, 8, v2
    v_add_u32 v130, s{S_T3}, v2
    v_lshrrev_b32 v3, 1, v5
    v_xor_b32 v3, v3, v6
    v_lshlrev_b32 v3, 4, v3
    v_lshl_add_u32 v3, v5, 7, v3
    v_mov_b32 v{V_XA}, v3
    v_xor_b32 v{V_XA+1}, 64, v3
    v_add_u32 v128, s{S_H4K}, v3
    v_xor_b32 v129, 64, v128
    v_add_u32 v131, s{S_T3}, v{V_L16}
    v_mov_b32 v11, 1
    v_mov_b32 v223, 1
    v_lshrrev_b32 v3, 5, v{V_LANE}
    v_and_b32 v7, 1, v6
    v_bfe_u32 v8, v{V_LANE}, 2, 2
    v_lshl_add_u32 v4, v6, 3, v8
    v_lshlrev_b32 v4, 7, v4
    v_and_b32 v2, 3, v{V_LANE}
    v_lshl_add_u32 v4, v2, 3, v4
    v_lshrrev_b32 v8, 1, v8
    v_lshl_add_u32 v8, v7, 1, v8
    v_xor_b32 v8, s{S_HW}, v8
    v_lshl_add_u32 v8, v8, 5, v4
    v_add_u32 v{V_WR}, {L_W}, v8
    v_add_u32 v{V_WR+1}, {L_W + 49152}, v8
    s_lshr_b32 s{S_EX}, s{S_T16}, 1
    s_lshl_b32 s{S_EX}, s{S_EX}, 11
    s_and_b32 s{S_T3}, s{S_T16}, 1
    s_and_b32 s{S_T2}, s{S_CB}, 1
    s_cmp_eq_u32 s{S_T2}, 0
    s_cbranch_scc0 L_pubV
    s_lshl_b32 s{S_T3}, s{S_T3}, 8
    s_add_u32 s{S_EX}, s{S_EX}, s{S_T3}
    v_lshl_add_u32 v2, v3, 5, v5
    s_lshl_b32 s{S_EX+1}, s{S_T16}, 10
    s_add_u32 s{S_EX+1}, s{S_EX+1}, {WS_ST}
    s_branch L_pub
    """)
    a.label("L_pubV")
    a(f"""
    s_lshl_b32 s{S_T3}, s{S_T3}, 9
    s_add_u32 s{S_EX}, s{S_EX}, s{S_T3}
    s_add_u32 s{S_EX}, s{S_EX}, 1024
    v_and_b32 v2, 3, v5
    v_bfe_u32 v4, v5, 2, 1
    v_lshl_add_u32 v2, v4, 3, v2
    v_bfe_u32 v4, v5, 3, 1
    v_lshl_add_u32 v2, v4, 2, v2
    v_lshl_add_u32 v2, v3, 4, v2
    s_mov_b32 s{S_EX+1}, {WS_SIZE}
    """)
    a.label("L_pub")
    a("v_lshlrev_b32 v2, 4, v2\nv_lshl_add_u32 v220, v7, 3, v2")
    def capture(fn):
        n = len(a.lines); fn(); L = a.lines[n:]; del a.lines[n:]; return L
    def part1():
        srd(R_WS, P_WS, WS_SIZE)
        a(f"""
        v_and_b32 v6, 7, v{V_LANE}
        v_lshrrev_b32 v4, 4, v{V_LANE}
        v_lshl_add_u32 v6, v6, 2, v4
        v_bfe_u32 v4, v{V_LANE}, 3, 1
        v_lshl_add_u32 v6, v6, 1, v4
        v_lshlrev_b32 v222, 2, v6
        s_lshl_b32 s{S_T0}, s{S_CB}, 14
        s_lshl_b32 s{S_T1}, s{S_RB}, 10
        s_add_u32 s{S_T0}, s{S_T0}, s{S_T1}
        s_lshl_b32 s{S_T1}, s{S_HW}, 8
        s_add_u32 s{S_T0}, s{S_T0}, s{S_T1}
        s_add_u32 s{S_CNT}, s{S_T0}, {WS_CS}
        """)
    def part2():
        srd(R_DBG, P_DBG, 256)
        setup_ids()
        for i in range(4): a(f"v_mov_b32 v{12+i}, -1")
        common_setup()
        a(f"""
        v_and_b32 v2, 0xff, v{V_L16}
        v_add_u32 v11, {L_R + 256}, v2
        v_xor_b32 v6, v3, v7
        v_lshl_add_u32 v2, v6, 9, v2
        v_add_u32 v10, {L_R}, v2
        s_lshl_b32 s{S_T0}, s{S_HW}, 11
        v_add_u32 v254, s{S_T0}, v{V_L16}
        s_lshr_b32 s{S_T0}, s{S_CB}, 2
        s_and_b32 s{S_T1}, s{S_CB}, 3
        s_mul_i32 s{S_T2}, s{S_RB}, 448
        s_mul_i32 s{S_T3}, s{S_T0}, 28
        s_add_u32 s{S_T2}, s{S_T2}, s{S_T3}
        s_lshl_b32 s{S_T3}, s{S_T1}, 3
        s_add_u32 s{S_T2}, s{S_T2}, s{S_T3}
        s_add_u32 s{S_T2}, s{S_T2}, s{S_HW}
        s_lshl_b32 s{S_T2}, s{S_T2}, 10
        s_add_u32 s{S_HST}, s{S_T2}, {WS_H}
        s_add_u32 s{S_HSB}, s{S_HST}, 4096
        s_lshl_b32 s{S_T2}, s{S_RB}, 7
        s_lshl_b32 s{S_T3}, s{S_T0}, 3
        s_add_u32 s{S_T2}, s{S_T2}, s{S_T3}
        s_add_u32 s{S_T2}, s{S_T2}, s{S_HW}
        s_lshl_b32 s{S_T2}, s{S_T2}, 10
        s_add_u32 s{S_T2}, s{S_T2}, {WS_Q}
        """)
    defer1 = capture(part1)
    defer2 = capture(part2) + [f"s_cmp_eq_u32 s{S_T1}, 3\ns_cselect_b32 s{S_HSB}, s{S_T2}, s{S_HSB}"]
    PX, PW, PACC, PCS, PRS, PSQ, PONE, PSQP, PF1, RD = 24, 40, 56, 60, 64, 68, 72, 76, 77, 80
    for i in range(4): a(f"v_mov_b32 v{PONE+i}, s{S_ONES}")
    init = []
    if cfg.g_init < 3:
        for l in defer1: a(l)
        defer1.clear()
    if cfg.n_cs0 < cfg.n_csa:
        for l in csld[cfg.n_cs0:cfg.n_csa]: a(l)
        stamp(name=1)
        a("s_barrier")
        stamp(name=2)
    stamp(name=3)
    a(f"v_mov_b32 v{PF1}, 1.0\nv_mov_b32 v{PSQP}, 0\ns_waitcnt vmcnt({cfg.n_csa})")
    stamp(); stamp(name=4)
    for s in range(4): a(f"ds_read_b128 {vr(PX+4*s,4)}, v{128 + (s & 1)} offset:{L_PX + 2048*(s >> 1)}")
    for s in range(4):
        for t in range(2): a(f"ds_read_b64_tr_b16 {vr(PW+4*s+2*t,2)}, v130 offset:{1024*s+128*t}")
    a("s_waitcnt lgkmcnt(8)")
    for i in range(16): a(f"v_dot2c_f32_bf16 v{PSQP}, v{PX+i}, v{PX+i}")
    a(f"s_and_b32 s{S_T0}, s{S_CB}, 1\ns_cmp_eq_u32 s{S_T0}, 0\ns_waitcnt lgkmcnt(0)\ns_cbranch_scc0 L_preV")
    for form in range(2):
        if form == 1: a.label("L_preV")
        def mm(d, w, x, first):
            return mfma16(d, w, x, None if first else d) if form == 0 else mfma16(d, x, w, None if first else d)
        a(f"v_mfma_f32_16x16x4_f32 {vr(PSQ,4)}, v{PF1}, v{PSQP}, 0" if form == 0 else f"v_mfma_f32_16x16x4_f32 {vr(PSQ,4)}, v{PSQP}, v{PF1}, 0")
        for s in range(4):
            a(mm(PRS, PONE, PX + 4*s, s == 0)); a(mm(PCS, PW + 4*s, PONE, s == 0)); a(mm(PACC, PW + 4*s, PX + 4*s, s == 0))
        if form == 0: a("s_branch L_pre_w")
    a.label("L_pre_w")
    a(f"s_cmp_eq_u32 s{S_HW}, 0\ns_cbranch_scc1 L_fin\ns_nop 3")
    for q, r in ((3, PSQ), (2, PRS), (1, PCS), (0, PACC)): a(f"ds_write_b128 v131, {vr(r,4)} offset:{1024*q}")
    a(f"s_waitcnt lgkmcnt(0)\ns_mov_b64 exec, 1\nds_add_u32 v16, v11\ns_mov_b64 exec, -1\ns_branch L_nofin")
    a.label("L_fin")
    a(f"ds_read_b32 v19, v16\ns_waitcnt lgkmcnt(0)\nv_cmp_gt_u32 vcc, 3, v19\ns_nop 0\ns_cbranch_vccnz L_fin")
    for w in (1, 2, 3):
        for q in range(4): a(f"ds_read_b128 {vr(RD + 16*(w-1) + 4*q,4)}, v131 offset:{4096*w + 1024*q}")
    for w in (1, 2, 3):
        a(f"s_waitcnt lgkmcnt({12 - 4*w})")
        for i in range(0, 16, 2): a(f"v_pk_add_f32 {vr(PACC+i,2)}, {vr(PACC+i,2)}, {vr(RD+16*(w-1)+i,2)}")
    for i in range(4):
        a(f"v_mul_f32 v{PRS+i}, {hex(f2u(-1.0/512))}, v{PRS+i}")
        a(f"v_mul_f32 v{PSQ+i}, {hex(f2u(1.0/512))}, v{PSQ+i}")
        a(f"v_fma_f32 v{PSQ+i}, -v{PRS+i}, v{PRS+i}, v{PSQ+i}")
        a(f"v_max_f32 v{PSQ+i}, 0, v{PSQ+i}")
        a(f"v_add_f32 v{PSQ+i}, {hex(f2u(1e-5))}, v{PSQ+i}")
        a(f"v_rsq_f32 v{PX+i}, v{PSQ+i}")
        a(f"v_fmac_f32 v{PACC+i}, v{PRS+i}, v{PCS+i}")
    a(f"s_and_b32 s{S_T0}, s{S_CB}, 1\ns_lshl_b32 s{S_T0}, s{S_T0}, 4")
    for i in range(4): a(f"v_mul_f32 v{PACC+i}, v{PACC+i}, v{PX+i}")
    for i in range(4): a(f"v_ldexp_f32 v{PACC+i}, v{PACC+i}, s{S_T0}")
    a(f"""
    v_cvt_pk_bf16_f32 v216, v{PACC}, v{PACC+1}
    v_cvt_pk_bf16_f32 v217, v{PACC+2}, v{PACC+3}
    v_cvt_pk_bf16_f32 v12, v{PRS}, v{PRS}
    v_and_b32 v2, 0xffff0000, v12
    v_sub_f32 v2, v{PRS}, v2
    v_cvt_pk_bf16_f32 v12, v{PRS}, v2
    v_mov_b32 v14, v{PSQ}
    s_mov_b32 exec_lo, 0
    v_mov_b32 v12, 0
    s_and_b32 s{S_T0}, s{S_T16}, 1
    s_sub_u32 exec_lo, s{S_T0}, 1
    s_mov_b32 exec_hi, exec_lo
    v_swap_b32 v12, v14
    s_mov_b32 exec_lo, 0xffff0000
    s_mov_b32 exec_hi, 0
    v_mul_f32 v12, {hex(f2u(-KG))}, v{PX}
    v_mul_f32 v2, v{PX}, v{PX}
    v_mul_f32 v14, {hex(f2u(0.044715))}, v12
    v_mul_f32 v14, v14, v2
    s_mov_b64 exec, -1
    v_mov_b32 v13, v12
    v_mov_b32 v15, v14
    """)
    a.label("L_nofin")
    stamp(name=5)
    init += [f"s_cmp_lg_u32 s{S_HW}, 0\ns_cbranch_scc1 L_nopub\n"
             f"buffer_store_dwordx2 v[216:217], v220, {sr(R_WS,4)}, s{S_EX} offen sc1\n"
             f"buffer_store_dwordx4 v[12:15], v{V_L16}, {sr(R_WS,4)}, s{S_EX+1} offen sc1\nL_nopub:"]
    def cs_compute():
        L = ["s_waitcnt vmcnt(0)"]
        for i in range(4):
            L += [f"v_lshlrev_b32 v{CSUM+2*i}, 16, v{CL+i}", f"v_and_b32 v{CSUM+2*i+1}, 0xffff0000, v{CL+i}"]
            for e in range(1, 4):
                L += [f"v_lshlrev_b32 v2, 16, v{CL+4*e+i}", f"v_and_b32 v3, 0xffff0000, v{CL+4*e+i}", f"v_add_f32 v{CSUM+2*i}, v{CSUM+2*i}, v2", f"v_add_f32 v{CSUM+2*i+1}, v{CSUM+2*i+1}, v3"]
        L += [f"v_permlane32_swap_b32 v{CSUM+j}, v{CSUM+4+j}" for j in range(4)]
        L += [f"v_add_f32 v{CSUM+j}, v{CSUM+j}, v{CSUM+4+j}" for j in (0, 2, 1, 3)]
        L += [f"v_permlane16_swap_b32 v{CSUM}, v{CSUM+2}", "s_nop 0", f"v_permlane16_swap_b32 v{CSUM+1}, v{CSUM+3}"]
        L += [f"v_add_f32 v{CSUM}, v{CSUM}, v{CSUM+2}", f"v_add_f32 v{CSUM+1}, v{CSUM+1}, v{CSUM+3}", "s_nop 0"]
        L += [f"v_add_f32_dpp v2, v{CSUM}, v{CSUM} row_ror:8 row_mask:0xf bank_mask:0xf", f"v_add_f32_dpp v2, v{CSUM+1}, v{CSUM+1} row_ror:8 row_mask:0xf bank_mask:0xc"]
        L += [f"v_mov_b32 v221, v2"]
        return L
    init.insert(0, f"buffer_store_dword v221, v222, {sr(R_WS,4)}, s{S_CNT} offen sc1")
    if cfg.cs_late: a("s_waitcnt vmcnt(0)")
    else:
        for l in (cs_compute() if cfg.n_csa == 4 else csld[cfg.n_csa:]): a(l)
    if cfg.g_init < 3:
        assert cfg.n_csa == 4
    if cfg.g_init == -1:
        for l in init: a(l)
    touch("g", 1, 3, 4)
    stamp(name=6)
    a("s_barrier")
    nst[0] = 2
    stamp(name="b0"); pad("b0")
    HS = [divmod(g, 2) for g in range(28)] + [(14, 0), (15, 0), (14, 1), (15, 1)]
    def wf(K, mt): return WF + 16*((K + 1) & 1) + 4*mt
    def x_reads(g):
        K, nh = HS[g]
        return [f"ds_read_b128 {vr(XF+16*(g&1)+4*i,4)}, v{V_XA+(K&1)} offset:{XS[K>>1]*16384 + (4*nh+i)*2048}" for i in range(4)]
    def w_reads(K):
        slot = ((K >> 1) + 2) % 3
        return [f"ds_read_b64_tr_b16 {vr(wf(K,mt)+2*t,2)}, v{V_WR+(mt>>1)} offset:{(mt&1)*24576 + slot*8192 + (K&1)*4096 + t*512}" for mt in range(4) for t in range(2)]
    def mm(g, mt, i):
        K, nh = HS[g]; nt = 4*nh + i
        d = acc(mt >> 1, nt >> 1) + 8*(mt & 1) + 4*(nt & 1)
        return mfma16(d, wf(K, mt), XF + 16*(g&1) + 4*i, None if K == 0 else d)
    def rw_reads(rt, dst): return [f"ds_read_b128 {vr(dst+4*i,4)}, v{10 + (i >> 1)} offset:{2048*rt + 1024*(i & 1)}" for i in range(4)]
    op_reads = [f"ds_read_b128 {vr(RA+4*i,4)}, v254 offset:{L_RA + 1024*i}" for i in range(2)] + rw_reads(0, RWP) + rw_reads(1, RWQ)
    def rank1(ti, rt, rw): return mfma32(acc(ti, rt), RA + 4*ti, rw + 2, acc(ti, rt))
    def split2(src, dst, dup):
        if dup:
            return [f"v_cvt_pk_bf16_f32 v{dst}, v{src}, v{src}", f"v_and_b32 v2, 0xffff0000, v{dst}", f"v_sub_f32 v2, v{src}, v2", f"v_cvt_pk_bf16_f32 v{dst+1}, v2, v2"]
        return [f"v_cvt_pk_bf16_f32 v{dst}, v{src}, v{src}", f"v_and_b32 v2, 0xffff0000, v{dst}", f"v_sub_f32 v2, v{src}, v2", f"v_cvt_pk_bf16_f32 v{dst}, v{src}, v2", f"v_mov_b32 v{dst+1}, v{dst}"]
    arrive = (f"s_cmp_lg_u32 s{S_W}, 0\ns_cbranch_scc1 L_noarr\ns_and_b32 s{S_EX}, s2, 7\ns_lshl_b32 s{S_EX}, s{S_EX}, 5\n"
              f"s_mov_b64 exec, 1\nbuffer_atomic_add v223, off, {sr(R_DBG,4)}, s{S_EX} sc1\ns_mov_b64 exec, -1\nL_noarr:")
    w = w_reads(0)
    for l in w[:2] + x_reads(0) + w[2:]: a(l)
    def half_step(g):
        K, nh = HS[g]
        neww = g == 0 or HS[g-1][0] < K and g != 31
        gaps = [[] for _ in range(16)]
        o = 0
        if g & 3 == 3 and g < 28 or g == cfg.g_h:
            gaps[0] = (cs_compute()[1:] + init[:1] if g == 3 and cfg.cs_late else []) + (cs_compute() if g == 3 and cfg.n_csa < 4 else []) + (init if g == cfg.g_init else []) + ["s_barrier"]; o = 1
        rd = x_reads(g + 1) if g < 31 else rw_reads(2, WF + 16)
        if g < 29 and HS[g+1][0] > K:
            w = w_reads(K + 1); rd = w[:2] + rd + w[2:]
        if g == cfg.g_h: rd += op_reads
        if cfg.nord: rd = []
        for i, l in enumerate(rd): gaps[o + i].append(l)
        if neww:
            top = "lgkmcnt(4)"
            gaps[7].append(f"s_waitcnt lgkmcnt({min(len(rd), 8 - o)})")
        else: top = "lgkmcnt(10)" if g == cfg.g_h + 1 else "lgkmcnt(0)"
        brk("g" if g < 28 else "e")
        a("s_waitcnt " + ("vmcnt(0) " if g == 4*cfg.c_arr + 3 else "") + top)
        if g == 4*cfg.c_arr + 3: gaps[14].append(arrive)
        if g == cfg.g_init and g != 3:
            if not cfg.cs_late: gaps[9].append(init[0])
            gaps[12].append(init[1])
        dl = defer1 if g < 3 and (cfg.g_init == 3 or cfg.cs_late) or g <= cfg.g_init else defer2
        for k in range(16):
            if not gaps[k]:
                gaps[k] = dl[:2]; del dl[:2]
        assert not (g >= 2 and defer1) and not (g >= 27 and defer2)
        for k in range(16):
            a(mm(g, k >> 2, k & 3))
            for l in gaps[k]: a(l)
            if g == 31 and k == 3: a(("s_waitcnt lgkmcnt(4)\n" if cfg.g_h == 30 else "") + rank1(0, 0, RWP))
            if k == 0 and (g == 27 or (cfg.stamps == 4 and g & 3 == 3)): stamp()
            if k == 15 and g >= cfg.g_tr and g & 1 == 0 and cfg.stamps == 10 and ncs[0] < 6: a(f"s_memtime {sr([32, 34, 92, 94, 96, 98][ncs[0]], 2)}"); ncs[0] += 1
    for g in range(30): half_step(g)
    def swaps(o): return [f"v_permlane16_swap_b32 v{o}, v{o+2}", f"v_permlane16_swap_b32 v{o+1}, v{o+3}"]
    def gelu(ti, rt, rw, mf=(), pre=()):
        A = acc(ti, rt)
        def b(i): return rw + 8 + 4*(i >> 2)
        def vp(i): return rw + 6*(i >> 2)
        t1, t2, o = 144, 152, HO + 16*ti + 4*rt
        L = [".p2align 3"]
        for i in range(0, 8, 2): L.append(f"v_pk_mul_f32 {vr(t1+i,2)}, {vr(A+i,2)}, {vr(A+i,2)}")
        L += pre
        for i in range(0, 8, 2): L.append(f"v_pk_fma_f32 {vr(t1+i,2)}, {vr(t1+i,2)}, {vr(b(i)+2,2)}, {vr(b(i),2)}")
        for i in range(0, 8, 2): L.append(f"v_pk_mul_f32 {vr(t1+i,2)}, {vr(t1+i,2)}, {vr(A+i,2)}")
        L += mf
        for i in range(8): L.append(f"v_exp_f32 v{t1+i}, v{t1+i}")
        for i in range(0, 8, 2): L.append(f"v_pk_mul_f32 {vr(t2+i,2)}, {vr(A+i,2)}, {vr(A+8+i,2)}")
        for i in range(0, 8, 2): L.append(f"v_pk_fma_f32 {vr(t1+i,2)}, {vr(t1+i,2)}, {vr(vp(i),2)}, {vr(vp(i),2)}")
        for i in range(8): L.append(f"v_rcp_f32 v{t1+i}, v{t1+i}")
        for i in range(0, 8, 2): L.append(f"v_pk_mul_f32 {vr(t2+i,2)}, {vr(t2+i,2)}, {vr(t1+i,2)}")
        for i in range(4): L.append(f"v_cvt_pk_bf16_f32 v{o+i}, v{t2+2*i}, v{t2+2*i+1}")
        return L
    def qtile(rt, rw):
        A = acc(1, rt); qs = hex(f2u(-0.25*math.log2(math.e)/KG))
        L = [f"v_mul_f32 v{12+i}, {qs}, v{rw + 8 + 4*(i >> 1)}" for i in range(4)]
        L += [f"s_add_u32 s{S_T0}, s{S_HSB}, {32768*rt}", f"s_add_u32 s{S_T1}, s{S_T0}, 4096"]
        for hd in range(2):
            h = A + 8*hd
            for i in range(0, 8, 2): L.append(f"v_pk_mul_f32 {vr(h+i,2)}, {vr(h+i,2)}, {vr(12 + 2*(i >> 2),2)}")
            for i in range(4): L.append(f"v_cvt_pk_bf16_f32 v{h+i}, v{h+2*i}, v{h+2*i+1}")
            for i in (0, 2, 1, 3): L.append(f"v_min_u32 v{h+i}, -2, v{h+i}")
            L += [swaps(h)[0], "s_nop 0", swaps(h)[1]]
            L.append(f"buffer_store_dwordx4 {vr(h,4)}, v{V_L16}, {sr(R_WS,4)}, s{S_T0 + hd} offen sc1")
        return L
    L_HQ = L_KV + 49152
    def att_regs():
        a(f"""
        v_and_b32 v5, 27, v{V_LANE}
        v_cmp_eq_u32 vcc, 16, v5
        v_mov_b32 v6, 0x47804780
        v_mov_b32 v{V_IDX}, 0xdddddddd
        v_mov_b32 v11, 1
        v_mov_b32 v49, 0.5
        v_cndmask_b32 v{VF}, 0, v6, vcc
        v_mov_b32 v{VF+1}, v{VF}
        """)
        for i in range(2, 16, 2): a(f"v_mov_b64 {vr(VF+i,2)}, {vr(VF,2)}")
        for i in range(0, 16, 2): a(f"v_mov_b64 {vr(OO+i,2)}, 0")
        a(f"s_lshl_b32 s{S_T0}, s{S_KQ}, 13\ns_add_u32 s{S_T0}, s{S_T0}, {L_WO - L_WD}\nv_add_u32 v{V_OA}, s{S_T0}, v{V_DA}\nv_xor_b32 v{V_OA+1}, 64, v{V_OA}")
    def kv_first():
        a(f"ds_read_b128 {vr(KF,4)}, v{V_KA} offset:{kv_off(0)}\nds_read_b128 {vr(KF+4,4)}, v{V_KA} offset:{kv_off(1)}")
        a(f"s_mov_b64 exec, {sr(S_VM,2)}\nds_read_b128 {vr(VF,4)}, v{V_VA} offset:{kv_off(0)}\ns_mov_b64 exec, -1")
    a(f"s_and_b32 s{S_T1}, s{S_CB}, 3\ns_cmp_eq_u32 s{S_T1}, 3\ns_cbranch_scc1 L_qt")
    half_step(30); half_step(31)
    n0 = nst[0]
    stamp(name="g1"); pad("g1")
    RWS = [RWP, RWQ, WF + 16, RWP]
    order = [(ti, rt) for rt in range(4) for ti in range(2)]
    for i, (ti, rt) in enumerate(order):
        if i == 2:
            for l in rw_reads(3, RWS[3]): a(l)
        brk("e")
        if i in (3, 5): a("s_waitcnt lgkmcnt(0)")
        if i == cfg.i_q: a("s_barrier")
        nx = order[i+1] if i < 7 else None
        pv = order[i-1] if i else None
        for l in gelu(ti, rt, RWS[rt], [rank1(*nx, RWS[nx[1]])] if nx else [], swaps(HO + 16*pv[0] + 4*pv[1]) if pv else []): a(l)
    a("s_nop 1")
    for l in swaps(HO + 16 + 12): a(l)
    a("s_branch L_joinA")
    far("L_qt")
    RWS = [RWP, RWQ, acc(1, 0), acc(1, 1)]
    if cfg.g_h == 30:
        a("s_barrier")
        for l in op_reads: a(l)
    for l in x_reads(31): a(l)
    a("s_waitcnt lgkmcnt(4)\ns_nop 0")
    a(rank1(1, 0, RWP)); a(rank1(1, 1, RWQ))
    a.nop(5)
    for rt in range(2):
        for l in qtile(rt, RWS[rt]): a(l)
        brk("e")
    a("s_waitcnt lgkmcnt(0)")
    rd = rw_reads(2, RWS[2]) + rw_reads(3, RWS[3])
    for g in (30, 31):
        for k in range(8, 16):
            a(mm(g, k >> 2, k & 3))
            if rd: a(rd.pop(0))
    a("s_waitcnt lgkmcnt(0)\ns_nop 3")
    a(rank1(1, 2, RWS[2])); a(rank1(1, 3, RWS[3]))
    a.nop(5)
    for rt in (2, 3):
        for l in qtile(rt, RWS[rt]): a(l)
        brk("e")
    a(rank1(0, 0, RWP))
    for g in (30, 31):
        for k in range(8): a(mm(g, k >> 2, k & 3))
    nst[0] = n0
    stamp(name="g1")
    a(f"s_mov_b32 s{S_HSB}, {WS_SIZE}")
    for i in range(4): a(f"v_mov_b32 v{12+i}, -1")
    for rt in range(4):
        brk("e")
        if rt == cfg.i_qb: a("s_barrier")
        for l in gelu(0, rt, RWS[rt], [rank1(0, rt + 1, RWS[rt + 1])] if rt < 3 else [], swaps(HO + 4*(rt - 1)) if rt else []): a(l)
    a("s_nop 1")
    for l in swaps(HO + 12): a(l)
    far("L_joinA", True)
    nst[0] = 12 if cfg.stamps == 4 else 5
    stamp()
    if not cfg.gpos:
        att_regs()
        kv_first()
    a("s_barrier")
    stamp(name="att0"); pad("att0")
    a(f"ds_read_b128 {vr(QF,4)}, v254 offset:{L_HQ}")
    for i in range(4): a(f"ds_read_b128 {vr(CC+4*i,4)}, v254 offset:{L_HQ + 1024}")
    if cfg.gpos:
        att_regs()
        kv_first()
    a("s_waitcnt lgkmcnt(0)")
    a(mfma32(S0, KF, QF, CC))
    a("s_nop 3\ns_branch L_attA")

    a.label("L_helper")
    V_XD, V_WD = 192, 194
    PX, PW = 8, 24
    PACC, PCS, PRS, PSQ = 40, 44, 48, 52
    PONE, PSQP, PF1 = 56, 60, 61
    RD = 64
    a(f"""
    s_lshl_b32 s{S_XOFF}, s{S_RB}, 17
    s_lshl_b32 s{S_T0}, s{S_HW}, 15
    s_add_u32 s{S_XOFF}, s{S_XOFF}, s{S_T0}
    v_and_b32 v5, 15, v{V_LANE}
    v_lshrrev_b32 v6, 4, v{V_LANE}
    v_lshrrev_b32 v7, 3, v{V_LANE}
    v_and_b32 v63, 7, v{V_LANE}
    v_xor_b32 v62, v6, v63
    v_lshlrev_b32 v62, 4, v62
    v_lshl_add_u32 v{V_XD}, v7, 10, v62
    v_xor_b32 v{V_XD+1}, 64, v{V_XD}
    v_add_u32 v{V_XD+1}, {8192-1024}, v{V_XD+1}
    """)
    img_params(S_HW, S_WSTEP, S_WOFF)
    a(f"""
    v_and_b32 v62, 1, v6
    v_lshlrev_b32 v62, 1, v62
    v_xor_b32 v62, v62, v63
    v_lshlrev_b32 v62, 4, v62
    v_mul_u32_u24 v{V_WD}, s{S_WSTEP}, v7
    v_add_u32 v{V_WD}, v{V_WD}, v62
    v_xor_b32 v{V_WD+1}, 64, v{V_WD}
    s_waitcnt lgkmcnt(0)
    """)
    nst[0] = 0
    stamp()
    a(f"s_mov_b32 s{R_X}, s{P_X}\ns_and_b32 s{R_X+1}, s{P_X+1}, 0xffff")
    Q = []
    def issue(tag, text): a(text); Q.append(tag)
    def vwait(tag, more=""):
        n = len(Q) - 1 - max(i for i, t in enumerate(Q) if t == tag)
        a(f"s_waitcnt vmcnt({n})" + more)
    def xitems(c):
        slot = XS[c]
        return [(f"C{c}", f"s_add_u32 m0, s{S_H4K}, {L_X + slot*16384}\ns_add_u32 s{S_CNT}, s{S_XOFF}, {c*128 + (16384 - 2048)*(e >> 1)}\n"
                 f"buffer_load_dwordx4 v{V_XD + (e & 1)}, {sr(R_X,4)}, s{S_CNT} offen offset:{1024*e} {cfg.cf[1]} lds") for e in range(4)]
    def witems(c):
        slot = (c + 2) % 3
        return [(f"C{c}", f"s_add_u32 m0, s{S_M0W}, {slot*8192 + e*1024}\n" + (f"s_add_u32 s{S_WOFF}, s{S_WOFF}, s{S_WSTEP}" if c + e else "s_nop 0") +
                 f"\nbuffer_load_dwordx4 v{V_WD + (e & 1)}, {sr(R_W,4)}, s{S_WOFF} offen {cfg.cf[0]} lds") for e in range(8)]
    stream = []
    for c in range(1, 8): stream += [(t, x if c < 3 or not cfg.nodma else 's_nop 0') for t, x in witems(c) + xitems(c)]
    pos = [0]
    def take(n):
        for _ in range(n):
            if pos[0] < len(stream): issue(*stream[pos[0]]); pos[0] += 1
    def upto(c):
        return min(len(stream), 12*(c + 1) + cfg.lead[c])
    def mix(lines, n):
        k = 0
        for i, l in enumerate(lines):
            while k < n and k * len(lines) <= i * n: take(1); k += 1
            a(l)
        take(n - k)
    img_srd(R_W, S_WSTEP)
    a(f"s_lshl_b32 s{S_WSTEP}, s{S_WSTEP}, 3\ns_mul_i32 s{S_M0W}, s{S_HW}, 24576\ns_add_u32 s{S_M0W}, s{S_M0W}, {L_W}")
    stamp(name=1)
    a("s_barrier")
    for it in xitems(0) + witems(0): issue(*it)
    stamp(name=3)
    def bar():
        brk("g")
        if cfg.stamps == 4: stamp()
        a("s_barrier")
    take(cfg.lead0)
    stamp(name=4)
    nst[0] = 2; vwait("C0"); stamp(name=6); bar()
    BC, BO, BZ = 132, 224, 240
    def b_init():
        srd(R_WS, P_WS, WS_SIZE)
        setup_ids()
        for i in range(4): a(f"v_mov_b32 v{12+i}, -1")
        a(f"v_mov_b32 v10, 0\ns_add_u32 s{S_T2}, s{S_OST}, {WS_Q - WS_O - 2048}\ns_sub_u32 s{S_T3}, s{S_FLG}, 16")
    def b_stores():
        issue("ST", f"buffer_store_dwordx4 v[12:15], v{V_L16}, {sr(R_WS,4)}, s{S_T2} offen sc1")
        issue("ST", f"buffer_store_dwordx4 v[12:15], v{V_L16}, {sr(R_WS,4)}, s{S_T2} offen offset:2048 sc1")
        issue("ST", f"s_mov_b64 exec, 3\nbuffer_store_dword v10, v{V_L16}, {sr(R_WS,4)}, s{S_T3} offen sc1\ns_mov_b64 exec, -1")
    def b_setup():
        srd(R_DBG, P_DBG, 256)
        a(f"s_mov_b32 s{S_ONES}, 0x3f803f80")
        common_setup()
        a(f"""
        v_lshrrev_b32 v6, 4, v{V_LANE}
        v_bfe_u32 v2, v{V_LANE}, 1, 1
        v_lshl_add_u32 v6, v2, 2, v6
        v_and_b32 v2, 1, v{V_LANE}
        v_lshl_add_u32 v6, v2, 5, v6
        v_lshlrev_b32 v6, 4, v6
        v_bfe_u32 v2, v{V_LANE}, 2, 2
        v_lshl_add_u32 v6, v2, 11, v6
        s_lshr_b32 s{S_T0}, s{S_HW}, 1
        s_lshl_b32 s{S_T0}, s{S_T0}, 10
        s_and_b32 s{S_T1}, s{S_HW}, 1
        s_lshl_b32 s{S_T1}, s{S_T1}, 8
        s_add_u32 s{S_T0}, s{S_T0}, s{S_T1}
        v_add_u32 v204, s{S_T0}, v6
        """)
        for i in (0, 1, 4, 5): a(f"v_mov_b32 v{BZ+i}, 0")
        att_regs()
        a(f"s_lshl_b32 s{S_T0}, s{S_HW}, 11\nv_add_u32 v7, s{S_T0}, v{V_L16}")
    bs = capture(b_setup)
    nbs = -(-len(bs) // 3)
    pfl = [f"s_mul_i32 s{S_T0}, s2, 7168\ns_lshl_b32 s{S_T1}, s{S_HW}, 11\ns_add_u32 s{S_T0}, s{S_T0}, s{S_T1}\nbuffer_load_dwordx4 {vr(176,4)}, v{V_L16}, {sr(R_WD,4)}, s{S_T0} offen",
           f"buffer_load_dwordx4 {vr(180,4)}, v{V_L16}, {sr(R_WD,4)}, s{S_T0} offen offset:1024",
           f"s_lshl_b32 s{S_T1}, s2, 11\ns_lshl_b32 s{S_T3}, s{S_HW}, 9\ns_add_u32 s{S_T1}, s{S_T1}, s{S_T3}\ns_mov_b32 exec_hi, 0\nbuffer_load_dwordx4 {vr(184,4)}, v{V_L16}, {sr(R_WO,4)}, s{S_T1} offen\ns_mov_b64 exec, -1"]
    spoll = f"buffer_load_dword v8, v6, {sr(R_DBG,4)}, s{S_T2} offen sc1"
    for c in range(6):
        if c == cfg.c_st[0]:
            mix(capture(b_init), cfg.c_st[1]); b_stores()
        if c in (2, 3, 4): mix(bs[(c-2)*nbs:(c-1)*nbs], upto(c) - pos[0])
        if c == 5:
            take(cfg.n_poll)
            a(f"v_and_b32 v6, 7, v{V_LANE}\nv_lshlrev_b32 v6, 5, v6\ns_lshl_b32 s{S_T2}, s{S_HW}, 8")
            issue("P", spoll)
        take(upto(c) - pos[0])
        if c == cfg.c_arr: vwait("ST")
        if c == 5:
            vwait("P")
            a(f"s_cmp_lg_u32 s{S_HW}, 0\ns_cbranch_scc1 L_sync1\ns_mov_b32 s{S_SPIN}, 0")
            a.label("L_sync1_chk")
            a(f"""
            v_cmp_gt_u32 vcc, 32, v8
            s_add_u32 s{S_SPIN}, s{S_SPIN}, 1
            s_cbranch_vccz L_sync1
            s_cmp_ge_u32 s{S_SPIN}, {SPIN_MAX}
            s_cbranch_scc1 L_sync1
            s_sleep 4
            {spoll}
            s_waitcnt vmcnt(0)
            s_branch L_sync1_chk
            """)
            a.label("L_sync1")
        vwait(f"C{c+1}"); bar()
    assert pos[0] == len(stream)
    ncs[0] = 0; cstamp(11)
    a(f"""
    s_lshl_b32 s{S_T3}, s{S_HW}, 11
    s_add_u32 m0, s{S_T3}, {L_R}
    s_lshl_b32 s{S_EX}, s{S_RB}, 13
    s_add_u32 s{S_EX}, s{S_EX}, s{S_T3}
    s_add_u32 s{S_EX}, s{S_EX}, {WS_ST}
    s_lshl_b32 s{S_T3}, s{S_HW}, 10
    s_lshl_b32 s{S_EX+1}, s{S_CB}, 14
    s_add_u32 s{S_EX+1}, s{S_EX+1}, s{S_T3}
    s_add_u32 s{S_EX+1}, s{S_EX+1}, {WS_CS}
    """)
    if cfg.stamps != 4: nst[0] = 3
    stamp(); cstamp(11)
    def maxtree(src, dst, init=None):
        L = []
        if init is None:
            L.append(f"v_max3_f32 v{dst}, v{src}, v{src+1}, v{src+2}")
            L.append(f"v_max_f32 v{dst}, v{src+3}, v{dst}")
            k = 4
        else:
            k = 0
        for i in range(k, 16, 2): L.append(f"v_max3_f32 v{dst}, v{src+i}, v{src+i+1}, v{dst}")
        return L
    def setC(m, shift):
        a(f"v_mov_b32 v{m+1}, v{m}\ns_nop 1\nv_permlane32_swap_b32 v{m}, v{m+1}\nv_max_f32 v{m}, v{m}, v{m+1}")
        a(f"v_sub_f32 v{CC}, {hex(f2u(-shift)) if shift else 0}, v{m}")
        a(f"v_mov_b32 v{CC+1}, v{CC}")
        for i in range(2, 16, 2): a(f"v_mov_b64 {vr(CC+i,2)}, {vr(CC,2)}")
    for e in range(4):
        if e: a(f"s_add_u32 s{S_EX+1}, s{S_EX+1}, 4096")
        a(f"buffer_load_dwordx4 {vr(BC+4*e,4)}, v{V_L16}, {sr(R_WS,4)}, s{S_EX+1} offen sc1")
    for i in range(2): a(f"buffer_load_dwordx4 v{V_L16}, {sr(R_WS,4)}, s{S_EX} offen offset:{1024*i} sc1 lds")
    npf = 3 if cfg.pf_first else 0
    for x in pfl[:npf]: a(x)
    touch("e", 0, 4, 5)
    cstamp(11)
    if cfg.e6 == 0: a(f"s_waitcnt vmcnt({6 + npf})\ns_barrier")
    a(f"s_setprio {cfg.bp}\ns_waitcnt vmcnt({2 + npf})")
    cstamp(11)
    for e in range(1, 4):
        for i in (0, 2, 1, 3): a(f"v_add_f32 v{BC+i}, v{BC+i}, v{BC+4*e+i}")
    a(f"""
    v_permlane32_swap_b32 v{BC}, v{BC+2}
    s_nop 0
    v_permlane32_swap_b32 v{BC+1}, v{BC+3}
    v_add_f32 v{BC}, v{BC}, v{BC+2}
    v_add_f32 v{BC+1}, v{BC+1}, v{BC+3}
    s_nop 1
    v_permlane16_swap_b32 v{BC}, v{BC+1}
    v_add_f32 v{BC}, v{BC}, v{BC+1}
    """)
    for l in split2(BC, BZ + 2, True): a(l)
    a(f"ds_write_b128 v204, {vr(BZ+2,4)} offset:{L_RA}\nds_write_b128 v204, {vr(BZ,4)} offset:{L_RA + 128}")
    cstamp(11)
    for x in pfl[npf:]: a(x)
    a("s_waitcnt vmcnt(3)")
    ncs[0] += 1; cstamp(11)
    a("s_setprio 0\ns_waitcnt lgkmcnt(0)")
    cstamp(11)
    if cfg.e6 == 2: a("s_barrier")
    cstamp(11)
    a("s_barrier")
    for c in range(2):
        slot = (c + 1) % 3
        a(f"s_add_u32 m0, s{S_H4K}, {L_KV + slot*16384}\ns_add_u32 s{S_T0}, s{S_H4K}, {WS_KV + starts[c]*2048}")
        for e in range(4):
            a(f"buffer_load_dwordx4 v{V_L16}, {sr(R_WS,4)}, s{S_T0} offen offset:{1024*e} sc1 lds")
    touch("a", 0, 4, 12)
    if cfg.wfix:
        a(f"s_mov_b32 s{S_CNT}, 0\ns_mov_b32 s{S_SPIN}, 0\ns_cmp_eq_u32 s{S_HW}, 3\ns_cbranch_scc0 L_nowfix\ns_call_b64 {sr(S_RET,2)}, L_ofix\nL_nowfix:")
    QP = 128
    qload = (f"buffer_load_dwordx4 {vr(QP,4)}, v{V_L16}, {sr(R_WS,4)}, s{S_T2} offen sc1\n"
             f"buffer_load_dwordx4 {vr(QF,4)}, v{V_L16}, {sr(R_WS,4)}, s{S_T2} offen offset:2048 sc1")
    a(f"s_add_u32 s{S_T2}, s{S_OST}, {WS_Q - WS_O - 2048}\ns_mov_b32 s{S_SPIN}, 0\ns_waitcnt vmcnt(0)\ns_barrier\ns_setprio 2")
    a(qload)
    kv_first()
    nst[0] = 12 if cfg.stamps == 4 else 5
    stamp()
    a.label("L_qchk")
    a(f"""
    s_waitcnt vmcnt(0) lgkmcnt(0)
    v_max3_u32 v8, v{QF}, v{QF+1}, v{QF+2}
    v_max3_u32 v8, v8, v{QF+3}, v{QP}
    v_max3_u32 v8, v8, v{QP+1}, v{QP+2}
    v_max_u32 v8, v8, v{QP+3}
    v_cmp_eq_u32 vcc, -1, v8
    s_add_u32 s{S_SPIN}, s{S_SPIN}, 1
    s_cbranch_vccz L_qok
    s_cmp_ge_u32 s{S_SPIN}, {SPIN_MAX}
    s_cbranch_scc1 L_qok
    s_sleep 2
    {qload}
    s_branch L_qchk
    """)
    a.label("L_qok")
    if cfg.stamps == 1:
        n0 = nst[0]; nst[0] = 4; stamp(); nst[0] = n0
        a(f"v_writelane_b32 v{V_STAMP}, s{S_SPIN}, 63")
    a(mfma32(S0, KF, QP, None)); a(mfma32(S1, KF, QF, None))
    a(f"ds_write_b128 v7, {vr(QP,4)} offset:{L_HQ}")
    a.nop(10)
    for l in maxtree(S0, 8): a(l)
    a(f"v_mov_b32 v9, v8\ns_nop 1\nv_permlane32_swap_b32 v8, v9\nv_max_f32 v8, v8, v9\nv_sub_f32 v{QP+4}, {hex(f2u(-cfg.shift))}, v8")
    a(f"v_mov_b32 v{QP+5}, v{QP+4}\nv_mov_b64 {vr(QP+6,2)}, {vr(QP+4,2)}\nds_write_b128 v7, {vr(QP+4,4)} offset:{L_HQ + 1024}")
    for l in maxtree(S1, 8): a(l)
    if cfg.g_early:
        a("s_waitcnt lgkmcnt(0)\ns_barrier")
        stamp(name="att0"); pad("att0")
    setC(8, cfg.shift)
    a("s_waitcnt lgkmcnt(0)\ns_setprio 0")
    a(mfma32(S0, KF, QF, CC))
    if not cfg.g_early:
        a("s_barrier")
        stamp(name="att0"); pad("att0")
    a("s_nop 3\ns_branch L_attB")

    def kvdma(c, half):
        slot = (c + 1) % 3
        L = (f"s_add_u32 m0, s{S_W2K}, {L_KV + slot*16384}\ns_add_u32 s{S_T0}, s{S_W2K}, {WS_KV + starts[c]*2048}\n")
        if half == 1 and sizes[c] < 8:
            L += f"s_cmp_ge_u32 s{S_W}, {sizes[c]}\ns_cselect_b32 s{S_T0}, {WS_SIZE}, s{S_T0}\n"
        return [L + f"buffer_load_dwordx4 v{V_L16}, {sr(R_WS,4)}, s{S_T0} offen sc1 lds",
                f"buffer_load_dwordx4 v{V_L16}, {sr(R_WS,4)}, s{S_T0} offen offset:1024 sc1 lds"]
    def rowdma(rs, sbase, add, ldsbase, e):
        pre = f"s_add_u32 m0, s{S_W4K}, {ldsbase}\n"
        return pre + f"s_add_u32 s{S_T0}, s{sbase}, {add + e*7168}\nbuffer_load_dwordx4 v{V_WDD}, {sr(rs,4)}, s{S_T0} offen offset:{1024*e} {cfg.cf[2]} lds"
    tbs = [starts[c] - 3 for c in range(1, len(starts))]
    late = []
    def attention(half):
        sfx = "AB"[half]
        head = {t: [] for t in range(66)}
        vm = {t: [] for t in range(66)}
        pre = {t: [] for t in range(66)}
        bg = {t: [] for t in range(66)}
        nb = len(tbs); c0 = nb - 7
        lh, mb = cfg.lh, cfg.mb
        for ci, tb in enumerate(tbs):
            q = []
            if ci + 2 < len(starts): q += [("D", x) for x in kvdma(ci + 2, half)]
            dload = ci - c0 + 1
            if 0 <= dload <= 6:
                wq_ = [rowdma(R_WD, S_WDO, dload*65536, L_WD + (dload & 1)*32768, e) for e in range(4)]
                if dload == 0:
                    for e in range(4): vm[cfg.t_wd0[e]].append(("D", wq_[e]))
                else: q += [("D", x) for x in wq_]
                hl = [f"buffer_load_dwordx4 {vr(HF + 16*(dload&1) + 4*j,4)}, v{V_L16}, {sr(R_WS,4)}, s{S_T1} offen offset:{1024*j} sc1" for j in range(4)]
                hl[0] = f"s_add_u32 s{S_T1}, s{S_HLD}, {dload*4096}\n" + hl[0]
            elif dload == 7:
                q += [("D", rowdma(R_WO, S_WOO, 0, L_WO, e)) for e in range(4)]
                q += [("D", f"buffer_load_dwordx4 {vr(V_XR,4)}, v{V_FO}, {sr(R_X,4)}, 0 offen")]
            for i, x in enumerate(q): vm[tb + cfg.dpos[i] if ci else cfg.t_kv2].append(x)
            if 0 <= dload <= 6:
                for j in range(4):
                    vm[cfg.t_h0[j] if dload == 0 else tb + cfg.hpos[j]].append((f"H{dload}{j}", hl[j]))
                    if j in cfg.hwait: pre[tbs[ci + 1] + mb[2*j]].append(("wait", f"H{dload}{cfg.hwait[j]}"))
            d = dload - 1
            if d >= 0:
                for k in range(8):
                    j, ct = divmod(k, 2); fr = DF + 4 * (k & 3)
                    for t in range(2):
                        head[tb + lh[k]].append(f"ds_read_b64_tr_b16 {vr(fr+2*t,2)}, v{V_DA+ct} offset:{(d&1)*32768 + j*2048 + t*512}")
                    bg[tb + mb[k]].append(mfma32(YY + 16*ct, HF + 16*(d&1) + 4*j, fr, None if (d == 0 and j == 0) else YY + 16*ct))
        assert min(cfg.t_h0) >= cfg.t_chk and max(lh) <= 6 and max(mb) <= 7 and all(m > l for m, l in zip(mb, lh))
        assert all(lh[k+4] > mb[k] and lh[k] + 6 > mb[k+4] for k in range(4)) and all(cfg.hpos[j] + 6 > mb[2*j+1] for j in range(4))
        st = []
        if half == 0:
            for rt in range(4):
                for ti in range(2):
                    st.append(f"s_add_u32 s{S_T3}, s{S_HSB if ti else S_HST}, {112*1024*rt}\n"
                              f"buffer_store_dwordx4 {vr(HO + 16*ti + 4*rt,4)}, v{V_L16}, {sr(R_WS,4)}, s{S_T3} offen sc1")
        st.append(f"buffer_store_dwordx4 v[12:15], v{V_L16}, {sr(R_WS,4)}, s{S_OST} offen sc1")
        hs = list(range(64))
        for i, x in enumerate(st): vm[hs[int(i * cfg.st_rate)]].append(("S", x))
        if half == 1:
            if cfg.t_pf >= 0: vm[cfg.t_pf] += [("X", x) for x in pfl]
            for e in range(8):
                x = f"s_add_u32 m0, s{S_EX}, {L_WO + 32768 + e*1024}\ns_add_u32 s{S_T0}, s{S_EX+1}, {e*8192}\nbuffer_load_dwordx4 v{V_WDD}, {sr(R_WO,4)}, s{S_T0} offen lds"
                if e == 0: x = f"s_lshl_b32 s{S_EX+1}, s{S_HW}, 16\ns_lshl_b32 s{S_T0}, s{S_CT8}, 7\ns_add_u32 s{S_EX+1}, s{S_EX+1}, s{S_T0}\ns_xor_b32 s{S_T0}, s{S_T16}, 0x40000\ns_add_u32 s{S_EX+1}, s{S_EX+1}, s{S_T0}\ns_lshl_b32 s{S_EX}, s{S_H4K}, 1\n" + x
                vm[cfg.t_wo[e]].append(("D", x))
            assert max(cfg.t_wo) <= tbs[1]
            for i in range(6): head[tbs[1] + 2 + i] += wo_rd[4*i:4*i+4]
            head[61] += wo_rd[24:26]; head[63] += wo_rd[26:]
        else:
            head[63] += wo_rd[:cfg.n_wo63]
        if cfg.t_out: vm[cfg.t_out].append(("X", f"s_mov_b64 exec, 1\nbuffer_load_dword v254, v{V_FO}, {sr(R_OUT,4)}, 0 offen\ns_mov_b64 exec, -1"))
        for t in cfg.t_code: vm[t].append(("X", "s_mov_b64 exec, 3\nglobal_load_dword v254, v[252:253], off\ns_mov_b64 exec, -1"))
        pre[cfg.t_flag].append(("wait", "S"))
        vm[cfg.t_flag].insert(0, ("F", f"s_mov_b64 exec, 1\nbuffer_store_dword v11, off, {sr(R_WS,4)}, s{S_FLG} sc1\ns_mov_b64 exec, -1"))
        poll = f"buffer_load_dword v3, v{V_PO}, {sr(R_WS,4)}, s{S_T2} offen sc1"
        vm[cfg.t_poll].append(("P", f"s_mov_b32 s{S_T2}, {WS_FL}\n" + poll))
        assert cfg.t_poll <= cfg.t_chk - 2
        pre[cfg.t_chk - 1].append(("wait", "P"))
        pre[cfg.t_chk].append(("text", f"s_cbranch_vccnz L_hspin{sfx}\nL_hok{sfx}:"))
        late.append(f"L_hspin{sfx}:\ns_mov_b32 s{S_SPIN}, 0\nL_hchk{sfx}:\ns_sleep 2\n{poll}\ns_waitcnt vmcnt(0)\nv_cmp_ne_u32 vcc, 1, v3\ns_add_u32 s{S_SPIN}, s{S_SPIN}, 1\ns_cbranch_vccz L_hok{sfx}\n"
                    f"s_cmp_lt_u32 s{S_SPIN}, {SPIN_MAX}\ns_cbranch_scc1 L_hchk{sfx}\ns_branch L_hok{sfx}")
        VQ = []
        def cnt(tag):
            idx = [i for i, x in enumerate(VQ) if x == tag]
            return min(63, len(VQ) - 1 - max(idx)) if idx else 63
        def emit_vm(L):
            for tag, x in L: a(x); VQ.append(tag)
        for t in range(tbs[2] + 1, 64):
            if 'v' in cfg.ab: vm[t] = [x for x in vm[t] if 'sc1 lds' in x[1]]
            if 'h' in cfg.ab: vm[t] = [x for x in vm[t] if x[0] != 'H']
            if 'r' in cfg.ab: head[t] = []
            if 'm' in cfg.ab: bg[t] = []
        for t in range(64):
            par = t & 1
            sd, sn = (S0, S1) if par == 0 else (S1, S0)
            p, pp = PP + 8*par, PP + 8*(1 - par)
            isb = (t in tbs and not ('b' in cfg.ab and t > tbs[2])) or t == 62
            if cfg.stamps == 2 and t - 1 in tbs: stamp()
            brk("a")
            midb = isb and half == 1
            if half == 0 and (t - 1 in tbs or t == 63): a(f"s_waitcnt vmcnt({cnt('D')}) lgkmcnt(0)\ns_barrier")
            else: a("s_waitcnt lgkmcnt(0)")
            for k, x in pre[t]: a(x if k == "text" else f"s_waitcnt vmcnt({cnt(x)})")
            emit_vm(vm[t][:1])
            if not ('L' in cfg.ab and t & 2) and not ('Z' in cfg.ab and t > 2):
                if t + 2 < 64: a(f"ds_read_b128 {vr(KF+4*par,4)}, v{V_KA} offset:{kv_off(t+2)}")
                a(f"s_mov_b64 exec, {sr(S_VM,2)}")
                if t + 1 < 64: a(f"ds_read_b128 {vr(VF+8*(1-par),4)}, v{V_VA} offset:{kv_off(t+1)}")
                a(f"ds_read_b128 {vr(VF+8*par+4,4)}, v{V_VA} offset:{kv_off(t)+512}")
                a("s_mov_b64 exec, -1")
            for l in head[t]: a(l)
            emit_vm(vm[t][1:])
            if t == 0 and cfg.stamps == 9: ncs[0] = 0
            if cfg.t_tr <= t < cfg.t_tr + 9: cstamp(9)
            pos = cfg.pos[len(bg[t])]
            sl = [smf(OO, VF + 8*(1-par) + 4, sn + 8) if t >= 1 else None, mfma32(sn, KF + 4*(1-par), QF, CC) if t + 1 < 64 else None]
            sl += bg[t][:1] + [smf(OO, VF + 8*par, sd)] + bg[t][1:]
            at = {p: m for p, m in zip(pos, sl) if m}
            if t in cfg.upd:
                assert len(sl) == 3
                at = {1: f"v_frexp_exp_i32_f32_e64 v4, v{OO+8}", 2: sl[0], 3: f"v_sub_u32 v4, {17 - int(cfg.shift)}, v4\nv_cvt_f32_i32_e64 v5, v4", 5: sl[1],
                      8: f"v_mfma_f32_32x32x2_f32 {vr(CC,16)}, v49, v5, {vr(CC,16)}", 15: sl[2]}
                if cfg.updm >= 1:
                    mv = [f"v_mov_b32 v{CC+1}, v{CC}"] + [f"v_mov_b64 {vr(CC+i,2)}, {vr(CC,2)}" for i in range(2, 16, 2)] if cfg.updm == 1 else [f"v_mov_b32 v{CC+i}, v{CC}" for i in range(1, 16)]
                    del at[8], at[15]
                    at[12] = "\n".join([f"v_add_f32{'_e64' if cfg.updm == 1 else ''} v{CC}, v{CC}, v5"] + mv)
                    at[13] = sl[2]
                if cfg.updl: at[3] = f"v_sub_u32 v4, {17 - int(cfg.shift)}, v4\nv_max_i32 v4, 0xffffff82, v4\nv_cvt_f32_i32_e64 v5, v4\nv_ldexp_f32 v4, 1.0, v4"
            if t - 2 in cfg.upd:
                assert len(sl) == 3
                at = {2: sl[0], 6: sl[1], 13: "\n".join((f"v_mul_f32{'_e64' if i == 0 else ''} v{OO+i}, v{OO+i}, v4" if cfg.updl else f"v_ldexp_f32 v{OO+i}, v{OO+i}, v4") for i in range(9)), 15: sl[2]}
            a(".p2align 3")
            odd = False
            for i in range(16):
                if i in at: a(at[i])
                if midb and i == cfg.bmid: a(f"s_waitcnt vmcnt({cnt('D')}) lgkmcnt(0)\ns_barrier")
                pr = i == (cfg.pp if half else cfg.pa)
                wide = (i + 1 in at) and (odd == pr)
                a(f"v_exp_f32{'_e64' if wide else ''} v{sd+i}, v{sd+i}")
                if not wide: odd = not odd
                if pr: a(f"s_setprio {cfg.pv[half]}"); odd = not odd
            if cfg.stamps == 3: a(f"s_waitcnt lgkmcnt(0)\nv_writelane_b32 v253, s{S_TS}, {t}\nv_writelane_b32 v254, s{S_TS2}, {t}\ns_memtime {sr(S_TS2,2)}")
            if t == cfg.t_chk - 1: a("v_cmp_ne_u32 vcc, 1, v3")
            if (cfg.pp if half else cfg.pa) is not None: a("s_setprio 0")
            if cfg.t_tr <= t < cfg.t_tr + 9: cstamp(9)
        a("s_waitcnt lgkmcnt(0)\ns_nop 0")
        a(smf(OO, VF + 12, S1 + 8))
    OF, SS, XU, TT = 16, 64, 160, 168
    def oload(j): return f"buffer_load_dwordx4 {vr(OF+4*j,4)}, v{V_L16}, {sr(R_WS,4)}, s{S_OLD if j < 4 else S_T1} offen offset:{1024*(j&3)} sc1"
    def chk(j): return f"v_max3_u32 v8, v{OF+4*j}, v{OF+4*j+1}, v{OF+4*j+2}\nv_max_u32 v8, v{OF+4*j+3}, v8\nv_cmp_eq_u32 vcc, -1, v8"
    F = "L_ofix:\ns_waitcnt vmcnt(0)\n"
    for j in range(8):
        F += (f"s_bitcmp1_b32 s{S_CNT}, {j}\ns_cbranch_scc0 L_ofb{j}\n{chk(j)}\ns_nop 0\ns_cbranch_vccz L_ofa{j}\n{oload(j)}\ns_branch L_ofb{j}\nL_ofa{j}:\ns_bitset0_b32 s{S_CNT}, {j}\n"
              + mfma32(SS, OF + 4*j, WOF[2*j], SS) + "\n" + mfma32(SS + 16, OF + 4*j, WOF[2*j + 1], SS + 16) + f"\nL_ofb{j}:\n")
    F += (f"s_add_u32 s{S_SPIN}, s{S_SPIN}, 1\ns_cmp_ge_u32 s{S_SPIN}, {SPIN_MAX}\ns_cselect_b32 s{S_CNT}, 0, s{S_CNT}\n"
          f"s_cmp_lg_u32 s{S_CNT}, 0\ns_cbranch_scc1 L_ofix\ns_setpc_b64 {sr(S_RET,2)}")
    late.insert(0, F)
    def normalize():
        for i in range(0, 8, 2): a(f"v_pk_mul_f32 {vr(OO+i,2)}, {vr(OO+i,2)}, v[10:11]")
        for i in range(4): a(f"v_cvt_pk_bf16_f32 v{12+i}, v{OO+2*i}, v{OO+2*i+1}")
    def tail(half):
        sfx = "AB"[half]
        if cfg.stamps == 8: ncs[0] = 0
        stamp(name="att1"); pad("att1")
        cstamp()
        a(f"s_mov_b32 s{S_T2}, {hex(f2u(2.0**120))}\ns_mov_b32 s{S_T3}, {hex(f2u(2.0**-106))}")
        a(f"s_add_u32 s{S_T1}, s{S_OLD}, 4096\ns_mov_b32 s{S_SPIN}, 0\ns_lshl_b32 s{S_T0}, s{S_W}, 13\ns_mov_b32 m0, s{S_T0}")
        a.nop(6)
        a(f"""
        v_rcp_f32 v10, v{OO+8}
        v_maximum3_f32 v8, abs(v{OO}), abs(v{OO+1}), abs(v{OO+2})
        v_maximum3_f32 v9, abs(v{OO+3}), abs(v{OO+4}), abs(v{OO+5})
        v_maximum3_f32 v8, abs(v{OO+6}), abs(v{OO+7}), v8
        v_maximum3_f32 v6, v8, v9, v{OO+8}
        v_max_f32 v8, v8, v9
        v_cmp_ngt_f32 vcc, s{S_T2}, v6
        v_cmp_gt_f32 {sr(S_EX,2)}, s{S_T3}, v8
        v_mov_b32 v11, v10
        s_or_b64 vcc, vcc, {sr(S_EX,2)}
        """)
        a("s_branch L_fb" if cfg.force_fb else "s_nop 0" if cfg.ab else "s_cbranch_scc1 L_fb")
        normalize()
        a.label(f"L_ost{sfx}")
        a(f"buffer_store_dwordx4 v[12:15], v{V_L16}, {sr(R_WS,4)}, s{S_OST} offen sc1")
        cstamp()
        if half == 0:
            for l in wo_rd[cfg.n_wo63:]: a(l)
        for i in range(32): a(f"ds_write_addtid_b32 v{YY+i} offset:{32768 + 256*i}")
        cstamp()
        a(f"""
        v_xor_b32 v5, 16, v{V_GA}
        v_add_u32 v6, 0x10000, v{V_GA}
        v_add_u32 v7, 0x10000, v5
        s_mov_b32 s{S_EX}, 0xff00ff00
        s_mov_b32 s{S_EX+1}, 0xff00ff00
        s_mov_b64 exec, {sr(S_EX,2)}
        v_swap_b32 v{V_XR}, v{V_XR+2}
        v_swap_b32 v{V_XR+1}, v{V_XR+3}
        s_mov_b64 exec, -1
        """)
        for i in range(4): a(f"v_lshlrev_b32 v{XU+2*i}, 16, v{V_XR+i}\nv_and_b32 v{XU+2*i+1}, 0xffff0000, v{V_XR+i}")
        for i in range(0, 32, 2): a(f"v_mov_b64 {vr(SS+i,2)}, 0")
        a("s_waitcnt lgkmcnt(0)\ns_barrier")
        if half: a(f"s_add_u32 m0, s{S_T0}, 7940")
        cstamp()
        yr = [f"ds_read_b128 {vr(YY+8*p+4*e,4)}, v{((V_GA, 5), (6, 7))[p >> 1][e]} offset:{(32768 + 16384*p) & 0xffff}" for p in range(4) for e in range(2)]
        G = ["s_waitcnt lgkmcnt(0)"]
        for p in (1, 2, 3): G += [f"v_add_f32 v{YY+i}, v{YY+i}, v{YY+8*p+i}" for i in range(8)]
        G += [f"v_mul_f32 v{TT+i}, {hex(f2u(-math.log2(math.e)))}, v{YY+i}" for i in range(8)]
        G += [f"v_exp_f32 v{TT+i}, v{TT+i}" for i in range(8)]
        G += [f"v_add_f32 v{TT+i}, 1.0, v{TT+i}" for i in range(8)]
        G += [f"v_rcp_f32 v{TT+i}, v{TT+i}" for i in range(8)]
        G += [f"v_mul_f32 v{YY+i}, v{YY+i}, v{TT+i}" for i in range(8)]
        if half:
            for l in yr: a(l)
            for j in range(cfg.n_b0): a(oload(j))
            for l in G[:cfg.n_gb]: a(l)
            G = G[cfg.n_gb:]
            for j in range(cfg.n_b0, 8):
                a(oload(j))
                for l in G[:cfg.n_gp]: a(l)
                G = G[cfg.n_gp:]
            for l in G: a(l)
        elif cfg.odelay:
            for l in yr + G[:cfg.odelay]: a(l)
            G = G[cfg.odelay:]
            for j in range(8): a(oload(j))
        else:
            for j in range(8): a(oload(j)); a(yr[j])
        cstamp()
        def nxt(j): return f"s_waitcnt vmcnt({7-j})\n" + chk(j) + f"\ns_movk_i32 s{S_CNT}, {(0xff << j) & 0xff}"
        a(nxt(0))
        for j in range(8):
            a(f"s_cbranch_vccnz L_omiss{sfx}")
            if j in (0, 3, 7): cstamp()
            a(mfma32(SS, OF + 4*j, WOF[2*j], SS))
            if j < 7: a(nxt(j + 1))
            a(mfma32(SS + 16, OF + 4*j, WOF[2*j + 1], SS + 16))
        late[0] = f"L_omiss{sfx}:\ns_call_b64 {sr(S_RET,2)}, L_ofix\ns_branch L_ook{sfx}\n" + late[0]
        a.label(f"L_ook{sfx}")
        a.nop(11)
        for i in range(32): a(f"ds_write_addtid_b32 v{SS+i} offset:{(57596 if half else 0) + 256*i}")
        if not half:
            for l in G: a(l)
    far("L_attA")
    n0 = nst[0]
    attention(0)
    tail(0)
    a("s_branch L_fin2")
    far("L_attB")
    nst[0] = n0
    attention(1)
    tail(1)
    far("L_fin2", True)
    a("s_waitcnt lgkmcnt(0)\ns_barrier")
    if cfg.stamps == 6: stamp()
    cstamp()
    for p in range(4):
        for e in range(2): a(f"ds_read_b128 {vr(OF+8*p+4*e,4)}, v{((V_GA, 5), (6, 7))[p >> 1][e]} offset:{16384*p}")
    a("s_waitcnt lgkmcnt(0)" if cfg.stamps == 8 else "s_waitcnt lgkmcnt(4)")
    for i in range(0, 8, 2): a(f"v_pk_add_f32 {vr(OF+i,2)}, {vr(OF+i,2)}, {vr(OF+8+i,2)}")
    a("s_waitcnt lgkmcnt(0)")
    for i in range(0, 8, 2): a(f"v_pk_add_f32 {vr(OF+16+i,2)}, {vr(OF+16+i,2)}, {vr(OF+24+i,2)}")
    for i in range(0, 8, 2): a(f"v_pk_add_f32 {vr(OF+i,2)}, {vr(OF+i,2)}, {vr(OF+16+i,2)}")
    for i in range(0, 8, 2): a(f"v_pk_fma_f32 {vr(OF+i,2)}, {vr(OF+i,2)}, {vr(YY+i,2)}, {vr(XU+i,2)}")
    for i in range(4): a(f"v_cvt_pk_bf16_f32 v{12+i}, v{OF+2*i}, v{OF+2*i+1}")
    a(f"s_mov_b64 exec, {sr(S_EX,2)}\nv_swap_b32 v12, v14\nv_swap_b32 v13, v15\ns_mov_b64 exec, -1")
    a(f"buffer_store_dwordx4 v[12:15], v{V_FO}, {sr(R_OUT,4)}, 0 offen {cfg.oflag}")
    if cfg.stamps == 6: stamp()
    cstamp()
    if cfg.stamps:
        a("s_waitcnt vmcnt(0)")
        cstamp()
        stamp(True)
        for i in range(ncs[0]): a(f"v_writelane_b32 v{V_STAMP}, s{CSR[i]}, {40+i}")
        if cfg.stamps == 10:
            for i in range(6): a(f"v_writelane_b32 v{V_STAMP}, s{[32, 34, 92, 94, 96, 98][i]}, {40+i}")
        if cfg.stamps in (5, 6): a(f"v_writelane_b32 v{V_STAMP}, s{S_SPIN}, 63")
        a(f"s_lshl_b32 s{S_T0}, s2, 3\ns_add_u32 s{S_T0}, s{S_T0}, s{S_W}\ns_lshl_b32 s{S_T0}, s{S_T0}, 8\ns_add_u32 s{S_T0}, s{S_T0}, {WS_DBG}")
        a(f"v_lshlrev_b32 v2, 2, v{V_LANE}\nbuffer_store_dword v{V_STAMP}, v2, {sr(R_WS,4)}, s{S_T0} offen")
        if cfg.stamps == 3:
            a(f"s_add_u32 s{S_T0}, s{S_T0}, 0x80000\nbuffer_store_dword v253, v2, {sr(R_WS,4)}, s{S_T0} offen\ns_add_u32 s{S_T0}, s{S_T0}, 0x80000\nbuffer_store_dword v254, v2, {sr(R_WS,4)}, s{S_T0} offen")
    pad("end")
    a.label("L_end")
    a("s_endpgm")
    a(late[0])
    if cfg.brks is None: brk("x")
    for l in late[1:]: a(l)
    a.label("L_fb")
    a(f"v_mov_b32 v8, 0xff800000\ns_mov_b32 s{S_CNT}, {WS_KV}")
    a(f"v_subrev_u32 v10, {L_KV}, v{V_VA}")
    a.label("L_fb1")
    a(f"buffer_load_dwordx4 {vr(KF,4)}, v{V_L16}, {sr(R_WS,4)}, s{S_CNT} offen sc1\ns_waitcnt vmcnt(0)")
    a(mfma32(S0, KF, QF, None)); a.nop(12)
    for l in maxtree(S0, 8, init=True): a(l)
    a(f"s_add_u32 s{S_CNT}, s{S_CNT}, 2048\ns_cmp_lt_u32 s{S_CNT}, {WS_KV + 64*2048}\ns_cbranch_scc1 L_fb1")
    setC(8, 0.0)
    for i in range(16): a(f"v_mov_b32 v{OO+i}, 0")
    a(f"s_mov_b32 s{S_CNT}, {WS_KV}")
    a.label("L_fb2")
    a(f"buffer_load_dwordx4 {vr(KF,4)}, v{V_L16}, {sr(R_WS,4)}, s{S_CNT} offen sc1")
    a(f"s_mov_b64 exec, {sr(S_VM,2)}")
    a(f"buffer_load_dwordx4 {vr(VF,4)}, v10, {sr(R_WS,4)}, s{S_CNT} offen sc1")
    a(f"buffer_load_dwordx4 {vr(VF+4,4)}, v10, {sr(R_WS,4)}, s{S_CNT} offen offset:512 sc1")
    a("s_mov_b64 exec, -1\ns_waitcnt vmcnt(0)")
    a(mfma32(S0, KF, QF, CC)); a.nop(12)
    for i in range(16): a(f"v_exp_f32 v{S0+i}, v{S0+i}")
    a.nop(2)
    a(smf(OO, VF, S0)); a(smf(OO, VF + 4, S0 + 8))
    a(f"s_add_u32 s{S_CNT}, s{S_CNT}, 2048\ns_cmp_lt_u32 s{S_CNT}, {WS_KV + 64*2048}\ns_cbranch_scc1 L_fb2")
    a.nop(12)
    a(f"v_rcp_f32 v10, v{OO+8}\ns_nop 0\nv_mov_b32 v11, v10")
    normalize()
    for i in range(4): a(f"v_min_u32 v{12+i}, -2, v{12+i}")
    a(f"s_cmp_ge_u32 s{S_W}, 4\ns_cbranch_scc1 L_ostB\ns_branch L_ostA")
    a.label("L_code_end")
    return a

HEADER = open(f"cdna_kernels/{NAME}.s.ref").read().split("; Override launch")[0]
def wrap(a):
    s = HEADER + "; @launch grid=(256,1,1) block=(512,1,1) lds=163840\n"
    s += f""".amdgcn_target "amdgcn-amd-amdhsa--gfx950"
.text
.globl {NAME}_kernel
.p2align 8
.type {NAME}_kernel,@function
{NAME}_kernel:
"""
    s += a.text()
    s += f""".section .rodata,"a"
.p2align 6
.amdhsa_kernel {NAME}_kernel
  .amdhsa_next_free_vgpr 256
  .amdhsa_next_free_sgpr 100
  .amdhsa_accum_offset 256
  .amdhsa_group_segment_fixed_size 0
  .amdhsa_kernarg_size 96
  .amdhsa_user_sgpr_count 2
  .amdhsa_user_sgpr_kernarg_segment_ptr 1
  .amdhsa_system_sgpr_workgroup_id_x 1
.end_amdhsa_kernel
"""
    return s

if __name__ == "__main__":
    cfg = Cfg()
    out = sys.argv[1]
    for kv in sys.argv[2:]:
        k, v = kv.split("=")
        setattr(cfg, k, eval(v))
    g0 = gen
    def gen(cfg):
        a = g0(cfg)
        if 'E' in cfg.ab or 'S' in cfg.ab:
            n = next(i for i, l in enumerate(a.lines) if l.startswith("buffer_atomic_add"))
            for i in range(n):
                if a.lines[i].startswith("buffer_store") or ('E' in cfg.ab and a.lines[i].startswith("buffer_")): a.lines[i] = "s_nop 0"
            h = a.lines.index("L_helper:")
            k = 0
            for i in range(h, len(a.lines)):
                if a.lines[i].startswith("buffer_store") and k < 3:
                    a.lines[i] = f"buffer_load_dword v9, off, {sr(R_X,4)}, 0"; k += 1
        return a
    a = gen(cfg)
    if cfg.pages:
        import subprocess, re
        open("_p1.s", "w").write(wrap(a))
        subprocess.run(["clang", "-x", "assembler", "-target", "amdgcn-amd-amdhsa", "-mcpu=gfx950", "-c", "_p1.s", "-o", "_p1.o"], check=True)
        t = subprocess.run(["llvm-objdump", "-t", "_p1.o"], capture_output=True, text=True).stdout
        pts = sorted((int(m.group(1), 16), m.group(2), int(m.group(3))) for m in re.finditer(r"^([0-9a-f]+) .* L_brk_(\w)_(\d+)$", t, re.M))
        brks = {}; start = -0x300
        for (ad, k, i), (nx, _, _) in zip(pts, pts[1:]):
            if nx - start > 4096 - 112:
                brks[i] = k; start = ad
        cfg.brks = brks
        a = gen(cfg)
    else:
        cfg.brks = {}
        a = gen(cfg)
    errs = check(a.lines)
    for e in errs: print("HAZARD need %d have %d:\n   %s\n   %s" % (e[2], e[3], e[0], e[1]))
    open(out, "w").write(wrap(a))
    print("wrote", out, len(a.lines), "lines", len(errs), "hazards")
```

```python
import sys, math
from asmlib import Asm, vr, sr, f2u, check

NAME = "recurrent_scan__grouped_kv_mqa__glu_gated_geglu__prompt"

class Cfg:
    stamps = False
    stop = None
    force_fb = False
    shift = 101.0
    upd = (5,)
    brks = None
    pages = True
    touch = True
    far = ('L_attA', 'L_attB')
    odelay = 1
    xmap = 0
    krot = 8
    p0 = (4, 6)
    cs_in = False
    jitter = 0
    t_out = 0
    cs_late = False
    n_cs0 = 2
    n_csb = 4
    wfix = False
    stub = 's_nop 0\n'
    updm = 1
    updl = True
    cf = ('', '', '')
    nodot = False
    nodma = False
    nord = False
    sizes = [8, 8, 7] + [6]*6 + [5]
    ilen = 6
    g_init = 2
    t_pf = -1
    t_wo = (7, 8, 8, 10, 10, 11, 11, 12)
    t_wd0 = (15, 15, 16, 17)
    t_poll = 16
    bmid = 2
    lh = (1, 2, 3, 3, 4, 5, 6, 6)
    mb = (2, 3, 4, 5, 5, 6, 7, 7)
    dpos = (1, 1, 2, 2, 3, 4)
    hpos = (4, 5, 5, 6)
    hwait = {0: 0, 1: 3}
    t_h0 = (18, 18, 19, 20)
    t_chk = 18
    pbar = 1
    n_csa = 4
    lead0 = 10
    oflag = 'sc1'
    n_wo63 = 6
    nt = ''
    t_code = (7, 43)
    ofast = 0
    olate = 1
    yfirst = True
    n_gb = 1
    n_b0 = 0
    oswap = False
    t_tr = 30
    n_gp = 8
    i_q = 4
    i_qb = 1
    n_poll = 0
    e6 = 0
    pf_first = True
    bp = 0
    g_h = 29
    c_st = (0, 10)
    gpos = 0
    g_tr = 4
    mord = 0
    g_early = True
    mswap = False
    c_arr = 1
    lead = [8, 10, 12, 12, 12, 12]
    n_pre = (2, 4)
    n_fin = (7, 6)
    g_cs = (3, 4, 5, 6)
    g_csc = 9
    bprio = 3
    st_rate = 0.5
    t_flag = 9
    t_kv2 = 6
    m16 = False
    pp = 0
    pos = [(2, 6, 12), (2, 6, 10, 14), (1, 4, 7, 10, 13)]
    pa = 4
    pv = (1, 1)
    ab = ''
    pad = None

WS_KV, WS_ST, WS_FL, WS_CS, WS_O, WS_H, WS_DBG, WS_Q = 0, 0x80000, 0x28000, 0x40000, 0x100000, 0x400000, 0xC00000, 0xE00000
WS_SIZE = 0x1000000
L_X, L_W, L_R = 0, 49152, 147456
L_KV, L_WD, L_WO = 0, 65536, 98304
P_X, P_WQ, P_WK, P_WV, P_WO, P_WG, P_WU, P_WD, P_OUT, P_DBG, P_WS = 4, 6, 8, 10, 12, 16, 18, 20, 22, 24, 26
R_X, R_WKV, R_WD, R_WO, R_OUT, R_DBG, R_WS = 28, 32, 36, 40, 44, 48, 52
S_W, S_RB, S_CB, S_RT64, S_CT8 = 56, 57, 58, 59, 60
S_T16 = 61
S_VM = 62
S_XOFF = 64
S_WOFF = 65
S_HW = 66
S_ONES = 67
S_T0, S_T1, S_T2, S_T3 = 68, 69, 70, 71
S_OST = 72
S_FLG = 73
S_HST = 74
S_KQ, S_RT = 75, 76
S_WDO = 77
S_HLD = 78
S_W4K = 79
S_W2K = 80
S_SPIN = 81
S_WOO = 82
S_OLD = 83
S_EX = 84
S_TS = 86
S_CNT = 88
S_WSTEP = 89
S_TS2 = 90
S_RET = 0
R_W, R_CW = 92, 96
S_H4K = 3
S_HSB = 14
S_M0W = 15
SPIN_MAX = 1 << 18

V_LANE = 1
V_STAMP = 255
V_L16, V_KA, V_WDD, V_VA, V_DA, V_PO, V_FO, V_XR, QF = 208, 209, 210, 211, 212, 214, 215, 216, 220
V_GA = 0

def mfma32(d, a, b, c):
    cs = "0" if c is None else vr(c, 16)
    return f"v_mfma_f32_32x32x16_bf16 {vr(d,16)}, {vr(a,4)}, {vr(b,4)}, {cs}"
V_IDX = 48
def smf(d, a, b):
    return f"v_smfmac_f32_32x32x32_bf16 {vr(d,16)}, {vr(a,4)}, {vr(b,8)}, v{V_IDX}"
def mfma16(d, a, b, c):
    cs = "0" if c is None else vr(c, 4)
    return f"v_mfma_f32_16x16x32_bf16 {vr(d,4)}, {vr(a,4)}, {vr(b,4)}, {cs}"

def gen(cfg):
    a = Asm()
    nst = [0]
    def stamp(final=False, name=None):
        if not cfg.stamps: return
        i = nst[0]; nst[0] += 1
        if cfg.stamps in (8, 9, 10, 11, 12) and i and not final: return
        if cfg.stamps == 7:
            if isinstance(name, int): i = name
            elif final: i = 9
            elif name == "b0": i = 7
            elif name == "g1": i = 8
            elif i: return
        elif isinstance(name, int):
            nst[0] -= 1; return
        if cfg.stamps == 5:
            marks = {"b0": 2, "g1": 3, "att0": 4, "att1": 5}
            if final: i = 1
            elif name in marks: i = marks[name]
            elif i: return
        a(f"s_memrealtime {sr(S_TS,2)}\ns_memtime {sr(S_TS2,2)}\ns_waitcnt lgkmcnt(0)\nv_writelane_b32 v{V_STAMP}, s{S_TS}, {i}\nv_writelane_b32 v{V_STAMP}, s{S_TS2}, {32+i}")
    nbrk = [0]
    def brk(kind):
        i = nbrk[0]; nbrk[0] += 1
        if cfg.brks is None: a.label(f"L_brk_{kind}_{i}")
        elif i in cfg.brks:
            a(f"s_branch L_pg{i}\n.p2align 12\nL_stub{i}:\n" + cfg.stub + f"s_setpc_b64 {sr(S_RET,2)}\nL_pg{i}:")
    FAR = {"L_qt": "e", "L_joinA": "e", "L_attA": "a", "L_attB": "a", "L_fin2": "a"}
    def far(label, fall=False):
        if label in cfg.far:
            if fall: a(f"s_branch {label}")
            a(f".p2align 6\nL_stub{label}:\ns_nop 0\ns_setpc_b64 {sr(S_RET,2)}")
        a.label(label)
    def touch(kinds, first, n, maxn):
        ids = [] if cfg.brks is None else [i for i, k in cfg.brks.items() if k in kinds] + [l for l, k in FAR.items() if k in kinds and l in cfg.far]
        assert len(ids) <= maxn
        for j in range(maxn):
            if j < len(ids) and cfg.touch: a(f"s_cmp_eq_u32 s{S_HW}, {first + j % n}\ns_cbranch_scc0 L_nt{ids[j]}\ns_call_b64 {sr(S_RET,2)}, L_stub{ids[j]}\nL_nt{ids[j]}:")
            elif cfg.brks is None: a("s_nop 0\ns_nop 0\ns_nop 0")
    ncs = [0]
    CSR = [4, 6, 8, 10, 12] + list(range(16, 28, 2)) + [32, 34, 92, 94, 96, 98, 48]
    def cstamp(mode=8):
        if cfg.stamps != mode: return
        a(f"s_memtime {sr(CSR[ncs[0]], 2)}"); ncs[0] += 1
    def c12(k):
        if cfg.stamps == 12: a(f"s_memtime {sr([32, 34, 92, 94, 96, 98][k], 2)}\ns_waitcnt lgkmcnt(0)")
    def pad(pt):
        if not cfg.pad or cfg.pad[0] != pt: return
        if len(cfg.pad) > 2:
            inv = cfg.pad[2] == 2
            a(f"s_and_b32 s{S_T0}, s{S_TS}, 0x7fffffff")
            if inv: a(f"s_not_b32 s{S_T0}, s{S_T0}")
            a(f"v_mov_b32 v2, s{S_T0}\ns_mov_b64 exec, 1\nbuffer_atomic_umax v2, off, {sr(R_DBG,4)}, 0 offset:4 sc1\ns_mov_b64 exec, -1")
            a(f"L_pad0:\ns_memrealtime {sr(S_TS2,2)}\ns_waitcnt lgkmcnt(0)\ns_sub_u32 s{S_TS2}, s{S_TS2}, s{S_TS}\ns_cmp_lt_u32 s{S_TS2}, {int(cfg.pad[1]*100) - 1500}\ns_cbranch_scc1 L_pad0")
            a(f"buffer_load_dword v2, off, {sr(R_DBG,4)}, 0 offset:4 sc1\ns_waitcnt vmcnt(0)\nv_readfirstlane_b32 s{S_T0}, v2\ns_nop 3")
            if inv: a(f"s_not_b32 s{S_T0}, s{S_T0}")
            a(f"s_and_b32 s{S_TS}, s{S_TS}, 0x80000000\ns_or_b32 s{S_TS}, s{S_TS}, s{S_T0}")
        a(f"L_pad{len(a.lines)}:\ns_memrealtime {sr(S_TS2,2)}\ns_waitcnt lgkmcnt(0)\ns_sub_u32 s{S_TS2}, s{S_TS2}, s{S_TS}\ns_cmp_lt_u32 s{S_TS2}, {int(cfg.pad[1]*100)}\ns_cbranch_scc1 L_pad{len(a.lines)}")
    def srd(r, p, size):
        a(f"s_mov_b32 s{r}, s{p}\ns_and_b32 s{r+1}, s{p+1}, 0xffff\ns_mov_b32 s{r+2}, {hex(size)}\ns_mov_b32 s{r+3}, 0x20000")

    a(f"s_cmp_ge_u32 s2, 256\ns_cbranch_scc1 L_end")
    if cfg.pad: a(f"s_memrealtime {sr(S_TS,2)}")
    a(f"s_load_dwordx16 s[4:19], s[0:1], 0\ns_load_dwordx8 s[20:27], s[0:1], 64")
    if cfg.stamps:
        a(f"v_mov_b32 v{V_STAMP}, 0")
    a(f"v_lshrrev_b32 v2, 6, v0\nv_and_b32 v{V_LANE}, 63, v0")
    a(f"s_getpc_b64 {sr(S_EX,2)}")
    a.label("L_pc")
    a(f"""
    v_readfirstlane_b32 s{S_W}, v2
    s_and_b32 s{S_T0}, s2, 0xf8
    v_add_u32 v2, s{S_T0}, v2
    v_lshl_add_u32 v2, v2, 1, v{V_LANE}
    v_lshlrev_b32 v252, 7, v2
    v_min_u32 v252, L_code_end-L_pc-4, v252
    v_mov_b32 v253, 0
    v_lshl_add_u64 v[252:253], v[252:253], 0, {sr(S_EX,2)}
    s_mov_b64 exec, 3
    global_load_dword v9, v[252:253], off
    s_mov_b64 exec, -1
    """)
    a(f"""
    s_and_b32 s{S_T0}, s2, 7
    s_lshr_b32 s{S_T1}, s2, 3
    s_and_b32 s{S_CT8}, s{S_T1}, 7
    """)
    if cfg.xmap == 1:
        a(f"""
        s_and_b32 s{S_RB}, s{S_T1}, 15
        s_lshr_b32 s{S_T2}, s2, 7
        s_lshl_b32 s{S_CB}, s{S_T0}, 1
        s_add_u32 s{S_CB}, s{S_CB}, s{S_T2}
        s_lshr_b32 s{S_T1}, s{S_T1}, 3
        """)
    elif cfg.xmap == 2:
        a(f"""
        s_and_b32 s{S_T2}, s{S_T0}, 3
        s_lshl_b32 s{S_T2}, s{S_T2}, 2
        s_and_b32 s{S_RB}, s{S_T1}, 3
        s_add_u32 s{S_RB}, s{S_RB}, s{S_T2}
        s_and_b32 s{S_T2}, s{S_T0}, 4
        s_lshl_b32 s{S_T2}, s{S_T2}, 1
        s_lshr_b32 s{S_CB}, s{S_T1}, 2
        s_add_u32 s{S_CB}, s{S_CB}, s{S_T2}
        s_lshr_b32 s{S_T1}, s{S_T1}, 3
        """)
    else:
        a(f"""
        s_and_b32 s{S_T2}, s{S_T0}, 1
        s_lshl_b32 s{S_T2}, s{S_T2}, 3
        s_add_u32 s{S_RB}, s{S_T2}, s{S_CT8}
        s_lshr_b32 s{S_T1}, s{S_T1}, 3
        s_lshr_b32 s{S_T2}, s{S_T0}, 1
        s_lshl_b32 s{S_T2}, s{S_T2}, 2
        s_add_u32 s{S_CB}, s{S_T2}, s{S_T1}
        """)
    a(f"""
    s_lshl_b32 s{S_T2}, s{S_T0}, 2
    s_add_u32 s{S_RT64}, s{S_T2}, s{S_T1}
    s_and_b32 s{S_HW}, s{S_W}, 3
    s_lshl_b32 s{S_H4K}, s{S_HW}, 12
    v_lshlrev_b32 v{V_L16}, 4, v{V_LANE}
    s_mov_b32 s{R_X+2}, 0x200000
    s_mov_b32 s{R_X+3}, 0x20000
    s_cmp_ge_u32 s{S_W}, 4
    s_cbranch_scc1 L_helper
    """)

    sizes = cfg.sizes
    assert sum(sizes) == 64
    starts = [sum(sizes[:i]) for i in range(len(sizes))]
    S0, S1, PP, OO, CC, KF, VF = 16, 32, 48, 64, 80, 100, 108
    YY, HF, DF = 128, 160, 192
    HO = 160
    V_OA = 62
    WOF = [50, 54, 58, 96, 124] + list(range(224, 252, 4)) + [176, 180, 184, 188]
    wo_rd = [f"ds_read_b64_tr_b16 {vr(WOF[2*j+ct] + 2*t,2)}, v{V_OA+ct} offset:{j*2048 + t*512}" for j in range(8) for ct in range(2) for t in range(2)]
    def kv_off(t):
        c = max(i for i in range(len(starts)) if starts[i] <= t)
        return ((c + 1) % 3) * 16384 + (t - starts[c]) * 2048
    qload = f"buffer_load_dwordx4 {vr(QF,4)}, v{V_L16}, {sr(R_WS,4)}, s{S_T2} offen sc1"

    XS = [2, 0, 1, 2, 0, 1, 2, 0]
    L_PX = L_X + XS[2]*16384
    def setup_ids():
        a(f"""
        s_lshr_b32 s{S_KQ}, s{S_W}, 1
        s_and_b32 s{S_RT}, s{S_W}, 1
        s_lshl_b32 s{S_T2}, s{S_RT64}, 1
        s_add_u32 s{S_T2}, s{S_T2}, s{S_RT}
        s_lshl_b32 s{S_T0}, s{S_T2}, 3
        s_add_u32 s{S_T0}, s{S_T0}, s{S_CT8}
        s_lshl_b32 s{S_T0}, s{S_T0}, 2
        s_add_u32 s{S_T0}, s{S_T0}, s{S_KQ}
        s_lshl_b32 s{S_T0}, s{S_T0}, 10
        s_add_u32 s{S_OST}, s{S_T0}, {WS_O}
        s_lshl_b32 s{S_T0}, s2, 7
        s_lshl_b32 s{S_T1}, s{S_W}, 2
        s_add_u32 s{S_T0}, s{S_T0}, s{S_T1}
        s_add_u32 s{S_FLG}, s{S_T0}, {WS_FL}
        """)
    def common_setup():
        srd(R_WD, P_WD, 1792 * 1024)
        srd(R_WO, P_WO, 512 * 1024)
        srd(R_OUT, P_OUT, 0x200000)
        a(f"""
        s_lshl_b32 s{S_W4K}, s{S_W}, 12
        s_lshl_b32 s{S_W2K}, s{S_W}, 11
        s_mov_b32 s{S_VM}, 0xffff
        s_mov_b32 s{S_VM+1}, 0xffff
        s_lshl_b32 s{S_T2}, s{S_RT64}, 1
        s_add_u32 s{S_T2}, s{S_T2}, s{S_RT}
        s_mul_i32 s{S_T0}, s{S_KQ}, {448*1024}
        s_lshl_b32 s{S_T1}, s{S_RT}, 15
        s_add_u32 s{S_T0}, s{S_T0}, s{S_T1}
        s_lshl_b32 s{S_T1}, s{S_CT8}, 7
        s_add_u32 s{S_WDO}, s{S_T0}, s{S_T1}
        s_lshl_b32 s{S_T0}, s{S_W}, 15
        s_add_u32 s{S_WOO}, s{S_T0}, s{S_T1}
        s_and_b32 s{S_T0}, s{S_CT8}, {1 if cfg.oswap else 0}
        s_lshl_b32 s{S_T16}, s{S_T0}, 18
        s_add_u32 s{S_WOO}, s{S_WOO}, s{S_T16}
        s_mul_i32 s{S_T0}, s{S_T2}, 112
        s_mul_i32 s{S_T3}, s{S_KQ}, 28
        s_add_u32 s{S_T0}, s{S_T0}, s{S_T3}
        s_lshl_b32 s{S_T0}, s{S_T0}, 10
        s_add_u32 s{S_HLD}, s{S_T0}, {WS_H}
        s_lshl_b32 s{S_T0}, s{S_T2}, 15
        s_lshl_b32 s{S_T3}, s{S_KQ}, 13
        s_add_u32 s{S_T3}, s{S_T0}, s{S_T3}
        s_lshr_b32 s{S_T0}, s{S_T16}, 4
        s_xor_b32 s{S_OLD}, s{S_T3}, s{S_T0}
        s_add_u32 s{S_OLD}, s{S_OLD}, {WS_O}
        s_add_u32 s{S_T0}, s{S_T3}, s{S_T1}
        v_lshrrev_b32 v3, 5, v{V_LANE}
        v_bfe_u32 v5, v{V_LANE}, 3, 1
        v_lshl_add_u32 v2, v3, 1, v5
        v_bfe_u32 v7, v{V_LANE}, 4, 1
        v_lshl_add_u32 v4, v7, 2, v2
        v_and_b32 v6, 7, v{V_LANE}
        v_lshlrev_b32 v8, 4, v6
        v_lshl_add_u32 v4, v4, 10, v8
        v_add_u32 v{V_FO}, s{S_T0}, v4
        v_lshlrev_b32 v2, 8, v2
        v_lshl_add_u32 v2, v7, 7, v2
        v_lshl_add_u32 v2, v5, 4, v2
        v_and_b32 v4, 3, v6
        v_lshl_add_u32 v2, v4, 5, v2
        v_lshrrev_b32 v4, 2, v6
        v_lshl_add_u32 v2, v4, 12, v2
        s_lshl_b32 s{S_T0}, s{S_RT}, 13
        s_lshl_b32 s{S_T1}, s{S_KQ}, 10
        s_add_u32 s{S_T0}, s{S_T0}, s{S_T1}
        v_add_u32 v{V_GA}, s{S_T0}, v2
        v_add_u32 v{V_KA}, {L_KV}, v{V_L16}
        v_and_b32 v2, 15, v{V_LANE}
        v_lshl_add_u32 v2, v3, 4, v2
        v_lshlrev_b32 v2, 4, v2
        v_add_u32 v{V_VA}, {L_KV + 1024}, v2
        v_lshrrev_b32 v5, 3, v{V_LANE}
        v_and_b32 v6, 7, v{V_LANE}
        v_bfe_u32 v7, v{V_LANE}, 4, 1
        v_lshlrev_b32 v8, 2, v7
        v_xor_b32 v6, v6, v8
        v_lshlrev_b32 v6, 4, v6
        v_lshl_add_u32 v{V_WDD}, v5, 10, v6
        v_and_b32 v2, 1, v{V_LANE}
        v_bfe_u32 v4, v{V_LANE}, 1, 1
        v_lshl_add_u32 v2, v2, 1, v4
        v_bfe_u32 v5, v{V_LANE}, 2, 2
        v_lshl_add_u32 v4, v3, 3, v5
        v_lshlrev_b32 v4, 7, v4
        v_and_b32 v6, 2, v5
        v_xor_b32 v6, v6, v7
        v_lshl_add_u32 v6, v6, 5, v4
        v_and_b32 v8, 3, v{V_LANE}
        v_lshl_add_u32 v6, v8, 3, v6
        v_lshl_add_u32 v4, v2, 3, v4
        s_lshl_b32 s{S_T0}, s{S_KQ}, 13
        s_add_u32 s{S_T0}, s{S_T0}, {L_WD}
        v_add_u32 v{V_DA}, s{S_T0}, v6
        v_xor_b32 v{V_DA+1}, 64, v{V_DA}
        """)
        a(f"""
        s_lshr_b32 s{S_T0}, s{S_RT64}, 1
        s_lshl_b32 s{S_T0}, s{S_T0}, 3
        s_lshl_b32 s{S_T1}, s{S_KQ}, 1
        s_add_u32 s{S_T0}, s{S_T0}, s{S_T1}
        s_lshl_b32 s{S_T0}, s{S_T0}, 7
        v_and_b32 v2, 3, v{V_LANE}
        v_lshlrev_b32 v6, 2, v2
        v_and_b32 v8, 1, v5
        v_lshl_add_u32 v6, v8, 14, v6
        v_lshrrev_b32 v8, 1, v5
        v_lshl_add_u32 v6, v8, 7, v6
        """ if cfg.xmap == 1 else f"""
        s_lshr_b32 s{S_T0}, s{S_RT64}, 3
        s_and_b32 s{S_T1}, s{S_KQ}, 2
        s_lshl_b32 s{S_T1}, s{S_T1}, 1
        s_add_u32 s{S_T0}, s{S_T0}, s{S_T1}
        s_bfe_u32 s{S_T2}, s{S_RT64}, 0x20001
        s_lshl_b32 s{S_T2}, s{S_T2}, 3
        s_add_u32 s{S_T0}, s{S_T0}, s{S_T2}
        s_and_b32 s{S_T1}, s{S_KQ}, 1
        s_lshl_b32 s{S_T1}, s{S_T1}, 7
        s_add_u32 s{S_T0}, s{S_T0}, s{S_T1}
        s_lshl_b32 s{S_T0}, s{S_T0}, 7
        s_lshl_b32 s{S_T1}, s{S_KQ}, 1
        v_and_b32 v2, 3, v{V_LANE}
        v_lshlrev_b32 v6, 2, v2
        v_lshl_add_u32 v6, v5, 12, v6
        """ if cfg.xmap == 2 else f"""
        s_lshr_b32 s{S_T0}, s{S_RT64}, 4
        s_lshl_b32 s{S_T1}, s{S_KQ}, 1
        s_add_u32 s{S_T0}, s{S_T0}, s{S_T1}
        s_bfe_u32 s{S_T2}, s{S_RT64}, 0x30001
        s_lshl_b32 s{S_T2}, s{S_T2}, 3
        s_add_u32 s{S_T0}, s{S_T0}, s{S_T2}
        s_lshl_b32 s{S_T0}, s{S_T0}, 7
        v_and_b32 v2, 3, v{V_LANE}
        v_lshlrev_b32 v6, 2, v2
        v_lshl_add_u32 v6, v5, 13, v6
        """)
        a(f"""
        v_add_u32 v6, s{S_T0}, v6
        s_lshr_b32 s{S_T0}, s{S_T16}, 16
        s_xor_b32 s{S_T1}, s{S_T1}, s{S_T0}
        s_and_b32 s{S_T0}, s2, 0xc7
        s_lshl_b32 s{S_T1}, s{S_T1}, 3
        s_add_u32 s{S_T0}, s{S_T0}, s{S_T1}
        s_lshl_b32 s{S_T0}, s{S_T0}, 7
        s_lshl_b32 s{S_T1}, s{S_RT}, 2
        s_add_u32 s{S_T0}, s{S_T0}, s{S_T1}
        v_and_b32 v8, 1, v5
        v_lshlrev_b32 v8, 10, v8
        v_lshl_add_u32 v8, v2, 3, v8
        v_cmp_gt_u32 vcc, 16, v{V_LANE}
        v_add_u32 v8, s{S_T0}, v8
        s_nop 0
        v_cndmask_b32 v{V_PO}, v8, v6, vcc
        """)

    def img_params(simg, sstride, soff):
        a(f"""
        s_lshr_b32 s{S_T0}, s{S_CB}, 2
        s_and_b32 s{S_T1}, s{S_CB}, 3
        s_mul_i32 s{soff}, s{S_T0}, 896
        s_lshl_b32 s{S_T2}, s{S_T1}, 8
        s_add_u32 s{soff}, s{soff}, s{S_T2}
        s_lshr_b32 s{S_T2}, s{simg}, 1
        s_lshl_b32 s{S_T1}, s{S_T1}, 1
        s_add_u32 s{S_T1}, s{S_T1}, s{S_T2}
        s_lshl_b32 s{S_T2}, s{S_T2}, 7
        s_add_u32 s{soff}, s{soff}, s{S_T2}
        s_lshl_b32 s{S_T0}, s{S_T0}, 1
        s_and_b32 s{S_T2}, s{simg}, 1
        s_add_u32 s{S_T0}, s{S_T0}, s{S_T2}
        s_lshl_b32 s{S_T0}, s{S_T0}, 7
        s_movk_i32 s{sstride}, 3584
        s_cmp_eq_u32 s{S_T1}, 7
        s_cselect_b32 s{soff}, s{S_T0}, s{soff}
        s_cselect_b32 s{sstride}, 1024, s{sstride}
        """)
    def img_srd(r, sstride):
        a(f"""
        s_cmp_eq_u32 s{S_T2}, 0
        s_cselect_b32 s{r}, s{P_WG}, s{P_WU}
        s_cselect_b32 s{r+1}, s{P_WG+1}, s{P_WU+1}
        s_cmp_eq_u32 s{S_T1}, 7
        s_cselect_b32 s{r}, s{P_WQ}, s{r}
        s_cselect_b32 s{r+1}, s{P_WQ+1}, s{r+1}
        s_and_b32 s{r+1}, s{r+1}, 0xffff
        s_lshl_b32 s{r+2}, s{sstride}, 9
        s_mov_b32 s{r+3}, 0x20000
        """)

    ACC, XF, WF, V_XA, V_WR = 16, 144, 176, 248, 250
    RWP, RWQ, RA = 216, 232, 2
    L_RA = L_W + 8192
    def acc(ti, rt): return ACC + 64*ti + 16*rt
    KG = 2.0 * math.sqrt(2.0 / math.pi) * math.log2(math.e)
    a('; ==== waves 0..3, start: K or V tile of 16 rows (LayerNorm folded in), row statistics, share of the W column sums ====')
    assert cfg.krot == 8 and cfg.g_init in (0, 2)
    CL, CSUM = 16, 40
    a(f"""
    v_and_b32 v5, 15, v{V_LANE}
    v_lshrrev_b32 v6, 4, v{V_LANE}
    v_lshrrev_b32 v7, 3, v{V_LANE}
    v_and_b32 v4, 7, v{V_LANE}
    s_lshl_b32 s{S_T16}, s{S_RB}, 3
    s_lshr_b32 s{S_T2}, s{S_CB}, 1
    s_add_u32 s{S_T16}, s{S_T16}, s{S_T2}
    s_cmp_lg_u32 s{S_HW}, 0
    s_cbranch_scc1 L_csld
    v_xor_b32 v2, v6, v4
    v_lshlrev_b32 v2, 4, v2
    v_lshl_add_u32 v132, v7, 10, v2
    v_xor_b32 v133, 64, v132
    v_add_u32 v133, {8192-1024}, v133
    s_lshl_b32 s{S_XOFF}, s{S_T16}, 14
    s_mov_b32 s{R_WKV+2}, 0x4000
    s_mov_b32 s{R_WKV+3}, 0x20000
    s_mov_b32 m0, {L_PX}
    s_and_b32 s{S_T3}, s{S_CB}, 1
    s_waitcnt lgkmcnt(0)
    """)
    stamp()
    a(f"s_mov_b32 s{R_X}, s{P_X}\ns_and_b32 s{R_X+1}, s{P_X+1}, 0xffff")
    for gq in range(4):
        for kb in (2*gq, 2*gq + 1):
            if kb: a(f"s_mov_b32 m0, {L_PX + 2048*kb}\ns_add_u32 s{S_XOFF}, s{S_XOFF}, 128")
            a(f"buffer_load_dwordx4 v132, {sr(R_X,4)}, s{S_XOFF} offen lds\nbuffer_load_dwordx4 v133, {sr(R_X,4)}, s{S_XOFF} offen offset:1024 lds")
        if gq == 0:
            a(f"s_cmp_eq_u32 s{S_T3}, 0\ns_cselect_b32 s{R_WKV}, s{P_WK}, s{P_WV}\ns_cselect_b32 s{R_WKV+1}, s{P_WK+1}, s{P_WV+1}\ns_and_b32 s{R_WKV+1}, s{R_WKV+1}, 0xffff")
        a(f"s_mov_b32 m0, {L_R + 4096*gq}\ns_movk_i32 s{S_T0}, {4096*gq}")
        for e in range(4): a(f"buffer_load_dwordx4 v{V_L16}, {sr(R_WKV,4)}, s{S_T0} offen offset:{1024*e} lds")
        if cfg.p0 and gq + 1 == cfg.p0[0]:
            stamp(name=1); a("s_barrier"); stamp(name=2)
    n_ool = len(a.lines)
    if cfg.cs_in: a("s_branch L_ld_done")
    a.label("L_csld")
    a(f"s_and_b32 s{S_CNT}, s{S_RB}, 3")
    img_params(S_CNT, S_WSTEP, S_WOFF)
    a(f"""
    s_and_b32 s{S_T0}, s{S_RB}, 4
    s_and_b32 s{S_T3}, s{S_RB}, 8
    s_lshl_b32 s{S_T3}, s{S_T3}, 2
    s_add_u32 s{S_T0}, s{S_T0}, s{S_T3}
    s_lshl_b32 s{S_T0}, s{S_T0}, 3
    s_mul_i32 s{S_T0}, s{S_T0}, s{S_WSTEP}
    s_add_u32 s{S_WOFF}, s{S_T0}, s{S_WOFF}
    v_mul_u32_u24 v8, s{S_WSTEP}, v7
    v_lshl_add_u32 v219, v4, 4, v8
    s_waitcnt lgkmcnt(0)
    """)
    nst[0] = 0
    stamp()
    a(f"s_mov_b32 s{R_X}, s{P_X}\ns_and_b32 s{R_X+1}, s{P_X+1}, 0xffff")
    img_srd(R_CW, S_WSTEP)
    a(f"s_lshl_b32 s{S_WSTEP}, s{S_WSTEP}, 3")
    def csload(i):
        t = (f"s_add_u32 s{S_T0}, s{S_HW}, {3*i - 1}\ns_and_b32 s{S_T1}, s{S_T0}, 28\ns_add_u32 s{S_T1}, s{S_T1}, s{S_T0}\ns_mul_i32 s{S_T1}, s{S_T1}, s{S_WSTEP}\ns_add_u32 s{S_T1}, s{S_T1}, s{S_WOFF}\n")
        if i == 5: t += f"s_cmp_gt_u32 s{S_T0}, 15\ns_cselect_b32 s{S_T1}, s{R_CW+2}, s{S_T1}\n"
        return t + f"buffer_load_dwordx4 {vr(CL+4*i,4)}, v219, {sr(R_CW,4)}, s{S_T1} offen"
    for i in range(6):
        a(csload(i))
        if cfg.p0 and i + 1 == cfg.p0[1]:
            stamp(name=1); a("s_barrier"); stamp(name=2)
    if not cfg.cs_in:
        a("s_branch L_ld_done")
        ool = a.lines[n_ool:]; del a.lines[n_ool:]
    a.label("L_ld_done")
    a(f"""
    s_mov_b32 s{S_ONES}, 0x3f803f80
    v_lshlrev_b32 v2, 3, v5
    v_lshl_add_u32 v2, v6, 8, v2
    v_add_u32 v130, {L_R}, v2
    v_lshrrev_b32 v3, 1, v5
    v_xor_b32 v3, v3, v6
    v_lshlrev_b32 v3, 4, v3
    v_lshl_add_u32 v3, v5, 7, v3
    v_mov_b32 v{V_XA}, v3
    v_xor_b32 v{V_XA+1}, 64, v3
    v_mov_b32 v223, 1
    v_lshrrev_b32 v3, 5, v{V_LANE}
    v_and_b32 v7, 1, v6
    v_bfe_u32 v8, v{V_LANE}, 2, 2
    v_lshl_add_u32 v4, v6, 3, v8
    v_lshlrev_b32 v4, 7, v4
    v_and_b32 v2, 3, v{V_LANE}
    v_lshl_add_u32 v4, v2, 3, v4
    v_lshrrev_b32 v8, 1, v8
    v_lshl_add_u32 v8, v7, 1, v8
    v_xor_b32 v8, s{S_HW}, v8
    v_lshl_add_u32 v8, v8, 5, v4
    v_add_u32 v{V_WR}, {L_W}, v8
    v_add_u32 v{V_WR+1}, {L_W + 49152}, v8
    s_lshr_b32 s{S_EX}, s{S_T16}, 1
    s_lshl_b32 s{S_EX}, s{S_EX}, 11
    s_and_b32 s{S_T3}, s{S_T16}, 1
    s_and_b32 s{S_T2}, s{S_CB}, 1
    s_cmp_eq_u32 s{S_T2}, 0
    s_cbranch_scc0 L_pubV
    s_lshl_b32 s{S_T3}, s{S_T3}, 8
    s_add_u32 s{S_EX}, s{S_EX}, s{S_T3}
    v_lshl_add_u32 v2, v3, 5, v5
    s_lshl_b32 s{S_EX+1}, s{S_T16}, 10
    s_add_u32 s{S_EX+1}, s{S_EX+1}, {WS_ST}
    s_branch L_pub
    """)
    a.label("L_pubV")
    a(f"""
    s_lshl_b32 s{S_T3}, s{S_T3}, 9
    s_add_u32 s{S_EX}, s{S_EX}, s{S_T3}
    s_add_u32 s{S_EX}, s{S_EX}, 1024
    v_and_b32 v2, 3, v5
    v_bfe_u32 v4, v5, 2, 1
    v_lshl_add_u32 v2, v4, 3, v2
    v_bfe_u32 v4, v5, 3, 1
    v_lshl_add_u32 v2, v4, 2, v2
    v_lshl_add_u32 v2, v3, 4, v2
    s_mov_b32 s{S_EX+1}, {WS_SIZE}
    """)
    a.label("L_pub")
    a("v_lshlrev_b32 v2, 4, v2\nv_lshl_add_u32 v220, v7, 3, v2")
    def capture(fn):
        n = len(a.lines); fn(); L = a.lines[n:]; del a.lines[n:]; return L
    def part1():
        srd(R_WS, P_WS, WS_SIZE)
        a(f"""
        v_and_b32 v6, 7, v{V_LANE}
        v_lshrrev_b32 v4, 4, v{V_LANE}
        v_lshl_add_u32 v6, v6, 2, v4
        v_bfe_u32 v4, v{V_LANE}, 3, 1
        v_lshl_add_u32 v6, v6, 1, v4
        v_lshlrev_b32 v222, 2, v6
        s_lshl_b32 s{S_T0}, s{S_CB}, 14
        s_lshl_b32 s{S_T1}, s{S_RB}, 10
        s_add_u32 s{S_T0}, s{S_T0}, s{S_T1}
        s_lshl_b32 s{S_T1}, s{S_HW}, 8
        s_add_u32 s{S_T0}, s{S_T0}, s{S_T1}
        s_add_u32 s{S_CNT}, s{S_T0}, {WS_CS}
        """)
    def part2():
        srd(R_DBG, P_DBG, 256)
        setup_ids()
        for i in range(4): a(f"v_mov_b32 v{12+i}, -1")
        common_setup()
        a(f"""
        v_and_b32 v2, 0xff, v{V_L16}
        v_add_u32 v11, {L_R + 256}, v2
        v_xor_b32 v6, v3, v7
        v_lshl_add_u32 v2, v6, 9, v2
        v_add_u32 v10, {L_R}, v2
        s_lshl_b32 s{S_T0}, s{S_HW}, 11
        v_add_u32 v254, s{S_T0}, v{V_L16}
        s_lshr_b32 s{S_T0}, s{S_CB}, 2
        s_and_b32 s{S_T1}, s{S_CB}, 3
        s_mul_i32 s{S_T2}, s{S_RB}, 448
        s_mul_i32 s{S_T3}, s{S_T0}, 28
        s_add_u32 s{S_T2}, s{S_T2}, s{S_T3}
        s_lshl_b32 s{S_T3}, s{S_T1}, 3
        s_add_u32 s{S_T2}, s{S_T2}, s{S_T3}
        s_add_u32 s{S_T2}, s{S_T2}, s{S_HW}
        s_lshl_b32 s{S_T2}, s{S_T2}, 10
        s_add_u32 s{S_HST}, s{S_T2}, {WS_H}
        s_add_u32 s{S_HSB}, s{S_HST}, 4096
        s_lshl_b32 s{S_T2}, s{S_RB}, 7
        s_lshl_b32 s{S_T3}, s{S_T0}, 3
        s_add_u32 s{S_T2}, s{S_T2}, s{S_T3}
        s_add_u32 s{S_T2}, s{S_T2}, s{S_HW}
        s_lshl_b32 s{S_T2}, s{S_T2}, 10
        s_add_u32 s{S_T2}, s{S_T2}, {WS_Q}
        """)
    defer1 = capture(part1)
    defer2 = capture(part2) + [f"s_cmp_eq_u32 s{S_T1}, 3\ns_cselect_b32 s{S_HSB}, s{S_T2}, s{S_HSB}"]
    for l in defer1: a(l)
    defer1.clear()
    a(f"s_cmp_lg_u32 s{S_HW}, 0\ns_cbranch_scc1 L_cs")
    PF, PACC, PCS, PRS, PG, PSQ, PONE, PID, PSQP, PF1 = 16, 80, 84, 88, 92, 96, 100, 104, 106, 107
    for i in range(4): a(f"v_mov_b32 v{PONE+i}, s{S_ONES}")
    a(f"v_mov_b32 v{PF1}, 1.0\nv_mov_b32 v{PSQP}, 0\nv_mov_b32 v{PID}, 0\nv_mov_b32 v{PID+1}, 0\nv_mov_b32 v221, 0")
    a(f"s_mov_b32 s{S_T0}, 0x00100001\ns_mov_b32 s{S_T1}, 0x10000100")
    for r in range(4): a(f"s_lshl_b64 exec, {sr(S_T0,2)}, {r}\nv_mov_b32 v{PID + (r >> 1)}, {hex(0x4780 << (16*(r & 1)))}")
    a("s_mov_b64 exec, -1")
    if not cfg.p0: a("s_barrier")
    stamp(name=3)
    def p_reads(gq):
        f = PF + 32*(gq & 1); L = []
        for s in range(4):
            L.append(f"ds_read_b128 {vr(f+8*s,4)}, v{V_XA + (s & 1)} offset:{L_PX + 4096*gq + 2048*(s >> 1)}")
            L += [f"ds_read_b64_tr_b16 {vr(f+8*s+4+2*t,2)}, v130 offset:{4096*gq + 1024*s + 128*t}" for t in range(2)]
        return L
    a("s_waitcnt vmcnt(24)")
    for l in p_reads(0): a(l)
    for gq in range(4):
        a("s_waitcnt lgkmcnt(0)")
        rd = p_reads(gq + 1) if gq < 3 else []
        k = 0
        for s in range(4):
            x, w = PF + 32*(gq & 1) + 8*s, PF + 32*(gq & 1) + 8*s + 4
            for d, A_, B_ in ((PG, x, x), (PRS, PONE, x), (PCS, w, PONE), (PACC, w, x)):
                a(mfma16(d, A_, B_, None if gq + s == 0 else d))
                if k == 3 and gq < 3:
                    a(f"s_waitcnt vmcnt({16 - 8*gq})")
                    if gq == 2: stamp(); stamp(name=4)
                if k >= 3 and rd: a(rd.pop(0))
                k += 1
    a.nop(4)
    for r in range(4): a(f"s_lshl_b64 exec, {sr(S_T0,2)}, {r}\nv_mov_b32 v{PSQP}, v{PG+r}")
    a(f"""
    s_mov_b64 exec, -1
    v_mul_f32 v{PRS}, {hex(f2u(-1.0/512))}, v{PRS}
    v_mfma_f32_16x16x4_f32 {vr(PSQ,4)}, v{PF1}, v{PSQP}, 0
    """)
    for i in range(4): a(f"v_fmac_f32 v{PACC+i}, v{PRS}, v{PCS+i}")
    a(f"""
    v_cvt_pk_bf16_f32 v12, v{PRS}, v{PRS}
    v_and_b32 v2, 0xffff0000, v12
    v_sub_f32 v2, v{PRS}, v2
    v_cvt_pk_bf16_f32 v12, v{PRS}, v2
    s_and_b32 s{S_T2}, s{S_CB}, 1
    s_cmp_eq_u32 s{S_T2}, 0
    v_mul_f32 v14, {hex(f2u(1.0/512))}, v{PSQ}
    v_fma_f32 v14, -v{PRS}, v{PRS}, v14
    v_max_f32 v14, 0, v14
    v_add_f32 v14, {hex(f2u(1e-5))}, v14
    v_rsq_f32 v3, v14
    s_nop 0
    """)
    for i in range(4): a(f"v_mul_f32 v{PACC+i}, v{PACC+i}, v3")
    a(f"""
    v_cvt_pk_bf16_f32 v216, v{PACC}, v{PACC+1}
    v_cvt_pk_bf16_f32 v217, v{PACC+2}, v{PACC+3}
    s_cbranch_scc0 L_preV
    s_mov_b32 exec_lo, 0
    v_mov_b32 v12, 0
    s_and_b32 s{S_T0}, s{S_T16}, 1
    s_sub_u32 exec_lo, s{S_T0}, 1
    s_mov_b32 exec_hi, exec_lo
    v_swap_b32 v12, v14
    s_mov_b32 exec_lo, 0xffff0000
    s_mov_b32 exec_hi, 0
    v_mul_f32 v12, {hex(f2u(-KG))}, v3
    v_mul_f32 v2, v3, v3
    v_mul_f32 v14, {hex(f2u(0.044715))}, v12
    v_mul_f32 v14, v14, v2
    s_mov_b64 exec, -1
    v_mov_b32 v13, v12
    v_mov_b32 v15, v14
    s_branch L_nofin
    """)
    a.label("L_preV")
    a(f"s_nop 0\nv_mfma_f32_16x16x16_bf16 {vr(PACC,4)}, v[216:217], {vr(PID,2)}, 0")
    a.nop(8)
    a(f"v_cvt_pk_bf16_f32 v216, v{PACC}, v{PACC+1}\nv_cvt_pk_bf16_f32 v217, v{PACC+2}, v{PACC+3}\ns_branch L_nofin")
    n_ool = len(a.lines)
    a.label("L_cs")
    if not cfg.p0: a("s_barrier")
    stamp(name=3)
    touch("g", 1, 3, 4)
    for e in range(6):
        a(f"s_waitcnt vmcnt({5 - e})")
        for i in range(4):
            if e == 0: a(f"v_lshlrev_b32 v{CSUM+2*i}, 16, v{CL+i}\nv_and_b32 v{CSUM+2*i+1}, 0xffff0000, v{CL+i}")
            else: a(f"v_lshlrev_b32 v2, 16, v{CL+4*e+i}\nv_and_b32 v3, 0xffff0000, v{CL+4*e+i}\nv_add_f32 v{CSUM+2*i}, v{CSUM+2*i}, v2\nv_add_f32 v{CSUM+2*i+1}, v{CSUM+2*i+1}, v3")
    stamp(name=4)
    for j in range(4): a(f"v_permlane32_swap_b32 v{CSUM+j}, v{CSUM+4+j}")
    for j in (0, 2, 1, 3): a(f"v_add_f32 v{CSUM+j}, v{CSUM+j}, v{CSUM+4+j}")
    a(f"v_permlane16_swap_b32 v{CSUM}, v{CSUM+2}\ns_nop 0\nv_permlane16_swap_b32 v{CSUM+1}, v{CSUM+3}")
    a(f"v_add_f32 v{CSUM}, v{CSUM}, v{CSUM+2}\nv_add_f32 v{CSUM+1}, v{CSUM+1}, v{CSUM+3}\ns_nop 0")
    a(f"v_add_f32_dpp v221, v{CSUM}, v{CSUM} row_ror:8 row_mask:0xf bank_mask:0xf\nv_add_f32_dpp v221, v{CSUM+1}, v{CSUM+1} row_ror:8 row_mask:0xf bank_mask:0xc")
    if cfg.cs_in:
        a("s_branch L_nofin")
        ool = a.lines[n_ool:]; del a.lines[n_ool:]
    a.label("L_nofin")
    stamp(name=5)
    init = [f"buffer_store_dword v221, v222, {sr(R_WS,4)}, s{S_CNT} offen sc1",
            f"s_cmp_lg_u32 s{S_HW}, 0\ns_cbranch_scc1 L_nopub\n"
            f"buffer_store_dwordx2 v[216:217], v220, {sr(R_WS,4)}, s{S_EX} offen sc1\n"
            f"buffer_store_dwordx4 v[12:15], v{V_L16}, {sr(R_WS,4)}, s{S_EX+1} offen sc1\nL_nopub:"]
    brk("g")
    stamp(name=6)
    a("s_barrier")
    nst[0] = 2
    stamp(name="b0"); pad("b0"); c12(0)
    HS = [divmod(g, 2) for g in range(28)] + [(14, 0), (15, 0), (14, 1), (15, 1)]
    def wf(K, mt): return WF + 16*((K + 1) & 1) + 4*mt
    def x_reads(g):
        K, nh = HS[g]
        return [f"ds_read_b128 {vr(XF+16*(g&1)+4*i,4)}, v{V_XA+(K&1)} offset:{XS[K>>1]*16384 + (4*nh+i)*2048}" for i in range(4)]
    def w_reads(K):
        slot = ((K >> 1) + 2) % 3
        return [f"ds_read_b64_tr_b16 {vr(wf(K,mt)+2*t,2)}, v{V_WR+(mt>>1)} offset:{(mt&1)*24576 + slot*8192 + (K&1)*4096 + t*512}" for mt in range(4) for t in range(2)]
    def mm(g, mt, i):
        K, nh = HS[g]; nt = 4*nh + i
        d = acc(mt >> 1, nt >> 1) + 8*(mt & 1) + 4*(nt & 1)
        return mfma16(d, wf(K, mt), XF + 16*(g&1) + 4*i, None if K == 0 else d)
    def rw_reads(rt, dst): return [f"ds_read_b128 {vr(dst+4*i,4)}, v{10 + (i >> 1)} offset:{2048*rt + 1024*(i & 1)}" for i in range(4)]
    op_reads = [f"ds_read_b128 {vr(RA+4*i,4)}, v254 offset:{L_RA + 1024*i}" for i in range(2)] + rw_reads(0, RWP) + rw_reads(1, RWQ)
    def rank1(ti, rt, rw): return mfma32(acc(ti, rt), RA + 4*ti, rw + 2, acc(ti, rt))
    def split2(src, dst, dup):
        if dup:
            return [f"v_cvt_pk_bf16_f32 v{dst}, v{src}, v{src}", f"v_and_b32 v2, 0xffff0000, v{dst}", f"v_sub_f32 v2, v{src}, v2", f"v_cvt_pk_bf16_f32 v{dst+1}, v2, v2"]
        return [f"v_cvt_pk_bf16_f32 v{dst}, v{src}, v{src}", f"v_and_b32 v2, 0xffff0000, v{dst}", f"v_sub_f32 v2, v{src}, v2", f"v_cvt_pk_bf16_f32 v{dst}, v{src}, v2", f"v_mov_b32 v{dst+1}, v{dst}"]
    arrive = (f"s_cmp_lg_u32 s{S_W}, 0\ns_cbranch_scc1 L_noarr\ns_and_b32 s{S_EX}, s2, 7\ns_lshl_b32 s{S_EX}, s{S_EX}, 5\n"
              f"s_mov_b64 exec, 1\nbuffer_atomic_add v223, off, {sr(R_DBG,4)}, s{S_EX} sc1\ns_mov_b64 exec, -1\nL_noarr:")
    w = w_reads(0)
    for l in w[:2] + x_reads(0) + w[2:]: a(l)
    def half_step(g):
        K, nh = HS[g]
        neww = g == 0 or HS[g-1][0] < K and g != 31
        gaps = [[] for _ in range(16)]
        o = 0
        if g & 3 == 3 and g < 28 or g == cfg.g_h:
            gaps[0] = ["s_barrier"]; o = 1
        rd = x_reads(g + 1) if g < 31 else rw_reads(2, WF + 16)
        if g < 29 and HS[g+1][0] > K:
            w = w_reads(K + 1); rd = w[:2] + rd + w[2:]
        if g == cfg.g_h: rd += op_reads
        if cfg.nord: rd = []
        for i, l in enumerate(rd): gaps[o + i].append(l)
        if neww:
            top = "lgkmcnt(4)"
            gaps[7].append(f"s_waitcnt lgkmcnt({min(len(rd), 8 - o)})")
        else: top = "lgkmcnt(10)" if g == cfg.g_h + 1 else "lgkmcnt(0)"
        brk("g" if g < 28 else "e")
        a("s_waitcnt " + ("vmcnt(0) " if g == 4*cfg.c_arr + 3 else "") + top)
        if g == 4*cfg.c_arr + 3: gaps[14].append(arrive)
        if g == cfg.g_init: gaps[9].append(init[0]); gaps[12].append(init[1])
        dl = defer1 if g <= cfg.g_init else defer2
        for k in range(16):
            if not gaps[k]:
                gaps[k] = dl[:2]; del dl[:2]
        assert not (g >= 2 and defer1) and not (g >= 27 and defer2)
        for k in range(16):
            a(mm(g, k >> 2, k & 3))
            for l in gaps[k]: a(l)
            if g == 31 and k == 3: a(("s_waitcnt lgkmcnt(4)\n" if cfg.g_h == 30 else "") + rank1(0, 0, RWP))
            if k == 0 and (g == 27 or (cfg.stamps == 4 and g & 3 == 3)): stamp()
            if k == 0 and g in (3, 27): c12(1 if g == 3 else 2)
            if k == 15 and g >= cfg.g_tr and g & 1 == 0 and cfg.stamps == 10 and ncs[0] < 6: a(f"s_memtime {sr([32, 34, 92, 94, 96, 98][ncs[0]], 2)}"); ncs[0] += 1
    for g in range(30): half_step(g)
    def swaps(o): return [f"v_permlane16_swap_b32 v{o}, v{o+2}", f"v_permlane16_swap_b32 v{o+1}, v{o+3}"]
    def gelu(ti, rt, rw, mf=(), pre=()):
        A = acc(ti, rt)
        def b(i): return rw + 8 + 4*(i >> 2)
        def vp(i): return rw + 6*(i >> 2)
        t1, t2, o = 144, 152, HO + 16*ti + 4*rt
        L = [".p2align 3"]
        for i in range(0, 8, 2): L.append(f"v_pk_mul_f32 {vr(t1+i,2)}, {vr(A+i,2)}, {vr(A+i,2)}")
        L += pre
        for i in range(0, 8, 2): L.append(f"v_pk_fma_f32 {vr(t1+i,2)}, {vr(t1+i,2)}, {vr(b(i)+2,2)}, {vr(b(i),2)}")
        for i in range(0, 8, 2): L.append(f"v_pk_mul_f32 {vr(t1+i,2)}, {vr(t1+i,2)}, {vr(A+i,2)}")
        L += mf
        for i in range(8): L.append(f"v_exp_f32 v{t1+i}, v{t1+i}")
        for i in range(0, 8, 2): L.append(f"v_pk_mul_f32 {vr(t2+i,2)}, {vr(A+i,2)}, {vr(A+8+i,2)}")
        for i in range(0, 8, 2): L.append(f"v_pk_fma_f32 {vr(t1+i,2)}, {vr(t1+i,2)}, {vr(vp(i),2)}, {vr(vp(i),2)}")
        for i in range(8): L.append(f"v_rcp_f32 v{t1+i}, v{t1+i}")
        for i in range(0, 8, 2): L.append(f"v_pk_mul_f32 {vr(t2+i,2)}, {vr(t2+i,2)}, {vr(t1+i,2)}")
        for i in range(4): L.append(f"v_cvt_pk_bf16_f32 v{o+i}, v{t2+2*i}, v{t2+2*i+1}")
        return L
    def qtile(rt, rw):
        A = acc(1, rt); qs = hex(f2u(-0.25*math.log2(math.e)/KG))
        L = [f"v_mul_f32 v{12+i}, {qs}, v{rw + 8 + 4*(i >> 1)}" for i in range(4)]
        L += [f"s_add_u32 s{S_T0}, s{S_HSB}, {32768*rt}", f"s_add_u32 s{S_T1}, s{S_T0}, 4096"]
        for hd in range(2):
            h = A + 8*hd
            for i in range(0, 8, 2): L.append(f"v_pk_mul_f32 {vr(h+i,2)}, {vr(h+i,2)}, {vr(12 + 2*(i >> 2),2)}")
            for i in range(4): L.append(f"v_cvt_pk_bf16_f32 v{h+i}, v{h+2*i}, v{h+2*i+1}")
            for i in (0, 2, 1, 3): L.append(f"v_min_u32 v{h+i}, -2, v{h+i}")
            L += [swaps(h)[0], "s_nop 0", swaps(h)[1]]
            L.append(f"buffer_store_dwordx4 {vr(h,4)}, v{V_L16}, {sr(R_WS,4)}, s{S_T0 + hd} offen sc1")
        return L
    L_HQ = L_KV + 49152
    def att_regs():
        a(f"""
        v_and_b32 v5, 27, v{V_LANE}
        v_cmp_eq_u32 vcc, 16, v5
        v_mov_b32 v6, 0x47804780
        v_mov_b32 v{V_IDX}, 0xdddddddd
        v_mov_b32 v11, 1
        v_mov_b32 v49, 0.5
        v_cndmask_b32 v{VF}, 0, v6, vcc
        v_mov_b32 v{VF+1}, v{VF}
        """)
        for i in range(2, 16, 2): a(f"v_mov_b64 {vr(VF+i,2)}, {vr(VF,2)}")
        for i in range(0, 16, 2): a(f"v_mov_b64 {vr(OO+i,2)}, 0")
        a(f"s_lshl_b32 s{S_T0}, s{S_KQ}, 13\ns_add_u32 s{S_T0}, s{S_T0}, {L_WO - L_WD}\nv_add_u32 v{V_OA}, s{S_T0}, v{V_DA}\nv_xor_b32 v{V_OA+1}, 64, v{V_OA}")
    def kv_first():
        a(f"ds_read_b128 {vr(KF,4)}, v{V_KA} offset:{kv_off(0)}\nds_read_b128 {vr(KF+4,4)}, v{V_KA} offset:{kv_off(1)}")
        a(f"s_mov_b64 exec, {sr(S_VM,2)}\nds_read_b128 {vr(VF,4)}, v{V_VA} offset:{kv_off(0)}\ns_mov_b64 exec, -1")
    a(f"s_and_b32 s{S_T1}, s{S_CB}, 3\ns_cmp_eq_u32 s{S_T1}, 3\ns_cbranch_scc1 L_qt")
    half_step(30); half_step(31)
    n0 = nst[0]
    stamp(name="g1"); pad("g1"); c12(3)
    RWS = [RWP, RWQ, WF + 16, RWP]
    order = [(ti, rt) for rt in range(4) for ti in range(2)]
    for i, (ti, rt) in enumerate(order):
        if i == 2:
            for l in rw_reads(3, RWS[3]): a(l)
        brk("e")
        if i in (3, 5): a("s_waitcnt lgkmcnt(0)")
        if i == cfg.i_q: a("s_barrier")
        nx = order[i+1] if i < 7 else None
        pv = order[i-1] if i else None
        for l in gelu(ti, rt, RWS[rt], [rank1(*nx, RWS[nx[1]])] if nx else [], swaps(HO + 16*pv[0] + 4*pv[1]) if pv else []): a(l)
    a("s_nop 1")
    for l in swaps(HO + 16 + 12): a(l)
    a("s_branch L_joinA")
    far("L_qt")
    RWS = [RWP, RWQ, acc(1, 0), acc(1, 1)]
    if cfg.g_h == 30:
        a("s_barrier")
        for l in op_reads: a(l)
    for l in x_reads(31): a(l)
    a("s_waitcnt lgkmcnt(4)\ns_nop 0")
    a(rank1(1, 0, RWP)); a(rank1(1, 1, RWQ))
    a.nop(5)
    for rt in range(2):
        for l in qtile(rt, RWS[rt]): a(l)
        brk("e")
    a("s_waitcnt lgkmcnt(0)")
    rd = rw_reads(2, RWS[2]) + rw_reads(3, RWS[3])
    for g in (30, 31):
        for k in range(8, 16):
            a(mm(g, k >> 2, k & 3))
            if rd: a(rd.pop(0))
    a("s_waitcnt lgkmcnt(0)\ns_nop 3")
    a(rank1(1, 2, RWS[2])); a(rank1(1, 3, RWS[3]))
    a.nop(5)
    for rt in (2, 3):
        for l in qtile(rt, RWS[rt]): a(l)
        brk("e")
    a(rank1(0, 0, RWP))
    for g in (30, 31):
        for k in range(8): a(mm(g, k >> 2, k & 3))
    nst[0] = n0
    stamp(name="g1")
    a(f"s_mov_b32 s{S_HSB}, {WS_SIZE}")
    for i in range(4): a(f"v_mov_b32 v{12+i}, -1")
    for rt in range(4):
        brk("e")
        if rt == cfg.i_qb: a("s_barrier")
        for l in gelu(0, rt, RWS[rt], [rank1(0, rt + 1, RWS[rt + 1])] if rt < 3 else [], swaps(HO + 4*(rt - 1)) if rt else []): a(l)
    a("s_nop 1")
    for l in swaps(HO + 12): a(l)
    far("L_joinA", True)
    nst[0] = 12 if cfg.stamps == 4 else 5
    stamp()
    c12(4)
    if not cfg.gpos:
        att_regs()
        kv_first()
    a("s_barrier")
    stamp(name="att0"); pad("att0")
    a(f"ds_read_b128 {vr(QF,4)}, v254 offset:{L_HQ}")
    for i in range(4): a(f"ds_read_b128 {vr(CC+4*i,4)}, v254 offset:{L_HQ + 1024}")
    if cfg.gpos:
        att_regs()
        kv_first()
    a("s_waitcnt lgkmcnt(0)")
    a(mfma32(S0, KF, QF, CC))
    c12(5)
    a("s_nop 3\ns_branch L_attA")

    a.lines += ool
    a.label("L_helper")
    V_XD, V_WD = 192, 194
    PX, PW = 8, 24
    PACC, PCS, PRS, PSQ = 40, 44, 48, 52
    PONE, PSQP, PF1 = 56, 60, 61
    RD = 64
    a(f"""
    s_lshl_b32 s{S_XOFF}, s{S_RB}, 17
    s_lshl_b32 s{S_T0}, s{S_HW}, 15
    s_add_u32 s{S_XOFF}, s{S_XOFF}, s{S_T0}
    v_and_b32 v5, 15, v{V_LANE}
    v_lshrrev_b32 v6, 4, v{V_LANE}
    v_lshrrev_b32 v7, 3, v{V_LANE}
    v_and_b32 v63, 7, v{V_LANE}
    v_xor_b32 v62, v6, v63
    v_lshlrev_b32 v62, 4, v62
    v_lshl_add_u32 v{V_XD}, v7, 10, v62
    v_xor_b32 v{V_XD+1}, 64, v{V_XD}
    v_add_u32 v{V_XD+1}, {8192-1024}, v{V_XD+1}
    """)
    img_params(S_HW, S_WSTEP, S_WOFF)
    a(f"""
    v_and_b32 v62, 1, v6
    v_lshlrev_b32 v62, 1, v62
    v_xor_b32 v62, v62, v63
    v_lshlrev_b32 v62, 4, v62
    v_mul_u32_u24 v{V_WD}, s{S_WSTEP}, v7
    v_add_u32 v{V_WD}, v{V_WD}, v62
    v_xor_b32 v{V_WD+1}, 64, v{V_WD}
    s_waitcnt lgkmcnt(0)
    """)
    nst[0] = 0
    stamp()
    a(f"s_mov_b32 s{R_X}, s{P_X}\ns_and_b32 s{R_X+1}, s{P_X+1}, 0xffff")
    Q = []
    def issue(tag, text): a(text); Q.append(tag)
    def vwait(tag, more=""):
        n = len(Q) - 1 - max(i for i, t in enumerate(Q) if t == tag)
        a(f"s_waitcnt vmcnt({n})" + more)
    def xitems(c):
        slot = XS[c]
        return [(f"C{c}", f"s_add_u32 m0, s{S_H4K}, {L_X + slot*16384}\ns_add_u32 s{S_CNT}, s{S_XOFF}, {c*128 + (16384 - 2048)*(e >> 1)}\n"
                 f"buffer_load_dwordx4 v{V_XD + (e & 1)}, {sr(R_X,4)}, s{S_CNT} offen offset:{1024*e} {cfg.cf[1]} lds") for e in range(4)]
    def witems(c):
        slot = (c + 2) % 3
        return [(f"C{c}", f"s_add_u32 m0, s{S_M0W}, {slot*8192 + e*1024}\n" + (f"s_add_u32 s{S_WOFF}, s{S_WOFF}, s{S_WSTEP}" if c + e else "s_nop 0") +
                 f"\nbuffer_load_dwordx4 v{V_WD + (e & 1)}, {sr(R_W,4)}, s{S_WOFF} offen {cfg.cf[0]} lds") for e in range(8)]
    stream = []
    for c in range(1, 8): stream += [(t, x if c < 3 or not cfg.nodma else 's_nop 0') for t, x in witems(c) + xitems(c)]
    for c in {0: (), 8: (4,), 12: (2, 4, 6)}[cfg.krot]:
        i = 12*(c - 1)
        stream[i] = (stream[i][0], stream[i][1].replace("\nbuffer_load", f"\ns_cmp_eq_u32 s{S_HST}, {16 - 2*c}\ns_cselect_b32 s{S_CNT}, s{R_W+2}, 0\ns_cselect_b32 s{S_HSB}, 1024, 0\n"
                     f"s_sub_u32 s{S_WOFF}, s{S_WOFF}, s{S_CNT}\ns_sub_u32 s{S_XOFF}, s{S_XOFF}, s{S_HSB}\nbuffer_load"))
    pos = [0]
    def take(n):
        for _ in range(n):
            if pos[0] < len(stream): issue(*stream[pos[0]]); pos[0] += 1
    def upto(c):
        return min(len(stream), 12*(c + 1) + cfg.lead[c])
    def mix(lines, n):
        k = 0
        for i, l in enumerate(lines):
            while k < n and k * len(lines) <= i * n: take(1); k += 1
            a(l)
        take(n - k)
    img_srd(R_W, S_WSTEP)
    if cfg.krot:
        a(f"""
        s_and_b32 s{S_HST}, s{S_RB}, {cfg.krot}
        s_lshl_b32 s{S_T0}, s{S_HST}, 6
        s_add_u32 s{S_XOFF}, s{S_XOFF}, s{S_T0}
        s_mul_i32 s{S_T0}, s{S_T0}, s{S_WSTEP}
        s_lshr_b32 s{S_T0}, s{S_T0}, 1
        s_add_u32 s{S_WOFF}, s{S_WOFF}, s{S_T0}
        """)
    a(f"s_lshl_b32 s{S_WSTEP}, s{S_WSTEP}, 3\ns_mul_i32 s{S_M0W}, s{S_HW}, 24576\ns_add_u32 s{S_M0W}, s{S_M0W}, {L_W}")
    stamp(name=1)
    a("s_barrier")
    for it in xitems(0) + witems(0): issue(*it)
    stamp(name=3)
    def bar():
        brk("g")
        if cfg.stamps == 4: stamp()
        a("s_barrier")
    take(cfg.lead0)
    stamp(name=4)
    nst[0] = 2; vwait("C0"); stamp(name=6); bar()
    BC, BO, BZ = 132, 224, 240
    def b_init():
        srd(R_WS, P_WS, WS_SIZE)
        setup_ids()
        for i in range(4): a(f"v_mov_b32 v{12+i}, -1")
        a(f"v_mov_b32 v10, 0\ns_add_u32 s{S_T2}, s{S_OST}, {WS_Q - WS_O - 2048}\ns_sub_u32 s{S_T3}, s{S_FLG}, 16")
    def b_stores():
        issue("ST", f"buffer_store_dwordx4 v[12:15], v{V_L16}, {sr(R_WS,4)}, s{S_T2} offen sc1")
        issue("ST", f"buffer_store_dwordx4 v[12:15], v{V_L16}, {sr(R_WS,4)}, s{S_T2} offen offset:2048 sc1")
        issue("ST", f"s_mov_b64 exec, 3\nbuffer_store_dword v10, v{V_L16}, {sr(R_WS,4)}, s{S_T3} offen sc1\ns_mov_b64 exec, -1")
    def b_setup():
        srd(R_DBG, P_DBG, 256)
        a(f"s_mov_b32 s{S_ONES}, 0x3f803f80")
        common_setup()
        a(f"""
        v_lshrrev_b32 v6, 4, v{V_LANE}
        v_bfe_u32 v2, v{V_LANE}, 1, 1
        v_lshl_add_u32 v6, v2, 2, v6
        v_and_b32 v2, 1, v{V_LANE}
        v_lshl_add_u32 v6, v2, 5, v6
        v_lshlrev_b32 v6, 4, v6
        v_bfe_u32 v2, v{V_LANE}, 2, 2
        v_lshl_add_u32 v6, v2, 11, v6
        s_lshr_b32 s{S_T0}, s{S_HW}, 1
        s_lshl_b32 s{S_T0}, s{S_T0}, 10
        s_and_b32 s{S_T1}, s{S_HW}, 1
        s_lshl_b32 s{S_T1}, s{S_T1}, 8
        s_add_u32 s{S_T0}, s{S_T0}, s{S_T1}
        v_add_u32 v204, s{S_T0}, v6
        """)
        for i in (0, 1, 4, 5): a(f"v_mov_b32 v{BZ+i}, 0")
        att_regs()
        a(f"s_lshl_b32 s{S_T0}, s{S_HW}, 11\nv_add_u32 v7, s{S_T0}, v{V_L16}")
    bs = capture(b_setup)
    nbs = -(-len(bs) // 3)
    pfl = [f"s_mul_i32 s{S_T0}, s2, 7168\ns_lshl_b32 s{S_T1}, s{S_HW}, 11\ns_add_u32 s{S_T0}, s{S_T0}, s{S_T1}\nbuffer_load_dwordx4 {vr(176,4)}, v{V_L16}, {sr(R_WD,4)}, s{S_T0} offen",
           f"buffer_load_dwordx4 {vr(180,4)}, v{V_L16}, {sr(R_WD,4)}, s{S_T0} offen offset:1024",
           f"s_lshl_b32 s{S_T1}, s2, 11\ns_lshl_b32 s{S_T3}, s{S_HW}, 9\ns_add_u32 s{S_T1}, s{S_T1}, s{S_T3}\ns_mov_b32 exec_hi, 0\nbuffer_load_dwordx4 {vr(184,4)}, v{V_L16}, {sr(R_WO,4)}, s{S_T1} offen\ns_mov_b64 exec, -1"]
    spoll = f"buffer_load_dword v8, v6, {sr(R_DBG,4)}, s{S_T2} offen sc1"
    for c in range(6):
        if c == cfg.c_st[0]:
            mix(capture(b_init), cfg.c_st[1]); b_stores()
        if c in (2, 3, 4): mix(bs[(c-2)*nbs:(c-1)*nbs], upto(c) - pos[0])
        if c == 5:
            take(cfg.n_poll)
            a(f"v_and_b32 v6, 7, v{V_LANE}\nv_lshlrev_b32 v6, 5, v6\ns_lshl_b32 s{S_T2}, s{S_HW}, 8")
            issue("P", spoll)
        take(upto(c) - pos[0])
        if c == cfg.c_arr: vwait("ST")
        if c == 5:
            vwait("P")
            a(f"s_cmp_lg_u32 s{S_HW}, 0\ns_cbranch_scc1 L_sync1\ns_mov_b32 s{S_SPIN}, 0")
            a.label("L_sync1_chk")
            a(f"""
            v_cmp_gt_u32 vcc, 32, v8
            s_add_u32 s{S_SPIN}, s{S_SPIN}, 1
            s_cbranch_vccz L_sync1
            s_cmp_ge_u32 s{S_SPIN}, {SPIN_MAX}
            s_cbranch_scc1 L_sync1
            s_sleep 4
            {spoll}
            s_waitcnt vmcnt(0)
            s_branch L_sync1_chk
            """)
            a.label("L_sync1")
        vwait(f"C{c+1}"); bar()
    assert pos[0] == len(stream)
    ncs[0] = 0; cstamp(11)
    a(f"""
    s_lshl_b32 s{S_T3}, s{S_HW}, 11
    s_add_u32 m0, s{S_T3}, {L_R}
    s_lshl_b32 s{S_EX}, s{S_RB}, 13
    s_add_u32 s{S_EX}, s{S_EX}, s{S_T3}
    s_add_u32 s{S_EX}, s{S_EX}, {WS_ST}
    s_lshl_b32 s{S_T3}, s{S_HW}, 10
    s_lshl_b32 s{S_EX+1}, s{S_CB}, 14
    s_add_u32 s{S_EX+1}, s{S_EX+1}, s{S_T3}
    s_add_u32 s{S_EX+1}, s{S_EX+1}, {WS_CS}
    """)
    if cfg.stamps != 4: nst[0] = 3
    stamp(); cstamp(11)
    def maxtree(src, dst, init=None):
        L = []
        if init is None:
            L.append(f"v_max3_f32 v{dst}, v{src}, v{src+1}, v{src+2}")
            L.append(f"v_max_f32 v{dst}, v{src+3}, v{dst}")
            k = 4
        else:
            k = 0
        for i in range(k, 16, 2): L.append(f"v_max3_f32 v{dst}, v{src+i}, v{src+i+1}, v{dst}")
        return L
    def setC(m, shift):
        a(f"v_mov_b32 v{m+1}, v{m}\ns_nop 1\nv_permlane32_swap_b32 v{m}, v{m+1}\nv_max_f32 v{m}, v{m}, v{m+1}")
        a(f"v_sub_f32 v{CC}, {hex(f2u(-shift)) if shift else 0}, v{m}")
        a(f"v_mov_b32 v{CC+1}, v{CC}")
        for i in range(2, 16, 2): a(f"v_mov_b64 {vr(CC+i,2)}, {vr(CC,2)}")
    for e in range(4):
        if e: a(f"s_add_u32 s{S_EX+1}, s{S_EX+1}, 4096")
        a(f"buffer_load_dwordx4 {vr(BC+4*e,4)}, v{V_L16}, {sr(R_WS,4)}, s{S_EX+1} offen sc1")
    for i in range(2): a(f"buffer_load_dwordx4 v{V_L16}, {sr(R_WS,4)}, s{S_EX} offen offset:{1024*i} sc1 lds")
    npf = 3 if cfg.pf_first else 0
    for x in pfl[:npf]: a(x)
    touch("e", 0, 4, 5)
    cstamp(11)
    if cfg.e6 == 0: a(f"s_waitcnt vmcnt({6 + npf})\ns_barrier")
    a(f"s_setprio {cfg.bp}\ns_waitcnt vmcnt({2 + npf})")
    cstamp(11)
    for e in range(1, 4):
        for i in (0, 2, 1, 3): a(f"v_add_f32 v{BC+i}, v{BC+i}, v{BC+4*e+i}")
    a(f"""
    v_permlane32_swap_b32 v{BC}, v{BC+2}
    s_nop 0
    v_permlane32_swap_b32 v{BC+1}, v{BC+3}
    v_add_f32 v{BC}, v{BC}, v{BC+2}
    v_add_f32 v{BC+1}, v{BC+1}, v{BC+3}
    s_nop 1
    v_permlane16_swap_b32 v{BC}, v{BC+1}
    v_add_f32 v{BC}, v{BC}, v{BC+1}
    """)
    for l in split2(BC, BZ + 2, True): a(l)
    a(f"ds_write_b128 v204, {vr(BZ+2,4)} offset:{L_RA}\nds_write_b128 v204, {vr(BZ,4)} offset:{L_RA + 128}")
    cstamp(11)
    for x in pfl[npf:]: a(x)
    a("s_waitcnt vmcnt(3)")
    ncs[0] += 1; cstamp(11)
    a("s_setprio 0\ns_waitcnt lgkmcnt(0)")
    cstamp(11)
    if cfg.e6 == 2: a("s_barrier")
    cstamp(11)
    a("s_barrier")
    for c in range(2):
        slot = (c + 1) % 3
        a(f"s_add_u32 m0, s{S_H4K}, {L_KV + slot*16384}\ns_add_u32 s{S_T0}, s{S_H4K}, {WS_KV + starts[c]*2048}")
        for e in range(4):
            a(f"buffer_load_dwordx4 v{V_L16}, {sr(R_WS,4)}, s{S_T0} offen offset:{1024*e} sc1 lds")
    touch("a", 0, 4, 12)
    if cfg.wfix:
        a(f"s_mov_b32 s{S_CNT}, 0\ns_mov_b32 s{S_SPIN}, 0\ns_cmp_eq_u32 s{S_HW}, 3\ns_cbranch_scc0 L_nowfix\ns_call_b64 {sr(S_RET,2)}, L_ofix\nL_nowfix:")
    QP = 128
    qload = (f"buffer_load_dwordx4 {vr(QP,4)}, v{V_L16}, {sr(R_WS,4)}, s{S_T2} offen sc1\n"
             f"buffer_load_dwordx4 {vr(QF,4)}, v{V_L16}, {sr(R_WS,4)}, s{S_T2} offen offset:2048 sc1")
    a(f"s_add_u32 s{S_T2}, s{S_OST}, {WS_Q - WS_O - 2048}\ns_mov_b32 s{S_SPIN}, 0\ns_waitcnt vmcnt(0)\ns_barrier\ns_setprio 2")
    a(qload)
    kv_first()
    nst[0] = 12 if cfg.stamps == 4 else 5
    stamp()
    a.label("L_qchk")
    a(f"""
    s_waitcnt vmcnt(0) lgkmcnt(0)
    v_max3_u32 v8, v{QF}, v{QF+1}, v{QF+2}
    v_max3_u32 v8, v8, v{QF+3}, v{QP}
    v_max3_u32 v8, v8, v{QP+1}, v{QP+2}
    v_max_u32 v8, v8, v{QP+3}
    v_cmp_eq_u32 vcc, -1, v8
    s_add_u32 s{S_SPIN}, s{S_SPIN}, 1
    s_cbranch_vccz L_qok
    s_cmp_ge_u32 s{S_SPIN}, {SPIN_MAX}
    s_cbranch_scc1 L_qok
    s_sleep 2
    {qload}
    s_branch L_qchk
    """)
    a.label("L_qok")
    if cfg.stamps == 1:
        n0 = nst[0]; nst[0] = 4; stamp(); nst[0] = n0
        a(f"v_writelane_b32 v{V_STAMP}, s{S_SPIN}, 63")
    a('; ---- softmax reference point: maximum over the first 32 keys (a lower bound of the row maximum), scores are taken relative to it minus a fixed shift.')
    a(mfma32(S0, KF, QP, None)); a(mfma32(S1, KF, QF, None))
    a(f"ds_write_b128 v7, {vr(QP,4)} offset:{L_HQ}")
    a.nop(10)
    for l in maxtree(S0, 8): a(l)
    a(f"v_mov_b32 v9, v8\ns_nop 1\nv_permlane32_swap_b32 v8, v9\nv_max_f32 v8, v8, v9\nv_sub_f32 v{QP+4}, {hex(f2u(-cfg.shift))}, v8")
    a(f"v_mov_b32 v{QP+5}, v{QP+4}\nv_mov_b64 {vr(QP+6,2)}, {vr(QP+4,2)}\nds_write_b128 v7, {vr(QP+4,4)} offset:{L_HQ + 1024}")
    for l in maxtree(S1, 8): a(l)
    if cfg.g_early:
        a("s_waitcnt lgkmcnt(0)\ns_barrier")
        stamp(name="att0"); pad("att0")
    setC(8, cfg.shift)
    a("s_waitcnt lgkmcnt(0)\ns_setprio 0")
    a(mfma32(S0, KF, QF, CC))
    if not cfg.g_early:
        a("s_barrier")
        stamp(name="att0"); pad("att0")
    a("s_nop 3\ns_branch L_attB")

    def kvdma(c, half):
        slot = (c + 1) % 3
        L = (f"s_add_u32 m0, s{S_W2K}, {L_KV + slot*16384}\ns_add_u32 s{S_T0}, s{S_W2K}, {WS_KV + starts[c]*2048}\n")
        if half == 1 and sizes[c] < 8:
            L += f"s_cmp_ge_u32 s{S_W}, {sizes[c]}\ns_cselect_b32 s{S_T0}, {WS_SIZE}, s{S_T0}\n"
        return [L + f"buffer_load_dwordx4 v{V_L16}, {sr(R_WS,4)}, s{S_T0} offen sc1 lds",
                f"buffer_load_dwordx4 v{V_L16}, {sr(R_WS,4)}, s{S_T0} offen offset:1024 sc1 lds"]
    def rowdma(rs, sbase, add, ldsbase, e):
        pre = f"s_add_u32 m0, s{S_W4K}, {ldsbase}\n"
        return pre + f"s_add_u32 s{S_T0}, s{sbase}, {add + e*7168}\nbuffer_load_dwordx4 v{V_WDD}, {sr(rs,4)}, s{S_T0} offen offset:{1024*e} {cfg.cf[2]} lds"
    tbs = [starts[c] - 3 for c in range(1, len(starts))]
    late = []
    def attention(half):
        sfx = "AB"[half]
        head = {t: [] for t in range(66)}
        vm = {t: [] for t in range(66)}
        pre = {t: [] for t in range(66)}
        bg = {t: [] for t in range(66)}
        nb = len(tbs); c0 = nb - 7
        lh, mb = cfg.lh, cfg.mb
        for ci, tb in enumerate(tbs):
            q = []
            if ci + 2 < len(starts): q += [("D", x) for x in kvdma(ci + 2, half)]
            dload = ci - c0 + 1
            if 0 <= dload <= 6:
                wq_ = [rowdma(R_WD, S_WDO, dload*65536, L_WD + (dload & 1)*32768, e) for e in range(4)]
                if dload == 0:
                    for e in range(4): vm[cfg.t_wd0[e]].append(("D", wq_[e]))
                else: q += [("D", x) for x in wq_]
                hl = [f"buffer_load_dwordx4 {vr(HF + 16*(dload&1) + 4*j,4)}, v{V_L16}, {sr(R_WS,4)}, s{S_T1} offen offset:{1024*j} sc1" for j in range(4)]
                hl[0] = f"s_add_u32 s{S_T1}, s{S_HLD}, {dload*4096}\n" + hl[0]
            elif dload == 7:
                q += [("D", rowdma(R_WO, S_WOO, 0, L_WO, e)) for e in range(4)]
                q += [("D", f"buffer_load_dwordx4 {vr(V_XR,4)}, v{V_FO}, {sr(R_X,4)}, 0 offen")]
            for i, x in enumerate(q): vm[tb + cfg.dpos[i] if ci else cfg.t_kv2].append(x)
            if 0 <= dload <= 6:
                for j in range(4):
                    vm[cfg.t_h0[j] if dload == 0 else tb + cfg.hpos[j]].append((f"H{dload}{j}", hl[j]))
                    if j in cfg.hwait: pre[tbs[ci + 1] + mb[2*j]].append(("wait", f"H{dload}{cfg.hwait[j]}"))
            d = dload - 1
            if d >= 0:
                for k in range(8):
                    j, ct = divmod(k, 2); fr = DF + 4 * (k & 3)
                    for t in range(2):
                        head[tb + lh[k]].append(f"ds_read_b64_tr_b16 {vr(fr+2*t,2)}, v{V_DA+ct} offset:{(d&1)*32768 + j*2048 + t*512}")
                    bg[tb + mb[k]].append(mfma32(YY + 16*ct, HF + 16*(d&1) + 4*j, fr, None if (d == 0 and j == 0) else YY + 16*ct))
        assert min(cfg.t_h0) >= cfg.t_chk and max(lh) <= 6 and max(mb) <= 7 and all(m > l for m, l in zip(mb, lh))
        assert all(lh[k+4] > mb[k] and lh[k] + 6 > mb[k+4] for k in range(4)) and all(cfg.hpos[j] + 6 > mb[2*j+1] for j in range(4))
        st = []
        if half == 0:
            for rt in range(4):
                for ti in range(2):
                    st.append(f"s_add_u32 s{S_T3}, s{S_HSB if ti else S_HST}, {112*1024*rt}\n"
                              f"buffer_store_dwordx4 {vr(HO + 16*ti + 4*rt,4)}, v{V_L16}, {sr(R_WS,4)}, s{S_T3} offen sc1")
        st.append(f"buffer_store_dwordx4 v[12:15], v{V_L16}, {sr(R_WS,4)}, s{S_OST} offen sc1")
        hs = list(range(64))
        for i, x in enumerate(st): vm[hs[int(i * cfg.st_rate)]].append(("S", x))
        if half == 1:
            if cfg.t_pf >= 0: vm[cfg.t_pf] += [("X", x) for x in pfl]
            for e in range(8):
                x = f"s_add_u32 m0, s{S_EX}, {L_WO + 32768 + e*1024}\ns_add_u32 s{S_T0}, s{S_EX+1}, {e*8192}\nbuffer_load_dwordx4 v{V_WDD}, {sr(R_WO,4)}, s{S_T0} offen lds"
                if e == 0: x = f"s_lshl_b32 s{S_EX+1}, s{S_HW}, 16\ns_lshl_b32 s{S_T0}, s{S_CT8}, 7\ns_add_u32 s{S_EX+1}, s{S_EX+1}, s{S_T0}\ns_xor_b32 s{S_T0}, s{S_T16}, 0x40000\ns_add_u32 s{S_EX+1}, s{S_EX+1}, s{S_T0}\ns_lshl_b32 s{S_EX}, s{S_H4K}, 1\n" + x
                vm[cfg.t_wo[e]].append(("D", x))
            assert max(cfg.t_wo) <= tbs[1]
            for i in range(6): head[tbs[1] + 2 + i] += wo_rd[4*i:4*i+4]
            head[61] += wo_rd[24:26]; head[63] += wo_rd[26:]
        else:
            head[63] += wo_rd[:cfg.n_wo63]
        if cfg.t_out: vm[cfg.t_out].append(("X", f"s_mov_b64 exec, 1\nbuffer_load_dword v254, v{V_FO}, {sr(R_OUT,4)}, 0 offen\ns_mov_b64 exec, -1"))
        for t in cfg.t_code: vm[t].append(("X", "s_mov_b64 exec, 3\nglobal_load_dword v254, v[252:253], off\ns_mov_b64 exec, -1"))
        pre[cfg.t_flag].append(("wait", "S"))
        vm[cfg.t_flag].insert(0, ("F", f"s_mov_b64 exec, 1\nbuffer_store_dword v11, off, {sr(R_WS,4)}, s{S_FLG} sc1\ns_mov_b64 exec, -1"))
        poll = f"buffer_load_dword v3, v{V_PO}, {sr(R_WS,4)}, s{S_T2} offen sc1"
        vm[cfg.t_poll].append(("P", f"s_mov_b32 s{S_T2}, {WS_FL}\n" + poll))
        assert cfg.t_poll <= cfg.t_chk - 2
        pre[cfg.t_chk - 1].append(("wait", "P"))
        pre[cfg.t_chk].append(("text", f"s_cbranch_vccnz L_hspin{sfx}\nL_hok{sfx}:"))
        late.append(f"L_hspin{sfx}:\ns_mov_b32 s{S_SPIN}, 0\nL_hchk{sfx}:\ns_sleep 2\n{poll}\ns_waitcnt vmcnt(0)\nv_cmp_ne_u32 vcc, 1, v3\ns_add_u32 s{S_SPIN}, s{S_SPIN}, 1\ns_cbranch_vccz L_hok{sfx}\n"
                    f"s_cmp_lt_u32 s{S_SPIN}, {SPIN_MAX}\ns_cbranch_scc1 L_hchk{sfx}\ns_branch L_hok{sfx}")
        VQ = []
        def cnt(tag):
            idx = [i for i, x in enumerate(VQ) if x == tag]
            return min(63, len(VQ) - 1 - max(idx)) if idx else 63
        def emit_vm(L):
            for tag, x in L: a(x); VQ.append(tag)
        for t in range(tbs[2] + 1, 64):
            if 'v' in cfg.ab: vm[t] = [x for x in vm[t] if 'sc1 lds' in x[1]]
            if 'h' in cfg.ab: vm[t] = [x for x in vm[t] if x[0] != 'H']
            if 'r' in cfg.ab: head[t] = []
            if 'm' in cfg.ab: bg[t] = []
        for t in range(64):
            par = t & 1
            sd, sn = (S0, S1) if par == 0 else (S1, S0)
            p, pp = PP + 8*par, PP + 8*(1 - par)
            isb = (t in tbs and not ('b' in cfg.ab and t > tbs[2])) or t == 62
            if cfg.stamps == 2 and t - 1 in tbs: stamp()
            brk("a")
            midb = isb and half == 1
            if half == 0 and (t - 1 in tbs or t == 63): a(f"s_waitcnt vmcnt({cnt('D')}) lgkmcnt(0)\ns_barrier")
            else: a("s_waitcnt lgkmcnt(0)")
            for k, x in pre[t]: a(x if k == "text" else f"s_waitcnt vmcnt({cnt(x)})")
            emit_vm(vm[t][:1])
            if not ('L' in cfg.ab and t & 2) and not ('Z' in cfg.ab and t > 2):
                if t + 2 < 64: a(f"ds_read_b128 {vr(KF+4*par,4)}, v{V_KA} offset:{kv_off(t+2)}")
                a(f"s_mov_b64 exec, {sr(S_VM,2)}")
                if t + 1 < 64: a(f"ds_read_b128 {vr(VF+8*(1-par),4)}, v{V_VA} offset:{kv_off(t+1)}")
                a(f"ds_read_b128 {vr(VF+8*par+4,4)}, v{V_VA} offset:{kv_off(t)+512}")
                a("s_mov_b64 exec, -1")
            for l in head[t]: a(l)
            emit_vm(vm[t][1:])
            if t == 0 and cfg.stamps == 9: ncs[0] = 0
            if cfg.t_tr <= t < cfg.t_tr + 9: cstamp(9)
            pos = cfg.pos[len(bg[t])]
            sl = [smf(OO, VF + 8*(1-par) + 4, sn + 8) if t >= 1 else None, mfma32(sn, KF + 4*(1-par), QF, CC) if t + 1 < 64 else None]
            sl += bg[t][:1] + [smf(OO, VF + 8*par, sd)] + bg[t][1:]
            at = {p: m for p, m in zip(pos, sl) if m}
            if 'M' in cfg.ab:
                import re as _re
                for p in list(at):
                    if at[p] in bg[t]:
                        m = _re.match(r"\S+ v\[(\d+):\d+\], v\[(\d+):\d+\], v\[(\d+):\d+\]", at[p]); d_, a_, b_ = map(int, m.groups())
                        d_ += 8 * (t & 1)
                        at[p] = mfma16(d_, a_, b_, d_); at[p + 1] = mfma16(d_ + 4, b_, a_, d_ + 4)
            if t in cfg.upd:
                assert len(sl) == 3
                at = {1: f"v_frexp_exp_i32_f32_e64 v4, v{OO+8}", 2: sl[0], 3: f"v_sub_u32 v4, {17 - int(cfg.shift)}, v4\nv_cvt_f32_i32_e64 v5, v4", 5: sl[1],
                      8: f"v_mfma_f32_32x32x2_f32 {vr(CC,16)}, v49, v5, {vr(CC,16)}", 15: sl[2]}
                if cfg.updm >= 1:
                    mv = [f"v_mov_b32 v{CC+1}, v{CC}"] + [f"v_mov_b64 {vr(CC+i,2)}, {vr(CC,2)}" for i in range(2, 16, 2)] if cfg.updm == 1 else [f"v_mov_b32 v{CC+i}, v{CC}" for i in range(1, 16)]
                    del at[8], at[15]
                    at[12] = "\n".join([f"v_add_f32{'_e64' if cfg.updm == 1 else ''} v{CC}, v{CC}, v5"] + mv)
                    at[13] = sl[2]
                if cfg.updl: at[3] = f"v_sub_u32 v4, {17 - int(cfg.shift)}, v4\nv_max_i32 v4, 0xffffff82, v4\nv_cvt_f32_i32_e64 v5, v4\nv_ldexp_f32 v4, 1.0, v4"
            if t - 2 in cfg.upd:
                assert len(sl) == 3
                at = {2: sl[0], 6: sl[1], 13: "\n".join((f"v_mul_f32{'_e64' if i == 0 else ''} v{OO+i}, v{OO+i}, v4" if cfg.updl else f"v_ldexp_f32 v{OO+i}, v{OO+i}, v4") for i in range(9)), 15: sl[2]}
            a(".p2align 3")
            odd = False
            for i in range(16):
                if i in at: a(at[i])
                if midb and i == cfg.bmid: a(f"s_waitcnt vmcnt({cnt('D')}) lgkmcnt(0)\ns_barrier")
                pr = i == (cfg.pp if half else cfg.pa)
                wide = (i + 1 in at) and (odd == pr)
                a(f"v_exp_f32{'_e64' if wide else ''} v{sd+i}, v{sd+i}")
                if not wide: odd = not odd
                if pr: a(f"s_setprio {cfg.pv[half]}"); odd = not odd
            if cfg.stamps == 3: a(f"s_waitcnt lgkmcnt(0)\nv_writelane_b32 v253, s{S_TS}, {t}\nv_writelane_b32 v254, s{S_TS2}, {t}\ns_memtime {sr(S_TS2,2)}")
            if t == cfg.t_chk - 1: a("v_cmp_ne_u32 vcc, 1, v3")
            if (cfg.pp if half else cfg.pa) is not None: a("s_setprio 0")
            if cfg.t_tr <= t < cfg.t_tr + 9: cstamp(9)
        a("s_waitcnt lgkmcnt(0)\ns_nop 0")
        a(smf(OO, VF + 12, S1 + 8))
    OF, SS, XU, TT = 16, 64, 160, 168
    def oload(j): return f"buffer_load_dwordx4 {vr(OF+4*j,4)}, v{V_L16}, {sr(R_WS,4)}, s{S_OLD if j < 4 else S_T1} offen offset:{1024*(j&3)} sc1"
    def chk(j): return f"v_max3_u32 v8, v{OF+4*j}, v{OF+4*j+1}, v{OF+4*j+2}\nv_max_u32 v8, v{OF+4*j+3}, v8\nv_cmp_eq_u32 vcc, -1, v8"
    F = f"L_ofix:\ns_mov_b32 s{S_T2}, 0\ns_waitcnt vmcnt(0)\n"
    for j in range(8):
        F += (f"s_bitcmp1_b32 s{S_CNT}, {j}\ns_cbranch_scc0 L_ofb{j}\n{chk(j)}\ns_cmp_lg_u32 s{S_T2}, 0\ns_cbranch_vccz L_ofa{j}\n{oload(j)}\ns_mov_b32 s{S_T2}, 1\ns_branch L_ofb{j}\nL_ofa{j}:\ns_cbranch_scc1 L_ofb{j}\ns_bitset0_b32 s{S_CNT}, {j}\n"
              + mfma32(SS, OF + 4*j, WOF[2*j], SS) + "\n" + mfma32(SS + 16, OF + 4*j, WOF[2*j + 1], SS + 16) + f"\nL_ofb{j}:\n")
    F += (f"s_add_u32 s{S_SPIN}, s{S_SPIN}, 1\ns_cmp_ge_u32 s{S_SPIN}, {SPIN_MAX}\ns_cselect_b32 s{S_CNT}, 0, s{S_CNT}\n"
          f"s_cmp_lg_u32 s{S_CNT}, 0\ns_cbranch_scc1 L_ofix\ns_setpc_b64 {sr(S_RET,2)}")
    late.insert(0, F)
    def normalize():
        for i in range(0, 8, 2): a(f"v_pk_mul_f32 {vr(OO+i,2)}, {vr(OO+i,2)}, v[10:11]")
        for i in range(4): a(f"v_cvt_pk_bf16_f32 v{12+i}, v{OO+2*i}, v{OO+2*i+1}")
    def tail(half):
        sfx = "AB"[half]
        if cfg.stamps == 8: ncs[0] = 0
        stamp(name="att1"); pad("att1")
        cstamp()
        a(f"s_mov_b32 s{S_T2}, {hex(f2u(2.0**120))}\ns_mov_b32 s{S_T3}, {hex(f2u(2.0**-106))}")
        a(f"s_add_u32 s{S_T1}, s{S_OLD}, 4096\ns_mov_b32 s{S_SPIN}, 0\ns_lshl_b32 s{S_T0}, s{S_W}, 13\ns_mov_b32 m0, s{S_T0}")
        a.nop(6)
        a(f"""
        v_rcp_f32 v10, v{OO+8}
        v_maximum3_f32 v8, abs(v{OO}), abs(v{OO+1}), abs(v{OO+2})
        v_maximum3_f32 v9, abs(v{OO+3}), abs(v{OO+4}), abs(v{OO+5})
        v_maximum3_f32 v8, abs(v{OO+6}), abs(v{OO+7}), v8
        v_maximum3_f32 v6, v8, v9, v{OO+8}
        v_max_f32 v8, v8, v9
        v_cmp_ngt_f32 vcc, s{S_T2}, v6
        v_cmp_gt_f32 {sr(S_EX,2)}, s{S_T3}, v8
        v_mov_b32 v11, v10
        s_or_b64 vcc, vcc, {sr(S_EX,2)}
        """)
        a("s_branch L_fb" if cfg.force_fb else "s_nop 0" if cfg.ab else "s_cbranch_scc1 L_fb")
        normalize()
        a.label(f"L_ost{sfx}")
        a(f"buffer_store_dwordx4 v[12:15], v{V_L16}, {sr(R_WS,4)}, s{S_OST} offen sc1")
        cstamp()
        if half == 0:
            for l in wo_rd[cfg.n_wo63:]: a(l)
        for i in range(32): a(f"ds_write_addtid_b32 v{YY+i} offset:{32768 + 256*i}")
        cstamp()
        a(f"""
        v_xor_b32 v5, 16, v{V_GA}
        v_add_u32 v6, 0x10000, v{V_GA}
        v_add_u32 v7, 0x10000, v5
        s_mov_b32 s{S_EX}, 0xff00ff00
        s_mov_b32 s{S_EX+1}, 0xff00ff00
        s_mov_b64 exec, {sr(S_EX,2)}
        v_swap_b32 v{V_XR}, v{V_XR+2}
        v_swap_b32 v{V_XR+1}, v{V_XR+3}
        s_mov_b64 exec, -1
        """)
        for i in range(4): a(f"v_lshlrev_b32 v{XU+2*i}, 16, v{V_XR+i}\nv_and_b32 v{XU+2*i+1}, 0xffff0000, v{V_XR+i}")
        for i in range(0, 32, 2): a(f"v_mov_b64 {vr(SS+i,2)}, 0")
        a("s_waitcnt lgkmcnt(0)\ns_barrier")
        if half: a(f"s_add_u32 m0, s{S_T0}, 7940")
        cstamp()
        yr = [f"ds_read_b128 {vr(YY+8*p+4*e,4)}, v{((V_GA, 5), (6, 7))[p >> 1][e]} offset:{(32768 + 16384*p) & 0xffff}" for p in range(4) for e in range(2)]
        G = ["s_waitcnt lgkmcnt(0)"]
        for p in (1, 2, 3): G += [f"v_add_f32 v{YY+i}, v{YY+i}, v{YY+8*p+i}" for i in range(8)]
        G += [f"v_mul_f32 v{TT+i}, {hex(f2u(-math.log2(math.e)))}, v{YY+i}" for i in range(8)]
        G += [f"v_exp_f32 v{TT+i}, v{TT+i}" for i in range(8)]
        G += [f"v_add_f32 v{TT+i}, 1.0, v{TT+i}" for i in range(8)]
        G += [f"v_rcp_f32 v{TT+i}, v{TT+i}" for i in range(8)]
        G += [f"v_mul_f32 v{YY+i}, v{YY+i}, v{TT+i}" for i in range(8)]
        if half:
            for l in yr: a(l)
            for j in range(cfg.n_b0): a(oload(j))
            for l in G[:cfg.n_gb]: a(l)
            G = G[cfg.n_gb:]
            for j in range(cfg.n_b0, 8):
                a(oload(j))
                for l in G[:cfg.n_gp]: a(l)
                G = G[cfg.n_gp:]
            for l in G: a(l)
        elif cfg.odelay:
            for l in yr + G[:cfg.odelay]: a(l)
            G = G[cfg.odelay:]
            for j in range(8): a(oload(j))
        else:
            for j in range(8): a(oload(j)); a(yr[j])
        cstamp()
        def nxt(j): return f"s_waitcnt vmcnt({7-j})\n" + chk(j) + f"\ns_movk_i32 s{S_CNT}, {(0xff << j) & 0xff}"
        a(nxt(0))
        for j in range(8):
            a(f"s_cbranch_vccnz L_omiss{sfx}")
            if j in (0, 3, 7): cstamp()
            a(mfma32(SS, OF + 4*j, WOF[2*j], SS))
            if j < 7: a(nxt(j + 1))
            a(mfma32(SS + 16, OF + 4*j, WOF[2*j + 1], SS + 16))
        late[0] = f"L_omiss{sfx}:\ns_call_b64 {sr(S_RET,2)}, L_ofix\ns_branch L_ook{sfx}\n" + late[0]
        a.label(f"L_ook{sfx}")
        a.nop(11)
        for i in range(32): a(f"ds_write_addtid_b32 v{SS+i} offset:{(57596 if half else 0) + 256*i}")
        if not half:
            for l in G: a(l)
    far("L_attA")
    n0 = nst[0]
    attention(0)
    tail(0)
    a("s_branch L_fin2")
    far("L_attB")
    nst[0] = n0
    attention(1)
    tail(1)
    far("L_fin2", True)
    a("s_waitcnt lgkmcnt(0)\ns_barrier")
    if cfg.stamps == 6: stamp()
    cstamp()
    for p in range(4):
        for e in range(2): a(f"ds_read_b128 {vr(OF+8*p+4*e,4)}, v{((V_GA, 5), (6, 7))[p >> 1][e]} offset:{16384*p}")
    a("s_waitcnt lgkmcnt(0)" if cfg.stamps == 8 else "s_waitcnt lgkmcnt(4)")
    for i in range(0, 8, 2): a(f"v_pk_add_f32 {vr(OF+i,2)}, {vr(OF+i,2)}, {vr(OF+8+i,2)}")
    a("s_waitcnt lgkmcnt(0)")
    for i in range(0, 8, 2): a(f"v_pk_add_f32 {vr(OF+16+i,2)}, {vr(OF+16+i,2)}, {vr(OF+24+i,2)}")
    for i in range(0, 8, 2): a(f"v_pk_add_f32 {vr(OF+i,2)}, {vr(OF+i,2)}, {vr(OF+16+i,2)}")
    for i in range(0, 8, 2): a(f"v_pk_fma_f32 {vr(OF+i,2)}, {vr(OF+i,2)}, {vr(YY+i,2)}, {vr(XU+i,2)}")
    for i in range(4): a(f"v_cvt_pk_bf16_f32 v{12+i}, v{OF+2*i}, v{OF+2*i+1}")
    a(f"s_mov_b64 exec, {sr(S_EX,2)}\nv_swap_b32 v12, v14\nv_swap_b32 v13, v15\ns_mov_b64 exec, -1")
    a(f"buffer_store_dwordx4 v[12:15], v{V_FO}, {sr(R_OUT,4)}, 0 offen {cfg.oflag}")
    if cfg.stamps == 6: stamp()
    cstamp()
    if cfg.stamps:
        a("s_waitcnt vmcnt(0)")
        cstamp()
        stamp(True)
        for i in range(ncs[0]): a(f"v_writelane_b32 v{V_STAMP}, s{CSR[i]}, {40+i}")
        if cfg.stamps in (10, 12):
            for i in range(6): a(f"v_writelane_b32 v{V_STAMP}, s{[32, 34, 92, 94, 96, 98][i]}, {40+i}")
        if cfg.stamps in (5, 6): a(f"v_writelane_b32 v{V_STAMP}, s{S_SPIN}, 63")
        a(f"s_lshl_b32 s{S_T0}, s2, 3\ns_add_u32 s{S_T0}, s{S_T0}, s{S_W}\ns_lshl_b32 s{S_T0}, s{S_T0}, 8\ns_add_u32 s{S_T0}, s{S_T0}, {WS_DBG}")
        a(f"v_lshlrev_b32 v2, 2, v{V_LANE}\nbuffer_store_dword v{V_STAMP}, v2, {sr(R_WS,4)}, s{S_T0} offen")
        if cfg.stamps == 3:
            a(f"s_add_u32 s{S_T0}, s{S_T0}, 0x80000\nbuffer_store_dword v253, v2, {sr(R_WS,4)}, s{S_T0} offen\ns_add_u32 s{S_T0}, s{S_T0}, 0x80000\nbuffer_store_dword v254, v2, {sr(R_WS,4)}, s{S_T0} offen")
    pad("end")
    a.label("L_end")
    a("s_endpgm")
    a(late[0])
    if cfg.brks is None: brk("x")
    for l in late[1:]: a(l)
    a.label("L_fb")
    a(f"v_mov_b32 v8, 0xff800000\ns_mov_b32 s{S_CNT}, {WS_KV}")
    a(f"v_subrev_u32 v10, {L_KV}, v{V_VA}")
    a.label("L_fb1")
    a(f"buffer_load_dwordx4 {vr(KF,4)}, v{V_L16}, {sr(R_WS,4)}, s{S_CNT} offen sc1\ns_waitcnt vmcnt(0)")
    a(mfma32(S0, KF, QF, None)); a.nop(12)
    for l in maxtree(S0, 8, init=True): a(l)
    a(f"s_add_u32 s{S_CNT}, s{S_CNT}, 2048\ns_cmp_lt_u32 s{S_CNT}, {WS_KV + 64*2048}\ns_cbranch_scc1 L_fb1")
    setC(8, 0.0)
    for i in range(16): a(f"v_mov_b32 v{OO+i}, 0")
    a(f"s_mov_b32 s{S_CNT}, {WS_KV}")
    a.label("L_fb2")
    a(f"buffer_load_dwordx4 {vr(KF,4)}, v{V_L16}, {sr(R_WS,4)}, s{S_CNT} offen sc1")
    a(f"s_mov_b64 exec, {sr(S_VM,2)}")
    a(f"buffer_load_dwordx4 {vr(VF,4)}, v10, {sr(R_WS,4)}, s{S_CNT} offen sc1")
    a(f"buffer_load_dwordx4 {vr(VF+4,4)}, v10, {sr(R_WS,4)}, s{S_CNT} offen offset:512 sc1")
    a("s_mov_b64 exec, -1\ns_waitcnt vmcnt(0)")
    a(mfma32(S0, KF, QF, CC)); a.nop(12)
    for i in range(16): a(f"v_exp_f32 v{S0+i}, v{S0+i}")
    a.nop(2)
    a(smf(OO, VF, S0)); a(smf(OO, VF + 4, S0 + 8))
    a(f"s_add_u32 s{S_CNT}, s{S_CNT}, 2048\ns_cmp_lt_u32 s{S_CNT}, {WS_KV + 64*2048}\ns_cbranch_scc1 L_fb2")
    a.nop(12)
    a(f"v_rcp_f32 v10, v{OO+8}\ns_nop 0\nv_mov_b32 v11, v10")
    normalize()
    for i in range(4): a(f"v_min_u32 v{12+i}, -2, v{12+i}")
    a(f"s_cmp_ge_u32 s{S_W}, 4\ns_cbranch_scc1 L_ostB\ns_branch L_ostA")
    a.label("L_code_end")
    return a

HEADER = open(f"cdna_kernels/{NAME}.s.ref").read().split("; Override launch")[0]
def wrap(a):
    s = HEADER + """; One persistent launch, one 8-wave workgroup per CU (all 256 are resident: 160 KiB LDS each). Generated by the author's script.
;  1. K/V rows, LayerNorm statistics and column sums of W are shared out over the workgroups, published in d_ws, arrival counted in d_debug.
;  2. [w_gate | w_up | w_q] projection on raw x, 128 x 256 tile; LayerNorm applied in the epilogue; h and q go to d_ws.
;  3. MQA attention with the down projection interleaved; 4. o exchange, w_o projection, gate, residual.
; Hand-offs use write-through stores and L1-bypassing loads; flags and 'not yet written' patterns are initialised inside the launch.
""" + "; @launch grid=(256,1,1) block=(512,1,1) lds=163840\n"
    s += f""".amdgcn_target "amdgcn-amd-amdhsa--gfx950"
.text
.globl {NAME}_kernel
.p2align 8
.type {NAME}_kernel,@function
{NAME}_kernel:
"""
    s += a.text()
    s += f""".section .rodata,"a"
.p2align 6
.amdhsa_kernel {NAME}_kernel
  .amdhsa_next_free_vgpr 256
  .amdhsa_next_free_sgpr 102
  .amdhsa_accum_offset 256
  .amdhsa_group_segment_fixed_size 0
  .amdhsa_kernarg_size 96
  .amdhsa_user_sgpr_count 2
  .amdhsa_user_sgpr_kernarg_segment_ptr 1
  .amdhsa_system_sgpr_workgroup_id_x 1
.end_amdhsa_kernel
"""
    return s

if __name__ == "__main__":
    cfg = Cfg()
    out = sys.argv[1]
    for kv in sys.argv[2:]:
        k, v = kv.split("=")
        setattr(cfg, k, eval(v))
    g0 = gen
    def gen(cfg):
        a = g0(cfg)
        if 'E' in cfg.ab or 'S' in cfg.ab:
            n = next(i for i, l in enumerate(a.lines) if l.startswith("buffer_atomic_add"))
            for i in range(n):
                if a.lines[i].startswith("buffer_store") or ('E' in cfg.ab and a.lines[i].startswith("buffer_")): a.lines[i] = "s_nop 0"
            h = a.lines.index("L_helper:")
            k = 0
            for i in range(h, len(a.lines)):
                if a.lines[i].startswith("buffer_store") and k < 3:
                    a.lines[i] = f"buffer_load_dword v9, off, {sr(R_X,4)}, 0"; k += 1
        if cfg.jitter:
            import random
            rnd = random.Random(cfg.jitter)
            out_ = []; k = 0; started = False
            for i, l in enumerate(a.lines):
                if l.startswith("s_cbranch_scc1 L_helper"): started = True
                if started and (l == "s_barrier" or ("sc1" in l and rnd.random() < 0.3)) and rnd.random() < 0.5:
                    k += 1
                    out_ += ["s_cselect_b32 s101, 1, 0", f"s_lshl_b32 s100, s2, 3", f"s_add_u32 s100, s100, s{S_W}" if rnd.random() < 0.5 else "s_nop 0",
                             f"s_mul_i32 s100, s100, {rnd.randrange(1, 1 << 30) | 1}", "s_lshr_b32 s100, s100, 28", f"s_cmp_lt_u32 s100, {rnd.choice([1, 2, 4])}",
                             f"s_cbranch_scc0 L_jit{k}", f"s_sleep {rnd.choice([5, 20, 60, 120])}", f"L_jit{k}:", "s_cmp_eq_u32 s101, 1"]
                out_.append(l)
            a.lines = out_
        return a
    a = gen(cfg)
    if cfg.pages:
        import subprocess, re
        open("_p1.s", "w").write(wrap(a))
        subprocess.run(["clang", "-x", "assembler", "-target", "amdgcn-amd-amdhsa", "-mcpu=gfx950", "-c", "_p1.s", "-o", "_p1.o"], check=True)
        t = subprocess.run(["llvm-objdump", "-t", "_p1.o"], capture_output=True, text=True).stdout
        pts = sorted((int(m.group(1), 16), m.group(2), int(m.group(3))) for m in re.finditer(r"^([0-9a-f]+) .* L_brk_(\w)_(\d+)$", t, re.M))
        brks = {}; start = -0x300
        for (ad, k, i), (nx, _, _) in zip(pts, pts[1:]):
            if nx - start > 4096 - 112:
                brks[i] = k; start = ad
        cfg.brks = brks
        a = gen(cfg)
    else:
        cfg.brks = {}
        a = gen(cfg)
    errs = check(a.lines)
    for e in errs: print("HAZARD need %d have %d:\n   %s\n   %s" % (e[2], e[3], e[0], e[1]))
    open(out, "w").write(wrap(a))
    print("wrote", out, len(a.lines), "lines", len(errs), "hazards")
```

```python
import sys, math
from asmlib import Asm, vr, sr, f2u, check

NAME = "recurrent_scan__grouped_kv_mqa__glu_gated_geglu__prompt"

class Cfg:
    stamps = False
    stop = None
    force_fb = False
    shift = 101.0
    upd = (5,)
    brks = None
    pages = True
    touch = True
    far = ('L_attA', 'L_attB')
    odelay = 1
    xmap = 0
    krot = 8
    qsl = 2
    p0 = (4, 6)
    cs_in = False
    jitter = 0
    t_out = 0
    cs_late = False
    n_cs0 = 2
    n_csb = 4
    wfix = False
    stub = 's_nop 0\n'
    updm = 1
    updl = True
    cf = ('', '', '')
    nodot = False
    nodma = False
    nord = False
    sizes = [8, 8, 7] + [6]*6 + [5]
    ilen = 6
    g_init = 2
    t_pf = -1
    t_wo = (7, 8, 8, 10, 10, 11, 11, 12)
    t_wd0 = (15, 15, 16, 17)
    t_poll = 16
    bmid = 2
    lh = (1, 2, 3, 3, 4, 5, 6, 6)
    mb = (2, 3, 4, 5, 5, 6, 7, 7)
    dpos = (1, 1, 2, 2, 3, 4)
    hpos = (4, 5, 5, 6)
    hwait = {0: 0, 1: 3}
    t_h0 = (18, 18, 19, 20)
    t_chk = 18
    pbar = 1
    n_csa = 4
    lead0 = 10
    oflag = 'sc1'
    n_wo63 = 6
    nt = ''
    t_code = (7, 43)
    ofast = 0
    olate = 1
    yfirst = True
    n_gb = 1
    n_b0 = 0
    oswap = False
    t_tr = 30
    n_gp = 8
    i_q = 5
    i_qb = 2
    n_poll = 0
    e6 = 0
    pf_first = True
    bp = 0
    g_h = 29
    c_st = (-2, 0)
    c_q = (2, 99, 4, 0)
    gpos = 0
    g_tr = 4
    mord = 0
    g_early = True
    mswap = False
    c_arr = 1
    lead = [8, 10, 12, 9, 12, 12]
    n_pre = (2, 4)
    n_fin = (7, 6)
    g_cs = (3, 4, 5, 6)
    g_csc = 9
    bprio = 3
    st_rate = 0.5
    t_flag = 8
    t_kv2 = 6
    m16 = False
    pp = 0
    pos = [(2, 6, 12), (2, 6, 10, 14), (1, 4, 7, 10, 13)]
    pa = 4
    pv = (1, 1)
    ab = ''
    pad = None

WS_KV, WS_ST, WS_FL, WS_CS, WS_O, WS_H, WS_DBG, WS_Q = 0, 0x80000, 0x28000, 0x40000, 0x100000, 0x400000, 0xC00000, 0xE00000
WS_SIZE = 0x1000000
L_X, L_W, L_R = 0, 49152, 147456
L_KV, L_WD, L_WO = 0, 65536, 98304
P_X, P_WQ, P_WK, P_WV, P_WO, P_WG, P_WU, P_WD, P_OUT, P_DBG, P_WS = 4, 6, 8, 10, 12, 16, 18, 20, 22, 24, 26
R_X, R_WKV, R_WD, R_WO, R_OUT, R_DBG, R_WS = 28, 32, 36, 40, 44, 48, 52
S_W, S_RB, S_CB, S_RT64, S_CT8 = 56, 57, 58, 59, 60
S_T16 = 61
S_VM = 62
S_XOFF = 64
S_WOFF = 65
S_HW = 66
S_ONES = 67
S_T0, S_T1, S_T2, S_T3 = 68, 69, 70, 71
S_OST = 72
S_FLG = 73
S_HST = 74
S_KQ, S_RT = 75, 76
S_WDO = 77
S_HLD = 78
S_W4K = 79
S_W2K = 80
S_SPIN = 81
S_WOO = 82
S_OLD = 83
S_EX = 84
S_TS = 86
S_CNT = 88
S_WSTEP = 89
S_TS2 = 90
S_RET = 0
R_W, R_CW = 92, 96
S_H4K = 3
S_HSB = 14
S_M0W = 15
SPIN_MAX = 1 << 18

V_LANE = 1
V_STAMP = 255
V_L16, V_KA, V_WDD, V_VA, V_DA, V_PO, V_FO, V_XR, QF = 208, 209, 210, 211, 212, 214, 215, 216, 220
V_GA = 0

def mfma32(d, a, b, c):
    cs = "0" if c is None else vr(c, 16)
    return f"v_mfma_f32_32x32x16_bf16 {vr(d,16)}, {vr(a,4)}, {vr(b,4)}, {cs}"
V_IDX = 48
def smf(d, a, b):
    return f"v_smfmac_f32_32x32x32_bf16 {vr(d,16)}, {vr(a,4)}, {vr(b,8)}, v{V_IDX}"
def mfma16(d, a, b, c):
    cs = "0" if c is None else vr(c, 4)
    return f"v_mfma_f32_16x16x32_bf16 {vr(d,4)}, {vr(a,4)}, {vr(b,4)}, {cs}"

def gen(cfg):
    a = Asm()
    nst = [0]
    def stamp(final=False, name=None):
        if not cfg.stamps: return
        i = nst[0]; nst[0] += 1
        if cfg.stamps in (8, 9, 10, 11, 12) and i and not final: return
        if cfg.stamps == 7:
            if isinstance(name, int): i = name
            elif final: i = 9
            elif name == "b0": i = 7
            elif name == "g1": i = 8
            elif i: return
        elif isinstance(name, int):
            nst[0] -= 1; return
        if cfg.stamps == 5:
            marks = {"b0": 2, "g1": 3, "att0": 4, "att1": 5}
            if final: i = 1
            elif name in marks: i = marks[name]
            elif i: return
        a(f"s_memrealtime {sr(S_TS,2)}\ns_memtime {sr(S_TS2,2)}\ns_waitcnt lgkmcnt(0)\nv_writelane_b32 v{V_STAMP}, s{S_TS}, {i}\nv_writelane_b32 v{V_STAMP}, s{S_TS2}, {32+i}")
    nbrk = [0]
    def brk(kind):
        i = nbrk[0]; nbrk[0] += 1
        if cfg.brks is None: a.label(f"L_brk_{kind}_{i}")
        elif i in cfg.brks:
            a(f"s_branch L_pg{i}\n.p2align 12\nL_stub{i}:\n" + cfg.stub + f"s_setpc_b64 {sr(S_RET,2)}\nL_pg{i}:")
    FAR = {"L_qt": "e", "L_joinA": "e", "L_attA": "a", "L_attB": "a", "L_fin2": "a"}
    def far(label, fall=False):
        if label in cfg.far:
            if fall: a(f"s_branch {label}")
            a(f".p2align 6\nL_stub{label}:\ns_nop 0\ns_setpc_b64 {sr(S_RET,2)}")
        a.label(label)
    def touch(kinds, first, n, maxn):
        ids = [] if cfg.brks is None else [i for i, k in cfg.brks.items() if k in kinds] + [l for l, k in FAR.items() if k in kinds and l in cfg.far]
        assert len(ids) <= maxn
        for j in range(maxn):
            if j < len(ids) and cfg.touch: a(f"s_cmp_eq_u32 s{S_HW}, {first + j % n}\ns_cbranch_scc0 L_nt{ids[j]}\ns_call_b64 {sr(S_RET,2)}, L_stub{ids[j]}\nL_nt{ids[j]}:")
            elif cfg.brks is None: a("s_nop 0\ns_nop 0\ns_nop 0")
    ncs = [0]
    CSR = [4, 6, 8, 10, 12] + list(range(16, 28, 2)) + [32, 34, 92, 94, 96, 98, 48]
    def cstamp(mode=8):
        if cfg.stamps != mode: return
        a(f"s_memtime {sr(CSR[ncs[0]], 2)}"); ncs[0] += 1
    def c12(k):
        if cfg.stamps == 12: a(f"s_memtime {sr([32, 34, 92, 94, 96, 98][k], 2)}\ns_waitcnt lgkmcnt(0)")
    def pad(pt):
        if not cfg.pad or cfg.pad[0] != pt: return
        if len(cfg.pad) > 2:
            inv = cfg.pad[2] == 2
            a(f"s_and_b32 s{S_T0}, s{S_TS}, 0x7fffffff")
            if inv: a(f"s_not_b32 s{S_T0}, s{S_T0}")
            a(f"v_mov_b32 v2, s{S_T0}\ns_mov_b64 exec, 1\nbuffer_atomic_umax v2, off, {sr(R_DBG,4)}, 0 offset:4 sc1\ns_mov_b64 exec, -1")
            a(f"L_pad0:\ns_memrealtime {sr(S_TS2,2)}\ns_waitcnt lgkmcnt(0)\ns_sub_u32 s{S_TS2}, s{S_TS2}, s{S_TS}\ns_cmp_lt_u32 s{S_TS2}, {int(cfg.pad[1]*100) - 1500}\ns_cbranch_scc1 L_pad0")
            a(f"buffer_load_dword v2, off, {sr(R_DBG,4)}, 0 offset:4 sc1\ns_waitcnt vmcnt(0)\nv_readfirstlane_b32 s{S_T0}, v2\ns_nop 3")
            if inv: a(f"s_not_b32 s{S_T0}, s{S_T0}")
            a(f"s_and_b32 s{S_TS}, s{S_TS}, 0x80000000\ns_or_b32 s{S_TS}, s{S_TS}, s{S_T0}")
        a(f"L_pad{len(a.lines)}:\ns_memrealtime {sr(S_TS2,2)}\ns_waitcnt lgkmcnt(0)\ns_sub_u32 s{S_TS2}, s{S_TS2}, s{S_TS}\ns_cmp_lt_u32 s{S_TS2}, {int(cfg.pad[1]*100)}\ns_cbranch_scc1 L_pad{len(a.lines)}")
    def srd(r, p, size):
        a(f"s_mov_b32 s{r}, s{p}\ns_and_b32 s{r+1}, s{p+1}, 0xffff\ns_mov_b32 s{r+2}, {hex(size)}\ns_mov_b32 s{r+3}, 0x20000")

    a(f"s_cmp_ge_u32 s2, 256\ns_cbranch_scc1 L_end")
    if cfg.pad: a(f"s_memrealtime {sr(S_TS,2)}")
    a(f"s_load_dwordx16 s[4:19], s[0:1], 0\ns_load_dwordx8 s[20:27], s[0:1], 64")
    if cfg.stamps:
        a(f"v_mov_b32 v{V_STAMP}, 0")
    a(f"v_lshrrev_b32 v2, 6, v0\nv_and_b32 v{V_LANE}, 63, v0")
    a(f"s_getpc_b64 {sr(S_EX,2)}")
    a.label("L_pc")
    a(f"""
    v_readfirstlane_b32 s{S_W}, v2
    s_and_b32 s{S_T0}, s2, 0xf8
    v_add_u32 v2, s{S_T0}, v2
    v_lshl_add_u32 v2, v2, 1, v{V_LANE}
    v_lshlrev_b32 v252, 7, v2
    v_min_u32 v252, L_code_end-L_pc-4, v252
    v_mov_b32 v253, 0
    v_lshl_add_u64 v[252:253], v[252:253], 0, {sr(S_EX,2)}
    s_mov_b64 exec, 3
    global_load_dword v9, v[252:253], off
    s_mov_b64 exec, -1
    """)
    a(f"""
    s_and_b32 s{S_T0}, s2, 7
    s_lshr_b32 s{S_T1}, s2, 3
    s_and_b32 s{S_CT8}, s{S_T1}, 7
    """)
    if cfg.xmap == 1:
        a(f"""
        s_and_b32 s{S_RB}, s{S_T1}, 15
        s_lshr_b32 s{S_T2}, s2, 7
        s_lshl_b32 s{S_CB}, s{S_T0}, 1
        s_add_u32 s{S_CB}, s{S_CB}, s{S_T2}
        s_lshr_b32 s{S_T1}, s{S_T1}, 3
        """)
    elif cfg.xmap == 2:
        a(f"""
        s_and_b32 s{S_T2}, s{S_T0}, 3
        s_lshl_b32 s{S_T2}, s{S_T2}, 2
        s_and_b32 s{S_RB}, s{S_T1}, 3
        s_add_u32 s{S_RB}, s{S_RB}, s{S_T2}
        s_and_b32 s{S_T2}, s{S_T0}, 4
        s_lshl_b32 s{S_T2}, s{S_T2}, 1
        s_lshr_b32 s{S_CB}, s{S_T1}, 2
        s_add_u32 s{S_CB}, s{S_CB}, s{S_T2}
        s_lshr_b32 s{S_T1}, s{S_T1}, 3
        """)
    else:
        a(f"""
        s_and_b32 s{S_T2}, s{S_T0}, 1
        s_lshl_b32 s{S_T2}, s{S_T2}, 3
        s_add_u32 s{S_RB}, s{S_T2}, s{S_CT8}
        s_lshr_b32 s{S_T1}, s{S_T1}, 3
        s_lshr_b32 s{S_T2}, s{S_T0}, 1
        s_lshl_b32 s{S_T2}, s{S_T2}, 2
        s_add_u32 s{S_CB}, s{S_T2}, s{S_T1}
        """)
    a(f"""
    s_lshl_b32 s{S_T2}, s{S_T0}, 2
    s_add_u32 s{S_RT64}, s{S_T2}, s{S_T1}
    s_and_b32 s{S_HW}, s{S_W}, 3
    s_lshl_b32 s{S_H4K}, s{S_HW}, 12
    v_lshlrev_b32 v{V_L16}, 4, v{V_LANE}
    s_mov_b32 s{R_X+2}, 0x200000
    s_mov_b32 s{R_X+3}, 0x20000
    s_cmp_ge_u32 s{S_W}, 4
    s_cbranch_scc1 L_helper
    """)

    sizes = cfg.sizes
    assert sum(sizes) == 64
    starts = [sum(sizes[:i]) for i in range(len(sizes))]
    S0, S1, PP, OO, CC, KF, VF = 16, 32, 48, 64, 80, 100, 108
    YY, HF, DF = 128, 160, 192
    HO = 160
    V_OA = 62
    WOF = [50, 54, 58, 96, 124] + list(range(224, 252, 4)) + [176, 180, 184, 188]
    wo_rd = [f"ds_read_b64_tr_b16 {vr(WOF[2*j+ct] + 2*t,2)}, v{V_OA+ct} offset:{j*2048 + t*512}" for j in range(8) for ct in range(2) for t in range(2)]
    def kv_off(t):
        c = max(i for i in range(len(starts)) if starts[i] <= t)
        return ((c + 1) % 3) * 16384 + (t - starts[c]) * 2048
    qload = f"buffer_load_dwordx4 {vr(QF,4)}, v{V_L16}, {sr(R_WS,4)}, s{S_T2} offen sc1"

    XS = [2, 0, 1, 2, 0, 1, 2, 0]
    L_PX = L_X + XS[2]*16384
    def setup_ids():
        a(f"""
        s_lshr_b32 s{S_KQ}, s{S_W}, 1
        s_and_b32 s{S_RT}, s{S_W}, 1
        s_lshl_b32 s{S_T2}, s{S_RT64}, 1
        s_add_u32 s{S_T2}, s{S_T2}, s{S_RT}
        s_lshl_b32 s{S_T0}, s{S_T2}, 3
        s_add_u32 s{S_T0}, s{S_T0}, s{S_CT8}
        s_lshl_b32 s{S_T0}, s{S_T0}, 2
        s_add_u32 s{S_T0}, s{S_T0}, s{S_KQ}
        s_lshl_b32 s{S_T0}, s{S_T0}, 10
        s_add_u32 s{S_OST}, s{S_T0}, {WS_O}
        s_lshl_b32 s{S_T0}, s2, 7
        s_lshl_b32 s{S_T1}, s{S_W}, 2
        s_add_u32 s{S_T0}, s{S_T0}, s{S_T1}
        s_add_u32 s{S_FLG}, s{S_T0}, {WS_FL}
        """)
    def common_setup():
        srd(R_WD, P_WD, 1792 * 1024)
        srd(R_WO, P_WO, 512 * 1024)
        srd(R_OUT, P_OUT, 0x200000)
        a(f"""
        s_lshl_b32 s{S_W4K}, s{S_W}, 12
        s_lshl_b32 s{S_W2K}, s{S_W}, 11
        s_mov_b32 s{S_VM}, 0xffff
        s_mov_b32 s{S_VM+1}, 0xffff
        s_lshl_b32 s{S_T2}, s{S_RT64}, 1
        s_add_u32 s{S_T2}, s{S_T2}, s{S_RT}
        s_mul_i32 s{S_T0}, s{S_KQ}, {448*1024}
        s_lshl_b32 s{S_T1}, s{S_RT}, 15
        s_add_u32 s{S_T0}, s{S_T0}, s{S_T1}
        s_lshl_b32 s{S_T1}, s{S_CT8}, 7
        s_add_u32 s{S_WDO}, s{S_T0}, s{S_T1}
        s_lshl_b32 s{S_T0}, s{S_W}, 15
        s_add_u32 s{S_WOO}, s{S_T0}, s{S_T1}
        s_and_b32 s{S_T0}, s{S_CT8}, {1 if cfg.oswap else 0}
        s_lshl_b32 s{S_T16}, s{S_T0}, 18
        s_add_u32 s{S_WOO}, s{S_WOO}, s{S_T16}
        s_mul_i32 s{S_T0}, s{S_T2}, 112
        s_mul_i32 s{S_T3}, s{S_KQ}, 28
        s_add_u32 s{S_T0}, s{S_T0}, s{S_T3}
        s_lshl_b32 s{S_T0}, s{S_T0}, 10
        s_add_u32 s{S_HLD}, s{S_T0}, {WS_H}
        s_lshl_b32 s{S_T0}, s{S_T2}, 15
        s_lshl_b32 s{S_T3}, s{S_KQ}, 13
        s_add_u32 s{S_T3}, s{S_T0}, s{S_T3}
        s_lshr_b32 s{S_T0}, s{S_T16}, 4
        s_xor_b32 s{S_OLD}, s{S_T3}, s{S_T0}
        s_add_u32 s{S_OLD}, s{S_OLD}, {WS_O}
        s_add_u32 s{S_T0}, s{S_T3}, s{S_T1}
        v_lshrrev_b32 v3, 5, v{V_LANE}
        v_bfe_u32 v5, v{V_LANE}, 3, 1
        v_lshl_add_u32 v2, v3, 1, v5
        v_bfe_u32 v7, v{V_LANE}, 4, 1
        v_lshl_add_u32 v4, v7, 2, v2
        v_and_b32 v6, 7, v{V_LANE}
        v_lshlrev_b32 v8, 4, v6
        v_lshl_add_u32 v4, v4, 10, v8
        v_add_u32 v{V_FO}, s{S_T0}, v4
        v_lshlrev_b32 v2, 8, v2
        v_lshl_add_u32 v2, v7, 7, v2
        v_lshl_add_u32 v2, v5, 4, v2
        v_and_b32 v4, 3, v6
        v_lshl_add_u32 v2, v4, 5, v2
        v_lshrrev_b32 v4, 2, v6
        v_lshl_add_u32 v2, v4, 12, v2
        s_lshl_b32 s{S_T0}, s{S_RT}, 13
        s_lshl_b32 s{S_T1}, s{S_KQ}, 10
        s_add_u32 s{S_T0}, s{S_T0}, s{S_T1}
        v_add_u32 v{V_GA}, s{S_T0}, v2
        v_add_u32 v{V_KA}, {L_KV}, v{V_L16}
        v_and_b32 v2, 15, v{V_LANE}
        v_lshl_add_u32 v2, v3, 4, v2
        v_lshlrev_b32 v2, 4, v2
        v_add_u32 v{V_VA}, {L_KV + 1024}, v2
        v_lshrrev_b32 v5, 3, v{V_LANE}
        v_and_b32 v6, 7, v{V_LANE}
        v_bfe_u32 v7, v{V_LANE}, 4, 1
        v_lshlrev_b32 v8, 2, v7
        v_xor_b32 v6, v6, v8
        v_lshlrev_b32 v6, 4, v6
        v_lshl_add_u32 v{V_WDD}, v5, 10, v6
        v_and_b32 v2, 1, v{V_LANE}
        v_bfe_u32 v4, v{V_LANE}, 1, 1
        v_lshl_add_u32 v2, v2, 1, v4
        v_bfe_u32 v5, v{V_LANE}, 2, 2
        v_lshl_add_u32 v4, v3, 3, v5
        v_lshlrev_b32 v4, 7, v4
        v_and_b32 v6, 2, v5
        v_xor_b32 v6, v6, v7
        v_lshl_add_u32 v6, v6, 5, v4
        v_and_b32 v8, 3, v{V_LANE}
        v_lshl_add_u32 v6, v8, 3, v6
        v_lshl_add_u32 v4, v2, 3, v4
        s_lshl_b32 s{S_T0}, s{S_KQ}, 13
        s_add_u32 s{S_T0}, s{S_T0}, {L_WD}
        v_add_u32 v{V_DA}, s{S_T0}, v6
        v_xor_b32 v{V_DA+1}, 64, v{V_DA}
        """)
        a(f"""
        s_lshr_b32 s{S_T0}, s{S_RT64}, 1
        s_lshl_b32 s{S_T0}, s{S_T0}, 3
        s_lshl_b32 s{S_T1}, s{S_KQ}, 1
        s_add_u32 s{S_T0}, s{S_T0}, s{S_T1}
        s_lshl_b32 s{S_T0}, s{S_T0}, 7
        v_and_b32 v2, 3, v{V_LANE}
        v_lshlrev_b32 v6, 2, v2
        v_and_b32 v8, 1, v5
        v_lshl_add_u32 v6, v8, 14, v6
        v_lshrrev_b32 v8, 1, v5
        v_lshl_add_u32 v6, v8, 7, v6
        """ if cfg.xmap == 1 else f"""
        s_lshr_b32 s{S_T0}, s{S_RT64}, 3
        s_and_b32 s{S_T1}, s{S_KQ}, 2
        s_lshl_b32 s{S_T1}, s{S_T1}, 1
        s_add_u32 s{S_T0}, s{S_T0}, s{S_T1}
        s_bfe_u32 s{S_T2}, s{S_RT64}, 0x20001
        s_lshl_b32 s{S_T2}, s{S_T2}, 3
        s_add_u32 s{S_T0}, s{S_T0}, s{S_T2}
        s_and_b32 s{S_T1}, s{S_KQ}, 1
        s_lshl_b32 s{S_T1}, s{S_T1}, 7
        s_add_u32 s{S_T0}, s{S_T0}, s{S_T1}
        s_lshl_b32 s{S_T0}, s{S_T0}, 7
        s_lshl_b32 s{S_T1}, s{S_KQ}, 1
        v_and_b32 v2, 3, v{V_LANE}
        v_lshlrev_b32 v6, 2, v2
        v_lshl_add_u32 v6, v5, 12, v6
        """ if cfg.xmap == 2 else f"""
        s_lshr_b32 s{S_T0}, s{S_RT64}, 4
        s_lshl_b32 s{S_T1}, s{S_KQ}, 1
        s_add_u32 s{S_T0}, s{S_T0}, s{S_T1}
        s_bfe_u32 s{S_T2}, s{S_RT64}, 0x30001
        s_lshl_b32 s{S_T2}, s{S_T2}, 3
        s_add_u32 s{S_T0}, s{S_T0}, s{S_T2}
        s_lshl_b32 s{S_T0}, s{S_T0}, 7
        v_and_b32 v2, 3, v{V_LANE}
        v_lshlrev_b32 v6, 2, v2
        v_lshl_add_u32 v6, v5, 13, v6
        """)
        a(f"""
        v_add_u32 v6, s{S_T0}, v6
        s_lshr_b32 s{S_T0}, s{S_T16}, 16
        s_xor_b32 s{S_T1}, s{S_T1}, s{S_T0}
        s_and_b32 s{S_T0}, s2, 0xc7
        s_lshl_b32 s{S_T1}, s{S_T1}, 3
        s_add_u32 s{S_T0}, s{S_T0}, s{S_T1}
        s_lshl_b32 s{S_T0}, s{S_T0}, 7
        s_lshl_b32 s{S_T1}, s{S_RT}, 2
        s_add_u32 s{S_T0}, s{S_T0}, s{S_T1}
        v_and_b32 v8, 1, v5
        v_lshlrev_b32 v8, 10, v8
        v_lshl_add_u32 v8, v2, 3, v8
        v_cmp_gt_u32 vcc, 16, v{V_LANE}
        v_add_u32 v8, s{S_T0}, v8
        s_nop 0
        v_cndmask_b32 v{V_PO}, v8, v6, vcc
        """)

    def img_params(simg, sstride, soff):
        a(f"""
        s_lshr_b32 s{S_T0}, s{S_CB}, 2
        s_and_b32 s{S_T1}, s{S_CB}, 3
        s_mul_i32 s{soff}, s{S_T0}, 896
        s_lshl_b32 s{S_T2}, s{S_T1}, 8
        s_add_u32 s{soff}, s{soff}, s{S_T2}
        s_lshr_b32 s{S_T2}, s{simg}, 1
        s_lshl_b32 s{S_T1}, s{S_T1}, 1
        s_add_u32 s{S_T1}, s{S_T1}, s{S_T2}
        s_lshl_b32 s{S_T2}, s{S_T2}, 7
        s_add_u32 s{soff}, s{soff}, s{S_T2}
        s_lshl_b32 s{S_T0}, s{S_T0}, 1
        s_and_b32 s{S_T2}, s{simg}, 1
        s_add_u32 s{S_T0}, s{S_T0}, s{S_T2}
        s_lshl_b32 s{S_T0}, s{S_T0}, 7
        s_movk_i32 s{sstride}, 3584
        s_cmp_eq_u32 s{S_T1}, 7
        s_cselect_b32 s{soff}, s{S_T0}, s{soff}
        s_cselect_b32 s{sstride}, 1024, s{sstride}
        """)
    def img_srd(r, sstride):
        a(f"""
        s_cmp_eq_u32 s{S_T2}, 0
        s_cselect_b32 s{r}, s{P_WG}, s{P_WU}
        s_cselect_b32 s{r+1}, s{P_WG+1}, s{P_WU+1}
        s_cmp_eq_u32 s{S_T1}, 7
        s_cselect_b32 s{r}, s{P_WQ}, s{r}
        s_cselect_b32 s{r+1}, s{P_WQ+1}, s{r+1}
        s_and_b32 s{r+1}, s{r+1}, 0xffff
        s_lshl_b32 s{r+2}, s{sstride}, 9
        s_mov_b32 s{r+3}, 0x20000
        """)

    ACC, XF, WF, V_XA, V_WR = 16, 144, 176, 248, 250
    RWP, RWQ, RA = 216, 232, 2
    L_RA = L_W + 8192
    def acc(ti, rt): return ACC + 64*ti + 16*rt
    KG = 2.0 * math.sqrt(2.0 / math.pi) * math.log2(math.e)
    a('; ==== waves 0..3, start: K or V tile of 16 rows (LayerNorm folded in), row statistics, share of the W column sums ====')
    assert cfg.krot == 8 and cfg.g_init in (-1, 0, 2)
    CL, CSUM = 16, 40
    a(f"""
    v_and_b32 v5, 15, v{V_LANE}
    v_lshrrev_b32 v6, 4, v{V_LANE}
    v_lshrrev_b32 v7, 3, v{V_LANE}
    v_and_b32 v4, 7, v{V_LANE}
    s_lshl_b32 s{S_T16}, s{S_RB}, 3
    s_lshr_b32 s{S_T2}, s{S_CB}, 1
    s_add_u32 s{S_T16}, s{S_T16}, s{S_T2}
    s_cmp_lg_u32 s{S_HW}, 0
    s_cbranch_scc1 L_csld
    v_xor_b32 v2, v6, v4
    v_lshlrev_b32 v2, 4, v2
    v_lshl_add_u32 v132, v7, 10, v2
    v_xor_b32 v133, 64, v132
    v_add_u32 v133, {8192-1024}, v133
    s_lshl_b32 s{S_XOFF}, s{S_T16}, 14
    s_mov_b32 s{R_WKV+2}, 0x4000
    s_mov_b32 s{R_WKV+3}, 0x20000
    s_mov_b32 m0, {L_PX}
    s_and_b32 s{S_T3}, s{S_CB}, 1
    s_waitcnt lgkmcnt(0)
    """)
    stamp()
    a(f"s_mov_b32 s{R_X}, s{P_X}\ns_and_b32 s{R_X+1}, s{P_X+1}, 0xffff")
    for gq in range(4):
        for kb in (2*gq, 2*gq + 1):
            if kb: a(f"s_mov_b32 m0, {L_PX + 2048*kb}\ns_add_u32 s{S_XOFF}, s{S_XOFF}, 128")
            a(f"buffer_load_dwordx4 v132, {sr(R_X,4)}, s{S_XOFF} offen lds\nbuffer_load_dwordx4 v133, {sr(R_X,4)}, s{S_XOFF} offen offset:1024 lds")
        if gq == 0:
            a(f"s_cmp_eq_u32 s{S_T3}, 0\ns_cselect_b32 s{R_WKV}, s{P_WK}, s{P_WV}\ns_cselect_b32 s{R_WKV+1}, s{P_WK+1}, s{P_WV+1}\ns_and_b32 s{R_WKV+1}, s{R_WKV+1}, 0xffff")
        a(f"s_mov_b32 m0, {L_R + 4096*gq}\ns_movk_i32 s{S_T0}, {4096*gq}")
        for e in range(4): a(f"buffer_load_dwordx4 v{V_L16}, {sr(R_WKV,4)}, s{S_T0} offen offset:{1024*e} lds")
        if cfg.p0 and gq + 1 == cfg.p0[0]:
            stamp(name=1); a("s_barrier"); stamp(name=2)
    n_ool = len(a.lines)
    if cfg.cs_in: a("s_branch L_ld_done")
    a.label("L_csld")
    a(f"s_and_b32 s{S_CNT}, s{S_RB}, 3")
    img_params(S_CNT, S_WSTEP, S_WOFF)
    a(f"""
    s_and_b32 s{S_T0}, s{S_RB}, 4
    s_and_b32 s{S_T3}, s{S_RB}, 8
    s_lshl_b32 s{S_T3}, s{S_T3}, 2
    s_add_u32 s{S_T0}, s{S_T0}, s{S_T3}
    s_lshl_b32 s{S_T0}, s{S_T0}, 3
    s_mul_i32 s{S_T0}, s{S_T0}, s{S_WSTEP}
    s_add_u32 s{S_WOFF}, s{S_T0}, s{S_WOFF}
    v_mul_u32_u24 v8, s{S_WSTEP}, v7
    v_lshl_add_u32 v219, v4, 4, v8
    s_waitcnt lgkmcnt(0)
    """)
    nst[0] = 0
    stamp()
    a(f"s_mov_b32 s{R_X}, s{P_X}\ns_and_b32 s{R_X+1}, s{P_X+1}, 0xffff")
    img_srd(R_CW, S_WSTEP)
    a(f"s_lshl_b32 s{S_WSTEP}, s{S_WSTEP}, 3")
    def csload(i):
        t = (f"s_add_u32 s{S_T0}, s{S_HW}, {3*i - 1}\ns_and_b32 s{S_T1}, s{S_T0}, 28\ns_add_u32 s{S_T1}, s{S_T1}, s{S_T0}\ns_mul_i32 s{S_T1}, s{S_T1}, s{S_WSTEP}\ns_add_u32 s{S_T1}, s{S_T1}, s{S_WOFF}\n")
        if i == 5: t += f"s_cmp_gt_u32 s{S_T0}, 15\ns_cselect_b32 s{S_T1}, s{R_CW+2}, s{S_T1}\n"
        return t + f"buffer_load_dwordx4 {vr(CL+4*i,4)}, v219, {sr(R_CW,4)}, s{S_T1} offen"
    for i in range(6):
        a(csload(i))
        if cfg.p0 and i + 1 == cfg.p0[1]:
            stamp(name=1); a("s_barrier"); stamp(name=2)
    if not cfg.cs_in:
        a("s_branch L_ld_done")
        ool = a.lines[n_ool:]; del a.lines[n_ool:]
    a.label("L_ld_done")
    a(f"""
    s_mov_b32 s{S_ONES}, 0x3f803f80
    v_lshlrev_b32 v2, 3, v5
    v_lshl_add_u32 v2, v6, 8, v2
    v_add_u32 v130, {L_R}, v2
    v_lshrrev_b32 v3, 1, v5
    v_xor_b32 v3, v3, v6
    v_lshlrev_b32 v3, 4, v3
    v_lshl_add_u32 v3, v5, 7, v3
    v_mov_b32 v{V_XA}, v3
    v_xor_b32 v{V_XA+1}, 64, v3
    v_lshrrev_b32 v3, 5, v{V_LANE}
    v_and_b32 v7, 1, v6
    v_bfe_u32 v8, v{V_LANE}, 2, 2
    v_lshl_add_u32 v4, v6, 3, v8
    v_lshlrev_b32 v4, 7, v4
    v_and_b32 v2, 3, v{V_LANE}
    v_lshl_add_u32 v4, v2, 3, v4
    v_lshrrev_b32 v8, 1, v8
    v_lshl_add_u32 v8, v7, 1, v8
    v_xor_b32 v8, s{S_HW}, v8
    v_lshl_add_u32 v8, v8, 5, v4
    v_add_u32 v{V_WR}, {L_W}, v8
    v_add_u32 v{V_WR+1}, {L_W + 49152}, v8
    s_lshr_b32 s{S_EX}, s{S_T16}, 1
    s_lshl_b32 s{S_EX}, s{S_EX}, 11
    s_and_b32 s{S_T3}, s{S_T16}, 1
    s_and_b32 s{S_T2}, s{S_CB}, 1
    s_cmp_eq_u32 s{S_T2}, 0
    s_cbranch_scc0 L_pubV
    s_lshl_b32 s{S_T3}, s{S_T3}, 8
    s_add_u32 s{S_EX}, s{S_EX}, s{S_T3}
    v_lshl_add_u32 v2, v3, 5, v5
    s_lshl_b32 s{S_EX+1}, s{S_T16}, 10
    s_add_u32 s{S_EX+1}, s{S_EX+1}, {WS_ST}
    s_branch L_pub
    """)
    a.label("L_pubV")
    a(f"""
    s_lshl_b32 s{S_T3}, s{S_T3}, 9
    s_add_u32 s{S_EX}, s{S_EX}, s{S_T3}
    s_add_u32 s{S_EX}, s{S_EX}, 1024
    v_and_b32 v2, 3, v5
    v_bfe_u32 v4, v5, 2, 1
    v_lshl_add_u32 v2, v4, 3, v2
    v_bfe_u32 v4, v5, 3, 1
    v_lshl_add_u32 v2, v4, 2, v2
    v_lshl_add_u32 v2, v3, 4, v2
    s_mov_b32 s{S_EX+1}, {WS_SIZE}
    """)
    a.label("L_pub")
    a("v_lshlrev_b32 v2, 4, v2\nv_lshl_add_u32 v220, v7, 3, v2")
    def capture(fn):
        n = len(a.lines); fn(); L = a.lines[n:]; del a.lines[n:]; return L
    def part1():
        srd(R_WS, P_WS, WS_SIZE)
        a(f"""
        v_and_b32 v6, 7, v{V_LANE}
        v_lshrrev_b32 v4, 4, v{V_LANE}
        v_lshl_add_u32 v6, v6, 2, v4
        v_bfe_u32 v4, v{V_LANE}, 3, 1
        v_lshl_add_u32 v6, v6, 1, v4
        v_lshlrev_b32 v222, 2, v6
        s_lshl_b32 s{S_T0}, s{S_CB}, 14
        s_lshl_b32 s{S_T1}, s{S_RB}, 10
        s_add_u32 s{S_T0}, s{S_T0}, s{S_T1}
        s_lshl_b32 s{S_T1}, s{S_HW}, 8
        s_add_u32 s{S_T0}, s{S_T0}, s{S_T1}
        s_add_u32 s{S_CNT}, s{S_T0}, {WS_CS}
        """)
    def part2():
        setup_ids()
        for i in range(4): a(f"v_mov_b32 v{12+i}, -1")
        common_setup()
        a(f"""
        v_and_b32 v2, 0xff, v{V_L16}
        v_add_u32 v11, {L_R + 256}, v2
        v_xor_b32 v6, v3, v7
        v_lshl_add_u32 v2, v6, 9, v2
        v_add_u32 v10, {L_R}, v2
        s_lshl_b32 s{S_T0}, s{S_HW}, 11
        v_add_u32 v254, s{S_T0}, v{V_L16}
        s_mul_i32 s{S_T0}, s{S_HW}, 2208
        v_lshl_add_u32 v9, v3, 4, v{V_L16}
        v_add_u32 v9, s{S_T0}, v9
        s_lshr_b32 s{S_T0}, s{S_CB}, 2
        s_and_b32 s{S_T1}, s{S_CB}, 3
        s_mul_i32 s{S_T2}, s{S_RB}, 448
        s_mul_i32 s{S_T3}, s{S_T0}, 28
        s_add_u32 s{S_T2}, s{S_T2}, s{S_T3}
        s_lshl_b32 s{S_T3}, s{S_T1}, 3
        s_add_u32 s{S_T2}, s{S_T2}, s{S_T3}
        s_add_u32 s{S_T2}, s{S_T2}, s{S_HW}
        s_lshl_b32 s{S_T2}, s{S_T2}, 10
        s_add_u32 s{S_HST}, s{S_T2}, {WS_H}
        s_add_u32 s{S_HSB}, s{S_HST}, 4096
        s_lshl_b32 s{S_T2}, s{S_RB}, 7
        s_lshl_b32 s{S_T3}, s{S_T0}, 3
        s_add_u32 s{S_T2}, s{S_T2}, s{S_T3}
        s_add_u32 s{S_T2}, s{S_T2}, s{S_HW}
        s_lshl_b32 s{S_T2}, s{S_T2}, 10
        s_add_u32 s{S_T2}, s{S_T2}, {WS_Q}
        """)
    defer1 = capture(part1)
    defer2 = capture(part2) + [f"s_cmp_eq_u32 s{S_T1}, 3\ns_cselect_b32 s{S_HSB}, s{S_T2}, s{S_HSB}"]
    for l in defer1: a(l)
    defer1.clear()
    a(f"s_cmp_lg_u32 s{S_HW}, 0\ns_cbranch_scc1 L_cs")
    PF, PACC, PCS, PRS, PG, PSQ, PONE, PID, PSQP, PF1 = 16, 80, 84, 88, 92, 96, 100, 104, 106, 107
    for i in range(4): a(f"v_mov_b32 v{PONE+i}, s{S_ONES}")
    a(f"v_mov_b32 v{PF1}, 1.0\nv_mov_b32 v{PSQP}, 0\nv_mov_b32 v{PID}, 0\nv_mov_b32 v{PID+1}, 0\nv_mov_b32 v221, 0")
    a(f"s_mov_b32 s{S_T0}, 0x00100001\ns_mov_b32 s{S_T1}, 0x10000100")
    for r in range(4): a(f"s_lshl_b64 exec, {sr(S_T0,2)}, {r}\nv_mov_b32 v{PID + (r >> 1)}, {hex(0x4780 << (16*(r & 1)))}")
    a("s_mov_b64 exec, -1")
    if not cfg.p0: a("s_barrier")
    stamp(name=3)
    def p_reads(gq):
        f = PF + 32*(gq & 1); L = []
        for s in range(4):
            L.append(f"ds_read_b128 {vr(f+8*s,4)}, v{V_XA + (s & 1)} offset:{L_PX + 4096*gq + 2048*(s >> 1)}")
            L += [f"ds_read_b64_tr_b16 {vr(f+8*s+4+2*t,2)}, v130 offset:{4096*gq + 1024*s + 128*t}" for t in range(2)]
        return L
    a("s_waitcnt vmcnt(24)")
    for l in p_reads(0): a(l)
    for gq in range(4):
        a("s_waitcnt lgkmcnt(0)")
        rd = p_reads(gq + 1) if gq < 3 else []
        k = 0
        for s in range(4):
            x, w = PF + 32*(gq & 1) + 8*s, PF + 32*(gq & 1) + 8*s + 4
            for d, A_, B_ in ((PG, x, x), (PRS, PONE, x), (PCS, w, PONE), (PACC, w, x)):
                a(mfma16(d, A_, B_, None if gq + s == 0 else d))
                if k == 3 and gq < 3:
                    a(f"s_waitcnt vmcnt({16 - 8*gq})")
                    if gq == 2: stamp(); stamp(name=4)
                if k >= 3 and rd: a(rd.pop(0))
                k += 1
    a.nop(4)
    for r in range(4): a(f"s_lshl_b64 exec, {sr(S_T0,2)}, {r}\nv_mov_b32 v{PSQP}, v{PG+r}")
    a(f"""
    s_mov_b64 exec, -1
    v_mul_f32 v{PRS}, {hex(f2u(-1.0/512))}, v{PRS}
    v_mfma_f32_16x16x4_f32 {vr(PSQ,4)}, v{PF1}, v{PSQP}, 0
    """)
    for i in range(4): a(f"v_fmac_f32 v{PACC+i}, v{PRS}, v{PCS+i}")
    a(f"""
    v_cvt_pk_bf16_f32 v12, v{PRS}, v{PRS}
    v_and_b32 v2, 0xffff0000, v12
    v_sub_f32 v2, v{PRS}, v2
    v_cvt_pk_bf16_f32 v12, v{PRS}, v2
    s_and_b32 s{S_T2}, s{S_CB}, 1
    s_cmp_eq_u32 s{S_T2}, 0
    v_mul_f32 v14, {hex(f2u(1.0/512))}, v{PSQ}
    v_fma_f32 v14, -v{PRS}, v{PRS}, v14
    v_max_f32 v14, 0, v14
    v_add_f32 v14, {hex(f2u(1e-5))}, v14
    v_rsq_f32 v3, v14
    s_nop 0
    """)
    for i in range(4): a(f"v_mul_f32 v{PACC+i}, v{PACC+i}, v3")
    a(f"""
    v_cvt_pk_bf16_f32 v216, v{PACC}, v{PACC+1}
    v_cvt_pk_bf16_f32 v217, v{PACC+2}, v{PACC+3}
    s_cbranch_scc0 L_preV
    s_mov_b32 exec_lo, 0
    v_mov_b32 v12, 0
    s_and_b32 s{S_T0}, s{S_T16}, 1
    s_sub_u32 exec_lo, s{S_T0}, 1
    s_mov_b32 exec_hi, exec_lo
    v_swap_b32 v12, v14
    s_mov_b32 exec_lo, 0xffff0000
    s_mov_b32 exec_hi, 0
    v_mul_f32 v12, {hex(f2u(-KG))}, v3
    v_mul_f32 v2, v3, v3
    v_mul_f32 v14, {hex(f2u(0.044715))}, v12
    v_mul_f32 v14, v14, v2
    s_mov_b64 exec, -1
    v_mov_b32 v13, v12
    v_mov_b32 v15, v14
    s_branch L_nofin
    """)
    a.label("L_preV")
    a(f"s_nop 0\nv_mfma_f32_16x16x16_bf16 {vr(PACC,4)}, v[216:217], {vr(PID,2)}, 0")
    a.nop(8)
    a(f"v_cvt_pk_bf16_f32 v216, v{PACC}, v{PACC+1}\nv_cvt_pk_bf16_f32 v217, v{PACC+2}, v{PACC+3}\ns_branch L_nofin")
    n_ool = len(a.lines)
    a.label("L_cs")
    if not cfg.p0: a("s_barrier")
    stamp(name=3)
    touch("g", 1, 3, 4)
    for e in range(6):
        a(f"s_waitcnt vmcnt({5 - e})")
        for i in range(4):
            if e == 0: a(f"v_lshlrev_b32 v{CSUM+2*i}, 16, v{CL+i}\nv_and_b32 v{CSUM+2*i+1}, 0xffff0000, v{CL+i}")
            else: a(f"v_lshlrev_b32 v2, 16, v{CL+4*e+i}\nv_and_b32 v3, 0xffff0000, v{CL+4*e+i}\nv_add_f32 v{CSUM+2*i}, v{CSUM+2*i}, v2\nv_add_f32 v{CSUM+2*i+1}, v{CSUM+2*i+1}, v3")
    stamp(name=4)
    for j in range(4): a(f"v_permlane32_swap_b32 v{CSUM+j}, v{CSUM+4+j}")
    for j in (0, 2, 1, 3): a(f"v_add_f32 v{CSUM+j}, v{CSUM+j}, v{CSUM+4+j}")
    a(f"v_permlane16_swap_b32 v{CSUM}, v{CSUM+2}\ns_nop 0\nv_permlane16_swap_b32 v{CSUM+1}, v{CSUM+3}")
    a(f"v_add_f32 v{CSUM}, v{CSUM}, v{CSUM+2}\nv_add_f32 v{CSUM+1}, v{CSUM+1}, v{CSUM+3}\ns_nop 0")
    a(f"v_add_f32_dpp v221, v{CSUM}, v{CSUM} row_ror:8 row_mask:0xf bank_mask:0xf\nv_add_f32_dpp v221, v{CSUM+1}, v{CSUM+1} row_ror:8 row_mask:0xf bank_mask:0xc")
    if cfg.cs_in:
        a("s_branch L_nofin")
        ool = a.lines[n_ool:]; del a.lines[n_ool:]
    a.label("L_nofin")
    stamp(name=5)
    init = [f"buffer_store_dword v221, v222, {sr(R_WS,4)}, s{S_CNT} offen sc1",
            f"s_cmp_lg_u32 s{S_HW}, 0\ns_cbranch_scc1 L_nopub\n"
            f"buffer_store_dwordx2 v[216:217], v220, {sr(R_WS,4)}, s{S_EX} offen sc1\n"
            f"buffer_store_dwordx4 v[12:15], v{V_L16}, {sr(R_WS,4)}, s{S_EX+1} offen sc1\nL_nopub:"]
    if cfg.g_init == -1:
        for l in init: a(l)
    brk("g")
    stamp(name=6)
    a("s_barrier")
    nst[0] = 2
    stamp(name="b0"); pad("b0"); c12(0)
    HS = [divmod(g, 2) for g in range(28)] + [(14, 0), (15, 0), (14, 1), (15, 1)]
    def wf(K, mt): return WF + 16*((K + 1) & 1) + 4*mt
    def x_reads(g):
        K, nh = HS[g]
        return [f"ds_read_b128 {vr(XF+16*(g&1)+4*i,4)}, v{V_XA+(K&1)} offset:{XS[K>>1]*16384 + (4*nh+i)*2048}" for i in range(4)]
    def w_reads(K):
        slot = ((K >> 1) + 2) % 3
        return [f"ds_read_b64_tr_b16 {vr(wf(K,mt)+2*t,2)}, v{V_WR+(mt>>1)} offset:{(mt&1)*24576 + slot*8192 + (K&1)*4096 + t*512}" for mt in range(4) for t in range(2)]
    def mm(g, mt, i):
        K, nh = HS[g]; nt = 4*nh + i
        d = acc(mt >> 1, nt >> 1) + 8*(mt & 1) + 4*(nt & 1)
        return mfma16(d, wf(K, mt), XF + 16*(g&1) + 4*i, None if K == 0 else d)
    def rw_reads(rt, dst): return [f"ds_read_b128 {vr(dst+4*i,4)}, v{10 + (i >> 1)} offset:{2048*rt + 1024*(i & 1)}" for i in range(4)]
    op_reads = [f"ds_read_b128 {vr(RA+4*i,4)}, v9 offset:{L_RA + 1056*i}" for i in range(2)] + rw_reads(0, RWP) + rw_reads(1, RWQ)
    def rank1(ti, rt, rw): return mfma32(acc(ti, rt), RA + 4*ti, rw + 2, acc(ti, rt))
    def split2(src, dst, dup):
        if dup:
            return [f"v_cvt_pk_bf16_f32 v{dst}, v{src}, v{src}", f"v_and_b32 v2, 0xffff0000, v{dst}", f"v_sub_f32 v2, v{src}, v2", f"v_cvt_pk_bf16_f32 v{dst+1}, v2, v2"]
        return [f"v_cvt_pk_bf16_f32 v{dst}, v{src}, v{src}", f"v_and_b32 v2, 0xffff0000, v{dst}", f"v_sub_f32 v2, v{src}, v2", f"v_cvt_pk_bf16_f32 v{dst}, v{src}, v2", f"v_mov_b32 v{dst+1}, v{dst}"]
    w = w_reads(0)
    for l in w[:2] + x_reads(0) + w[2:]: a(l)
    def half_step(g):
        K, nh = HS[g]
        neww = g == 0 or HS[g-1][0] < K and g != 31
        gaps = [[] for _ in range(16)]
        o = 0
        if g & 3 == 3 and g < 28 or g == cfg.g_h:
            gaps[0] = ["s_barrier"]; o = 1
        rd = x_reads(g + 1) if g < 31 else rw_reads(2, WF + 16)
        if g < 29 and HS[g+1][0] > K:
            w = w_reads(K + 1); rd = w[:2] + rd + w[2:]
        if g == cfg.g_h: rd += op_reads
        if cfg.nord: rd = []
        for i, l in enumerate(rd): gaps[o + i].append(l)
        if neww:
            top = "lgkmcnt(4)"
            gaps[7].append(f"s_waitcnt lgkmcnt({min(len(rd), 8 - o)})")
        else: top = "lgkmcnt(10)" if g == cfg.g_h + 1 else "lgkmcnt(0)"
        brk("g" if g < 28 else "e")
        a("s_waitcnt " + ("vmcnt(0) " if g == 4*cfg.c_arr + 3 else "") + top)
        if g == cfg.g_init: gaps[9].append(init[0]); gaps[12].append(init[1])
        dl = defer1 if g <= cfg.g_init else defer2
        for k in range(16):
            if not gaps[k]:
                gaps[k] = dl[:2]; del dl[:2]
        assert not (g >= 2 and defer1) and not (g >= 27 and defer2)
        for k in range(16):
            a(mm(g, k >> 2, k & 3))
            for l in gaps[k]: a(l)
            if g == 31 and k == 3: a(("s_waitcnt lgkmcnt(4)\n" if cfg.g_h == 30 else "") + rank1(0, 0, RWP))
            if k == 0 and (g == 27 or (cfg.stamps == 4 and g & 3 == 3)): stamp()
            if k == 0 and g in (3, 27): c12(1 if g == 3 else 2)
            if k == 15 and g >= cfg.g_tr and g & 1 == 0 and cfg.stamps == 10 and ncs[0] < 6: a(f"s_memtime {sr([32, 34, 92, 94, 96, 98][ncs[0]], 2)}"); ncs[0] += 1
    for g in range(30): half_step(g)
    def swaps(o): return [f"v_permlane16_swap_b32 v{o}, v{o+2}", f"v_permlane16_swap_b32 v{o+1}, v{o+3}"]
    def gelu(ti, rt, rw, mf=(), pre=()):
        A = acc(ti, rt)
        def b(i): return rw + 8 + 4*(i >> 2)
        def vp(i): return rw + 6*(i >> 2)
        t1, t2, o = 144, 152, HO + 16*ti + 4*rt
        L = [".p2align 3"]
        for i in range(0, 8, 2): L.append(f"v_pk_mul_f32 {vr(t1+i,2)}, {vr(A+i,2)}, {vr(A+i,2)}")
        L += pre
        for i in range(0, 8, 2): L.append(f"v_pk_fma_f32 {vr(t1+i,2)}, {vr(t1+i,2)}, {vr(b(i)+2,2)}, {vr(b(i),2)}")
        for i in range(0, 8, 2): L.append(f"v_pk_mul_f32 {vr(t1+i,2)}, {vr(t1+i,2)}, {vr(A+i,2)}")
        L += mf
        for i in range(8): L.append(f"v_exp_f32 v{t1+i}, v{t1+i}")
        for i in range(0, 8, 2): L.append(f"v_pk_mul_f32 {vr(t2+i,2)}, {vr(A+i,2)}, {vr(A+8+i,2)}")
        for i in range(0, 8, 2): L.append(f"v_pk_fma_f32 {vr(t1+i,2)}, {vr(t1+i,2)}, {vr(vp(i),2)}, {vr(vp(i),2)}")
        for i in range(8): L.append(f"v_rcp_f32 v{t1+i}, v{t1+i}")
        for i in range(0, 8, 2): L.append(f"v_pk_mul_f32 {vr(t2+i,2)}, {vr(t2+i,2)}, {vr(t1+i,2)}")
        for i in range(4): L.append(f"v_cvt_pk_bf16_f32 v{o+i}, v{t2+2*i}, v{t2+2*i+1}")
        return L
    def qtile(rt, rw):
        A = acc(1, rt); qs = hex(f2u(-0.25*math.log2(math.e)/KG))
        L = [f"v_mul_f32 v{12+i}, {qs}, v{rw + 8 + 4*(i >> 1)}" for i in range(4)]
        L += [f"s_add_u32 s{S_T0}, s{S_HSB}, {32768*rt}", f"s_add_u32 s{S_T1}, s{S_T0}, 4096"]
        for hd in range(2):
            h = A + 8*hd
            for i in range(0, 8, 2): L.append(f"v_pk_mul_f32 {vr(h+i,2)}, {vr(h+i,2)}, {vr(12 + 2*(i >> 2),2)}")
            for i in range(4): L.append(f"v_cvt_pk_bf16_f32 v{h+i}, v{h+2*i}, v{h+2*i+1}")
            for i in (0, 2, 1, 3): L.append(f"v_min_u32 v{h+i}, -2, v{h+i}")
            L += [swaps(h)[0], "s_nop 0", swaps(h)[1]]
            L.append(f"buffer_store_dwordx4 {vr(h,4)}, v{V_L16}, {sr(R_WS,4)}, s{S_T0 + hd} offen sc1")
        return L
    L_HQ = L_KV + 49152
    def att_regs():
        a(f"""
        v_and_b32 v5, 27, v{V_LANE}
        v_cmp_eq_u32 vcc, 16, v5
        v_mov_b32 v6, 0x47804780
        v_mov_b32 v{V_IDX}, 0xdddddddd
        v_mov_b32 v11, 1
        v_mov_b32 v49, 0.5
        v_cndmask_b32 v{VF}, 0, v6, vcc
        v_mov_b32 v{VF+1}, v{VF}
        """)
        for i in range(2, 16, 2): a(f"v_mov_b64 {vr(VF+i,2)}, {vr(VF,2)}")
        for i in range(0, 16, 2): a(f"v_mov_b64 {vr(OO+i,2)}, 0")
        a(f"s_lshl_b32 s{S_T0}, s{S_KQ}, 13\ns_add_u32 s{S_T0}, s{S_T0}, {L_WO - L_WD}\nv_add_u32 v{V_OA}, s{S_T0}, v{V_DA}\nv_xor_b32 v{V_OA+1}, 64, v{V_OA}")
    def kv_first():
        a(f"ds_read_b128 {vr(KF,4)}, v{V_KA} offset:{kv_off(0)}\nds_read_b128 {vr(KF+4,4)}, v{V_KA} offset:{kv_off(1)}")
        a(f"s_mov_b64 exec, {sr(S_VM,2)}\nds_read_b128 {vr(VF,4)}, v{V_VA} offset:{kv_off(0)}\ns_mov_b64 exec, -1")
    a(f"s_and_b32 s{S_T1}, s{S_CB}, 3\ns_cmp_eq_u32 s{S_T1}, 3\ns_cbranch_scc1 L_qt")
    half_step(30); half_step(31)
    n0 = nst[0]
    stamp(name="g1"); pad("g1"); c12(3)
    RWS = [RWP, RWQ, WF + 16, RWP]
    order = [(ti, rt) for rt in range(4) for ti in range(2)]
    for i, (ti, rt) in enumerate(order):
        if i == 2:
            for l in rw_reads(3, RWS[3]): a(l)
        brk("e")
        if i in (3, 5): a("s_waitcnt lgkmcnt(0)")
        if i == cfg.i_q: a("s_barrier")
        nx = order[i+1] if i < 7 else None
        pv = order[i-1] if i else None
        for l in gelu(ti, rt, RWS[rt], [rank1(*nx, RWS[nx[1]])] if nx else [], swaps(HO + 16*pv[0] + 4*pv[1]) if pv else []): a(l)
    a("s_nop 1")
    for l in swaps(HO + 16 + 12): a(l)
    a("s_branch L_joinA")
    far("L_qt")
    RWS = [RWP, RWQ, acc(1, 0), acc(1, 1)]
    if cfg.g_h == 30:
        a("s_barrier")
        for l in op_reads: a(l)
    for l in x_reads(31): a(l)
    a("s_waitcnt lgkmcnt(4)\ns_nop 0")
    a(rank1(1, 0, RWP)); a(rank1(1, 1, RWQ))
    a.nop(5)
    for rt in range(2):
        for l in qtile(rt, RWS[rt]): a(l)
        brk("e")
    a("s_waitcnt lgkmcnt(0)")
    rd = rw_reads(2, RWS[2]) + rw_reads(3, RWS[3])
    for g in (30, 31):
        for k in range(8, 16):
            a(mm(g, k >> 2, k & 3))
            if rd: a(rd.pop(0))
    a("s_waitcnt lgkmcnt(0)\ns_nop 3")
    a(rank1(1, 2, RWS[2])); a(rank1(1, 3, RWS[3]))
    a.nop(5)
    for rt in (2, 3):
        for l in qtile(rt, RWS[rt]): a(l)
        brk("e")
    a(rank1(0, 0, RWP))
    for g in (30, 31):
        for k in range(8): a(mm(g, k >> 2, k & 3))
    nst[0] = n0
    stamp(name="g1")
    a(f"s_mov_b32 s{S_HSB}, {WS_SIZE}")
    for i in range(4): a(f"v_mov_b32 v{12+i}, -1")
    for rt in range(4):
        brk("e")
        if rt == cfg.i_qb: a("s_barrier")
        for l in gelu(0, rt, RWS[rt], [rank1(0, rt + 1, RWS[rt + 1])] if rt < 3 else [], swaps(HO + 4*(rt - 1)) if rt else []): a(l)
    a("s_nop 1")
    for l in swaps(HO + 12): a(l)
    far("L_joinA", True)
    nst[0] = 12 if cfg.stamps == 4 else 5
    stamp()
    c12(4)
    if not cfg.gpos:
        att_regs()
        kv_first()
    a("s_barrier")
    stamp(name="att0"); pad("att0")
    a(f"ds_read_b128 {vr(QF,4)}, v254 offset:{L_HQ}")
    for i in range(4): a(f"ds_read_b128 {vr(CC+4*i,4)}, v254 offset:{L_HQ + 1024}")
    if cfg.gpos:
        att_regs()
        kv_first()
    a("s_waitcnt lgkmcnt(0)")
    a(mfma32(S0, KF, QF, CC))
    c12(5)
    a("s_nop 3\ns_branch L_attA")

    a.lines += ool
    a.label("L_helper")
    V_XD, V_WD = 192, 194
    PX, PW = 8, 24
    PACC, PCS, PRS, PSQ = 40, 44, 48, 52
    PONE, PSQP, PF1 = 56, 60, 61
    RD = 64
    a(f"""
    s_lshl_b32 s{S_XOFF}, s{S_RB}, 17
    s_lshl_b32 s{S_T0}, s{S_HW}, 15
    s_add_u32 s{S_XOFF}, s{S_XOFF}, s{S_T0}
    v_and_b32 v5, 15, v{V_LANE}
    v_lshrrev_b32 v6, 4, v{V_LANE}
    v_lshrrev_b32 v7, 3, v{V_LANE}
    v_and_b32 v63, 7, v{V_LANE}
    v_xor_b32 v62, v6, v63
    v_lshlrev_b32 v62, 4, v62
    v_lshl_add_u32 v{V_XD}, v7, 10, v62
    v_xor_b32 v{V_XD+1}, 64, v{V_XD}
    v_add_u32 v{V_XD+1}, {8192-1024}, v{V_XD+1}
    """)
    img_params(S_HW, S_WSTEP, S_WOFF)
    a(f"""
    v_and_b32 v62, 1, v6
    v_lshlrev_b32 v62, 1, v62
    v_xor_b32 v62, v62, v63
    v_lshlrev_b32 v62, 4, v62
    v_mul_u32_u24 v{V_WD}, s{S_WSTEP}, v7
    v_add_u32 v{V_WD}, v{V_WD}, v62
    v_xor_b32 v{V_WD+1}, 64, v{V_WD}
    s_waitcnt lgkmcnt(0)
    """)
    nst[0] = 0
    stamp()
    a(f"s_mov_b32 s{R_X}, s{P_X}\ns_and_b32 s{R_X+1}, s{P_X+1}, 0xffff")
    Q = []
    def issue(tag, text): a(text); Q.append(tag)
    def vwait(tag, more=""):
        n = len(Q) - 1 - max(i for i, t in enumerate(Q) if t == tag)
        a(f"s_waitcnt vmcnt({n})" + more)
    def xitems(c):
        slot = XS[c]
        return [(f"C{c}", f"s_add_u32 m0, s{S_H4K}, {L_X + slot*16384}\ns_add_u32 s{S_CNT}, s{S_XOFF}, {c*128 + (16384 - 2048)*(e >> 1)}\n"
                 f"buffer_load_dwordx4 v{V_XD + (e & 1)}, {sr(R_X,4)}, s{S_CNT} offen offset:{1024*e} {cfg.cf[1]} lds") for e in range(4)]
    def witems(c):
        slot = (c + 2) % 3
        return [(f"C{c}", f"s_add_u32 m0, s{S_M0W}, {slot*8192 + e*1024}\n" + (f"s_add_u32 s{S_WOFF}, s{S_WOFF}, s{S_WSTEP}" if c + e else "s_nop 0") +
                 f"\nbuffer_load_dwordx4 v{V_WD + (e & 1)}, {sr(R_W,4)}, s{S_WOFF} offen {cfg.cf[0]} lds") for e in range(8)]
    stream = []
    for c in range(1, 8): stream += [(t, x if c < 3 or not cfg.nodma else 's_nop 0') for t, x in witems(c) + xitems(c)]
    for c in {0: (), 8: (4,), 12: (2, 4, 6)}[cfg.krot]:
        i = 12*(c - 1)
        stream[i] = (stream[i][0], stream[i][1].replace("\nbuffer_load", f"\ns_cmp_eq_u32 s{S_HST}, {16 - 2*c}\ns_cselect_b32 s{S_CNT}, s{R_W+2}, 0\ns_cselect_b32 s{S_HSB}, 1024, 0\n"
                     f"s_sub_u32 s{S_WOFF}, s{S_WOFF}, s{S_CNT}\ns_sub_u32 s{S_XOFF}, s{S_XOFF}, s{S_HSB}\nbuffer_load"))
    pos = [0]
    def take(n):
        for _ in range(n):
            if pos[0] < len(stream): issue(*stream[pos[0]]); pos[0] += 1
    def upto(c):
        return min(len(stream), 12*(c + 1) + cfg.lead[c])
    def mix(lines, n):
        k = 0
        for i, l in enumerate(lines):
            while k < n and k * len(lines) <= i * n: take(1); k += 1
            a(l)
        take(n - k)
    img_srd(R_W, S_WSTEP)
    if cfg.krot:
        a(f"""
        s_and_b32 s{S_HST}, s{S_RB}, {cfg.krot}
        s_lshl_b32 s{S_T0}, s{S_HST}, 6
        s_add_u32 s{S_XOFF}, s{S_XOFF}, s{S_T0}
        s_mul_i32 s{S_T0}, s{S_T0}, s{S_WSTEP}
        s_lshr_b32 s{S_T0}, s{S_T0}, 1
        s_add_u32 s{S_WOFF}, s{S_WOFF}, s{S_T0}
        """)
    a(f"s_lshl_b32 s{S_WSTEP}, s{S_WSTEP}, 3\ns_mul_i32 s{S_M0W}, s{S_HW}, 24576\ns_add_u32 s{S_M0W}, s{S_M0W}, {L_W}")
    def b_init():
        srd(R_WS, P_WS, WS_SIZE)
        setup_ids()
        for i in range(4): a(f"v_mov_b32 v{12+i}, -1")
        a(f"v_mov_b32 v10, 0\nv_mov_b32 v11, 1\ns_sub_u32 s{S_T3}, s{S_FLG}, 16")
    def q_stores(tag):
        a(f"s_add_u32 s{S_CNT}, s{S_OST}, {WS_Q - WS_O - 2048}")
        issue(tag, f"buffer_store_dwordx4 v[12:15], v{V_L16}, {sr(R_WS,4)}, s{S_CNT} offen sc1")
        issue(tag, f"buffer_store_dwordx4 v[12:15], v{V_L16}, {sr(R_WS,4)}, s{S_CNT} offen offset:2048 sc1")
    def b_stores():
        if not cfg.c_q: q_stores("ST")
        issue("ST", f"s_mov_b64 exec, 7\nbuffer_store_dword v10, v{V_L16}, {sr(R_WS,4)}, s{S_T3} offen sc1\ns_mov_b64 exec, -1")
    if cfg.c_st[0] < 0: b_init()
    if cfg.c_st[0] == -2: b_stores()
    stamp(name=1)
    a("s_barrier")
    for i, it in enumerate(xitems(0) + witems(0)):
        if cfg.c_st == (-1, i): b_stores()
        issue(*it)
    stamp(name=3)
    def bar():
        brk("g")
        if cfg.stamps == 4: stamp()
        a("s_barrier")
    take(cfg.lead0)
    stamp(name=4)
    nst[0] = 2; vwait("C0"); stamp(name=6); bar()
    BC, BO, BZ = 132, 224, 240
    def b_setup():
        srd(R_DBG, P_DBG, 256)
        a(f"s_mov_b32 s{S_ONES}, 0x3f803f80")
        common_setup()
        a(f"""
        v_lshrrev_b32 v6, 4, v{V_LANE}
        v_bfe_u32 v2, v{V_LANE}, 1, 1
        v_lshl_add_u32 v6, v2, 2, v6
        v_and_b32 v2, 1, v{V_LANE}
        v_mad_u32_u24 v6, v2, 33, v6
        v_lshlrev_b32 v6, 4, v6
        v_bfe_u32 v2, v{V_LANE}, 2, 2
        v_mul_u32_u24 v2, 2208, v2
        v_add_u32 v6, v6, v2
        s_lshr_b32 s{S_T0}, s{S_HW}, 1
        s_mul_i32 s{S_T0}, s{S_T0}, 1056
        s_and_b32 s{S_T1}, s{S_HW}, 1
        s_lshl_b32 s{S_T1}, s{S_T1}, 8
        s_add_u32 s{S_T0}, s{S_T0}, s{S_T1}
        v_add_u32 v204, s{S_T0}, v6
        s_lshr_b32 s{S_T0}, s{S_RB}, 1
        s_and_b32 s{S_T1}, s{S_CB}, 12
        s_lshl_b32 s{S_T1}, s{S_T1}, 2
        s_add_u32 s{S_T0}, s{S_T0}, s{S_T1}
        s_and_b32 s{S_T1}, s{S_RB}, 1
        s_lshl_b32 s{S_T1}, s{S_T1}, 7
        s_add_u32 s{S_T0}, s{S_T0}, s{S_T1}
        s_lshl_b32 s{S_T0}, s{S_T0}, 7
        s_add_u32 s{S_T0}, s{S_T0}, {WS_FL + 32}
        v_and_b32 v6, 3, v{V_LANE}
        v_lshlrev_b32 v6, 2, v6
        v_bfe_u32 v2, v{V_LANE}, 2, 1
        v_lshl_add_u32 v6, v2, 10, v6
        v_bfe_u32 v2, v{V_LANE}, 3, 1
        v_lshl_add_u32 v6, v2, 13, v6
        v_add_u32 v205, s{S_T0}, v6
        """)
        for i in (0, 1, 4, 5): a(f"v_mov_b32 v{BZ+i}, 0")
        att_regs()
        a(f"s_lshl_b32 s{S_T0}, s{S_HW}, 11\nv_add_u32 v7, s{S_T0}, v{V_L16}")
    bs = capture(b_setup)
    nbs = -(-len(bs) // 3)
    pfl = [f"s_mul_i32 s{S_T0}, s2, 7168\ns_lshl_b32 s{S_T1}, s{S_HW}, 11\ns_add_u32 s{S_T0}, s{S_T0}, s{S_T1}\nbuffer_load_dwordx4 {vr(176,4)}, v{V_L16}, {sr(R_WD,4)}, s{S_T0} offen",
           f"buffer_load_dwordx4 {vr(180,4)}, v{V_L16}, {sr(R_WD,4)}, s{S_T0} offen offset:1024",
           f"s_lshl_b32 s{S_T1}, s2, 11\ns_lshl_b32 s{S_T3}, s{S_HW}, 9\ns_add_u32 s{S_T1}, s{S_T1}, s{S_T3}\ns_mov_b32 exec_hi, 0\nbuffer_load_dwordx4 {vr(184,4)}, v{V_L16}, {sr(R_WO,4)}, s{S_T1} offen\ns_mov_b64 exec, -1"]
    spoll = f"buffer_load_dword v8, v6, {sr(R_DBG,4)}, s{S_T2} offen sc1"
    for c in range(6):
        if c == cfg.c_st[0]:
            mix(capture(b_init), cfg.c_st[1]); b_stores()
        def q_flag():
            vwait("SQ")
            issue("F", f"s_mov_b64 exec, 1\nbuffer_store_dword v11, off, {sr(R_WS,4)}, s{S_FLG} offset:16 sc1\ns_mov_b64 exec, -1")
        if cfg.c_q and c == cfg.c_q[0] and cfg.c_q[1] < 99:
            take(cfg.c_q[1]); q_stores("SQ")
        if cfg.c_q and c == cfg.c_q[2] and cfg.c_q[3] < 99:
            take(cfg.c_q[3]); q_flag()
        if c in (2, 3, 4): mix(bs[(c-2)*nbs:(c-1)*nbs], upto(c) - pos[0])
        if c == 5:
            take(cfg.n_poll)
            a(f"v_and_b32 v6, 7, v{V_LANE}\nv_lshlrev_b32 v6, 5, v6\ns_lshl_b32 s{S_T2}, s{S_HW}, 8")
            issue("P", spoll)
        take(upto(c) - pos[0])
        if cfg.c_q and cfg.c_q[:2] == (c, 99): q_stores("SQ")
        if cfg.c_q and cfg.c_q[2:] == (c, 99): q_flag()
        if c == cfg.c_arr: vwait("ST")
        if c == 5:
            vwait("P")
            a(f"s_cmp_lg_u32 s{S_HW}, 0\ns_cbranch_scc1 L_sync1\ns_mov_b32 s{S_SPIN}, 0")
            a.label("L_sync1_chk")
            a(f"""
            v_cmp_gt_u32 vcc, 32, v8
            s_add_u32 s{S_SPIN}, s{S_SPIN}, 1
            s_cbranch_vccz L_sync1
            s_cmp_ge_u32 s{S_SPIN}, {SPIN_MAX}
            s_cbranch_scc1 L_sync1
            s_sleep 4
            {spoll}
            s_waitcnt vmcnt(0)
            s_branch L_sync1_chk
            """)
            a.label("L_sync1")
        vwait(f"C{c+1}"); bar()
        if c == cfg.c_arr:
            a(f"s_cmp_lg_u32 s{S_HW}, 0\ns_cbranch_scc1 L_noarr\ns_and_b32 s{S_EX}, s2, 7\ns_lshl_b32 s{S_EX}, s{S_EX}, 5\ns_mov_b32 s{S_EX+1}, 1\n"
              f"s_atomic_add s{S_EX+1}, {sr(P_DBG,2)}, s{S_EX}\nL_noarr:")
    assert pos[0] == len(stream)
    ncs[0] = 0; cstamp(11)
    a(f"""
    s_lshl_b32 s{S_T3}, s{S_HW}, 11
    s_add_u32 m0, s{S_T3}, {L_R}
    s_lshl_b32 s{S_EX}, s{S_RB}, 13
    s_add_u32 s{S_EX}, s{S_EX}, s{S_T3}
    s_add_u32 s{S_EX}, s{S_EX}, {WS_ST}
    s_lshl_b32 s{S_T3}, s{S_HW}, 10
    s_lshl_b32 s{S_EX+1}, s{S_CB}, 14
    s_add_u32 s{S_EX+1}, s{S_EX+1}, s{S_T3}
    s_add_u32 s{S_EX+1}, s{S_EX+1}, {WS_CS}
    """)
    if cfg.stamps != 4: nst[0] = 3
    stamp(); cstamp(11)
    def maxtree(src, dst, init=None):
        L = []
        if init is None:
            L.append(f"v_max3_f32 v{dst}, v{src}, v{src+1}, v{src+2}")
            L.append(f"v_max_f32 v{dst}, v{src+3}, v{dst}")
            k = 4
        else:
            k = 0
        for i in range(k, 16, 2): L.append(f"v_max3_f32 v{dst}, v{src+i}, v{src+i+1}, v{dst}")
        return L
    def setC(m, shift):
        a(f"v_mov_b32 v{m+1}, v{m}\ns_nop 1\nv_permlane32_swap_b32 v{m}, v{m+1}\nv_max_f32 v{m}, v{m}, v{m+1}")
        a(f"v_sub_f32 v{CC}, {hex(f2u(-shift)) if shift else 0}, v{m}")
        a(f"v_mov_b32 v{CC+1}, v{CC}")
        for i in range(2, 16, 2): a(f"v_mov_b64 {vr(CC+i,2)}, {vr(CC,2)}")
    for e in range(4):
        if e: a(f"s_add_u32 s{S_EX+1}, s{S_EX+1}, 4096")
        a(f"buffer_load_dwordx4 {vr(BC+4*e,4)}, v{V_L16}, {sr(R_WS,4)}, s{S_EX+1} offen sc1")
    for i in range(2): a(f"buffer_load_dwordx4 v{V_L16}, {sr(R_WS,4)}, s{S_EX} offen offset:{1024*i} sc1 lds")
    assert cfg.e6 != 2
    qpoll = f"buffer_load_dword v9, v205, {sr(R_WS,4)}, s{S_T2} offen sc1"
    if cfg.c_q:
        a(f"s_and_b32 s{S_T2}, s{S_CB}, 3\ns_sub_u32 s{S_T2}, s{S_T2}, s{S_H4K}\ns_cmp_eq_u32 s{S_T2}, 3\ns_cselect_b32 s{S_T2}, 0, {WS_SIZE}\n" + qpoll)
    nq = 1 if cfg.c_q else 0
    npf = 3 if cfg.pf_first else 0
    for x in pfl[:npf]: a(x)
    touch("e", 0, 4, 5)
    cstamp(11)
    if cfg.e6 == 0: a(f"s_waitcnt vmcnt({6 + nq + npf})\ns_barrier")
    a(f"s_setprio {cfg.bp}\ns_waitcnt vmcnt({2 + nq + npf})")
    cstamp(11)
    for e in range(1, 4):
        for i in (0, 2, 1, 3): a(f"v_add_f32 v{BC+i}, v{BC+i}, v{BC+4*e+i}")
    if cfg.e6 == 1: a("s_barrier")
    a(f"""
    v_permlane32_swap_b32 v{BC}, v{BC+2}
    s_nop 0
    v_permlane32_swap_b32 v{BC+1}, v{BC+3}
    v_add_f32 v{BC}, v{BC}, v{BC+2}
    v_add_f32 v{BC+1}, v{BC+1}, v{BC+3}
    s_nop 1
    v_permlane16_swap_b32 v{BC}, v{BC+1}
    v_add_f32 v{BC}, v{BC}, v{BC+1}
    """)
    for l in split2(BC, BZ + 2, True): a(l)
    if cfg.e6 == 3: a("s_barrier")
    a(f"ds_write_b128 v204, {vr(BZ+2,4)} offset:{L_RA}\nds_write_b128 v204, {vr(BZ,4)} offset:{L_RA + 128}")
    cstamp(11)
    for x in pfl[npf:]: a(x)
    a("s_waitcnt vmcnt(3)")
    ncs[0] += 1; cstamp(11)
    if cfg.c_q:
        a(f"""
        s_cmp_lg_u32 s{S_T2}, 0
        s_cbranch_scc1 L_qrdy
        s_mov_b32 s{S_SPIN}, 0
        L_qrchk:
        v_cmp_ne_u32 vcc, 1, v9
        s_add_u32 s{S_SPIN}, s{S_SPIN}, 1
        s_cbranch_vccz L_qrdy
        s_cmp_ge_u32 s{S_SPIN}, {SPIN_MAX}
        s_cbranch_scc1 L_qrdy
        {qpoll}
        s_waitcnt vmcnt(0)
        s_branch L_qrchk
        L_qrdy:
        """)
    a("s_setprio 0\ns_waitcnt lgkmcnt(0)")
    cstamp(11)
    if cfg.e6 == 2: a("s_barrier")
    cstamp(11)
    a("s_barrier")
    for c in range(2):
        slot = (c + 1) % 3
        a(f"s_add_u32 m0, s{S_H4K}, {L_KV + slot*16384}\ns_add_u32 s{S_T0}, s{S_H4K}, {WS_KV + starts[c]*2048}")
        for e in range(4):
            a(f"buffer_load_dwordx4 v{V_L16}, {sr(R_WS,4)}, s{S_T0} offen offset:{1024*e} sc1 lds")
    touch("a", 0, 4, 12)
    if cfg.wfix:
        a(f"s_mov_b32 s{S_CNT}, 0\ns_mov_b32 s{S_SPIN}, 0\ns_cmp_eq_u32 s{S_HW}, 3\ns_cbranch_scc0 L_nowfix\ns_call_b64 {sr(S_RET,2)}, L_ofix\nL_nowfix:")
    QP = 128
    qload = (f"buffer_load_dwordx4 {vr(QP,4)}, v{V_L16}, {sr(R_WS,4)}, s{S_T2} offen sc1\n"
             f"buffer_load_dwordx4 {vr(QF,4)}, v{V_L16}, {sr(R_WS,4)}, s{S_T2} offen offset:2048 sc1")
    a(f"s_add_u32 s{S_T2}, s{S_OST}, {WS_Q - WS_O - 2048}\ns_mov_b32 s{S_SPIN}, 0\ns_waitcnt vmcnt(0)\ns_barrier\ns_setprio 2")
    a(qload)
    kv_first()
    nst[0] = 12 if cfg.stamps == 4 else 5
    stamp()
    a.label("L_qchk")
    a(f"""
    s_waitcnt vmcnt(0) lgkmcnt(0)
    v_max3_u32 v8, v{QF}, v{QF+1}, v{QF+2}
    v_max3_u32 v8, v8, v{QF+3}, v{QP}
    v_max3_u32 v8, v8, v{QP+1}, v{QP+2}
    v_max_u32 v8, v8, v{QP+3}
    v_cmp_eq_u32 vcc, -1, v8
    s_add_u32 s{S_SPIN}, s{S_SPIN}, 1
    s_cbranch_vccz L_qok
    s_cmp_ge_u32 s{S_SPIN}, {SPIN_MAX}
    s_cbranch_scc1 L_qok
    s_sleep {cfg.qsl}
    {qload}
    s_branch L_qchk
    """)
    a.label("L_qok")
    if cfg.stamps == 1:
        n0 = nst[0]; nst[0] = 4; stamp(); nst[0] = n0
        a(f"v_writelane_b32 v{V_STAMP}, s{S_SPIN}, 63")
    a('; ---- softmax reference point: maximum over the first 32 keys (a lower bound of the row maximum), scores are taken relative to it minus a fixed shift.')
    a(mfma32(S0, KF, QP, None)); a(mfma32(S1, KF, QF, None))
    a(f"ds_write_b128 v7, {vr(QP,4)} offset:{L_HQ}")
    a.nop(10)
    for l in maxtree(S0, 8): a(l)
    a(f"v_mov_b32 v9, v8\ns_nop 1\nv_permlane32_swap_b32 v8, v9\nv_max_f32 v8, v8, v9\nv_sub_f32 v{QP+4}, {hex(f2u(-cfg.shift))}, v8")
    a(f"v_mov_b32 v{QP+5}, v{QP+4}\nv_mov_b64 {vr(QP+6,2)}, {vr(QP+4,2)}\nds_write_b128 v7, {vr(QP+4,4)} offset:{L_HQ + 1024}")
    for l in maxtree(S1, 8): a(l)
    if cfg.g_early:
        a("s_waitcnt lgkmcnt(0)\ns_barrier")
        stamp(name="att0"); pad("att0")
    setC(8, cfg.shift)
    a("s_waitcnt lgkmcnt(0)\ns_setprio 0")
    a(mfma32(S0, KF, QF, CC))
    if not cfg.g_early:
        a("s_barrier")
        stamp(name="att0"); pad("att0")
    a("s_nop 3\ns_branch L_attB")

    def kvdma(c, half):
        slot = (c + 1) % 3
        L = (f"s_add_u32 m0, s{S_W2K}, {L_KV + slot*16384}\ns_add_u32 s{S_T0}, s{S_W2K}, {WS_KV + starts[c]*2048}\n")
        if half == 1 and sizes[c] < 8:
            L += f"s_cmp_ge_u32 s{S_W}, {sizes[c]}\ns_cselect_b32 s{S_T0}, {WS_SIZE}, s{S_T0}\n"
        return [L + f"buffer_load_dwordx4 v{V_L16}, {sr(R_WS,4)}, s{S_T0} offen sc1 lds",
                f"buffer_load_dwordx4 v{V_L16}, {sr(R_WS,4)}, s{S_T0} offen offset:1024 sc1 lds"]
    def rowdma(rs, sbase, add, ldsbase, e):
        pre = f"s_add_u32 m0, s{S_W4K}, {ldsbase}\n"
        return pre + f"s_add_u32 s{S_T0}, s{sbase}, {add + e*7168}\nbuffer_load_dwordx4 v{V_WDD}, {sr(rs,4)}, s{S_T0} offen offset:{1024*e} {cfg.cf[2]} lds"
    tbs = [starts[c] - 3 for c in range(1, len(starts))]
    late = []
    def attention(half):
        sfx = "AB"[half]
        if cfg.stamps == 5: a(f"s_mov_b32 s{S_SPIN}, 0")
        head = {t: [] for t in range(66)}
        vm = {t: [] for t in range(66)}
        pre = {t: [] for t in range(66)}
        bg = {t: [] for t in range(66)}
        nb = len(tbs); c0 = nb - 7
        lh, mb = cfg.lh, cfg.mb
        for ci, tb in enumerate(tbs):
            q = []
            if ci + 2 < len(starts): q += [("D", x) for x in kvdma(ci + 2, half)]
            dload = ci - c0 + 1
            if 0 <= dload <= 6:
                wq_ = [rowdma(R_WD, S_WDO, dload*65536, L_WD + (dload & 1)*32768, e) for e in range(4)]
                if dload == 0:
                    for e in range(4): vm[cfg.t_wd0[e]].append(("D", wq_[e]))
                else: q += [("D", x) for x in wq_]
                hl = [f"buffer_load_dwordx4 {vr(HF + 16*(dload&1) + 4*j,4)}, v{V_L16}, {sr(R_WS,4)}, s{S_T1} offen offset:{1024*j} sc1" for j in range(4)]
                hl[0] = f"s_add_u32 s{S_T1}, s{S_HLD}, {dload*4096}\n" + hl[0]
            elif dload == 7:
                q += [("D", rowdma(R_WO, S_WOO, 0, L_WO, e)) for e in range(4)]
                q += [("D", f"buffer_load_dwordx4 {vr(V_XR,4)}, v{V_FO}, {sr(R_X,4)}, 0 offen")]
            for i, x in enumerate(q): vm[tb + cfg.dpos[i] if ci else cfg.t_kv2].append(x)
            if 0 <= dload <= 6:
                for j in range(4):
                    vm[cfg.t_h0[j] if dload == 0 else tb + cfg.hpos[j]].append((f"H{dload}{j}", hl[j]))
                    if j in cfg.hwait: pre[tbs[ci + 1] + mb[2*j]].append(("wait", f"H{dload}{cfg.hwait[j]}"))
            d = dload - 1
            if d >= 0:
                for k in range(8):
                    j, ct = divmod(k, 2); fr = DF + 4 * (k & 3)
                    for t in range(2):
                        head[tb + lh[k]].append(f"ds_read_b64_tr_b16 {vr(fr+2*t,2)}, v{V_DA+ct} offset:{(d&1)*32768 + j*2048 + t*512}")
                    bg[tb + mb[k]].append(mfma32(YY + 16*ct, HF + 16*(d&1) + 4*j, fr, None if (d == 0 and j == 0) else YY + 16*ct))
        assert min(cfg.t_h0) >= cfg.t_chk and max(lh) <= 6 and max(mb) <= 7 and all(m > l for m, l in zip(mb, lh))
        assert all(lh[k+4] > mb[k] and lh[k] + 6 > mb[k+4] for k in range(4)) and all(cfg.hpos[j] + 6 > mb[2*j+1] for j in range(4))
        st = []
        if half == 0:
            for rt in range(4):
                for ti in range(2):
                    st.append(f"s_add_u32 s{S_T3}, s{S_HSB if ti else S_HST}, {112*1024*rt}\n"
                              f"buffer_store_dwordx4 {vr(HO + 16*ti + 4*rt,4)}, v{V_L16}, {sr(R_WS,4)}, s{S_T3} offen sc1")
        st.append(f"buffer_store_dwordx4 v[12:15], v{V_L16}, {sr(R_WS,4)}, s{S_OST} offen sc1")
        hs = list(range(64))
        for i, x in enumerate(st): vm[hs[int(i * cfg.st_rate)]].append(("S", x))
        if half == 1:
            if cfg.t_pf >= 0: vm[cfg.t_pf] += [("X", x) for x in pfl]
            for e in range(8):
                x = f"s_add_u32 m0, s{S_EX}, {L_WO + 32768 + e*1024}\ns_add_u32 s{S_T0}, s{S_EX+1}, {e*8192}\nbuffer_load_dwordx4 v{V_WDD}, {sr(R_WO,4)}, s{S_T0} offen lds"
                if e == 0: x = f"s_lshl_b32 s{S_EX+1}, s{S_HW}, 16\ns_lshl_b32 s{S_T0}, s{S_CT8}, 7\ns_add_u32 s{S_EX+1}, s{S_EX+1}, s{S_T0}\ns_xor_b32 s{S_T0}, s{S_T16}, 0x40000\ns_add_u32 s{S_EX+1}, s{S_EX+1}, s{S_T0}\ns_lshl_b32 s{S_EX}, s{S_H4K}, 1\n" + x
                vm[cfg.t_wo[e]].append(("D", x))
            assert max(cfg.t_wo) <= tbs[1]
            for i in range(6): head[tbs[1] + 2 + i] += wo_rd[4*i:4*i+4]
            head[61] += wo_rd[24:26]; head[63] += wo_rd[26:]
        else:
            head[63] += wo_rd[:cfg.n_wo63]
        if cfg.t_out: vm[cfg.t_out].append(("X", f"s_mov_b64 exec, 1\nbuffer_load_dword v254, v{V_FO}, {sr(R_OUT,4)}, 0 offen\ns_mov_b64 exec, -1"))
        for t in cfg.t_code: vm[t].append(("X", "s_mov_b64 exec, 3\nglobal_load_dword v254, v[252:253], off\ns_mov_b64 exec, -1"))
        pre[cfg.t_flag].append(("wait", "S"))
        vm[cfg.t_flag].insert(0, ("F", f"s_mov_b64 exec, 1\nbuffer_store_dword v11, off, {sr(R_WS,4)}, s{S_FLG} sc1\ns_mov_b64 exec, -1"))
        poll = f"buffer_load_dword v3, v{V_PO}, {sr(R_WS,4)}, s{S_T2} offen sc1"
        vm[cfg.t_poll].append(("P", f"s_mov_b32 s{S_T2}, {WS_FL}\n" + poll))
        assert cfg.t_poll <= cfg.t_chk - 2
        pre[cfg.t_chk - 1].append(("wait", "P"))
        pre[cfg.t_chk].append(("text", f"s_cbranch_vccnz L_hspin{sfx}\nL_hok{sfx}:"))
        late.append(f"L_hspin{sfx}:\ns_mov_b32 s{S_SPIN}, 0\nL_hchk{sfx}:\ns_sleep 2\n{poll}\ns_waitcnt vmcnt(0)\nv_cmp_ne_u32 vcc, 1, v3\ns_add_u32 s{S_SPIN}, s{S_SPIN}, 1\ns_cbranch_vccz L_hok{sfx}\n"
                    f"s_cmp_lt_u32 s{S_SPIN}, {SPIN_MAX}\ns_cbranch_scc1 L_hchk{sfx}\ns_branch L_hok{sfx}")
        VQ = []
        def cnt(tag):
            idx = [i for i, x in enumerate(VQ) if x == tag]
            return min(63, len(VQ) - 1 - max(idx)) if idx else 63
        def emit_vm(L):
            for tag, x in L: a(x); VQ.append(tag)
        for t in range(tbs[2] + 1, 64):
            if 'v' in cfg.ab: vm[t] = [x for x in vm[t] if 'sc1 lds' in x[1]]
            if 'h' in cfg.ab: vm[t] = [x for x in vm[t] if x[0] != 'H']
            if 'r' in cfg.ab: head[t] = []
            if 'm' in cfg.ab: bg[t] = []
        for t in range(64):
            par = t & 1
            sd, sn = (S0, S1) if par == 0 else (S1, S0)
            p, pp = PP + 8*par, PP + 8*(1 - par)
            isb = (t in tbs and not ('b' in cfg.ab and t > tbs[2])) or t == 62
            if cfg.stamps == 2 and t - 1 in tbs: stamp()
            brk("a")
            midb = isb and half == 1
            if half == 0 and (t - 1 in tbs or t == 63): a(f"s_waitcnt vmcnt({cnt('D')}) lgkmcnt(0)\ns_barrier")
            else: a("s_waitcnt lgkmcnt(0)")
            for k, x in pre[t]: a(x if k == "text" else f"s_waitcnt vmcnt({cnt(x)})")
            emit_vm(vm[t][:1])
            if not ('L' in cfg.ab and t & 2) and not ('Z' in cfg.ab and t > 2):
                if t + 2 < 64: a(f"ds_read_b128 {vr(KF+4*par,4)}, v{V_KA} offset:{kv_off(t+2)}")
                a(f"s_mov_b64 exec, {sr(S_VM,2)}")
                if t + 1 < 64: a(f"ds_read_b128 {vr(VF+8*(1-par),4)}, v{V_VA} offset:{kv_off(t+1)}")
                a(f"ds_read_b128 {vr(VF+8*par+4,4)}, v{V_VA} offset:{kv_off(t)+512}")
                a("s_mov_b64 exec, -1")
            for l in head[t]: a(l)
            emit_vm(vm[t][1:])
            if t == 0 and cfg.stamps == 9: ncs[0] = 0
            if cfg.t_tr <= t < cfg.t_tr + 9: cstamp(9)
            pos = cfg.pos[len(bg[t])]
            sl = [smf(OO, VF + 8*(1-par) + 4, sn + 8) if t >= 1 else None, mfma32(sn, KF + 4*(1-par), QF, CC) if t + 1 < 64 else None]
            sl += bg[t][:1] + [smf(OO, VF + 8*par, sd)] + bg[t][1:]
            at = {p: m for p, m in zip(pos, sl) if m}
            if 'M' in cfg.ab:
                import re as _re
                for p in list(at):
                    if at[p] in bg[t]:
                        m = _re.match(r"\S+ v\[(\d+):\d+\], v\[(\d+):\d+\], v\[(\d+):\d+\]", at[p]); d_, a_, b_ = map(int, m.groups())
                        d_ += 8 * (t & 1)
                        at[p] = mfma16(d_, a_, b_, d_); at[p + 1] = mfma16(d_ + 4, b_, a_, d_ + 4)
            if t in cfg.upd:
                assert len(sl) == 3
                at = {1: f"v_frexp_exp_i32_f32_e64 v4, v{OO+8}", 2: sl[0], 3: f"v_sub_u32 v4, {17 - int(cfg.shift)}, v4\nv_cvt_f32_i32_e64 v5, v4", 5: sl[1],
                      8: f"v_mfma_f32_32x32x2_f32 {vr(CC,16)}, v49, v5, {vr(CC,16)}", 15: sl[2]}
                if cfg.updm >= 1:
                    mv = [f"v_mov_b32 v{CC+1}, v{CC}"] + [f"v_mov_b64 {vr(CC+i,2)}, {vr(CC,2)}" for i in range(2, 16, 2)] if cfg.updm == 1 else [f"v_mov_b32 v{CC+i}, v{CC}" for i in range(1, 16)]
                    del at[8], at[15]
                    at[12] = "\n".join([f"v_add_f32{'_e64' if cfg.updm == 1 else ''} v{CC}, v{CC}, v5"] + mv)
                    at[13] = sl[2]
                if cfg.updl: at[3] = f"v_sub_u32 v4, {17 - int(cfg.shift)}, v4\nv_max_i32 v4, 0xffffff82, v4\nv_cvt_f32_i32_e64 v5, v4\nv_ldexp_f32 v4, 1.0, v4"
            if t - 2 in cfg.upd:
                assert len(sl) == 3
                at = {2: sl[0], 6: sl[1], 13: "\n".join((f"v_mul_f32{'_e64' if i == 0 else ''} v{OO+i}, v{OO+i}, v4" if cfg.updl else f"v_ldexp_f32 v{OO+i}, v{OO+i}, v4") for i in range(9)), 15: sl[2]}
            a(".p2align 3")
            odd = False
            for i in range(16):
                if i in at: a(at[i])
                if midb and i == cfg.bmid: a(f"s_waitcnt vmcnt({cnt('D')}) lgkmcnt(0)\ns_barrier")
                pr = i == (cfg.pp if half else cfg.pa)
                wide = (i + 1 in at) and (odd == pr)
                a(f"v_exp_f32{'_e64' if wide else ''} v{sd+i}, v{sd+i}")
                if not wide: odd = not odd
                if pr: a(f"s_setprio {cfg.pv[half]}"); odd = not odd
            if cfg.stamps == 3: a(f"s_waitcnt lgkmcnt(0)\nv_writelane_b32 v253, s{S_TS}, {t}\nv_writelane_b32 v254, s{S_TS2}, {t}\ns_memtime {sr(S_TS2,2)}")
            if t == cfg.t_chk - 1: a("v_cmp_ne_u32 vcc, 1, v3")
            if (cfg.pp if half else cfg.pa) is not None: a("s_setprio 0")
            if cfg.t_tr <= t < cfg.t_tr + 9: cstamp(9)
        a("s_waitcnt lgkmcnt(0)\ns_nop 0")
        a(smf(OO, VF + 12, S1 + 8))
    OF, SS, XU, TT = 16, 64, 160, 168
    def oload(j): return f"buffer_load_dwordx4 {vr(OF+4*j,4)}, v{V_L16}, {sr(R_WS,4)}, s{S_OLD if j < 4 else S_T1} offen offset:{1024*(j&3)} sc1"
    def chk(j): return f"v_max3_u32 v8, v{OF+4*j}, v{OF+4*j+1}, v{OF+4*j+2}\nv_max_u32 v8, v{OF+4*j+3}, v8\nv_cmp_eq_u32 vcc, -1, v8"
    F = f"L_ofix:\ns_mov_b32 s{S_T2}, 0\ns_waitcnt vmcnt(0)\n"
    for j in range(8):
        F += (f"s_bitcmp1_b32 s{S_CNT}, {j}\ns_cbranch_scc0 L_ofb{j}\n{chk(j)}\ns_cmp_lg_u32 s{S_T2}, 0\ns_cbranch_vccz L_ofa{j}\n{oload(j)}\ns_mov_b32 s{S_T2}, 1\ns_branch L_ofb{j}\nL_ofa{j}:\ns_cbranch_scc1 L_ofb{j}\ns_bitset0_b32 s{S_CNT}, {j}\n"
              + mfma32(SS, OF + 4*j, WOF[2*j], SS) + "\n" + mfma32(SS + 16, OF + 4*j, WOF[2*j + 1], SS + 16) + f"\nL_ofb{j}:\n")
    F += (f"s_add_u32 s{S_SPIN}, s{S_SPIN}, 1\ns_cmp_ge_u32 s{S_SPIN}, {SPIN_MAX}\ns_cselect_b32 s{S_CNT}, 0, s{S_CNT}\n"
          f"s_cmp_lg_u32 s{S_CNT}, 0\ns_cbranch_scc1 L_ofix\ns_setpc_b64 {sr(S_RET,2)}")
    late.insert(0, F)
    def normalize():
        for i in range(0, 8, 2): a(f"v_pk_mul_f32 {vr(OO+i,2)}, {vr(OO+i,2)}, v[10:11]")
        for i in range(4): a(f"v_cvt_pk_bf16_f32 v{12+i}, v{OO+2*i}, v{OO+2*i+1}")
    def tail(half):
        sfx = "AB"[half]
        if cfg.stamps == 8: ncs[0] = 0
        if cfg.stamps == 5: a(f"v_writelane_b32 v{V_STAMP}, s{S_SPIN}, 62")
        stamp(name="att1"); pad("att1")
        cstamp()
        a(f"s_mov_b32 s{S_T2}, {hex(f2u(2.0**120))}\ns_mov_b32 s{S_T3}, {hex(f2u(2.0**-106))}")
        a(f"s_add_u32 s{S_T1}, s{S_OLD}, 4096\ns_mov_b32 s{S_SPIN}, 0\ns_lshl_b32 s{S_T0}, s{S_W}, 13\ns_mov_b32 m0, s{S_T0}")
        a.nop(6)
        a(f"""
        v_rcp_f32 v10, v{OO+8}
        v_maximum3_f32 v8, abs(v{OO}), abs(v{OO+1}), abs(v{OO+2})
        v_maximum3_f32 v9, abs(v{OO+3}), abs(v{OO+4}), abs(v{OO+5})
        v_maximum3_f32 v8, abs(v{OO+6}), abs(v{OO+7}), v8
        v_maximum3_f32 v6, v8, v9, v{OO+8}
        v_max_f32 v8, v8, v9
        v_cmp_ngt_f32 vcc, s{S_T2}, v6
        v_cmp_gt_f32 {sr(S_EX,2)}, s{S_T3}, v8
        v_mov_b32 v11, v10
        s_or_b64 vcc, vcc, {sr(S_EX,2)}
        """)
        a("s_branch L_fb" if cfg.force_fb else "s_nop 0" if cfg.ab else "s_cbranch_scc1 L_fb")
        normalize()
        a.label(f"L_ost{sfx}")
        a(f"buffer_store_dwordx4 v[12:15], v{V_L16}, {sr(R_WS,4)}, s{S_OST} offen sc1")
        cstamp()
        if half == 0:
            for l in wo_rd[cfg.n_wo63:]: a(l)
        for i in range(32): a(f"ds_write_addtid_b32 v{YY+i} offset:{32768 + 256*i}")
        cstamp()
        a(f"""
        v_xor_b32 v5, 16, v{V_GA}
        v_add_u32 v6, 0x10000, v{V_GA}
        v_add_u32 v7, 0x10000, v5
        s_mov_b32 s{S_EX}, 0xff00ff00
        s_mov_b32 s{S_EX+1}, 0xff00ff00
        s_mov_b64 exec, {sr(S_EX,2)}
        v_swap_b32 v{V_XR}, v{V_XR+2}
        v_swap_b32 v{V_XR+1}, v{V_XR+3}
        s_mov_b64 exec, -1
        """)
        for i in range(4): a(f"v_lshlrev_b32 v{XU+2*i}, 16, v{V_XR+i}\nv_and_b32 v{XU+2*i+1}, 0xffff0000, v{V_XR+i}")
        for i in range(0, 32, 2): a(f"v_mov_b64 {vr(SS+i,2)}, 0")
        a("s_waitcnt lgkmcnt(0)\ns_barrier")
        if half: a(f"s_add_u32 m0, s{S_T0}, 7940")
        cstamp()
        yr = [f"ds_read_b128 {vr(YY+8*p+4*e,4)}, v{((V_GA, 5), (6, 7))[p >> 1][e]} offset:{(32768 + 16384*p) & 0xffff}" for p in range(4) for e in range(2)]
        G = ["s_waitcnt lgkmcnt(0)"]
        for p in (1, 2, 3): G += [f"v_add_f32 v{YY+i}, v{YY+i}, v{YY+8*p+i}" for i in range(8)]
        G += [f"v_mul_f32 v{TT+i}, {hex(f2u(-math.log2(math.e)))}, v{YY+i}" for i in range(8)]
        G += [f"v_exp_f32 v{TT+i}, v{TT+i}" for i in range(8)]
        G += [f"v_add_f32 v{TT+i}, 1.0, v{TT+i}" for i in range(8)]
        G += [f"v_rcp_f32 v{TT+i}, v{TT+i}" for i in range(8)]
        G += [f"v_mul_f32 v{YY+i}, v{YY+i}, v{TT+i}" for i in range(8)]
        if half:
            for l in yr: a(l)
            for j in range(cfg.n_b0): a(oload(j))
            for l in G[:cfg.n_gb]: a(l)
            G = G[cfg.n_gb:]
            for j in range(cfg.n_b0, 8):
                a(oload(j))
                for l in G[:cfg.n_gp]: a(l)
                G = G[cfg.n_gp:]
            for l in G: a(l)
        elif cfg.odelay:
            for l in yr + G[:cfg.odelay]: a(l)
            G = G[cfg.odelay:]
            for j in range(8): a(oload(j))
        else:
            for j in range(8): a(oload(j)); a(yr[j])
        cstamp()
        def nxt(j): return f"s_waitcnt vmcnt({7-j})\n" + chk(j) + f"\ns_movk_i32 s{S_CNT}, {(0xff << j) & 0xff}"
        a(nxt(0))
        for j in range(8):
            a(f"s_cbranch_vccnz L_omiss{sfx}")
            if j in (0, 3, 7): cstamp()
            a(mfma32(SS, OF + 4*j, WOF[2*j], SS))
            if j < 7: a(nxt(j + 1))
            a(mfma32(SS + 16, OF + 4*j, WOF[2*j + 1], SS + 16))
        late[0] = f"L_omiss{sfx}:\ns_call_b64 {sr(S_RET,2)}, L_ofix\ns_branch L_ook{sfx}\n" + late[0]
        a.label(f"L_ook{sfx}")
        a.nop(11)
        for i in range(32): a(f"ds_write_addtid_b32 v{SS+i} offset:{(57596 if half else 0) + 256*i}")
        if not half:
            for l in G: a(l)
    far("L_attA")
    n0 = nst[0]
    attention(0)
    tail(0)
    a("s_branch L_fin2")
    far("L_attB")
    nst[0] = n0
    attention(1)
    tail(1)
    far("L_fin2", True)
    a("s_waitcnt lgkmcnt(0)\ns_barrier")
    if cfg.stamps == 6: stamp()
    cstamp()
    for p in range(4):
        for e in range(2): a(f"ds_read_b128 {vr(OF+8*p+4*e,4)}, v{((V_GA, 5), (6, 7))[p >> 1][e]} offset:{16384*p}")
    a("s_waitcnt lgkmcnt(0)" if cfg.stamps == 8 else "s_waitcnt lgkmcnt(4)")
    for i in range(0, 8, 2): a(f"v_pk_add_f32 {vr(OF+i,2)}, {vr(OF+i,2)}, {vr(OF+8+i,2)}")
    a("s_waitcnt lgkmcnt(0)")
    for i in range(0, 8, 2): a(f"v_pk_add_f32 {vr(OF+16+i,2)}, {vr(OF+16+i,2)}, {vr(OF+24+i,2)}")
    for i in range(0, 8, 2): a(f"v_pk_add_f32 {vr(OF+i,2)}, {vr(OF+i,2)}, {vr(OF+16+i,2)}")
    for i in range(0, 8, 2): a(f"v_pk_fma_f32 {vr(OF+i,2)}, {vr(OF+i,2)}, {vr(YY+i,2)}, {vr(XU+i,2)}")
    for i in range(4): a(f"v_cvt_pk_bf16_f32 v{12+i}, v{OF+2*i}, v{OF+2*i+1}")
    a(f"s_mov_b64 exec, {sr(S_EX,2)}\nv_swap_b32 v12, v14\nv_swap_b32 v13, v15\ns_mov_b64 exec, -1")
    a(f"buffer_store_dwordx4 v[12:15], v{V_FO}, {sr(R_OUT,4)}, 0 offen {cfg.oflag}")
    if cfg.stamps == 6: stamp()
    cstamp()
    if cfg.stamps:
        a("s_waitcnt vmcnt(0)")
        cstamp()
        stamp(True)
        for i in range(ncs[0]): a(f"v_writelane_b32 v{V_STAMP}, s{CSR[i]}, {40+i}")
        if cfg.stamps in (10, 12):
            for i in range(6): a(f"v_writelane_b32 v{V_STAMP}, s{[32, 34, 92, 94, 96, 98][i]}, {40+i}")
        if cfg.stamps in (5, 6): a(f"v_writelane_b32 v{V_STAMP}, s{S_SPIN}, 63")
        a(f"s_lshl_b32 s{S_T0}, s2, 3\ns_add_u32 s{S_T0}, s{S_T0}, s{S_W}\ns_lshl_b32 s{S_T0}, s{S_T0}, 8\ns_add_u32 s{S_T0}, s{S_T0}, {WS_DBG}")
        a(f"v_lshlrev_b32 v2, 2, v{V_LANE}\nbuffer_store_dword v{V_STAMP}, v2, {sr(R_WS,4)}, s{S_T0} offen")
        if cfg.stamps == 3:
            a(f"s_add_u32 s{S_T0}, s{S_T0}, 0x80000\nbuffer_store_dword v253, v2, {sr(R_WS,4)}, s{S_T0} offen\ns_add_u32 s{S_T0}, s{S_T0}, 0x80000\nbuffer_store_dword v254, v2, {sr(R_WS,4)}, s{S_T0} offen")
    pad("end")
    a.label("L_end")
    a("s_endpgm")
    a(late[0])
    if cfg.brks is None: brk("x")
    for l in late[1:]: a(l)
    a.label("L_fb")
    a(f"v_mov_b32 v8, 0xff800000\ns_mov_b32 s{S_CNT}, {WS_KV}")
    a(f"v_subrev_u32 v10, {L_KV}, v{V_VA}")
    a.label("L_fb1")
    a(f"buffer_load_dwordx4 {vr(KF,4)}, v{V_L16}, {sr(R_WS,4)}, s{S_CNT} offen sc1\ns_waitcnt vmcnt(0)")
    a(mfma32(S0, KF, QF, None)); a.nop(12)
    for l in maxtree(S0, 8, init=True): a(l)
    a(f"s_add_u32 s{S_CNT}, s{S_CNT}, 2048\ns_cmp_lt_u32 s{S_CNT}, {WS_KV + 64*2048}\ns_cbranch_scc1 L_fb1")
    setC(8, 0.0)
    for i in range(16): a(f"v_mov_b32 v{OO+i}, 0")
    a(f"s_mov_b32 s{S_CNT}, {WS_KV}")
    a.label("L_fb2")
    a(f"buffer_load_dwordx4 {vr(KF,4)}, v{V_L16}, {sr(R_WS,4)}, s{S_CNT} offen sc1")
    a(f"s_mov_b64 exec, {sr(S_VM,2)}")
    a(f"buffer_load_dwordx4 {vr(VF,4)}, v10, {sr(R_WS,4)}, s{S_CNT} offen sc1")
    a(f"buffer_load_dwordx4 {vr(VF+4,4)}, v10, {sr(R_WS,4)}, s{S_CNT} offen offset:512 sc1")
    a("s_mov_b64 exec, -1\ns_waitcnt vmcnt(0)")
    a(mfma32(S0, KF, QF, CC)); a.nop(12)
    for i in range(16): a(f"v_exp_f32 v{S0+i}, v{S0+i}")
    a.nop(2)
    a(smf(OO, VF, S0)); a(smf(OO, VF + 4, S0 + 8))
    a(f"s_add_u32 s{S_CNT}, s{S_CNT}, 2048\ns_cmp_lt_u32 s{S_CNT}, {WS_KV + 64*2048}\ns_cbranch_scc1 L_fb2")
    a.nop(12)
    a(f"v_rcp_f32 v10, v{OO+8}\ns_nop 0\nv_mov_b32 v11, v10")
    normalize()
    for i in range(4): a(f"v_min_u32 v{12+i}, -2, v{12+i}")
    a(f"s_cmp_ge_u32 s{S_W}, 4\ns_cbranch_scc1 L_ostB\ns_branch L_ostA")
    a.label("L_code_end")
    return a

HEADER = open(f"cdna_kernels/{NAME}.s.ref").read().split("; Override launch")[0]
def wrap(a):
    s = HEADER + """; One persistent launch, one 8-wave workgroup per CU (all 256 are resident: 160 KiB LDS each). Generated by the author's script.
;  1. K/V rows, LayerNorm statistics and column sums of W are shared out over the workgroups, published in d_ws, arrival counted in d_debug.
;  2. [w_gate | w_up | w_q] projection on raw x, 128 x 256 tile; LayerNorm applied in the epilogue; h and q go to d_ws.
;  3. MQA attention with the down projection interleaved; 4. o exchange, w_o projection, gate, residual.
; Hand-offs use write-through stores and L1-bypassing loads; flags and 'not yet written' patterns are initialised inside the launch.
""" + "; @launch grid=(256,1,1) block=(512,1,1) lds=163840\n"
    s += f""".amdgcn_target "amdgcn-amd-amdhsa--gfx950"
.text
.globl {NAME}_kernel
.p2align 8
.type {NAME}_kernel,@function
{NAME}_kernel:
"""
    s += a.text()
    s += f""".section .rodata,"a"
.p2align 6
.amdhsa_kernel {NAME}_kernel
  .amdhsa_next_free_vgpr 256
  .amdhsa_next_free_sgpr 102
  .amdhsa_accum_offset 256
  .amdhsa_group_segment_fixed_size 0
  .amdhsa_kernarg_size 96
  .amdhsa_user_sgpr_count 2
  .amdhsa_user_sgpr_kernarg_segment_ptr 1
  .amdhsa_system_sgpr_workgroup_id_x 1
.end_amdhsa_kernel
"""
    return s

if __name__ == "__main__":
    cfg = Cfg()
    out = sys.argv[1]
    for kv in sys.argv[2:]:
        k, v = kv.split("=")
        setattr(cfg, k, eval(v))
    g0 = gen
    def gen(cfg):
        a = g0(cfg)
        if 'E' in cfg.ab or 'S' in cfg.ab:
            n = a.lines.index("L_qt:")
            for i in range(n):
                if a.lines[i].startswith("buffer_store") or ('E' in cfg.ab and a.lines[i].startswith("buffer_")): a.lines[i] = "s_nop 0"
            h = a.lines.index("L_helper:")
            k = 0
            for i in range(h, len(a.lines)):
                if a.lines[i].startswith("buffer_store") and k < 3:
                    a.lines[i] = f"buffer_load_dword v9, off, {sr(R_X,4)}, 0"; k += 1
        if cfg.jitter:
            import random
            rnd = random.Random(cfg.jitter)
            out_ = []; k = 0; started = False
            for i, l in enumerate(a.lines):
                if l.startswith("s_cbranch_scc1 L_helper"): started = True
                if started and (l == "s_barrier" or ("sc1" in l and rnd.random() < 0.3)) and rnd.random() < 0.5:
                    k += 1
                    out_ += ["s_cselect_b32 s101, 1, 0", f"s_lshl_b32 s100, s2, 3", f"s_add_u32 s100, s100, s{S_W}" if rnd.random() < 0.5 else "s_nop 0",
                             f"s_mul_i32 s100, s100, {rnd.randrange(1, 1 << 30) | 1}", "s_lshr_b32 s100, s100, 28", f"s_cmp_lt_u32 s100, {rnd.choice([1, 2, 4])}",
                             f"s_cbranch_scc0 L_jit{k}", f"s_sleep {rnd.choice([5, 20, 60, 120])}", f"L_jit{k}:", "s_cmp_eq_u32 s101, 1"]
                out_.append(l)
            a.lines = out_
        return a
    a = gen(cfg)
    if cfg.pages:
        import subprocess, re
        open("_p1.s", "w").write(wrap(a))
        subprocess.run(["clang", "-x", "assembler", "-target", "amdgcn-amd-amdhsa", "-mcpu=gfx950", "-c", "_p1.s", "-o", "_p1.o"], check=True)
        t = subprocess.run(["llvm-objdump", "-t", "_p1.o"], capture_output=True, text=True).stdout
        pts = sorted((int(m.group(1), 16), m.group(2), int(m.group(3))) for m in re.finditer(r"^([0-9a-f]+) .* L_brk_(\w)_(\d+)$", t, re.M))
        brks = {}; start = -0x300
        for (ad, k, i), (nx, _, _) in zip(pts, pts[1:]):
            if nx - start > 4096 - 112:
                brks[i] = k; start = ad
        cfg.brks = brks
        a = gen(cfg)
    else:
        cfg.brks = {}
        a = gen(cfg)
    errs = check(a.lines)
    for e in errs: print("HAZARD need %d have %d:\n   %s\n   %s" % (e[2], e[3], e[0], e[1]))
    open(out, "w").write(wrap(a))
    print("wrote", out, len(a.lines), "lines", len(errs), "hazards")
```

```python
import sys, math
from asmlib import Asm, vr, sr, f2u, check

NAME = "recurrent_scan__grouped_kv_mqa__glu_gated_geglu__prompt"

class Cfg:
    stamps = False
    stop = None
    force_fb = False
    shift = 101.0
    upd = (5,)
    brks = None
    pages = True
    touch = True
    far = ('L_attA', 'L_attB')
    odelay = 1
    xmap = 0
    krot = 8
    hfl = 'sc1'
    t_sb = 4
    e7 = 0
    itr = ()
    qsl = 2
    p0 = (4, 6)
    cs_in = False
    jitter = 0
    t_out = 0
    cs_late = False
    n_cs0 = 2
    n_csb = 4
    wfix = False
    stub = 's_nop 0\n'
    updm = 1
    updl = True
    cf = ('', '', '')
    nodot = False
    nodma = False
    nord = False
    sizes = [8, 8, 7] + [6]*6 + [5]
    ilen = 6
    g_init = 2
    t_pf = -1
    t_wo = (7, 8, 9, 10, 11, 12, 13, 15)
    t_wd0 = (15, 15, 16, 17)
    t_poll = 16
    bmid = 2
    lh = (1, 2, 3, 3, 4, 5, 6, 6)
    mb = (2, 3, 4, 5, 5, 6, 7, 7)
    dpos = (1, 1, 2, 2, 3, 4)
    hpos = (4, 5, 5, 6)
    hwait = {0: 0, 1: 3}
    t_h0 = (19, 19, 20, 20)
    t_chk = 19
    pbar = 1
    n_csa = 4
    lead0 = 10
    oflag = 'sc1'
    n_wo63 = 6
    nt = ''
    t_code = (7, 43)
    ofast = 0
    olate = 1
    yfirst = True
    n_gb = 1
    n_b0 = 0
    oswap = False
    t_tr = 30
    n_gp = 8
    i_q = 5
    i_qb = 2
    n_poll = 0
    e6 = 0
    pf_first = True
    bp = 0
    g_h = 29
    c_st = (-2, 0)
    c_q = (2, 99, 4, 0)
    gpos = 0
    g_tr = 4
    mord = 0
    g_early = True
    mswap = False
    c_arr = 1
    lead = [8, 10, 12, 9, 12, 12]
    n_pre = (2, 4)
    n_fin = (7, 6)
    g_cs = (3, 4, 5, 6)
    g_csc = 9
    bprio = 3
    st_rate = 0.5
    t_flag = 9
    t_kv2 = 6
    m16 = False
    pp = 0
    pos = [(2, 6, 12), (2, 6, 10, 14), (1, 4, 7, 10, 13)]
    pa = 4
    pv = (1, 1)
    ab = ''
    pad = None

WS_KV, WS_ST, WS_FL, WS_CS, WS_O, WS_H, WS_DBG, WS_Q = 0, 0x80000, 0x28000, 0x40000, 0x100000, 0x400000, 0xC00000, 0xE00000
WS_SIZE = 0x1000000
L_X, L_W, L_R = 0, 49152, 147456
L_KV, L_WD, L_WO = 0, 65536, 98304
P_X, P_WQ, P_WK, P_WV, P_WO, P_WG, P_WU, P_WD, P_OUT, P_DBG, P_WS = 4, 6, 8, 10, 12, 16, 18, 20, 22, 24, 26
R_X, R_WKV, R_WD, R_WO, R_OUT, R_DBG, R_WS = 28, 32, 36, 40, 44, 48, 52
S_W, S_RB, S_CB, S_RT64, S_CT8 = 56, 57, 58, 59, 60
S_T16 = 61
S_VM = 62
S_XOFF = 64
S_WOFF = 65
S_HW = 66
S_ONES = 67
S_T0, S_T1, S_T2, S_T3 = 68, 69, 70, 71
S_OST = 72
S_FLG = 73
S_HST = 74
S_KQ, S_RT = 75, 76
S_WDO = 77
S_HLD = 78
S_W4K = 79
S_W2K = 80
S_SPIN = 81
S_WOO = 82
S_OLD = 83
S_EX = 84
S_TS = 86
S_CNT = 88
S_WSTEP = 89
S_TS2 = 90
S_RET = 0
R_W, R_CW = 92, 96
S_H4K = 3
S_HSB = 14
S_M0W = 15
SPIN_MAX = 1 << 18

V_LANE = 1
V_STAMP = 255
V_L16, V_KA, V_WDD, V_VA, V_DA, V_PO, V_FO, V_XR, QF = 208, 209, 210, 211, 212, 214, 215, 216, 220
V_GA = 0

def mfma32(d, a, b, c):
    cs = "0" if c is None else vr(c, 16)
    return f"v_mfma_f32_32x32x16_bf16 {vr(d,16)}, {vr(a,4)}, {vr(b,4)}, {cs}"
V_IDX = 48
def smf(d, a, b):
    return f"v_smfmac_f32_32x32x32_bf16 {vr(d,16)}, {vr(a,4)}, {vr(b,8)}, v{V_IDX}"
def mfma16(d, a, b, c):
    cs = "0" if c is None else vr(c, 4)
    return f"v_mfma_f32_16x16x32_bf16 {vr(d,4)}, {vr(a,4)}, {vr(b,4)}, {cs}"

def gen(cfg):
    a = Asm()
    nst = [0]
    def stamp(final=False, name=None):
        if not cfg.stamps: return
        i = nst[0]; nst[0] += 1
        if cfg.stamps in (8, 9, 10, 11, 12) and i and not final: return
        if cfg.stamps == 7:
            if isinstance(name, int): i = name
            elif final: i = 9
            elif name == "b0": i = 7
            elif name == "g1": i = 8
            elif i: return
        elif isinstance(name, int):
            nst[0] -= 1; return
        if cfg.stamps == 5:
            marks = {"b0": 2, "g1": 3, "att0": 4, "att1": 5}
            if final: i = 1
            elif name in marks: i = marks[name]
            elif i: return
        a(f"s_memrealtime {sr(S_TS,2)}\ns_memtime {sr(S_TS2,2)}\ns_waitcnt lgkmcnt(0)\nv_writelane_b32 v{V_STAMP}, s{S_TS}, {i}\nv_writelane_b32 v{V_STAMP}, s{S_TS2}, {32+i}")
    nbrk = [0]
    def brk(kind):
        i = nbrk[0]; nbrk[0] += 1
        if cfg.brks is None: a.label(f"L_brk_{kind}_{i}")
        elif i in cfg.brks:
            a(f"s_branch L_pg{i}\n.p2align 12\nL_stub{i}:\n" + cfg.stub + f"s_setpc_b64 {sr(S_RET,2)}\nL_pg{i}:")
    FAR = {"L_qt": "e", "L_joinA": "e", "L_attA": "a", "L_attB": "a", "L_fin2": "a"}
    def far(label, fall=False):
        if label in cfg.far:
            if fall: a(f"s_branch {label}")
            a(f".p2align 6\nL_stub{label}:\ns_nop 0\ns_setpc_b64 {sr(S_RET,2)}")
        a.label(label)
    def touch(kinds, first, n, maxn):
        ids = [] if cfg.brks is None else [i for i, k in cfg.brks.items() if k in kinds] + [l for l, k in FAR.items() if k in kinds and l in cfg.far]
        assert len(ids) <= maxn
        for j in range(maxn):
            if j < len(ids) and cfg.touch: a(f"s_cmp_eq_u32 s{S_HW}, {first + j % n}\ns_cbranch_scc0 L_nt{ids[j]}\ns_call_b64 {sr(S_RET,2)}, L_stub{ids[j]}\nL_nt{ids[j]}:")
            elif cfg.brks is None: a("s_nop 0\ns_nop 0\ns_nop 0")
    ncs = [0]
    CSR = [4, 6, 8, 10, 12] + list(range(16, 28, 2)) + [32, 34, 92, 94, 96, 98, 48]
    def cstamp(mode=8):
        if cfg.stamps != mode: return
        a(f"s_memtime {sr(CSR[ncs[0]], 2)}"); ncs[0] += 1
    def c12(k):
        if cfg.stamps == 12: a(f"s_memtime {sr([32, 34, 92, 94, 96, 98][k], 2)}\ns_waitcnt lgkmcnt(0)")
    def pad(pt):
        if not cfg.pad or cfg.pad[0] != pt: return
        if len(cfg.pad) > 2:
            inv = cfg.pad[2] == 2
            a(f"s_and_b32 s{S_T0}, s{S_TS}, 0x7fffffff")
            if inv: a(f"s_not_b32 s{S_T0}, s{S_T0}")
            a(f"v_mov_b32 v2, s{S_T0}\ns_mov_b64 exec, 1\nbuffer_atomic_umax v2, off, {sr(R_DBG,4)}, 0 offset:4 sc1\ns_mov_b64 exec, -1")
            a(f"L_pad0:\ns_memrealtime {sr(S_TS2,2)}\ns_waitcnt lgkmcnt(0)\ns_sub_u32 s{S_TS2}, s{S_TS2}, s{S_TS}\ns_cmp_lt_u32 s{S_TS2}, {int(cfg.pad[1]*100) - 1500}\ns_cbranch_scc1 L_pad0")
            a(f"buffer_load_dword v2, off, {sr(R_DBG,4)}, 0 offset:4 sc1\ns_waitcnt vmcnt(0)\nv_readfirstlane_b32 s{S_T0}, v2\ns_nop 3")
            if inv: a(f"s_not_b32 s{S_T0}, s{S_T0}")
            a(f"s_and_b32 s{S_TS}, s{S_TS}, 0x80000000\ns_or_b32 s{S_TS}, s{S_TS}, s{S_T0}")
        a(f"L_pad{len(a.lines)}:\ns_memrealtime {sr(S_TS2,2)}\ns_waitcnt lgkmcnt(0)\ns_sub_u32 s{S_TS2}, s{S_TS2}, s{S_TS}\ns_cmp_lt_u32 s{S_TS2}, {int(cfg.pad[1]*100)}\ns_cbranch_scc1 L_pad{len(a.lines)}")
    def srd(r, p, size):
        a(f"s_mov_b32 s{r}, s{p}\ns_and_b32 s{r+1}, s{p+1}, 0xffff\ns_mov_b32 s{r+2}, {hex(size)}\ns_mov_b32 s{r+3}, 0x20000")

    a(f"s_cmp_ge_u32 s2, 256\ns_cbranch_scc1 L_end")
    if cfg.pad: a(f"s_memrealtime {sr(S_TS,2)}")
    a(f"s_load_dwordx16 s[4:19], s[0:1], 0\ns_load_dwordx8 s[20:27], s[0:1], 64")
    if cfg.stamps:
        a(f"v_mov_b32 v{V_STAMP}, 0")
    a(f"v_lshrrev_b32 v2, 6, v0\nv_and_b32 v{V_LANE}, 63, v0")
    a(f"s_getpc_b64 {sr(S_EX,2)}")
    a.label("L_pc")
    a(f"""
    v_readfirstlane_b32 s{S_W}, v2
    s_and_b32 s{S_T0}, s2, 0xf8
    v_add_u32 v2, s{S_T0}, v2
    v_lshl_add_u32 v2, v2, 1, v{V_LANE}
    v_lshlrev_b32 v252, 7, v2
    v_min_u32 v252, L_code_end-L_pc-4, v252
    v_mov_b32 v253, 0
    v_lshl_add_u64 v[252:253], v[252:253], 0, {sr(S_EX,2)}
    s_mov_b64 exec, 3
    global_load_dword v9, v[252:253], off
    s_mov_b64 exec, -1
    """)
    a(f"""
    s_and_b32 s{S_T0}, s2, 7
    s_lshr_b32 s{S_T1}, s2, 3
    s_and_b32 s{S_CT8}, s{S_T1}, 7
    """)
    if cfg.xmap == 1:
        a(f"""
        s_and_b32 s{S_RB}, s{S_T1}, 15
        s_lshr_b32 s{S_T2}, s2, 7
        s_lshl_b32 s{S_CB}, s{S_T0}, 1
        s_add_u32 s{S_CB}, s{S_CB}, s{S_T2}
        s_lshr_b32 s{S_T1}, s{S_T1}, 3
        """)
    elif cfg.xmap == 2:
        a(f"""
        s_and_b32 s{S_T2}, s{S_T0}, 3
        s_lshl_b32 s{S_T2}, s{S_T2}, 2
        s_and_b32 s{S_RB}, s{S_T1}, 3
        s_add_u32 s{S_RB}, s{S_RB}, s{S_T2}
        s_and_b32 s{S_T2}, s{S_T0}, 4
        s_lshl_b32 s{S_T2}, s{S_T2}, 1
        s_lshr_b32 s{S_CB}, s{S_T1}, 2
        s_add_u32 s{S_CB}, s{S_CB}, s{S_T2}
        s_lshr_b32 s{S_T1}, s{S_T1}, 3
        """)
    else:
        a(f"""
        s_and_b32 s{S_T2}, s{S_T0}, 1
        s_lshl_b32 s{S_T2}, s{S_T2}, 3
        s_add_u32 s{S_RB}, s{S_T2}, s{S_CT8}
        s_lshr_b32 s{S_T1}, s{S_T1}, 3
        s_lshr_b32 s{S_T2}, s{S_T0}, 1
        s_lshl_b32 s{S_T2}, s{S_T2}, 2
        s_add_u32 s{S_CB}, s{S_T2}, s{S_T1}
        """)
    a(f"""
    s_lshl_b32 s{S_T2}, s{S_T0}, 2
    s_add_u32 s{S_RT64}, s{S_T2}, s{S_T1}
    s_and_b32 s{S_HW}, s{S_W}, 3
    s_lshl_b32 s{S_H4K}, s{S_HW}, 12
    v_lshlrev_b32 v{V_L16}, 4, v{V_LANE}
    s_mov_b32 s{R_X+2}, 0x200000
    s_mov_b32 s{R_X+3}, 0x20000
    s_cmp_ge_u32 s{S_W}, 4
    s_cbranch_scc1 L_helper
    """)

    sizes = cfg.sizes
    assert sum(sizes) == 64
    starts = [sum(sizes[:i]) for i in range(len(sizes))]
    S0, S1, PP, OO, CC, KF, VF = 16, 32, 48, 64, 80, 100, 108
    YY, HF, DF = 128, 160, 192
    HO = 160
    V_OA = 62
    WOF = [50, 54, 58, 96, 124] + list(range(224, 252, 4)) + [176, 180, 184, 188]
    wo_rd = [f"ds_read_b64_tr_b16 {vr(WOF[2*j+ct] + 2*t,2)}, v{V_OA+ct} offset:{j*2048 + t*512}" for j in range(8) for ct in range(2) for t in range(2)]
    def kv_off(t):
        c = max(i for i in range(len(starts)) if starts[i] <= t)
        return ((c + 1) % 3) * 16384 + (t - starts[c]) * 2048
    qload = f"buffer_load_dwordx4 {vr(QF,4)}, v{V_L16}, {sr(R_WS,4)}, s{S_T2} offen sc1"

    XS = [2, 0, 1, 2, 0, 1, 2, 0]
    L_PX = L_X + XS[2]*16384
    def setup_ids():
        a(f"""
        s_lshr_b32 s{S_KQ}, s{S_W}, 1
        s_and_b32 s{S_RT}, s{S_W}, 1
        s_lshl_b32 s{S_T2}, s{S_RT64}, 1
        s_add_u32 s{S_T2}, s{S_T2}, s{S_RT}
        s_lshl_b32 s{S_T0}, s{S_T2}, 3
        s_add_u32 s{S_T0}, s{S_T0}, s{S_CT8}
        s_lshl_b32 s{S_T0}, s{S_T0}, 2
        s_add_u32 s{S_T0}, s{S_T0}, s{S_KQ}
        s_lshl_b32 s{S_T0}, s{S_T0}, 10
        s_add_u32 s{S_OST}, s{S_T0}, {WS_O}
        s_lshl_b32 s{S_T0}, s2, 7
        s_lshl_b32 s{S_T1}, s{S_W}, 2
        s_add_u32 s{S_T0}, s{S_T0}, s{S_T1}
        s_add_u32 s{S_FLG}, s{S_T0}, {WS_FL}
        """)
    def common_setup():
        srd(R_WD, P_WD, 1792 * 1024)
        srd(R_WO, P_WO, 512 * 1024)
        srd(R_OUT, P_OUT, 0x200000)
        a(f"""
        s_lshl_b32 s{S_W4K}, s{S_W}, 12
        s_lshl_b32 s{S_W2K}, s{S_W}, 11
        s_mov_b32 s{S_VM}, 0xffff
        s_mov_b32 s{S_VM+1}, 0xffff
        s_lshl_b32 s{S_T2}, s{S_RT64}, 1
        s_add_u32 s{S_T2}, s{S_T2}, s{S_RT}
        s_mul_i32 s{S_T0}, s{S_KQ}, {448*1024}
        s_lshl_b32 s{S_T1}, s{S_RT}, 15
        s_add_u32 s{S_T0}, s{S_T0}, s{S_T1}
        s_lshl_b32 s{S_T1}, s{S_CT8}, 7
        s_add_u32 s{S_WDO}, s{S_T0}, s{S_T1}
        s_lshl_b32 s{S_T0}, s{S_W}, 15
        s_add_u32 s{S_WOO}, s{S_T0}, s{S_T1}
        s_and_b32 s{S_T0}, s{S_CT8}, {1 if cfg.oswap else 0}
        s_lshl_b32 s{S_T16}, s{S_T0}, 18
        s_add_u32 s{S_WOO}, s{S_WOO}, s{S_T16}
        s_mul_i32 s{S_T0}, s{S_T2}, 112
        s_mul_i32 s{S_T3}, s{S_KQ}, 28
        s_add_u32 s{S_T0}, s{S_T0}, s{S_T3}
        s_lshl_b32 s{S_T0}, s{S_T0}, 10
        s_add_u32 s{S_HLD}, s{S_T0}, {WS_H}
        s_lshl_b32 s{S_T0}, s{S_T2}, 15
        s_lshl_b32 s{S_T3}, s{S_KQ}, 13
        s_add_u32 s{S_T3}, s{S_T0}, s{S_T3}
        s_lshr_b32 s{S_T0}, s{S_T16}, 4
        s_xor_b32 s{S_OLD}, s{S_T3}, s{S_T0}
        s_add_u32 s{S_OLD}, s{S_OLD}, {WS_O}
        s_add_u32 s{S_T0}, s{S_T3}, s{S_T1}
        v_lshrrev_b32 v3, 5, v{V_LANE}
        v_bfe_u32 v5, v{V_LANE}, 3, 1
        v_lshl_add_u32 v2, v3, 1, v5
        v_bfe_u32 v7, v{V_LANE}, 4, 1
        v_lshl_add_u32 v4, v7, 2, v2
        v_and_b32 v6, 7, v{V_LANE}
        v_lshlrev_b32 v8, 4, v6
        v_lshl_add_u32 v4, v4, 10, v8
        v_add_u32 v{V_FO}, s{S_T0}, v4
        v_lshlrev_b32 v2, 8, v2
        v_lshl_add_u32 v2, v7, 7, v2
        v_lshl_add_u32 v2, v5, 4, v2
        v_and_b32 v4, 3, v6
        v_lshl_add_u32 v2, v4, 5, v2
        v_lshrrev_b32 v4, 2, v6
        v_lshl_add_u32 v2, v4, 12, v2
        s_lshl_b32 s{S_T0}, s{S_RT}, 13
        s_lshl_b32 s{S_T1}, s{S_KQ}, 10
        s_add_u32 s{S_T0}, s{S_T0}, s{S_T1}
        v_add_u32 v{V_GA}, s{S_T0}, v2
        v_add_u32 v{V_KA}, {L_KV}, v{V_L16}
        v_and_b32 v2, 15, v{V_LANE}
        v_lshl_add_u32 v2, v3, 4, v2
        v_lshlrev_b32 v2, 4, v2
        v_add_u32 v{V_VA}, {L_KV + 1024}, v2
        v_lshrrev_b32 v5, 3, v{V_LANE}
        v_and_b32 v6, 7, v{V_LANE}
        v_bfe_u32 v7, v{V_LANE}, 4, 1
        v_lshlrev_b32 v8, 2, v7
        v_xor_b32 v6, v6, v8
        v_lshlrev_b32 v6, 4, v6
        v_lshl_add_u32 v{V_WDD}, v5, 10, v6
        v_and_b32 v2, 1, v{V_LANE}
        v_bfe_u32 v4, v{V_LANE}, 1, 1
        v_lshl_add_u32 v2, v2, 1, v4
        v_bfe_u32 v5, v{V_LANE}, 2, 2
        v_lshl_add_u32 v4, v3, 3, v5
        v_lshlrev_b32 v4, 7, v4
        v_and_b32 v6, 2, v5
        v_xor_b32 v6, v6, v7
        v_lshl_add_u32 v6, v6, 5, v4
        v_and_b32 v8, 3, v{V_LANE}
        v_lshl_add_u32 v6, v8, 3, v6
        v_lshl_add_u32 v4, v2, 3, v4
        s_lshl_b32 s{S_T0}, s{S_KQ}, 13
        s_add_u32 s{S_T0}, s{S_T0}, {L_WD}
        v_add_u32 v{V_DA}, s{S_T0}, v6
        v_xor_b32 v{V_DA+1}, 64, v{V_DA}
        """)
        a(f"""
        s_lshr_b32 s{S_T0}, s{S_RT64}, 1
        s_lshl_b32 s{S_T0}, s{S_T0}, 3
        s_lshl_b32 s{S_T1}, s{S_KQ}, 1
        s_add_u32 s{S_T0}, s{S_T0}, s{S_T1}
        s_lshl_b32 s{S_T0}, s{S_T0}, 7
        v_and_b32 v2, 3, v{V_LANE}
        v_lshlrev_b32 v6, 2, v2
        v_and_b32 v8, 1, v5
        v_lshl_add_u32 v6, v8, 14, v6
        v_lshrrev_b32 v8, 1, v5
        v_lshl_add_u32 v6, v8, 7, v6
        """ if cfg.xmap == 1 else f"""
        s_lshr_b32 s{S_T0}, s{S_RT64}, 3
        s_and_b32 s{S_T1}, s{S_KQ}, 2
        s_lshl_b32 s{S_T1}, s{S_T1}, 1
        s_add_u32 s{S_T0}, s{S_T0}, s{S_T1}
        s_bfe_u32 s{S_T2}, s{S_RT64}, 0x20001
        s_lshl_b32 s{S_T2}, s{S_T2}, 3
        s_add_u32 s{S_T0}, s{S_T0}, s{S_T2}
        s_and_b32 s{S_T1}, s{S_KQ}, 1
        s_lshl_b32 s{S_T1}, s{S_T1}, 7
        s_add_u32 s{S_T0}, s{S_T0}, s{S_T1}
        s_lshl_b32 s{S_T0}, s{S_T0}, 7
        s_lshl_b32 s{S_T1}, s{S_KQ}, 1
        v_and_b32 v2, 3, v{V_LANE}
        v_lshlrev_b32 v6, 2, v2
        v_lshl_add_u32 v6, v5, 12, v6
        """ if cfg.xmap == 2 else f"""
        s_lshr_b32 s{S_T0}, s{S_RT64}, 4
        s_lshl_b32 s{S_T1}, s{S_KQ}, 1
        s_add_u32 s{S_T0}, s{S_T0}, s{S_T1}
        s_bfe_u32 s{S_T2}, s{S_RT64}, 0x30001
        s_lshl_b32 s{S_T2}, s{S_T2}, 3
        s_add_u32 s{S_T0}, s{S_T0}, s{S_T2}
        s_lshl_b32 s{S_T0}, s{S_T0}, 7
        v_and_b32 v2, 3, v{V_LANE}
        v_lshlrev_b32 v6, 2, v2
        v_lshl_add_u32 v6, v5, 13, v6
        """)
        a(f"""
        v_add_u32 v6, s{S_T0}, v6
        s_lshr_b32 s{S_T0}, s{S_T16}, 16
        s_xor_b32 s{S_T1}, s{S_T1}, s{S_T0}
        s_and_b32 s{S_T0}, s2, 0xc7
        s_lshl_b32 s{S_T1}, s{S_T1}, 3
        s_add_u32 s{S_T0}, s{S_T0}, s{S_T1}
        s_lshl_b32 s{S_T0}, s{S_T0}, 7
        s_lshl_b32 s{S_T1}, s{S_RT}, 2
        s_add_u32 s{S_T0}, s{S_T0}, s{S_T1}
        v_and_b32 v8, 1, v5
        v_lshlrev_b32 v8, 10, v8
        v_lshl_add_u32 v8, v2, 3, v8
        v_cmp_gt_u32 vcc, 16, v{V_LANE}
        v_add_u32 v8, s{S_T0}, v8
        s_nop 0
        v_cndmask_b32 v{V_PO}, v8, v6, vcc
        """)

    def img_params(simg, sstride, soff):
        a(f"""
        s_lshr_b32 s{S_T0}, s{S_CB}, 2
        s_and_b32 s{S_T1}, s{S_CB}, 3
        s_mul_i32 s{soff}, s{S_T0}, 896
        s_lshl_b32 s{S_T2}, s{S_T1}, 8
        s_add_u32 s{soff}, s{soff}, s{S_T2}
        s_lshr_b32 s{S_T2}, s{simg}, 1
        s_lshl_b32 s{S_T1}, s{S_T1}, 1
        s_add_u32 s{S_T1}, s{S_T1}, s{S_T2}
        s_lshl_b32 s{S_T2}, s{S_T2}, 7
        s_add_u32 s{soff}, s{soff}, s{S_T2}
        s_lshl_b32 s{S_T0}, s{S_T0}, 1
        s_and_b32 s{S_T2}, s{simg}, 1
        s_add_u32 s{S_T0}, s{S_T0}, s{S_T2}
        s_lshl_b32 s{S_T0}, s{S_T0}, 7
        s_movk_i32 s{sstride}, 3584
        s_cmp_eq_u32 s{S_T1}, 7
        s_cselect_b32 s{soff}, s{S_T0}, s{soff}
        s_cselect_b32 s{sstride}, 1024, s{sstride}
        """)
    def img_srd(r, sstride):
        a(f"""
        s_cmp_eq_u32 s{S_T2}, 0
        s_cselect_b32 s{r}, s{P_WG}, s{P_WU}
        s_cselect_b32 s{r+1}, s{P_WG+1}, s{P_WU+1}
        s_cmp_eq_u32 s{S_T1}, 7
        s_cselect_b32 s{r}, s{P_WQ}, s{r}
        s_cselect_b32 s{r+1}, s{P_WQ+1}, s{r+1}
        s_and_b32 s{r+1}, s{r+1}, 0xffff
        s_lshl_b32 s{r+2}, s{sstride}, 9
        s_mov_b32 s{r+3}, 0x20000
        """)

    ACC, XF, WF, V_XA, V_WR = 16, 144, 176, 248, 250
    RWP, RWQ, RA = 216, 232, 2
    L_RA = L_W + 8192
    def acc(ti, rt): return ACC + 64*ti + 16*rt
    KG = 2.0 * math.sqrt(2.0 / math.pi) * math.log2(math.e)
    a('; ==== waves 0..3, start: K or V tile of 16 rows (LayerNorm folded in), row statistics, share of the W column sums ====')
    assert cfg.krot == 8 and cfg.g_init in (-1, 0, 2)
    CL, CSUM = 16, 40
    a(f"""
    v_and_b32 v5, 15, v{V_LANE}
    v_lshrrev_b32 v6, 4, v{V_LANE}
    v_lshrrev_b32 v7, 3, v{V_LANE}
    v_and_b32 v4, 7, v{V_LANE}
    s_lshl_b32 s{S_T16}, s{S_RB}, 3
    s_lshr_b32 s{S_T2}, s{S_CB}, 1
    s_add_u32 s{S_T16}, s{S_T16}, s{S_T2}
    s_cmp_lg_u32 s{S_HW}, 0
    s_cbranch_scc1 L_csld
    v_xor_b32 v2, v6, v4
    v_lshlrev_b32 v2, 4, v2
    v_lshl_add_u32 v132, v7, 10, v2
    v_xor_b32 v133, 64, v132
    v_add_u32 v133, {8192-1024}, v133
    s_lshl_b32 s{S_XOFF}, s{S_T16}, 14
    s_mov_b32 s{R_WKV+2}, 0x4000
    s_mov_b32 s{R_WKV+3}, 0x20000
    s_mov_b32 m0, {L_PX}
    s_and_b32 s{S_T3}, s{S_CB}, 1
    s_waitcnt lgkmcnt(0)
    """)
    stamp()
    a(f"s_mov_b32 s{R_X}, s{P_X}\ns_and_b32 s{R_X+1}, s{P_X+1}, 0xffff")
    for gq in range(4):
        for kb in (2*gq, 2*gq + 1):
            if kb: a(f"s_mov_b32 m0, {L_PX + 2048*kb}\ns_add_u32 s{S_XOFF}, s{S_XOFF}, 128")
            a(f"buffer_load_dwordx4 v132, {sr(R_X,4)}, s{S_XOFF} offen lds\nbuffer_load_dwordx4 v133, {sr(R_X,4)}, s{S_XOFF} offen offset:1024 lds")
        if gq == 0:
            a(f"s_cmp_eq_u32 s{S_T3}, 0\ns_cselect_b32 s{R_WKV}, s{P_WK}, s{P_WV}\ns_cselect_b32 s{R_WKV+1}, s{P_WK+1}, s{P_WV+1}\ns_and_b32 s{R_WKV+1}, s{R_WKV+1}, 0xffff")
        a(f"s_mov_b32 m0, {L_R + 4096*gq}\ns_movk_i32 s{S_T0}, {4096*gq}")
        for e in range(4): a(f"buffer_load_dwordx4 v{V_L16}, {sr(R_WKV,4)}, s{S_T0} offen offset:{1024*e} lds")
        if cfg.p0 and gq + 1 == cfg.p0[0]:
            stamp(name=1); a("s_barrier"); stamp(name=2)
    n_ool = len(a.lines)
    if cfg.cs_in: a("s_branch L_ld_done")
    a.label("L_csld")
    a(f"s_and_b32 s{S_CNT}, s{S_RB}, 3")
    img_params(S_CNT, S_WSTEP, S_WOFF)
    a(f"""
    s_and_b32 s{S_T0}, s{S_RB}, 4
    s_and_b32 s{S_T3}, s{S_RB}, 8
    s_lshl_b32 s{S_T3}, s{S_T3}, 2
    s_add_u32 s{S_T0}, s{S_T0}, s{S_T3}
    s_lshl_b32 s{S_T0}, s{S_T0}, 3
    s_mul_i32 s{S_T0}, s{S_T0}, s{S_WSTEP}
    s_add_u32 s{S_WOFF}, s{S_T0}, s{S_WOFF}
    v_mul_u32_u24 v8, s{S_WSTEP}, v7
    v_lshl_add_u32 v219, v4, 4, v8
    s_waitcnt lgkmcnt(0)
    """)
    nst[0] = 0
    stamp()
    a(f"s_mov_b32 s{R_X}, s{P_X}\ns_and_b32 s{R_X+1}, s{P_X+1}, 0xffff")
    img_srd(R_CW, S_WSTEP)
    a(f"s_lshl_b32 s{S_WSTEP}, s{S_WSTEP}, 3")
    def csload(i):
        t = (f"s_add_u32 s{S_T0}, s{S_HW}, {3*i - 1}\ns_and_b32 s{S_T1}, s{S_T0}, 28\ns_add_u32 s{S_T1}, s{S_T1}, s{S_T0}\ns_mul_i32 s{S_T1}, s{S_T1}, s{S_WSTEP}\ns_add_u32 s{S_T1}, s{S_T1}, s{S_WOFF}\n")
        if i == 5: t += f"s_cmp_gt_u32 s{S_T0}, 15\ns_cselect_b32 s{S_T1}, s{R_CW+2}, s{S_T1}\n"
        return t + f"buffer_load_dwordx4 {vr(CL+4*i,4)}, v219, {sr(R_CW,4)}, s{S_T1} offen"
    for i in range(6):
        a(csload(i))
        if cfg.p0 and i + 1 == cfg.p0[1]:
            stamp(name=1); a("s_barrier"); stamp(name=2)
    if not cfg.cs_in:
        a("s_branch L_ld_done")
        ool = a.lines[n_ool:]; del a.lines[n_ool:]
    a.label("L_ld_done")
    a(f"""
    s_mov_b32 s{S_ONES}, 0x3f803f80
    v_lshlrev_b32 v2, 3, v5
    v_lshl_add_u32 v2, v6, 8, v2
    v_add_u32 v130, {L_R}, v2
    v_lshrrev_b32 v3, 1, v5
    v_xor_b32 v3, v3, v6
    v_lshlrev_b32 v3, 4, v3
    v_lshl_add_u32 v3, v5, 7, v3
    v_mov_b32 v{V_XA}, v3
    v_xor_b32 v{V_XA+1}, 64, v3
    v_lshrrev_b32 v3, 5, v{V_LANE}
    v_and_b32 v7, 1, v6
    v_bfe_u32 v8, v{V_LANE}, 2, 2
    v_lshl_add_u32 v4, v6, 3, v8
    v_lshlrev_b32 v4, 7, v4
    v_and_b32 v2, 3, v{V_LANE}
    v_lshl_add_u32 v4, v2, 3, v4
    v_lshrrev_b32 v8, 1, v8
    v_lshl_add_u32 v8, v7, 1, v8
    v_xor_b32 v8, s{S_HW}, v8
    v_lshl_add_u32 v8, v8, 5, v4
    v_add_u32 v{V_WR}, {L_W}, v8
    v_add_u32 v{V_WR+1}, {L_W + 49152}, v8
    s_lshr_b32 s{S_EX}, s{S_T16}, 1
    s_lshl_b32 s{S_EX}, s{S_EX}, 11
    s_and_b32 s{S_T3}, s{S_T16}, 1
    s_and_b32 s{S_T2}, s{S_CB}, 1
    s_cmp_eq_u32 s{S_T2}, 0
    s_cbranch_scc0 L_pubV
    s_lshl_b32 s{S_T3}, s{S_T3}, 8
    s_add_u32 s{S_EX}, s{S_EX}, s{S_T3}
    v_lshl_add_u32 v2, v3, 5, v5
    s_lshl_b32 s{S_EX+1}, s{S_T16}, 10
    s_add_u32 s{S_EX+1}, s{S_EX+1}, {WS_ST}
    s_branch L_pub
    """)
    a.label("L_pubV")
    a(f"""
    s_lshl_b32 s{S_T3}, s{S_T3}, 9
    s_add_u32 s{S_EX}, s{S_EX}, s{S_T3}
    s_add_u32 s{S_EX}, s{S_EX}, 1024
    v_and_b32 v2, 3, v5
    v_bfe_u32 v4, v5, 2, 1
    v_lshl_add_u32 v2, v4, 3, v2
    v_bfe_u32 v4, v5, 3, 1
    v_lshl_add_u32 v2, v4, 2, v2
    v_lshl_add_u32 v2, v3, 4, v2
    s_mov_b32 s{S_EX+1}, {WS_SIZE}
    """)
    a.label("L_pub")
    a("v_lshlrev_b32 v2, 4, v2\nv_lshl_add_u32 v220, v7, 3, v2")
    def capture(fn):
        n = len(a.lines); fn(); L = a.lines[n:]; del a.lines[n:]; return L
    def part1():
        srd(R_WS, P_WS, WS_SIZE)
        a(f"""
        v_and_b32 v6, 7, v{V_LANE}
        v_lshrrev_b32 v4, 4, v{V_LANE}
        v_lshl_add_u32 v6, v6, 2, v4
        v_bfe_u32 v4, v{V_LANE}, 3, 1
        v_lshl_add_u32 v6, v6, 1, v4
        v_lshlrev_b32 v222, 2, v6
        s_lshl_b32 s{S_T0}, s{S_CB}, 14
        s_lshl_b32 s{S_T1}, s{S_RB}, 10
        s_add_u32 s{S_T0}, s{S_T0}, s{S_T1}
        s_lshl_b32 s{S_T1}, s{S_HW}, 8
        s_add_u32 s{S_T0}, s{S_T0}, s{S_T1}
        s_add_u32 s{S_CNT}, s{S_T0}, {WS_CS}
        """)
    def part2():
        setup_ids()
        for i in range(4): a(f"v_mov_b32 v{12+i}, -1")
        common_setup()
        a(f"""
        v_and_b32 v2, 0xff, v{V_L16}
        v_add_u32 v11, {L_R + 256}, v2
        v_xor_b32 v6, v3, v7
        v_lshl_add_u32 v2, v6, 9, v2
        v_add_u32 v10, {L_R}, v2
        s_lshl_b32 s{S_T0}, s{S_HW}, 11
        v_add_u32 v254, s{S_T0}, v{V_L16}
        s_mul_i32 s{S_T0}, s{S_HW}, 2208
        v_lshl_add_u32 v9, v3, 4, v{V_L16}
        v_add_u32 v9, s{S_T0}, v9
        s_lshr_b32 s{S_T0}, s{S_CB}, 2
        s_and_b32 s{S_T1}, s{S_CB}, 3
        s_mul_i32 s{S_T2}, s{S_RB}, 448
        s_mul_i32 s{S_T3}, s{S_T0}, 28
        s_add_u32 s{S_T2}, s{S_T2}, s{S_T3}
        s_lshl_b32 s{S_T3}, s{S_T1}, 3
        s_add_u32 s{S_T2}, s{S_T2}, s{S_T3}
        s_add_u32 s{S_T2}, s{S_T2}, s{S_HW}
        s_lshl_b32 s{S_T2}, s{S_T2}, 10
        s_add_u32 s{S_HST}, s{S_T2}, {WS_H}
        s_add_u32 s{S_HSB}, s{S_HST}, 4096
        s_lshl_b32 s{S_T2}, s{S_RB}, 7
        s_lshl_b32 s{S_T3}, s{S_T0}, 3
        s_add_u32 s{S_T2}, s{S_T2}, s{S_T3}
        s_add_u32 s{S_T2}, s{S_T2}, s{S_HW}
        s_lshl_b32 s{S_T2}, s{S_T2}, 10
        s_add_u32 s{S_T2}, s{S_T2}, {WS_Q}
        """)
    defer1 = capture(part1)
    defer2 = capture(part2) + [f"s_cmp_eq_u32 s{S_T1}, 3\ns_cselect_b32 s{S_HSB}, s{S_T2}, s{S_HSB}"]
    for l in defer1: a(l)
    defer1.clear()
    a(f"s_cmp_lg_u32 s{S_HW}, 0\ns_cbranch_scc1 L_cs")
    PF, PACC, PCS, PRS, PG, PSQ, PONE, PID, PSQP, PF1 = 16, 80, 84, 88, 92, 96, 100, 104, 106, 107
    for i in range(4): a(f"v_mov_b32 v{PONE+i}, s{S_ONES}")
    a(f"v_mov_b32 v{PF1}, 1.0\nv_mov_b32 v{PSQP}, 0\nv_mov_b32 v{PID}, 0\nv_mov_b32 v{PID+1}, 0\nv_mov_b32 v221, 0")
    a(f"s_mov_b32 s{S_T0}, 0x00100001\ns_mov_b32 s{S_T1}, 0x10000100")
    for r in range(4): a(f"s_lshl_b64 exec, {sr(S_T0,2)}, {r}\nv_mov_b32 v{PID + (r >> 1)}, {hex(0x4780 << (16*(r & 1)))}")
    a("s_mov_b64 exec, -1")
    if not cfg.p0: a("s_barrier")
    stamp(name=3)
    def p_reads(gq):
        f = PF + 32*(gq & 1); L = []
        for s in range(4):
            L.append(f"ds_read_b128 {vr(f+8*s,4)}, v{V_XA + (s & 1)} offset:{L_PX + 4096*gq + 2048*(s >> 1)}")
            L += [f"ds_read_b64_tr_b16 {vr(f+8*s+4+2*t,2)}, v130 offset:{4096*gq + 1024*s + 128*t}" for t in range(2)]
        return L
    a("s_waitcnt vmcnt(24)")
    for l in p_reads(0): a(l)
    for gq in range(4):
        a("s_waitcnt lgkmcnt(0)")
        rd = p_reads(gq + 1) if gq < 3 else []
        k = 0
        for s in range(4):
            x, w = PF + 32*(gq & 1) + 8*s, PF + 32*(gq & 1) + 8*s + 4
            for d, A_, B_ in ((PG, x, x), (PRS, PONE, x), (PCS, w, PONE), (PACC, w, x)):
                a(mfma16(d, A_, B_, None if gq + s == 0 else d))
                if k == 3 and gq < 3:
                    a(f"s_waitcnt vmcnt({16 - 8*gq})")
                    if gq == 2: stamp(); stamp(name=4)
                if k >= 3 and rd: a(rd.pop(0))
                k += 1
    a.nop(4)
    for r in range(4): a(f"s_lshl_b64 exec, {sr(S_T0,2)}, {r}\nv_mov_b32 v{PSQP}, v{PG+r}")
    a(f"""
    s_mov_b64 exec, -1
    v_mul_f32 v{PRS}, {hex(f2u(-1.0/512))}, v{PRS}
    v_mfma_f32_16x16x4_f32 {vr(PSQ,4)}, v{PF1}, v{PSQP}, 0
    """)
    for i in range(4): a(f"v_fmac_f32 v{PACC+i}, v{PRS}, v{PCS+i}")
    a(f"""
    v_cvt_pk_bf16_f32 v12, v{PRS}, v{PRS}
    v_and_b32 v2, 0xffff0000, v12
    v_sub_f32 v2, v{PRS}, v2
    v_cvt_pk_bf16_f32 v12, v{PRS}, v2
    s_and_b32 s{S_T2}, s{S_CB}, 1
    s_cmp_eq_u32 s{S_T2}, 0
    v_mul_f32 v14, {hex(f2u(1.0/512))}, v{PSQ}
    v_fma_f32 v14, -v{PRS}, v{PRS}, v14
    v_max_f32 v14, 0, v14
    v_add_f32 v14, {hex(f2u(1e-5))}, v14
    v_rsq_f32 v3, v14
    s_nop 0
    """)
    for i in range(4): a(f"v_mul_f32 v{PACC+i}, v{PACC+i}, v3")
    a(f"""
    v_cvt_pk_bf16_f32 v216, v{PACC}, v{PACC+1}
    v_cvt_pk_bf16_f32 v217, v{PACC+2}, v{PACC+3}
    s_cbranch_scc0 L_preV
    s_mov_b32 exec_lo, 0
    v_mov_b32 v12, 0
    s_and_b32 s{S_T0}, s{S_T16}, 1
    s_sub_u32 exec_lo, s{S_T0}, 1
    s_mov_b32 exec_hi, exec_lo
    v_swap_b32 v12, v14
    s_mov_b32 exec_lo, 0xffff0000
    s_mov_b32 exec_hi, 0
    v_mul_f32 v12, {hex(f2u(-KG))}, v3
    v_mul_f32 v2, v3, v3
    v_mul_f32 v14, {hex(f2u(0.044715))}, v12
    v_mul_f32 v14, v14, v2
    s_mov_b64 exec, -1
    v_mov_b32 v13, v12
    v_mov_b32 v15, v14
    s_branch L_nofin
    """)
    a.label("L_preV")
    a(f"s_nop 0\nv_mfma_f32_16x16x16_bf16 {vr(PACC,4)}, v[216:217], {vr(PID,2)}, 0")
    a.nop(8)
    a(f"v_cvt_pk_bf16_f32 v216, v{PACC}, v{PACC+1}\nv_cvt_pk_bf16_f32 v217, v{PACC+2}, v{PACC+3}\ns_branch L_nofin")
    n_ool = len(a.lines)
    a.label("L_cs")
    if not cfg.p0: a("s_barrier")
    stamp(name=3)
    touch("g", 1, 3, 4)
    for e in range(6):
        a(f"s_waitcnt vmcnt({5 - e})")
        for i in range(4):
            if e == 0: a(f"v_lshlrev_b32 v{CSUM+2*i}, 16, v{CL+i}\nv_and_b32 v{CSUM+2*i+1}, 0xffff0000, v{CL+i}")
            else: a(f"v_lshlrev_b32 v2, 16, v{CL+4*e+i}\nv_and_b32 v3, 0xffff0000, v{CL+4*e+i}\nv_add_f32 v{CSUM+2*i}, v{CSUM+2*i}, v2\nv_add_f32 v{CSUM+2*i+1}, v{CSUM+2*i+1}, v3")
    stamp(name=4)
    for j in range(4): a(f"v_permlane32_swap_b32 v{CSUM+j}, v{CSUM+4+j}")
    for j in (0, 2, 1, 3): a(f"v_add_f32 v{CSUM+j}, v{CSUM+j}, v{CSUM+4+j}")
    a(f"v_permlane16_swap_b32 v{CSUM}, v{CSUM+2}\ns_nop 0\nv_permlane16_swap_b32 v{CSUM+1}, v{CSUM+3}")
    a(f"v_add_f32 v{CSUM}, v{CSUM}, v{CSUM+2}\nv_add_f32 v{CSUM+1}, v{CSUM+1}, v{CSUM+3}\ns_nop 0")
    a(f"v_add_f32_dpp v221, v{CSUM}, v{CSUM} row_ror:8 row_mask:0xf bank_mask:0xf\nv_add_f32_dpp v221, v{CSUM+1}, v{CSUM+1} row_ror:8 row_mask:0xf bank_mask:0xc")
    if cfg.cs_in:
        a("s_branch L_nofin")
        ool = a.lines[n_ool:]; del a.lines[n_ool:]
    a.label("L_nofin")
    stamp(name=5)
    init = [f"buffer_store_dword v221, v222, {sr(R_WS,4)}, s{S_CNT} offen sc1",
            f"s_cmp_lg_u32 s{S_HW}, 0\ns_cbranch_scc1 L_nopub\n"
            f"buffer_store_dwordx2 v[216:217], v220, {sr(R_WS,4)}, s{S_EX} offen sc1\n"
            f"buffer_store_dwordx4 v[12:15], v{V_L16}, {sr(R_WS,4)}, s{S_EX+1} offen sc1\nL_nopub:"]
    if cfg.g_init == -1:
        for l in init: a(l)
    brk("g")
    stamp(name=6)
    a("s_barrier")
    nst[0] = 2
    stamp(name="b0"); pad("b0"); c12(0)
    HS = [divmod(g, 2) for g in range(28)] + [(14, 0), (15, 0), (14, 1), (15, 1)]
    def wf(K, mt): return WF + 16*((K + 1) & 1) + 4*mt
    def x_reads(g):
        K, nh = HS[g]
        return [f"ds_read_b128 {vr(XF+16*(g&1)+4*i,4)}, v{V_XA+(K&1)} offset:{XS[K>>1]*16384 + (4*nh+i)*2048}" for i in range(4)]
    def w_reads(K):
        slot = ((K >> 1) + 2) % 3
        return [f"ds_read_b64_tr_b16 {vr(wf(K,mt)+2*t,2)}, v{V_WR+(mt>>1)} offset:{(mt&1)*24576 + slot*8192 + (K&1)*4096 + t*512}" for mt in range(4) for t in range(2)]
    def mm(g, mt, i):
        K, nh = HS[g]; nt = 4*nh + i
        d = acc(mt >> 1, nt >> 1) + 8*(mt & 1) + 4*(nt & 1)
        return mfma16(d, wf(K, mt), XF + 16*(g&1) + 4*i, None if K == 0 else d)
    def rw_reads(rt, dst): return [f"ds_read_b128 {vr(dst+4*i,4)}, v{10 + (i >> 1)} offset:{2048*rt + 1024*(i & 1)}" for i in range(4)]
    op_reads = [f"ds_read_b128 {vr(RA+4*i,4)}, v9 offset:{L_RA + 1056*i}" for i in range(2)] + rw_reads(0, RWP) + rw_reads(1, RWQ)
    def rank1(ti, rt, rw): return mfma32(acc(ti, rt), RA + 4*ti, rw + 2, acc(ti, rt))
    def split2(src, dst, dup):
        if dup:
            return [f"v_cvt_pk_bf16_f32 v{dst}, v{src}, v{src}", f"v_and_b32 v2, 0xffff0000, v{dst}", f"v_sub_f32 v2, v{src}, v2", f"v_cvt_pk_bf16_f32 v{dst+1}, v2, v2"]
        return [f"v_cvt_pk_bf16_f32 v{dst}, v{src}, v{src}", f"v_and_b32 v2, 0xffff0000, v{dst}", f"v_sub_f32 v2, v{src}, v2", f"v_cvt_pk_bf16_f32 v{dst}, v{src}, v2", f"v_mov_b32 v{dst+1}, v{dst}"]
    w = w_reads(0)
    for l in w[:2] + x_reads(0) + w[2:]: a(l)
    def half_step(g):
        K, nh = HS[g]
        neww = g == 0 or HS[g-1][0] < K and g != 31
        gaps = [[] for _ in range(16)]
        o = 0
        if g & 3 == 3 and g < 28 or g == cfg.g_h:
            gaps[0] = ["s_barrier"]; o = 1
        rd = x_reads(g + 1) if g < 31 else rw_reads(2, WF + 16)
        if g < 29 and HS[g+1][0] > K:
            w = w_reads(K + 1); rd = w[:2] + rd + w[2:]
        if g == cfg.g_h: rd += op_reads
        if cfg.nord: rd = []
        for i, l in enumerate(rd): gaps[o + i].append(l)
        if neww:
            top = "lgkmcnt(4)"
            gaps[7].append(f"s_waitcnt lgkmcnt({min(len(rd), 8 - o)})")
        else: top = "lgkmcnt(10)" if g == cfg.g_h + 1 else "lgkmcnt(0)"
        brk("g" if g < 28 else "e")
        a("s_waitcnt " + ("vmcnt(0) " if g == 4*cfg.c_arr + 3 else "") + top)
        if g == cfg.g_init: gaps[9].append(init[0]); gaps[12].append(init[1])
        dl = defer1 if g <= cfg.g_init else defer2
        for k in range(16):
            if not gaps[k]:
                gaps[k] = dl[:2]; del dl[:2]
        assert not (g >= 2 and defer1) and not (g >= 27 and defer2)
        for k in range(16):
            a(mm(g, k >> 2, k & 3))
            for l in gaps[k]: a(l)
            if g == 31 and k == 3: a(("s_waitcnt lgkmcnt(4)\n" if cfg.g_h == 30 else "") + rank1(0, 0, RWP))
            if k == 0 and (g == 27 or (cfg.stamps == 4 and g & 3 == 3)): stamp()
            if k == 0 and g in (3, 27): c12(1 if g == 3 else 2)
            if k == 15 and g >= cfg.g_tr and g & 1 == 0 and cfg.stamps == 10 and ncs[0] < 6: a(f"s_memtime {sr([32, 34, 92, 94, 96, 98][ncs[0]], 2)}"); ncs[0] += 1
    for g in range(30): half_step(g)
    def swaps(o): return [f"v_permlane16_swap_b32 v{o}, v{o+2}", f"v_permlane16_swap_b32 v{o+1}, v{o+3}"]
    def gelu(ti, rt, rw, mf=(), pre=()):
        A = acc(ti, rt)
        def b(i): return rw + 8 + 4*(i >> 2)
        def vp(i): return rw + 6*(i >> 2)
        t1, t2, o = 144, 152, HO + 16*ti + 4*rt
        L = [".p2align 3"]
        for i in range(0, 8, 2): L.append(f"v_pk_mul_f32 {vr(t1+i,2)}, {vr(A+i,2)}, {vr(A+i,2)}")
        L += pre
        for i in range(0, 8, 2): L.append(f"v_pk_fma_f32 {vr(t1+i,2)}, {vr(t1+i,2)}, {vr(b(i)+2,2)}, {vr(b(i),2)}")
        for i in range(0, 8, 2): L.append(f"v_pk_mul_f32 {vr(t1+i,2)}, {vr(t1+i,2)}, {vr(A+i,2)}")
        L += mf
        for i in range(8): L.append(f"v_exp_f32 v{t1+i}, v{t1+i}")
        for i in range(0, 8, 2): L.append(f"v_pk_mul_f32 {vr(t2+i,2)}, {vr(A+i,2)}, {vr(A+8+i,2)}")
        for i in range(0, 8, 2): L.append(f"v_pk_fma_f32 {vr(t1+i,2)}, {vr(t1+i,2)}, {vr(vp(i),2)}, {vr(vp(i),2)}")
        for i in range(8): L.append(f"v_rcp_f32 v{t1+i}, v{t1+i}")
        for i in range(0, 8, 2): L.append(f"v_pk_mul_f32 {vr(t2+i,2)}, {vr(t2+i,2)}, {vr(t1+i,2)}")
        for i in range(4): L.append(f"v_cvt_pk_bf16_f32 v{o+i}, v{t2+2*i}, v{t2+2*i+1}")
        return L
    def qtile(rt, rw):
        A = acc(1, rt); qs = hex(f2u(-0.25*math.log2(math.e)/KG))
        L = [f"v_mul_f32 v{12+i}, {qs}, v{rw + 8 + 4*(i >> 1)}" for i in range(4)]
        L += [f"s_add_u32 s{S_T0}, s{S_HSB}, {32768*rt}", f"s_add_u32 s{S_T1}, s{S_T0}, 4096"]
        for hd in range(2):
            h = A + 8*hd
            for i in range(0, 8, 2): L.append(f"v_pk_mul_f32 {vr(h+i,2)}, {vr(h+i,2)}, {vr(12 + 2*(i >> 2),2)}")
            for i in range(4): L.append(f"v_cvt_pk_bf16_f32 v{h+i}, v{h+2*i}, v{h+2*i+1}")
            for i in (0, 2, 1, 3): L.append(f"v_min_u32 v{h+i}, -2, v{h+i}")
            L += [swaps(h)[0], "s_nop 0", swaps(h)[1]]
            L.append(f"buffer_store_dwordx4 {vr(h,4)}, v{V_L16}, {sr(R_WS,4)}, s{S_T0 + hd} offen sc1")
        return L
    L_HQ = L_KV + 49152
    def att_regs():
        a(f"""
        v_and_b32 v5, 27, v{V_LANE}
        v_cmp_eq_u32 vcc, 16, v5
        v_mov_b32 v6, 0x47804780
        v_mov_b32 v{V_IDX}, 0xdddddddd
        v_mov_b32 v11, 1
        v_mov_b32 v49, 0.5
        v_cndmask_b32 v{VF}, 0, v6, vcc
        v_mov_b32 v{VF+1}, v{VF}
        """)
        for i in range(2, 16, 2): a(f"v_mov_b64 {vr(VF+i,2)}, {vr(VF,2)}")
        for i in range(0, 16, 2): a(f"v_mov_b64 {vr(OO+i,2)}, 0")
        a(f"s_lshl_b32 s{S_T0}, s{S_KQ}, 13\ns_add_u32 s{S_T0}, s{S_T0}, {L_WO - L_WD}\nv_add_u32 v{V_OA}, s{S_T0}, v{V_DA}\nv_xor_b32 v{V_OA+1}, 64, v{V_OA}")
    def kv_first():
        a(f"ds_read_b128 {vr(KF,4)}, v{V_KA} offset:{kv_off(0)}\nds_read_b128 {vr(KF+4,4)}, v{V_KA} offset:{kv_off(1)}")
        a(f"s_mov_b64 exec, {sr(S_VM,2)}\nds_read_b128 {vr(VF,4)}, v{V_VA} offset:{kv_off(0)}\ns_mov_b64 exec, -1")
    a(f"s_and_b32 s{S_T1}, s{S_CB}, 3\ns_cmp_eq_u32 s{S_T1}, 3\ns_cbranch_scc1 L_qt")
    half_step(30); half_step(31)
    n0 = nst[0]
    stamp(name="g1"); pad("g1"); c12(3)
    RWS = [RWP, RWQ, WF + 16, RWP]
    order = [(ti, rt) for rt in range(4) for ti in range(2)]
    for i, (ti, rt) in enumerate(order):
        if i == 2:
            for l in rw_reads(3, RWS[3]): a(l)
        brk("e")
        if i in (3, 5): a("s_waitcnt lgkmcnt(0)")
        if i == cfg.i_q or (cfg.e7 and i == 1): a("s_barrier")
        nx = order[i+1] if i < 7 else None
        pv = order[i-1] if i else None
        for l in gelu(ti, rt, RWS[rt], [rank1(*nx, RWS[nx[1]])] if nx else [], swaps(HO + 16*pv[0] + 4*pv[1]) if pv else []): a(l)
    a("s_nop 1")
    for l in swaps(HO + 16 + 12): a(l)
    a("s_branch L_joinA")
    far("L_qt")
    RWS = [RWP, RWQ, acc(1, 0), acc(1, 1)]
    if cfg.g_h == 30:
        a("s_barrier")
        for l in op_reads: a(l)
    for l in x_reads(31): a(l)
    a("s_waitcnt lgkmcnt(4)\ns_nop 0")
    a(rank1(1, 0, RWP)); a(rank1(1, 1, RWQ))
    a.nop(5)
    for rt in range(2):
        for l in qtile(rt, RWS[rt]): a(l)
        brk("e")
    a("s_waitcnt lgkmcnt(0)")
    rd = rw_reads(2, RWS[2]) + rw_reads(3, RWS[3])
    for g in (30, 31):
        for k in range(8, 16):
            a(mm(g, k >> 2, k & 3))
            if rd: a(rd.pop(0))
    a("s_waitcnt lgkmcnt(0)\ns_nop 3")
    a(rank1(1, 2, RWS[2])); a(rank1(1, 3, RWS[3]))
    a.nop(5)
    for rt in (2, 3):
        for l in qtile(rt, RWS[rt]): a(l)
        brk("e")
    a(rank1(0, 0, RWP))
    for g in (30, 31):
        for k in range(8): a(mm(g, k >> 2, k & 3))
    nst[0] = n0
    stamp(name="g1")
    a(f"s_mov_b32 s{S_HSB}, {WS_SIZE}")
    for i in range(4): a(f"v_mov_b32 v{12+i}, -1")
    for rt in range(4):
        brk("e")
        if cfg.e7 and rt == 0: a("s_barrier")
        if rt == cfg.i_qb: a("s_barrier")
        for l in gelu(0, rt, RWS[rt], [rank1(0, rt + 1, RWS[rt + 1])] if rt < 3 else [], swaps(HO + 4*(rt - 1)) if rt else []): a(l)
    a("s_nop 1")
    for l in swaps(HO + 12): a(l)
    far("L_joinA", True)
    nst[0] = 12 if cfg.stamps == 4 else 5
    stamp()
    c12(4)
    if not cfg.gpos:
        att_regs()
        kv_first()
    a("s_barrier")
    stamp(name="att0"); pad("att0")
    a(f"ds_read_b128 {vr(QF,4)}, v254 offset:{L_HQ}")
    for i in range(4): a(f"ds_read_b128 {vr(CC+4*i,4)}, v254 offset:{L_HQ + 1024}")
    if cfg.gpos:
        att_regs()
        kv_first()
    a("s_waitcnt lgkmcnt(0)")
    a(mfma32(S0, KF, QF, CC))
    c12(5)
    a("s_nop 3\ns_branch L_attA")

    a.lines += ool
    a.label("L_helper")
    V_XD, V_WD = 192, 194
    PX, PW = 8, 24
    PACC, PCS, PRS, PSQ = 40, 44, 48, 52
    PONE, PSQP, PF1 = 56, 60, 61
    RD = 64
    a(f"""
    s_lshl_b32 s{S_XOFF}, s{S_RB}, 17
    s_lshl_b32 s{S_T0}, s{S_HW}, 15
    s_add_u32 s{S_XOFF}, s{S_XOFF}, s{S_T0}
    v_and_b32 v5, 15, v{V_LANE}
    v_lshrrev_b32 v6, 4, v{V_LANE}
    v_lshrrev_b32 v7, 3, v{V_LANE}
    v_and_b32 v63, 7, v{V_LANE}
    v_xor_b32 v62, v6, v63
    v_lshlrev_b32 v62, 4, v62
    v_lshl_add_u32 v{V_XD}, v7, 10, v62
    v_xor_b32 v{V_XD+1}, 64, v{V_XD}
    v_add_u32 v{V_XD+1}, {8192-1024}, v{V_XD+1}
    """)
    img_params(S_HW, S_WSTEP, S_WOFF)
    a(f"""
    v_and_b32 v62, 1, v6
    v_lshlrev_b32 v62, 1, v62
    v_xor_b32 v62, v62, v63
    v_lshlrev_b32 v62, 4, v62
    v_mul_u32_u24 v{V_WD}, s{S_WSTEP}, v7
    v_add_u32 v{V_WD}, v{V_WD}, v62
    v_xor_b32 v{V_WD+1}, 64, v{V_WD}
    s_waitcnt lgkmcnt(0)
    """)
    nst[0] = 0
    stamp()
    a(f"s_mov_b32 s{R_X}, s{P_X}\ns_and_b32 s{R_X+1}, s{P_X+1}, 0xffff")
    Q = []
    def issue(tag, text): a(text); Q.append(tag)
    def vwait(tag, more=""):
        n = len(Q) - 1 - max(i for i, t in enumerate(Q) if t == tag)
        a(f"s_waitcnt vmcnt({n})" + more)
    def xitems(c):
        slot = XS[c]
        return [(f"C{c}", f"s_add_u32 m0, s{S_H4K}, {L_X + slot*16384}\ns_add_u32 s{S_CNT}, s{S_XOFF}, {c*128 + (16384 - 2048)*(e >> 1)}\n"
                 f"buffer_load_dwordx4 v{V_XD + (e & 1)}, {sr(R_X,4)}, s{S_CNT} offen offset:{1024*e} {cfg.cf[1]} lds") for e in range(4)]
    def witems(c):
        slot = (c + 2) % 3
        return [(f"C{c}", f"s_add_u32 m0, s{S_M0W}, {slot*8192 + e*1024}\n" + (f"s_add_u32 s{S_WOFF}, s{S_WOFF}, s{S_WSTEP}" if c + e else "s_nop 0") +
                 f"\nbuffer_load_dwordx4 v{V_WD + (e & 1)}, {sr(R_W,4)}, s{S_WOFF} offen {cfg.cf[0]} lds") for e in range(8)]
    stream = []
    for c in range(1, 8): stream += [(t, x if c < 3 or not cfg.nodma else 's_nop 0') for t, x in witems(c) + xitems(c)]
    for c in {0: (), 8: (4,), 12: (2, 4, 6)}[cfg.krot]:
        i = 12*(c - 1)
        stream[i] = (stream[i][0], stream[i][1].replace("\nbuffer_load", f"\ns_cmp_eq_u32 s{S_HST}, {16 - 2*c}\ns_cselect_b32 s{S_CNT}, s{R_W+2}, 0\ns_cselect_b32 s{S_HSB}, 1024, 0\n"
                     f"s_sub_u32 s{S_WOFF}, s{S_WOFF}, s{S_CNT}\ns_sub_u32 s{S_XOFF}, s{S_XOFF}, s{S_HSB}\nbuffer_load"))
    pos = [0]
    def take(n):
        for _ in range(n):
            if pos[0] < len(stream): issue(*stream[pos[0]]); pos[0] += 1
    def upto(c):
        return min(len(stream), 12*(c + 1) + cfg.lead[c])
    def mix(lines, n):
        k = 0
        for i, l in enumerate(lines):
            while k < n and k * len(lines) <= i * n: take(1); k += 1
            a(l)
        take(n - k)
    img_srd(R_W, S_WSTEP)
    if cfg.krot:
        a(f"""
        s_and_b32 s{S_HST}, s{S_RB}, {cfg.krot}
        s_lshl_b32 s{S_T0}, s{S_HST}, 6
        s_add_u32 s{S_XOFF}, s{S_XOFF}, s{S_T0}
        s_mul_i32 s{S_T0}, s{S_T0}, s{S_WSTEP}
        s_lshr_b32 s{S_T0}, s{S_T0}, 1
        s_add_u32 s{S_WOFF}, s{S_WOFF}, s{S_T0}
        """)
    a(f"s_lshl_b32 s{S_WSTEP}, s{S_WSTEP}, 3\ns_mul_i32 s{S_M0W}, s{S_HW}, 24576\ns_add_u32 s{S_M0W}, s{S_M0W}, {L_W}")
    def b_init():
        srd(R_WS, P_WS, WS_SIZE)
        setup_ids()
        for i in range(4): a(f"v_mov_b32 v{12+i}, -1")
        a(f"v_mov_b32 v10, 0\nv_mov_b32 v11, 1\ns_sub_u32 s{S_T3}, s{S_FLG}, 16")
    def q_stores(tag):
        a(f"s_add_u32 s{S_CNT}, s{S_OST}, {WS_Q - WS_O - 2048}")
        issue(tag, f"buffer_store_dwordx4 v[12:15], v{V_L16}, {sr(R_WS,4)}, s{S_CNT} offen sc1")
        issue(tag, f"buffer_store_dwordx4 v[12:15], v{V_L16}, {sr(R_WS,4)}, s{S_CNT} offen offset:2048 sc1")
    def b_stores():
        if not cfg.c_q: q_stores("ST")
        issue("ST", f"s_mov_b64 exec, 7\nbuffer_store_dword v10, v{V_L16}, {sr(R_WS,4)}, s{S_T3} offen sc1\ns_mov_b64 exec, -1")
    if cfg.c_st[0] < 0: b_init()
    if cfg.c_st[0] == -2: b_stores()
    stamp(name=1)
    a("s_barrier")
    for i, it in enumerate(xitems(0) + witems(0)):
        if cfg.c_st == (-1, i): b_stores()
        issue(*it)
    stamp(name=3)
    def bar():
        brk("g")
        if cfg.stamps == 4: stamp()
        a("s_barrier")
    take(cfg.lead0)
    stamp(name=4)
    nst[0] = 2; vwait("C0"); stamp(name=6); bar()
    BC, BO, BZ = 132, 224, 240
    def b_setup():
        srd(R_DBG, P_DBG, 256)
        a(f"s_mov_b32 s{S_ONES}, 0x3f803f80")
        common_setup()
        a(f"""
        v_lshrrev_b32 v6, 4, v{V_LANE}
        v_bfe_u32 v2, v{V_LANE}, 1, 1
        v_lshl_add_u32 v6, v2, 2, v6
        v_and_b32 v2, 1, v{V_LANE}
        v_mad_u32_u24 v6, v2, 33, v6
        v_lshlrev_b32 v6, 4, v6
        v_bfe_u32 v2, v{V_LANE}, 2, 2
        v_mul_u32_u24 v2, 2208, v2
        v_add_u32 v6, v6, v2
        s_lshr_b32 s{S_T0}, s{S_HW}, 1
        s_mul_i32 s{S_T0}, s{S_T0}, 1056
        s_and_b32 s{S_T1}, s{S_HW}, 1
        s_lshl_b32 s{S_T1}, s{S_T1}, 8
        s_add_u32 s{S_T0}, s{S_T0}, s{S_T1}
        v_add_u32 v204, s{S_T0}, v6
        s_lshr_b32 s{S_T0}, s{S_RB}, 1
        s_and_b32 s{S_T1}, s{S_CB}, 12
        s_lshl_b32 s{S_T1}, s{S_T1}, 2
        s_add_u32 s{S_T0}, s{S_T0}, s{S_T1}
        s_and_b32 s{S_T1}, s{S_RB}, 1
        s_lshl_b32 s{S_T1}, s{S_T1}, 7
        s_add_u32 s{S_T0}, s{S_T0}, s{S_T1}
        s_lshl_b32 s{S_T0}, s{S_T0}, 7
        s_add_u32 s{S_T0}, s{S_T0}, {WS_FL + 32}
        v_and_b32 v6, 3, v{V_LANE}
        v_lshlrev_b32 v6, 2, v6
        v_bfe_u32 v2, v{V_LANE}, 2, 1
        v_lshl_add_u32 v6, v2, 10, v6
        v_bfe_u32 v2, v{V_LANE}, 3, 1
        v_lshl_add_u32 v6, v2, 13, v6
        v_add_u32 v205, s{S_T0}, v6
        """)
        for i in (0, 1, 4, 5): a(f"v_mov_b32 v{BZ+i}, 0")
        att_regs()
        a(f"s_lshl_b32 s{S_T0}, s{S_HW}, 11\nv_add_u32 v7, s{S_T0}, v{V_L16}")
    bs = capture(b_setup)
    nbs = -(-len(bs) // 3)
    pfl = [f"s_mul_i32 s{S_T0}, s2, 7168\ns_lshl_b32 s{S_T1}, s{S_HW}, 11\ns_add_u32 s{S_T0}, s{S_T0}, s{S_T1}\nbuffer_load_dwordx4 {vr(176,4)}, v{V_L16}, {sr(R_WD,4)}, s{S_T0} offen",
           f"buffer_load_dwordx4 {vr(180,4)}, v{V_L16}, {sr(R_WD,4)}, s{S_T0} offen offset:1024",
           f"s_lshl_b32 s{S_T1}, s2, 11\ns_lshl_b32 s{S_T3}, s{S_HW}, 9\ns_add_u32 s{S_T1}, s{S_T1}, s{S_T3}\ns_mov_b32 exec_hi, 0\nbuffer_load_dwordx4 {vr(184,4)}, v{V_L16}, {sr(R_WO,4)}, s{S_T1} offen\ns_mov_b64 exec, -1"]
    spoll = f"buffer_load_dword v8, v6, {sr(R_DBG,4)}, s{S_T2} offen sc1"
    for c in range(6):
        if c == cfg.c_st[0]:
            mix(capture(b_init), cfg.c_st[1]); b_stores()
        def q_flag():
            vwait("SQ")
            issue("F", f"s_mov_b64 exec, 1\nbuffer_store_dword v11, off, {sr(R_WS,4)}, s{S_FLG} offset:16 sc1\ns_mov_b64 exec, -1")
        if cfg.c_q and c == cfg.c_q[0] and cfg.c_q[1] < 99:
            take(cfg.c_q[1]); q_stores("SQ")
        if cfg.c_q and c == cfg.c_q[2] and cfg.c_q[3] < 99:
            take(cfg.c_q[3]); q_flag()
        if c in (2, 3, 4): mix(bs[(c-2)*nbs:(c-1)*nbs], upto(c) - pos[0])
        if c == 5:
            take(cfg.n_poll)
            a(f"v_and_b32 v6, 7, v{V_LANE}\nv_lshlrev_b32 v6, 5, v6\ns_lshl_b32 s{S_T2}, s{S_HW}, 8")
            issue("P", spoll)
        take(upto(c) - pos[0])
        if cfg.c_q and cfg.c_q[:2] == (c, 99): q_stores("SQ")
        if cfg.c_q and cfg.c_q[2:] == (c, 99): q_flag()
        if c == cfg.c_arr: vwait("ST")
        if c == 5:
            vwait("P")
            a(f"s_cmp_lg_u32 s{S_HW}, 0\ns_cbranch_scc1 L_sync1\ns_mov_b32 s{S_SPIN}, 0")
            a.label("L_sync1_chk")
            a(f"""
            v_cmp_gt_u32 vcc, 32, v8
            s_add_u32 s{S_SPIN}, s{S_SPIN}, 1
            s_cbranch_vccz L_sync1
            s_cmp_ge_u32 s{S_SPIN}, {SPIN_MAX}
            s_cbranch_scc1 L_sync1
            s_sleep 4
            {spoll}
            s_waitcnt vmcnt(0)
            s_branch L_sync1_chk
            """)
            a.label("L_sync1")
        vwait(f"C{c+1}"); bar()
        if c == cfg.c_arr:
            a(f"s_cmp_lg_u32 s{S_HW}, 0\ns_cbranch_scc1 L_noarr\ns_and_b32 s{S_EX}, s2, 7\ns_lshl_b32 s{S_EX}, s{S_EX}, 5\ns_mov_b32 s{S_EX+1}, 1\n"
              f"s_atomic_add s{S_EX+1}, {sr(P_DBG,2)}, s{S_EX}\nL_noarr:")
    assert pos[0] == len(stream)
    ncs[0] = 0; cstamp(11)
    a(f"""
    s_lshl_b32 s{S_T3}, s{S_HW}, 11
    s_add_u32 m0, s{S_T3}, {L_R}
    s_lshl_b32 s{S_EX}, s{S_RB}, 13
    s_add_u32 s{S_EX}, s{S_EX}, s{S_T3}
    s_add_u32 s{S_EX}, s{S_EX}, {WS_ST}
    s_lshl_b32 s{S_T3}, s{S_HW}, 10
    s_lshl_b32 s{S_EX+1}, s{S_CB}, 14
    s_add_u32 s{S_EX+1}, s{S_EX+1}, s{S_T3}
    s_add_u32 s{S_EX+1}, s{S_EX+1}, {WS_CS}
    """)
    if cfg.stamps != 4: nst[0] = 3
    stamp(); cstamp(11)
    def maxtree(src, dst, init=None):
        L = []
        if init is None:
            L.append(f"v_max3_f32 v{dst}, v{src}, v{src+1}, v{src+2}")
            L.append(f"v_max_f32 v{dst}, v{src+3}, v{dst}")
            k = 4
        else:
            k = 0
        for i in range(k, 16, 2): L.append(f"v_max3_f32 v{dst}, v{src+i}, v{src+i+1}, v{dst}")
        return L
    def setC(m, shift):
        a(f"v_mov_b32 v{m+1}, v{m}\ns_nop 1\nv_permlane32_swap_b32 v{m}, v{m+1}\nv_max_f32 v{m}, v{m}, v{m+1}")
        a(f"v_sub_f32 v{CC}, {hex(f2u(-shift)) if shift else 0}, v{m}")
        a(f"v_mov_b32 v{CC+1}, v{CC}")
        for i in range(2, 16, 2): a(f"v_mov_b64 {vr(CC+i,2)}, {vr(CC,2)}")
    for e in range(4):
        if e: a(f"s_add_u32 s{S_EX+1}, s{S_EX+1}, 4096")
        a(f"buffer_load_dwordx4 {vr(BC+4*e,4)}, v{V_L16}, {sr(R_WS,4)}, s{S_EX+1} offen sc1")
    for i in range(2): a(f"buffer_load_dwordx4 v{V_L16}, {sr(R_WS,4)}, s{S_EX} offen offset:{1024*i} sc1 lds")
    assert cfg.e6 != 2
    qpoll = f"buffer_load_dword v9, v205, {sr(R_WS,4)}, s{S_T2} offen sc1"
    if cfg.c_q:
        a(f"s_and_b32 s{S_T2}, s{S_CB}, 3\ns_sub_u32 s{S_T2}, s{S_T2}, s{S_H4K}\ns_cmp_eq_u32 s{S_T2}, 3\ns_cselect_b32 s{S_T2}, 0, {WS_SIZE}\n" + qpoll)
    nq = 1 if cfg.c_q else 0
    npf = 3 if cfg.pf_first else 0
    for x in pfl[:npf]: a(x)
    touch("e", 0, 4, 5)
    cstamp(11)
    if cfg.e6 == 0: a(f"s_waitcnt vmcnt({6 + nq + npf})\ns_barrier")
    a(f"s_setprio {cfg.bp}\ns_waitcnt vmcnt({2 + nq + npf})")
    cstamp(11)
    for e in range(1, 4):
        for i in (0, 2, 1, 3): a(f"v_add_f32 v{BC+i}, v{BC+i}, v{BC+4*e+i}")
    if cfg.e6 == 1: a("s_barrier")
    a(f"""
    v_permlane32_swap_b32 v{BC}, v{BC+2}
    s_nop 0
    v_permlane32_swap_b32 v{BC+1}, v{BC+3}
    v_add_f32 v{BC}, v{BC}, v{BC+2}
    v_add_f32 v{BC+1}, v{BC+1}, v{BC+3}
    s_nop 1
    v_permlane16_swap_b32 v{BC}, v{BC+1}
    v_add_f32 v{BC}, v{BC}, v{BC+1}
    """)
    for l in split2(BC, BZ + 2, True): a(l)
    if cfg.e6 == 3: a("s_barrier")
    a(f"ds_write_b128 v204, {vr(BZ+2,4)} offset:{L_RA}\nds_write_b128 v204, {vr(BZ,4)} offset:{L_RA + 128}")
    cstamp(11)
    for x in pfl[npf:]: a(x)
    a("s_waitcnt vmcnt(3)")
    ncs[0] += 1; cstamp(11)
    if cfg.c_q:
        a(f"""
        s_cmp_lg_u32 s{S_T2}, 0
        s_cbranch_scc1 L_qrdy
        s_mov_b32 s{S_SPIN}, 0
        L_qrchk:
        v_cmp_ne_u32 vcc, 1, v9
        s_add_u32 s{S_SPIN}, s{S_SPIN}, 1
        s_cbranch_vccz L_qrdy
        s_cmp_ge_u32 s{S_SPIN}, {SPIN_MAX}
        s_cbranch_scc1 L_qrdy
        {qpoll}
        s_waitcnt vmcnt(0)
        s_branch L_qrchk
        L_qrdy:
        """)
    a("s_setprio 0\ns_waitcnt lgkmcnt(0)")
    cstamp(11)
    if cfg.e6 == 2: a("s_barrier")
    cstamp(11)
    a("s_barrier")
    for c in range(2):
        slot = (c + 1) % 3
        a(f"s_add_u32 m0, s{S_H4K}, {L_KV + slot*16384}\ns_add_u32 s{S_T0}, s{S_H4K}, {WS_KV + starts[c]*2048}")
        for e in range(4):
            a(f"buffer_load_dwordx4 v{V_L16}, {sr(R_WS,4)}, s{S_T0} offen offset:{1024*e} sc1 lds")
    touch("a", 0, 4, 12)
    if cfg.wfix:
        a(f"s_mov_b32 s{S_CNT}, 0\ns_mov_b32 s{S_SPIN}, 0\ns_cmp_eq_u32 s{S_HW}, 3\ns_cbranch_scc0 L_nowfix\ns_call_b64 {sr(S_RET,2)}, L_ofix\nL_nowfix:")
    if cfg.e7:
        a("s_barrier")
        a(f"s_add_u32 m0, s{S_H4K}, {L_KV}\ns_add_u32 s{S_T0}, s{S_H4K}, {WS_KV + starts[2]*2048}")
        for e in range(4): a(f"buffer_load_dwordx4 v{V_L16}, {sr(R_WS,4)}, s{S_T0} offen offset:{1024*e} sc1 lds")
        if cfg.e7 == 2:
            a(f"s_mul_i32 s{S_T1}, s{S_HW}, {448*1024}\ns_lshl_b32 s{S_T0}, s{S_CT8}, 7\ns_add_u32 s{S_T1}, s{S_T1}, s{S_T0}\ns_lshl_b32 s{S_T3}, s{S_H4K}, 1")
            for e in range(8):
                a(f"s_add_u32 m0, s{S_T3}, {L_WD + e*1024}\ns_add_u32 s{S_T0}, s{S_T1}, {e*8192}\nbuffer_load_dwordx4 v{V_WDD}, {sr(R_WD,4)}, s{S_T0} offen lds")
    QP = 128
    qload = (f"buffer_load_dwordx4 {vr(QP,4)}, v{V_L16}, {sr(R_WS,4)}, s{S_T2} offen sc1\n"
             f"buffer_load_dwordx4 {vr(QF,4)}, v{V_L16}, {sr(R_WS,4)}, s{S_T2} offen offset:2048 sc1")
    a(f"s_add_u32 s{S_T2}, s{S_OST}, {WS_Q - WS_O - 2048}\ns_mov_b32 s{S_SPIN}, 0\ns_waitcnt vmcnt(0)\ns_barrier\ns_setprio 2")
    a(qload)
    kv_first()
    nst[0] = 12 if cfg.stamps == 4 else 5
    stamp()
    a.label("L_qchk")
    a(f"""
    s_waitcnt vmcnt(0) lgkmcnt(0)
    v_max3_u32 v8, v{QF}, v{QF+1}, v{QF+2}
    v_max3_u32 v8, v8, v{QF+3}, v{QP}
    v_max3_u32 v8, v8, v{QP+1}, v{QP+2}
    v_max_u32 v8, v8, v{QP+3}
    v_cmp_eq_u32 vcc, -1, v8
    s_add_u32 s{S_SPIN}, s{S_SPIN}, 1
    s_cbranch_vccz L_qok
    s_cmp_ge_u32 s{S_SPIN}, {SPIN_MAX}
    s_cbranch_scc1 L_qok
    s_sleep {cfg.qsl}
    {qload}
    s_branch L_qchk
    """)
    a.label("L_qok")
    if cfg.stamps == 1:
        n0 = nst[0]; nst[0] = 4; stamp(); nst[0] = n0
        a(f"v_writelane_b32 v{V_STAMP}, s{S_SPIN}, 63")
    a('; ---- softmax reference point: maximum over the first 32 keys (a lower bound of the row maximum), scores are taken relative to it minus a fixed shift.')
    a(mfma32(S0, KF, QP, None)); a(mfma32(S1, KF, QF, None))
    a(f"ds_write_b128 v7, {vr(QP,4)} offset:{L_HQ}")
    a.nop(10)
    for l in maxtree(S0, 8): a(l)
    a(f"v_mov_b32 v9, v8\ns_nop 1\nv_permlane32_swap_b32 v8, v9\nv_max_f32 v8, v8, v9\nv_sub_f32 v{QP+4}, {hex(f2u(-cfg.shift))}, v8")
    a(f"v_mov_b32 v{QP+5}, v{QP+4}\nv_mov_b64 {vr(QP+6,2)}, {vr(QP+4,2)}\nds_write_b128 v7, {vr(QP+4,4)} offset:{L_HQ + 1024}")
    for l in maxtree(S1, 8): a(l)
    if cfg.g_early:
        a("s_waitcnt lgkmcnt(0)\ns_barrier")
        stamp(name="att0"); pad("att0")
    setC(8, cfg.shift)
    a("s_waitcnt lgkmcnt(0)\ns_setprio 0")
    a(mfma32(S0, KF, QF, CC))
    if not cfg.g_early:
        a("s_barrier")
        stamp(name="att0"); pad("att0")
    a("s_nop 5\ns_branch L_attB")

    def kvdma(c, half):
        slot = (c + 1) % 3
        L = (f"s_add_u32 m0, s{S_W2K}, {L_KV + slot*16384}\ns_add_u32 s{S_T0}, s{S_W2K}, {WS_KV + starts[c]*2048}\n")
        if half == 1 and sizes[c] < 8:
            L += f"s_cmp_ge_u32 s{S_W}, {sizes[c]}\ns_cselect_b32 s{S_T0}, {WS_SIZE}, s{S_T0}\n"
        return [L + f"buffer_load_dwordx4 v{V_L16}, {sr(R_WS,4)}, s{S_T0} offen sc1 lds",
                f"buffer_load_dwordx4 v{V_L16}, {sr(R_WS,4)}, s{S_T0} offen offset:1024 sc1 lds"]
    def rowdma(rs, sbase, add, ldsbase, e):
        pre = f"s_add_u32 m0, s{S_W4K}, {ldsbase}\n"
        return pre + f"s_add_u32 s{S_T0}, s{sbase}, {add + e*7168}\nbuffer_load_dwordx4 v{V_WDD}, {sr(rs,4)}, s{S_T0} offen offset:{1024*e} {cfg.cf[2]} lds"
    tbs = [starts[c] - 3 for c in range(1, len(starts))]
    late = []
    def attention(half):
        sfx = "AB"[half]
        if cfg.stamps == 5: a(f"s_mov_b32 s{S_SPIN}, 0")
        head = {t: [] for t in range(66)}
        vm = {t: [] for t in range(66)}
        pre = {t: [] for t in range(66)}
        bg = {t: [] for t in range(66)}
        nb = len(tbs); c0 = nb - 7
        lh, mb = cfg.lh, cfg.mb
        for ci, tb in enumerate(tbs):
            q = []
            if ci + 2 < len(starts) and not (cfg.e7 and ci == 0): q += [("D", x) for x in kvdma(ci + 2, half)]
            dload = ci - c0 + 1
            if 0 <= dload <= 6:
                wq_ = [rowdma(R_WD, S_WDO, dload*65536, L_WD + (dload & 1)*32768, e) for e in range(4)]
                if dload == 0:
                    for e in range(4 if cfg.e7 < 2 else 0): vm[cfg.t_wd0[e]].append(("D", wq_[e]))
                else: q += [("D", x) for x in wq_]
                hl = [f"buffer_load_dwordx4 {vr(HF + 16*(dload&1) + 4*j,4)}, v{V_L16}, {sr(R_WS,4)}, s{S_T1} offen offset:{1024*j} sc1" for j in range(4)]
                hl[0] = f"s_add_u32 s{S_T1}, s{S_HLD}, {dload*4096}\n" + hl[0]
            elif dload == 7:
                q += [("D", rowdma(R_WO, S_WOO, 0, L_WO, e)) for e in range(4)]
                q += [("D", f"buffer_load_dwordx4 {vr(V_XR,4)}, v{V_FO}, {sr(R_X,4)}, 0 offen")]
            for i, x in enumerate(q): vm[tb + cfg.dpos[i] if ci else cfg.t_kv2].append(x)
            if 0 <= dload <= 6:
                for j in range(4):
                    vm[cfg.t_h0[j] if dload == 0 else tb + cfg.hpos[j]].append((f"H{dload}{j}", hl[j]))
                    if j in cfg.hwait: pre[tbs[ci + 1] + mb[2*j]].append(("wait", f"H{dload}{cfg.hwait[j]}"))
            d = dload - 1
            if d >= 0:
                for k in range(8):
                    j, ct = divmod(k, 2); fr = DF + 4 * (k & 3)
                    for t in range(2):
                        head[tb + lh[k]].append(f"ds_read_b64_tr_b16 {vr(fr+2*t,2)}, v{V_DA+ct} offset:{(d&1)*32768 + j*2048 + t*512}")
                    bg[tb + mb[k]].append(mfma32(YY + 16*ct, HF + 16*(d&1) + 4*j, fr, None if (d == 0 and j == 0) else YY + 16*ct))
        assert min(cfg.t_h0) >= cfg.t_chk and max(lh) <= 6 and max(mb) <= 7 and all(m > l for m, l in zip(mb, lh))
        assert all(lh[k+4] > mb[k] and lh[k] + 6 > mb[k+4] for k in range(4)) and all(cfg.hpos[j] + 6 > mb[2*j+1] for j in range(4))
        st = []
        if half == 0:
            for rt in range(4):
                for ti in range(2):
                    st.append(f"s_add_u32 s{S_T3}, s{S_HSB if ti else S_HST}, {112*1024*rt}\n"
                              f"buffer_store_dwordx4 {vr(HO + 16*ti + 4*rt,4)}, v{V_L16}, {sr(R_WS,4)}, s{S_T3} offen {cfg.hfl}")
        st.append(f"buffer_store_dwordx4 v[12:15], v{V_L16}, {sr(R_WS,4)}, s{S_OST} offen sc1")
        hs = list(range(64))
        for i, x in enumerate(st): vm[hs[int(i * cfg.st_rate)] if half == 0 else cfg.t_sb].append(("S", x))
        if half == 1:
            if cfg.t_pf >= 0: vm[cfg.t_pf] += [("X", x) for x in pfl]
            for e in range(8):
                x = f"s_add_u32 m0, s{S_EX}, {L_WO + 32768 + e*1024}\ns_add_u32 s{S_T0}, s{S_EX+1}, {e*8192}\nbuffer_load_dwordx4 v{V_WDD}, {sr(R_WO,4)}, s{S_T0} offen lds"
                if e == 0: x = f"s_lshl_b32 s{S_EX+1}, s{S_HW}, 16\ns_lshl_b32 s{S_T0}, s{S_CT8}, 7\ns_add_u32 s{S_EX+1}, s{S_EX+1}, s{S_T0}\ns_xor_b32 s{S_T0}, s{S_T16}, 0x40000\ns_add_u32 s{S_EX+1}, s{S_EX+1}, s{S_T0}\ns_lshl_b32 s{S_EX}, s{S_H4K}, 1\n" + x
                vm[cfg.t_wo[e]].append(("D" if e == 7 else "X", x))
            tw = min(t for t in tbs if t >= max(cfg.t_wo))
            if tw == tbs[1]:
                for i in range(6): head[tw + 2 + i] += wo_rd[4*i:4*i+4]
            else:
                hs_ = [tb + o for tb in tbs if tb >= tw for o in (4, 5)]
                for i in range(12): head[hs_[i]] += wo_rd[2*i:2*i+2]
            head[61] += wo_rd[24:26]; head[63] += wo_rd[26:]
        else:
            head[63] += wo_rd[:cfg.n_wo63]
        if cfg.t_out: vm[cfg.t_out].append(("X", f"s_mov_b64 exec, 1\nbuffer_load_dword v254, v{V_FO}, {sr(R_OUT,4)}, 0 offen\ns_mov_b64 exec, -1"))
        for t in cfg.t_code: vm[t].append(("X", "s_mov_b64 exec, 3\nglobal_load_dword v254, v[252:253], off\ns_mov_b64 exec, -1"))
        pre[cfg.t_flag].append(("wait", "S"))
        vm[cfg.t_flag].insert(0, ("F", f"s_mov_b64 exec, 1\nbuffer_store_dword v11, off, {sr(R_WS,4)}, s{S_FLG} sc1\ns_mov_b64 exec, -1"))
        poll = f"buffer_load_dword v3, v{V_PO}, {sr(R_WS,4)}, s{S_T2} offen sc1"
        vm[cfg.t_poll].insert(0, ("P", f"s_mov_b32 s{S_T2}, {WS_FL}\n" + poll))
        assert cfg.t_poll <= cfg.t_chk - 2
        pre[cfg.t_chk - 1].append(("wait", "P"))
        pre[cfg.t_chk].append(("text", f"s_cbranch_vccnz L_hspin{sfx}\nL_hok{sfx}:"))
        late.append(f"L_hspin{sfx}:\ns_mov_b32 s{S_SPIN}, 0\nL_hchk{sfx}:\ns_sleep 2\n{poll}\ns_waitcnt vmcnt(0)\nv_cmp_ne_u32 vcc, 1, v3\ns_add_u32 s{S_SPIN}, s{S_SPIN}, 1\ns_cbranch_vccz L_hok{sfx}\n"
                    f"s_cmp_lt_u32 s{S_SPIN}, {SPIN_MAX}\ns_cbranch_scc1 L_hchk{sfx}\ns_branch L_hok{sfx}")
        VQ = []
        def cnt(tag):
            idx = [i for i, x in enumerate(VQ) if x == tag]
            return min(63, len(VQ) - 1 - max(idx)) if idx else 63
        def emit_vm(L):
            for tag, x in L: a(x); VQ.append(tag)
        for t in range(tbs[2] + 1, 64):
            if 'v' in cfg.ab: vm[t] = [x for x in vm[t] if 'sc1 lds' in x[1]]
            if 'h' in cfg.ab: vm[t] = [x for x in vm[t] if x[0] != 'H']
            if 'r' in cfg.ab: head[t] = []
            if 'm' in cfg.ab: bg[t] = []
        for t in range(64):
            par = t & 1
            sd, sn = (S0, S1) if par == 0 else (S1, S0)
            p, pp = PP + 8*par, PP + 8*(1 - par)
            isb = (t in tbs and not ('b' in cfg.ab and t > tbs[2])) or t == 62
            if cfg.stamps == 2 and t - 1 in tbs: stamp()
            brk("a")
            if cfg.itr:
                if t == 0: ncs[0] = 0
                if t in cfg.itr: cstamp(5)
            midb = isb and half == 1
            if half == 0 and (t - 1 in tbs or t == 63): a(f"s_waitcnt vmcnt({cnt('D')}) lgkmcnt(0)\ns_barrier")
            else: a("s_waitcnt lgkmcnt(0)")
            for k, x in pre[t]: a(x if k == "text" else f"s_waitcnt vmcnt({cnt(x)})")
            emit_vm(vm[t][:1])
            if not ('L' in cfg.ab and t & 2) and not ('Z' in cfg.ab and t > 2):
                if t + 2 < 64: a(f"ds_read_b128 {vr(KF+4*par,4)}, v{V_KA} offset:{kv_off(t+2)}")
                a(f"s_mov_b64 exec, {sr(S_VM,2)}")
                if t + 1 < 64: a(f"ds_read_b128 {vr(VF+8*(1-par),4)}, v{V_VA} offset:{kv_off(t+1)}")
                a(f"ds_read_b128 {vr(VF+8*par+4,4)}, v{V_VA} offset:{kv_off(t)+512}")
                a("s_mov_b64 exec, -1")
            for l in head[t]: a(l)
            emit_vm(vm[t][1:])
            if t == 0 and cfg.stamps == 9: ncs[0] = 0
            if cfg.t_tr <= t < cfg.t_tr + 9: cstamp(9)
            pos = cfg.pos[len(bg[t])]
            sl = [smf(OO, VF + 8*(1-par) + 4, sn + 8) if t >= 1 else None, mfma32(sn, KF + 4*(1-par), QF, CC) if t + 1 < 64 else None]
            sl += bg[t][:1] + [smf(OO, VF + 8*par, sd)] + bg[t][1:]
            at = {p: m for p, m in zip(pos, sl) if m}
            if 'M' in cfg.ab:
                import re as _re
                for p in list(at):
                    if at[p] in bg[t]:
                        m = _re.match(r"\S+ v\[(\d+):\d+\], v\[(\d+):\d+\], v\[(\d+):\d+\]", at[p]); d_, a_, b_ = map(int, m.groups())
                        d_ += 8 * (t & 1)
                        at[p] = mfma16(d_, a_, b_, d_); at[p + 1] = mfma16(d_ + 4, b_, a_, d_ + 4)
            if t in cfg.upd:
                assert len(sl) == 3
                at = {1: f"v_frexp_exp_i32_f32_e64 v4, v{OO+8}", 2: sl[0], 3: f"v_sub_u32 v4, {17 - int(cfg.shift)}, v4\nv_cvt_f32_i32_e64 v5, v4", 5: sl[1],
                      8: f"v_mfma_f32_32x32x2_f32 {vr(CC,16)}, v49, v5, {vr(CC,16)}", 15: sl[2]}
                if cfg.updm >= 1:
                    mv = [f"v_mov_b32 v{CC+1}, v{CC}"] + [f"v_mov_b64 {vr(CC+i,2)}, {vr(CC,2)}" for i in range(2, 16, 2)] if cfg.updm == 1 else [f"v_mov_b32 v{CC+i}, v{CC}" for i in range(1, 16)]
                    del at[8], at[15]
                    at[12] = "\n".join([f"v_add_f32{'_e64' if cfg.updm == 1 else ''} v{CC}, v{CC}, v5"] + mv)
                    at[13] = sl[2]
                if cfg.updl: at[3] = f"v_sub_u32 v4, {17 - int(cfg.shift)}, v4\nv_max_i32 v4, 0xffffff82, v4\nv_cvt_f32_i32_e64 v5, v4\nv_ldexp_f32 v4, 1.0, v4"
            if t - 2 in cfg.upd:
                assert len(sl) == 3
                at = {2: sl[0], 6: sl[1], 13: "\n".join((f"v_mul_f32{'_e64' if i == 0 else ''} v{OO+i}, v{OO+i}, v4" if cfg.updl else f"v_ldexp_f32 v{OO+i}, v{OO+i}, v4") for i in range(9)), 15: sl[2]}
            a(".p2align 3")
            odd = False
            for i in range(16):
                if i in at: a(at[i])
                if midb and i == cfg.bmid: a(f"s_waitcnt vmcnt({cnt('D')}) lgkmcnt(0)\ns_barrier")
                pr = i == (cfg.pp if half else cfg.pa)
                wide = (i + 1 in at) and (odd == pr)
                a(f"v_exp_f32{'_e64' if wide else ''} v{sd+i}, v{sd+i}")
                if not wide: odd = not odd
                if pr: a(f"s_setprio {cfg.pv[half]}"); odd = not odd
            if cfg.stamps == 3: a(f"s_waitcnt lgkmcnt(0)\nv_writelane_b32 v253, s{S_TS}, {t}\nv_writelane_b32 v254, s{S_TS2}, {t}\ns_memtime {sr(S_TS2,2)}")
            if t == cfg.t_chk - 1: a("v_cmp_ne_u32 vcc, 1, v3")
            if (cfg.pp if half else cfg.pa) is not None: a("s_setprio 0")
            if cfg.t_tr <= t < cfg.t_tr + 9: cstamp(9)
        a("s_waitcnt lgkmcnt(0)\ns_nop 0")
        a(smf(OO, VF + 12, S1 + 8))
    OF, SS, XU, TT = 16, 64, 160, 168
    def oload(j): return f"buffer_load_dwordx4 {vr(OF+4*j,4)}, v{V_L16}, {sr(R_WS,4)}, s{S_OLD if j < 4 else S_T1} offen offset:{1024*(j&3)} sc1"
    def chk(j): return f"v_max3_u32 v8, v{OF+4*j}, v{OF+4*j+1}, v{OF+4*j+2}\nv_max_u32 v8, v{OF+4*j+3}, v8\nv_cmp_eq_u32 vcc, -1, v8"
    F = f"L_ofix:\ns_mov_b32 s{S_T2}, 0\ns_waitcnt vmcnt(0)\n"
    for j in range(8):
        F += (f"s_bitcmp1_b32 s{S_CNT}, {j}\ns_cbranch_scc0 L_ofb{j}\n{chk(j)}\ns_cmp_lg_u32 s{S_T2}, 0\ns_cbranch_vccz L_ofa{j}\n{oload(j)}\ns_mov_b32 s{S_T2}, 1\ns_branch L_ofb{j}\nL_ofa{j}:\ns_cbranch_scc1 L_ofb{j}\ns_bitset0_b32 s{S_CNT}, {j}\n"
              + mfma32(SS, OF + 4*j, WOF[2*j], SS) + "\n" + mfma32(SS + 16, OF + 4*j, WOF[2*j + 1], SS + 16) + f"\nL_ofb{j}:\n")
    F += (f"s_add_u32 s{S_SPIN}, s{S_SPIN}, 1\ns_cmp_ge_u32 s{S_SPIN}, {SPIN_MAX}\ns_cselect_b32 s{S_CNT}, 0, s{S_CNT}\n"
          f"s_cmp_lg_u32 s{S_CNT}, 0\ns_cbranch_scc1 L_ofix\ns_setpc_b64 {sr(S_RET,2)}")
    late.insert(0, F)
    def normalize():
        for i in range(0, 8, 2): a(f"v_pk_mul_f32 {vr(OO+i,2)}, {vr(OO+i,2)}, v[10:11]")
        for i in range(4): a(f"v_cvt_pk_bf16_f32 v{12+i}, v{OO+2*i}, v{OO+2*i+1}")
    def tail(half):
        sfx = "AB"[half]
        if cfg.stamps == 8: ncs[0] = 0
        if cfg.stamps == 5: a(f"v_writelane_b32 v{V_STAMP}, s{S_SPIN}, 62")
        stamp(name="att1"); pad("att1")
        cstamp()
        a(f"s_mov_b32 s{S_T2}, {hex(f2u(2.0**120))}\ns_mov_b32 s{S_T3}, {hex(f2u(2.0**-106))}")
        a(f"s_add_u32 s{S_T1}, s{S_OLD}, 4096\ns_mov_b32 s{S_SPIN}, 0\ns_lshl_b32 s{S_T0}, s{S_W}, 13\ns_mov_b32 m0, s{S_T0}")
        a.nop(6)
        a(f"""
        v_rcp_f32 v10, v{OO+8}
        v_maximum3_f32 v8, abs(v{OO}), abs(v{OO+1}), abs(v{OO+2})
        v_maximum3_f32 v9, abs(v{OO+3}), abs(v{OO+4}), abs(v{OO+5})
        v_maximum3_f32 v8, abs(v{OO+6}), abs(v{OO+7}), v8
        v_maximum3_f32 v6, v8, v9, v{OO+8}
        v_max_f32 v8, v8, v9
        v_cmp_ngt_f32 vcc, s{S_T2}, v6
        v_cmp_gt_f32 {sr(S_EX,2)}, s{S_T3}, v8
        v_mov_b32 v11, v10
        s_or_b64 vcc, vcc, {sr(S_EX,2)}
        """)
        a("s_branch L_fb" if cfg.force_fb else "s_nop 0" if cfg.ab else "s_cbranch_scc1 L_fb")
        normalize()
        a.label(f"L_ost{sfx}")
        a(f"buffer_store_dwordx4 v[12:15], v{V_L16}, {sr(R_WS,4)}, s{S_OST} offen sc1")
        cstamp()
        if half == 0:
            for l in wo_rd[cfg.n_wo63:]: a(l)
        for i in range(32): a(f"ds_write_addtid_b32 v{YY+i} offset:{32768 + 256*i}")
        cstamp()
        a(f"""
        v_xor_b32 v5, 16, v{V_GA}
        v_add_u32 v6, 0x10000, v{V_GA}
        v_add_u32 v7, 0x10000, v5
        s_mov_b32 s{S_EX}, 0xff00ff00
        s_mov_b32 s{S_EX+1}, 0xff00ff00
        s_mov_b64 exec, {sr(S_EX,2)}
        v_swap_b32 v{V_XR}, v{V_XR+2}
        v_swap_b32 v{V_XR+1}, v{V_XR+3}
        s_mov_b64 exec, -1
        """)
        for i in range(4): a(f"v_lshlrev_b32 v{XU+2*i}, 16, v{V_XR+i}\nv_and_b32 v{XU+2*i+1}, 0xffff0000, v{V_XR+i}")
        for i in range(0, 32, 2): a(f"v_mov_b64 {vr(SS+i,2)}, 0")
        a("s_waitcnt lgkmcnt(0)\ns_barrier")
        if half: a(f"s_add_u32 m0, s{S_T0}, 7940")
        cstamp()
        yr = [f"ds_read_b128 {vr(YY+8*p+4*e,4)}, v{((V_GA, 5), (6, 7))[p >> 1][e]} offset:{(32768 + 16384*p) & 0xffff}" for p in range(4) for e in range(2)]
        G = ["s_waitcnt lgkmcnt(0)"]
        for p in (1, 2, 3): G += [f"v_add_f32 v{YY+i}, v{YY+i}, v{YY+8*p+i}" for i in range(8)]
        G += [f"v_mul_f32 v{TT+i}, {hex(f2u(-math.log2(math.e)))}, v{YY+i}" for i in range(8)]
        G += [f"v_exp_f32 v{TT+i}, v{TT+i}" for i in range(8)]
        G += [f"v_add_f32 v{TT+i}, 1.0, v{TT+i}" for i in range(8)]
        G += [f"v_rcp_f32 v{TT+i}, v{TT+i}" for i in range(8)]
        G += [f"v_mul_f32 v{YY+i}, v{YY+i}, v{TT+i}" for i in range(8)]
        if half:
            for l in yr: a(l)
            for j in range(cfg.n_b0): a(oload(j))
            for l in G[:cfg.n_gb]: a(l)
            G = G[cfg.n_gb:]
            for j in range(cfg.n_b0, 8):
                a(oload(j))
                for l in G[:cfg.n_gp]: a(l)
                G = G[cfg.n_gp:]
            for l in G: a(l)
        elif cfg.odelay:
            for l in yr + G[:cfg.odelay]: a(l)
            G = G[cfg.odelay:]
            for j in range(8): a(oload(j))
        else:
            for j in range(8): a(oload(j)); a(yr[j])
        cstamp()
        def nxt(j): return f"s_waitcnt vmcnt({7-j})\n" + chk(j) + f"\ns_movk_i32 s{S_CNT}, {(0xff << j) & 0xff}"
        a(nxt(0))
        for j in range(8):
            a(f"s_cbranch_vccnz L_omiss{sfx}")
            if j in (0, 3, 7): cstamp()
            a(mfma32(SS, OF + 4*j, WOF[2*j], SS))
            if j < 7: a(nxt(j + 1))
            a(mfma32(SS + 16, OF + 4*j, WOF[2*j + 1], SS + 16))
        late[0] = f"L_omiss{sfx}:\ns_call_b64 {sr(S_RET,2)}, L_ofix\ns_branch L_ook{sfx}\n" + late[0]
        a.label(f"L_ook{sfx}")
        a.nop(11)
        for i in range(32): a(f"ds_write_addtid_b32 v{SS+i} offset:{(57596 if half else 0) + 256*i}")
        if not half:
            for l in G: a(l)
    far("L_attA")
    n0 = nst[0]
    attention(0)
    tail(0)
    a("s_branch L_fin2")
    far("L_attB")
    nst[0] = n0
    attention(1)
    tail(1)
    far("L_fin2", True)
    a("s_waitcnt lgkmcnt(0)\ns_barrier")
    if cfg.stamps == 6: stamp()
    cstamp()
    for p in range(4):
        for e in range(2): a(f"ds_read_b128 {vr(OF+8*p+4*e,4)}, v{((V_GA, 5), (6, 7))[p >> 1][e]} offset:{16384*p}")
    a("s_waitcnt lgkmcnt(0)" if cfg.stamps == 8 else "s_waitcnt lgkmcnt(4)")
    for i in range(0, 8, 2): a(f"v_pk_add_f32 {vr(OF+i,2)}, {vr(OF+i,2)}, {vr(OF+8+i,2)}")
    a("s_waitcnt lgkmcnt(0)")
    for i in range(0, 8, 2): a(f"v_pk_add_f32 {vr(OF+16+i,2)}, {vr(OF+16+i,2)}, {vr(OF+24+i,2)}")
    for i in range(0, 8, 2): a(f"v_pk_add_f32 {vr(OF+i,2)}, {vr(OF+i,2)}, {vr(OF+16+i,2)}")
    for i in range(0, 8, 2): a(f"v_pk_fma_f32 {vr(OF+i,2)}, {vr(OF+i,2)}, {vr(YY+i,2)}, {vr(XU+i,2)}")
    for i in range(4): a(f"v_cvt_pk_bf16_f32 v{12+i}, v{OF+2*i}, v{OF+2*i+1}")
    a(f"s_mov_b64 exec, {sr(S_EX,2)}\nv_swap_b32 v12, v14\nv_swap_b32 v13, v15\ns_mov_b64 exec, -1")
    a(f"buffer_store_dwordx4 v[12:15], v{V_FO}, {sr(R_OUT,4)}, 0 offen {cfg.oflag}")
    if cfg.stamps == 6: stamp()
    cstamp()
    if cfg.stamps:
        a("s_waitcnt vmcnt(0)")
        cstamp()
        stamp(True)
        for i in range(ncs[0]): a(f"v_writelane_b32 v{V_STAMP}, s{CSR[i]}, {40+i}")
        if cfg.stamps in (10, 12):
            for i in range(6): a(f"v_writelane_b32 v{V_STAMP}, s{[32, 34, 92, 94, 96, 98][i]}, {40+i}")
        if cfg.stamps in (5, 6): a(f"v_writelane_b32 v{V_STAMP}, s{S_SPIN}, 63")
        a(f"s_lshl_b32 s{S_T0}, s2, 3\ns_add_u32 s{S_T0}, s{S_T0}, s{S_W}\ns_lshl_b32 s{S_T0}, s{S_T0}, 8\ns_add_u32 s{S_T0}, s{S_T0}, {WS_DBG}")
        a(f"v_lshlrev_b32 v2, 2, v{V_LANE}\nbuffer_store_dword v{V_STAMP}, v2, {sr(R_WS,4)}, s{S_T0} offen")
        if cfg.stamps == 3:
            a(f"s_add_u32 s{S_T0}, s{S_T0}, 0x80000\nbuffer_store_dword v253, v2, {sr(R_WS,4)}, s{S_T0} offen\ns_add_u32 s{S_T0}, s{S_T0}, 0x80000\nbuffer_store_dword v254, v2, {sr(R_WS,4)}, s{S_T0} offen")
    pad("end")
    a.label("L_end")
    a("s_endpgm")
    a(late[0])
    if cfg.brks is None: brk("x")
    for l in late[1:]: a(l)
    a.label("L_fb")
    a(f"v_mov_b32 v8, 0xff800000\ns_mov_b32 s{S_CNT}, {WS_KV}")
    a(f"v_subrev_u32 v10, {L_KV}, v{V_VA}")
    a.label("L_fb1")
    a(f"buffer_load_dwordx4 {vr(KF,4)}, v{V_L16}, {sr(R_WS,4)}, s{S_CNT} offen sc1\ns_waitcnt vmcnt(0)")
    a(mfma32(S0, KF, QF, None)); a.nop(12)
    for l in maxtree(S0, 8, init=True): a(l)
    a(f"s_add_u32 s{S_CNT}, s{S_CNT}, 2048\ns_cmp_lt_u32 s{S_CNT}, {WS_KV + 64*2048}\ns_cbranch_scc1 L_fb1")
    setC(8, 0.0)
    for i in range(16): a(f"v_mov_b32 v{OO+i}, 0")
    a(f"s_mov_b32 s{S_CNT}, {WS_KV}")
    a.label("L_fb2")
    a(f"buffer_load_dwordx4 {vr(KF,4)}, v{V_L16}, {sr(R_WS,4)}, s{S_CNT} offen sc1")
    a(f"s_mov_b64 exec, {sr(S_VM,2)}")
    a(f"buffer_load_dwordx4 {vr(VF,4)}, v10, {sr(R_WS,4)}, s{S_CNT} offen sc1")
    a(f"buffer_load_dwordx4 {vr(VF+4,4)}, v10, {sr(R_WS,4)}, s{S_CNT} offen offset:512 sc1")
    a("s_mov_b64 exec, -1\ns_waitcnt vmcnt(0)")
    a(mfma32(S0, KF, QF, CC)); a.nop(12)
    for i in range(16): a(f"v_exp_f32 v{S0+i}, v{S0+i}")
    a.nop(2)
    a(smf(OO, VF, S0)); a(smf(OO, VF + 4, S0 + 8))
    a(f"s_add_u32 s{S_CNT}, s{S_CNT}, 2048\ns_cmp_lt_u32 s{S_CNT}, {WS_KV + 64*2048}\ns_cbranch_scc1 L_fb2")
    a.nop(12)
    a(f"v_rcp_f32 v10, v{OO+8}\ns_nop 0\nv_mov_b32 v11, v10")
    normalize()
    for i in range(4): a(f"v_min_u32 v{12+i}, -2, v{12+i}")
    a(f"s_cmp_ge_u32 s{S_W}, 4\ns_cbranch_scc1 L_ostB\ns_branch L_ostA")
    a.label("L_code_end")
    return a

HEADER = open(f"cdna_kernels/{NAME}.s.ref").read().split("; Override launch")[0]
def wrap(a):
    s = HEADER + """; One persistent launch, one 8-wave workgroup per CU (all 256 are resident: 160 KiB LDS each). Generated by the author's script.
;  1. K/V rows, LayerNorm statistics and column sums of W are shared out over the workgroups, published in d_ws, arrival counted in d_debug.
;  2. [w_gate | w_up | w_q] projection on raw x, 128 x 256 tile; LayerNorm applied in the epilogue; h and q go to d_ws.
;  3. MQA attention with the down projection interleaved; 4. o exchange, w_o projection, gate, residual.
; Hand-offs use write-through stores and L1-bypassing loads; flags and 'not yet written' patterns are initialised inside the launch.
""" + "; @launch grid=(256,1,1) block=(512,1,1) lds=163840\n"
    s += f""".amdgcn_target "amdgcn-amd-amdhsa--gfx950"
.text
.globl {NAME}_kernel
.p2align 8
.type {NAME}_kernel,@function
{NAME}_kernel:
"""
    s += a.text()
    s += f""".section .rodata,"a"
.p2align 6
.amdhsa_kernel {NAME}_kernel
  .amdhsa_next_free_vgpr 256
  .amdhsa_next_free_sgpr 102
  .amdhsa_accum_offset 256
  .amdhsa_group_segment_fixed_size 0
  .amdhsa_kernarg_size 96
  .amdhsa_user_sgpr_count 2
  .amdhsa_user_sgpr_kernarg_segment_ptr 1
  .amdhsa_system_sgpr_workgroup_id_x 1
.end_amdhsa_kernel
"""
    return s

if __name__ == "__main__":
    cfg = Cfg()
    out = sys.argv[1]
    for kv in sys.argv[2:]:
        k, v = kv.split("=")
        setattr(cfg, k, eval(v))
    g0 = gen
    def gen(cfg):
        a = g0(cfg)
        if 'E' in cfg.ab or 'S' in cfg.ab:
            n = a.lines.index("L_qt:")
            for i in range(n):
                if a.lines[i].startswith("buffer_store") or ('E' in cfg.ab and a.lines[i].startswith("buffer_")): a.lines[i] = "s_nop 0"
            h = a.lines.index("L_helper:")
            k = 0
            for i in range(h, len(a.lines)):
                if a.lines[i].startswith("buffer_store") and k < 3:
                    a.lines[i] = f"buffer_load_dword v9, off, {sr(R_X,4)}, 0"; k += 1
        if cfg.jitter:
            import random
            rnd = random.Random(cfg.jitter)
            out_ = []; k = 0; started = False
            for i, l in enumerate(a.lines):
                if l.startswith("s_cbranch_scc1 L_helper"): started = True
                if started and (l == "s_barrier" or ("sc1" in l and rnd.random() < 0.3)) and rnd.random() < 0.5:
                    k += 1
                    out_ += ["s_cselect_b32 s101, 1, 0", f"s_lshl_b32 s100, s2, 3", f"s_add_u32 s100, s100, s{S_W}" if rnd.random() < 0.5 else "s_nop 0",
                             f"s_mul_i32 s100, s100, {rnd.randrange(1, 1 << 30) | 1}", "s_lshr_b32 s100, s100, 28", f"s_cmp_lt_u32 s100, {rnd.choice([1, 2, 4])}",
                             f"s_cbranch_scc0 L_jit{k}", f"s_sleep {rnd.choice([5, 20, 60, 120])}", f"L_jit{k}:", "s_cmp_eq_u32 s101, 1"]
                out_.append(l)
            a.lines = out_
        return a
    a = gen(cfg)
    if cfg.pages:
        import subprocess, re
        open("_p1.s", "w").write(wrap(a))
        subprocess.run(["clang", "-x", "assembler", "-target", "amdgcn-amd-amdhsa", "-mcpu=gfx950", "-c", "_p1.s", "-o", "_p1.o"], check=True)
        t = subprocess.run(["llvm-objdump", "-t", "_p1.o"], capture_output=True, text=True).stdout
        pts = sorted((int(m.group(1), 16), m.group(2), int(m.group(3))) for m in re.finditer(r"^([0-9a-f]+) .* L_brk_(\w)_(\d+)$", t, re.M))
        brks = {}; start = -0x300
        for (ad, k, i), (nx, _, _) in zip(pts, pts[1:]):
            if nx - start > 4096 - 112:
                brks[i] = k; start = ad
        cfg.brks = brks
        a = gen(cfg)
    else:
        cfg.brks = {}
        a = gen(cfg)
    errs = check(a.lines)
    for e in errs: print("HAZARD need %d have %d:\n   %s\n   %s" % (e[2], e[3], e[0], e[1]))
    open(out, "w").write(wrap(a))
    print("wrote", out, len(a.lines), "lines", len(errs), "hazards")
```

```python
import sys, math
from asmlib import Asm, vr, sr, f2u, check

NAME = "recurrent_scan__grouped_kv_mqa__glu_gated_geglu__prompt"

class Cfg:
    stamps = False
    stop = None
    force_fb = False
    shift = 101.0
    upd = (5,)
    brks = None
    pages = True
    touch = True
    far = ('L_attA', 'L_attB')
    odelay = 0
    xmap = 0
    krot = 8
    n_ga = 0
    pgath = False
    tprio = 1
    oord = (0, 1, 4, 5, 2, 3, 6, 7)
    oearly = 0
    sfl = ('sc1', 'sc1')
    hfl = 'sc1 nt'
    t_sb = 4
    e7 = 0
    itr = ()
    qsl = 2
    p0 = (4, 6)
    cs_in = False
    jitter = 0
    t_out = 0
    cs_late = False
    n_cs0 = 2
    n_csb = 4
    wfix = False
    stub = 's_nop 0\n'
    updm = 1
    updl = True
    cf = ('', '', '')
    nodot = False
    nodma = False
    nord = False
    sizes = [8, 8, 7] + [6]*6 + [5]
    ilen = 6
    g_init = 2
    t_pf = -1
    t_wo = (7, 8, 9, 10, 11, 12, 13, 15)
    t_wd0 = (15, 15, 16, 17)
    t_poll = 16
    bmid = 2
    lh = (1, 2, 3, 3, 4, 5, 6, 6)
    mb = (2, 3, 4, 5, 5, 6, 7, 7)
    dpos = (1, 1, 2, 2, 3, 4)
    hpos = (4, 5, 5, 6)
    hwait = {0: 0, 1: 3}
    t_h0 = (19, 19, 20, 20)
    t_chk = 19
    pbar = 1
    n_csa = 4
    lead0 = 10
    oflag = 'sc1'
    n_wo63 = 6
    nt = ''
    t_code = (7, 43)
    ofast = 0
    olate = 1
    yfirst = True
    n_gb = 1
    n_b0 = 0
    oswap = False
    t_tr = 30
    n_gp = 5
    i_q = 5
    i_qb = 2
    n_poll = 0
    e6 = 0
    pf_first = True
    bp = 0
    g_h = 29
    c_st = (-2, 0)
    c_q = (2, 99, 4, 0)
    gpos = 0
    g_tr = 4
    mord = 0
    g_early = True
    mswap = False
    c_arr = 1
    lead = [8, 10, 12, 9, 12, 12]
    n_pre = (2, 4)
    n_fin = (7, 6)
    g_cs = (3, 4, 5, 6)
    g_csc = 9
    bprio = 3
    st_rate = 0.5
    t_flag = 9
    t_kv2 = 6
    m16 = False
    pp = 0
    pos = [(2, 6, 12), (2, 6, 10, 14), (1, 4, 7, 10, 13)]
    pa = 4
    pv = (1, 1)
    ab = ''
    pad = None

WS_KV, WS_ST, WS_FL, WS_CS, WS_O, WS_H, WS_DBG, WS_Q = 0, 0x80000, 0x28000, 0x40000, 0x100000, 0x400000, 0xC00000, 0xE00000
WS_SIZE = 0x1000000
L_X, L_W, L_R = 0, 49152, 147456
L_KV, L_WD, L_WO = 0, 65536, 98304
P_X, P_WQ, P_WK, P_WV, P_WO, P_WG, P_WU, P_WD, P_OUT, P_DBG, P_WS = 4, 6, 8, 10, 12, 16, 18, 20, 22, 24, 26
R_X, R_WKV, R_WD, R_WO, R_OUT, R_DBG, R_WS = 28, 32, 36, 40, 44, 48, 52
S_W, S_RB, S_CB, S_RT64, S_CT8 = 56, 57, 58, 59, 60
S_T16 = 61
S_VM = 62
S_XOFF = 64
S_WOFF = 65
S_HW = 66
S_ONES = 67
S_T0, S_T1, S_T2, S_T3 = 68, 69, 70, 71
S_OST = 72
S_FLG = 73
S_HST = 74
S_KQ, S_RT = 75, 76
S_WDO = 77
S_HLD = 78
S_W4K = 79
S_W2K = 80
S_SPIN = 81
S_WOO = 82
S_OLD = 83
S_EX = 84
S_TS = 86
S_CNT = 88
S_WSTEP = 89
S_TS2 = 90
S_RET = 0
R_W, R_CW = 92, 96
S_H4K = 3
S_HSB = 14
S_M0W = 15
SPIN_MAX = 1 << 18

V_LANE = 1
V_STAMP = 255
V_L16, V_KA, V_WDD, V_VA, V_DA, V_PO, V_FO, V_XR, QF = 208, 209, 210, 211, 212, 214, 215, 216, 220
V_GA = 0

def mfma32(d, a, b, c):
    cs = "0" if c is None else vr(c, 16)
    return f"v_mfma_f32_32x32x16_bf16 {vr(d,16)}, {vr(a,4)}, {vr(b,4)}, {cs}"
V_IDX = 48
def smf(d, a, b):
    return f"v_smfmac_f32_32x32x32_bf16 {vr(d,16)}, {vr(a,4)}, {vr(b,8)}, v{V_IDX}"
def mfma16(d, a, b, c):
    cs = "0" if c is None else vr(c, 4)
    return f"v_mfma_f32_16x16x32_bf16 {vr(d,4)}, {vr(a,4)}, {vr(b,4)}, {cs}"

def gen(cfg):
    a = Asm()
    nst = [0]
    def stamp(final=False, name=None):
        if not cfg.stamps: return
        i = nst[0]; nst[0] += 1
        if cfg.stamps in (8, 9, 10, 11, 12) and i and not final: return
        if cfg.stamps == 7:
            if isinstance(name, int): i = name
            elif final: i = 9
            elif name == "b0": i = 7
            elif name == "g1": i = 8
            elif i: return
        elif isinstance(name, int):
            nst[0] -= 1; return
        if cfg.stamps == 5:
            marks = {"b0": 2, "g1": 3, "att0": 4, "att1": 5}
            if final: i = 1
            elif name in marks: i = marks[name]
            elif i: return
        a(f"s_memrealtime {sr(S_TS,2)}\ns_memtime {sr(S_TS2,2)}\ns_waitcnt lgkmcnt(0)\nv_writelane_b32 v{V_STAMP}, s{S_TS}, {i}\nv_writelane_b32 v{V_STAMP}, s{S_TS2}, {32+i}")
    nbrk = [0]
    def brk(kind):
        i = nbrk[0]; nbrk[0] += 1
        if cfg.brks is None: a.label(f"L_brk_{kind}_{i}")
        elif i in cfg.brks:
            a(f"s_branch L_pg{i}\n.p2align 12\nL_stub{i}:\n" + cfg.stub + f"s_setpc_b64 {sr(S_RET,2)}\nL_pg{i}:")
    FAR = {"L_qt": "e", "L_joinA": "e", "L_attA": "a", "L_attB": "a", "L_fin2": "a"}
    def far(label, fall=False):
        if label in cfg.far:
            if fall: a(f"s_branch {label}")
            a(f".p2align 6\nL_stub{label}:\ns_nop 0\ns_setpc_b64 {sr(S_RET,2)}")
        a.label(label)
    def touch(kinds, first, n, maxn):
        ids = [] if cfg.brks is None else [i for i, k in cfg.brks.items() if k in kinds] + [l for l, k in FAR.items() if k in kinds and l in cfg.far]
        assert len(ids) <= maxn
        for j in range(maxn):
            if j < len(ids) and cfg.touch: a(f"s_cmp_eq_u32 s{S_HW}, {first + j % n}\ns_cbranch_scc0 L_nt{ids[j]}\ns_call_b64 {sr(S_RET,2)}, L_stub{ids[j]}\nL_nt{ids[j]}:")
            elif cfg.brks is None: a("s_nop 0\ns_nop 0\ns_nop 0")
    ncs = [0]
    CSR = [4, 6, 8, 10, 12] + list(range(16, 28, 2)) + [32, 34, 92, 94, 96, 98, 48]
    def cstamp(mode=8):
        if cfg.stamps != mode: return
        a(f"s_memtime {sr(CSR[ncs[0]], 2)}"); ncs[0] += 1
    def c12(k):
        if cfg.stamps == 12: a(f"s_memtime {sr([32, 34, 92, 94, 96, 98][k], 2)}\ns_waitcnt lgkmcnt(0)")
    def pad(pt):
        if not cfg.pad or cfg.pad[0] != pt: return
        if len(cfg.pad) > 2:
            inv = cfg.pad[2] == 2
            a(f"s_and_b32 s{S_T0}, s{S_TS}, 0x7fffffff")
            if inv: a(f"s_not_b32 s{S_T0}, s{S_T0}")
            a(f"v_mov_b32 v2, s{S_T0}\ns_mov_b64 exec, 1\nbuffer_atomic_umax v2, off, {sr(R_DBG,4)}, 0 offset:4 sc1\ns_mov_b64 exec, -1")
            a(f"L_pad0:\ns_memrealtime {sr(S_TS2,2)}\ns_waitcnt lgkmcnt(0)\ns_sub_u32 s{S_TS2}, s{S_TS2}, s{S_TS}\ns_cmp_lt_u32 s{S_TS2}, {int(cfg.pad[1]*100) - 1500}\ns_cbranch_scc1 L_pad0")
            a(f"buffer_load_dword v2, off, {sr(R_DBG,4)}, 0 offset:4 sc1\ns_waitcnt vmcnt(0)\nv_readfirstlane_b32 s{S_T0}, v2\ns_nop 3")
            if inv: a(f"s_not_b32 s{S_T0}, s{S_T0}")
            a(f"s_and_b32 s{S_TS}, s{S_TS}, 0x80000000\ns_or_b32 s{S_TS}, s{S_TS}, s{S_T0}")
        a(f"L_pad{len(a.lines)}:\ns_memrealtime {sr(S_TS2,2)}\ns_waitcnt lgkmcnt(0)\ns_sub_u32 s{S_TS2}, s{S_TS2}, s{S_TS}\ns_cmp_lt_u32 s{S_TS2}, {int(cfg.pad[1]*100)}\ns_cbranch_scc1 L_pad{len(a.lines)}")
    def srd(r, p, size):
        a(f"s_mov_b32 s{r}, s{p}\ns_and_b32 s{r+1}, s{p+1}, 0xffff\ns_mov_b32 s{r+2}, {hex(size)}\ns_mov_b32 s{r+3}, 0x20000")

    a(f"s_cmp_ge_u32 s2, 256\ns_cbranch_scc1 L_end")
    if cfg.pad: a(f"s_memrealtime {sr(S_TS,2)}")
    a(f"s_load_dwordx16 s[4:19], s[0:1], 0\ns_load_dwordx8 s[20:27], s[0:1], 64")
    if cfg.stamps:
        a(f"v_mov_b32 v{V_STAMP}, 0")
    a(f"v_lshrrev_b32 v2, 6, v0\nv_and_b32 v{V_LANE}, 63, v0")
    a(f"s_getpc_b64 {sr(S_EX,2)}")
    a.label("L_pc")
    a(f"""
    v_readfirstlane_b32 s{S_W}, v2
    s_and_b32 s{S_T0}, s2, 0xf8
    v_add_u32 v2, s{S_T0}, v2
    v_lshl_add_u32 v2, v2, 1, v{V_LANE}
    v_lshlrev_b32 v252, 7, v2
    v_min_u32 v252, L_code_end-L_pc-4, v252
    v_mov_b32 v253, 0
    v_lshl_add_u64 v[252:253], v[252:253], 0, {sr(S_EX,2)}
    s_mov_b64 exec, 3
    global_load_dword v9, v[252:253], off
    s_mov_b64 exec, -1
    """)
    a(f"""
    s_and_b32 s{S_T0}, s2, 7
    s_lshr_b32 s{S_T1}, s2, 3
    s_and_b32 s{S_CT8}, s{S_T1}, 7
    """)
    if cfg.xmap == 1:
        a(f"""
        s_and_b32 s{S_RB}, s{S_T1}, 15
        s_lshr_b32 s{S_T2}, s2, 7
        s_lshl_b32 s{S_CB}, s{S_T0}, 1
        s_add_u32 s{S_CB}, s{S_CB}, s{S_T2}
        s_lshr_b32 s{S_T1}, s{S_T1}, 3
        """)
    elif cfg.xmap == 2:
        a(f"""
        s_and_b32 s{S_T2}, s{S_T0}, 3
        s_lshl_b32 s{S_T2}, s{S_T2}, 2
        s_and_b32 s{S_RB}, s{S_T1}, 3
        s_add_u32 s{S_RB}, s{S_RB}, s{S_T2}
        s_and_b32 s{S_T2}, s{S_T0}, 4
        s_lshl_b32 s{S_T2}, s{S_T2}, 1
        s_lshr_b32 s{S_CB}, s{S_T1}, 2
        s_add_u32 s{S_CB}, s{S_CB}, s{S_T2}
        s_lshr_b32 s{S_T1}, s{S_T1}, 3
        """)
    else:
        a(f"""
        s_and_b32 s{S_T2}, s{S_T0}, 1
        s_lshl_b32 s{S_T2}, s{S_T2}, 3
        s_add_u32 s{S_RB}, s{S_T2}, s{S_CT8}
        s_lshr_b32 s{S_T1}, s{S_T1}, 3
        s_lshr_b32 s{S_T2}, s{S_T0}, 1
        s_lshl_b32 s{S_T2}, s{S_T2}, 2
        s_add_u32 s{S_CB}, s{S_T2}, s{S_T1}
        """)
    a(f"""
    s_lshl_b32 s{S_T2}, s{S_T0}, 2
    s_add_u32 s{S_RT64}, s{S_T2}, s{S_T1}
    s_and_b32 s{S_HW}, s{S_W}, 3
    s_lshl_b32 s{S_H4K}, s{S_HW}, 12
    v_lshlrev_b32 v{V_L16}, 4, v{V_LANE}
    s_mov_b32 s{R_X+2}, 0x200000
    s_mov_b32 s{R_X+3}, 0x20000
    s_cmp_ge_u32 s{S_W}, 4
    s_cbranch_scc1 L_helper
    """)

    sizes = cfg.sizes
    assert sum(sizes) == 64
    starts = [sum(sizes[:i]) for i in range(len(sizes))]
    S0, S1, PP, OO, CC, KF, VF = 16, 32, 48, 64, 80, 100, 108
    YY, HF, DF = 128, 160, 192
    HO = 160
    V_OA = 62
    WOF = [50, 54, 58, 96, 124] + list(range(224, 252, 4)) + [176, 180, 184, 188]
    wo_rd = [f"ds_read_b64_tr_b16 {vr(WOF[2*j+ct] + 2*t,2)}, v{V_OA+ct} offset:{cfg.oord[j]*2048 + t*512}" for j in range(8) for ct in range(2) for t in range(2)]
    def kv_off(t):
        c = max(i for i in range(len(starts)) if starts[i] <= t)
        return ((c + 1) % 3) * 16384 + (t - starts[c]) * 2048
    qload = f"buffer_load_dwordx4 {vr(QF,4)}, v{V_L16}, {sr(R_WS,4)}, s{S_T2} offen sc1"

    XS = [2, 0, 1, 2, 0, 1, 2, 0]
    L_PX = L_X + XS[2]*16384
    def setup_ids():
        a(f"""
        s_lshr_b32 s{S_KQ}, s{S_W}, 1
        s_and_b32 s{S_RT}, s{S_W}, 1
        s_lshl_b32 s{S_T2}, s{S_RT64}, 1
        s_add_u32 s{S_T2}, s{S_T2}, s{S_RT}
        s_lshl_b32 s{S_T0}, s{S_T2}, 3
        s_add_u32 s{S_T0}, s{S_T0}, s{S_CT8}
        s_lshl_b32 s{S_T0}, s{S_T0}, 2
        s_add_u32 s{S_T0}, s{S_T0}, s{S_KQ}
        s_lshl_b32 s{S_T0}, s{S_T0}, 10
        s_add_u32 s{S_OST}, s{S_T0}, {WS_O}
        s_lshl_b32 s{S_T0}, s2, 7
        s_lshl_b32 s{S_T1}, s{S_W}, 2
        s_add_u32 s{S_T0}, s{S_T0}, s{S_T1}
        s_add_u32 s{S_FLG}, s{S_T0}, {WS_FL}
        """)
    def common_setup():
        srd(R_WD, P_WD, 1792 * 1024)
        srd(R_WO, P_WO, 512 * 1024)
        srd(R_OUT, P_OUT, 0x200000)
        a(f"""
        s_lshl_b32 s{S_W4K}, s{S_W}, 12
        s_lshl_b32 s{S_W2K}, s{S_W}, 11
        s_mov_b32 s{S_VM}, 0xffff
        s_mov_b32 s{S_VM+1}, 0xffff
        s_lshl_b32 s{S_T2}, s{S_RT64}, 1
        s_add_u32 s{S_T2}, s{S_T2}, s{S_RT}
        s_mul_i32 s{S_T0}, s{S_KQ}, {448*1024}
        s_lshl_b32 s{S_T1}, s{S_RT}, 15
        s_add_u32 s{S_T0}, s{S_T0}, s{S_T1}
        s_lshl_b32 s{S_T1}, s{S_CT8}, 7
        s_add_u32 s{S_WDO}, s{S_T0}, s{S_T1}
        s_lshl_b32 s{S_T0}, s{S_W}, 15
        s_add_u32 s{S_WOO}, s{S_T0}, s{S_T1}
        s_and_b32 s{S_T0}, s{S_CT8}, {1 if cfg.oswap else 0}
        s_lshl_b32 s{S_T16}, s{S_T0}, 18
        s_add_u32 s{S_WOO}, s{S_WOO}, s{S_T16}
        s_mul_i32 s{S_T0}, s{S_T2}, 112
        s_mul_i32 s{S_T3}, s{S_KQ}, 28
        s_add_u32 s{S_T0}, s{S_T0}, s{S_T3}
        s_lshl_b32 s{S_T0}, s{S_T0}, 10
        s_add_u32 s{S_HLD}, s{S_T0}, {WS_H}
        s_lshl_b32 s{S_T0}, s{S_T2}, 15
        s_lshl_b32 s{S_T3}, s{S_KQ}, 13
        s_add_u32 s{S_T3}, s{S_T0}, s{S_T3}
        s_lshr_b32 s{S_T0}, s{S_T16}, 4
        s_xor_b32 s{S_OLD}, s{S_T3}, s{S_T0}
        s_add_u32 s{S_OLD}, s{S_OLD}, {WS_O}
        s_add_u32 s{S_T0}, s{S_T3}, s{S_T1}
        v_lshrrev_b32 v3, 5, v{V_LANE}
        v_bfe_u32 v5, v{V_LANE}, 3, 1
        v_lshl_add_u32 v2, v3, 1, v5
        v_bfe_u32 v7, v{V_LANE}, 4, 1
        v_lshl_add_u32 v4, v7, 2, v2
        v_and_b32 v6, 7, v{V_LANE}
        v_lshlrev_b32 v8, 4, v6
        v_lshl_add_u32 v4, v4, 10, v8
        v_add_u32 v{V_FO}, s{S_T0}, v4
        v_lshlrev_b32 v2, 8, v2
        v_lshl_add_u32 v2, v7, 7, v2
        v_lshl_add_u32 v2, v5, 4, v2
        v_and_b32 v4, 3, v6
        v_lshl_add_u32 v2, v4, 5, v2
        v_lshrrev_b32 v4, 2, v6
        v_lshl_add_u32 v2, v4, 12, v2
        s_lshl_b32 s{S_T0}, s{S_RT}, 13
        s_lshl_b32 s{S_T1}, s{S_KQ}, 10
        s_add_u32 s{S_T0}, s{S_T0}, s{S_T1}
        v_add_u32 v{V_GA}, s{S_T0}, v2
        v_add_u32 v{V_KA}, {L_KV}, v{V_L16}
        v_and_b32 v2, 15, v{V_LANE}
        v_lshl_add_u32 v2, v3, 4, v2
        v_lshlrev_b32 v2, 4, v2
        v_add_u32 v{V_VA}, {L_KV + 1024}, v2
        v_lshrrev_b32 v5, 3, v{V_LANE}
        v_and_b32 v6, 7, v{V_LANE}
        v_bfe_u32 v7, v{V_LANE}, 4, 1
        v_lshlrev_b32 v8, 2, v7
        v_xor_b32 v6, v6, v8
        v_lshlrev_b32 v6, 4, v6
        v_lshl_add_u32 v{V_WDD}, v5, 10, v6
        v_and_b32 v2, 1, v{V_LANE}
        v_bfe_u32 v4, v{V_LANE}, 1, 1
        v_lshl_add_u32 v2, v2, 1, v4
        v_bfe_u32 v5, v{V_LANE}, 2, 2
        v_lshl_add_u32 v4, v3, 3, v5
        v_lshlrev_b32 v4, 7, v4
        v_and_b32 v6, 2, v5
        v_xor_b32 v6, v6, v7
        v_lshl_add_u32 v6, v6, 5, v4
        v_and_b32 v8, 3, v{V_LANE}
        v_lshl_add_u32 v6, v8, 3, v6
        v_lshl_add_u32 v4, v2, 3, v4
        s_lshl_b32 s{S_T0}, s{S_KQ}, 13
        s_add_u32 s{S_T0}, s{S_T0}, {L_WD}
        v_add_u32 v{V_DA}, s{S_T0}, v6
        v_xor_b32 v{V_DA+1}, 64, v{V_DA}
        """)
        a(f"""
        s_lshr_b32 s{S_T0}, s{S_RT64}, 1
        s_lshl_b32 s{S_T0}, s{S_T0}, 3
        s_lshl_b32 s{S_T1}, s{S_KQ}, 1
        s_add_u32 s{S_T0}, s{S_T0}, s{S_T1}
        s_lshl_b32 s{S_T0}, s{S_T0}, 7
        v_and_b32 v2, 3, v{V_LANE}
        v_lshlrev_b32 v6, 2, v2
        v_and_b32 v8, 1, v5
        v_lshl_add_u32 v6, v8, 14, v6
        v_lshrrev_b32 v8, 1, v5
        v_lshl_add_u32 v6, v8, 7, v6
        """ if cfg.xmap == 1 else f"""
        s_lshr_b32 s{S_T0}, s{S_RT64}, 3
        s_and_b32 s{S_T1}, s{S_KQ}, 2
        s_lshl_b32 s{S_T1}, s{S_T1}, 1
        s_add_u32 s{S_T0}, s{S_T0}, s{S_T1}
        s_bfe_u32 s{S_T2}, s{S_RT64}, 0x20001
        s_lshl_b32 s{S_T2}, s{S_T2}, 3
        s_add_u32 s{S_T0}, s{S_T0}, s{S_T2}
        s_and_b32 s{S_T1}, s{S_KQ}, 1
        s_lshl_b32 s{S_T1}, s{S_T1}, 7
        s_add_u32 s{S_T0}, s{S_T0}, s{S_T1}
        s_lshl_b32 s{S_T0}, s{S_T0}, 7
        s_lshl_b32 s{S_T1}, s{S_KQ}, 1
        v_and_b32 v2, 3, v{V_LANE}
        v_lshlrev_b32 v6, 2, v2
        v_lshl_add_u32 v6, v5, 12, v6
        """ if cfg.xmap == 2 else f"""
        s_lshr_b32 s{S_T0}, s{S_RT64}, 4
        s_lshl_b32 s{S_T1}, s{S_KQ}, 1
        s_add_u32 s{S_T0}, s{S_T0}, s{S_T1}
        s_bfe_u32 s{S_T2}, s{S_RT64}, 0x30001
        s_lshl_b32 s{S_T2}, s{S_T2}, 3
        s_add_u32 s{S_T0}, s{S_T0}, s{S_T2}
        s_lshl_b32 s{S_T0}, s{S_T0}, 7
        v_and_b32 v2, 3, v{V_LANE}
        v_lshlrev_b32 v6, 2, v2
        v_lshl_add_u32 v6, v5, 13, v6
        """)
        a(f"""
        v_add_u32 v6, s{S_T0}, v6
        s_lshr_b32 s{S_T0}, s{S_T16}, 16
        s_xor_b32 s{S_T1}, s{S_T1}, s{S_T0}
        s_and_b32 s{S_T0}, s2, 0xc7
        s_lshl_b32 s{S_T1}, s{S_T1}, 3
        s_add_u32 s{S_T0}, s{S_T0}, s{S_T1}
        s_lshl_b32 s{S_T0}, s{S_T0}, 7
        s_lshl_b32 s{S_T1}, s{S_RT}, 2
        s_add_u32 s{S_T0}, s{S_T0}, s{S_T1}
        v_and_b32 v8, 1, v5
        v_lshlrev_b32 v8, 10, v8
        v_lshl_add_u32 v8, v2, 3, v8
        v_cmp_gt_u32 vcc, 16, v{V_LANE}
        v_add_u32 v8, s{S_T0}, v8
        s_nop 0
        v_cndmask_b32 v{V_PO}, v8, v6, vcc
        """)

    def img_params(simg, sstride, soff):
        a(f"""
        s_lshr_b32 s{S_T0}, s{S_CB}, 2
        s_and_b32 s{S_T1}, s{S_CB}, 3
        s_mul_i32 s{soff}, s{S_T0}, 896
        s_lshl_b32 s{S_T2}, s{S_T1}, 8
        s_add_u32 s{soff}, s{soff}, s{S_T2}
        s_lshr_b32 s{S_T2}, s{simg}, 1
        s_lshl_b32 s{S_T1}, s{S_T1}, 1
        s_add_u32 s{S_T1}, s{S_T1}, s{S_T2}
        s_lshl_b32 s{S_T2}, s{S_T2}, 7
        s_add_u32 s{soff}, s{soff}, s{S_T2}
        s_lshl_b32 s{S_T0}, s{S_T0}, 1
        s_and_b32 s{S_T2}, s{simg}, 1
        s_add_u32 s{S_T0}, s{S_T0}, s{S_T2}
        s_lshl_b32 s{S_T0}, s{S_T0}, 7
        s_movk_i32 s{sstride}, 3584
        s_cmp_eq_u32 s{S_T1}, 7
        s_cselect_b32 s{soff}, s{S_T0}, s{soff}
        s_cselect_b32 s{sstride}, 1024, s{sstride}
        """)
    def img_srd(r, sstride):
        a(f"""
        s_cmp_eq_u32 s{S_T2}, 0
        s_cselect_b32 s{r}, s{P_WG}, s{P_WU}
        s_cselect_b32 s{r+1}, s{P_WG+1}, s{P_WU+1}
        s_cmp_eq_u32 s{S_T1}, 7
        s_cselect_b32 s{r}, s{P_WQ}, s{r}
        s_cselect_b32 s{r+1}, s{P_WQ+1}, s{r+1}
        s_and_b32 s{r+1}, s{r+1}, 0xffff
        s_lshl_b32 s{r+2}, s{sstride}, 9
        s_mov_b32 s{r+3}, 0x20000
        """)

    ACC, XF, WF, V_XA, V_WR = 16, 144, 176, 248, 250
    RWP, RWQ, RA = 216, 232, 2
    L_RA = L_W + 8192
    def acc(ti, rt): return ACC + 64*ti + 16*rt
    KG = 2.0 * math.sqrt(2.0 / math.pi) * math.log2(math.e)
    a('; ==== waves 0..3, start: K or V tile of 16 rows (LayerNorm folded in), row statistics, share of the W column sums ====')
    assert cfg.krot == 8 and cfg.g_init in (-1, 0, 2)
    CL, CSUM = 16, 40
    a(f"""
    v_and_b32 v5, 15, v{V_LANE}
    v_lshrrev_b32 v6, 4, v{V_LANE}
    v_lshrrev_b32 v7, 3, v{V_LANE}
    v_and_b32 v4, 7, v{V_LANE}
    s_lshl_b32 s{S_T16}, s{S_RB}, 3
    s_lshr_b32 s{S_T2}, s{S_CB}, 1
    s_add_u32 s{S_T16}, s{S_T16}, s{S_T2}
    s_cmp_lg_u32 s{S_HW}, 0
    s_cbranch_scc1 L_csld
    v_xor_b32 v2, v6, v4
    v_lshlrev_b32 v2, 4, v2
    v_lshl_add_u32 v132, v7, 10, v2
    v_xor_b32 v133, 64, v132
    v_add_u32 v133, {8192-1024}, v133
    s_lshl_b32 s{S_XOFF}, s{S_T16}, 14
    s_mov_b32 s{R_WKV+2}, 0x4000
    s_mov_b32 s{R_WKV+3}, 0x20000
    s_mov_b32 m0, {L_PX}
    s_and_b32 s{S_T3}, s{S_CB}, 1
    s_waitcnt lgkmcnt(0)
    """)
    stamp()
    a(f"s_mov_b32 s{R_X}, s{P_X}\ns_and_b32 s{R_X+1}, s{P_X+1}, 0xffff")
    for gq in range(4):
        for kb in (2*gq, 2*gq + 1):
            if kb: a(f"s_mov_b32 m0, {L_PX + 2048*kb}\ns_add_u32 s{S_XOFF}, s{S_XOFF}, 128")
            a(f"buffer_load_dwordx4 v132, {sr(R_X,4)}, s{S_XOFF} offen lds\nbuffer_load_dwordx4 v133, {sr(R_X,4)}, s{S_XOFF} offen offset:1024 lds")
        if gq == 0:
            a(f"s_cmp_eq_u32 s{S_T3}, 0\ns_cselect_b32 s{R_WKV}, s{P_WK}, s{P_WV}\ns_cselect_b32 s{R_WKV+1}, s{P_WK+1}, s{P_WV+1}\ns_and_b32 s{R_WKV+1}, s{R_WKV+1}, 0xffff")
        a(f"s_mov_b32 m0, {L_R + 4096*gq}\ns_movk_i32 s{S_T0}, {4096*gq}")
        for e in range(4): a(f"buffer_load_dwordx4 v{V_L16}, {sr(R_WKV,4)}, s{S_T0} offen offset:{1024*e} lds")
        if cfg.p0 and gq + 1 == cfg.p0[0]:
            stamp(name=1); a("s_barrier"); stamp(name=2)
    n_ool = len(a.lines)
    if cfg.cs_in: a("s_branch L_ld_done")
    a.label("L_csld")
    a(f"s_and_b32 s{S_CNT}, s{S_RB}, 3")
    img_params(S_CNT, S_WSTEP, S_WOFF)
    a(f"""
    s_and_b32 s{S_T0}, s{S_RB}, 4
    s_and_b32 s{S_T3}, s{S_RB}, 8
    s_lshl_b32 s{S_T3}, s{S_T3}, 2
    s_add_u32 s{S_T0}, s{S_T0}, s{S_T3}
    s_lshl_b32 s{S_T0}, s{S_T0}, 3
    s_mul_i32 s{S_T0}, s{S_T0}, s{S_WSTEP}
    s_add_u32 s{S_WOFF}, s{S_T0}, s{S_WOFF}
    v_mul_u32_u24 v8, s{S_WSTEP}, v7
    v_lshl_add_u32 v219, v4, 4, v8
    s_waitcnt lgkmcnt(0)
    """)
    nst[0] = 0
    stamp()
    a(f"s_mov_b32 s{R_X}, s{P_X}\ns_and_b32 s{R_X+1}, s{P_X+1}, 0xffff")
    img_srd(R_CW, S_WSTEP)
    a(f"s_lshl_b32 s{S_WSTEP}, s{S_WSTEP}, 3")
    def csload(i):
        t = (f"s_add_u32 s{S_T0}, s{S_HW}, {3*i - 1}\ns_and_b32 s{S_T1}, s{S_T0}, 28\ns_add_u32 s{S_T1}, s{S_T1}, s{S_T0}\ns_mul_i32 s{S_T1}, s{S_T1}, s{S_WSTEP}\ns_add_u32 s{S_T1}, s{S_T1}, s{S_WOFF}\n")
        if i == 5: t += f"s_cmp_gt_u32 s{S_T0}, 15\ns_cselect_b32 s{S_T1}, s{R_CW+2}, s{S_T1}\n"
        return t + f"buffer_load_dwordx4 {vr(CL+4*i,4)}, v219, {sr(R_CW,4)}, s{S_T1} offen"
    for i in range(6):
        a(csload(i))
        if cfg.p0 and i + 1 == cfg.p0[1]:
            stamp(name=1); a("s_barrier"); stamp(name=2)
    if not cfg.cs_in:
        a("s_branch L_ld_done")
        ool = a.lines[n_ool:]; del a.lines[n_ool:]
    a.label("L_ld_done")
    a(f"""
    s_mov_b32 s{S_ONES}, 0x3f803f80
    v_lshlrev_b32 v2, 3, v5
    v_lshl_add_u32 v2, v6, 8, v2
    v_add_u32 v130, {L_R}, v2
    v_lshrrev_b32 v3, 1, v5
    v_xor_b32 v3, v3, v6
    v_lshlrev_b32 v3, 4, v3
    v_lshl_add_u32 v3, v5, 7, v3
    v_mov_b32 v{V_XA}, v3
    v_xor_b32 v{V_XA+1}, 64, v3
    v_lshrrev_b32 v3, 5, v{V_LANE}
    v_and_b32 v7, 1, v6
    v_bfe_u32 v8, v{V_LANE}, 2, 2
    v_lshl_add_u32 v4, v6, 3, v8
    v_lshlrev_b32 v4, 7, v4
    v_and_b32 v2, 3, v{V_LANE}
    v_lshl_add_u32 v4, v2, 3, v4
    v_lshrrev_b32 v8, 1, v8
    v_lshl_add_u32 v8, v7, 1, v8
    v_xor_b32 v8, s{S_HW}, v8
    v_lshl_add_u32 v8, v8, 5, v4
    v_add_u32 v{V_WR}, {L_W}, v8
    v_add_u32 v{V_WR+1}, {L_W + 49152}, v8
    s_lshr_b32 s{S_EX}, s{S_T16}, 1
    s_lshl_b32 s{S_EX}, s{S_EX}, 11
    s_and_b32 s{S_T3}, s{S_T16}, 1
    s_and_b32 s{S_T2}, s{S_CB}, 1
    s_cmp_eq_u32 s{S_T2}, 0
    s_cbranch_scc0 L_pubV
    s_lshl_b32 s{S_T3}, s{S_T3}, 8
    s_add_u32 s{S_EX}, s{S_EX}, s{S_T3}
    v_lshl_add_u32 v2, v3, 5, v5
    s_lshl_b32 s{S_EX+1}, s{S_T16}, 10
    s_add_u32 s{S_EX+1}, s{S_EX+1}, {WS_ST}
    s_branch L_pub
    """)
    a.label("L_pubV")
    a(f"""
    s_lshl_b32 s{S_T3}, s{S_T3}, 9
    s_add_u32 s{S_EX}, s{S_EX}, s{S_T3}
    s_add_u32 s{S_EX}, s{S_EX}, 1024
    v_and_b32 v2, 3, v5
    v_bfe_u32 v4, v5, 2, 1
    v_lshl_add_u32 v2, v4, 3, v2
    v_bfe_u32 v4, v5, 3, 1
    v_lshl_add_u32 v2, v4, 2, v2
    v_lshl_add_u32 v2, v3, 4, v2
    s_mov_b32 s{S_EX+1}, {WS_SIZE}
    """)
    a.label("L_pub")
    a("v_lshlrev_b32 v2, 4, v2\nv_lshl_add_u32 v220, v7, 3, v2")
    def capture(fn):
        n = len(a.lines); fn(); L = a.lines[n:]; del a.lines[n:]; return L
    def part1():
        srd(R_WS, P_WS, WS_SIZE)
        a(f"""
        v_and_b32 v6, 7, v{V_LANE}
        v_lshrrev_b32 v4, 4, v{V_LANE}
        v_lshl_add_u32 v6, v6, 2, v4
        v_bfe_u32 v4, v{V_LANE}, 3, 1
        v_lshl_add_u32 v6, v6, 1, v4
        v_lshlrev_b32 v222, 2, v6
        s_lshl_b32 s{S_T0}, s{S_CB}, 14
        s_lshl_b32 s{S_T1}, s{S_RB}, 10
        s_add_u32 s{S_T0}, s{S_T0}, s{S_T1}
        s_lshl_b32 s{S_T1}, s{S_HW}, 8
        s_add_u32 s{S_T0}, s{S_T0}, s{S_T1}
        s_add_u32 s{S_CNT}, s{S_T0}, {WS_CS}
        """)
    def part2():
        setup_ids()
        for i in range(4): a(f"v_mov_b32 v{12+i}, -1")
        common_setup()
        a(f"""
        v_and_b32 v2, 0xff, v{V_L16}
        v_add_u32 v11, {L_R + 256}, v2
        v_xor_b32 v6, v3, v7
        v_lshl_add_u32 v2, v6, 9, v2
        v_add_u32 v10, {L_R}, v2
        s_lshl_b32 s{S_T0}, s{S_HW}, 11
        v_add_u32 v254, s{S_T0}, v{V_L16}
        s_mul_i32 s{S_T0}, s{S_HW}, 2208
        v_lshl_add_u32 v9, v3, 4, v{V_L16}
        v_add_u32 v9, s{S_T0}, v9
        s_lshr_b32 s{S_T0}, s{S_CB}, 2
        s_and_b32 s{S_T1}, s{S_CB}, 3
        s_mul_i32 s{S_T2}, s{S_RB}, 448
        s_mul_i32 s{S_T3}, s{S_T0}, 28
        s_add_u32 s{S_T2}, s{S_T2}, s{S_T3}
        s_lshl_b32 s{S_T3}, s{S_T1}, 3
        s_add_u32 s{S_T2}, s{S_T2}, s{S_T3}
        s_add_u32 s{S_T2}, s{S_T2}, s{S_HW}
        s_lshl_b32 s{S_T2}, s{S_T2}, 10
        s_add_u32 s{S_HST}, s{S_T2}, {WS_H}
        s_add_u32 s{S_HSB}, s{S_HST}, 4096
        s_lshl_b32 s{S_T2}, s{S_RB}, 7
        s_lshl_b32 s{S_T3}, s{S_T0}, 3
        s_add_u32 s{S_T2}, s{S_T2}, s{S_T3}
        s_add_u32 s{S_T2}, s{S_T2}, s{S_HW}
        s_lshl_b32 s{S_T2}, s{S_T2}, 10
        s_add_u32 s{S_T2}, s{S_T2}, {WS_Q}
        """)
    defer1 = capture(part1)
    defer2 = capture(part2) + [f"s_cmp_eq_u32 s{S_T1}, 3\ns_cselect_b32 s{S_HSB}, s{S_T2}, s{S_HSB}"]
    for l in defer1: a(l)
    defer1.clear()
    a(f"s_cmp_lg_u32 s{S_HW}, 0\ns_cbranch_scc1 L_cs")
    PF, PACC, PCS, PRS, PG, PSQ, PONE, PID, PSQP, PF1 = 16, 80, 84, 88, 92, 96, 100, 104, 106, 107
    for i in range(4): a(f"v_mov_b32 v{PONE+i}, s{S_ONES}")
    a(f"v_mov_b32 v{PF1}, 1.0\nv_mov_b32 v{PSQP}, 0\nv_mov_b32 v{PID}, 0\nv_mov_b32 v{PID+1}, 0\nv_mov_b32 v221, 0")
    a(f"s_mov_b32 s{S_T0}, 0x00100001\ns_mov_b32 s{S_T1}, 0x10000100")
    for r in range(4): a(f"s_lshl_b64 exec, {sr(S_T0,2)}, {r}\nv_mov_b32 v{PID + (r >> 1)}, {hex(0x4780 << (16*(r & 1)))}")
    a("s_mov_b64 exec, -1")
    if not cfg.p0: a("s_barrier")
    stamp(name=3)
    def p_reads(gq):
        f = PF + 32*(gq & 1); L = []
        for s in range(4):
            L.append(f"ds_read_b128 {vr(f+8*s,4)}, v{V_XA + (s & 1)} offset:{L_PX + 4096*gq + 2048*(s >> 1)}")
            L += [f"ds_read_b64_tr_b16 {vr(f+8*s+4+2*t,2)}, v130 offset:{4096*gq + 1024*s + 128*t}" for t in range(2)]
        return L
    a("s_waitcnt vmcnt(24)")
    for l in p_reads(0): a(l)
    for gq in range(4):
        a("s_waitcnt lgkmcnt(0)")
        rd = p_reads(gq + 1) if gq < 3 else []
        k = 0
        for s in range(4):
            x, w = PF + 32*(gq & 1) + 8*s, PF + 32*(gq & 1) + 8*s + 4
            for d, A_, B_ in ((PG, x, x), (PRS, PONE, x), (PCS, w, PONE), (PACC, w, x)):
                a(mfma16(d, A_, B_, None if gq + s == 0 else d))
                if k == 3 and gq < 3:
                    a(f"s_waitcnt vmcnt({16 - 8*gq})")
                    if gq == 2: stamp(); stamp(name=4)
                if k >= 3 and rd: a(rd.pop(0))
                k += 1
    a.nop(4)
    for r in range(4): a(f"s_lshl_b64 exec, {sr(S_T0,2)}, {r}\nv_mov_b32 v{PSQP}, v{PG+r}")
    a(f"""
    s_mov_b64 exec, -1
    v_mul_f32 v{PRS}, {hex(f2u(-1.0/512))}, v{PRS}
    v_mfma_f32_16x16x4_f32 {vr(PSQ,4)}, v{PF1}, v{PSQP}, 0
    """)
    for i in range(4): a(f"v_fmac_f32 v{PACC+i}, v{PRS}, v{PCS+i}")
    a(f"""
    v_cvt_pk_bf16_f32 v12, v{PRS}, v{PRS}
    v_and_b32 v2, 0xffff0000, v12
    v_sub_f32 v2, v{PRS}, v2
    v_cvt_pk_bf16_f32 v12, v{PRS}, v2
    s_and_b32 s{S_T2}, s{S_CB}, 1
    s_cmp_eq_u32 s{S_T2}, 0
    v_mul_f32 v14, {hex(f2u(1.0/512))}, v{PSQ}
    v_fma_f32 v14, -v{PRS}, v{PRS}, v14
    v_max_f32 v14, 0, v14
    v_add_f32 v14, {hex(f2u(1e-5))}, v14
    v_rsq_f32 v3, v14
    s_nop 0
    """)
    for i in range(4): a(f"v_mul_f32 v{PACC+i}, v{PACC+i}, v3")
    a(f"""
    v_cvt_pk_bf16_f32 v216, v{PACC}, v{PACC+1}
    v_cvt_pk_bf16_f32 v217, v{PACC+2}, v{PACC+3}
    s_cbranch_scc0 L_preV
    s_mov_b32 exec_lo, 0
    v_mov_b32 v12, 0
    s_and_b32 s{S_T0}, s{S_T16}, 1
    s_sub_u32 exec_lo, s{S_T0}, 1
    s_mov_b32 exec_hi, exec_lo
    v_swap_b32 v12, v14
    s_mov_b32 exec_lo, 0xffff0000
    s_mov_b32 exec_hi, 0
    v_mul_f32 v12, {hex(f2u(-KG))}, v3
    v_mul_f32 v2, v3, v3
    v_mul_f32 v14, {hex(f2u(0.044715))}, v12
    v_mul_f32 v14, v14, v2
    s_mov_b64 exec, -1
    v_mov_b32 v13, v12
    v_mov_b32 v15, v14
    s_branch L_nofin
    """)
    a.label("L_preV")
    a(f"s_nop 0\nv_mfma_f32_16x16x16_bf16 {vr(PACC,4)}, v[216:217], {vr(PID,2)}, 0")
    a.nop(8)
    a(f"v_cvt_pk_bf16_f32 v216, v{PACC}, v{PACC+1}\nv_cvt_pk_bf16_f32 v217, v{PACC+2}, v{PACC+3}\ns_branch L_nofin")
    n_ool = len(a.lines)
    a.label("L_cs")
    if not cfg.p0: a("s_barrier")
    stamp(name=3)
    touch("g", 1, 3, 4)
    for e in range(6):
        a(f"s_waitcnt vmcnt({5 - e})")
        for i in range(4):
            if e == 0: a(f"v_lshlrev_b32 v{CSUM+2*i}, 16, v{CL+i}\nv_and_b32 v{CSUM+2*i+1}, 0xffff0000, v{CL+i}")
            else: a(f"v_lshlrev_b32 v2, 16, v{CL+4*e+i}\nv_and_b32 v3, 0xffff0000, v{CL+4*e+i}\nv_add_f32 v{CSUM+2*i}, v{CSUM+2*i}, v2\nv_add_f32 v{CSUM+2*i+1}, v{CSUM+2*i+1}, v3")
    stamp(name=4)
    for j in range(4): a(f"v_permlane32_swap_b32 v{CSUM+j}, v{CSUM+4+j}")
    for j in (0, 2, 1, 3): a(f"v_add_f32 v{CSUM+j}, v{CSUM+j}, v{CSUM+4+j}")
    a(f"v_permlane16_swap_b32 v{CSUM}, v{CSUM+2}\ns_nop 0\nv_permlane16_swap_b32 v{CSUM+1}, v{CSUM+3}")
    a(f"v_add_f32 v{CSUM}, v{CSUM}, v{CSUM+2}\nv_add_f32 v{CSUM+1}, v{CSUM+1}, v{CSUM+3}\ns_nop 0")
    a(f"v_add_f32_dpp v221, v{CSUM}, v{CSUM} row_ror:8 row_mask:0xf bank_mask:0xf\nv_add_f32_dpp v221, v{CSUM+1}, v{CSUM+1} row_ror:8 row_mask:0xf bank_mask:0xc")
    if cfg.cs_in:
        a("s_branch L_nofin")
        ool = a.lines[n_ool:]; del a.lines[n_ool:]
    a.label("L_nofin")
    stamp(name=5)
    init = [f"buffer_store_dword v221, v222, {sr(R_WS,4)}, s{S_CNT} offen sc1",
            f"s_cmp_lg_u32 s{S_HW}, 0\ns_cbranch_scc1 L_nopub\n"
            f"buffer_store_dwordx2 v[216:217], v220, {sr(R_WS,4)}, s{S_EX} offen sc1\n"
            f"buffer_store_dwordx4 v[12:15], v{V_L16}, {sr(R_WS,4)}, s{S_EX+1} offen sc1\nL_nopub:"]
    if cfg.g_init == -1:
        for l in init: a(l)
    brk("g")
    stamp(name=6)
    a("s_barrier")
    nst[0] = 2
    stamp(name="b0"); pad("b0"); c12(0)
    HS = [divmod(g, 2) for g in range(28)] + [(14, 0), (15, 0), (14, 1), (15, 1)]
    def wf(K, mt): return WF + 16*((K + 1) & 1) + 4*mt
    def x_reads(g):
        K, nh = HS[g]
        return [f"ds_read_b128 {vr(XF+16*(g&1)+4*i,4)}, v{V_XA+(K&1)} offset:{XS[K>>1]*16384 + (4*nh+i)*2048}" for i in range(4)]
    def w_reads(K):
        slot = ((K >> 1) + 2) % 3
        return [f"ds_read_b64_tr_b16 {vr(wf(K,mt)+2*t,2)}, v{V_WR+(mt>>1)} offset:{(mt&1)*24576 + slot*8192 + (K&1)*4096 + t*512}" for mt in range(4) for t in range(2)]
    def mm(g, mt, i):
        K, nh = HS[g]; nt = 4*nh + i
        d = acc(mt >> 1, nt >> 1) + 8*(mt & 1) + 4*(nt & 1)
        return mfma16(d, wf(K, mt), XF + 16*(g&1) + 4*i, None if K == 0 else d)
    def rw_reads(rt, dst): return [f"ds_read_b128 {vr(dst+4*i,4)}, v{10 + (i >> 1)} offset:{2048*rt + 1024*(i & 1)}" for i in range(4)]
    op_reads = [f"ds_read_b128 {vr(RA+4*i,4)}, v9 offset:{L_RA + 1056*i}" for i in range(2)] + rw_reads(0, RWP) + rw_reads(1, RWQ)
    def rank1(ti, rt, rw): return mfma32(acc(ti, rt), RA + 4*ti, rw + 2, acc(ti, rt))
    def split2(src, dst, dup):
        if dup:
            return [f"v_cvt_pk_bf16_f32 v{dst}, v{src}, v{src}", f"v_and_b32 v2, 0xffff0000, v{dst}", f"v_sub_f32 v2, v{src}, v2", f"v_cvt_pk_bf16_f32 v{dst+1}, v2, v2"]
        return [f"v_cvt_pk_bf16_f32 v{dst}, v{src}, v{src}", f"v_and_b32 v2, 0xffff0000, v{dst}", f"v_sub_f32 v2, v{src}, v2", f"v_cvt_pk_bf16_f32 v{dst}, v{src}, v2", f"v_mov_b32 v{dst+1}, v{dst}"]
    w = w_reads(0)
    for l in w[:2] + x_reads(0) + w[2:]: a(l)
    def half_step(g):
        K, nh = HS[g]
        neww = g == 0 or HS[g-1][0] < K and g != 31
        gaps = [[] for _ in range(16)]
        o = 0
        if g & 3 == 3 and g < 28 or g == cfg.g_h:
            gaps[0] = ["s_barrier"]; o = 1
        rd = x_reads(g + 1) if g < 31 else rw_reads(2, WF + 16)
        if g < 29 and HS[g+1][0] > K:
            w = w_reads(K + 1); rd = w[:2] + rd + w[2:]
        if g == cfg.g_h: rd += op_reads
        if cfg.nord: rd = []
        for i, l in enumerate(rd): gaps[o + i].append(l)
        if neww:
            top = "lgkmcnt(4)"
            gaps[7].append(f"s_waitcnt lgkmcnt({min(len(rd), 8 - o)})")
        else: top = "lgkmcnt(10)" if g == cfg.g_h + 1 else "lgkmcnt(0)"
        brk("g" if g < 28 else "e")
        a("s_waitcnt " + ("vmcnt(0) " if g == 4*cfg.c_arr + 3 else "") + top)
        if g == cfg.g_init: gaps[9].append(init[0]); gaps[12].append(init[1])
        dl = defer1 if g <= cfg.g_init else defer2
        for k in range(16):
            if not gaps[k]:
                gaps[k] = dl[:2]; del dl[:2]
        assert not (g >= 2 and defer1) and not (g >= 27 and defer2)
        for k in range(16):
            a(mm(g, k >> 2, k & 3))
            for l in gaps[k]: a(l)
            if g == 31 and k == 3: a(("s_waitcnt lgkmcnt(4)\n" if cfg.g_h == 30 else "") + rank1(0, 0, RWP))
            if k == 0 and (g == 27 or (cfg.stamps == 4 and g & 3 == 3)): stamp()
            if k == 0 and g in (3, 27): c12(1 if g == 3 else 2)
            if k == 15 and g >= cfg.g_tr and g & 1 == 0 and cfg.stamps == 10 and ncs[0] < 6: a(f"s_memtime {sr([32, 34, 92, 94, 96, 98][ncs[0]], 2)}"); ncs[0] += 1
    for g in range(30): half_step(g)
    def swaps(o): return [f"v_permlane16_swap_b32 v{o}, v{o+2}", f"v_permlane16_swap_b32 v{o+1}, v{o+3}"]
    def gelu(ti, rt, rw, mf=(), pre=()):
        A = acc(ti, rt)
        def b(i): return rw + 8 + 4*(i >> 2)
        def vp(i): return rw + 6*(i >> 2)
        t1, t2, o = 144, 152, HO + 16*ti + 4*rt
        L = [".p2align 3"]
        for i in range(0, 8, 2): L.append(f"v_pk_mul_f32 {vr(t1+i,2)}, {vr(A+i,2)}, {vr(A+i,2)}")
        L += pre
        for i in range(0, 8, 2): L.append(f"v_pk_fma_f32 {vr(t1+i,2)}, {vr(t1+i,2)}, {vr(b(i)+2,2)}, {vr(b(i),2)}")
        for i in range(0, 8, 2): L.append(f"v_pk_mul_f32 {vr(t1+i,2)}, {vr(t1+i,2)}, {vr(A+i,2)}")
        L += mf
        for i in range(8): L.append(f"v_exp_f32 v{t1+i}, v{t1+i}")
        for i in range(0, 8, 2): L.append(f"v_pk_mul_f32 {vr(t2+i,2)}, {vr(A+i,2)}, {vr(A+8+i,2)}")
        for i in range(0, 8, 2): L.append(f"v_pk_fma_f32 {vr(t1+i,2)}, {vr(t1+i,2)}, {vr(vp(i),2)}, {vr(vp(i),2)}")
        for i in range(8): L.append(f"v_rcp_f32 v{t1+i}, v{t1+i}")
        for i in range(0, 8, 2): L.append(f"v_pk_mul_f32 {vr(t2+i,2)}, {vr(t2+i,2)}, {vr(t1+i,2)}")
        for i in range(4): L.append(f"v_cvt_pk_bf16_f32 v{o+i}, v{t2+2*i}, v{t2+2*i+1}")
        return L
    def qtile(rt, rw):
        A = acc(1, rt); qs = hex(f2u(-0.25*math.log2(math.e)/KG))
        L = [f"v_mul_f32 v{12+i}, {qs}, v{rw + 8 + 4*(i >> 1)}" for i in range(4)]
        L += [f"s_add_u32 s{S_T0}, s{S_HSB}, {32768*rt}", f"s_add_u32 s{S_T1}, s{S_T0}, 4096"]
        for hd in range(2):
            h = A + 8*hd
            for i in range(0, 8, 2): L.append(f"v_pk_mul_f32 {vr(h+i,2)}, {vr(h+i,2)}, {vr(12 + 2*(i >> 2),2)}")
            for i in range(4): L.append(f"v_cvt_pk_bf16_f32 v{h+i}, v{h+2*i}, v{h+2*i+1}")
            for i in (0, 2, 1, 3): L.append(f"v_min_u32 v{h+i}, -2, v{h+i}")
            L += [swaps(h)[0], "s_nop 0", swaps(h)[1]]
            L.append(f"buffer_store_dwordx4 {vr(h,4)}, v{V_L16}, {sr(R_WS,4)}, s{S_T0 + hd} offen sc1")
        return L
    L_HQ = L_KV + 49152
    def att_regs():
        a(f"""
        v_and_b32 v5, 27, v{V_LANE}
        v_cmp_eq_u32 vcc, 16, v5
        v_mov_b32 v6, 0x47804780
        v_mov_b32 v{V_IDX}, 0xdddddddd
        v_mov_b32 v11, 1
        v_mov_b32 v49, 0.5
        v_cndmask_b32 v{VF}, 0, v6, vcc
        v_mov_b32 v{VF+1}, v{VF}
        """)
        for i in range(2, 16, 2): a(f"v_mov_b64 {vr(VF+i,2)}, {vr(VF,2)}")
        for i in range(0, 16, 2): a(f"v_mov_b64 {vr(OO+i,2)}, 0")
        a(f"s_lshl_b32 s{S_T0}, s{S_KQ}, 13\ns_add_u32 s{S_T0}, s{S_T0}, {L_WO - L_WD}\nv_add_u32 v{V_OA}, s{S_T0}, v{V_DA}\nv_xor_b32 v{V_OA+1}, 64, v{V_OA}")
    def kv_first():
        a(f"ds_read_b128 {vr(KF,4)}, v{V_KA} offset:{kv_off(0)}\nds_read_b128 {vr(KF+4,4)}, v{V_KA} offset:{kv_off(1)}")
        a(f"s_mov_b64 exec, {sr(S_VM,2)}\nds_read_b128 {vr(VF,4)}, v{V_VA} offset:{kv_off(0)}\ns_mov_b64 exec, -1")
    a(f"s_and_b32 s{S_T1}, s{S_CB}, 3\ns_cmp_eq_u32 s{S_T1}, 3\ns_cbranch_scc1 L_qt")
    half_step(30); half_step(31)
    n0 = nst[0]
    stamp(name="g1"); pad("g1"); c12(3)
    RWS = [RWP, RWQ, WF + 16, RWP]
    order = [(ti, rt) for rt in range(4) for ti in range(2)]
    for i, (ti, rt) in enumerate(order):
        if i == 2:
            for l in rw_reads(3, RWS[3]): a(l)
        brk("e")
        if i in (3, 5): a("s_waitcnt lgkmcnt(0)")
        if i == cfg.i_q or (cfg.e7 and i == 1): a("s_barrier")
        nx = order[i+1] if i < 7 else None
        pv = order[i-1] if i else None
        for l in gelu(ti, rt, RWS[rt], [rank1(*nx, RWS[nx[1]])] if nx else [], swaps(HO + 16*pv[0] + 4*pv[1]) if pv else []): a(l)
    a("s_nop 1")
    for l in swaps(HO + 16 + 12): a(l)
    a("s_branch L_joinA")
    far("L_qt")
    RWS = [RWP, RWQ, acc(1, 0), acc(1, 1)]
    if cfg.g_h == 30:
        a("s_barrier")
        for l in op_reads: a(l)
    for l in x_reads(31): a(l)
    a("s_waitcnt lgkmcnt(4)\ns_nop 0")
    a(rank1(1, 0, RWP)); a(rank1(1, 1, RWQ))
    a.nop(5)
    for rt in range(2):
        for l in qtile(rt, RWS[rt]): a(l)
        brk("e")
    a("s_waitcnt lgkmcnt(0)")
    rd = rw_reads(2, RWS[2]) + rw_reads(3, RWS[3])
    for g in (30, 31):
        for k in range(8, 16):
            a(mm(g, k >> 2, k & 3))
            if rd: a(rd.pop(0))
    a("s_waitcnt lgkmcnt(0)\ns_nop 3")
    a(rank1(1, 2, RWS[2])); a(rank1(1, 3, RWS[3]))
    a.nop(5)
    for rt in (2, 3):
        for l in qtile(rt, RWS[rt]): a(l)
        brk("e")
    a(rank1(0, 0, RWP))
    for g in (30, 31):
        for k in range(8): a(mm(g, k >> 2, k & 3))
    nst[0] = n0
    stamp(name="g1")
    a(f"s_mov_b32 s{S_HSB}, {WS_SIZE}")
    for i in range(4): a(f"v_mov_b32 v{12+i}, -1")
    for rt in range(4):
        brk("e")
        if cfg.e7 and rt == 0: a("s_barrier")
        if rt == cfg.i_qb: a("s_barrier")
        for l in gelu(0, rt, RWS[rt], [rank1(0, rt + 1, RWS[rt + 1])] if rt < 3 else [], swaps(HO + 4*(rt - 1)) if rt else []): a(l)
    a("s_nop 1")
    for l in swaps(HO + 12): a(l)
    far("L_joinA", True)
    nst[0] = 12 if cfg.stamps == 4 else 5
    stamp()
    c12(4)
    if not cfg.gpos:
        att_regs()
        kv_first()
    a("s_barrier")
    stamp(name="att0"); pad("att0")
    a(f"ds_read_b128 {vr(QF,4)}, v254 offset:{L_HQ}")
    for i in range(4): a(f"ds_read_b128 {vr(CC+4*i,4)}, v254 offset:{L_HQ + 1024}")
    if cfg.gpos:
        att_regs()
        kv_first()
    a("s_waitcnt lgkmcnt(0)")
    a(mfma32(S0, KF, QF, CC))
    c12(5)
    a("s_nop 3\ns_branch L_attA")

    a.lines += ool
    a.label("L_helper")
    V_XD, V_WD = 192, 194
    PX, PW = 8, 24
    PACC, PCS, PRS, PSQ = 40, 44, 48, 52
    PONE, PSQP, PF1 = 56, 60, 61
    RD = 64
    a(f"""
    s_lshl_b32 s{S_XOFF}, s{S_RB}, 17
    s_lshl_b32 s{S_T0}, s{S_HW}, 15
    s_add_u32 s{S_XOFF}, s{S_XOFF}, s{S_T0}
    v_and_b32 v5, 15, v{V_LANE}
    v_lshrrev_b32 v6, 4, v{V_LANE}
    v_lshrrev_b32 v7, 3, v{V_LANE}
    v_and_b32 v63, 7, v{V_LANE}
    v_xor_b32 v62, v6, v63
    v_lshlrev_b32 v62, 4, v62
    v_lshl_add_u32 v{V_XD}, v7, 10, v62
    v_xor_b32 v{V_XD+1}, 64, v{V_XD}
    v_add_u32 v{V_XD+1}, {8192-1024}, v{V_XD+1}
    """)
    img_params(S_HW, S_WSTEP, S_WOFF)
    a(f"""
    v_and_b32 v62, 1, v6
    v_lshlrev_b32 v62, 1, v62
    v_xor_b32 v62, v62, v63
    v_lshlrev_b32 v62, 4, v62
    v_mul_u32_u24 v{V_WD}, s{S_WSTEP}, v7
    v_add_u32 v{V_WD}, v{V_WD}, v62
    v_xor_b32 v{V_WD+1}, 64, v{V_WD}
    s_waitcnt lgkmcnt(0)
    """)
    nst[0] = 0
    stamp()
    a(f"s_mov_b32 s{R_X}, s{P_X}\ns_and_b32 s{R_X+1}, s{P_X+1}, 0xffff")
    Q = []
    def issue(tag, text): a(text); Q.append(tag)
    def vwait(tag, more=""):
        n = len(Q) - 1 - max(i for i, t in enumerate(Q) if t == tag)
        a(f"s_waitcnt vmcnt({n})" + more)
    def xitems(c):
        slot = XS[c]
        return [(f"C{c}", f"s_add_u32 m0, s{S_H4K}, {L_X + slot*16384}\ns_add_u32 s{S_CNT}, s{S_XOFF}, {c*128 + (16384 - 2048)*(e >> 1)}\n"
                 f"buffer_load_dwordx4 v{V_XD + (e & 1)}, {sr(R_X,4)}, s{S_CNT} offen offset:{1024*e} {cfg.cf[1]} lds") for e in range(4)]
    def witems(c):
        slot = (c + 2) % 3
        return [(f"C{c}", f"s_add_u32 m0, s{S_M0W}, {slot*8192 + e*1024}\n" + (f"s_add_u32 s{S_WOFF}, s{S_WOFF}, s{S_WSTEP}" if c + e else "s_nop 0") +
                 f"\nbuffer_load_dwordx4 v{V_WD + (e & 1)}, {sr(R_W,4)}, s{S_WOFF} offen {cfg.cf[0]} lds") for e in range(8)]
    stream = []
    for c in range(1, 8): stream += [(t, x if c < 3 or not cfg.nodma else 's_nop 0') for t, x in witems(c) + xitems(c)]
    for c in {0: (), 8: (4,), 12: (2, 4, 6)}[cfg.krot]:
        i = 12*(c - 1)
        stream[i] = (stream[i][0], stream[i][1].replace("\nbuffer_load", f"\ns_cmp_eq_u32 s{S_HST}, {16 - 2*c}\ns_cselect_b32 s{S_CNT}, s{R_W+2}, 0\ns_cselect_b32 s{S_HSB}, 1024, 0\n"
                     f"s_sub_u32 s{S_WOFF}, s{S_WOFF}, s{S_CNT}\ns_sub_u32 s{S_XOFF}, s{S_XOFF}, s{S_HSB}\nbuffer_load"))
    pos = [0]
    def take(n):
        for _ in range(n):
            if pos[0] < len(stream): issue(*stream[pos[0]]); pos[0] += 1
    def upto(c):
        return min(len(stream), 12*(c + 1) + cfg.lead[c])
    def mix(lines, n):
        k = 0
        for i, l in enumerate(lines):
            while k < n and k * len(lines) <= i * n: take(1); k += 1
            a(l)
        take(n - k)
    img_srd(R_W, S_WSTEP)
    if cfg.krot:
        a(f"""
        s_and_b32 s{S_HST}, s{S_RB}, {cfg.krot}
        s_lshl_b32 s{S_T0}, s{S_HST}, 6
        s_add_u32 s{S_XOFF}, s{S_XOFF}, s{S_T0}
        s_mul_i32 s{S_T0}, s{S_T0}, s{S_WSTEP}
        s_lshr_b32 s{S_T0}, s{S_T0}, 1
        s_add_u32 s{S_WOFF}, s{S_WOFF}, s{S_T0}
        """)
    a(f"s_lshl_b32 s{S_WSTEP}, s{S_WSTEP}, 3\ns_mul_i32 s{S_M0W}, s{S_HW}, 24576\ns_add_u32 s{S_M0W}, s{S_M0W}, {L_W}")
    def b_init():
        srd(R_WS, P_WS, WS_SIZE)
        setup_ids()
        for i in range(4): a(f"v_mov_b32 v{12+i}, -1")
        a(f"v_mov_b32 v10, 0\nv_mov_b32 v11, 1\ns_sub_u32 s{S_T3}, s{S_FLG}, 16")
    def q_stores(tag):
        a(f"s_add_u32 s{S_CNT}, s{S_OST}, {WS_Q - WS_O - 2048}")
        issue(tag, f"buffer_store_dwordx4 v[12:15], v{V_L16}, {sr(R_WS,4)}, s{S_CNT} offen {cfg.sfl[0]}")
        issue(tag, f"buffer_store_dwordx4 v[12:15], v{V_L16}, {sr(R_WS,4)}, s{S_CNT} offen offset:2048 {cfg.sfl[0]}")
    def b_stores():
        if not cfg.c_q: q_stores("ST")
        issue("ST", f"s_mov_b64 exec, 7\nbuffer_store_dword v10, v{V_L16}, {sr(R_WS,4)}, s{S_T3} offen sc1\ns_mov_b64 exec, -1")
    if cfg.c_st[0] < 0: b_init()
    if cfg.c_st[0] == -2: b_stores()
    stamp(name=1)
    a("s_barrier")
    for i, it in enumerate(xitems(0) + witems(0)):
        if cfg.c_st == (-1, i): b_stores()
        issue(*it)
    stamp(name=3)
    def bar():
        brk("g")
        if cfg.stamps == 4: stamp()
        a("s_barrier")
    take(cfg.lead0)
    stamp(name=4)
    nst[0] = 2; vwait("C0"); stamp(name=6); bar()
    BC, BO, BZ = 132, 224, 240
    def b_setup():
        srd(R_DBG, P_DBG, 256)
        a(f"s_mov_b32 s{S_ONES}, 0x3f803f80")
        common_setup()
        a(f"""
        v_lshrrev_b32 v6, 4, v{V_LANE}
        v_bfe_u32 v2, v{V_LANE}, 1, 1
        v_lshl_add_u32 v6, v2, 2, v6
        v_and_b32 v2, 1, v{V_LANE}
        v_mad_u32_u24 v6, v2, 33, v6
        v_lshlrev_b32 v6, 4, v6
        v_bfe_u32 v2, v{V_LANE}, 2, 2
        v_mul_u32_u24 v2, 2208, v2
        v_add_u32 v6, v6, v2
        s_lshr_b32 s{S_T0}, s{S_HW}, 1
        s_mul_i32 s{S_T0}, s{S_T0}, 1056
        s_and_b32 s{S_T1}, s{S_HW}, 1
        s_lshl_b32 s{S_T1}, s{S_T1}, 8
        s_add_u32 s{S_T0}, s{S_T0}, s{S_T1}
        v_add_u32 v204, s{S_T0}, v6
        s_lshr_b32 s{S_T0}, s{S_RB}, 1
        s_and_b32 s{S_T1}, s{S_CB}, 12
        s_lshl_b32 s{S_T1}, s{S_T1}, 2
        s_add_u32 s{S_T0}, s{S_T0}, s{S_T1}
        s_and_b32 s{S_T1}, s{S_RB}, 1
        s_lshl_b32 s{S_T1}, s{S_T1}, 7
        s_add_u32 s{S_T0}, s{S_T0}, s{S_T1}
        s_lshl_b32 s{S_T0}, s{S_T0}, 7
        s_add_u32 s{S_T0}, s{S_T0}, {WS_FL + 32}
        v_and_b32 v6, 3, v{V_LANE}
        v_lshlrev_b32 v6, 2, v6
        v_bfe_u32 v2, v{V_LANE}, 2, 1
        v_lshl_add_u32 v6, v2, 10, v6
        v_bfe_u32 v2, v{V_LANE}, 3, 1
        v_lshl_add_u32 v6, v2, 13, v6
        v_add_u32 v205, s{S_T0}, v6
        """)
        for i in (0, 1, 4, 5): a(f"v_mov_b32 v{BZ+i}, 0")
        att_regs()
        a(f"s_lshl_b32 s{S_T0}, s{S_HW}, 11\nv_add_u32 v7, s{S_T0}, v{V_L16}")
    bs = capture(b_setup)
    nbs = -(-len(bs) // 3)
    pfl = [f"s_mul_i32 s{S_T0}, s2, 7168\ns_lshl_b32 s{S_T1}, s{S_HW}, 11\ns_add_u32 s{S_T0}, s{S_T0}, s{S_T1}\nbuffer_load_dwordx4 {vr(176,4)}, v{V_L16}, {sr(R_WD,4)}, s{S_T0} offen",
           f"buffer_load_dwordx4 {vr(180,4)}, v{V_L16}, {sr(R_WD,4)}, s{S_T0} offen offset:1024",
           f"s_lshl_b32 s{S_T1}, s2, 11\ns_lshl_b32 s{S_T3}, s{S_HW}, 9\ns_add_u32 s{S_T1}, s{S_T1}, s{S_T3}\ns_mov_b32 exec_hi, 0\nbuffer_load_dwordx4 {vr(184,4)}, v{V_L16}, {sr(R_WO,4)}, s{S_T1} offen\ns_mov_b64 exec, -1"]
    spoll = f"buffer_load_dword v8, v6, {sr(R_DBG,4)}, s{S_T2} offen sc1"
    for c in range(6):
        if c == cfg.c_st[0]:
            mix(capture(b_init), cfg.c_st[1]); b_stores()
        def q_flag():
            vwait("SQ")
            issue("F", f"s_mov_b64 exec, 1\nbuffer_store_dword v11, off, {sr(R_WS,4)}, s{S_FLG} offset:16 sc1\ns_mov_b64 exec, -1")
        if cfg.c_q and c == cfg.c_q[0] and cfg.c_q[1] < 99:
            take(cfg.c_q[1]); q_stores("SQ")
        if cfg.c_q and c == cfg.c_q[2] and cfg.c_q[3] < 99:
            take(cfg.c_q[3]); q_flag()
        if c in (2, 3, 4): mix(bs[(c-2)*nbs:(c-1)*nbs], upto(c) - pos[0])
        if c == 5:
            take(cfg.n_poll)
            a(f"v_and_b32 v6, 7, v{V_LANE}\nv_lshlrev_b32 v6, 5, v6\ns_lshl_b32 s{S_T2}, s{S_HW}, 8")
            issue("P", spoll)
        take(upto(c) - pos[0])
        if cfg.c_q and cfg.c_q[:2] == (c, 99): q_stores("SQ")
        if cfg.c_q and cfg.c_q[2:] == (c, 99): q_flag()
        if c == cfg.c_arr: vwait("ST")
        if c == 5:
            vwait("P")
            a(f"s_cmp_lg_u32 s{S_HW}, 0\ns_cbranch_scc1 L_sync1\ns_mov_b32 s{S_SPIN}, 0")
            a.label("L_sync1_chk")
            a(f"""
            v_cmp_gt_u32 vcc, 32, v8
            s_add_u32 s{S_SPIN}, s{S_SPIN}, 1
            s_cbranch_vccz L_sync1
            s_cmp_ge_u32 s{S_SPIN}, {SPIN_MAX}
            s_cbranch_scc1 L_sync1
            s_sleep 4
            {spoll}
            s_waitcnt vmcnt(0)
            s_branch L_sync1_chk
            """)
            a.label("L_sync1")
        vwait(f"C{c+1}"); bar()
        if c == cfg.c_arr:
            a(f"s_cmp_lg_u32 s{S_HW}, 0\ns_cbranch_scc1 L_noarr\ns_and_b32 s{S_EX}, s2, 7\ns_lshl_b32 s{S_EX}, s{S_EX}, 5\ns_mov_b32 s{S_EX+1}, 1\n"
              f"s_atomic_add s{S_EX+1}, {sr(P_DBG,2)}, s{S_EX}\nL_noarr:")
    assert pos[0] == len(stream)
    ncs[0] = 0; cstamp(11)
    a(f"""
    s_lshl_b32 s{S_T3}, s{S_HW}, 11
    s_add_u32 m0, s{S_T3}, {L_R}
    s_lshl_b32 s{S_EX}, s{S_RB}, 13
    s_add_u32 s{S_EX}, s{S_EX}, s{S_T3}
    s_add_u32 s{S_EX}, s{S_EX}, {WS_ST}
    s_lshl_b32 s{S_T3}, s{S_HW}, 10
    s_lshl_b32 s{S_EX+1}, s{S_CB}, 14
    s_add_u32 s{S_EX+1}, s{S_EX+1}, s{S_T3}
    s_add_u32 s{S_EX+1}, s{S_EX+1}, {WS_CS}
    """)
    if cfg.stamps != 4: nst[0] = 3
    stamp(); cstamp(11)
    def maxtree(src, dst, init=None):
        L = []
        if init is None:
            L.append(f"v_max3_f32 v{dst}, v{src}, v{src+1}, v{src+2}")
            L.append(f"v_max_f32 v{dst}, v{src+3}, v{dst}")
            k = 4
        else:
            k = 0
        for i in range(k, 16, 2): L.append(f"v_max3_f32 v{dst}, v{src+i}, v{src+i+1}, v{dst}")
        return L
    def setC(m, shift):
        a(f"v_mov_b32 v{m+1}, v{m}\ns_nop 1\nv_permlane32_swap_b32 v{m}, v{m+1}\nv_max_f32 v{m}, v{m}, v{m+1}")
        a(f"v_sub_f32 v{CC}, {hex(f2u(-shift)) if shift else 0}, v{m}")
        a(f"v_mov_b32 v{CC+1}, v{CC}")
        for i in range(2, 16, 2): a(f"v_mov_b64 {vr(CC+i,2)}, {vr(CC,2)}")
    for e in range(4):
        if e: a(f"s_add_u32 s{S_EX+1}, s{S_EX+1}, 4096")
        a(f"buffer_load_dwordx4 {vr(BC+4*e,4)}, v{V_L16}, {sr(R_WS,4)}, s{S_EX+1} offen sc1")
    for i in range(2): a(f"buffer_load_dwordx4 v{V_L16}, {sr(R_WS,4)}, s{S_EX} offen offset:{1024*i} sc1 lds")
    assert cfg.e6 != 2
    qpoll = f"buffer_load_dword v9, v205, {sr(R_WS,4)}, s{S_T2} offen sc1"
    if cfg.c_q:
        a(f"s_and_b32 s{S_T2}, s{S_CB}, 3\ns_sub_u32 s{S_T2}, s{S_T2}, s{S_H4K}\ns_cmp_eq_u32 s{S_T2}, 3\ns_cselect_b32 s{S_T2}, 0, {WS_SIZE}\n" + qpoll)
    nq = 1 if cfg.c_q else 0
    npf = 3 if cfg.pf_first else 0
    for x in pfl[:npf]: a(x)
    touch("e", 0, 4, 5)
    cstamp(11)
    if cfg.e6 == 0: a(f"s_waitcnt vmcnt({6 + nq + npf})\ns_barrier")
    a(f"s_setprio {cfg.bp}\ns_waitcnt vmcnt({2 + nq + npf})")
    cstamp(11)
    for e in range(1, 4):
        for i in (0, 2, 1, 3): a(f"v_add_f32 v{BC+i}, v{BC+i}, v{BC+4*e+i}")
    if cfg.e6 == 1: a("s_barrier")
    a(f"""
    v_permlane32_swap_b32 v{BC}, v{BC+2}
    s_nop 0
    v_permlane32_swap_b32 v{BC+1}, v{BC+3}
    v_add_f32 v{BC}, v{BC}, v{BC+2}
    v_add_f32 v{BC+1}, v{BC+1}, v{BC+3}
    s_nop 1
    v_permlane16_swap_b32 v{BC}, v{BC+1}
    v_add_f32 v{BC}, v{BC}, v{BC+1}
    """)
    for l in split2(BC, BZ + 2, True): a(l)
    if cfg.e6 == 3: a("s_barrier")
    a(f"ds_write_b128 v204, {vr(BZ+2,4)} offset:{L_RA}\nds_write_b128 v204, {vr(BZ,4)} offset:{L_RA + 128}")
    cstamp(11)
    for x in pfl[npf:]: a(x)
    a("s_waitcnt vmcnt(3)")
    ncs[0] += 1; cstamp(11)
    if cfg.c_q:
        a(f"""
        s_cmp_lg_u32 s{S_T2}, 0
        s_cbranch_scc1 L_qrdy
        s_mov_b32 s{S_SPIN}, 0
        L_qrchk:
        v_cmp_ne_u32 vcc, 1, v9
        s_add_u32 s{S_SPIN}, s{S_SPIN}, 1
        s_cbranch_vccz L_qrdy
        s_cmp_ge_u32 s{S_SPIN}, {SPIN_MAX}
        s_cbranch_scc1 L_qrdy
        {qpoll}
        s_waitcnt vmcnt(0)
        s_branch L_qrchk
        L_qrdy:
        """)
    a("s_setprio 0\ns_waitcnt lgkmcnt(0)")
    cstamp(11)
    if cfg.e6 == 2: a("s_barrier")
    cstamp(11)
    a("s_barrier")
    for c in range(2):
        slot = (c + 1) % 3
        a(f"s_add_u32 m0, s{S_H4K}, {L_KV + slot*16384}\ns_add_u32 s{S_T0}, s{S_H4K}, {WS_KV + starts[c]*2048}")
        for e in range(4):
            a(f"buffer_load_dwordx4 v{V_L16}, {sr(R_WS,4)}, s{S_T0} offen offset:{1024*e} sc1 lds")
    touch("a", 0, 4, 12)
    if cfg.wfix:
        a(f"s_mov_b32 s{S_CNT}, 0\ns_mov_b32 s{S_SPIN}, 0\ns_cmp_eq_u32 s{S_HW}, 3\ns_cbranch_scc0 L_nowfix\ns_call_b64 {sr(S_RET,2)}, L_ofix\nL_nowfix:")
    if cfg.e7:
        a("s_barrier")
        a(f"s_add_u32 m0, s{S_H4K}, {L_KV}\ns_add_u32 s{S_T0}, s{S_H4K}, {WS_KV + starts[2]*2048}")
        for e in range(4): a(f"buffer_load_dwordx4 v{V_L16}, {sr(R_WS,4)}, s{S_T0} offen offset:{1024*e} sc1 lds")
        if cfg.e7 == 2:
            a(f"s_mul_i32 s{S_T1}, s{S_HW}, {448*1024}\ns_lshl_b32 s{S_T0}, s{S_CT8}, 7\ns_add_u32 s{S_T1}, s{S_T1}, s{S_T0}\ns_lshl_b32 s{S_T3}, s{S_H4K}, 1")
            for e in range(8):
                a(f"s_add_u32 m0, s{S_T3}, {L_WD + e*1024}\ns_add_u32 s{S_T0}, s{S_T1}, {e*8192}\nbuffer_load_dwordx4 v{V_WDD}, {sr(R_WD,4)}, s{S_T0} offen lds")
    QP = 128
    qload = (f"buffer_load_dwordx4 {vr(QP,4)}, v{V_L16}, {sr(R_WS,4)}, s{S_T2} offen sc1\n"
             f"buffer_load_dwordx4 {vr(QF,4)}, v{V_L16}, {sr(R_WS,4)}, s{S_T2} offen offset:2048 sc1")
    a(f"s_add_u32 s{S_T2}, s{S_OST}, {WS_Q - WS_O - 2048}\ns_mov_b32 s{S_SPIN}, 0\ns_waitcnt vmcnt(0)\ns_barrier\ns_setprio 2")
    a(qload)
    kv_first()
    nst[0] = 12 if cfg.stamps == 4 else 5
    stamp()
    a.label("L_qchk")
    a(f"""
    s_waitcnt vmcnt(0) lgkmcnt(0)
    v_max3_u32 v8, v{QF}, v{QF+1}, v{QF+2}
    v_max3_u32 v8, v8, v{QF+3}, v{QP}
    v_max3_u32 v8, v8, v{QP+1}, v{QP+2}
    v_max_u32 v8, v8, v{QP+3}
    v_cmp_eq_u32 vcc, -1, v8
    s_add_u32 s{S_SPIN}, s{S_SPIN}, 1
    s_cbranch_vccz L_qok
    s_cmp_ge_u32 s{S_SPIN}, {SPIN_MAX}
    s_cbranch_scc1 L_qok
    s_sleep {cfg.qsl}
    {qload}
    s_branch L_qchk
    """)
    a.label("L_qok")
    if cfg.stamps == 1:
        n0 = nst[0]; nst[0] = 4; stamp(); nst[0] = n0
        a(f"v_writelane_b32 v{V_STAMP}, s{S_SPIN}, 63")
    a('; ---- softmax reference point: maximum over the first 32 keys (a lower bound of the row maximum), scores are taken relative to it minus a fixed shift.')
    a(mfma32(S0, KF, QP, None)); a(mfma32(S1, KF, QF, None))
    a(f"ds_write_b128 v7, {vr(QP,4)} offset:{L_HQ}")
    a.nop(10)
    for l in maxtree(S0, 8): a(l)
    a(f"v_mov_b32 v9, v8\ns_nop 1\nv_permlane32_swap_b32 v8, v9\nv_max_f32 v8, v8, v9\nv_sub_f32 v{QP+4}, {hex(f2u(-cfg.shift))}, v8")
    a(f"v_mov_b32 v{QP+5}, v{QP+4}\nv_mov_b64 {vr(QP+6,2)}, {vr(QP+4,2)}\nds_write_b128 v7, {vr(QP+4,4)} offset:{L_HQ + 1024}")
    for l in maxtree(S1, 8): a(l)
    if cfg.g_early:
        a("s_waitcnt lgkmcnt(0)\ns_barrier")
        stamp(name="att0"); pad("att0")
    setC(8, cfg.shift)
    a("s_waitcnt lgkmcnt(0)\ns_setprio 0")
    a(mfma32(S0, KF, QF, CC))
    if not cfg.g_early:
        a("s_barrier")
        stamp(name="att0"); pad("att0")
    a("s_nop 5\ns_branch L_attB")

    def kvdma(c, half):
        slot = (c + 1) % 3
        L = (f"s_add_u32 m0, s{S_W2K}, {L_KV + slot*16384}\ns_add_u32 s{S_T0}, s{S_W2K}, {WS_KV + starts[c]*2048}\n")
        if half == 1 and sizes[c] < 8:
            L += f"s_cmp_ge_u32 s{S_W}, {sizes[c]}\ns_cselect_b32 s{S_T0}, {WS_SIZE}, s{S_T0}\n"
        return [L + f"buffer_load_dwordx4 v{V_L16}, {sr(R_WS,4)}, s{S_T0} offen sc1 lds",
                f"buffer_load_dwordx4 v{V_L16}, {sr(R_WS,4)}, s{S_T0} offen offset:1024 sc1 lds"]
    def rowdma(rs, sbase, add, ldsbase, e):
        pre = f"s_add_u32 m0, s{S_W4K}, {ldsbase}\n"
        return pre + f"s_add_u32 s{S_T0}, s{sbase}, {add + e*7168}\nbuffer_load_dwordx4 v{V_WDD}, {sr(rs,4)}, s{S_T0} offen offset:{1024*e} {cfg.cf[2]} lds"
    tbs = [starts[c] - 3 for c in range(1, len(starts))]
    late = []
    def attention(half):
        sfx = "AB"[half]
        if cfg.stamps == 5: a(f"s_mov_b32 s{S_SPIN}, 0")
        head = {t: [] for t in range(66)}
        vm = {t: [] for t in range(66)}
        pre = {t: [] for t in range(66)}
        bg = {t: [] for t in range(66)}
        nb = len(tbs); c0 = nb - 7
        lh, mb = cfg.lh, cfg.mb
        for ci, tb in enumerate(tbs):
            q = []
            if ci + 2 < len(starts) and not (cfg.e7 and ci == 0): q += [("D", x) for x in kvdma(ci + 2, half)]
            dload = ci - c0 + 1
            if 0 <= dload <= 6:
                wq_ = [rowdma(R_WD, S_WDO, dload*65536, L_WD + (dload & 1)*32768, e) for e in range(4)]
                if dload == 0:
                    for e in range(4 if cfg.e7 < 2 else 0): vm[cfg.t_wd0[e]].append(("D", wq_[e]))
                else: q += [("D", x) for x in wq_]
                hl = [f"buffer_load_dwordx4 {vr(HF + 16*(dload&1) + 4*j,4)}, v{V_L16}, {sr(R_WS,4)}, s{S_T1} offen offset:{1024*j} sc1" for j in range(4)]
                hl[0] = f"s_add_u32 s{S_T1}, s{S_HLD}, {dload*4096}\n" + hl[0]
            elif dload == 7:
                q += [("D", rowdma(R_WO, S_WOO, 0, L_WO, e)) for e in range(4)]
                q += [("D", f"buffer_load_dwordx4 {vr(V_XR,4)}, v{V_FO}, {sr(R_X,4)}, 0 offen")]
            for i, x in enumerate(q): vm[tb + cfg.dpos[i] if ci else cfg.t_kv2].append(x)
            if 0 <= dload <= 6:
                for j in range(4):
                    vm[cfg.t_h0[j] if dload == 0 else tb + cfg.hpos[j]].append((f"H{dload}{j}", hl[j]))
                    if j in cfg.hwait: pre[tbs[ci + 1] + mb[2*j]].append(("wait", f"H{dload}{cfg.hwait[j]}"))
            d = dload - 1
            if d >= 0:
                for k in range(8):
                    j, ct = divmod(k, 2); fr = DF + 4 * (k & 3)
                    for t in range(2):
                        head[tb + lh[k]].append(f"ds_read_b64_tr_b16 {vr(fr+2*t,2)}, v{V_DA+ct} offset:{(d&1)*32768 + j*2048 + t*512}")
                    bg[tb + mb[k]].append(mfma32(YY + 16*ct, HF + 16*(d&1) + 4*j, fr, None if (d == 0 and j == 0) else YY + 16*ct))
        assert min(cfg.t_h0) >= cfg.t_chk and max(lh) <= 6 and max(mb) <= 7 and all(m > l for m, l in zip(mb, lh))
        assert all(lh[k+4] > mb[k] and lh[k] + 6 > mb[k+4] for k in range(4)) and all(cfg.hpos[j] + 6 > mb[2*j+1] for j in range(4))
        st = []
        if half == 0:
            for rt in range(4):
                for ti in range(2):
                    st.append(f"s_add_u32 s{S_T3}, s{S_HSB if ti else S_HST}, {112*1024*rt}\n"
                              f"buffer_store_dwordx4 {vr(HO + 16*ti + 4*rt,4)}, v{V_L16}, {sr(R_WS,4)}, s{S_T3} offen {cfg.hfl}")
        st.append(f"buffer_store_dwordx4 v[12:15], v{V_L16}, {sr(R_WS,4)}, s{S_OST} offen {cfg.sfl[1]}")
        hs = list(range(64))
        for i, x in enumerate(st): vm[hs[int(i * cfg.st_rate)] if half == 0 else cfg.t_sb].append(("S", x))
        if half == 1:
            if cfg.t_pf >= 0: vm[cfg.t_pf] += [("X", x) for x in pfl]
            for e in range(8):
                x = f"s_add_u32 m0, s{S_EX}, {L_WO + 32768 + e*1024}\ns_add_u32 s{S_T0}, s{S_EX+1}, {e*8192}\nbuffer_load_dwordx4 v{V_WDD}, {sr(R_WO,4)}, s{S_T0} offen lds"
                if e == 0: x = f"s_lshl_b32 s{S_EX+1}, s{S_HW}, 16\ns_lshl_b32 s{S_T0}, s{S_CT8}, 7\ns_add_u32 s{S_EX+1}, s{S_EX+1}, s{S_T0}\ns_xor_b32 s{S_T0}, s{S_T16}, 0x40000\ns_add_u32 s{S_EX+1}, s{S_EX+1}, s{S_T0}\ns_lshl_b32 s{S_EX}, s{S_H4K}, 1\n" + x
                vm[cfg.t_wo[e]].append(("D" if e == 7 else "X", x))
            tw = min(t for t in tbs if t >= max(cfg.t_wo))
            if tw == tbs[1]:
                for i in range(6): head[tw + 2 + i] += wo_rd[4*i:4*i+4]
            else:
                hs_ = [tb + o for tb in tbs if tb >= tw for o in (4, 5)]
                for i in range(12): head[hs_[i]] += wo_rd[2*i:2*i+2]
            head[61] += wo_rd[24:26]; head[63] += wo_rd[26:]
        else:
            head[63] += wo_rd[:cfg.n_wo63]
        if cfg.t_out: vm[cfg.t_out].append(("X", f"s_mov_b64 exec, 1\nbuffer_load_dword v254, v{V_FO}, {sr(R_OUT,4)}, 0 offen\ns_mov_b64 exec, -1"))
        for t in cfg.t_code: vm[t].append(("X", "s_mov_b64 exec, 3\nglobal_load_dword v254, v[252:253], off\ns_mov_b64 exec, -1"))
        pre[cfg.t_flag].append(("wait", "S"))
        vm[cfg.t_flag].insert(0, ("F", f"s_mov_b64 exec, 1\nbuffer_store_dword v11, off, {sr(R_WS,4)}, s{S_FLG} sc1\ns_mov_b64 exec, -1"))
        poll = f"buffer_load_dword v3, v{V_PO}, {sr(R_WS,4)}, s{S_T2} offen sc1"
        vm[cfg.t_poll].insert(0, ("P", f"s_mov_b32 s{S_T2}, {WS_FL}\n" + poll))
        assert cfg.t_poll <= cfg.t_chk - 2
        pre[cfg.t_chk - 1].append(("wait", "P"))
        pre[cfg.t_chk].append(("text", f"s_cbranch_vccnz L_hspin{sfx}\nL_hok{sfx}:"))
        late.append(f"L_hspin{sfx}:\ns_mov_b32 s{S_SPIN}, 0\nL_hchk{sfx}:\ns_sleep 2\n{poll}\ns_waitcnt vmcnt(0)\nv_cmp_ne_u32 vcc, 1, v3\ns_add_u32 s{S_SPIN}, s{S_SPIN}, 1\ns_cbranch_vccz L_hok{sfx}\n"
                    f"s_cmp_lt_u32 s{S_SPIN}, {SPIN_MAX}\ns_cbranch_scc1 L_hchk{sfx}\ns_branch L_hok{sfx}")
        VQ = []
        def cnt(tag):
            idx = [i for i, x in enumerate(VQ) if x == tag]
            return min(63, len(VQ) - 1 - max(idx)) if idx else 63
        def emit_vm(L):
            for tag, x in L: a(x); VQ.append(tag)
        for t in range(tbs[2] + 1, 64):
            if 'v' in cfg.ab: vm[t] = [x for x in vm[t] if 'sc1 lds' in x[1]]
            if 'h' in cfg.ab: vm[t] = [x for x in vm[t] if x[0] != 'H']
            if 'r' in cfg.ab: head[t] = []
            if 'm' in cfg.ab: bg[t] = []
        for t in range(64):
            par = t & 1
            sd, sn = (S0, S1) if par == 0 else (S1, S0)
            p, pp = PP + 8*par, PP + 8*(1 - par)
            isb = (t in tbs and not ('b' in cfg.ab and t > tbs[2])) or t == 62
            if cfg.stamps == 2 and t - 1 in tbs: stamp()
            brk("a")
            if cfg.itr:
                if t == 0: ncs[0] = 0
                if t in cfg.itr: cstamp(5)
            midb = isb and half == 1
            if half == 0 and (t - 1 in tbs or t == 63): a(f"s_waitcnt vmcnt({cnt('D')}) lgkmcnt(0)\ns_barrier")
            else: a("s_waitcnt lgkmcnt(0)")
            for k, x in pre[t]: a(x if k == "text" else f"s_waitcnt vmcnt({cnt(x)})")
            emit_vm(vm[t][:1])
            if not ('L' in cfg.ab and t & 2) and not ('Z' in cfg.ab and t > 2):
                if t + 2 < 64: a(f"ds_read_b128 {vr(KF+4*par,4)}, v{V_KA} offset:{kv_off(t+2)}")
                a(f"s_mov_b64 exec, {sr(S_VM,2)}")
                if t + 1 < 64: a(f"ds_read_b128 {vr(VF+8*(1-par),4)}, v{V_VA} offset:{kv_off(t+1)}")
                a(f"ds_read_b128 {vr(VF+8*par+4,4)}, v{V_VA} offset:{kv_off(t)+512}")
                a("s_mov_b64 exec, -1")
            for l in head[t]: a(l)
            emit_vm(vm[t][1:])
            if t == 0 and cfg.stamps == 9: ncs[0] = 0
            if cfg.t_tr <= t < cfg.t_tr + 9: cstamp(9)
            pos = cfg.pos[len(bg[t])]
            sl = [smf(OO, VF + 8*(1-par) + 4, sn + 8) if t >= 1 else None, mfma32(sn, KF + 4*(1-par), QF, CC) if t + 1 < 64 else None]
            sl += bg[t][:1] + [smf(OO, VF + 8*par, sd)] + bg[t][1:]
            at = {p: m for p, m in zip(pos, sl) if m}
            if 'M' in cfg.ab:
                import re as _re
                for p in list(at):
                    if at[p] in bg[t]:
                        m = _re.match(r"\S+ v\[(\d+):\d+\], v\[(\d+):\d+\], v\[(\d+):\d+\]", at[p]); d_, a_, b_ = map(int, m.groups())
                        d_ += 8 * (t & 1)
                        at[p] = mfma16(d_, a_, b_, d_); at[p + 1] = mfma16(d_ + 4, b_, a_, d_ + 4)
            if t in cfg.upd:
                assert len(sl) == 3
                at = {1: f"v_frexp_exp_i32_f32_e64 v4, v{OO+8}", 2: sl[0], 3: f"v_sub_u32 v4, {17 - int(cfg.shift)}, v4\nv_cvt_f32_i32_e64 v5, v4", 5: sl[1],
                      8: f"v_mfma_f32_32x32x2_f32 {vr(CC,16)}, v49, v5, {vr(CC,16)}", 15: sl[2]}
                if cfg.updm >= 1:
                    mv = [f"v_mov_b32 v{CC+1}, v{CC}"] + [f"v_mov_b64 {vr(CC+i,2)}, {vr(CC,2)}" for i in range(2, 16, 2)] if cfg.updm == 1 else [f"v_mov_b32 v{CC+i}, v{CC}" for i in range(1, 16)]
                    del at[8], at[15]
                    at[12] = "\n".join([f"v_add_f32{'_e64' if cfg.updm == 1 else ''} v{CC}, v{CC}, v5"] + mv)
                    at[13] = sl[2]
                if cfg.updl: at[3] = f"v_sub_u32 v4, {17 - int(cfg.shift)}, v4\nv_max_i32 v4, 0xffffff82, v4\nv_cvt_f32_i32_e64 v5, v4\nv_ldexp_f32 v4, 1.0, v4"
            if t - 2 in cfg.upd:
                assert len(sl) == 3
                at = {2: sl[0], 6: sl[1], 13: "\n".join((f"v_mul_f32{'_e64' if i == 0 else ''} v{OO+i}, v{OO+i}, v4" if cfg.updl else f"v_ldexp_f32 v{OO+i}, v{OO+i}, v4") for i in range(9)), 15: sl[2]}
            a(".p2align 3")
            odd = False
            for i in range(16):
                if i in at: a(at[i])
                if midb and i == cfg.bmid: a(f"s_waitcnt vmcnt({cnt('D')}) lgkmcnt(0)\ns_barrier")
                pr = i == (cfg.pp if half else cfg.pa)
                wide = (i + 1 in at) and (odd == pr)
                a(f"v_exp_f32{'_e64' if wide else ''} v{sd+i}, v{sd+i}")
                if not wide: odd = not odd
                if pr: a(f"s_setprio {cfg.pv[half]}"); odd = not odd
            if cfg.stamps == 3: a(f"s_waitcnt lgkmcnt(0)\nv_writelane_b32 v253, s{S_TS}, {t}\nv_writelane_b32 v254, s{S_TS2}, {t}\ns_memtime {sr(S_TS2,2)}")
            if t == cfg.t_chk - 1: a("v_cmp_ne_u32 vcc, 1, v3")
            if (cfg.pp if half else cfg.pa) is not None: a("s_setprio 0")
            if cfg.t_tr <= t < cfg.t_tr + 9: cstamp(9)
        a("s_waitcnt lgkmcnt(0)\ns_nop 0")
        a(smf(OO, VF + 12, S1 + 8))
    OF, SS, XU, TT = 16, 64, 160, 168
    def oload(j):
        h = cfg.oord[j]
        return f"buffer_load_dwordx4 {vr(OF+4*j,4)}, v{V_L16}, {sr(R_WS,4)}, s{S_OLD if h < 4 else S_T1} offen offset:{1024*(h&3)} sc1"
    def chk(j): return f"v_max3_u32 v8, v{OF+4*j}, v{OF+4*j+1}, v{OF+4*j+2}\nv_max_u32 v8, v{OF+4*j+3}, v8\nv_cmp_eq_u32 vcc, -1, v8"
    F = f"L_ofix:\ns_mov_b32 s{S_T2}, 0\ns_waitcnt vmcnt(0)\n"
    for j in range(8):
        F += (f"s_bitcmp1_b32 s{S_CNT}, {j}\ns_cbranch_scc0 L_ofb{j}\n{chk(j)}\ns_cmp_lg_u32 s{S_T2}, 0\ns_cbranch_vccz L_ofa{j}\n{oload(j)}\ns_mov_b32 s{S_T2}, 1\ns_branch L_ofb{j}\nL_ofa{j}:\ns_cbranch_scc1 L_ofb{j}\ns_bitset0_b32 s{S_CNT}, {j}\n"
              + mfma32(SS, OF + 4*j, WOF[2*j], SS) + "\n" + mfma32(SS + 16, OF + 4*j, WOF[2*j + 1], SS + 16) + f"\nL_ofb{j}:\n")
    F += (f"s_add_u32 s{S_SPIN}, s{S_SPIN}, 1\ns_cmp_ge_u32 s{S_SPIN}, {SPIN_MAX}\ns_cselect_b32 s{S_CNT}, 0, s{S_CNT}\n"
          f"s_cmp_lg_u32 s{S_CNT}, 0\ns_cbranch_scc1 L_ofix\ns_setpc_b64 {sr(S_RET,2)}")
    late.insert(0, F)
    def normalize():
        for i in range(0, 8, 2): a(f"v_pk_mul_f32 {vr(OO+i,2)}, {vr(OO+i,2)}, v[10:11]")
        for i in range(4): a(f"v_cvt_pk_bf16_f32 v{12+i}, v{OO+2*i}, v{OO+2*i+1}")
    def tail(half):
        sfx = "AB"[half]
        if cfg.stamps == 8: ncs[0] = 0
        if cfg.stamps == 5: a(f"v_writelane_b32 v{V_STAMP}, s{S_SPIN}, 62")
        stamp(name="att1"); pad("att1")
        cstamp()
        a(f"s_mov_b32 s{S_T2}, {hex(f2u(2.0**120))}\ns_mov_b32 s{S_T3}, {hex(f2u(2.0**-106))}")
        a(f"s_add_u32 s{S_T1}, s{S_OLD}, 4096\ns_mov_b32 s{S_SPIN}, 0\ns_lshl_b32 s{S_T0}, s{S_W}, 13\ns_mov_b32 m0, s{S_T0}")
        a.nop(6)
        a(f"""
        v_rcp_f32 v10, v{OO+8}
        v_maximum3_f32 v8, abs(v{OO}), abs(v{OO+1}), abs(v{OO+2})
        v_maximum3_f32 v9, abs(v{OO+3}), abs(v{OO+4}), abs(v{OO+5})
        v_maximum3_f32 v8, abs(v{OO+6}), abs(v{OO+7}), v8
        v_maximum3_f32 v6, v8, v9, v{OO+8}
        v_max_f32 v8, v8, v9
        v_cmp_ngt_f32 vcc, s{S_T2}, v6
        v_cmp_gt_f32 {sr(S_EX,2)}, s{S_T3}, v8
        v_mov_b32 v11, v10
        s_or_b64 vcc, vcc, {sr(S_EX,2)}
        """)
        a("s_branch L_fb" if cfg.force_fb else "s_nop 0" if cfg.ab else "s_cbranch_scc1 L_fb")
        normalize()
        a.label(f"L_ost{sfx}")
        a(f"buffer_store_dwordx4 v[12:15], v{V_L16}, {sr(R_WS,4)}, s{S_OST} offen sc1")
        cstamp()
        if half == 0:
            for l in wo_rd[cfg.n_wo63:]: a(l)
        for i in range(32): a(f"ds_write_addtid_b32 v{YY+i} offset:{32768 + 256*i}")
        cstamp()
        a(f"""
        v_xor_b32 v5, 16, v{V_GA}
        v_add_u32 v6, 0x10000, v{V_GA}
        v_add_u32 v7, 0x10000, v5
        s_mov_b32 s{S_EX}, 0xff00ff00
        s_mov_b32 s{S_EX+1}, 0xff00ff00
        s_mov_b64 exec, {sr(S_EX,2)}
        v_swap_b32 v{V_XR}, v{V_XR+2}
        v_swap_b32 v{V_XR+1}, v{V_XR+3}
        s_mov_b64 exec, -1
        """)
        for i in range(4): a(f"v_lshlrev_b32 v{XU+2*i}, 16, v{V_XR+i}\nv_and_b32 v{XU+2*i+1}, 0xffff0000, v{V_XR+i}")
        for i in range(0, 32, 2): a(f"v_mov_b64 {vr(SS+i,2)}, 0")
        if not half:
            for j in range(cfg.oearly): a(oload(j))
        a("s_waitcnt lgkmcnt(0)\ns_barrier")
        if half: a(f"s_add_u32 m0, s{S_T0}, 7940")
        if half and cfg.tprio == 2: a("s_setprio 1")
        cstamp()
        yr = [f"ds_read_b128 {vr(YY+8*p+4*e,4)}, v{((V_GA, 5), (6, 7))[p >> 1][e]} offset:{(32768 + 16384*p) & 0xffff}" for p in range(4) for e in range(2)]
        G = ["s_waitcnt lgkmcnt(0)"]
        for p in (1, 2, 3): G += [f"v_add_f32 v{YY+i}, v{YY+i}, v{YY+8*p+i}" for i in range(8)]
        G += [f"v_mul_f32 v{TT+i}, {hex(f2u(-math.log2(math.e)))}, v{YY+i}" for i in range(8)]
        G += [f"v_exp_f32 v{TT+i}, v{TT+i}" for i in range(8)]
        G += [f"v_add_f32 v{TT+i}, 1.0, v{TT+i}" for i in range(8)]
        G += [f"v_rcp_f32 v{TT+i}, v{TT+i}" for i in range(8)]
        G += [f"v_mul_f32 v{YY+i}, v{YY+i}, v{TT+i}" for i in range(8)]
        if half:
            for l in yr: a(l)
            if cfg.tprio == 3: a("s_setprio 1")
            for j in range(cfg.n_b0): a(oload(j))
            for l in G[:cfg.n_gb]: a(l)
            G = G[cfg.n_gb:]
            for j in range(cfg.n_b0, 8):
                a(oload(j))
                for l in G[:cfg.n_gp]: a(l)
                G = G[cfg.n_gp:]
            for l in G: a(l)
        elif cfg.odelay:
            for l in yr + G[:int(cfg.odelay)]: a(l)
            G = G[int(cfg.odelay):]
            for j in range(8): a(oload(j))
        else:
            for j in range(8):
                if j + cfg.oearly < 8: a(oload(j + cfg.oearly))
                a(yr[j])
            for l in G[:cfg.n_ga]: a(l)
            G = G[cfg.n_ga:]
        cstamp()
        def nxt(j): return f"s_waitcnt vmcnt({7-j})\n" + chk(j) + f"\ns_movk_i32 s{S_CNT}, {(0xff << j) & 0xff}"
        if half and cfg.tprio == 1: a("s_setprio 1")
        a(nxt(0))
        for j in range(8):
            a(f"s_cbranch_vccnz L_omiss{sfx}")
            if j in (0, 3, 7): cstamp()
            a(mfma32(SS, OF + 4*j, WOF[2*j], SS))
            if j < 7: a(nxt(j + 1))
            a(mfma32(SS + 16, OF + 4*j, WOF[2*j + 1], SS + 16))
        late[0] = f"L_omiss{sfx}:\ns_call_b64 {sr(S_RET,2)}, L_ofix\ns_branch L_ook{sfx}\n" + late[0]
        a.label(f"L_ook{sfx}")
        pg = [f"ds_read_b128 {vr(192+8*p+4*e,4)}, v{(V_GA, 5)[e]} offset:{16384*p}" for p in range(2) for e in range(2)]
        if half and cfg.pgath:
            a("s_barrier")
            for l in pg: a(l)
            a.nop(6)
        else: a.nop(11)
        for i in range(32): a(f"ds_write_addtid_b32 v{SS+i} offset:{(57596 if half else 0) + 256*i}")
        if not half:
            for l in G: a(l)
            if cfg.pgath:
                a("s_waitcnt lgkmcnt(0)\ns_barrier")
                for l in pg: a(l)
    far("L_attA")
    n0 = nst[0]
    attention(0)
    tail(0)
    a("s_branch L_fin2")
    far("L_attB")
    nst[0] = n0
    attention(1)
    tail(1)
    far("L_fin2", True)
    a("s_waitcnt lgkmcnt(0)\ns_barrier")
    if cfg.stamps == 6: stamp()
    cstamp()
    for p in range(2 if cfg.pgath else 0, 4):
        for e in range(2): a(f"ds_read_b128 {vr(OF+8*p+4*e,4)}, v{((V_GA, 5), (6, 7))[p >> 1][e]} offset:{16384*p}")
    if cfg.pgath:
        for i in range(0, 8, 2): a(f"v_pk_add_f32 {vr(OF+i,2)}, {vr(192+i,2)}, {vr(200+i,2)}")
    else:
        a("s_waitcnt lgkmcnt(0)" if cfg.stamps == 8 else "s_waitcnt lgkmcnt(4)")
        for i in range(0, 8, 2): a(f"v_pk_add_f32 {vr(OF+i,2)}, {vr(OF+i,2)}, {vr(OF+8+i,2)}")
    a("s_waitcnt lgkmcnt(0)")
    for i in range(0, 8, 2): a(f"v_pk_add_f32 {vr(OF+16+i,2)}, {vr(OF+16+i,2)}, {vr(OF+24+i,2)}")
    for i in range(0, 8, 2): a(f"v_pk_add_f32 {vr(OF+i,2)}, {vr(OF+i,2)}, {vr(OF+16+i,2)}")
    for i in range(0, 8, 2): a(f"v_pk_fma_f32 {vr(OF+i,2)}, {vr(OF+i,2)}, {vr(YY+i,2)}, {vr(XU+i,2)}")
    for i in range(4): a(f"v_cvt_pk_bf16_f32 v{12+i}, v{OF+2*i}, v{OF+2*i+1}")
    a(f"s_mov_b64 exec, {sr(S_EX,2)}\nv_swap_b32 v12, v14\nv_swap_b32 v13, v15\ns_mov_b64 exec, -1")
    a(f"buffer_store_dwordx4 v[12:15], v{V_FO}, {sr(R_OUT,4)}, 0 offen {cfg.oflag}")
    if cfg.stamps == 6: stamp()
    cstamp()
    if cfg.stamps:
        a("s_waitcnt vmcnt(0)")
        cstamp()
        stamp(True)
        for i in range(ncs[0]): a(f"v_writelane_b32 v{V_STAMP}, s{CSR[i]}, {40+i}")
        if cfg.stamps in (10, 12):
            for i in range(6): a(f"v_writelane_b32 v{V_STAMP}, s{[32, 34, 92, 94, 96, 98][i]}, {40+i}")
        if cfg.stamps in (5, 6): a(f"v_writelane_b32 v{V_STAMP}, s{S_SPIN}, 63")
        a(f"s_lshl_b32 s{S_T0}, s2, 3\ns_add_u32 s{S_T0}, s{S_T0}, s{S_W}\ns_lshl_b32 s{S_T0}, s{S_T0}, 8\ns_add_u32 s{S_T0}, s{S_T0}, {WS_DBG}")
        a(f"v_lshlrev_b32 v2, 2, v{V_LANE}\nbuffer_store_dword v{V_STAMP}, v2, {sr(R_WS,4)}, s{S_T0} offen")
        if cfg.stamps == 3:
            a(f"s_add_u32 s{S_T0}, s{S_T0}, 0x80000\nbuffer_store_dword v253, v2, {sr(R_WS,4)}, s{S_T0} offen\ns_add_u32 s{S_T0}, s{S_T0}, 0x80000\nbuffer_store_dword v254, v2, {sr(R_WS,4)}, s{S_T0} offen")
    pad("end")
    a.label("L_end")
    a("s_endpgm")
    a(late[0])
    if cfg.brks is None: brk("x")
    for l in late[1:]: a(l)
    a.label("L_fb")
    a(f"v_mov_b32 v8, 0xff800000\ns_mov_b32 s{S_CNT}, {WS_KV}")
    a(f"v_subrev_u32 v10, {L_KV}, v{V_VA}")
    a.label("L_fb1")
    a(f"buffer_load_dwordx4 {vr(KF,4)}, v{V_L16}, {sr(R_WS,4)}, s{S_CNT} offen sc1\ns_waitcnt vmcnt(0)")
    a(mfma32(S0, KF, QF, None)); a.nop(12)
    for l in maxtree(S0, 8, init=True): a(l)
    a(f"s_add_u32 s{S_CNT}, s{S_CNT}, 2048\ns_cmp_lt_u32 s{S_CNT}, {WS_KV + 64*2048}\ns_cbranch_scc1 L_fb1")
    setC(8, 0.0)
    for i in range(16): a(f"v_mov_b32 v{OO+i}, 0")
    a(f"s_mov_b32 s{S_CNT}, {WS_KV}")
    a.label("L_fb2")
    a(f"buffer_load_dwordx4 {vr(KF,4)}, v{V_L16}, {sr(R_WS,4)}, s{S_CNT} offen sc1")
    a(f"s_mov_b64 exec, {sr(S_VM,2)}")
    a(f"buffer_load_dwordx4 {vr(VF,4)}, v10, {sr(R_WS,4)}, s{S_CNT} offen sc1")
    a(f"buffer_load_dwordx4 {vr(VF+4,4)}, v10, {sr(R_WS,4)}, s{S_CNT} offen offset:512 sc1")
    a("s_mov_b64 exec, -1\ns_waitcnt vmcnt(0)")
    a(mfma32(S0, KF, QF, CC)); a.nop(12)
    for i in range(16): a(f"v_exp_f32 v{S0+i}, v{S0+i}")
    a.nop(2)
    a(smf(OO, VF, S0)); a(smf(OO, VF + 4, S0 + 8))
    a(f"s_add_u32 s{S_CNT}, s{S_CNT}, 2048\ns_cmp_lt_u32 s{S_CNT}, {WS_KV + 64*2048}\ns_cbranch_scc1 L_fb2")
    a.nop(12)
    a(f"v_rcp_f32 v10, v{OO+8}\ns_nop 0\nv_mov_b32 v11, v10")
    normalize()
    for i in range(4): a(f"v_min_u32 v{12+i}, -2, v{12+i}")
    a(f"s_cmp_ge_u32 s{S_W}, 4\ns_cbranch_scc1 L_ostB\ns_branch L_ostA")
    a.label("L_code_end")
    return a

HEADER = open(f"cdna_kernels/{NAME}.s.ref").read().split("; Override launch")[0]
def wrap(a):
    s = HEADER + """; One persistent launch, one 8-wave workgroup per CU (all 256 are resident: 160 KiB LDS each). Generated by the author's script.
;  1. K/V rows, LayerNorm statistics and column sums of W are shared out over the workgroups, published in d_ws, arrival counted in d_debug.
;  2. [w_gate | w_up | w_q] projection on raw x, 128 x 256 tile; LayerNorm applied in the epilogue; h and q go to d_ws.
;  3. MQA attention with the down projection interleaved; 4. o exchange, w_o projection, gate, residual.
; Hand-offs use write-through stores and L1-bypassing loads; flags and 'not yet written' patterns are initialised inside the launch.
""" + "; @launch grid=(256,1,1) block=(512,1,1) lds=163840\n"
    s += f""".amdgcn_target "amdgcn-amd-amdhsa--gfx950"
.text
.globl {NAME}_kernel
.p2align 8
.type {NAME}_kernel,@function
{NAME}_kernel:
"""
    s += a.text()
    s += f""".section .rodata,"a"
.p2align 6
.amdhsa_kernel {NAME}_kernel
  .amdhsa_next_free_vgpr 256
  .amdhsa_next_free_sgpr 102
  .amdhsa_accum_offset 256
  .amdhsa_group_segment_fixed_size 0
  .amdhsa_kernarg_size 96
  .amdhsa_user_sgpr_count 2
  .amdhsa_user_sgpr_kernarg_segment_ptr 1
  .amdhsa_system_sgpr_workgroup_id_x 1
.end_amdhsa_kernel
"""
    return s

if __name__ == "__main__":
    cfg = Cfg()
    out = sys.argv[1]
    for kv in sys.argv[2:]:
        k, v = kv.split("=")
        setattr(cfg, k, eval(v))
    g0 = gen
    def gen(cfg):
        a = g0(cfg)
        if 'E' in cfg.ab or 'S' in cfg.ab:
            n = a.lines.index("L_qt:")
            for i in range(n):
                if a.lines[i].startswith("buffer_store") or ('E' in cfg.ab and a.lines[i].startswith("buffer_")): a.lines[i] = "s_nop 0"
            h = a.lines.index("L_helper:")
            k = 0
            for i in range(h, len(a.lines)):
                if a.lines[i].startswith("buffer_store") and k < 3:
                    a.lines[i] = f"buffer_load_dword v9, off, {sr(R_X,4)}, 0"; k += 1
        if cfg.jitter:
            import random
            rnd = random.Random(cfg.jitter)
            out_ = []; k = 0; started = False
            for i, l in enumerate(a.lines):
                if l.startswith("s_cbranch_scc1 L_helper"): started = True
                if started and (l == "s_barrier" or ("sc1" in l and rnd.random() < 0.3)) and rnd.random() < 0.5:
                    k += 1
                    out_ += ["s_cselect_b32 s101, 1, 0", f"s_lshl_b32 s100, s2, 3", f"s_add_u32 s100, s100, s{S_W}" if rnd.random() < 0.5 else "s_nop 0",
                             f"s_mul_i32 s100, s100, {rnd.randrange(1, 1 << 30) | 1}", "s_lshr_b32 s100, s100, 28", f"s_cmp_lt_u32 s100, {rnd.choice([1, 2, 4])}",
                             f"s_cbranch_scc0 L_jit{k}", f"s_sleep {rnd.choice([5, 20, 60, 120])}", f"L_jit{k}:", "s_cmp_eq_u32 s101, 1"]
                out_.append(l)
            a.lines = out_
        return a
    a = gen(cfg)
    if cfg.pages:
        import subprocess, re
        open("_p1.s", "w").write(wrap(a))
        subprocess.run(["clang", "-x", "assembler", "-target", "amdgcn-amd-amdhsa", "-mcpu=gfx950", "-c", "_p1.s", "-o", "_p1.o"], check=True)
        t = subprocess.run(["llvm-objdump", "-t", "_p1.o"], capture_output=True, text=True).stdout
        pts = sorted((int(m.group(1), 16), m.group(2), int(m.group(3))) for m in re.finditer(r"^([0-9a-f]+) .* L_brk_(\w)_(\d+)$", t, re.M))
        brks = {}; start = -0x300
        for (ad, k, i), (nx, _, _) in zip(pts, pts[1:]):
            if nx - start > 4096 - 112:
                brks[i] = k; start = ad
        cfg.brks = brks
        a = gen(cfg)
    else:
        cfg.brks = {}
        a = gen(cfg)
    errs = check(a.lines)
    for e in errs: print("HAZARD need %d have %d:\n   %s\n   %s" % (e[2], e[3], e[0], e[1]))
    open(out, "w").write(wrap(a))
    print("wrote", out, len(a.lines), "lines", len(errs), "hazards")
```

```python
import sys, math
from asmlib import Asm, vr, sr, f2u, check

NAME = "recurrent_scan__grouped_kv_mqa__glu_gated_geglu__prompt"

class Cfg:
    stamps = False
    stop = None
    force_fb = False
    shift = 101.0
    upd = (5,)
    brks = None
    pages = True
    touch = True
    far = ('L_attA', 'L_attB')
    odelay = 0
    xmap = 0
    krot = 8
    n_ga = 0
    pgath = False
    tprio = 1
    oord = (0, 1, 4, 5, 2, 3, 6, 7)
    oearly = 0
    sfl = ('sc1', 'sc1')
    hfl = 'sc1 nt'
    t_sb = 4
    e7 = 0
    itr = ()
    qsl = 2
    p0 = (4, 6)
    cs_in = False
    jitter = 0
    t_out = 0
    cs_late = False
    n_cs0 = 2
    n_csb = 4
    wfix = False
    stub = 's_nop 0\n'
    updm = 1
    updl = True
    cf = ('', '', '')
    nodot = False
    nodma = False
    nord = False
    sizes = [8, 8, 7] + [6]*6 + [5]
    ilen = 6
    g_init = 2
    t_pf = -1
    t_wo = (9, 10, 12, 13, 14, 15, 16, 17)
    t_wd0 = (15, 15, 16, 17)
    t_poll = 16
    bmid = 3
    lh = (1, 2, 3, 3, 4, 5, 6, 6)
    mb = (2, 3, 4, 5, 5, 6, 7, 7)
    dpos = (1, 1, 2, 2, 3, 4)
    hpos = (4, 5, 5, 6)
    hwait = {0: 0, 1: 3}
    t_h0 = (19, 19, 20, 20)
    t_chk = 19
    pbar = 1
    n_csa = 4
    lead0 = 10
    oflag = 'sc1'
    n_wo63 = 6
    nt = ''
    t_code = (12, 43)
    ofast = 0
    olate = 1
    yfirst = True
    n_gb = 1
    n_b0 = 0
    oswap = False
    t_tr = 30
    n_gp = 5
    i_q = 5
    i_qb = 2
    n_poll = 0
    e6 = 0
    pf_first = True
    bp = 0
    g_h = 29
    c_st = (-2, 0)
    c_q = (2, 99, 4, 0)
    gpos = 0
    g_tr = 4
    mord = 0
    g_early = True
    mswap = False
    c_arr = 1
    lead = [8, 10, 12, 9, 12, 12]
    n_pre = (2, 4)
    n_fin = (7, 6)
    g_cs = (3, 4, 5, 6)
    g_csc = 9
    bprio = 3
    st_rate = 0.5
    t_flag = 11
    t_kv2 = 6
    m16 = False
    ladder = True
    pp = -1
    pos = [(2, 6, 12), (2, 6, 10, 14), (1, 4, 7, 10, 13)]
    pa = 2
    pv = (1, 1)
    ab = ''
    pad = None

WS_KV, WS_ST, WS_FL, WS_CS, WS_O, WS_H, WS_DBG, WS_Q = 0, 0x80000, 0x28000, 0x40000, 0x100000, 0x400000, 0xC00000, 0xE00000
WS_SIZE = 0x1000000
L_X, L_W, L_R = 0, 49152, 147456
L_KV, L_WD, L_WO = 0, 65536, 98304
P_X, P_WQ, P_WK, P_WV, P_WO, P_WG, P_WU, P_WD, P_OUT, P_DBG, P_WS = 4, 6, 8, 10, 12, 16, 18, 20, 22, 24, 26
R_X, R_WKV, R_WD, R_WO, R_OUT, R_DBG, R_WS = 28, 32, 36, 40, 44, 48, 52
S_W, S_RB, S_CB, S_RT64, S_CT8 = 56, 57, 58, 59, 60
S_T16 = 61
S_VM = 62
S_XOFF = 64
S_WOFF = 65
S_HW = 66
S_ONES = 67
S_T0, S_T1, S_T2, S_T3 = 68, 69, 70, 71
S_OST = 72
S_FLG = 73
S_HST = 74
S_KQ, S_RT = 75, 76
S_WDO = 77
S_HLD = 78
S_W4K = 79
S_W2K = 80
S_SPIN = 81
S_WOO = 82
S_OLD = 83
S_EX = 84
S_TS = 86
S_CNT = 88
S_WSTEP = 89
S_TS2 = 90
S_RET = 0
R_W, R_CW = 92, 96
S_H4K = 3
S_HSB = 14
S_M0W = 15
SPIN_MAX = 1 << 18

V_LANE = 1
V_STAMP = 255
V_L16, V_KA, V_WDD, V_VA, V_DA, V_PO, V_FO, V_XR, QF = 208, 209, 210, 211, 212, 214, 215, 216, 220
V_GA = 0

def mfma32(d, a, b, c):
    cs = "0" if c is None else vr(c, 16)
    return f"v_mfma_f32_32x32x16_bf16 {vr(d,16)}, {vr(a,4)}, {vr(b,4)}, {cs}"
V_IDX = 48
def smf(d, a, b):
    return f"v_smfmac_f32_32x32x32_bf16 {vr(d,16)}, {vr(a,4)}, {vr(b,8)}, v{V_IDX}"
def mfma16(d, a, b, c):
    cs = "0" if c is None else vr(c, 4)
    return f"v_mfma_f32_16x16x32_bf16 {vr(d,4)}, {vr(a,4)}, {vr(b,4)}, {cs}"

def gen(cfg):
    a = Asm()
    nst = [0]
    def stamp(final=False, name=None):
        if not cfg.stamps: return
        i = nst[0]; nst[0] += 1
        if cfg.stamps in (8, 9, 10, 11, 12) and i and not final: return
        if cfg.stamps == 7:
            if isinstance(name, int): i = name
            elif final: i = 9
            elif name == "b0": i = 7
            elif name == "g1": i = 8
            elif i: return
        elif isinstance(name, int):
            nst[0] -= 1; return
        if cfg.stamps == 5:
            marks = {"b0": 2, "g1": 3, "att0": 4, "att1": 5}
            if final: i = 1
            elif name in marks: i = marks[name]
            elif i: return
        a(f"s_memrealtime {sr(S_TS,2)}\ns_memtime {sr(S_TS2,2)}\ns_waitcnt lgkmcnt(0)\nv_writelane_b32 v{V_STAMP}, s{S_TS}, {i}\nv_writelane_b32 v{V_STAMP}, s{S_TS2}, {32+i}")
    nbrk = [0]
    def brk(kind):
        i = nbrk[0]; nbrk[0] += 1
        if cfg.brks is None: a.label(f"L_brk_{kind}_{i}")
        elif i in cfg.brks:
            a(f"s_branch L_pg{i}\n.p2align 12\nL_stub{i}:\n" + cfg.stub + f"s_setpc_b64 {sr(S_RET,2)}\nL_pg{i}:")
    FAR = {"L_qt": "e", "L_joinA": "e", "L_attA": "a", "L_attB": "a", "L_fin2": "a"}
    def far(label, fall=False):
        if label in cfg.far:
            if fall: a(f"s_branch {label}")
            a(f".p2align 6\nL_stub{label}:\ns_nop 0\ns_setpc_b64 {sr(S_RET,2)}")
        a.label(label)
    def touch(kinds, first, n, maxn):
        ids = [] if cfg.brks is None else [i for i, k in cfg.brks.items() if k in kinds] + [l for l, k in FAR.items() if k in kinds and l in cfg.far]
        assert len(ids) <= maxn
        for j in range(maxn):
            if j < len(ids) and cfg.touch: a(f"s_cmp_eq_u32 s{S_HW}, {first + j % n}\ns_cbranch_scc0 L_nt{ids[j]}\ns_call_b64 {sr(S_RET,2)}, L_stub{ids[j]}\nL_nt{ids[j]}:")
            elif cfg.brks is None: a("s_nop 0\ns_nop 0\ns_nop 0")
    ncs = [0]
    CSR = [4, 6, 8, 10, 12] + list(range(16, 28, 2)) + [32, 34, 92, 94, 96, 98, 48]
    def cstamp(mode=8):
        if cfg.stamps != mode: return
        a(f"s_memtime {sr(CSR[ncs[0]], 2)}"); ncs[0] += 1
    def c12(k):
        if cfg.stamps == 12: a(f"s_memtime {sr([32, 34, 92, 94, 96, 98][k], 2)}\ns_waitcnt lgkmcnt(0)")
    def pad(pt):
        if not cfg.pad or cfg.pad[0] != pt: return
        if len(cfg.pad) > 2:
            inv = cfg.pad[2] == 2
            a(f"s_and_b32 s{S_T0}, s{S_TS}, 0x7fffffff")
            if inv: a(f"s_not_b32 s{S_T0}, s{S_T0}")
            a(f"v_mov_b32 v2, s{S_T0}\ns_mov_b64 exec, 1\nbuffer_atomic_umax v2, off, {sr(R_DBG,4)}, 0 offset:4 sc1\ns_mov_b64 exec, -1")
            a(f"L_pad0:\ns_memrealtime {sr(S_TS2,2)}\ns_waitcnt lgkmcnt(0)\ns_sub_u32 s{S_TS2}, s{S_TS2}, s{S_TS}\ns_cmp_lt_u32 s{S_TS2}, {int(cfg.pad[1]*100) - 1500}\ns_cbranch_scc1 L_pad0")
            a(f"buffer_load_dword v2, off, {sr(R_DBG,4)}, 0 offset:4 sc1\ns_waitcnt vmcnt(0)\nv_readfirstlane_b32 s{S_T0}, v2\ns_nop 3")
            if inv: a(f"s_not_b32 s{S_T0}, s{S_T0}")
            a(f"s_and_b32 s{S_TS}, s{S_TS}, 0x80000000\ns_or_b32 s{S_TS}, s{S_TS}, s{S_T0}")
        a(f"L_pad{len(a.lines)}:\ns_memrealtime {sr(S_TS2,2)}\ns_waitcnt lgkmcnt(0)\ns_sub_u32 s{S_TS2}, s{S_TS2}, s{S_TS}\ns_cmp_lt_u32 s{S_TS2}, {int(cfg.pad[1]*100)}\ns_cbranch_scc1 L_pad{len(a.lines)}")
    def srd(r, p, size):
        a(f"s_mov_b32 s{r}, s{p}\ns_and_b32 s{r+1}, s{p+1}, 0xffff\ns_mov_b32 s{r+2}, {hex(size)}\ns_mov_b32 s{r+3}, 0x20000")

    a(f"s_cmp_ge_u32 s2, 256\ns_cbranch_scc1 L_end")
    if cfg.pad: a(f"s_memrealtime {sr(S_TS,2)}")
    a(f"s_load_dwordx16 s[4:19], s[0:1], 0\ns_load_dwordx8 s[20:27], s[0:1], 64")
    if cfg.stamps:
        a(f"v_mov_b32 v{V_STAMP}, 0")
    a(f"v_lshrrev_b32 v2, 6, v0\nv_and_b32 v{V_LANE}, 63, v0")
    a(f"s_getpc_b64 {sr(S_EX,2)}")
    a.label("L_pc")
    a(f"""
    v_readfirstlane_b32 s{S_W}, v2
    s_and_b32 s{S_T0}, s2, 0xf8
    v_add_u32 v2, s{S_T0}, v2
    v_lshl_add_u32 v2, v2, 1, v{V_LANE}
    v_lshlrev_b32 v252, 7, v2
    v_min_u32 v252, L_code_end-L_pc-4, v252
    v_mov_b32 v253, 0
    v_lshl_add_u64 v[252:253], v[252:253], 0, {sr(S_EX,2)}
    s_mov_b64 exec, 3
    global_load_dword v9, v[252:253], off
    s_mov_b64 exec, -1
    """)
    a(f"""
    s_and_b32 s{S_T0}, s2, 7
    s_lshr_b32 s{S_T1}, s2, 3
    s_and_b32 s{S_CT8}, s{S_T1}, 7
    """)
    if cfg.xmap == 1:
        a(f"""
        s_and_b32 s{S_RB}, s{S_T1}, 15
        s_lshr_b32 s{S_T2}, s2, 7
        s_lshl_b32 s{S_CB}, s{S_T0}, 1
        s_add_u32 s{S_CB}, s{S_CB}, s{S_T2}
        s_lshr_b32 s{S_T1}, s{S_T1}, 3
        """)
    elif cfg.xmap == 2:
        a(f"""
        s_and_b32 s{S_T2}, s{S_T0}, 3
        s_lshl_b32 s{S_T2}, s{S_T2}, 2
        s_and_b32 s{S_RB}, s{S_T1}, 3
        s_add_u32 s{S_RB}, s{S_RB}, s{S_T2}
        s_and_b32 s{S_T2}, s{S_T0}, 4
        s_lshl_b32 s{S_T2}, s{S_T2}, 1
        s_lshr_b32 s{S_CB}, s{S_T1}, 2
        s_add_u32 s{S_CB}, s{S_CB}, s{S_T2}
        s_lshr_b32 s{S_T1}, s{S_T1}, 3
        """)
    else:
        a(f"""
        s_and_b32 s{S_T2}, s{S_T0}, 1
        s_lshl_b32 s{S_T2}, s{S_T2}, 3
        s_add_u32 s{S_RB}, s{S_T2}, s{S_CT8}
        s_lshr_b32 s{S_T1}, s{S_T1}, 3
        s_lshr_b32 s{S_T2}, s{S_T0}, 1
        s_lshl_b32 s{S_T2}, s{S_T2}, 2
        s_add_u32 s{S_CB}, s{S_T2}, s{S_T1}
        """)
    a(f"""
    s_lshl_b32 s{S_T2}, s{S_T0}, 2
    s_add_u32 s{S_RT64}, s{S_T2}, s{S_T1}
    s_and_b32 s{S_HW}, s{S_W}, 3
    s_lshl_b32 s{S_H4K}, s{S_HW}, 12
    v_lshlrev_b32 v{V_L16}, 4, v{V_LANE}
    s_mov_b32 s{R_X+2}, 0x200000
    s_mov_b32 s{R_X+3}, 0x20000
    s_cmp_ge_u32 s{S_W}, 4
    s_cbranch_scc1 L_helper
    """)

    sizes = cfg.sizes
    assert sum(sizes) == 64
    starts = [sum(sizes[:i]) for i in range(len(sizes))]
    S0, S1, PP, OO, CC, KF, VF = 16, 32, 48, 64, 80, 100, 108
    YY, HF, DF = 128, 160, 192
    HO = 160
    V_OA = 62
    WOF = [50, 54, 58, 96, 124] + list(range(224, 252, 4)) + [176, 180, 184, 188]
    wo_rd = [f"ds_read_b64_tr_b16 {vr(WOF[2*j+ct] + 2*t,2)}, v{V_OA+ct} offset:{cfg.oord[j]*2048 + t*512}" for j in range(8) for ct in range(2) for t in range(2)]
    def kv_off(t):
        c = max(i for i in range(len(starts)) if starts[i] <= t)
        return ((c + 1) % 3) * 16384 + (t - starts[c]) * 2048
    qload = f"buffer_load_dwordx4 {vr(QF,4)}, v{V_L16}, {sr(R_WS,4)}, s{S_T2} offen sc1"

    XS = [2, 0, 1, 2, 0, 1, 2, 0]
    L_PX = L_X + XS[2]*16384
    def setup_ids():
        a(f"""
        s_lshr_b32 s{S_KQ}, s{S_W}, 1
        s_and_b32 s{S_RT}, s{S_W}, 1
        s_lshl_b32 s{S_T2}, s{S_RT64}, 1
        s_add_u32 s{S_T2}, s{S_T2}, s{S_RT}
        s_lshl_b32 s{S_T0}, s{S_T2}, 3
        s_add_u32 s{S_T0}, s{S_T0}, s{S_CT8}
        s_lshl_b32 s{S_T0}, s{S_T0}, 2
        s_add_u32 s{S_T0}, s{S_T0}, s{S_KQ}
        s_lshl_b32 s{S_T0}, s{S_T0}, 10
        s_add_u32 s{S_OST}, s{S_T0}, {WS_O}
        s_lshl_b32 s{S_T0}, s2, 7
        s_lshl_b32 s{S_T1}, s{S_W}, 2
        s_add_u32 s{S_T0}, s{S_T0}, s{S_T1}
        s_add_u32 s{S_FLG}, s{S_T0}, {WS_FL}
        """)
    def common_setup():
        srd(R_WD, P_WD, 1792 * 1024)
        srd(R_WO, P_WO, 512 * 1024)
        srd(R_OUT, P_OUT, 0x200000)
        a(f"""
        s_lshl_b32 s{S_W4K}, s{S_W}, 12
        s_lshl_b32 s{S_W2K}, s{S_W}, 11
        s_mov_b32 s{S_VM}, 0xffff
        s_mov_b32 s{S_VM+1}, 0xffff
        s_lshl_b32 s{S_T2}, s{S_RT64}, 1
        s_add_u32 s{S_T2}, s{S_T2}, s{S_RT}
        s_mul_i32 s{S_T0}, s{S_KQ}, {448*1024}
        s_lshl_b32 s{S_T1}, s{S_RT}, 15
        s_add_u32 s{S_T0}, s{S_T0}, s{S_T1}
        s_lshl_b32 s{S_T1}, s{S_CT8}, 7
        s_add_u32 s{S_WDO}, s{S_T0}, s{S_T1}
        s_lshl_b32 s{S_T0}, s{S_W}, 15
        s_add_u32 s{S_WOO}, s{S_T0}, s{S_T1}
        s_and_b32 s{S_T0}, s{S_CT8}, {1 if cfg.oswap else 0}
        s_lshl_b32 s{S_T16}, s{S_T0}, 18
        s_add_u32 s{S_WOO}, s{S_WOO}, s{S_T16}
        s_mul_i32 s{S_T0}, s{S_T2}, 112
        s_mul_i32 s{S_T3}, s{S_KQ}, 28
        s_add_u32 s{S_T0}, s{S_T0}, s{S_T3}
        s_lshl_b32 s{S_T0}, s{S_T0}, 10
        s_add_u32 s{S_HLD}, s{S_T0}, {WS_H}
        s_lshl_b32 s{S_T0}, s{S_T2}, 15
        s_lshl_b32 s{S_T3}, s{S_KQ}, 13
        s_add_u32 s{S_T3}, s{S_T0}, s{S_T3}
        s_lshr_b32 s{S_T0}, s{S_T16}, 4
        s_xor_b32 s{S_OLD}, s{S_T3}, s{S_T0}
        s_add_u32 s{S_OLD}, s{S_OLD}, {WS_O}
        s_add_u32 s{S_T0}, s{S_T3}, s{S_T1}
        v_lshrrev_b32 v3, 5, v{V_LANE}
        v_bfe_u32 v5, v{V_LANE}, 3, 1
        v_lshl_add_u32 v2, v3, 1, v5
        v_bfe_u32 v7, v{V_LANE}, 4, 1
        v_lshl_add_u32 v4, v7, 2, v2
        v_and_b32 v6, 7, v{V_LANE}
        v_lshlrev_b32 v8, 4, v6
        v_lshl_add_u32 v4, v4, 10, v8
        v_add_u32 v{V_FO}, s{S_T0}, v4
        v_lshlrev_b32 v2, 8, v2
        v_lshl_add_u32 v2, v7, 7, v2
        v_lshl_add_u32 v2, v5, 4, v2
        v_and_b32 v4, 3, v6
        v_lshl_add_u32 v2, v4, 5, v2
        v_lshrrev_b32 v4, 2, v6
        v_lshl_add_u32 v2, v4, 12, v2
        s_lshl_b32 s{S_T0}, s{S_RT}, 13
        s_lshl_b32 s{S_T1}, s{S_KQ}, 10
        s_add_u32 s{S_T0}, s{S_T0}, s{S_T1}
        v_add_u32 v{V_GA}, s{S_T0}, v2
        v_add_u32 v{V_KA}, {L_KV}, v{V_L16}
        v_and_b32 v2, 15, v{V_LANE}
        v_lshl_add_u32 v2, v3, 4, v2
        v_lshlrev_b32 v2, 4, v2
        v_add_u32 v{V_VA}, {L_KV + 1024}, v2
        v_lshrrev_b32 v5, 3, v{V_LANE}
        v_and_b32 v6, 7, v{V_LANE}
        v_bfe_u32 v7, v{V_LANE}, 4, 1
        v_lshlrev_b32 v8, 2, v7
        v_xor_b32 v6, v6, v8
        v_lshlrev_b32 v6, 4, v6
        v_lshl_add_u32 v{V_WDD}, v5, 10, v6
        v_and_b32 v2, 1, v{V_LANE}
        v_bfe_u32 v4, v{V_LANE}, 1, 1
        v_lshl_add_u32 v2, v2, 1, v4
        v_bfe_u32 v5, v{V_LANE}, 2, 2
        v_lshl_add_u32 v4, v3, 3, v5
        v_lshlrev_b32 v4, 7, v4
        v_and_b32 v6, 2, v5
        v_xor_b32 v6, v6, v7
        v_lshl_add_u32 v6, v6, 5, v4
        v_and_b32 v8, 3, v{V_LANE}
        v_lshl_add_u32 v6, v8, 3, v6
        v_lshl_add_u32 v4, v2, 3, v4
        s_lshl_b32 s{S_T0}, s{S_KQ}, 13
        s_add_u32 s{S_T0}, s{S_T0}, {L_WD}
        v_add_u32 v{V_DA}, s{S_T0}, v6
        v_xor_b32 v{V_DA+1}, 64, v{V_DA}
        """)
        a(f"""
        s_lshr_b32 s{S_T0}, s{S_RT64}, 1
        s_lshl_b32 s{S_T0}, s{S_T0}, 3
        s_lshl_b32 s{S_T1}, s{S_KQ}, 1
        s_add_u32 s{S_T0}, s{S_T0}, s{S_T1}
        s_lshl_b32 s{S_T0}, s{S_T0}, 7
        v_and_b32 v2, 3, v{V_LANE}
        v_lshlrev_b32 v6, 2, v2
        v_and_b32 v8, 1, v5
        v_lshl_add_u32 v6, v8, 14, v6
        v_lshrrev_b32 v8, 1, v5
        v_lshl_add_u32 v6, v8, 7, v6
        """ if cfg.xmap == 1 else f"""
        s_lshr_b32 s{S_T0}, s{S_RT64}, 3
        s_and_b32 s{S_T1}, s{S_KQ}, 2
        s_lshl_b32 s{S_T1}, s{S_T1}, 1
        s_add_u32 s{S_T0}, s{S_T0}, s{S_T1}
        s_bfe_u32 s{S_T2}, s{S_RT64}, 0x20001
        s_lshl_b32 s{S_T2}, s{S_T2}, 3
        s_add_u32 s{S_T0}, s{S_T0}, s{S_T2}
        s_and_b32 s{S_T1}, s{S_KQ}, 1
        s_lshl_b32 s{S_T1}, s{S_T1}, 7
        s_add_u32 s{S_T0}, s{S_T0}, s{S_T1}
        s_lshl_b32 s{S_T0}, s{S_T0}, 7
        s_lshl_b32 s{S_T1}, s{S_KQ}, 1
        v_and_b32 v2, 3, v{V_LANE}
        v_lshlrev_b32 v6, 2, v2
        v_lshl_add_u32 v6, v5, 12, v6
        """ if cfg.xmap == 2 else f"""
        s_lshr_b32 s{S_T0}, s{S_RT64}, 4
        s_lshl_b32 s{S_T1}, s{S_KQ}, 1
        s_add_u32 s{S_T0}, s{S_T0}, s{S_T1}
        s_bfe_u32 s{S_T2}, s{S_RT64}, 0x30001
        s_lshl_b32 s{S_T2}, s{S_T2}, 3
        s_add_u32 s{S_T0}, s{S_T0}, s{S_T2}
        s_lshl_b32 s{S_T0}, s{S_T0}, 7
        v_and_b32 v2, 3, v{V_LANE}
        v_lshlrev_b32 v6, 2, v2
        v_lshl_add_u32 v6, v5, 13, v6
        """)
        a(f"""
        v_add_u32 v6, s{S_T0}, v6
        s_lshr_b32 s{S_T0}, s{S_T16}, 16
        s_xor_b32 s{S_T1}, s{S_T1}, s{S_T0}
        s_and_b32 s{S_T0}, s2, 0xc7
        s_lshl_b32 s{S_T1}, s{S_T1}, 3
        s_add_u32 s{S_T0}, s{S_T0}, s{S_T1}
        s_lshl_b32 s{S_T0}, s{S_T0}, 7
        s_lshl_b32 s{S_T1}, s{S_RT}, 2
        s_add_u32 s{S_T0}, s{S_T0}, s{S_T1}
        v_and_b32 v8, 1, v5
        v_lshlrev_b32 v8, 10, v8
        v_lshl_add_u32 v8, v2, 3, v8
        v_cmp_gt_u32 vcc, 16, v{V_LANE}
        v_add_u32 v8, s{S_T0}, v8
        s_nop 0
        v_cndmask_b32 v{V_PO}, v8, v6, vcc
        """)

    def img_params(simg, sstride, soff):
        a(f"""
        s_lshr_b32 s{S_T0}, s{S_CB}, 2
        s_and_b32 s{S_T1}, s{S_CB}, 3
        s_mul_i32 s{soff}, s{S_T0}, 896
        s_lshl_b32 s{S_T2}, s{S_T1}, 8
        s_add_u32 s{soff}, s{soff}, s{S_T2}
        s_lshr_b32 s{S_T2}, s{simg}, 1
        s_lshl_b32 s{S_T1}, s{S_T1}, 1
        s_add_u32 s{S_T1}, s{S_T1}, s{S_T2}
        s_lshl_b32 s{S_T2}, s{S_T2}, 7
        s_add_u32 s{soff}, s{soff}, s{S_T2}
        s_lshl_b32 s{S_T0}, s{S_T0}, 1
        s_and_b32 s{S_T2}, s{simg}, 1
        s_add_u32 s{S_T0}, s{S_T0}, s{S_T2}
        s_lshl_b32 s{S_T0}, s{S_T0}, 7
        s_movk_i32 s{sstride}, 3584
        s_cmp_eq_u32 s{S_T1}, 7
        s_cselect_b32 s{soff}, s{S_T0}, s{soff}
        s_cselect_b32 s{sstride}, 1024, s{sstride}
        """)
    def img_srd(r, sstride):
        a(f"""
        s_cmp_eq_u32 s{S_T2}, 0
        s_cselect_b32 s{r}, s{P_WG}, s{P_WU}
        s_cselect_b32 s{r+1}, s{P_WG+1}, s{P_WU+1}
        s_cmp_eq_u32 s{S_T1}, 7
        s_cselect_b32 s{r}, s{P_WQ}, s{r}
        s_cselect_b32 s{r+1}, s{P_WQ+1}, s{r+1}
        s_and_b32 s{r+1}, s{r+1}, 0xffff
        s_lshl_b32 s{r+2}, s{sstride}, 9
        s_mov_b32 s{r+3}, 0x20000
        """)

    ACC, XF, WF, V_XA, V_WR = 16, 144, 176, 248, 250
    RWP, RWQ, RA = 216, 232, 2
    L_RA = L_W + 8192
    def acc(ti, rt): return ACC + 64*ti + 16*rt
    KG = 2.0 * math.sqrt(2.0 / math.pi) * math.log2(math.e)
    a('; ==== waves 0..3, start: K or V tile of 16 rows (LayerNorm folded in), row statistics, share of the W column sums ====')
    assert cfg.krot == 8 and cfg.g_init in (-1, 0, 2)
    CL, CSUM = 16, 40
    a(f"""
    v_and_b32 v5, 15, v{V_LANE}
    v_lshrrev_b32 v6, 4, v{V_LANE}
    v_lshrrev_b32 v7, 3, v{V_LANE}
    v_and_b32 v4, 7, v{V_LANE}
    s_lshl_b32 s{S_T16}, s{S_RB}, 3
    s_lshr_b32 s{S_T2}, s{S_CB}, 1
    s_add_u32 s{S_T16}, s{S_T16}, s{S_T2}
    s_cmp_lg_u32 s{S_HW}, 0
    s_cbranch_scc1 L_csld
    v_xor_b32 v2, v6, v4
    v_lshlrev_b32 v2, 4, v2
    v_lshl_add_u32 v132, v7, 10, v2
    v_xor_b32 v133, 64, v132
    v_add_u32 v133, {8192-1024}, v133
    s_lshl_b32 s{S_XOFF}, s{S_T16}, 14
    s_mov_b32 s{R_WKV+2}, 0x4000
    s_mov_b32 s{R_WKV+3}, 0x20000
    s_mov_b32 m0, {L_PX}
    s_and_b32 s{S_T3}, s{S_CB}, 1
    s_waitcnt lgkmcnt(0)
    """)
    stamp()
    a(f"s_mov_b32 s{R_X}, s{P_X}\ns_and_b32 s{R_X+1}, s{P_X+1}, 0xffff")
    for gq in range(4):
        for kb in (2*gq, 2*gq + 1):
            if kb: a(f"s_mov_b32 m0, {L_PX + 2048*kb}\ns_add_u32 s{S_XOFF}, s{S_XOFF}, 128")
            a(f"buffer_load_dwordx4 v132, {sr(R_X,4)}, s{S_XOFF} offen lds\nbuffer_load_dwordx4 v133, {sr(R_X,4)}, s{S_XOFF} offen offset:1024 lds")
        if gq == 0:
            a(f"s_cmp_eq_u32 s{S_T3}, 0\ns_cselect_b32 s{R_WKV}, s{P_WK}, s{P_WV}\ns_cselect_b32 s{R_WKV+1}, s{P_WK+1}, s{P_WV+1}\ns_and_b32 s{R_WKV+1}, s{R_WKV+1}, 0xffff")
        a(f"s_mov_b32 m0, {L_R + 4096*gq}\ns_movk_i32 s{S_T0}, {4096*gq}")
        for e in range(4): a(f"buffer_load_dwordx4 v{V_L16}, {sr(R_WKV,4)}, s{S_T0} offen offset:{1024*e} lds")
        if cfg.p0 and gq + 1 == cfg.p0[0]:
            stamp(name=1); a("s_barrier"); stamp(name=2)
    n_ool = len(a.lines)
    if cfg.cs_in: a("s_branch L_ld_done")
    a.label("L_csld")
    a(f"s_and_b32 s{S_CNT}, s{S_RB}, 3")
    img_params(S_CNT, S_WSTEP, S_WOFF)
    a(f"""
    s_and_b32 s{S_T0}, s{S_RB}, 4
    s_and_b32 s{S_T3}, s{S_RB}, 8
    s_lshl_b32 s{S_T3}, s{S_T3}, 2
    s_add_u32 s{S_T0}, s{S_T0}, s{S_T3}
    s_lshl_b32 s{S_T0}, s{S_T0}, 3
    s_mul_i32 s{S_T0}, s{S_T0}, s{S_WSTEP}
    s_add_u32 s{S_WOFF}, s{S_T0}, s{S_WOFF}
    v_mul_u32_u24 v8, s{S_WSTEP}, v7
    v_lshl_add_u32 v219, v4, 4, v8
    s_waitcnt lgkmcnt(0)
    """)
    nst[0] = 0
    stamp()
    a(f"s_mov_b32 s{R_X}, s{P_X}\ns_and_b32 s{R_X+1}, s{P_X+1}, 0xffff")
    img_srd(R_CW, S_WSTEP)
    a(f"s_lshl_b32 s{S_WSTEP}, s{S_WSTEP}, 3")
    def csload(i):
        t = (f"s_add_u32 s{S_T0}, s{S_HW}, {3*i - 1}\ns_and_b32 s{S_T1}, s{S_T0}, 28\ns_add_u32 s{S_T1}, s{S_T1}, s{S_T0}\ns_mul_i32 s{S_T1}, s{S_T1}, s{S_WSTEP}\ns_add_u32 s{S_T1}, s{S_T1}, s{S_WOFF}\n")
        if i == 5: t += f"s_cmp_gt_u32 s{S_T0}, 15\ns_cselect_b32 s{S_T1}, s{R_CW+2}, s{S_T1}\n"
        return t + f"buffer_load_dwordx4 {vr(CL+4*i,4)}, v219, {sr(R_CW,4)}, s{S_T1} offen"
    for i in range(6):
        a(csload(i))
        if cfg.p0 and i + 1 == cfg.p0[1]:
            stamp(name=1); a("s_barrier"); stamp(name=2)
    if not cfg.cs_in:
        a("s_branch L_ld_done")
        ool = a.lines[n_ool:]; del a.lines[n_ool:]
    a.label("L_ld_done")
    a(f"""
    s_mov_b32 s{S_ONES}, 0x3f803f80
    v_lshlrev_b32 v2, 3, v5
    v_lshl_add_u32 v2, v6, 8, v2
    v_add_u32 v130, {L_R}, v2
    v_lshrrev_b32 v3, 1, v5
    v_xor_b32 v3, v3, v6
    v_lshlrev_b32 v3, 4, v3
    v_lshl_add_u32 v3, v5, 7, v3
    v_mov_b32 v{V_XA}, v3
    v_xor_b32 v{V_XA+1}, 64, v3
    v_lshrrev_b32 v3, 5, v{V_LANE}
    v_and_b32 v7, 1, v6
    v_bfe_u32 v8, v{V_LANE}, 2, 2
    v_lshl_add_u32 v4, v6, 3, v8
    v_lshlrev_b32 v4, 7, v4
    v_and_b32 v2, 3, v{V_LANE}
    v_lshl_add_u32 v4, v2, 3, v4
    v_lshrrev_b32 v8, 1, v8
    v_lshl_add_u32 v8, v7, 1, v8
    v_xor_b32 v8, s{S_HW}, v8
    v_lshl_add_u32 v8, v8, 5, v4
    v_add_u32 v{V_WR}, {L_W}, v8
    v_add_u32 v{V_WR+1}, {L_W + 49152}, v8
    s_lshr_b32 s{S_EX}, s{S_T16}, 1
    s_lshl_b32 s{S_EX}, s{S_EX}, 11
    s_and_b32 s{S_T3}, s{S_T16}, 1
    s_and_b32 s{S_T2}, s{S_CB}, 1
    s_cmp_eq_u32 s{S_T2}, 0
    s_cbranch_scc0 L_pubV
    s_lshl_b32 s{S_T3}, s{S_T3}, 8
    s_add_u32 s{S_EX}, s{S_EX}, s{S_T3}
    v_lshl_add_u32 v2, v3, 5, v5
    s_lshl_b32 s{S_EX+1}, s{S_T16}, 10
    s_add_u32 s{S_EX+1}, s{S_EX+1}, {WS_ST}
    s_branch L_pub
    """)
    a.label("L_pubV")
    a(f"""
    s_lshl_b32 s{S_T3}, s{S_T3}, 9
    s_add_u32 s{S_EX}, s{S_EX}, s{S_T3}
    s_add_u32 s{S_EX}, s{S_EX}, 1024
    v_and_b32 v2, 3, v5
    v_bfe_u32 v4, v5, 2, 1
    v_lshl_add_u32 v2, v4, 3, v2
    v_bfe_u32 v4, v5, 3, 1
    v_lshl_add_u32 v2, v4, 2, v2
    v_lshl_add_u32 v2, v3, 4, v2
    s_mov_b32 s{S_EX+1}, {WS_SIZE}
    """)
    a.label("L_pub")
    a("v_lshlrev_b32 v2, 4, v2\nv_lshl_add_u32 v220, v7, 3, v2")
    def capture(fn):
        n = len(a.lines); fn(); L = a.lines[n:]; del a.lines[n:]; return L
    def part1():
        srd(R_WS, P_WS, WS_SIZE)
        a(f"""
        v_and_b32 v6, 7, v{V_LANE}
        v_lshrrev_b32 v4, 4, v{V_LANE}
        v_lshl_add_u32 v6, v6, 2, v4
        v_bfe_u32 v4, v{V_LANE}, 3, 1
        v_lshl_add_u32 v6, v6, 1, v4
        v_lshlrev_b32 v222, 2, v6
        s_lshl_b32 s{S_T0}, s{S_CB}, 14
        s_lshl_b32 s{S_T1}, s{S_RB}, 10
        s_add_u32 s{S_T0}, s{S_T0}, s{S_T1}
        s_lshl_b32 s{S_T1}, s{S_HW}, 8
        s_add_u32 s{S_T0}, s{S_T0}, s{S_T1}
        s_add_u32 s{S_CNT}, s{S_T0}, {WS_CS}
        """)
    def part2():
        setup_ids()
        for i in range(4): a(f"v_mov_b32 v{12+i}, -1")
        common_setup()
        a(f"""
        v_and_b32 v2, 0xff, v{V_L16}
        v_add_u32 v11, {L_R + 256}, v2
        v_xor_b32 v6, v3, v7
        v_lshl_add_u32 v2, v6, 9, v2
        v_add_u32 v10, {L_R}, v2
        s_lshl_b32 s{S_T0}, s{S_HW}, 11
        v_add_u32 v254, s{S_T0}, v{V_L16}
        s_mul_i32 s{S_T0}, s{S_HW}, 2208
        v_lshl_add_u32 v9, v3, 4, v{V_L16}
        v_add_u32 v9, s{S_T0}, v9
        s_lshr_b32 s{S_T0}, s{S_CB}, 2
        s_and_b32 s{S_T1}, s{S_CB}, 3
        s_mul_i32 s{S_T2}, s{S_RB}, 448
        s_mul_i32 s{S_T3}, s{S_T0}, 28
        s_add_u32 s{S_T2}, s{S_T2}, s{S_T3}
        s_lshl_b32 s{S_T3}, s{S_T1}, 3
        s_add_u32 s{S_T2}, s{S_T2}, s{S_T3}
        s_add_u32 s{S_T2}, s{S_T2}, s{S_HW}
        s_lshl_b32 s{S_T2}, s{S_T2}, 10
        s_add_u32 s{S_HST}, s{S_T2}, {WS_H}
        s_add_u32 s{S_HSB}, s{S_HST}, 4096
        s_lshl_b32 s{S_T2}, s{S_RB}, 7
        s_lshl_b32 s{S_T3}, s{S_T0}, 3
        s_add_u32 s{S_T2}, s{S_T2}, s{S_T3}
        s_add_u32 s{S_T2}, s{S_T2}, s{S_HW}
        s_lshl_b32 s{S_T2}, s{S_T2}, 10
        s_add_u32 s{S_T2}, s{S_T2}, {WS_Q}
        """)
    defer1 = capture(part1)
    defer2 = capture(part2) + [f"s_cmp_eq_u32 s{S_T1}, 3\ns_cselect_b32 s{S_HSB}, s{S_T2}, s{S_HSB}"]
    for l in defer1: a(l)
    defer1.clear()
    a(f"s_cmp_lg_u32 s{S_HW}, 0\ns_cbranch_scc1 L_cs")
    PF, PACC, PCS, PRS, PG, PSQ, PONE, PID, PSQP, PF1 = 16, 80, 84, 88, 92, 96, 100, 104, 106, 107
    for i in range(4): a(f"v_mov_b32 v{PONE+i}, s{S_ONES}")
    a(f"v_mov_b32 v{PF1}, 1.0\nv_mov_b32 v{PSQP}, 0\nv_mov_b32 v{PID}, 0\nv_mov_b32 v{PID+1}, 0\nv_mov_b32 v221, 0")
    a(f"s_mov_b32 s{S_T0}, 0x00100001\ns_mov_b32 s{S_T1}, 0x10000100")
    for r in range(4): a(f"s_lshl_b64 exec, {sr(S_T0,2)}, {r}\nv_mov_b32 v{PID + (r >> 1)}, {hex(0x4780 << (16*(r & 1)))}")
    a("s_mov_b64 exec, -1")
    if not cfg.p0: a("s_barrier")
    stamp(name=3)
    def p_reads(gq):
        f = PF + 32*(gq & 1); L = []
        for s in range(4):
            L.append(f"ds_read_b128 {vr(f+8*s,4)}, v{V_XA + (s & 1)} offset:{L_PX + 4096*gq + 2048*(s >> 1)}")
            L += [f"ds_read_b64_tr_b16 {vr(f+8*s+4+2*t,2)}, v130 offset:{4096*gq + 1024*s + 128*t}" for t in range(2)]
        return L
    a("s_waitcnt vmcnt(24)")
    for l in p_reads(0): a(l)
    for gq in range(4):
        a("s_waitcnt lgkmcnt(0)")
        rd = p_reads(gq + 1) if gq < 3 else []
        k = 0
        for s in range(4):
            x, w = PF + 32*(gq & 1) + 8*s, PF + 32*(gq & 1) + 8*s + 4
            for d, A_, B_ in ((PG, x, x), (PRS, PONE, x), (PCS, w, PONE), (PACC, w, x)):
                a(mfma16(d, A_, B_, None if gq + s == 0 else d))
                if k == 3 and gq < 3:
                    a(f"s_waitcnt vmcnt({16 - 8*gq})")
                    if gq == 2: stamp(); stamp(name=4)
                if k >= 3 and rd: a(rd.pop(0))
                k += 1
    a.nop(4)
    for r in range(4): a(f"s_lshl_b64 exec, {sr(S_T0,2)}, {r}\nv_mov_b32 v{PSQP}, v{PG+r}")
    a(f"""
    s_mov_b64 exec, -1
    v_mul_f32 v{PRS}, {hex(f2u(-1.0/512))}, v{PRS}
    v_mfma_f32_16x16x4_f32 {vr(PSQ,4)}, v{PF1}, v{PSQP}, 0
    """)
    for i in range(4): a(f"v_fmac_f32 v{PACC+i}, v{PRS}, v{PCS+i}")
    a(f"""
    v_cvt_pk_bf16_f32 v12, v{PRS}, v{PRS}
    v_and_b32 v2, 0xffff0000, v12
    v_sub_f32 v2, v{PRS}, v2
    v_cvt_pk_bf16_f32 v12, v{PRS}, v2
    s_and_b32 s{S_T2}, s{S_CB}, 1
    s_cmp_eq_u32 s{S_T2}, 0
    v_mul_f32 v14, {hex(f2u(1.0/512))}, v{PSQ}
    v_fma_f32 v14, -v{PRS}, v{PRS}, v14
    v_max_f32 v14, 0, v14
    v_add_f32 v14, {hex(f2u(1e-5))}, v14
    v_rsq_f32 v3, v14
    s_nop 0
    """)
    for i in range(4): a(f"v_mul_f32 v{PACC+i}, v{PACC+i}, v3")
    a(f"""
    v_cvt_pk_bf16_f32 v216, v{PACC}, v{PACC+1}
    v_cvt_pk_bf16_f32 v217, v{PACC+2}, v{PACC+3}
    s_cbranch_scc0 L_preV
    s_mov_b32 exec_lo, 0
    v_mov_b32 v12, 0
    s_and_b32 s{S_T0}, s{S_T16}, 1
    s_sub_u32 exec_lo, s{S_T0}, 1
    s_mov_b32 exec_hi, exec_lo
    v_swap_b32 v12, v14
    s_mov_b32 exec_lo, 0xffff0000
    s_mov_b32 exec_hi, 0
    v_mul_f32 v12, {hex(f2u(-KG))}, v3
    v_mul_f32 v2, v3, v3
    v_mul_f32 v14, {hex(f2u(0.044715))}, v12
    v_mul_f32 v14, v14, v2
    s_mov_b64 exec, -1
    v_mov_b32 v13, v12
    v_mov_b32 v15, v14
    s_branch L_nofin
    """)
    a.label("L_preV")
    a(f"s_nop 0\nv_mfma_f32_16x16x16_bf16 {vr(PACC,4)}, v[216:217], {vr(PID,2)}, 0")
    a.nop(8)
    a(f"v_cvt_pk_bf16_f32 v216, v{PACC}, v{PACC+1}\nv_cvt_pk_bf16_f32 v217, v{PACC+2}, v{PACC+3}\ns_branch L_nofin")
    n_ool = len(a.lines)
    a.label("L_cs")
    if not cfg.p0: a("s_barrier")
    stamp(name=3)
    touch("g", 1, 3, 4)
    for e in range(6):
        a(f"s_waitcnt vmcnt({5 - e})")
        for i in range(4):
            if e == 0: a(f"v_lshlrev_b32 v{CSUM+2*i}, 16, v{CL+i}\nv_and_b32 v{CSUM+2*i+1}, 0xffff0000, v{CL+i}")
            else: a(f"v_lshlrev_b32 v2, 16, v{CL+4*e+i}\nv_and_b32 v3, 0xffff0000, v{CL+4*e+i}\nv_add_f32 v{CSUM+2*i}, v{CSUM+2*i}, v2\nv_add_f32 v{CSUM+2*i+1}, v{CSUM+2*i+1}, v3")
    stamp(name=4)
    for j in range(4): a(f"v_permlane32_swap_b32 v{CSUM+j}, v{CSUM+4+j}")
    for j in (0, 2, 1, 3): a(f"v_add_f32 v{CSUM+j}, v{CSUM+j}, v{CSUM+4+j}")
    a(f"v_permlane16_swap_b32 v{CSUM}, v{CSUM+2}\ns_nop 0\nv_permlane16_swap_b32 v{CSUM+1}, v{CSUM+3}")
    a(f"v_add_f32 v{CSUM}, v{CSUM}, v{CSUM+2}\nv_add_f32 v{CSUM+1}, v{CSUM+1}, v{CSUM+3}\ns_nop 0")
    a(f"v_add_f32_dpp v221, v{CSUM}, v{CSUM} row_ror:8 row_mask:0xf bank_mask:0xf\nv_add_f32_dpp v221, v{CSUM+1}, v{CSUM+1} row_ror:8 row_mask:0xf bank_mask:0xc")
    if cfg.cs_in:
        a("s_branch L_nofin")
        ool = a.lines[n_ool:]; del a.lines[n_ool:]
    a.label("L_nofin")
    stamp(name=5)
    init = [f"buffer_store_dword v221, v222, {sr(R_WS,4)}, s{S_CNT} offen sc1",
            f"s_cmp_lg_u32 s{S_HW}, 0\ns_cbranch_scc1 L_nopub\n"
            f"buffer_store_dwordx2 v[216:217], v220, {sr(R_WS,4)}, s{S_EX} offen sc1\n"
            f"buffer_store_dwordx4 v[12:15], v{V_L16}, {sr(R_WS,4)}, s{S_EX+1} offen sc1\nL_nopub:"]
    if cfg.g_init == -1:
        for l in init: a(l)
    brk("g")
    stamp(name=6)
    a("s_barrier")
    nst[0] = 2
    stamp(name="b0"); pad("b0"); c12(0)
    HS = [divmod(g, 2) for g in range(28)] + [(14, 0), (15, 0), (14, 1), (15, 1)]
    def wf(K, mt): return WF + 16*((K + 1) & 1) + 4*mt
    def x_reads(g):
        K, nh = HS[g]
        return [f"ds_read_b128 {vr(XF+16*(g&1)+4*i,4)}, v{V_XA+(K&1)} offset:{XS[K>>1]*16384 + (4*nh+i)*2048}" for i in range(4)]
    def w_reads(K):
        slot = ((K >> 1) + 2) % 3
        return [f"ds_read_b64_tr_b16 {vr(wf(K,mt)+2*t,2)}, v{V_WR+(mt>>1)} offset:{(mt&1)*24576 + slot*8192 + (K&1)*4096 + t*512}" for mt in range(4) for t in range(2)]
    def mm(g, mt, i):
        K, nh = HS[g]; nt = 4*nh + i
        d = acc(mt >> 1, nt >> 1) + 8*(mt & 1) + 4*(nt & 1)
        return mfma16(d, wf(K, mt), XF + 16*(g&1) + 4*i, None if K == 0 else d)
    def rw_reads(rt, dst): return [f"ds_read_b128 {vr(dst+4*i,4)}, v{10 + (i >> 1)} offset:{2048*rt + 1024*(i & 1)}" for i in range(4)]
    op_reads = [f"ds_read_b128 {vr(RA+4*i,4)}, v9 offset:{L_RA + 1056*i}" for i in range(2)] + rw_reads(0, RWP) + rw_reads(1, RWQ)
    def rank1(ti, rt, rw): return mfma32(acc(ti, rt), RA + 4*ti, rw + 2, acc(ti, rt))
    def split2(src, dst, dup):
        if dup:
            return [f"v_cvt_pk_bf16_f32 v{dst}, v{src}, v{src}", f"v_and_b32 v2, 0xffff0000, v{dst}", f"v_sub_f32 v2, v{src}, v2", f"v_cvt_pk_bf16_f32 v{dst+1}, v2, v2"]
        return [f"v_cvt_pk_bf16_f32 v{dst}, v{src}, v{src}", f"v_and_b32 v2, 0xffff0000, v{dst}", f"v_sub_f32 v2, v{src}, v2", f"v_cvt_pk_bf16_f32 v{dst}, v{src}, v2", f"v_mov_b32 v{dst+1}, v{dst}"]
    w = w_reads(0)
    for l in w[:2] + x_reads(0) + w[2:]: a(l)
    def half_step(g):
        K, nh = HS[g]
        neww = g == 0 or HS[g-1][0] < K and g != 31
        gaps = [[] for _ in range(16)]
        o = 0
        if g & 3 == 3 and g < 28 or g == cfg.g_h:
            gaps[0] = ["s_barrier"]; o = 1
        rd = x_reads(g + 1) if g < 31 else rw_reads(2, WF + 16)
        if g < 29 and HS[g+1][0] > K:
            w = w_reads(K + 1); rd = w[:2] + rd + w[2:]
        if g == cfg.g_h: rd += op_reads
        if cfg.nord: rd = []
        for i, l in enumerate(rd): gaps[o + i].append(l)
        if neww:
            top = "lgkmcnt(4)"
            gaps[7].append(f"s_waitcnt lgkmcnt({min(len(rd), 8 - o)})")
        else: top = "lgkmcnt(10)" if g == cfg.g_h + 1 else "lgkmcnt(0)"
        brk("g" if g < 28 else "e")
        a("s_waitcnt " + ("vmcnt(0) " if g == 4*cfg.c_arr + 3 else "") + top)
        if g == cfg.g_init: gaps[9].append(init[0]); gaps[12].append(init[1])
        dl = defer1 if g <= cfg.g_init else defer2
        for k in range(16):
            if not gaps[k]:
                gaps[k] = dl[:2]; del dl[:2]
        assert not (g >= 2 and defer1) and not (g >= 27 and defer2)
        for k in range(16):
            a(mm(g, k >> 2, k & 3))
            for l in gaps[k]: a(l)
            if g == 31 and k == 3: a(("s_waitcnt lgkmcnt(4)\n" if cfg.g_h == 30 else "") + rank1(0, 0, RWP))
            if k == 0 and (g == 27 or (cfg.stamps == 4 and g & 3 == 3)): stamp()
            if k == 0 and g in (3, 27): c12(1 if g == 3 else 2)
            if k == 15 and g >= cfg.g_tr and g & 1 == 0 and cfg.stamps == 10 and ncs[0] < 6: a(f"s_memtime {sr([32, 34, 92, 94, 96, 98][ncs[0]], 2)}"); ncs[0] += 1
    for g in range(30): half_step(g)
    def swaps(o): return [f"v_permlane16_swap_b32 v{o}, v{o+2}", f"v_permlane16_swap_b32 v{o+1}, v{o+3}"]
    def gelu(ti, rt, rw, mf=(), pre=()):
        A = acc(ti, rt)
        def b(i): return rw + 8 + 4*(i >> 2)
        def vp(i): return rw + 6*(i >> 2)
        t1, t2, o = 144, 152, HO + 16*ti + 4*rt
        L = [".p2align 3"]
        for i in range(0, 8, 2): L.append(f"v_pk_mul_f32 {vr(t1+i,2)}, {vr(A+i,2)}, {vr(A+i,2)}")
        L += pre
        for i in range(0, 8, 2): L.append(f"v_pk_fma_f32 {vr(t1+i,2)}, {vr(t1+i,2)}, {vr(b(i)+2,2)}, {vr(b(i),2)}")
        for i in range(0, 8, 2): L.append(f"v_pk_mul_f32 {vr(t1+i,2)}, {vr(t1+i,2)}, {vr(A+i,2)}")
        L += mf
        for i in range(8): L.append(f"v_exp_f32 v{t1+i}, v{t1+i}")
        for i in range(0, 8, 2): L.append(f"v_pk_mul_f32 {vr(t2+i,2)}, {vr(A+i,2)}, {vr(A+8+i,2)}")
        for i in range(0, 8, 2): L.append(f"v_pk_fma_f32 {vr(t1+i,2)}, {vr(t1+i,2)}, {vr(vp(i),2)}, {vr(vp(i),2)}")
        for i in range(8): L.append(f"v_rcp_f32 v{t1+i}, v{t1+i}")
        for i in range(0, 8, 2): L.append(f"v_pk_mul_f32 {vr(t2+i,2)}, {vr(t2+i,2)}, {vr(t1+i,2)}")
        for i in range(4): L.append(f"v_cvt_pk_bf16_f32 v{o+i}, v{t2+2*i}, v{t2+2*i+1}")
        return L
    def qtile(rt, rw):
        A = acc(1, rt); qs = hex(f2u(-0.25*math.log2(math.e)/KG))
        L = [f"v_mul_f32 v{12+i}, {qs}, v{rw + 8 + 4*(i >> 1)}" for i in range(4)]
        L += [f"s_add_u32 s{S_T0}, s{S_HSB}, {32768*rt}", f"s_add_u32 s{S_T1}, s{S_T0}, 4096"]
        for hd in range(2):
            h = A + 8*hd
            for i in range(0, 8, 2): L.append(f"v_pk_mul_f32 {vr(h+i,2)}, {vr(h+i,2)}, {vr(12 + 2*(i >> 2),2)}")
            for i in range(4): L.append(f"v_cvt_pk_bf16_f32 v{h+i}, v{h+2*i}, v{h+2*i+1}")
            for i in (0, 2, 1, 3): L.append(f"v_min_u32 v{h+i}, -2, v{h+i}")
            L += [swaps(h)[0], "s_nop 0", swaps(h)[1]]
            L.append(f"buffer_store_dwordx4 {vr(h,4)}, v{V_L16}, {sr(R_WS,4)}, s{S_T0 + hd} offen sc1")
        return L
    L_HQ = L_KV + 49152
    def att_regs():
        a(f"""
        v_and_b32 v5, 27, v{V_LANE}
        v_cmp_eq_u32 vcc, 16, v5
        v_mov_b32 v6, 0x47804780
        v_mov_b32 v{V_IDX}, 0xdddddddd
        v_mov_b32 v11, 1
        v_mov_b32 v49, 0.5
        v_cndmask_b32 v{VF}, 0, v6, vcc
        v_mov_b32 v{VF+1}, v{VF}
        """)
        for i in range(2, 16, 2): a(f"v_mov_b64 {vr(VF+i,2)}, {vr(VF,2)}")
        for i in range(0, 16, 2): a(f"v_mov_b64 {vr(OO+i,2)}, 0")
        a(f"s_lshl_b32 s{S_T0}, s{S_KQ}, 13\ns_add_u32 s{S_T0}, s{S_T0}, {L_WO - L_WD}\nv_add_u32 v{V_OA}, s{S_T0}, v{V_DA}\nv_xor_b32 v{V_OA+1}, 64, v{V_OA}")
    def kv_first():
        a(f"ds_read_b128 {vr(KF,4)}, v{V_KA} offset:{kv_off(0)}\nds_read_b128 {vr(KF+4,4)}, v{V_KA} offset:{kv_off(1)}")
        a(f"s_mov_b64 exec, {sr(S_VM,2)}\nds_read_b128 {vr(VF,4)}, v{V_VA} offset:{kv_off(0)}\ns_mov_b64 exec, -1")
    a(f"s_and_b32 s{S_T1}, s{S_CB}, 3\ns_cmp_eq_u32 s{S_T1}, 3\ns_cbranch_scc1 L_qt")
    half_step(30); half_step(31)
    n0 = nst[0]
    stamp(name="g1"); pad("g1"); c12(3)
    RWS = [RWP, RWQ, WF + 16, RWP]
    order = [(ti, rt) for rt in range(4) for ti in range(2)]
    for i, (ti, rt) in enumerate(order):
        if i == 2:
            for l in rw_reads(3, RWS[3]): a(l)
        brk("e")
        if i in (3, 5): a("s_waitcnt lgkmcnt(0)")
        if i == cfg.i_q or (cfg.e7 and i == 1): a("s_barrier")
        nx = order[i+1] if i < 7 else None
        pv = order[i-1] if i else None
        for l in gelu(ti, rt, RWS[rt], [rank1(*nx, RWS[nx[1]])] if nx else [], swaps(HO + 16*pv[0] + 4*pv[1]) if pv else []): a(l)
    a("s_nop 1")
    for l in swaps(HO + 16 + 12): a(l)
    a("s_branch L_joinA")
    far("L_qt")
    RWS = [RWP, RWQ, acc(1, 0), acc(1, 1)]
    if cfg.g_h == 30:
        a("s_barrier")
        for l in op_reads: a(l)
    for l in x_reads(31): a(l)
    a("s_waitcnt lgkmcnt(4)\ns_nop 0")
    a(rank1(1, 0, RWP)); a(rank1(1, 1, RWQ))
    a.nop(5)
    for rt in range(2):
        for l in qtile(rt, RWS[rt]): a(l)
        brk("e")
    a("s_waitcnt lgkmcnt(0)")
    rd = rw_reads(2, RWS[2]) + rw_reads(3, RWS[3])
    for g in (30, 31):
        for k in range(8, 16):
            a(mm(g, k >> 2, k & 3))
            if rd: a(rd.pop(0))
    a("s_waitcnt lgkmcnt(0)\ns_nop 3")
    a(rank1(1, 2, RWS[2])); a(rank1(1, 3, RWS[3]))
    a.nop(5)
    for rt in (2, 3):
        for l in qtile(rt, RWS[rt]): a(l)
        brk("e")
    a(rank1(0, 0, RWP))
    for g in (30, 31):
        for k in range(8): a(mm(g, k >> 2, k & 3))
    nst[0] = n0
    stamp(name="g1")
    a(f"s_mov_b32 s{S_HSB}, {WS_SIZE}")
    for i in range(4): a(f"v_mov_b32 v{12+i}, -1")
    for rt in range(4):
        brk("e")
        if cfg.e7 and rt == 0: a("s_barrier")
        if rt == cfg.i_qb: a("s_barrier")
        for l in gelu(0, rt, RWS[rt], [rank1(0, rt + 1, RWS[rt + 1])] if rt < 3 else [], swaps(HO + 4*(rt - 1)) if rt else []): a(l)
    a("s_nop 1")
    for l in swaps(HO + 12): a(l)
    far("L_joinA", True)
    nst[0] = 12 if cfg.stamps == 4 else 5
    stamp()
    c12(4)
    if not cfg.gpos:
        att_regs()
        kv_first()
    a("s_barrier")
    stamp(name="att0"); pad("att0")
    a(f"ds_read_b128 {vr(QF,4)}, v254 offset:{L_HQ}")
    for i in range(4): a(f"ds_read_b128 {vr(CC+4*i,4)}, v254 offset:{L_HQ + 1024}")
    if cfg.gpos:
        att_regs()
        kv_first()
    a("s_waitcnt lgkmcnt(0)")
    a(mfma32(S0, KF, QF, CC))
    c12(5)
    a("s_nop 3\ns_branch L_attA")

    a.lines += ool
    a.label("L_helper")
    V_XD, V_WD = 192, 194
    PX, PW = 8, 24
    PACC, PCS, PRS, PSQ = 40, 44, 48, 52
    PONE, PSQP, PF1 = 56, 60, 61
    RD = 64
    a(f"""
    s_lshl_b32 s{S_XOFF}, s{S_RB}, 17
    s_lshl_b32 s{S_T0}, s{S_HW}, 15
    s_add_u32 s{S_XOFF}, s{S_XOFF}, s{S_T0}
    v_and_b32 v5, 15, v{V_LANE}
    v_lshrrev_b32 v6, 4, v{V_LANE}
    v_lshrrev_b32 v7, 3, v{V_LANE}
    v_and_b32 v63, 7, v{V_LANE}
    v_xor_b32 v62, v6, v63
    v_lshlrev_b32 v62, 4, v62
    v_lshl_add_u32 v{V_XD}, v7, 10, v62
    v_xor_b32 v{V_XD+1}, 64, v{V_XD}
    v_add_u32 v{V_XD+1}, {8192-1024}, v{V_XD+1}
    """)
    img_params(S_HW, S_WSTEP, S_WOFF)
    a(f"""
    v_and_b32 v62, 1, v6
    v_lshlrev_b32 v62, 1, v62
    v_xor_b32 v62, v62, v63
    v_lshlrev_b32 v62, 4, v62
    v_mul_u32_u24 v{V_WD}, s{S_WSTEP}, v7
    v_add_u32 v{V_WD}, v{V_WD}, v62
    v_xor_b32 v{V_WD+1}, 64, v{V_WD}
    s_waitcnt lgkmcnt(0)
    """)
    nst[0] = 0
    stamp()
    a(f"s_mov_b32 s{R_X}, s{P_X}\ns_and_b32 s{R_X+1}, s{P_X+1}, 0xffff")
    Q = []
    def issue(tag, text): a(text); Q.append(tag)
    def vwait(tag, more=""):
        n = len(Q) - 1 - max(i for i, t in enumerate(Q) if t == tag)
        a(f"s_waitcnt vmcnt({n})" + more)
    def xitems(c):
        slot = XS[c]
        return [(f"C{c}", f"s_add_u32 m0, s{S_H4K}, {L_X + slot*16384}\ns_add_u32 s{S_CNT}, s{S_XOFF}, {c*128 + (16384 - 2048)*(e >> 1)}\n"
                 f"buffer_load_dwordx4 v{V_XD + (e & 1)}, {sr(R_X,4)}, s{S_CNT} offen offset:{1024*e} {cfg.cf[1]} lds") for e in range(4)]
    def witems(c):
        slot = (c + 2) % 3
        return [(f"C{c}", f"s_add_u32 m0, s{S_M0W}, {slot*8192 + e*1024}\n" + (f"s_add_u32 s{S_WOFF}, s{S_WOFF}, s{S_WSTEP}" if c + e else "s_nop 0") +
                 f"\nbuffer_load_dwordx4 v{V_WD + (e & 1)}, {sr(R_W,4)}, s{S_WOFF} offen {cfg.cf[0]} lds") for e in range(8)]
    stream = []
    for c in range(1, 8): stream += [(t, x if c < 3 or not cfg.nodma else 's_nop 0') for t, x in witems(c) + xitems(c)]
    for c in {0: (), 8: (4,), 12: (2, 4, 6)}[cfg.krot]:
        i = 12*(c - 1)
        stream[i] = (stream[i][0], stream[i][1].replace("\nbuffer_load", f"\ns_cmp_eq_u32 s{S_HST}, {16 - 2*c}\ns_cselect_b32 s{S_CNT}, s{R_W+2}, 0\ns_cselect_b32 s{S_HSB}, 1024, 0\n"
                     f"s_sub_u32 s{S_WOFF}, s{S_WOFF}, s{S_CNT}\ns_sub_u32 s{S_XOFF}, s{S_XOFF}, s{S_HSB}\nbuffer_load"))
    pos = [0]
    def take(n):
        for _ in range(n):
            if pos[0] < len(stream): issue(*stream[pos[0]]); pos[0] += 1
    def upto(c):
        return min(len(stream), 12*(c + 1) + cfg.lead[c])
    def mix(lines, n):
        k = 0
        for i, l in enumerate(lines):
            while k < n and k * len(lines) <= i * n: take(1); k += 1
            a(l)
        take(n - k)
    img_srd(R_W, S_WSTEP)
    if cfg.krot:
        a(f"""
        s_and_b32 s{S_HST}, s{S_RB}, {cfg.krot}
        s_lshl_b32 s{S_T0}, s{S_HST}, 6
        s_add_u32 s{S_XOFF}, s{S_XOFF}, s{S_T0}
        s_mul_i32 s{S_T0}, s{S_T0}, s{S_WSTEP}
        s_lshr_b32 s{S_T0}, s{S_T0}, 1
        s_add_u32 s{S_WOFF}, s{S_WOFF}, s{S_T0}
        """)
    a(f"s_lshl_b32 s{S_WSTEP}, s{S_WSTEP}, 3\ns_mul_i32 s{S_M0W}, s{S_HW}, 24576\ns_add_u32 s{S_M0W}, s{S_M0W}, {L_W}")
    def b_init():
        srd(R_WS, P_WS, WS_SIZE)
        setup_ids()
        for i in range(4): a(f"v_mov_b32 v{12+i}, -1")
        a(f"v_mov_b32 v10, 0\nv_mov_b32 v11, 1\ns_sub_u32 s{S_T3}, s{S_FLG}, 16")
    def q_stores(tag):
        a(f"s_add_u32 s{S_CNT}, s{S_OST}, {WS_Q - WS_O - 2048}")
        issue(tag, f"buffer_store_dwordx4 v[12:15], v{V_L16}, {sr(R_WS,4)}, s{S_CNT} offen {cfg.sfl[0]}")
        issue(tag, f"buffer_store_dwordx4 v[12:15], v{V_L16}, {sr(R_WS,4)}, s{S_CNT} offen offset:2048 {cfg.sfl[0]}")
    def b_stores():
        if not cfg.c_q: q_stores("ST")
        issue("ST", f"s_mov_b64 exec, 7\nbuffer_store_dword v10, v{V_L16}, {sr(R_WS,4)}, s{S_T3} offen sc1\ns_mov_b64 exec, -1")
    if cfg.c_st[0] < 0: b_init()
    if cfg.c_st[0] == -2: b_stores()
    stamp(name=1)
    a("s_barrier")
    for i, it in enumerate(xitems(0) + witems(0)):
        if cfg.c_st == (-1, i): b_stores()
        issue(*it)
    stamp(name=3)
    def bar():
        brk("g")
        if cfg.stamps == 4: stamp()
        a("s_barrier")
    take(cfg.lead0)
    stamp(name=4)
    nst[0] = 2; vwait("C0"); stamp(name=6); bar()
    BC, BO, BZ = 132, 224, 240
    def b_setup():
        srd(R_DBG, P_DBG, 256)
        a(f"s_mov_b32 s{S_ONES}, 0x3f803f80")
        common_setup()
        a(f"""
        v_lshrrev_b32 v6, 4, v{V_LANE}
        v_bfe_u32 v2, v{V_LANE}, 1, 1
        v_lshl_add_u32 v6, v2, 2, v6
        v_and_b32 v2, 1, v{V_LANE}
        v_mad_u32_u24 v6, v2, 33, v6
        v_lshlrev_b32 v6, 4, v6
        v_bfe_u32 v2, v{V_LANE}, 2, 2
        v_mul_u32_u24 v2, 2208, v2
        v_add_u32 v6, v6, v2
        s_lshr_b32 s{S_T0}, s{S_HW}, 1
        s_mul_i32 s{S_T0}, s{S_T0}, 1056
        s_and_b32 s{S_T1}, s{S_HW}, 1
        s_lshl_b32 s{S_T1}, s{S_T1}, 8
        s_add_u32 s{S_T0}, s{S_T0}, s{S_T1}
        v_add_u32 v204, s{S_T0}, v6
        s_lshr_b32 s{S_T0}, s{S_RB}, 1
        s_and_b32 s{S_T1}, s{S_CB}, 12
        s_lshl_b32 s{S_T1}, s{S_T1}, 2
        s_add_u32 s{S_T0}, s{S_T0}, s{S_T1}
        s_and_b32 s{S_T1}, s{S_RB}, 1
        s_lshl_b32 s{S_T1}, s{S_T1}, 7
        s_add_u32 s{S_T0}, s{S_T0}, s{S_T1}
        s_lshl_b32 s{S_T0}, s{S_T0}, 7
        s_add_u32 s{S_T0}, s{S_T0}, {WS_FL + 32}
        v_and_b32 v6, 3, v{V_LANE}
        v_lshlrev_b32 v6, 2, v6
        v_bfe_u32 v2, v{V_LANE}, 2, 1
        v_lshl_add_u32 v6, v2, 10, v6
        v_bfe_u32 v2, v{V_LANE}, 3, 1
        v_lshl_add_u32 v6, v2, 13, v6
        v_add_u32 v205, s{S_T0}, v6
        """)
        for i in (0, 1, 4, 5): a(f"v_mov_b32 v{BZ+i}, 0")
        att_regs()
        a(f"s_lshl_b32 s{S_T0}, s{S_HW}, 11\nv_add_u32 v7, s{S_T0}, v{V_L16}")
    bs = capture(b_setup)
    nbs = -(-len(bs) // 3)
    pfl = [f"s_mul_i32 s{S_T0}, s2, 7168\ns_lshl_b32 s{S_T1}, s{S_HW}, 11\ns_add_u32 s{S_T0}, s{S_T0}, s{S_T1}\nbuffer_load_dwordx4 {vr(176,4)}, v{V_L16}, {sr(R_WD,4)}, s{S_T0} offen",
           f"buffer_load_dwordx4 {vr(180,4)}, v{V_L16}, {sr(R_WD,4)}, s{S_T0} offen offset:1024",
           f"s_lshl_b32 s{S_T1}, s2, 11\ns_lshl_b32 s{S_T3}, s{S_HW}, 9\ns_add_u32 s{S_T1}, s{S_T1}, s{S_T3}\ns_mov_b32 exec_hi, 0\nbuffer_load_dwordx4 {vr(184,4)}, v{V_L16}, {sr(R_WO,4)}, s{S_T1} offen\ns_mov_b64 exec, -1"]
    spoll = f"buffer_load_dword v8, v6, {sr(R_DBG,4)}, s{S_T2} offen sc1"
    for c in range(6):
        if c == cfg.c_st[0]:
            mix(capture(b_init), cfg.c_st[1]); b_stores()
        def q_flag():
            vwait("SQ")
            issue("F", f"s_mov_b64 exec, 1\nbuffer_store_dword v11, off, {sr(R_WS,4)}, s{S_FLG} offset:16 sc1\ns_mov_b64 exec, -1")
        if cfg.c_q and c == cfg.c_q[0] and cfg.c_q[1] < 99:
            take(cfg.c_q[1]); q_stores("SQ")
        if cfg.c_q and c == cfg.c_q[2] and cfg.c_q[3] < 99:
            take(cfg.c_q[3]); q_flag()
        if c in (2, 3, 4): mix(bs[(c-2)*nbs:(c-1)*nbs], upto(c) - pos[0])
        if c == 5:
            take(cfg.n_poll)
            a(f"v_and_b32 v6, 7, v{V_LANE}\nv_lshlrev_b32 v6, 5, v6\ns_lshl_b32 s{S_T2}, s{S_HW}, 8")
            issue("P", spoll)
        take(upto(c) - pos[0])
        if cfg.c_q and cfg.c_q[:2] == (c, 99): q_stores("SQ")
        if cfg.c_q and cfg.c_q[2:] == (c, 99): q_flag()
        if c == cfg.c_arr: vwait("ST")
        if c == 5:
            vwait("P")
            a(f"s_cmp_lg_u32 s{S_HW}, 0\ns_cbranch_scc1 L_sync1\ns_mov_b32 s{S_SPIN}, 0")
            a.label("L_sync1_chk")
            a(f"""
            v_cmp_gt_u32 vcc, 32, v8
            s_add_u32 s{S_SPIN}, s{S_SPIN}, 1
            s_cbranch_vccz L_sync1
            s_cmp_ge_u32 s{S_SPIN}, {SPIN_MAX}
            s_cbranch_scc1 L_sync1
            s_sleep 4
            {spoll}
            s_waitcnt vmcnt(0)
            s_branch L_sync1_chk
            """)
            a.label("L_sync1")
        vwait(f"C{c+1}"); bar()
        if c == cfg.c_arr:
            a(f"s_cmp_lg_u32 s{S_HW}, 0\ns_cbranch_scc1 L_noarr\ns_and_b32 s{S_EX}, s2, 7\ns_lshl_b32 s{S_EX}, s{S_EX}, 5\ns_mov_b32 s{S_EX+1}, 1\n"
              f"s_atomic_add s{S_EX+1}, {sr(P_DBG,2)}, s{S_EX}\nL_noarr:")
    assert pos[0] == len(stream)
    ncs[0] = 0; cstamp(11)
    a(f"""
    s_lshl_b32 s{S_T3}, s{S_HW}, 11
    s_add_u32 m0, s{S_T3}, {L_R}
    s_lshl_b32 s{S_EX}, s{S_RB}, 13
    s_add_u32 s{S_EX}, s{S_EX}, s{S_T3}
    s_add_u32 s{S_EX}, s{S_EX}, {WS_ST}
    s_lshl_b32 s{S_T3}, s{S_HW}, 10
    s_lshl_b32 s{S_EX+1}, s{S_CB}, 14
    s_add_u32 s{S_EX+1}, s{S_EX+1}, s{S_T3}
    s_add_u32 s{S_EX+1}, s{S_EX+1}, {WS_CS}
    """)
    if cfg.stamps != 4: nst[0] = 3
    stamp(); cstamp(11)
    def maxtree(src, dst, init=None):
        L = []
        if init is None:
            L.append(f"v_max3_f32 v{dst}, v{src}, v{src+1}, v{src+2}")
            L.append(f"v_max_f32 v{dst}, v{src+3}, v{dst}")
            k = 4
        else:
            k = 0
        for i in range(k, 16, 2): L.append(f"v_max3_f32 v{dst}, v{src+i}, v{src+i+1}, v{dst}")
        return L
    def setC(m, shift):
        a(f"v_mov_b32 v{m+1}, v{m}\ns_nop 1\nv_permlane32_swap_b32 v{m}, v{m+1}\nv_max_f32 v{m}, v{m}, v{m+1}")
        a(f"v_sub_f32 v{CC}, {hex(f2u(-shift)) if shift else 0}, v{m}")
        a(f"v_mov_b32 v{CC+1}, v{CC}")
        for i in range(2, 16, 2): a(f"v_mov_b64 {vr(CC+i,2)}, {vr(CC,2)}")
    for e in range(4):
        if e: a(f"s_add_u32 s{S_EX+1}, s{S_EX+1}, 4096")
        a(f"buffer_load_dwordx4 {vr(BC+4*e,4)}, v{V_L16}, {sr(R_WS,4)}, s{S_EX+1} offen sc1")
    for i in range(2): a(f"buffer_load_dwordx4 v{V_L16}, {sr(R_WS,4)}, s{S_EX} offen offset:{1024*i} sc1 lds")
    assert cfg.e6 != 2
    qpoll = f"buffer_load_dword v9, v205, {sr(R_WS,4)}, s{S_T2} offen sc1"
    if cfg.c_q:
        a(f"s_and_b32 s{S_T2}, s{S_CB}, 3\ns_sub_u32 s{S_T2}, s{S_T2}, s{S_H4K}\ns_cmp_eq_u32 s{S_T2}, 3\ns_cselect_b32 s{S_T2}, 0, {WS_SIZE}\n" + qpoll)
    nq = 1 if cfg.c_q else 0
    npf = 3 if cfg.pf_first else 0
    for x in pfl[:npf]: a(x)
    touch("e", 0, 4, 5)
    cstamp(11)
    if cfg.e6 == 0: a(f"s_waitcnt vmcnt({6 + nq + npf})\ns_barrier")
    a(f"s_setprio {cfg.bp}\ns_waitcnt vmcnt({2 + nq + npf})")
    cstamp(11)
    for e in range(1, 4):
        for i in (0, 2, 1, 3): a(f"v_add_f32 v{BC+i}, v{BC+i}, v{BC+4*e+i}")
    if cfg.e6 == 1: a("s_barrier")
    a(f"""
    v_permlane32_swap_b32 v{BC}, v{BC+2}
    s_nop 0
    v_permlane32_swap_b32 v{BC+1}, v{BC+3}
    v_add_f32 v{BC}, v{BC}, v{BC+2}
    v_add_f32 v{BC+1}, v{BC+1}, v{BC+3}
    s_nop 1
    v_permlane16_swap_b32 v{BC}, v{BC+1}
    v_add_f32 v{BC}, v{BC}, v{BC+1}
    """)
    for l in split2(BC, BZ + 2, True): a(l)
    if cfg.e6 == 3: a("s_barrier")
    a(f"ds_write_b128 v204, {vr(BZ+2,4)} offset:{L_RA}\nds_write_b128 v204, {vr(BZ,4)} offset:{L_RA + 128}")
    cstamp(11)
    for x in pfl[npf:]: a(x)
    a("s_waitcnt vmcnt(3)")
    ncs[0] += 1; cstamp(11)
    if cfg.c_q:
        a(f"""
        s_cmp_lg_u32 s{S_T2}, 0
        s_cbranch_scc1 L_qrdy
        s_mov_b32 s{S_SPIN}, 0
        L_qrchk:
        v_cmp_ne_u32 vcc, 1, v9
        s_add_u32 s{S_SPIN}, s{S_SPIN}, 1
        s_cbranch_vccz L_qrdy
        s_cmp_ge_u32 s{S_SPIN}, {SPIN_MAX}
        s_cbranch_scc1 L_qrdy
        {qpoll}
        s_waitcnt vmcnt(0)
        s_branch L_qrchk
        L_qrdy:
        """)
    a("s_setprio 0\ns_waitcnt lgkmcnt(0)")
    cstamp(11)
    if cfg.e6 == 2: a("s_barrier")
    cstamp(11)
    a("s_barrier")
    for c in range(2):
        slot = (c + 1) % 3
        a(f"s_add_u32 m0, s{S_H4K}, {L_KV + slot*16384}\ns_add_u32 s{S_T0}, s{S_H4K}, {WS_KV + starts[c]*2048}")
        for e in range(4):
            a(f"buffer_load_dwordx4 v{V_L16}, {sr(R_WS,4)}, s{S_T0} offen offset:{1024*e} sc1 lds")
    touch("a", 0, 4, 12)
    if cfg.wfix:
        a(f"s_mov_b32 s{S_CNT}, 0\ns_mov_b32 s{S_SPIN}, 0\ns_cmp_eq_u32 s{S_HW}, 3\ns_cbranch_scc0 L_nowfix\ns_call_b64 {sr(S_RET,2)}, L_ofix\nL_nowfix:")
    if cfg.e7:
        a("s_barrier")
        a(f"s_add_u32 m0, s{S_H4K}, {L_KV}\ns_add_u32 s{S_T0}, s{S_H4K}, {WS_KV + starts[2]*2048}")
        for e in range(4): a(f"buffer_load_dwordx4 v{V_L16}, {sr(R_WS,4)}, s{S_T0} offen offset:{1024*e} sc1 lds")
        if cfg.e7 == 2:
            a(f"s_mul_i32 s{S_T1}, s{S_HW}, {448*1024}\ns_lshl_b32 s{S_T0}, s{S_CT8}, 7\ns_add_u32 s{S_T1}, s{S_T1}, s{S_T0}\ns_lshl_b32 s{S_T3}, s{S_H4K}, 1")
            for e in range(8):
                a(f"s_add_u32 m0, s{S_T3}, {L_WD + e*1024}\ns_add_u32 s{S_T0}, s{S_T1}, {e*8192}\nbuffer_load_dwordx4 v{V_WDD}, {sr(R_WD,4)}, s{S_T0} offen lds")
    QP = 128
    qload = (f"buffer_load_dwordx4 {vr(QP,4)}, v{V_L16}, {sr(R_WS,4)}, s{S_T2} offen sc1\n"
             f"buffer_load_dwordx4 {vr(QF,4)}, v{V_L16}, {sr(R_WS,4)}, s{S_T2} offen offset:2048 sc1")
    a(f"s_add_u32 s{S_T2}, s{S_OST}, {WS_Q - WS_O - 2048}\ns_mov_b32 s{S_SPIN}, 0\ns_waitcnt vmcnt(0)\ns_barrier\ns_setprio 2")
    a(qload)
    kv_first()
    nst[0] = 12 if cfg.stamps == 4 else 5
    stamp()
    a.label("L_qchk")
    a(f"""
    s_waitcnt vmcnt(0) lgkmcnt(0)
    v_max3_u32 v8, v{QF}, v{QF+1}, v{QF+2}
    v_max3_u32 v8, v8, v{QF+3}, v{QP}
    v_max3_u32 v8, v8, v{QP+1}, v{QP+2}
    v_max_u32 v8, v8, v{QP+3}
    v_cmp_eq_u32 vcc, -1, v8
    s_add_u32 s{S_SPIN}, s{S_SPIN}, 1
    s_cbranch_vccz L_qok
    s_cmp_ge_u32 s{S_SPIN}, {SPIN_MAX}
    s_cbranch_scc1 L_qok
    s_sleep {cfg.qsl}
    {qload}
    s_branch L_qchk
    """)
    a.label("L_qok")
    if cfg.stamps == 1:
        n0 = nst[0]; nst[0] = 4; stamp(); nst[0] = n0
        a(f"v_writelane_b32 v{V_STAMP}, s{S_SPIN}, 63")
    a('; ---- softmax reference point: maximum over the first 32 keys (a lower bound of the row maximum), scores are taken relative to it minus a fixed shift.')
    a(mfma32(S0, KF, QP, None)); a(mfma32(S1, KF, QF, None))
    a(f"ds_write_b128 v7, {vr(QP,4)} offset:{L_HQ}")
    a.nop(10)
    for l in maxtree(S0, 8): a(l)
    a(f"v_mov_b32 v9, v8\ns_nop 1\nv_permlane32_swap_b32 v8, v9\nv_max_f32 v8, v8, v9\nv_sub_f32 v{QP+4}, {hex(f2u(-cfg.shift))}, v8")
    a(f"v_mov_b32 v{QP+5}, v{QP+4}\nv_mov_b64 {vr(QP+6,2)}, {vr(QP+4,2)}\nds_write_b128 v7, {vr(QP+4,4)} offset:{L_HQ + 1024}")
    for l in maxtree(S1, 8): a(l)
    if cfg.g_early:
        a("s_waitcnt lgkmcnt(0)\ns_barrier")
        stamp(name="att0"); pad("att0")
    setC(8, cfg.shift)
    a(f"s_waitcnt lgkmcnt(0)\ns_setprio {1 if cfg.pp < 0 else 0}")
    a(mfma32(S0, KF, QF, CC))
    if not cfg.g_early:
        a("s_barrier")
        stamp(name="att0"); pad("att0")
    a("s_nop 5\ns_branch L_attB")

    def kvdma(c, half):
        slot = (c + 1) % 3
        L = (f"s_add_u32 m0, s{S_W2K}, {L_KV + slot*16384}\ns_add_u32 s{S_T0}, s{S_W2K}, {WS_KV + starts[c]*2048}\n")
        if half == 1 and sizes[c] < 8:
            L += f"s_cmp_ge_u32 s{S_W}, {sizes[c]}\ns_cselect_b32 s{S_T0}, {WS_SIZE}, s{S_T0}\n"
        return [L + f"buffer_load_dwordx4 v{V_L16}, {sr(R_WS,4)}, s{S_T0} offen sc1 lds",
                f"buffer_load_dwordx4 v{V_L16}, {sr(R_WS,4)}, s{S_T0} offen offset:1024 sc1 lds"]
    def rowdma(rs, sbase, add, ldsbase, e):
        pre = f"s_add_u32 m0, s{S_W4K}, {ldsbase}\n"
        return pre + f"s_add_u32 s{S_T0}, s{sbase}, {add + e*7168}\nbuffer_load_dwordx4 v{V_WDD}, {sr(rs,4)}, s{S_T0} offen offset:{1024*e} {cfg.cf[2]} lds"
    tbs = [starts[c] - 3 for c in range(1, len(starts))]
    late = []
    def attention(half):
        sfx = "AB"[half]
        if cfg.stamps == 5: a(f"s_mov_b32 s{S_SPIN}, 0")
        head = {t: [] for t in range(66)}
        vm = {t: [] for t in range(66)}
        pre = {t: [] for t in range(66)}
        bg = {t: [] for t in range(66)}
        nb = len(tbs); c0 = nb - 7
        lh, mb = cfg.lh, cfg.mb
        for ci, tb in enumerate(tbs):
            q = []
            if ci + 2 < len(starts) and not (cfg.e7 and ci == 0): q += [("D", x) for x in kvdma(ci + 2, half)]
            dload = ci - c0 + 1
            if 0 <= dload <= 6:
                wq_ = [rowdma(R_WD, S_WDO, dload*65536, L_WD + (dload & 1)*32768, e) for e in range(4)]
                if dload == 0:
                    for e in range(4 if cfg.e7 < 2 else 0): vm[cfg.t_wd0[e]].append(("D", wq_[e]))
                else: q += [("D", x) for x in wq_]
                hl = [f"buffer_load_dwordx4 {vr(HF + 16*(dload&1) + 4*j,4)}, v{V_L16}, {sr(R_WS,4)}, s{S_T1} offen offset:{1024*j} sc1" for j in range(4)]
                hl[0] = f"s_add_u32 s{S_T1}, s{S_HLD}, {dload*4096}\n" + hl[0]
            elif dload == 7:
                q += [("D", rowdma(R_WO, S_WOO, 0, L_WO, e)) for e in range(4)]
                q += [("D", f"buffer_load_dwordx4 {vr(V_XR,4)}, v{V_FO}, {sr(R_X,4)}, 0 offen")]
            for i, x in enumerate(q): vm[tb + cfg.dpos[i] if ci else cfg.t_kv2].append(x)
            if 0 <= dload <= 6:
                for j in range(4):
                    vm[cfg.t_h0[j] if dload == 0 else tb + cfg.hpos[j]].append((f"H{dload}{j}", hl[j]))
                    if j in cfg.hwait: pre[tbs[ci + 1] + mb[2*j]].append(("wait", f"H{dload}{cfg.hwait[j]}"))
            d = dload - 1
            if d >= 0:
                for k in range(8):
                    j, ct = divmod(k, 2); fr = DF + 4 * (k & 3)
                    for t in range(2):
                        head[tb + lh[k]].append(f"ds_read_b64_tr_b16 {vr(fr+2*t,2)}, v{V_DA+ct} offset:{(d&1)*32768 + j*2048 + t*512}")
                    bg[tb + mb[k]].append(mfma32(YY + 16*ct, HF + 16*(d&1) + 4*j, fr, None if (d == 0 and j == 0) else YY + 16*ct))
        assert min(cfg.t_h0) >= cfg.t_chk and max(lh) <= 6 and max(mb) <= 7 and all(m > l for m, l in zip(mb, lh))
        assert all(lh[k+4] > mb[k] and lh[k] + 6 > mb[k+4] for k in range(4)) and all(cfg.hpos[j] + 6 > mb[2*j+1] for j in range(4))
        st = []
        if half == 0:
            for rt in range(4):
                for ti in range(2):
                    st.append(f"s_add_u32 s{S_T3}, s{S_HSB if ti else S_HST}, {112*1024*rt}\n"
                              f"buffer_store_dwordx4 {vr(HO + 16*ti + 4*rt,4)}, v{V_L16}, {sr(R_WS,4)}, s{S_T3} offen {cfg.hfl}")
        st.append(f"buffer_store_dwordx4 v[12:15], v{V_L16}, {sr(R_WS,4)}, s{S_OST} offen {cfg.sfl[1]}")
        hs = list(range(64))
        for i, x in enumerate(st): vm[hs[int(i * cfg.st_rate)] if half == 0 else cfg.t_sb].append(("S", x))
        if half == 1:
            if cfg.t_pf >= 0: vm[cfg.t_pf] += [("X", x) for x in pfl]
            for e in range(8):
                x = f"s_add_u32 m0, s{S_EX}, {L_WO + 32768 + e*1024}\ns_add_u32 s{S_T0}, s{S_EX+1}, {e*8192}\nbuffer_load_dwordx4 v{V_WDD}, {sr(R_WO,4)}, s{S_T0} offen lds"
                if e == 0: x = f"s_lshl_b32 s{S_EX+1}, s{S_HW}, 16\ns_lshl_b32 s{S_T0}, s{S_CT8}, 7\ns_add_u32 s{S_EX+1}, s{S_EX+1}, s{S_T0}\ns_xor_b32 s{S_T0}, s{S_T16}, 0x40000\ns_add_u32 s{S_EX+1}, s{S_EX+1}, s{S_T0}\ns_lshl_b32 s{S_EX}, s{S_H4K}, 1\n" + x
                vm[cfg.t_wo[e]].append(("D" if e == 7 else "X", x))
            tw = min(t for t in tbs if t >= max(cfg.t_wo))
            if tw == tbs[1]:
                for i in range(6): head[tw + 2 + i] += wo_rd[4*i:4*i+4]
            else:
                hs_ = [tb + o for tb in tbs if tb >= tw for o in (4, 5)]
                for i in range(12): head[hs_[i]] += wo_rd[2*i:2*i+2]
            head[61] += wo_rd[24:26]; head[63] += wo_rd[26:]
        else:
            head[63] += wo_rd[:cfg.n_wo63]
        if cfg.t_out: vm[cfg.t_out].append(("X", f"s_mov_b64 exec, 1\nbuffer_load_dword v254, v{V_FO}, {sr(R_OUT,4)}, 0 offen\ns_mov_b64 exec, -1"))
        for t in cfg.t_code: vm[t].append(("X", "s_mov_b64 exec, 3\nglobal_load_dword v254, v[252:253], off\ns_mov_b64 exec, -1"))
        pre[cfg.t_flag].append(("wait", "S"))
        vm[cfg.t_flag].insert(0, ("F", f"s_mov_b64 exec, 1\nbuffer_store_dword v11, off, {sr(R_WS,4)}, s{S_FLG} sc1\ns_mov_b64 exec, -1"))
        poll = f"buffer_load_dword v3, v{V_PO}, {sr(R_WS,4)}, s{S_T2} offen sc1"
        vm[cfg.t_poll].insert(0, ("P", f"s_mov_b32 s{S_T2}, {WS_FL}\n" + poll))
        assert cfg.t_poll <= cfg.t_chk - 2
        pre[cfg.t_chk - 1].append(("wait", "P"))
        pre[cfg.t_chk].append(("text", f"s_cbranch_vccnz L_hspin{sfx}\nL_hok{sfx}:"))
        late.append(f"L_hspin{sfx}:\ns_mov_b32 s{S_SPIN}, 0\nL_hchk{sfx}:\ns_sleep 2\n{poll}\ns_waitcnt vmcnt(0)\nv_cmp_ne_u32 vcc, 1, v3\ns_add_u32 s{S_SPIN}, s{S_SPIN}, 1\ns_cbranch_vccz L_hok{sfx}\n"
                    f"s_cmp_lt_u32 s{S_SPIN}, {SPIN_MAX}\ns_cbranch_scc1 L_hchk{sfx}\ns_branch L_hok{sfx}")
        VQ = []
        def cnt(tag):
            idx = [i for i, x in enumerate(VQ) if x == tag]
            return min(63, len(VQ) - 1 - max(idx)) if idx else 63
        def emit_vm(L):
            for tag, x in L: a(x); VQ.append(tag)
        for t in range(tbs[2] + 1, 64):
            if 'v' in cfg.ab: vm[t] = [x for x in vm[t] if 'sc1 lds' in x[1]]
            if 'h' in cfg.ab: vm[t] = [x for x in vm[t] if x[0] != 'H']
            if 'r' in cfg.ab: head[t] = []
            if 'm' in cfg.ab: bg[t] = []
        for t in range(64):
            par = t & 1
            sd, sn = (S0, S1) if par == 0 else (S1, S0)
            p, pp = PP + 8*par, PP + 8*(1 - par)
            isb = (t in tbs and not ('b' in cfg.ab and t > tbs[2])) or t == 62
            if cfg.stamps == 2 and t - 1 in tbs: stamp()
            brk("a")
            if cfg.itr:
                if t == 0: ncs[0] = 0
                if t in cfg.itr: cstamp(5)
            midb = isb and half == 1
            if half == 0 and (t - 1 in tbs or t == 63): a(f"s_waitcnt vmcnt({cnt('D')}) lgkmcnt(0)\ns_barrier")
            else: a("s_waitcnt lgkmcnt(0)")
            for k, x in pre[t]: a(x if k == "text" else f"s_waitcnt vmcnt({cnt(x)})")
            emit_vm(vm[t][:1])
            if not ('L' in cfg.ab and t & 2) and not ('Z' in cfg.ab and t > 2):
                if t + 2 < 64: a(f"ds_read_b128 {vr(KF+4*par,4)}, v{V_KA} offset:{kv_off(t+2)}")
                a(f"s_mov_b64 exec, {sr(S_VM,2)}")
                if t + 1 < 64: a(f"ds_read_b128 {vr(VF+8*(1-par),4)}, v{V_VA} offset:{kv_off(t+1)}")
                a(f"ds_read_b128 {vr(VF+8*par+4,4)}, v{V_VA} offset:{kv_off(t)+512}")
                a("s_mov_b64 exec, -1")
            for l in head[t]: a(l)
            emit_vm(vm[t][1:])
            if t == 0 and cfg.stamps == 9: ncs[0] = 0
            if cfg.t_tr <= t < cfg.t_tr + 9: cstamp(9)
            if cfg.ladder and half and t % 3 == 0: a("s_setprio 3")
            if t in cfg.upd: a("s_nop 1")
            pos = cfg.pos[len(bg[t])]
            sl = [smf(OO, VF + 8*(1-par) + 4, sn + 8) if t >= 1 else None, mfma32(sn, KF + 4*(1-par), QF, CC) if t + 1 < 64 else None]
            sl += bg[t][:1] + [smf(OO, VF + 8*par, sd)] + bg[t][1:]
            at = {p: m for p, m in zip(pos, sl) if m}
            if 'M' in cfg.ab:
                import re as _re
                for p in list(at):
                    if at[p] in bg[t]:
                        m = _re.match(r"\S+ v\[(\d+):\d+\], v\[(\d+):\d+\], v\[(\d+):\d+\]", at[p]); d_, a_, b_ = map(int, m.groups())
                        d_ += 8 * (t & 1)
                        at[p] = mfma16(d_, a_, b_, d_); at[p + 1] = mfma16(d_ + 4, b_, a_, d_ + 4)
            if t in cfg.upd:
                assert len(sl) == 3
                at = {1: f"v_frexp_exp_i32_f32_e64 v4, v{OO+8}", 2: sl[0], 3: f"v_sub_u32 v4, {17 - int(cfg.shift)}, v4\nv_cvt_f32_i32_e64 v5, v4", 5: sl[1],
                      8: f"v_mfma_f32_32x32x2_f32 {vr(CC,16)}, v49, v5, {vr(CC,16)}", 15: sl[2]}
                if cfg.updm >= 1:
                    mv = [f"v_mov_b32 v{CC+1}, v{CC}"] + [f"v_mov_b64 {vr(CC+i,2)}, {vr(CC,2)}" for i in range(2, 16, 2)] if cfg.updm == 1 else [f"v_mov_b32 v{CC+i}, v{CC}" for i in range(1, 16)]
                    del at[8], at[15]
                    at[12] = "\n".join([f"v_add_f32{'_e64' if cfg.updm == 1 else ''} v{CC}, v{CC}, v5"] + mv)
                    at[13] = sl[2]
                if cfg.updl: at[3] = f"v_sub_u32 v4, {17 - int(cfg.shift)}, v4\nv_max_i32 v4, 0xffffff82, v4\nv_cvt_f32_i32_e64 v5, v4\nv_ldexp_f32 v4, 1.0, v4"
            if t - 2 in cfg.upd:
                assert len(sl) == 3
                at = {2: sl[0], 6: sl[1], 13: "\n".join((f"v_mul_f32{'_e64' if i == 0 else ''} v{OO+i}, v{OO+i}, v4" if cfg.updl else f"v_ldexp_f32 v{OO+i}, v{OO+i}, v4") for i in range(9)), 15: sl[2]}
            a(".p2align 3")
            odd = False
            for i in range(16):
                if i in at: a(at[i])
                if midb and i == cfg.bmid: a(f"s_waitcnt vmcnt({cnt('D')}) lgkmcnt(0)\ns_barrier")
                pr = i == (cfg.pp if half else cfg.pa) and not (cfg.ladder and t % 3)
                wide = (i + 1 in at) and (odd == pr)
                a(f"v_exp_f32{'_e64' if wide else ''} v{sd+i}, v{sd+i}")
                if not wide: odd = not odd
                if pr: a(f"s_setprio {3 if cfg.ladder else cfg.pv[half]}"); odd = not odd
            if cfg.stamps == 3: a(f"s_waitcnt lgkmcnt(0)\nv_writelane_b32 v253, s{S_TS}, {t}\nv_writelane_b32 v254, s{S_TS2}, {t}\ns_memtime {sr(S_TS2,2)}")
            if t == cfg.t_chk - 1: a("v_cmp_ne_u32 vcc, 1, v3")
            if cfg.ladder and t < 63:
                if half == 0 or t % 3 != 2: a(f"s_setprio {2 - t % 3}")
            elif (cfg.pp if half else cfg.pa) is not None and not (half and cfg.pp < 0 and t < 63): a("s_setprio 0")
            if cfg.t_tr <= t < cfg.t_tr + 9: cstamp(9)
        a("s_waitcnt lgkmcnt(0)\ns_nop 0")
        a(smf(OO, VF + 12, S1 + 8))
    OF, SS, XU, TT = 16, 64, 160, 168
    def oload(j):
        h = cfg.oord[j]
        return f"buffer_load_dwordx4 {vr(OF+4*j,4)}, v{V_L16}, {sr(R_WS,4)}, s{S_OLD if h < 4 else S_T1} offen offset:{1024*(h&3)} sc1"
    def chk(j): return f"v_max3_u32 v8, v{OF+4*j}, v{OF+4*j+1}, v{OF+4*j+2}\nv_max_u32 v8, v{OF+4*j+3}, v8\nv_cmp_eq_u32 vcc, -1, v8"
    F = f"L_ofix:\ns_mov_b32 s{S_T2}, 0\ns_waitcnt vmcnt(0)\n"
    for j in range(8):
        F += (f"s_bitcmp1_b32 s{S_CNT}, {j}\ns_cbranch_scc0 L_ofb{j}\n{chk(j)}\ns_cmp_lg_u32 s{S_T2}, 0\ns_cbranch_vccz L_ofa{j}\n{oload(j)}\ns_mov_b32 s{S_T2}, 1\ns_branch L_ofb{j}\nL_ofa{j}:\ns_cbranch_scc1 L_ofb{j}\ns_bitset0_b32 s{S_CNT}, {j}\n"
              + mfma32(SS, OF + 4*j, WOF[2*j], SS) + "\n" + mfma32(SS + 16, OF + 4*j, WOF[2*j + 1], SS + 16) + f"\nL_ofb{j}:\n")
    F += (f"s_add_u32 s{S_SPIN}, s{S_SPIN}, 1\ns_cmp_ge_u32 s{S_SPIN}, {SPIN_MAX}\ns_cselect_b32 s{S_CNT}, 0, s{S_CNT}\n"
          f"s_cmp_lg_u32 s{S_CNT}, 0\ns_cbranch_scc1 L_ofix\ns_setpc_b64 {sr(S_RET,2)}")
    late.insert(0, F)
    def normalize():
        for i in range(0, 8, 2): a(f"v_pk_mul_f32 {vr(OO+i,2)}, {vr(OO+i,2)}, v[10:11]")
        for i in range(4): a(f"v_cvt_pk_bf16_f32 v{12+i}, v{OO+2*i}, v{OO+2*i+1}")
    def tail(half):
        sfx = "AB"[half]
        if cfg.stamps == 8: ncs[0] = 0
        if cfg.stamps == 5: a(f"v_writelane_b32 v{V_STAMP}, s{S_SPIN}, 62")
        stamp(name="att1"); pad("att1")
        cstamp()
        a(f"s_mov_b32 s{S_T2}, {hex(f2u(2.0**120))}\ns_mov_b32 s{S_T3}, {hex(f2u(2.0**-106))}")
        a(f"s_add_u32 s{S_T1}, s{S_OLD}, 4096\ns_mov_b32 s{S_SPIN}, 0\ns_lshl_b32 s{S_T0}, s{S_W}, 13\ns_mov_b32 m0, s{S_T0}")
        a.nop(6)
        a(f"""
        v_rcp_f32 v10, v{OO+8}
        v_maximum3_f32 v8, abs(v{OO}), abs(v{OO+1}), abs(v{OO+2})
        v_maximum3_f32 v9, abs(v{OO+3}), abs(v{OO+4}), abs(v{OO+5})
        v_maximum3_f32 v8, abs(v{OO+6}), abs(v{OO+7}), v8
        v_maximum3_f32 v6, v8, v9, v{OO+8}
        v_max_f32 v8, v8, v9
        v_cmp_ngt_f32 vcc, s{S_T2}, v6
        v_cmp_gt_f32 {sr(S_EX,2)}, s{S_T3}, v8
        v_mov_b32 v11, v10
        s_or_b64 vcc, vcc, {sr(S_EX,2)}
        """)
        a("s_branch L_fb" if cfg.force_fb else "s_nop 0" if cfg.ab else "s_cbranch_scc1 L_fb")
        normalize()
        a.label(f"L_ost{sfx}")
        a(f"buffer_store_dwordx4 v[12:15], v{V_L16}, {sr(R_WS,4)}, s{S_OST} offen sc1")
        cstamp()
        if half == 0:
            for l in wo_rd[cfg.n_wo63:]: a(l)
        for i in range(32): a(f"ds_write_addtid_b32 v{YY+i} offset:{32768 + 256*i}")
        cstamp()
        a(f"""
        v_xor_b32 v5, 16, v{V_GA}
        v_add_u32 v6, 0x10000, v{V_GA}
        v_add_u32 v7, 0x10000, v5
        s_mov_b32 s{S_EX}, 0xff00ff00
        s_mov_b32 s{S_EX+1}, 0xff00ff00
        s_mov_b64 exec, {sr(S_EX,2)}
        v_swap_b32 v{V_XR}, v{V_XR+2}
        v_swap_b32 v{V_XR+1}, v{V_XR+3}
        s_mov_b64 exec, -1
        """)
        for i in range(4): a(f"v_lshlrev_b32 v{XU+2*i}, 16, v{V_XR+i}\nv_and_b32 v{XU+2*i+1}, 0xffff0000, v{V_XR+i}")
        for i in range(0, 32, 2): a(f"v_mov_b64 {vr(SS+i,2)}, 0")
        if not half:
            for j in range(cfg.oearly): a(oload(j))
        a("s_waitcnt lgkmcnt(0)\ns_barrier")
        if half: a(f"s_add_u32 m0, s{S_T0}, 7940")
        if half and cfg.tprio == 2: a("s_setprio 1")
        cstamp()
        yr = [f"ds_read_b128 {vr(YY+8*p+4*e,4)}, v{((V_GA, 5), (6, 7))[p >> 1][e]} offset:{(32768 + 16384*p) & 0xffff}" for p in range(4) for e in range(2)]
        G = ["s_waitcnt lgkmcnt(0)"]
        for p in (1, 2, 3): G += [f"v_add_f32 v{YY+i}, v{YY+i}, v{YY+8*p+i}" for i in range(8)]
        G += [f"v_mul_f32 v{TT+i}, {hex(f2u(-math.log2(math.e)))}, v{YY+i}" for i in range(8)]
        G += [f"v_exp_f32 v{TT+i}, v{TT+i}" for i in range(8)]
        G += [f"v_add_f32 v{TT+i}, 1.0, v{TT+i}" for i in range(8)]
        G += [f"v_rcp_f32 v{TT+i}, v{TT+i}" for i in range(8)]
        G += [f"v_mul_f32 v{YY+i}, v{YY+i}, v{TT+i}" for i in range(8)]
        if half:
            for l in yr: a(l)
            if cfg.tprio == 3: a("s_setprio 1")
            for j in range(cfg.n_b0): a(oload(j))
            for l in G[:cfg.n_gb]: a(l)
            G = G[cfg.n_gb:]
            for j in range(cfg.n_b0, 8):
                a(oload(j))
                for l in G[:cfg.n_gp]: a(l)
                G = G[cfg.n_gp:]
            for l in G: a(l)
        elif cfg.odelay:
            for l in yr + G[:int(cfg.odelay)]: a(l)
            G = G[int(cfg.odelay):]
            for j in range(8): a(oload(j))
        else:
            for j in range(8):
                if j + cfg.oearly < 8: a(oload(j + cfg.oearly))
                a(yr[j])
            for l in G[:cfg.n_ga]: a(l)
            G = G[cfg.n_ga:]
        cstamp()
        def nxt(j): return f"s_waitcnt vmcnt({7-j})\n" + chk(j) + f"\ns_movk_i32 s{S_CNT}, {(0xff << j) & 0xff}"
        if half and cfg.tprio == 1: a("s_setprio 1")
        a(nxt(0))
        for j in range(8):
            a(f"s_cbranch_vccnz L_omiss{sfx}")
            if j in (0, 3, 7): cstamp()
            a(mfma32(SS, OF + 4*j, WOF[2*j], SS))
            if j < 7: a(nxt(j + 1))
            a(mfma32(SS + 16, OF + 4*j, WOF[2*j + 1], SS + 16))
        late[0] = f"L_omiss{sfx}:\ns_call_b64 {sr(S_RET,2)}, L_ofix\ns_branch L_ook{sfx}\n" + late[0]
        a.label(f"L_ook{sfx}")
        pg = [f"ds_read_b128 {vr(192+8*p+4*e,4)}, v{(V_GA, 5)[e]} offset:{16384*p}" for p in range(2) for e in range(2)]
        if half and cfg.pgath:
            a("s_barrier")
            for l in pg: a(l)
            a.nop(6)
        else: a.nop(11)
        for i in range(32): a(f"ds_write_addtid_b32 v{SS+i} offset:{(57596 if half else 0) + 256*i}")
        if not half:
            for l in G: a(l)
            if cfg.pgath:
                a("s_waitcnt lgkmcnt(0)\ns_barrier")
                for l in pg: a(l)
    far("L_attA")
    n0 = nst[0]
    attention(0)
    tail(0)
    a("s_branch L_fin2")
    far("L_attB")
    nst[0] = n0
    attention(1)
    tail(1)
    far("L_fin2", True)
    a("s_waitcnt lgkmcnt(0)\ns_barrier")
    if cfg.stamps == 6: stamp()
    cstamp()
    for p in range(2 if cfg.pgath else 0, 4):
        for e in range(2): a(f"ds_read_b128 {vr(OF+8*p+4*e,4)}, v{((V_GA, 5), (6, 7))[p >> 1][e]} offset:{16384*p}")
    if cfg.pgath:
        for i in range(0, 8, 2): a(f"v_pk_add_f32 {vr(OF+i,2)}, {vr(192+i,2)}, {vr(200+i,2)}")
    else:
        a("s_waitcnt lgkmcnt(0)" if cfg.stamps == 8 else "s_waitcnt lgkmcnt(4)")
        for i in range(0, 8, 2): a(f"v_pk_add_f32 {vr(OF+i,2)}, {vr(OF+i,2)}, {vr(OF+8+i,2)}")
    a("s_waitcnt lgkmcnt(0)")
    for i in range(0, 8, 2): a(f"v_pk_add_f32 {vr(OF+16+i,2)}, {vr(OF+16+i,2)}, {vr(OF+24+i,2)}")
    for i in range(0, 8, 2): a(f"v_pk_add_f32 {vr(OF+i,2)}, {vr(OF+i,2)}, {vr(OF+16+i,2)}")
    for i in range(0, 8, 2): a(f"v_pk_fma_f32 {vr(OF+i,2)}, {vr(OF+i,2)}, {vr(YY+i,2)}, {vr(XU+i,2)}")
    for i in range(4): a(f"v_cvt_pk_bf16_f32 v{12+i}, v{OF+2*i}, v{OF+2*i+1}")
    a(f"s_mov_b64 exec, {sr(S_EX,2)}\nv_swap_b32 v12, v14\nv_swap_b32 v13, v15\ns_mov_b64 exec, -1")
    a(f"buffer_store_dwordx4 v[12:15], v{V_FO}, {sr(R_OUT,4)}, 0 offen {cfg.oflag}")
    if cfg.stamps == 6: stamp()
    cstamp()
    if cfg.stamps:
        a("s_waitcnt vmcnt(0)")
        cstamp()
        stamp(True)
        for i in range(ncs[0]): a(f"v_writelane_b32 v{V_STAMP}, s{CSR[i]}, {40+i}")
        if cfg.stamps in (10, 12):
            for i in range(6): a(f"v_writelane_b32 v{V_STAMP}, s{[32, 34, 92, 94, 96, 98][i]}, {40+i}")
        if cfg.stamps in (5, 6): a(f"v_writelane_b32 v{V_STAMP}, s{S_SPIN}, 63")
        a(f"s_lshl_b32 s{S_T0}, s2, 3\ns_add_u32 s{S_T0}, s{S_T0}, s{S_W}\ns_lshl_b32 s{S_T0}, s{S_T0}, 8\ns_add_u32 s{S_T0}, s{S_T0}, {WS_DBG}")
        a(f"v_lshlrev_b32 v2, 2, v{V_LANE}\nbuffer_store_dword v{V_STAMP}, v2, {sr(R_WS,4)}, s{S_T0} offen")
        if cfg.stamps == 3:
            a(f"s_add_u32 s{S_T0}, s{S_T0}, 0x80000\nbuffer_store_dword v253, v2, {sr(R_WS,4)}, s{S_T0} offen\ns_add_u32 s{S_T0}, s{S_T0}, 0x80000\nbuffer_store_dword v254, v2, {sr(R_WS,4)}, s{S_T0} offen")
    pad("end")
    a.label("L_end")
    a("s_endpgm")
    a(late[0])
    if cfg.brks is None: brk("x")
    for l in late[1:]: a(l)
    a.label("L_fb")
    a(f"v_mov_b32 v8, 0xff800000\ns_mov_b32 s{S_CNT}, {WS_KV}")
    a(f"v_subrev_u32 v10, {L_KV}, v{V_VA}")
    a.label("L_fb1")
    a(f"buffer_load_dwordx4 {vr(KF,4)}, v{V_L16}, {sr(R_WS,4)}, s{S_CNT} offen sc1\ns_waitcnt vmcnt(0)")
    a(mfma32(S0, KF, QF, None)); a.nop(12)
    for l in maxtree(S0, 8, init=True): a(l)
    a(f"s_add_u32 s{S_CNT}, s{S_CNT}, 2048\ns_cmp_lt_u32 s{S_CNT}, {WS_KV + 64*2048}\ns_cbranch_scc1 L_fb1")
    setC(8, 0.0)
    for i in range(16): a(f"v_mov_b32 v{OO+i}, 0")
    a(f"s_mov_b32 s{S_CNT}, {WS_KV}")
    a.label("L_fb2")
    a(f"buffer_load_dwordx4 {vr(KF,4)}, v{V_L16}, {sr(R_WS,4)}, s{S_CNT} offen sc1")
    a(f"s_mov_b64 exec, {sr(S_VM,2)}")
    a(f"buffer_load_dwordx4 {vr(VF,4)}, v10, {sr(R_WS,4)}, s{S_CNT} offen sc1")
    a(f"buffer_load_dwordx4 {vr(VF+4,4)}, v10, {sr(R_WS,4)}, s{S_CNT} offen offset:512 sc1")
    a("s_mov_b64 exec, -1\ns_waitcnt vmcnt(0)")
    a(mfma32(S0, KF, QF, CC)); a.nop(12)
    for i in range(16): a(f"v_exp_f32 v{S0+i}, v{S0+i}")
    a.nop(2)
    a(smf(OO, VF, S0)); a(smf(OO, VF + 4, S0 + 8))
    a(f"s_add_u32 s{S_CNT}, s{S_CNT}, 2048\ns_cmp_lt_u32 s{S_CNT}, {WS_KV + 64*2048}\ns_cbranch_scc1 L_fb2")
    a.nop(12)
    a(f"v_rcp_f32 v10, v{OO+8}\ns_nop 0\nv_mov_b32 v11, v10")
    normalize()
    for i in range(4): a(f"v_min_u32 v{12+i}, -2, v{12+i}")
    a(f"s_cmp_ge_u32 s{S_W}, 4\ns_cbranch_scc1 L_ostB\ns_branch L_ostA")
    a.label("L_code_end")
    return a

HEADER = open(f"cdna_kernels/{NAME}.s.ref").read().split("; Override launch")[0]
def wrap(a):
    s = HEADER + """; One persistent launch, one 8-wave workgroup per CU (all 256 are resident: 160 KiB LDS each). Generated by the author's script.
;  1. K/V rows, LayerNorm statistics and column sums of W are shared out over the workgroups, published in d_ws, arrival counted in d_debug.
;  2. [w_gate | w_up | w_q] projection on raw x, 128 x 256 tile; LayerNorm applied in the epilogue; h and q go to d_ws.
;  3. MQA attention with the down projection interleaved; 4. o exchange, w_o projection, gate, residual.
; Hand-offs use write-through stores and L1-bypassing loads; flags and 'not yet written' patterns are initialised inside the launch.
""" + "; @launch grid=(256,1,1) block=(512,1,1) lds=163840\n"
    s += f""".amdgcn_target "amdgcn-amd-amdhsa--gfx950"
.text
.globl {NAME}_kernel
.p2align 8
.type {NAME}_kernel,@function
{NAME}_kernel:
"""
    s += a.text()
    s += f""".section .rodata,"a"
.p2align 6
.amdhsa_kernel {NAME}_kernel
  .amdhsa_next_free_vgpr 256
  .amdhsa_next_free_sgpr 102
  .amdhsa_accum_offset 256
  .amdhsa_group_segment_fixed_size 0
  .amdhsa_kernarg_size 96
  .amdhsa_user_sgpr_count 2
  .amdhsa_user_sgpr_kernarg_segment_ptr 1
  .amdhsa_system_sgpr_workgroup_id_x 1
.end_amdhsa_kernel
"""
    return s

if __name__ == "__main__":
    cfg = Cfg()
    out = sys.argv[1]
    for kv in sys.argv[2:]:
        k, v = kv.split("=")
        setattr(cfg, k, eval(v))
    g0 = gen
    def gen(cfg):
        a = g0(cfg)
        if 'E' in cfg.ab or 'S' in cfg.ab:
            n = a.lines.index("L_qt:")
            for i in range(n):
                if a.lines[i].startswith("buffer_store") or ('E' in cfg.ab and a.lines[i].startswith("buffer_")): a.lines[i] = "s_nop 0"
            h = a.lines.index("L_helper:")
            k = 0
            for i in range(h, len(a.lines)):
                if a.lines[i].startswith("buffer_store") and k < 3:
                    a.lines[i] = f"buffer_load_dword v9, off, {sr(R_X,4)}, 0"; k += 1
        if cfg.jitter:
            import random
            rnd = random.Random(cfg.jitter)
            out_ = []; k = 0; started = False
            for i, l in enumerate(a.lines):
                if l.startswith("s_cbranch_scc1 L_helper"): started = True
                if started and (l == "s_barrier" or ("sc1" in l and rnd.random() < 0.3)) and rnd.random() < 0.5:
                    k += 1
                    out_ += ["s_cselect_b32 s101, 1, 0", f"s_lshl_b32 s100, s2, 3", f"s_add_u32 s100, s100, s{S_W}" if rnd.random() < 0.5 else "s_nop 0",
                             f"s_mul_i32 s100, s100, {rnd.randrange(1, 1 << 30) | 1}", "s_lshr_b32 s100, s100, 28", f"s_cmp_lt_u32 s100, {rnd.choice([1, 2, 4])}",
                             f"s_cbranch_scc0 L_jit{k}", f"s_sleep {rnd.choice([5, 20, 60, 120])}", f"L_jit{k}:", "s_cmp_eq_u32 s101, 1"]
                out_.append(l)
            a.lines = out_
        return a
    a = gen(cfg)
    if cfg.pages:
        import subprocess, re
        open("_p1.s", "w").write(wrap(a))
        subprocess.run(["clang", "-x", "assembler", "-target", "amdgcn-amd-amdhsa", "-mcpu=gfx950", "-c", "_p1.s", "-o", "_p1.o"], check=True)
        t = subprocess.run(["llvm-objdump", "-t", "_p1.o"], capture_output=True, text=True).stdout
        pts = sorted((int(m.group(1), 16), m.group(2), int(m.group(3))) for m in re.finditer(r"^([0-9a-f]+) .* L_brk_(\w)_(\d+)$", t, re.M))
        brks = {}; start = -0x300
        for (ad, k, i), (nx, _, _) in zip(pts, pts[1:]):
            if nx - start > 4096 - 112:
                brks[i] = k; start = ad
        cfg.brks = brks
        a = gen(cfg)
    else:
        cfg.brks = {}
        a = gen(cfg)
    errs = check(a.lines)
    for e in errs: print("HAZARD need %d have %d:\n   %s\n   %s" % (e[2], e[3], e[0], e[1]))
    open(out, "w").write(wrap(a))
    print("wrote", out, len(a.lines), "lines", len(errs), "hazards")
```

```python
import sys, math
from asmlib import Asm, vr, sr, f2u, check

NAME = "recurrent_scan__grouped_kv_mqa__glu_gated_geglu__prompt"

class Cfg:
    stamps = False
    stop = None
    force_fb = False
    shift = 101.0
    upd = (5,)
    brks = None
    pages = True
    touch = True
    far = ('L_attA', 'L_attB')
    odelay = 0
    xmap = 0
    krot = 8
    pair = True
    tbx = 13
    p_mrg = 9
    mb0 = None
    bm63 = 6
    t_wr = (52, 54, 56, 57, 58, 58, 60, 60, 61, 61, 62, 62, 62, 62, 62, 63)
    n_ga = 0
    pgath = False
    tprio = 1
    oord = (0, 1, 4, 5, 2, 3, 6, 7)
    oearly = 0
    sfl = ('sc1', 'sc1')
    hfl = 'sc1 nt'
    t_sb = 4
    e7 = 0
    itr = ()
    qsl = 2
    p0 = (4, 6)
    cs_in = False
    jitter = 0
    t_out = 0
    cs_late = False
    n_cs0 = 2
    n_csb = 4
    wfix = False
    stub = 's_nop 0\n'
    updm = 1
    updl = True
    cf = ('', '', '')
    nodot = False
    nodma = False
    nord = False
    sizes = [8, 8, 7] + [6]*6 + [5]
    ilen = 6
    g_init = 2
    t_pf = -1
    t_wo = (9, 10, 12, 13, 14, 15, 16, 17)
    t_wd0 = (15, 15, 16, 17)
    t_poll = 16
    bmid = 3
    lh = (1, 2, 3, 3, 4, 5, 6, 6)
    mb = (2, 3, 4, 5, 5, 6, 7, 7)
    dpos = (1, 1, 2, 2, 3, 4)
    hpos = (4, 5, 5, 6)
    hwait = {0: 0, 1: 3}
    t_h0 = (19, 19, 20, 20)
    t_chk = 19
    pbar = 1
    n_csa = 4
    lead0 = 10
    oflag = 'sc1'
    n_wo63 = 6
    nt = ''
    t_code = (12, 43)
    ofast = 0
    olate = 1
    yfirst = True
    n_gb = 1
    n_b0 = 0
    oswap = False
    t_tr = 30
    n_gp = 5
    i_q = 5
    i_qb = 2
    n_poll = 0
    e6 = 0
    pf_first = True
    bp = 0
    g_h = 29
    c_st = (-2, 0)
    c_q = (2, 99, 4, 0)
    gpos = 0
    g_tr = 4
    mord = 0
    g_early = True
    mswap = False
    c_arr = 1
    lead = [8, 10, 12, 9, 12, 12]
    n_pre = (2, 4)
    n_fin = (7, 6)
    g_cs = (3, 4, 5, 6)
    g_csc = 9
    bprio = 3
    st_rate = 0.5
    t_flag = 11
    t_kv2 = 6
    m16 = False
    ladder = True
    pp = -1
    pos = [(2, 6, 12), (2, 6, 10, 14), (1, 4, 7, 10, 13)]
    pa = 2
    pv = (1, 1)
    ab = ''
    pad = None

WS_KV, WS_ST, WS_FL, WS_CS, WS_O, WS_H, WS_DBG, WS_Q = 0, 0x80000, 0x28000, 0x40000, 0x100000, 0x400000, 0xC00000, 0xE00000
WS_SIZE = 0x1000000
L_X, L_W, L_R = 0, 49152, 147456
L_KV, L_WD, L_WO = 0, 65536, 98304
P_X, P_WQ, P_WK, P_WV, P_WO, P_WG, P_WU, P_WD, P_OUT, P_DBG, P_WS = 4, 6, 8, 10, 12, 16, 18, 20, 22, 24, 26
R_X, R_WKV, R_WD, R_WO, R_OUT, R_DBG, R_WS = 28, 32, 36, 40, 44, 48, 52
S_W, S_RB, S_CB, S_RT64, S_CT8 = 56, 57, 58, 59, 60
S_T16 = 61
S_VM = 62
S_XOFF = 64
S_WOFF = 65
S_HW = 66
S_ONES = 67
S_T0, S_T1, S_T2, S_T3 = 68, 69, 70, 71
S_OST = 72
S_FLG = 73
S_HST = 74
S_KQ, S_RT = 75, 76
S_WDO = 77
S_HLD = 78
S_W4K = 79
S_W2K = 80
S_SPIN = 81
S_WOO = 82
S_OLD = 83
S_EX = 84
S_TS = 86
S_CNT = 88
S_WSTEP = 89
S_TS2 = 90
S_RET = 0
R_W, R_CW = 92, 96
S_H4K = 3
S_HSB = 14
S_M0W = 15
SPIN_MAX = 1 << 18

V_LANE = 1
V_STAMP = 255
V_L16, V_KA, V_WDD, V_VA, V_DA, V_PO, V_FO, V_XR, QF = 208, 209, 210, 211, 212, 214, 215, 216, 220
V_GA = 0

def mfma32(d, a, b, c):
    cs = "0" if c is None else vr(c, 16)
    return f"v_mfma_f32_32x32x16_bf16 {vr(d,16)}, {vr(a,4)}, {vr(b,4)}, {cs}"
V_IDX = 124
def smf(d, a, b):
    return f"v_smfmac_f32_32x32x32_bf16 {vr(d,16)}, {vr(a,4)}, {vr(b,8)}, v{V_IDX}"
def mfma16(d, a, b, c):
    cs = "0" if c is None else vr(c, 4)
    return f"v_mfma_f32_16x16x32_bf16 {vr(d,4)}, {vr(a,4)}, {vr(b,4)}, {cs}"

def gen(cfg):
    a = Asm()
    nst = [0]
    def stamp(final=False, name=None):
        if not cfg.stamps: return
        i = nst[0]; nst[0] += 1
        if cfg.stamps in (8, 9, 10, 11, 12) and i and not final: return
        if cfg.stamps == 7:
            if isinstance(name, int): i = name
            elif final: i = 9
            elif name == "b0": i = 7
            elif name == "g1": i = 8
            elif i: return
        elif isinstance(name, int):
            nst[0] -= 1; return
        if cfg.stamps == 5:
            marks = {"b0": 2, "g1": 3, "att0": 4, "att1": 5}
            if final: i = 1
            elif name in marks: i = marks[name]
            elif i: return
        a(f"s_memrealtime {sr(S_TS,2)}\ns_memtime {sr(S_TS2,2)}\ns_waitcnt lgkmcnt(0)\nv_writelane_b32 v{V_STAMP}, s{S_TS}, {i}\nv_writelane_b32 v{V_STAMP}, s{S_TS2}, {32+i}")
    nbrk = [0]
    def brk(kind):
        i = nbrk[0]; nbrk[0] += 1
        if cfg.brks is None: a.label(f"L_brk_{kind}_{i}")
        elif i in cfg.brks:
            a(f"s_branch L_pg{i}\n.p2align 12\nL_stub{i}:\n" + cfg.stub + f"s_setpc_b64 {sr(S_RET,2)}\nL_pg{i}:")
    FAR = {"L_qt": "e", "L_joinA": "e", "L_attA": "a", "L_attB": "a", "L_fin2": "a"}
    def far(label, fall=False):
        if label in cfg.far:
            if fall: a(f"s_branch {label}")
            a(f".p2align 6\nL_stub{label}:\ns_nop 0\ns_setpc_b64 {sr(S_RET,2)}")
        a.label(label)
    def touch(kinds, first, n, maxn):
        ids = [] if cfg.brks is None else [i for i, k in cfg.brks.items() if k in kinds] + [l for l, k in FAR.items() if k in kinds and l in cfg.far]
        assert len(ids) <= maxn
        for j in range(maxn):
            if j < len(ids) and cfg.touch: a(f"s_cmp_eq_u32 s{S_HW}, {first + j % n}\ns_cbranch_scc0 L_nt{ids[j]}\ns_call_b64 {sr(S_RET,2)}, L_stub{ids[j]}\nL_nt{ids[j]}:")
            elif cfg.brks is None: a("s_nop 0\ns_nop 0\ns_nop 0")
    ncs = [0]
    CSR = [4, 6, 8, 10, 12] + list(range(16, 28, 2)) + [32, 34, 92, 94, 96, 98, 48]
    def cstamp(mode=8):
        if cfg.stamps != mode: return
        a(f"s_memtime {sr(CSR[ncs[0]], 2)}"); ncs[0] += 1
    def c12(k):
        if cfg.stamps == 12: a(f"s_memtime {sr([32, 34, 92, 94, 96, 98][k], 2)}\ns_waitcnt lgkmcnt(0)")
    def pad(pt):
        if not cfg.pad or cfg.pad[0] != pt: return
        if len(cfg.pad) > 2:
            inv = cfg.pad[2] == 2
            a(f"s_and_b32 s{S_T0}, s{S_TS}, 0x7fffffff")
            if inv: a(f"s_not_b32 s{S_T0}, s{S_T0}")
            a(f"v_mov_b32 v2, s{S_T0}\ns_mov_b64 exec, 1\nbuffer_atomic_umax v2, off, {sr(R_DBG,4)}, 0 offset:4 sc1\ns_mov_b64 exec, -1")
            a(f"L_pad0:\ns_memrealtime {sr(S_TS2,2)}\ns_waitcnt lgkmcnt(0)\ns_sub_u32 s{S_TS2}, s{S_TS2}, s{S_TS}\ns_cmp_lt_u32 s{S_TS2}, {int(cfg.pad[1]*100) - 1500}\ns_cbranch_scc1 L_pad0")
            a(f"buffer_load_dword v2, off, {sr(R_DBG,4)}, 0 offset:4 sc1\ns_waitcnt vmcnt(0)\nv_readfirstlane_b32 s{S_T0}, v2\ns_nop 3")
            if inv: a(f"s_not_b32 s{S_T0}, s{S_T0}")
            a(f"s_and_b32 s{S_TS}, s{S_TS}, 0x80000000\ns_or_b32 s{S_TS}, s{S_TS}, s{S_T0}")
        a(f"L_pad{len(a.lines)}:\ns_memrealtime {sr(S_TS2,2)}\ns_waitcnt lgkmcnt(0)\ns_sub_u32 s{S_TS2}, s{S_TS2}, s{S_TS}\ns_cmp_lt_u32 s{S_TS2}, {int(cfg.pad[1]*100)}\ns_cbranch_scc1 L_pad{len(a.lines)}")
    def srd(r, p, size):
        a(f"s_mov_b32 s{r}, s{p}\ns_and_b32 s{r+1}, s{p+1}, 0xffff\ns_mov_b32 s{r+2}, {hex(size)}\ns_mov_b32 s{r+3}, 0x20000")

    a(f"s_cmp_ge_u32 s2, 256\ns_cbranch_scc1 L_end")
    if cfg.pad: a(f"s_memrealtime {sr(S_TS,2)}")
    a(f"s_load_dwordx16 s[4:19], s[0:1], 0\ns_load_dwordx8 s[20:27], s[0:1], 64")
    if cfg.stamps:
        a(f"v_mov_b32 v{V_STAMP}, 0")
    a(f"v_lshrrev_b32 v2, 6, v0\nv_and_b32 v{V_LANE}, 63, v0")
    a(f"s_getpc_b64 {sr(S_EX,2)}")
    a.label("L_pc")
    a(f"""
    v_readfirstlane_b32 s{S_W}, v2
    s_and_b32 s{S_T0}, s2, 0xf8
    v_add_u32 v2, s{S_T0}, v2
    v_lshl_add_u32 v2, v2, 1, v{V_LANE}
    v_lshlrev_b32 v252, 7, v2
    v_min_u32 v252, L_code_end-L_pc-4, v252
    v_mov_b32 v253, 0
    v_lshl_add_u64 v[252:253], v[252:253], 0, {sr(S_EX,2)}
    s_mov_b64 exec, 3
    global_load_dword v9, v[252:253], off
    s_mov_b64 exec, -1
    """)
    a(f"""
    s_and_b32 s{S_T0}, s2, 7
    s_lshr_b32 s{S_T1}, s2, 3
    s_and_b32 s{S_CT8}, s{S_T1}, 7
    """)
    if cfg.xmap == 1:
        a(f"""
        s_and_b32 s{S_RB}, s{S_T1}, 15
        s_lshr_b32 s{S_T2}, s2, 7
        s_lshl_b32 s{S_CB}, s{S_T0}, 1
        s_add_u32 s{S_CB}, s{S_CB}, s{S_T2}
        s_lshr_b32 s{S_T1}, s{S_T1}, 3
        """)
    elif cfg.xmap == 2:
        a(f"""
        s_and_b32 s{S_T2}, s{S_T0}, 3
        s_lshl_b32 s{S_T2}, s{S_T2}, 2
        s_and_b32 s{S_RB}, s{S_T1}, 3
        s_add_u32 s{S_RB}, s{S_RB}, s{S_T2}
        s_and_b32 s{S_T2}, s{S_T0}, 4
        s_lshl_b32 s{S_T2}, s{S_T2}, 1
        s_lshr_b32 s{S_CB}, s{S_T1}, 2
        s_add_u32 s{S_CB}, s{S_CB}, s{S_T2}
        s_lshr_b32 s{S_T1}, s{S_T1}, 3
        """)
    else:
        a(f"""
        s_and_b32 s{S_T2}, s{S_T0}, 1
        s_lshl_b32 s{S_T2}, s{S_T2}, 3
        s_add_u32 s{S_RB}, s{S_T2}, s{S_CT8}
        s_lshr_b32 s{S_T1}, s{S_T1}, 3
        s_lshr_b32 s{S_T2}, s{S_T0}, 1
        s_lshl_b32 s{S_T2}, s{S_T2}, 2
        s_add_u32 s{S_CB}, s{S_T2}, s{S_T1}
        """)
    a(f"""
    s_lshl_b32 s{S_T2}, s{S_T0}, 2
    s_add_u32 s{S_RT64}, s{S_T2}, s{S_T1}
    s_and_b32 s{S_HW}, s{S_W}, 3
    s_lshl_b32 s{S_H4K}, s{S_HW}, 12
    v_lshlrev_b32 v{V_L16}, 4, v{V_LANE}
    s_mov_b32 s{R_X+2}, 0x200000
    s_mov_b32 s{R_X+3}, 0x20000
    s_cmp_ge_u32 s{S_W}, 4
    s_cbranch_scc1 L_helper
    """)

    sizes = cfg.sizes
    assert sum(sizes) == 64
    starts = [sum(sizes[:i]) for i in range(len(sizes))]
    S0, S1, PP, OO, CC, KF, VF = 16, 32, 48, 64, 80, 100, 108
    YY, HF, DF = 128, 160, 192
    HO = 160
    V_OA, V_PA = 126, 125
    OX, CX, QX = 224, 48, 96
    if cfg.pair: WOF = [240, 244, 248, 176, 180, 184, 188, 160, 48, 52, 164, 56, 60, 168, 96, 172]
    else: WOF = [48, 52, 56, 96, 60] + list(range(224, 252, 4)) + [176, 180, 184, 188]
    wo_rd = [f"ds_read_b64_tr_b16 {vr(WOF[2*j+ct] + 2*t,2)}, v{V_OA+ct} offset:{cfg.oord[j]*2048 + t*512}" for j in range(8) for ct in range(2) for t in range(2)]
    def kv_off(t):
        c = max(i for i in range(len(starts)) if starts[i] <= t)
        return ((c + 1) % 3) * 16384 + (t - starts[c]) * 2048
    qload = f"buffer_load_dwordx4 {vr(QF,4)}, v{V_L16}, {sr(R_WS,4)}, s{S_T2} offen sc1"

    XS = [2, 0, 1, 2, 0, 1, 2, 0]
    L_PX = L_X + XS[2]*16384
    def setup_ids():
        a(f"""
        s_lshr_b32 s{S_KQ}, s{S_W}, 1
        s_and_b32 s{S_RT}, s{S_W}, 1
        s_lshl_b32 s{S_T2}, s{S_RT64}, 1
        s_add_u32 s{S_T2}, s{S_T2}, s{S_RT}
        s_lshl_b32 s{S_T0}, s{S_T2}, 3
        s_add_u32 s{S_T0}, s{S_T0}, s{S_CT8}
        s_lshl_b32 s{S_T0}, s{S_T0}, 2
        s_add_u32 s{S_T0}, s{S_T0}, s{S_KQ}
        s_lshl_b32 s{S_T0}, s{S_T0}, 10
        s_add_u32 s{S_OST}, s{S_T0}, {WS_O}
        s_lshl_b32 s{S_T0}, s2, 7
        s_lshl_b32 s{S_T1}, s{S_W}, 2
        s_add_u32 s{S_T0}, s{S_T0}, s{S_T1}
        s_add_u32 s{S_FLG}, s{S_T0}, {WS_FL}
        """)
    def common_setup():
        srd(R_WD, P_WD, 1792 * 1024)
        srd(R_WO, P_WO, 512 * 1024)
        srd(R_OUT, P_OUT, 0x200000)
        a(f"""
        s_lshl_b32 s{S_W4K}, s{S_W}, 12
        s_lshl_b32 s{S_W2K}, s{S_W}, 11
        s_mov_b32 s{S_VM}, 0xffff
        s_mov_b32 s{S_VM+1}, 0xffff
        s_lshl_b32 s{S_T2}, s{S_RT64}, 1
        s_add_u32 s{S_T2}, s{S_T2}, s{S_RT}
        s_mul_i32 s{S_T0}, s{S_KQ}, {448*1024}
        s_lshl_b32 s{S_T1}, s{S_RT}, 15
        s_add_u32 s{S_T0}, s{S_T0}, s{S_T1}
        s_lshl_b32 s{S_T1}, s{S_CT8}, 7
        s_add_u32 s{S_WDO}, s{S_T0}, s{S_T1}
        s_lshl_b32 s{S_T0}, s{S_W}, 15
        s_add_u32 s{S_WOO}, s{S_T0}, s{S_T1}
        s_and_b32 s{S_T0}, s{S_CT8}, {1 if cfg.oswap else 0}
        s_lshl_b32 s{S_T16}, s{S_T0}, 18
        s_add_u32 s{S_WOO}, s{S_WOO}, s{S_T16}
        s_mul_i32 s{S_T0}, s{S_T2}, 112
        s_mul_i32 s{S_T3}, s{S_KQ}, 28
        s_add_u32 s{S_T0}, s{S_T0}, s{S_T3}
        s_lshl_b32 s{S_T0}, s{S_T0}, 10
        s_add_u32 s{S_HLD}, s{S_T0}, {WS_H}
        s_lshl_b32 s{S_T0}, s{S_T2}, 15
        s_lshl_b32 s{S_T3}, s{S_KQ}, 13
        s_add_u32 s{S_T3}, s{S_T0}, s{S_T3}
        s_lshr_b32 s{S_T0}, s{S_T16}, 4
        s_xor_b32 s{S_OLD}, s{S_T3}, s{S_T0}
        s_add_u32 s{S_OLD}, s{S_OLD}, {WS_O}
        s_add_u32 s{S_T0}, s{S_T3}, s{S_T1}
        v_lshrrev_b32 v3, 5, v{V_LANE}
        v_bfe_u32 v5, v{V_LANE}, 3, 1
        v_lshl_add_u32 v2, v3, 1, v5
        v_bfe_u32 v7, v{V_LANE}, 4, 1
        v_lshl_add_u32 v4, v7, 2, v2
        v_and_b32 v6, 7, v{V_LANE}
        v_lshlrev_b32 v8, 4, v6
        v_lshl_add_u32 v4, v4, 10, v8
        v_add_u32 v{V_FO}, s{S_T0}, v4
        v_lshlrev_b32 v2, 8, v2
        v_lshl_add_u32 v2, v7, 7, v2
        v_lshl_add_u32 v2, v5, 4, v2
        v_and_b32 v4, 3, v6
        v_lshl_add_u32 v2, v4, 5, v2
        v_lshrrev_b32 v4, 2, v6
        v_lshl_add_u32 v2, v4, 12, v2
        s_lshl_b32 s{S_T0}, s{S_RT}, 13
        s_lshl_b32 s{S_T1}, s{S_KQ}, 10
        s_add_u32 s{S_T0}, s{S_T0}, s{S_T1}
        v_add_u32 v{V_GA}, s{S_T0}, v2
        v_add_u32 v{V_KA}, {L_KV}, v{V_L16}
        v_and_b32 v2, 15, v{V_LANE}
        v_lshl_add_u32 v2, v3, 4, v2
        v_lshlrev_b32 v2, 4, v2
        v_add_u32 v{V_VA}, {L_KV + 1024}, v2
        v_lshrrev_b32 v5, 3, v{V_LANE}
        v_and_b32 v6, 7, v{V_LANE}
        v_bfe_u32 v7, v{V_LANE}, 4, 1
        v_lshlrev_b32 v8, 2, v7
        v_xor_b32 v6, v6, v8
        v_lshlrev_b32 v6, 4, v6
        v_lshl_add_u32 v{V_WDD}, v5, 10, v6
        v_and_b32 v2, 1, v{V_LANE}
        v_bfe_u32 v4, v{V_LANE}, 1, 1
        v_lshl_add_u32 v2, v2, 1, v4
        v_bfe_u32 v5, v{V_LANE}, 2, 2
        v_lshl_add_u32 v4, v3, 3, v5
        v_lshlrev_b32 v4, 7, v4
        v_and_b32 v6, 2, v5
        v_xor_b32 v6, v6, v7
        v_lshl_add_u32 v6, v6, 5, v4
        v_and_b32 v8, 3, v{V_LANE}
        v_lshl_add_u32 v6, v8, 3, v6
        v_lshl_add_u32 v4, v2, 3, v4
        s_lshl_b32 s{S_T0}, s{S_KQ}, 13
        s_add_u32 s{S_T0}, s{S_T0}, {L_WD}
        v_add_u32 v{V_DA}, s{S_T0}, v6
        v_xor_b32 v{V_DA+1}, 64, v{V_DA}
        """)
        a(f"""
        s_lshr_b32 s{S_T0}, s{S_RT64}, 1
        s_lshl_b32 s{S_T0}, s{S_T0}, 3
        s_lshl_b32 s{S_T1}, s{S_KQ}, 1
        s_add_u32 s{S_T0}, s{S_T0}, s{S_T1}
        s_lshl_b32 s{S_T0}, s{S_T0}, 7
        v_and_b32 v2, 3, v{V_LANE}
        v_lshlrev_b32 v6, 2, v2
        v_and_b32 v8, 1, v5
        v_lshl_add_u32 v6, v8, 14, v6
        v_lshrrev_b32 v8, 1, v5
        v_lshl_add_u32 v6, v8, 7, v6
        """ if cfg.xmap == 1 else f"""
        s_lshr_b32 s{S_T0}, s{S_RT64}, 3
        s_and_b32 s{S_T1}, s{S_KQ}, 2
        s_lshl_b32 s{S_T1}, s{S_T1}, 1
        s_add_u32 s{S_T0}, s{S_T0}, s{S_T1}
        s_bfe_u32 s{S_T2}, s{S_RT64}, 0x20001
        s_lshl_b32 s{S_T2}, s{S_T2}, 3
        s_add_u32 s{S_T0}, s{S_T0}, s{S_T2}
        s_and_b32 s{S_T1}, s{S_KQ}, 1
        s_lshl_b32 s{S_T1}, s{S_T1}, 7
        s_add_u32 s{S_T0}, s{S_T0}, s{S_T1}
        s_lshl_b32 s{S_T0}, s{S_T0}, 7
        s_lshl_b32 s{S_T1}, s{S_KQ}, 1
        v_and_b32 v2, 3, v{V_LANE}
        v_lshlrev_b32 v6, 2, v2
        v_lshl_add_u32 v6, v5, 12, v6
        """ if cfg.xmap == 2 else f"""
        s_lshr_b32 s{S_T0}, s{S_RT64}, 4
        s_lshl_b32 s{S_T1}, s{S_KQ}, 1
        s_add_u32 s{S_T0}, s{S_T0}, s{S_T1}
        s_bfe_u32 s{S_T2}, s{S_RT64}, 0x30001
        s_lshl_b32 s{S_T2}, s{S_T2}, 3
        s_add_u32 s{S_T0}, s{S_T0}, s{S_T2}
        s_lshl_b32 s{S_T0}, s{S_T0}, 7
        v_and_b32 v2, 3, v{V_LANE}
        v_lshlrev_b32 v6, 2, v2
        v_lshl_add_u32 v6, v5, 13, v6
        """)
        a(f"""
        v_add_u32 v6, s{S_T0}, v6
        s_lshr_b32 s{S_T0}, s{S_T16}, 16
        s_xor_b32 s{S_T1}, s{S_T1}, s{S_T0}
        s_and_b32 s{S_T0}, s2, 0xc7
        s_lshl_b32 s{S_T1}, s{S_T1}, 3
        s_add_u32 s{S_T0}, s{S_T0}, s{S_T1}
        s_lshl_b32 s{S_T0}, s{S_T0}, 7
        s_lshl_b32 s{S_T1}, s{S_RT}, 2
        s_add_u32 s{S_T0}, s{S_T0}, s{S_T1}
        v_and_b32 v8, 1, v5
        v_lshlrev_b32 v8, 10, v8
        v_lshl_add_u32 v8, v2, 3, v8
        v_cmp_gt_u32 vcc, 16, v{V_LANE}
        v_add_u32 v8, s{S_T0}, v8
        s_nop 0
        v_cndmask_b32 v{V_PO}, v8, v6, vcc
        """)

    def img_params(simg, sstride, soff):
        a(f"""
        s_lshr_b32 s{S_T0}, s{S_CB}, 2
        s_and_b32 s{S_T1}, s{S_CB}, 3
        s_mul_i32 s{soff}, s{S_T0}, 896
        s_lshl_b32 s{S_T2}, s{S_T1}, 8
        s_add_u32 s{soff}, s{soff}, s{S_T2}
        s_lshr_b32 s{S_T2}, s{simg}, 1
        s_lshl_b32 s{S_T1}, s{S_T1}, 1
        s_add_u32 s{S_T1}, s{S_T1}, s{S_T2}
        s_lshl_b32 s{S_T2}, s{S_T2}, 7
        s_add_u32 s{soff}, s{soff}, s{S_T2}
        s_lshl_b32 s{S_T0}, s{S_T0}, 1
        s_and_b32 s{S_T2}, s{simg}, 1
        s_add_u32 s{S_T0}, s{S_T0}, s{S_T2}
        s_lshl_b32 s{S_T0}, s{S_T0}, 7
        s_movk_i32 s{sstride}, 3584
        s_cmp_eq_u32 s{S_T1}, 7
        s_cselect_b32 s{soff}, s{S_T0}, s{soff}
        s_cselect_b32 s{sstride}, 1024, s{sstride}
        """)
    def img_srd(r, sstride):
        a(f"""
        s_cmp_eq_u32 s{S_T2}, 0
        s_cselect_b32 s{r}, s{P_WG}, s{P_WU}
        s_cselect_b32 s{r+1}, s{P_WG+1}, s{P_WU+1}
        s_cmp_eq_u32 s{S_T1}, 7
        s_cselect_b32 s{r}, s{P_WQ}, s{r}
        s_cselect_b32 s{r+1}, s{P_WQ+1}, s{r+1}
        s_and_b32 s{r+1}, s{r+1}, 0xffff
        s_lshl_b32 s{r+2}, s{sstride}, 9
        s_mov_b32 s{r+3}, 0x20000
        """)

    ACC, XF, WF, V_XA, V_WR = 16, 144, 176, 248, 250
    RWP, RWQ, RA = 216, 232, 2
    L_RA = L_W + 8192
    def acc(ti, rt): return ACC + 64*ti + 16*rt
    KG = 2.0 * math.sqrt(2.0 / math.pi) * math.log2(math.e)
    a('; ==== waves 0..3, start: K or V tile of 16 rows (LayerNorm folded in), row statistics, share of the W column sums ====')
    assert cfg.krot == 8 and cfg.g_init in (-1, 0, 2)
    CL, CSUM = 16, 40
    a(f"""
    v_and_b32 v5, 15, v{V_LANE}
    v_lshrrev_b32 v6, 4, v{V_LANE}
    v_lshrrev_b32 v7, 3, v{V_LANE}
    v_and_b32 v4, 7, v{V_LANE}
    s_lshl_b32 s{S_T16}, s{S_RB}, 3
    s_lshr_b32 s{S_T2}, s{S_CB}, 1
    s_add_u32 s{S_T16}, s{S_T16}, s{S_T2}
    s_cmp_lg_u32 s{S_HW}, 0
    s_cbranch_scc1 L_csld
    v_xor_b32 v2, v6, v4
    v_lshlrev_b32 v2, 4, v2
    v_lshl_add_u32 v132, v7, 10, v2
    v_xor_b32 v133, 64, v132
    v_add_u32 v133, {8192-1024}, v133
    s_lshl_b32 s{S_XOFF}, s{S_T16}, 14
    s_mov_b32 s{R_WKV+2}, 0x4000
    s_mov_b32 s{R_WKV+3}, 0x20000
    s_mov_b32 m0, {L_PX}
    s_and_b32 s{S_T3}, s{S_CB}, 1
    s_waitcnt lgkmcnt(0)
    """)
    stamp()
    a(f"s_mov_b32 s{R_X}, s{P_X}\ns_and_b32 s{R_X+1}, s{P_X+1}, 0xffff")
    for gq in range(4):
        for kb in (2*gq, 2*gq + 1):
            if kb: a(f"s_mov_b32 m0, {L_PX + 2048*kb}\ns_add_u32 s{S_XOFF}, s{S_XOFF}, 128")
            a(f"buffer_load_dwordx4 v132, {sr(R_X,4)}, s{S_XOFF} offen lds\nbuffer_load_dwordx4 v133, {sr(R_X,4)}, s{S_XOFF} offen offset:1024 lds")
        if gq == 0:
            a(f"s_cmp_eq_u32 s{S_T3}, 0\ns_cselect_b32 s{R_WKV}, s{P_WK}, s{P_WV}\ns_cselect_b32 s{R_WKV+1}, s{P_WK+1}, s{P_WV+1}\ns_and_b32 s{R_WKV+1}, s{R_WKV+1}, 0xffff")
        a(f"s_mov_b32 m0, {L_R + 4096*gq}\ns_movk_i32 s{S_T0}, {4096*gq}")
        for e in range(4): a(f"buffer_load_dwordx4 v{V_L16}, {sr(R_WKV,4)}, s{S_T0} offen offset:{1024*e} lds")
        if cfg.p0 and gq + 1 == cfg.p0[0]:
            stamp(name=1); a("s_barrier"); stamp(name=2)
    n_ool = len(a.lines)
    if cfg.cs_in: a("s_branch L_ld_done")
    a.label("L_csld")
    a(f"s_and_b32 s{S_CNT}, s{S_RB}, 3")
    img_params(S_CNT, S_WSTEP, S_WOFF)
    a(f"""
    s_and_b32 s{S_T0}, s{S_RB}, 4
    s_and_b32 s{S_T3}, s{S_RB}, 8
    s_lshl_b32 s{S_T3}, s{S_T3}, 2
    s_add_u32 s{S_T0}, s{S_T0}, s{S_T3}
    s_lshl_b32 s{S_T0}, s{S_T0}, 3
    s_mul_i32 s{S_T0}, s{S_T0}, s{S_WSTEP}
    s_add_u32 s{S_WOFF}, s{S_T0}, s{S_WOFF}
    v_mul_u32_u24 v8, s{S_WSTEP}, v7
    v_lshl_add_u32 v219, v4, 4, v8
    s_waitcnt lgkmcnt(0)
    """)
    nst[0] = 0
    stamp()
    a(f"s_mov_b32 s{R_X}, s{P_X}\ns_and_b32 s{R_X+1}, s{P_X+1}, 0xffff")
    img_srd(R_CW, S_WSTEP)
    a(f"s_lshl_b32 s{S_WSTEP}, s{S_WSTEP}, 3")
    def csload(i):
        t = (f"s_add_u32 s{S_T0}, s{S_HW}, {3*i - 1}\ns_and_b32 s{S_T1}, s{S_T0}, 28\ns_add_u32 s{S_T1}, s{S_T1}, s{S_T0}\ns_mul_i32 s{S_T1}, s{S_T1}, s{S_WSTEP}\ns_add_u32 s{S_T1}, s{S_T1}, s{S_WOFF}\n")
        if i == 5: t += f"s_cmp_gt_u32 s{S_T0}, 15\ns_cselect_b32 s{S_T1}, s{R_CW+2}, s{S_T1}\n"
        return t + f"buffer_load_dwordx4 {vr(CL+4*i,4)}, v219, {sr(R_CW,4)}, s{S_T1} offen"
    for i in range(6):
        a(csload(i))
        if cfg.p0 and i + 1 == cfg.p0[1]:
            stamp(name=1); a("s_barrier"); stamp(name=2)
    if not cfg.cs_in:
        a("s_branch L_ld_done")
        ool = a.lines[n_ool:]; del a.lines[n_ool:]
    a.label("L_ld_done")
    a(f"""
    s_mov_b32 s{S_ONES}, 0x3f803f80
    v_lshlrev_b32 v2, 3, v5
    v_lshl_add_u32 v2, v6, 8, v2
    v_add_u32 v130, {L_R}, v2
    v_lshrrev_b32 v3, 1, v5
    v_xor_b32 v3, v3, v6
    v_lshlrev_b32 v3, 4, v3
    v_lshl_add_u32 v3, v5, 7, v3
    v_mov_b32 v{V_XA}, v3
    v_xor_b32 v{V_XA+1}, 64, v3
    v_lshrrev_b32 v3, 5, v{V_LANE}
    v_and_b32 v7, 1, v6
    v_bfe_u32 v8, v{V_LANE}, 2, 2
    v_lshl_add_u32 v4, v6, 3, v8
    v_lshlrev_b32 v4, 7, v4
    v_and_b32 v2, 3, v{V_LANE}
    v_lshl_add_u32 v4, v2, 3, v4
    v_lshrrev_b32 v8, 1, v8
    v_lshl_add_u32 v8, v7, 1, v8
    v_xor_b32 v8, s{S_HW}, v8
    v_lshl_add_u32 v8, v8, 5, v4
    v_add_u32 v{V_WR}, {L_W}, v8
    v_add_u32 v{V_WR+1}, {L_W + 49152}, v8
    s_lshr_b32 s{S_EX}, s{S_T16}, 1
    s_lshl_b32 s{S_EX}, s{S_EX}, 11
    s_and_b32 s{S_T3}, s{S_T16}, 1
    s_and_b32 s{S_T2}, s{S_CB}, 1
    s_cmp_eq_u32 s{S_T2}, 0
    s_cbranch_scc0 L_pubV
    s_lshl_b32 s{S_T3}, s{S_T3}, 8
    s_add_u32 s{S_EX}, s{S_EX}, s{S_T3}
    v_lshl_add_u32 v2, v3, 5, v5
    s_lshl_b32 s{S_EX+1}, s{S_T16}, 10
    s_add_u32 s{S_EX+1}, s{S_EX+1}, {WS_ST}
    s_branch L_pub
    """)
    a.label("L_pubV")
    a(f"""
    s_lshl_b32 s{S_T3}, s{S_T3}, 9
    s_add_u32 s{S_EX}, s{S_EX}, s{S_T3}
    s_add_u32 s{S_EX}, s{S_EX}, 1024
    v_and_b32 v2, 3, v5
    v_bfe_u32 v4, v5, 2, 1
    v_lshl_add_u32 v2, v4, 3, v2
    v_bfe_u32 v4, v5, 3, 1
    v_lshl_add_u32 v2, v4, 2, v2
    v_lshl_add_u32 v2, v3, 4, v2
    s_mov_b32 s{S_EX+1}, {WS_SIZE}
    """)
    a.label("L_pub")
    a("v_lshlrev_b32 v2, 4, v2\nv_lshl_add_u32 v220, v7, 3, v2")
    def capture(fn):
        n = len(a.lines); fn(); L = a.lines[n:]; del a.lines[n:]; return L
    def part1():
        srd(R_WS, P_WS, WS_SIZE)
        a(f"""
        v_and_b32 v6, 7, v{V_LANE}
        v_lshrrev_b32 v4, 4, v{V_LANE}
        v_lshl_add_u32 v6, v6, 2, v4
        v_bfe_u32 v4, v{V_LANE}, 3, 1
        v_lshl_add_u32 v6, v6, 1, v4
        v_lshlrev_b32 v222, 2, v6
        s_lshl_b32 s{S_T0}, s{S_CB}, 14
        s_lshl_b32 s{S_T1}, s{S_RB}, 10
        s_add_u32 s{S_T0}, s{S_T0}, s{S_T1}
        s_lshl_b32 s{S_T1}, s{S_HW}, 8
        s_add_u32 s{S_T0}, s{S_T0}, s{S_T1}
        s_add_u32 s{S_CNT}, s{S_T0}, {WS_CS}
        """)
    def part2():
        setup_ids()
        for i in range(4): a(f"v_mov_b32 v{12+i}, -1")
        common_setup()
        a(f"""
        v_and_b32 v2, 0xff, v{V_L16}
        v_add_u32 v11, {L_R + 256}, v2
        v_xor_b32 v6, v3, v7
        v_lshl_add_u32 v2, v6, 9, v2
        v_add_u32 v10, {L_R}, v2
        s_lshl_b32 s{S_T0}, s{S_HW}, 11
        v_add_u32 v254, s{S_T0}, v{V_L16}
        s_mul_i32 s{S_T0}, s{S_HW}, 2208
        v_lshl_add_u32 v9, v3, 4, v{V_L16}
        v_add_u32 v9, s{S_T0}, v9
        s_lshr_b32 s{S_T0}, s{S_CB}, 2
        s_and_b32 s{S_T1}, s{S_CB}, 3
        s_mul_i32 s{S_T2}, s{S_RB}, 448
        s_mul_i32 s{S_T3}, s{S_T0}, 28
        s_add_u32 s{S_T2}, s{S_T2}, s{S_T3}
        s_lshl_b32 s{S_T3}, s{S_T1}, 3
        s_add_u32 s{S_T2}, s{S_T2}, s{S_T3}
        s_add_u32 s{S_T2}, s{S_T2}, s{S_HW}
        s_lshl_b32 s{S_T2}, s{S_T2}, 10
        s_add_u32 s{S_HST}, s{S_T2}, {WS_H}
        s_add_u32 s{S_HSB}, s{S_HST}, 4096
        s_lshl_b32 s{S_T2}, s{S_RB}, 7
        s_lshl_b32 s{S_T3}, s{S_T0}, 3
        s_add_u32 s{S_T2}, s{S_T2}, s{S_T3}
        s_add_u32 s{S_T2}, s{S_T2}, s{S_HW}
        s_lshl_b32 s{S_T2}, s{S_T2}, 10
        s_add_u32 s{S_T2}, s{S_T2}, {WS_Q}
        """)
    defer1 = capture(part1)
    defer2 = capture(part2) + [f"s_cmp_eq_u32 s{S_T1}, 3\ns_cselect_b32 s{S_HSB}, s{S_T2}, s{S_HSB}"]
    for l in defer1: a(l)
    defer1.clear()
    a(f"s_cmp_lg_u32 s{S_HW}, 0\ns_cbranch_scc1 L_cs")
    PF, PACC, PCS, PRS, PG, PSQ, PONE, PID, PSQP, PF1 = 16, 80, 84, 88, 92, 96, 100, 104, 106, 107
    for i in range(4): a(f"v_mov_b32 v{PONE+i}, s{S_ONES}")
    a(f"v_mov_b32 v{PF1}, 1.0\nv_mov_b32 v{PSQP}, 0\nv_mov_b32 v{PID}, 0\nv_mov_b32 v{PID+1}, 0\nv_mov_b32 v221, 0")
    a(f"s_mov_b32 s{S_T0}, 0x00100001\ns_mov_b32 s{S_T1}, 0x10000100")
    for r in range(4): a(f"s_lshl_b64 exec, {sr(S_T0,2)}, {r}\nv_mov_b32 v{PID + (r >> 1)}, {hex(0x4780 << (16*(r & 1)))}")
    a("s_mov_b64 exec, -1")
    if not cfg.p0: a("s_barrier")
    stamp(name=3)
    def p_reads(gq):
        f = PF + 32*(gq & 1); L = []
        for s in range(4):
            L.append(f"ds_read_b128 {vr(f+8*s,4)}, v{V_XA + (s & 1)} offset:{L_PX + 4096*gq + 2048*(s >> 1)}")
            L += [f"ds_read_b64_tr_b16 {vr(f+8*s+4+2*t,2)}, v130 offset:{4096*gq + 1024*s + 128*t}" for t in range(2)]
        return L
    a("s_waitcnt vmcnt(24)")
    for l in p_reads(0): a(l)
    for gq in range(4):
        a("s_waitcnt lgkmcnt(0)")
        rd = p_reads(gq + 1) if gq < 3 else []
        k = 0
        for s in range(4):
            x, w = PF + 32*(gq & 1) + 8*s, PF + 32*(gq & 1) + 8*s + 4
            for d, A_, B_ in ((PG, x, x), (PRS, PONE, x), (PCS, w, PONE), (PACC, w, x)):
                a(mfma16(d, A_, B_, None if gq + s == 0 else d))
                if k == 3 and gq < 3:
                    a(f"s_waitcnt vmcnt({16 - 8*gq})")
                    if gq == 2: stamp(); stamp(name=4)
                if k >= 3 and rd: a(rd.pop(0))
                k += 1
    a.nop(4)
    for r in range(4): a(f"s_lshl_b64 exec, {sr(S_T0,2)}, {r}\nv_mov_b32 v{PSQP}, v{PG+r}")
    a(f"""
    s_mov_b64 exec, -1
    v_mul_f32 v{PRS}, {hex(f2u(-1.0/512))}, v{PRS}
    v_mfma_f32_16x16x4_f32 {vr(PSQ,4)}, v{PF1}, v{PSQP}, 0
    """)
    for i in range(4): a(f"v_fmac_f32 v{PACC+i}, v{PRS}, v{PCS+i}")
    a(f"""
    v_cvt_pk_bf16_f32 v12, v{PRS}, v{PRS}
    v_and_b32 v2, 0xffff0000, v12
    v_sub_f32 v2, v{PRS}, v2
    v_cvt_pk_bf16_f32 v12, v{PRS}, v2
    s_and_b32 s{S_T2}, s{S_CB}, 1
    s_cmp_eq_u32 s{S_T2}, 0
    v_mul_f32 v14, {hex(f2u(1.0/512))}, v{PSQ}
    v_fma_f32 v14, -v{PRS}, v{PRS}, v14
    v_max_f32 v14, 0, v14
    v_add_f32 v14, {hex(f2u(1e-5))}, v14
    v_rsq_f32 v3, v14
    s_nop 0
    """)
    for i in range(4): a(f"v_mul_f32 v{PACC+i}, v{PACC+i}, v3")
    a(f"""
    v_cvt_pk_bf16_f32 v216, v{PACC}, v{PACC+1}
    v_cvt_pk_bf16_f32 v217, v{PACC+2}, v{PACC+3}
    s_cbranch_scc0 L_preV
    s_mov_b32 exec_lo, 0
    v_mov_b32 v12, 0
    s_and_b32 s{S_T0}, s{S_T16}, 1
    s_sub_u32 exec_lo, s{S_T0}, 1
    s_mov_b32 exec_hi, exec_lo
    v_swap_b32 v12, v14
    s_mov_b32 exec_lo, 0xffff0000
    s_mov_b32 exec_hi, 0
    v_mul_f32 v12, {hex(f2u(-KG))}, v3
    v_mul_f32 v2, v3, v3
    v_mul_f32 v14, {hex(f2u(0.044715))}, v12
    v_mul_f32 v14, v14, v2
    s_mov_b64 exec, -1
    v_mov_b32 v13, v12
    v_mov_b32 v15, v14
    s_branch L_nofin
    """)
    a.label("L_preV")
    a(f"s_nop 0\nv_mfma_f32_16x16x16_bf16 {vr(PACC,4)}, v[216:217], {vr(PID,2)}, 0")
    a.nop(8)
    a(f"v_cvt_pk_bf16_f32 v216, v{PACC}, v{PACC+1}\nv_cvt_pk_bf16_f32 v217, v{PACC+2}, v{PACC+3}\ns_branch L_nofin")
    n_ool = len(a.lines)
    a.label("L_cs")
    if not cfg.p0: a("s_barrier")
    stamp(name=3)
    touch("g", 1, 3, 4)
    for e in range(6):
        a(f"s_waitcnt vmcnt({5 - e})")
        for i in range(4):
            if e == 0: a(f"v_lshlrev_b32 v{CSUM+2*i}, 16, v{CL+i}\nv_and_b32 v{CSUM+2*i+1}, 0xffff0000, v{CL+i}")
            else: a(f"v_lshlrev_b32 v2, 16, v{CL+4*e+i}\nv_and_b32 v3, 0xffff0000, v{CL+4*e+i}\nv_add_f32 v{CSUM+2*i}, v{CSUM+2*i}, v2\nv_add_f32 v{CSUM+2*i+1}, v{CSUM+2*i+1}, v3")
    stamp(name=4)
    for j in range(4): a(f"v_permlane32_swap_b32 v{CSUM+j}, v{CSUM+4+j}")
    for j in (0, 2, 1, 3): a(f"v_add_f32 v{CSUM+j}, v{CSUM+j}, v{CSUM+4+j}")
    a(f"v_permlane16_swap_b32 v{CSUM}, v{CSUM+2}\ns_nop 0\nv_permlane16_swap_b32 v{CSUM+1}, v{CSUM+3}")
    a(f"v_add_f32 v{CSUM}, v{CSUM}, v{CSUM+2}\nv_add_f32 v{CSUM+1}, v{CSUM+1}, v{CSUM+3}\ns_nop 0")
    a(f"v_add_f32_dpp v221, v{CSUM}, v{CSUM} row_ror:8 row_mask:0xf bank_mask:0xf\nv_add_f32_dpp v221, v{CSUM+1}, v{CSUM+1} row_ror:8 row_mask:0xf bank_mask:0xc")
    if cfg.cs_in:
        a("s_branch L_nofin")
        ool = a.lines[n_ool:]; del a.lines[n_ool:]
    a.label("L_nofin")
    stamp(name=5)
    init = [f"buffer_store_dword v221, v222, {sr(R_WS,4)}, s{S_CNT} offen sc1",
            f"s_cmp_lg_u32 s{S_HW}, 0\ns_cbranch_scc1 L_nopub\n"
            f"buffer_store_dwordx2 v[216:217], v220, {sr(R_WS,4)}, s{S_EX} offen sc1\n"
            f"buffer_store_dwordx4 v[12:15], v{V_L16}, {sr(R_WS,4)}, s{S_EX+1} offen sc1\nL_nopub:"]
    if cfg.g_init == -1:
        for l in init: a(l)
    brk("g")
    stamp(name=6)
    a("s_barrier")
    nst[0] = 2
    stamp(name="b0"); pad("b0"); c12(0)
    HS = [divmod(g, 2) for g in range(28)] + [(14, 0), (15, 0), (14, 1), (15, 1)]
    def wf(K, mt): return WF + 16*((K + 1) & 1) + 4*mt
    def x_reads(g):
        K, nh = HS[g]
        return [f"ds_read_b128 {vr(XF+16*(g&1)+4*i,4)}, v{V_XA+(K&1)} offset:{XS[K>>1]*16384 + (4*nh+i)*2048}" for i in range(4)]
    def w_reads(K):
        slot = ((K >> 1) + 2) % 3
        return [f"ds_read_b64_tr_b16 {vr(wf(K,mt)+2*t,2)}, v{V_WR+(mt>>1)} offset:{(mt&1)*24576 + slot*8192 + (K&1)*4096 + t*512}" for mt in range(4) for t in range(2)]
    def mm(g, mt, i):
        K, nh = HS[g]; nt = 4*nh + i
        d = acc(mt >> 1, nt >> 1) + 8*(mt & 1) + 4*(nt & 1)
        return mfma16(d, wf(K, mt), XF + 16*(g&1) + 4*i, None if K == 0 else d)
    def rw_reads(rt, dst): return [f"ds_read_b128 {vr(dst+4*i,4)}, v{10 + (i >> 1)} offset:{2048*rt + 1024*(i & 1)}" for i in range(4)]
    op_reads = [f"ds_read_b128 {vr(RA+4*i,4)}, v9 offset:{L_RA + 1056*i}" for i in range(2)] + rw_reads(0, RWP) + rw_reads(1, RWQ)
    def rank1(ti, rt, rw): return mfma32(acc(ti, rt), RA + 4*ti, rw + 2, acc(ti, rt))
    def split2(src, dst, dup):
        if dup:
            return [f"v_cvt_pk_bf16_f32 v{dst}, v{src}, v{src}", f"v_and_b32 v2, 0xffff0000, v{dst}", f"v_sub_f32 v2, v{src}, v2", f"v_cvt_pk_bf16_f32 v{dst+1}, v2, v2"]
        return [f"v_cvt_pk_bf16_f32 v{dst}, v{src}, v{src}", f"v_and_b32 v2, 0xffff0000, v{dst}", f"v_sub_f32 v2, v{src}, v2", f"v_cvt_pk_bf16_f32 v{dst}, v{src}, v2", f"v_mov_b32 v{dst+1}, v{dst}"]
    w = w_reads(0)
    for l in w[:2] + x_reads(0) + w[2:]: a(l)
    def half_step(g):
        K, nh = HS[g]
        neww = g == 0 or HS[g-1][0] < K and g != 31
        gaps = [[] for _ in range(16)]
        o = 0
        if g & 3 == 3 and g < 28 or g == cfg.g_h:
            gaps[0] = ["s_barrier"]; o = 1
        rd = x_reads(g + 1) if g < 31 else rw_reads(2, WF + 16)
        if g < 29 and HS[g+1][0] > K:
            w = w_reads(K + 1); rd = w[:2] + rd + w[2:]
        if g == cfg.g_h: rd += op_reads
        if cfg.nord: rd = []
        for i, l in enumerate(rd): gaps[o + i].append(l)
        if neww:
            top = "lgkmcnt(4)"
            gaps[7].append(f"s_waitcnt lgkmcnt({min(len(rd), 8 - o)})")
        else: top = "lgkmcnt(10)" if g == cfg.g_h + 1 else "lgkmcnt(0)"
        brk("g" if g < 28 else "e")
        a("s_waitcnt " + ("vmcnt(0) " if g == 4*cfg.c_arr + 3 else "") + top)
        if g == cfg.g_init: gaps[9].append(init[0]); gaps[12].append(init[1])
        dl = defer1 if g <= cfg.g_init else defer2
        for k in range(16):
            if not gaps[k]:
                gaps[k] = dl[:2]; del dl[:2]
        assert not (g >= 2 and defer1) and not (g >= 27 and defer2)
        for k in range(16):
            a(mm(g, k >> 2, k & 3))
            for l in gaps[k]: a(l)
            if g == 31 and k == 3: a(("s_waitcnt lgkmcnt(4)\n" if cfg.g_h == 30 else "") + rank1(0, 0, RWP))
            if k == 0 and (g == 27 or (cfg.stamps == 4 and g & 3 == 3)): stamp()
            if k == 0 and g in (3, 27): c12(1 if g == 3 else 2)
            if k == 15 and g >= cfg.g_tr and g & 1 == 0 and cfg.stamps == 10 and ncs[0] < 6: a(f"s_memtime {sr([32, 34, 92, 94, 96, 98][ncs[0]], 2)}"); ncs[0] += 1
    for g in range(30): half_step(g)
    def swaps(o): return [f"v_permlane16_swap_b32 v{o}, v{o+2}", f"v_permlane16_swap_b32 v{o+1}, v{o+3}"]
    def gelu(ti, rt, rw, mf=(), pre=()):
        A = acc(ti, rt)
        def b(i): return rw + 8 + 4*(i >> 2)
        def vp(i): return rw + 6*(i >> 2)
        t1, t2, o = 144, 152, HO + 16*ti + 4*rt
        L = [".p2align 3"]
        for i in range(0, 8, 2): L.append(f"v_pk_mul_f32 {vr(t1+i,2)}, {vr(A+i,2)}, {vr(A+i,2)}")
        L += pre
        for i in range(0, 8, 2): L.append(f"v_pk_fma_f32 {vr(t1+i,2)}, {vr(t1+i,2)}, {vr(b(i)+2,2)}, {vr(b(i),2)}")
        for i in range(0, 8, 2): L.append(f"v_pk_mul_f32 {vr(t1+i,2)}, {vr(t1+i,2)}, {vr(A+i,2)}")
        L += mf
        for i in range(8): L.append(f"v_exp_f32 v{t1+i}, v{t1+i}")
        for i in range(0, 8, 2): L.append(f"v_pk_mul_f32 {vr(t2+i,2)}, {vr(A+i,2)}, {vr(A+8+i,2)}")
        for i in range(0, 8, 2): L.append(f"v_pk_fma_f32 {vr(t1+i,2)}, {vr(t1+i,2)}, {vr(vp(i),2)}, {vr(vp(i),2)}")
        for i in range(8): L.append(f"v_rcp_f32 v{t1+i}, v{t1+i}")
        for i in range(0, 8, 2): L.append(f"v_pk_mul_f32 {vr(t2+i,2)}, {vr(t2+i,2)}, {vr(t1+i,2)}")
        for i in range(4): L.append(f"v_cvt_pk_bf16_f32 v{o+i}, v{t2+2*i}, v{t2+2*i+1}")
        return L
    def qtile(rt, rw):
        A = acc(1, rt); qs = hex(f2u(-0.25*math.log2(math.e)/KG))
        L = [f"v_mul_f32 v{12+i}, {qs}, v{rw + 8 + 4*(i >> 1)}" for i in range(4)]
        L += [f"s_add_u32 s{S_T0}, s{S_HSB}, {32768*rt}", f"s_add_u32 s{S_T1}, s{S_T0}, 4096"]
        for hd in range(2):
            h = A + 8*hd
            for i in range(0, 8, 2): L.append(f"v_pk_mul_f32 {vr(h+i,2)}, {vr(h+i,2)}, {vr(12 + 2*(i >> 2),2)}")
            for i in range(4): L.append(f"v_cvt_pk_bf16_f32 v{h+i}, v{h+2*i}, v{h+2*i+1}")
            for i in (0, 2, 1, 3): L.append(f"v_min_u32 v{h+i}, -2, v{h+i}")
            L += [swaps(h)[0], "s_nop 0", swaps(h)[1]]
            L.append(f"buffer_store_dwordx4 {vr(h,4)}, v{V_L16}, {sr(R_WS,4)}, s{S_T0 + hd} offen sc1")
        return L
    L_HQ = L_KV + 49152
    def att_regs():
        a(f"""
        v_and_b32 v5, 27, v{V_LANE}
        v_cmp_eq_u32 vcc, 16, v5
        v_mov_b32 v6, 0x47804780
        v_mov_b32 v{V_IDX}, 0xdddddddd
        v_mov_b32 v11, 1
        v_cndmask_b32 v{VF}, 0, v6, vcc
        v_mov_b32 v{VF+1}, v{VF}
        """)
        for i in range(2, 16, 2): a(f"v_mov_b64 {vr(VF+i,2)}, {vr(VF,2)}")
        for i in range(0, 16, 2): a(f"v_mov_b64 {vr(OO+i,2)}, 0")
        if cfg.pair:
            for i in range(0, 16, 2): a(f"v_mov_b64 {vr(OX+i,2)}, 0")
            a(f"s_lshl_b32 s{S_T0}, s{S_HW}, 11\nv_add_u32 v{V_PA}, s{S_T0}, v{V_L16}")
        a(f"s_lshl_b32 s{S_T0}, s{S_KQ}, 13\ns_add_u32 s{S_T0}, s{S_T0}, {L_WO - L_WD}\nv_add_u32 v{V_OA}, s{S_T0}, v{V_DA}\nv_xor_b32 v{V_OA+1}, 64, v{V_OA}")
    def kv_first(half=0):
        if cfg.pair:
            a(f"ds_read_b128 {vr(KF,4)}, v{V_KA} offset:{kv_off(half)}")
            if half: a(f"ds_read_b128 {vr(KF+4,4)}, v{V_KA} offset:{kv_off(0)}")
            a(f"s_mov_b64 exec, {sr(S_VM,2)}\nds_read_b128 {vr(VF,4)}, v{V_VA} offset:{kv_off(half)}\nds_read_b128 {vr(VF+4,4)}, v{V_VA} offset:{kv_off(half) + 512}\ns_mov_b64 exec, -1")
            return
        a(f"ds_read_b128 {vr(KF,4)}, v{V_KA} offset:{kv_off(0)}\nds_read_b128 {vr(KF+4,4)}, v{V_KA} offset:{kv_off(1)}")
        a(f"s_mov_b64 exec, {sr(S_VM,2)}\nds_read_b128 {vr(VF,4)}, v{V_VA} offset:{kv_off(0)}\ns_mov_b64 exec, -1")
    a(f"s_and_b32 s{S_T1}, s{S_CB}, 3\ns_cmp_eq_u32 s{S_T1}, 3\ns_cbranch_scc1 L_qt")
    half_step(30); half_step(31)
    n0 = nst[0]
    stamp(name="g1"); pad("g1"); c12(3)
    RWS = [RWP, RWQ, WF + 16, RWP]
    order = [(ti, rt) for rt in range(4) for ti in range(2)]
    for i, (ti, rt) in enumerate(order):
        if i == 2:
            for l in rw_reads(3, RWS[3]): a(l)
        brk("e")
        if i in (3, 5): a("s_waitcnt lgkmcnt(0)")
        if i == cfg.i_q or (cfg.e7 and i == 1): a("s_barrier")
        nx = order[i+1] if i < 7 else None
        pv = order[i-1] if i else None
        for l in gelu(ti, rt, RWS[rt], [rank1(*nx, RWS[nx[1]])] if nx else [], swaps(HO + 16*pv[0] + 4*pv[1]) if pv else []): a(l)
    a("s_nop 1")
    for l in swaps(HO + 16 + 12): a(l)
    a("s_branch L_joinA")
    far("L_qt")
    RWS = [RWP, RWQ, acc(1, 0), acc(1, 1)]
    if cfg.g_h == 30:
        a("s_barrier")
        for l in op_reads: a(l)
    for l in x_reads(31): a(l)
    a("s_waitcnt lgkmcnt(4)\ns_nop 0")
    a(rank1(1, 0, RWP)); a(rank1(1, 1, RWQ))
    a.nop(5)
    for rt in range(2):
        for l in qtile(rt, RWS[rt]): a(l)
        brk("e")
    a("s_waitcnt lgkmcnt(0)")
    rd = rw_reads(2, RWS[2]) + rw_reads(3, RWS[3])
    for g in (30, 31):
        for k in range(8, 16):
            a(mm(g, k >> 2, k & 3))
            if rd: a(rd.pop(0))
    a("s_waitcnt lgkmcnt(0)\ns_nop 3")
    a(rank1(1, 2, RWS[2])); a(rank1(1, 3, RWS[3]))
    a.nop(5)
    for rt in (2, 3):
        for l in qtile(rt, RWS[rt]): a(l)
        brk("e")
    a(rank1(0, 0, RWP))
    for g in (30, 31):
        for k in range(8): a(mm(g, k >> 2, k & 3))
    nst[0] = n0
    stamp(name="g1")
    a(f"s_mov_b32 s{S_HSB}, {WS_SIZE}")
    for i in range(4): a(f"v_mov_b32 v{12+i}, -1")
    for rt in range(4):
        brk("e")
        if cfg.e7 and rt == 0: a("s_barrier")
        if rt == cfg.i_qb: a("s_barrier")
        for l in gelu(0, rt, RWS[rt], [rank1(0, rt + 1, RWS[rt + 1])] if rt < 3 else [], swaps(HO + 4*(rt - 1)) if rt else []): a(l)
    a("s_nop 1")
    for l in swaps(HO + 12): a(l)
    far("L_joinA", True)
    nst[0] = 12 if cfg.stamps == 4 else 5
    stamp()
    c12(4)
    if not cfg.gpos:
        att_regs()
        kv_first()
    a("s_barrier")
    stamp(name="att0"); pad("att0")
    a(f"ds_read_b128 {vr(QF,4)}, v254 offset:{L_HQ}")
    for i in range(4): a(f"ds_read_b128 {vr(CC+4*i,4)}, v254 offset:{L_HQ + 1024}")
    if cfg.gpos:
        att_regs()
        kv_first()
    if cfg.pair:
        a(f"ds_read_b128 {vr(QX,4)}, v254 offset:{L_HQ + 8192}")
        for i in range(4): a(f"ds_read_b128 {vr(CX+4*i,4)}, v254 offset:{L_HQ + 8192 + 1024}")
    a("s_waitcnt lgkmcnt(5)" if cfg.pair else "s_waitcnt lgkmcnt(0)")
    a(mfma32(S0, KF, QF, CC))
    if cfg.pair: a.nop(4)
    c12(5)
    a("s_nop 3\ns_branch L_attA")

    a.lines += ool
    a.label("L_helper")
    V_XD, V_WD = 192, 194
    PX, PW = 8, 24
    PACC, PCS, PRS, PSQ = 40, 44, 48, 52
    PONE, PSQP, PF1 = 56, 60, 61
    RD = 64
    a(f"""
    s_lshl_b32 s{S_XOFF}, s{S_RB}, 17
    s_lshl_b32 s{S_T0}, s{S_HW}, 15
    s_add_u32 s{S_XOFF}, s{S_XOFF}, s{S_T0}
    v_and_b32 v5, 15, v{V_LANE}
    v_lshrrev_b32 v6, 4, v{V_LANE}
    v_lshrrev_b32 v7, 3, v{V_LANE}
    v_and_b32 v63, 7, v{V_LANE}
    v_xor_b32 v62, v6, v63
    v_lshlrev_b32 v62, 4, v62
    v_lshl_add_u32 v{V_XD}, v7, 10, v62
    v_xor_b32 v{V_XD+1}, 64, v{V_XD}
    v_add_u32 v{V_XD+1}, {8192-1024}, v{V_XD+1}
    """)
    img_params(S_HW, S_WSTEP, S_WOFF)
    a(f"""
    v_and_b32 v62, 1, v6
    v_lshlrev_b32 v62, 1, v62
    v_xor_b32 v62, v62, v63
    v_lshlrev_b32 v62, 4, v62
    v_mul_u32_u24 v{V_WD}, s{S_WSTEP}, v7
    v_add_u32 v{V_WD}, v{V_WD}, v62
    v_xor_b32 v{V_WD+1}, 64, v{V_WD}
    s_waitcnt lgkmcnt(0)
    """)
    nst[0] = 0
    stamp()
    a(f"s_mov_b32 s{R_X}, s{P_X}\ns_and_b32 s{R_X+1}, s{P_X+1}, 0xffff")
    Q = []
    def issue(tag, text): a(text); Q.append(tag)
    def vwait(tag, more=""):
        n = len(Q) - 1 - max(i for i, t in enumerate(Q) if t == tag)
        a(f"s_waitcnt vmcnt({n})" + more)
    def xitems(c):
        slot = XS[c]
        return [(f"C{c}", f"s_add_u32 m0, s{S_H4K}, {L_X + slot*16384}\ns_add_u32 s{S_CNT}, s{S_XOFF}, {c*128 + (16384 - 2048)*(e >> 1)}\n"
                 f"buffer_load_dwordx4 v{V_XD + (e & 1)}, {sr(R_X,4)}, s{S_CNT} offen offset:{1024*e} {cfg.cf[1]} lds") for e in range(4)]
    def witems(c):
        slot = (c + 2) % 3
        return [(f"C{c}", f"s_add_u32 m0, s{S_M0W}, {slot*8192 + e*1024}\n" + (f"s_add_u32 s{S_WOFF}, s{S_WOFF}, s{S_WSTEP}" if c + e else "s_nop 0") +
                 f"\nbuffer_load_dwordx4 v{V_WD + (e & 1)}, {sr(R_W,4)}, s{S_WOFF} offen {cfg.cf[0]} lds") for e in range(8)]
    stream = []
    for c in range(1, 8): stream += [(t, x if c < 3 or not cfg.nodma else 's_nop 0') for t, x in witems(c) + xitems(c)]
    for c in {0: (), 8: (4,), 12: (2, 4, 6)}[cfg.krot]:
        i = 12*(c - 1)
        stream[i] = (stream[i][0], stream[i][1].replace("\nbuffer_load", f"\ns_cmp_eq_u32 s{S_HST}, {16 - 2*c}\ns_cselect_b32 s{S_CNT}, s{R_W+2}, 0\ns_cselect_b32 s{S_HSB}, 1024, 0\n"
                     f"s_sub_u32 s{S_WOFF}, s{S_WOFF}, s{S_CNT}\ns_sub_u32 s{S_XOFF}, s{S_XOFF}, s{S_HSB}\nbuffer_load"))
    pos = [0]
    def take(n):
        for _ in range(n):
            if pos[0] < len(stream): issue(*stream[pos[0]]); pos[0] += 1
    def upto(c):
        return min(len(stream), 12*(c + 1) + cfg.lead[c])
    def mix(lines, n):
        k = 0
        for i, l in enumerate(lines):
            while k < n and k * len(lines) <= i * n: take(1); k += 1
            a(l)
        take(n - k)
    img_srd(R_W, S_WSTEP)
    if cfg.krot:
        a(f"""
        s_and_b32 s{S_HST}, s{S_RB}, {cfg.krot}
        s_lshl_b32 s{S_T0}, s{S_HST}, 6
        s_add_u32 s{S_XOFF}, s{S_XOFF}, s{S_T0}
        s_mul_i32 s{S_T0}, s{S_T0}, s{S_WSTEP}
        s_lshr_b32 s{S_T0}, s{S_T0}, 1
        s_add_u32 s{S_WOFF}, s{S_WOFF}, s{S_T0}
        """)
    a(f"s_lshl_b32 s{S_WSTEP}, s{S_WSTEP}, 3\ns_mul_i32 s{S_M0W}, s{S_HW}, 24576\ns_add_u32 s{S_M0W}, s{S_M0W}, {L_W}")
    def b_init():
        srd(R_WS, P_WS, WS_SIZE)
        setup_ids()
        for i in range(4): a(f"v_mov_b32 v{12+i}, -1")
        a(f"v_mov_b32 v10, 0\nv_mov_b32 v11, 1\ns_sub_u32 s{S_T3}, s{S_FLG}, 16")
    def q_stores(tag):
        a(f"s_add_u32 s{S_CNT}, s{S_OST}, {WS_Q - WS_O - 2048}")
        issue(tag, f"buffer_store_dwordx4 v[12:15], v{V_L16}, {sr(R_WS,4)}, s{S_CNT} offen {cfg.sfl[0]}")
        issue(tag, f"buffer_store_dwordx4 v[12:15], v{V_L16}, {sr(R_WS,4)}, s{S_CNT} offen offset:2048 {cfg.sfl[0]}")
    def b_stores():
        if not cfg.c_q: q_stores("ST")
        issue("ST", f"s_mov_b64 exec, 7\nbuffer_store_dword v10, v{V_L16}, {sr(R_WS,4)}, s{S_T3} offen sc1\ns_mov_b64 exec, -1")
    if cfg.c_st[0] < 0: b_init()
    if cfg.c_st[0] == -2: b_stores()
    stamp(name=1)
    a("s_barrier")
    for i, it in enumerate(xitems(0) + witems(0)):
        if cfg.c_st == (-1, i): b_stores()
        issue(*it)
    stamp(name=3)
    def bar():
        brk("g")
        if cfg.stamps == 4: stamp()
        a("s_barrier")
    take(cfg.lead0)
    stamp(name=4)
    nst[0] = 2; vwait("C0"); stamp(name=6); bar()
    BC, BO, BZ = 132, 224, 240
    def b_setup():
        srd(R_DBG, P_DBG, 256)
        a(f"s_mov_b32 s{S_ONES}, 0x3f803f80")
        common_setup()
        a(f"""
        v_lshrrev_b32 v6, 4, v{V_LANE}
        v_bfe_u32 v2, v{V_LANE}, 1, 1
        v_lshl_add_u32 v6, v2, 2, v6
        v_and_b32 v2, 1, v{V_LANE}
        v_mad_u32_u24 v6, v2, 33, v6
        v_lshlrev_b32 v6, 4, v6
        v_bfe_u32 v2, v{V_LANE}, 2, 2
        v_mul_u32_u24 v2, 2208, v2
        v_add_u32 v6, v6, v2
        s_lshr_b32 s{S_T0}, s{S_HW}, 1
        s_mul_i32 s{S_T0}, s{S_T0}, 1056
        s_and_b32 s{S_T1}, s{S_HW}, 1
        s_lshl_b32 s{S_T1}, s{S_T1}, 8
        s_add_u32 s{S_T0}, s{S_T0}, s{S_T1}
        v_add_u32 v204, s{S_T0}, v6
        s_lshr_b32 s{S_T0}, s{S_RB}, 1
        s_and_b32 s{S_T1}, s{S_CB}, 12
        s_lshl_b32 s{S_T1}, s{S_T1}, 2
        s_add_u32 s{S_T0}, s{S_T0}, s{S_T1}
        s_and_b32 s{S_T1}, s{S_RB}, 1
        s_lshl_b32 s{S_T1}, s{S_T1}, 7
        s_add_u32 s{S_T0}, s{S_T0}, s{S_T1}
        s_lshl_b32 s{S_T0}, s{S_T0}, 7
        s_add_u32 s{S_T0}, s{S_T0}, {WS_FL + 32}
        v_and_b32 v6, 3, v{V_LANE}
        v_lshlrev_b32 v6, 2, v6
        v_bfe_u32 v2, v{V_LANE}, 2, 1
        v_lshl_add_u32 v6, v2, 10, v6
        v_bfe_u32 v2, v{V_LANE}, 3, 1
        v_lshl_add_u32 v6, v2, 13, v6
        v_add_u32 v205, s{S_T0}, v6
        """)
        for i in (0, 1, 4, 5): a(f"v_mov_b32 v{BZ+i}, 0")
        att_regs()
        a(f"s_lshl_b32 s{S_T0}, s{S_HW}, 11\nv_add_u32 v7, s{S_T0}, v{V_L16}")
    bs = capture(b_setup)
    nbs = -(-len(bs) // 3)
    pfl = [f"s_mul_i32 s{S_T0}, s2, 7168\ns_lshl_b32 s{S_T1}, s{S_HW}, 11\ns_add_u32 s{S_T0}, s{S_T0}, s{S_T1}\nbuffer_load_dwordx4 {vr(176,4)}, v{V_L16}, {sr(R_WD,4)}, s{S_T0} offen",
           f"buffer_load_dwordx4 {vr(180,4)}, v{V_L16}, {sr(R_WD,4)}, s{S_T0} offen offset:1024",
           f"s_lshl_b32 s{S_T1}, s2, 11\ns_lshl_b32 s{S_T3}, s{S_HW}, 9\ns_add_u32 s{S_T1}, s{S_T1}, s{S_T3}\ns_mov_b32 exec_hi, 0\nbuffer_load_dwordx4 {vr(184,4)}, v{V_L16}, {sr(R_WO,4)}, s{S_T1} offen\ns_mov_b64 exec, -1"]
    spoll = f"buffer_load_dword v8, v6, {sr(R_DBG,4)}, s{S_T2} offen sc1"
    for c in range(6):
        if c == cfg.c_st[0]:
            mix(capture(b_init), cfg.c_st[1]); b_stores()
        def q_flag():
            vwait("SQ")
            issue("F", f"s_mov_b64 exec, 1\nbuffer_store_dword v11, off, {sr(R_WS,4)}, s{S_FLG} offset:16 sc1\ns_mov_b64 exec, -1")
        if cfg.c_q and c == cfg.c_q[0] and cfg.c_q[1] < 99:
            take(cfg.c_q[1]); q_stores("SQ")
        if cfg.c_q and c == cfg.c_q[2] and cfg.c_q[3] < 99:
            take(cfg.c_q[3]); q_flag()
        if c in (2, 3, 4): mix(bs[(c-2)*nbs:(c-1)*nbs], upto(c) - pos[0])
        if c == 5:
            take(cfg.n_poll)
            a(f"v_and_b32 v6, 7, v{V_LANE}\nv_lshlrev_b32 v6, 5, v6\ns_lshl_b32 s{S_T2}, s{S_HW}, 8")
            issue("P", spoll)
        take(upto(c) - pos[0])
        if cfg.c_q and cfg.c_q[:2] == (c, 99): q_stores("SQ")
        if cfg.c_q and cfg.c_q[2:] == (c, 99): q_flag()
        if c == cfg.c_arr: vwait("ST")
        if c == 5:
            vwait("P")
            a(f"s_cmp_lg_u32 s{S_HW}, 0\ns_cbranch_scc1 L_sync1\ns_mov_b32 s{S_SPIN}, 0")
            a.label("L_sync1_chk")
            a(f"""
            v_cmp_gt_u32 vcc, 32, v8
            s_add_u32 s{S_SPIN}, s{S_SPIN}, 1
            s_cbranch_vccz L_sync1
            s_cmp_ge_u32 s{S_SPIN}, {SPIN_MAX}
            s_cbranch_scc1 L_sync1
            s_sleep 4
            {spoll}
            s_waitcnt vmcnt(0)
            s_branch L_sync1_chk
            """)
            a.label("L_sync1")
        vwait(f"C{c+1}"); bar()
        if c == cfg.c_arr:
            a(f"s_cmp_lg_u32 s{S_HW}, 0\ns_cbranch_scc1 L_noarr\ns_and_b32 s{S_EX}, s2, 7\ns_lshl_b32 s{S_EX}, s{S_EX}, 5\ns_mov_b32 s{S_EX+1}, 1\n"
              f"s_atomic_add s{S_EX+1}, {sr(P_DBG,2)}, s{S_EX}\nL_noarr:")
    assert pos[0] == len(stream)
    ncs[0] = 0; cstamp(11)
    a(f"""
    s_lshl_b32 s{S_T3}, s{S_HW}, 11
    s_add_u32 m0, s{S_T3}, {L_R}
    s_lshl_b32 s{S_EX}, s{S_RB}, 13
    s_add_u32 s{S_EX}, s{S_EX}, s{S_T3}
    s_add_u32 s{S_EX}, s{S_EX}, {WS_ST}
    s_lshl_b32 s{S_T3}, s{S_HW}, 10
    s_lshl_b32 s{S_EX+1}, s{S_CB}, 14
    s_add_u32 s{S_EX+1}, s{S_EX+1}, s{S_T3}
    s_add_u32 s{S_EX+1}, s{S_EX+1}, {WS_CS}
    """)
    if cfg.stamps != 4: nst[0] = 3
    stamp(); cstamp(11)
    def maxtree(src, dst, init=None):
        L = []
        if init is None:
            L.append(f"v_max3_f32 v{dst}, v{src}, v{src+1}, v{src+2}")
            L.append(f"v_max_f32 v{dst}, v{src+3}, v{dst}")
            k = 4
        else:
            k = 0
        for i in range(k, 16, 2): L.append(f"v_max3_f32 v{dst}, v{src+i}, v{src+i+1}, v{dst}")
        return L
    def setC(m, shift):
        a(f"v_mov_b32 v{m+1}, v{m}\ns_nop 1\nv_permlane32_swap_b32 v{m}, v{m+1}\nv_max_f32 v{m}, v{m}, v{m+1}")
        a(f"v_sub_f32 v{CC}, {hex(f2u(-shift)) if shift else 0}, v{m}")
        a(f"v_mov_b32 v{CC+1}, v{CC}")
        for i in range(2, 16, 2): a(f"v_mov_b64 {vr(CC+i,2)}, {vr(CC,2)}")
    for e in range(4):
        if e: a(f"s_add_u32 s{S_EX+1}, s{S_EX+1}, 4096")
        a(f"buffer_load_dwordx4 {vr(BC+4*e,4)}, v{V_L16}, {sr(R_WS,4)}, s{S_EX+1} offen sc1")
    for i in range(2): a(f"buffer_load_dwordx4 v{V_L16}, {sr(R_WS,4)}, s{S_EX} offen offset:{1024*i} sc1 lds")
    assert cfg.e6 != 2
    qpoll = f"buffer_load_dword v9, v205, {sr(R_WS,4)}, s{S_T2} offen sc1"
    if cfg.c_q:
        a(f"s_and_b32 s{S_T2}, s{S_CB}, 3\ns_sub_u32 s{S_T2}, s{S_T2}, s{S_H4K}\ns_cmp_eq_u32 s{S_T2}, 3\ns_cselect_b32 s{S_T2}, 0, {WS_SIZE}\n" + qpoll)
    nq = 1 if cfg.c_q else 0
    npf = 3 if cfg.pf_first else 0
    for x in pfl[:npf]: a(x)
    touch("e", 0, 4, 5)
    cstamp(11)
    if cfg.e6 == 0: a(f"s_waitcnt vmcnt({6 + nq + npf})\ns_barrier")
    a(f"s_setprio {cfg.bp}\ns_waitcnt vmcnt({2 + nq + npf})")
    cstamp(11)
    for e in range(1, 4):
        for i in (0, 2, 1, 3): a(f"v_add_f32 v{BC+i}, v{BC+i}, v{BC+4*e+i}")
    if cfg.e6 == 1: a("s_barrier")
    a(f"""
    v_permlane32_swap_b32 v{BC}, v{BC+2}
    s_nop 0
    v_permlane32_swap_b32 v{BC+1}, v{BC+3}
    v_add_f32 v{BC}, v{BC}, v{BC+2}
    v_add_f32 v{BC+1}, v{BC+1}, v{BC+3}
    s_nop 1
    v_permlane16_swap_b32 v{BC}, v{BC+1}
    v_add_f32 v{BC}, v{BC}, v{BC+1}
    """)
    for l in split2(BC, BZ + 2, True): a(l)
    if cfg.e6 == 3: a("s_barrier")
    a(f"ds_write_b128 v204, {vr(BZ+2,4)} offset:{L_RA}\nds_write_b128 v204, {vr(BZ,4)} offset:{L_RA + 128}")
    cstamp(11)
    for x in pfl[npf:]: a(x)
    a("s_waitcnt vmcnt(3)")
    ncs[0] += 1; cstamp(11)
    if cfg.c_q:
        a(f"""
        s_cmp_lg_u32 s{S_T2}, 0
        s_cbranch_scc1 L_qrdy
        s_mov_b32 s{S_SPIN}, 0
        L_qrchk:
        v_cmp_ne_u32 vcc, 1, v9
        s_add_u32 s{S_SPIN}, s{S_SPIN}, 1
        s_cbranch_vccz L_qrdy
        s_cmp_ge_u32 s{S_SPIN}, {SPIN_MAX}
        s_cbranch_scc1 L_qrdy
        {qpoll}
        s_waitcnt vmcnt(0)
        s_branch L_qrchk
        L_qrdy:
        """)
    a("s_setprio 0\ns_waitcnt lgkmcnt(0)")
    cstamp(11)
    if cfg.e6 == 2: a("s_barrier")
    cstamp(11)
    a("s_barrier")
    for c in range(2):
        slot = (c + 1) % 3
        a(f"s_add_u32 m0, s{S_H4K}, {L_KV + slot*16384}\ns_add_u32 s{S_T0}, s{S_H4K}, {WS_KV + starts[c]*2048}")
        for e in range(4):
            a(f"buffer_load_dwordx4 v{V_L16}, {sr(R_WS,4)}, s{S_T0} offen offset:{1024*e} sc1 lds")
    touch("a", 0, 4, 12)
    if cfg.wfix:
        a(f"s_mov_b32 s{S_CNT}, 0\ns_mov_b32 s{S_SPIN}, 0\ns_cmp_eq_u32 s{S_HW}, 3\ns_cbranch_scc0 L_nowfix\ns_call_b64 {sr(S_RET,2)}, L_ofix\nL_nowfix:")
    if cfg.e7:
        a("s_barrier")
        a(f"s_add_u32 m0, s{S_H4K}, {L_KV}\ns_add_u32 s{S_T0}, s{S_H4K}, {WS_KV + starts[2]*2048}")
        for e in range(4): a(f"buffer_load_dwordx4 v{V_L16}, {sr(R_WS,4)}, s{S_T0} offen offset:{1024*e} sc1 lds")
        if cfg.e7 == 2:
            a(f"s_mul_i32 s{S_T1}, s{S_HW}, {448*1024}\ns_lshl_b32 s{S_T0}, s{S_CT8}, 7\ns_add_u32 s{S_T1}, s{S_T1}, s{S_T0}\ns_lshl_b32 s{S_T3}, s{S_H4K}, 1")
            for e in range(8):
                a(f"s_add_u32 m0, s{S_T3}, {L_WD + e*1024}\ns_add_u32 s{S_T0}, s{S_T1}, {e*8192}\nbuffer_load_dwordx4 v{V_WDD}, {sr(R_WD,4)}, s{S_T0} offen lds")
    QP = QX if cfg.pair else 128
    qload = (f"buffer_load_dwordx4 {vr(QP,4)}, v{V_L16}, {sr(R_WS,4)}, s{S_T2} offen sc1\n"
             f"buffer_load_dwordx4 {vr(QF,4)}, v{V_L16}, {sr(R_WS,4)}, s{S_T2} offen offset:2048 sc1")
    a(f"s_add_u32 s{S_T2}, s{S_OST}, {WS_Q - WS_O - 2048}\ns_mov_b32 s{S_SPIN}, 0\ns_waitcnt vmcnt(0)\ns_barrier\ns_setprio 2")
    a(qload)
    kv_first(1)
    nst[0] = 12 if cfg.stamps == 4 else 5
    stamp()
    a.label("L_qchk")
    a(f"""
    s_waitcnt vmcnt(0) lgkmcnt(0)
    v_max3_u32 v8, v{QF}, v{QF+1}, v{QF+2}
    v_max3_u32 v8, v8, v{QF+3}, v{QP}
    v_max3_u32 v8, v8, v{QP+1}, v{QP+2}
    v_max_u32 v8, v8, v{QP+3}
    v_cmp_eq_u32 vcc, -1, v8
    s_add_u32 s{S_SPIN}, s{S_SPIN}, 1
    s_cbranch_vccz L_qok
    s_cmp_ge_u32 s{S_SPIN}, {SPIN_MAX}
    s_cbranch_scc1 L_qok
    s_sleep {cfg.qsl}
    {qload}
    s_branch L_qchk
    """)
    a.label("L_qok")
    if cfg.stamps == 1:
        n0 = nst[0]; nst[0] = 4; stamp(); nst[0] = n0
        a(f"v_writelane_b32 v{V_STAMP}, s{S_SPIN}, 63")
    a('; ---- softmax reference point: maximum over the first 32 keys (a lower bound of the row maximum), scores are taken relative to it minus a fixed shift.')
    if cfg.pair:
        a(mfma32(S0, KF + 4, QP, None)); a(mfma32(S1, KF + 4, QF, None))
        a(f"ds_write_b128 v7, {vr(QP,4)} offset:{L_HQ}\nds_write_b128 v7, {vr(QF,4)} offset:{L_HQ + 8192}")
        a.nop(9)
        for q, sx, cx in ((0, S0, CX), (1, S1, CC)):
            for l in maxtree(sx, 8): a(l)
            a(f"v_mov_b32 v9, v8\ns_nop 1\nv_permlane32_swap_b32 v8, v9\nv_max_f32 v8, v8, v9\nv_sub_f32 v{cx}, {hex(f2u(-cfg.shift))}, v8")
            a(f"v_mov_b32 v{cx+1}, v{cx}\nv_mov_b64 {vr(cx+2,2)}, {vr(cx,2)}\nds_write_b128 v7, {vr(cx,4)} offset:{L_HQ + 8192*q + 1024}")
            for i in range(1, 4): a(f"ds_read_b128 {vr(cx+4*i,4)}, v7 offset:{L_HQ + 8192*q + 1024}")
        a("s_waitcnt lgkmcnt(3)\ns_barrier")
        stamp(name="att0"); pad("att0")
        a("s_setprio 1")
        a(mfma32(S0, KF, QP, CX))
        a.nop(4)
    else:
        a(mfma32(S0, KF, QP, None)); a(mfma32(S1, KF, QF, None))
        a(f"ds_write_b128 v7, {vr(QP,4)} offset:{L_HQ}")
        a.nop(10)
        for l in maxtree(S0, 8): a(l)
        a(f"v_mov_b32 v9, v8\ns_nop 1\nv_permlane32_swap_b32 v8, v9\nv_max_f32 v8, v8, v9\nv_sub_f32 v{QP+4}, {hex(f2u(-cfg.shift))}, v8")
        a(f"v_mov_b32 v{QP+5}, v{QP+4}\nv_mov_b64 {vr(QP+6,2)}, {vr(QP+4,2)}\nds_write_b128 v7, {vr(QP+4,4)} offset:{L_HQ + 1024}")
        for l in maxtree(S1, 8): a(l)
        if cfg.g_early:
            a("s_waitcnt lgkmcnt(0)\ns_barrier")
            stamp(name="att0"); pad("att0")
        setC(8, cfg.shift)
        a(f"s_waitcnt lgkmcnt(0)\ns_setprio {1 if cfg.pp < 0 else 0}")
        a(mfma32(S0, KF, QF, CC))
        if not cfg.g_early:
            a("s_barrier")
            stamp(name="att0"); pad("att0")
    a("s_nop 5\ns_branch L_attB")

    def kvdma(c, half):
        slot = (c + 1) % 3
        L = (f"s_add_u32 m0, s{S_W2K}, {L_KV + slot*16384}\ns_add_u32 s{S_T0}, s{S_W2K}, {WS_KV + starts[c]*2048}\n")
        if half == 1 and sizes[c] < 8:
            L += f"s_cmp_ge_u32 s{S_W}, {sizes[c]}\ns_cselect_b32 s{S_T0}, {WS_SIZE}, s{S_T0}\n"
        return [L + f"buffer_load_dwordx4 v{V_L16}, {sr(R_WS,4)}, s{S_T0} offen sc1 lds",
                f"buffer_load_dwordx4 v{V_L16}, {sr(R_WS,4)}, s{S_T0} offen offset:1024 sc1 lds"]
    def rowdma(rs, sbase, add, ldsbase, e):
        pre = f"s_add_u32 m0, s{S_W4K}, {ldsbase}\n"
        return pre + f"s_add_u32 s{S_T0}, s{sbase}, {add + e*7168}\nbuffer_load_dwordx4 v{V_WDD}, {sr(rs,4)}, s{S_T0} offen offset:{1024*e} {cfg.cf[2]} lds"
    tbs = [starts[c] - 3 for c in range(1, len(starts))]
    late = []
    def attention(half):
        sfx = "AB"[half]
        if cfg.stamps == 5: a(f"s_mov_b32 s{S_SPIN}, 0")
        head = {t: [] for t in range(66)}
        vm = {t: [] for t in range(66)}
        pre = {t: [] for t in range(66)}
        bg = {t: [] for t in range(66)}
        nb = len(tbs); c0 = nb - 7
        lh, mb = cfg.lh, cfg.mb
        for ci, tb in enumerate(tbs):
            q = []
            if ci + 2 < len(starts) and not (cfg.e7 and ci == 0): q += [("D", x) for x in kvdma(ci + 2, half)]
            dload = ci - c0 + 1
            if 0 <= dload <= 6:
                wq_ = [rowdma(R_WD, S_WDO, dload*65536, L_WD + (dload & 1)*32768, e) for e in range(4)]
                if dload == 0:
                    for e in range(4 if cfg.e7 < 2 else 0): vm[cfg.t_wd0[e]].append(("D" if e == 3 else "X", wq_[e]))
                else: q += [("D", x) for x in wq_]
                hl = [f"buffer_load_dwordx4 {vr(HF + 16*(dload&1) + 4*j,4)}, v{V_L16}, {sr(R_WS,4)}, s{S_T1} offen offset:{1024*j} sc1" for j in range(4)]
                hl[0] = f"s_add_u32 s{S_T1}, s{S_HLD}, {dload*4096}\n" + hl[0]
            elif dload == 7:
                q += [("D", rowdma(R_WO, S_WOO, 0, L_WO, e)) for e in range(4)]
                q += [("D", f"buffer_load_dwordx4 {vr(V_XR,4)}, v{V_FO}, {sr(R_X,4)}, 0 offen")]
            for i, x in enumerate(q): vm[tb + cfg.dpos[i] if ci else cfg.t_kv2].append(x)
            if 0 <= dload <= 6:
                for j in range(4):
                    vm[cfg.t_h0[j] if dload == 0 else tb + cfg.hpos[j]].append((f"H{dload}{j}", hl[j]))
                    if j in cfg.hwait: pre[tbs[ci + 1] + (cfg.mb0 or mb)[2*j] if dload == 0 else tbs[ci + 1] + mb[2*j]].append(("wait", f"H{dload}{cfg.hwait[j]}"))
            d = dload - 1
            if d >= 0:
                for k in range(8):
                    j, ct = divmod(k, 2); fr = DF + 4 * (k & 3)
                    for t in range(2):
                        head[tb + lh[k]].append(f"ds_read_b64_tr_b16 {vr(fr+2*t,2)}, v{V_DA+ct} offset:{(d&1)*32768 + j*2048 + t*512}")
                    bg[tb + (cfg.mb0 if d == 0 and cfg.mb0 else mb)[k]].append(mfma32(YY + 16*ct, HF + 16*(d&1) + 4*j, fr, None if (d == 0 and j == 0) else YY + 16*ct))
        assert min(cfg.t_h0) >= cfg.t_chk and max(lh) <= 6 and max(mb) <= 7 and all(m > l for m, l in zip(mb, lh))
        assert all(lh[k+4] > mb[k] and lh[k] + 6 > mb[k+4] for k in range(4)) and all(cfg.hpos[j] + 6 > mb[2*j+1] for j in range(4))
        st = []
        if half == 0:
            for rt in range(4):
                for ti in range(2):
                    st.append(f"s_add_u32 s{S_T3}, s{S_HSB if ti else S_HST}, {112*1024*rt}\n"
                              f"buffer_store_dwordx4 {vr(HO + 16*ti + 4*rt,4)}, v{V_L16}, {sr(R_WS,4)}, s{S_T3} offen {cfg.hfl}")
        st.append(f"buffer_store_dwordx4 v[12:15], v{V_L16}, {sr(R_WS,4)}, s{S_OST} offen {cfg.sfl[1]}")
        hs = list(range(64))
        for i, x in enumerate(st): vm[hs[int(i * cfg.st_rate)] if half == 0 else cfg.t_sb].append(("S", x))
        if half == 1:
            if cfg.t_pf >= 0: vm[cfg.t_pf] += [("X", x) for x in pfl]
            for e in range(8):
                x = f"s_add_u32 m0, s{S_EX}, {L_WO + 32768 + e*1024}\ns_add_u32 s{S_T0}, s{S_EX+1}, {e*8192}\nbuffer_load_dwordx4 v{V_WDD}, {sr(R_WO,4)}, s{S_T0} offen lds"
                if e == 0: x = f"s_lshl_b32 s{S_EX+1}, s{S_HW}, 16\ns_lshl_b32 s{S_T0}, s{S_CT8}, 7\ns_add_u32 s{S_EX+1}, s{S_EX+1}, s{S_T0}\ns_xor_b32 s{S_T0}, s{S_T16}, 0x40000\ns_add_u32 s{S_EX+1}, s{S_EX+1}, s{S_T0}\ns_lshl_b32 s{S_EX}, s{S_H4K}, 1\n" + x
                vm[cfg.t_wo[e]].append(("D" if e == 7 else "X", x))
            tw = min(t for t in tbs if t >= max(cfg.t_wo))
            if cfg.pair:
                for i, t in enumerate(cfg.t_wr): head[t] += wo_rd[2*i:2*i+2]
            elif tw == tbs[1]:
                for i in range(6): head[tw + 2 + i] += wo_rd[4*i:4*i+4]
            else:
                hs_ = [tb + o for tb in tbs if tb >= tw for o in (4, 5)]
                for i in range(12): head[hs_[i]] += wo_rd[2*i:2*i+2]
            if not cfg.pair: head[61] += wo_rd[24:26]; head[63] += wo_rd[26:]
        else:
            head[63] += wo_rd[:cfg.n_wo63]
        if cfg.t_out: vm[cfg.t_out].append(("X", f"s_mov_b64 exec, 1\nbuffer_load_dword v254, v{V_FO}, {sr(R_OUT,4)}, 0 offen\ns_mov_b64 exec, -1"))
        for t in cfg.t_code: vm[t].append(("X", "s_mov_b64 exec, 3\nglobal_load_dword v2, v[252:253], off\ns_mov_b64 exec, -1"))
        pre[cfg.t_flag].append(("wait", "S"))
        vm[cfg.t_flag].insert(0, ("F", f"s_mov_b64 exec, 1\nbuffer_store_dword v11, off, {sr(R_WS,4)}, s{S_FLG} sc1\ns_mov_b64 exec, -1"))
        poll = f"buffer_load_dword v3, v{V_PO}, {sr(R_WS,4)}, s{S_T2} offen sc1"
        vm[cfg.t_poll].insert(0, ("P", f"s_mov_b32 s{S_T2}, {WS_FL}\n" + poll))
        assert cfg.t_poll <= cfg.t_chk - 2
        pre[cfg.t_chk - 1].append(("wait", "P"))
        pre[cfg.t_chk].append(("text", f"s_cbranch_vccnz L_hspin{sfx}\nL_hok{sfx}:"))
        late.append(f"L_hspin{sfx}:\ns_mov_b32 s{S_SPIN}, 0\nL_hchk{sfx}:\ns_sleep 2\n{poll}\ns_waitcnt vmcnt(0)\nv_cmp_ne_u32 vcc, 1, v3\ns_add_u32 s{S_SPIN}, s{S_SPIN}, 1\ns_cbranch_vccz L_hok{sfx}\n"
                    f"s_cmp_lt_u32 s{S_SPIN}, {SPIN_MAX}\ns_cbranch_scc1 L_hchk{sfx}\ns_branch L_hok{sfx}")
        VQ = []
        def cnt(tag):
            idx = [i for i, x in enumerate(VQ) if x == tag]
            return min(63, len(VQ) - 1 - max(idx)) if idx else 63
        def emit_vm(L):
            for tag, x in L: a(x); VQ.append(tag)
        for t in range(tbs[2] + 1, 64):
            if 'v' in cfg.ab: vm[t] = [x for x in vm[t] if 'sc1 lds' in x[1]]
            if 'h' in cfg.ab: vm[t] = [x for x in vm[t] if x[0] != 'H']
            if 'r' in cfg.ab: head[t] = []
            if 'm' in cfg.ab: bg[t] = []
        tl = 63 if cfg.pair else 62
        bars = set(tbs) | {tl} | ({cfg.tbx} if cfg.pair else set())
        BL = [(t >> 1, t & 1) for t in range(60)] + [(30, 1 - half), (31, 1 - half), (30, half), (31, half)]
        def oq(q): return OO if q == half else OX
        def cq(q): return CC if q == half else CX
        def qq(q): return QF if q == half else QX
        kvr = {t: [[], []] for t in range(64)}
        ins = {t: {} for t in range(64)}
        if cfg.pair:
            for i in range(1, 32):
                o = kv_off(2*i + half)
                tk, ta, tv = (2*i - 2, 2*i - 1, 2*i - 1) if i < 31 else (59, 60, 61)
                kvr[tk][0].append(f"ds_read_b128 {vr(KF+4*(i&1),4)}, v{V_KA} offset:{o}")
                kvr[ta][1].append(f"ds_read_b128 {vr(VF+8*(i&1),4)}, v{V_VA} offset:{o}")
                kvr[tv][1].append(f"ds_read_b128 {vr(VF+8*(i&1)+4,4)}, v{V_VA} offset:{o + 512}")
            if cfg.upd:
                u = max(t for t in range(cfg.tbx) if t & 1 == half)
                ins[u][3] = (f"v_max_f32 v4, {hex(f2u(2.0**(16 - cfg.shift)))}, v{OO+8}\nv_frexp_exp_i32_f32_e64 v4, v4\nv_sub_u32 v4, {17 - int(cfg.shift)}, v4\nv_max_i32 v4, 0xffffff82, v4\n"
                             f"v_cvt_f32_i32 v5, v4\nv_add_f32 v6, v{CC}, v5\nv_ldexp_f32 v4, 1.0, v4\nv_mov_b32 v7, v6\nv_mov_b64 v[8:9], v[6:7]")
                head[u + 1] += [f"ds_write_b128 v{V_PA}, v[6:9] offset:{L_HQ + 8192*half + 1024}", f"ds_write_b32 v{V_PA}, v4 offset:{L_HQ + 8192*half}"]
                head[cfg.tbx + 1].append(f"ds_read_b32 v5, v{V_PA} offset:{L_HQ + 8192*(1 - half)}")
                for t in (cfg.tbx + 1, cfg.tbx + 2):
                    q = t & 1
                    head[t] += [f"ds_read_b128 {vr(cq(q)+4*i,4)}, v{V_PA} offset:{L_HQ + 8192*q + 1024}" for i in range(4)]
                    ins[t + 2][3] = "\n".join(f"v_mul_f32{'_e64' if i == 0 else ''} v{oq(q)+i}, v{oq(q)+i}, v{4 if q == half else 5}" for i in range(9))
            head[63] = [f"ds_write_b128 v{V_PA}, {vr(OX,4)} offset:{8192*half}", f"ds_write_b128 v{V_PA}, {vr(OX+4,4)} offset:{8192*half + 1024}",
                        f"ds_write_b32 v3, v{OX+8} offset:{28672 + 4*half}"] + head[63]
            ins[61][3] = f"v_lshrrev_b32_e64 v3, 1, v{V_PA}"
        mrg = [f"ds_read_b128 {vr(DF,4)}, v{V_PA} offset:{8192*(1-half)}", f"ds_read_b128 {vr(DF+4,4)}, v{V_PA} offset:{8192*(1-half) + 1024}", f"ds_read_b32 v{DF+8}, v3 offset:{28672 + 4*(1-half)}"]
        for t in range(64):
            par = t & 1
            sd, sn = (S0, S1) if par == 0 else (S1, S0)
            p, pp = PP + 8*par, PP + 8*(1 - par)
            isb = t in bars
            if cfg.stamps == 2 and t - 1 in tbs: stamp()
            brk("a")
            if cfg.itr:
                if t == 0: ncs[0] = 0
                if t in cfg.itr: cstamp(5)
            midb = isb and half == 1
            if half == 0 and t - 1 in bars: a(f"s_waitcnt vmcnt({cnt('D')}) lgkmcnt(0)\ns_barrier")
            else: a("s_waitcnt lgkmcnt(0)")
            for k, x in pre[t]: a(x if k == "text" else f"s_waitcnt vmcnt({cnt(x)})")
            emit_vm(vm[t][:1])
            if cfg.pair:
                for l in kvr[t][0]: a(l)
                if kvr[t][1]:
                    a(f"s_mov_b64 exec, {sr(S_VM,2)}")
                    for l in kvr[t][1]: a(l)
                    a("s_mov_b64 exec, -1")
            elif not ('L' in cfg.ab and t & 2) and not ('Z' in cfg.ab and t > 2):
                if t + 2 < 64: a(f"ds_read_b128 {vr(KF+4*par,4)}, v{V_KA} offset:{kv_off(t+2)}")
                a(f"s_mov_b64 exec, {sr(S_VM,2)}")
                if t + 1 < 64: a(f"ds_read_b128 {vr(VF+8*(1-par),4)}, v{V_VA} offset:{kv_off(t+1)}")
                a(f"ds_read_b128 {vr(VF+8*par+4,4)}, v{V_VA} offset:{kv_off(t)+512}")
                a("s_mov_b64 exec, -1")
            for l in head[t]: a(l)
            emit_vm(vm[t][1:])
            if t == 0 and cfg.stamps == 9: ncs[0] = 0
            if cfg.t_tr <= t < cfg.t_tr + 9: cstamp(9)
            if cfg.ladder and half and t % 3 == 0:
                if cfg.pair and len(head[t]) + len(vm[t]) + len(kvr[t][1]) < 2: a("s_nop 5")
                a("s_setprio 3")
            if t in cfg.upd and not cfg.pair: a("s_nop 1")
            pos = cfg.pos[len(bg[t])]
            sl = [smf(OO, VF + 8*(1-par) + 4, sn + 8) if t >= 1 else None, mfma32(sn, KF + 4*(1-par), QF, CC) if t + 1 < 64 else None]
            sl += bg[t][:1] + [smf(OO, VF + 8*par, sd)] + bg[t][1:]
            if cfg.pair:
                i0_, q0_ = BL[t]
                sl = [smf(oq(BL[t-1][1]), VF + 8*(BL[t-1][0]&1) + 4, sn + 8) if t >= 1 else None,
                      mfma32(sn, KF + 4*(BL[t+1][0]&1), qq(BL[t+1][1]), cq(BL[t+1][1])) if t + 1 < 64 else None]
                sl += bg[t][:1] + [smf(oq(q0_), VF + 8*(i0_&1), sd)] + bg[t][1:]
            at = {p: m for p, m in zip(pos, sl) if m}
            for p_, x in ins[t].items():
                assert p_ not in at
                at[p_] = x
            if 'M' in cfg.ab:
                import re as _re
                for p in list(at):
                    if at[p] in bg[t]:
                        m = _re.match(r"\S+ v\[(\d+):\d+\], v\[(\d+):\d+\], v\[(\d+):\d+\]", at[p]); d_, a_, b_ = map(int, m.groups())
                        d_ += 8 * (t & 1)
                        at[p] = mfma16(d_, a_, b_, d_); at[p + 1] = mfma16(d_ + 4, b_, a_, d_ + 4)
            if t in cfg.upd and not cfg.pair:
                assert len(sl) == 3
                at = {1: f"v_frexp_exp_i32_f32_e64 v4, v{OO+8}", 2: sl[0], 3: f"v_sub_u32 v4, {17 - int(cfg.shift)}, v4\nv_cvt_f32_i32_e64 v5, v4", 5: sl[1],
                      8: f"v_mfma_f32_32x32x2_f32 {vr(CC,16)}, v49, v5, {vr(CC,16)}", 15: sl[2]}
                if cfg.updm >= 1:
                    mv = [f"v_mov_b32 v{CC+1}, v{CC}"] + [f"v_mov_b64 {vr(CC+i,2)}, {vr(CC,2)}" for i in range(2, 16, 2)] if cfg.updm == 1 else [f"v_mov_b32 v{CC+i}, v{CC}" for i in range(1, 16)]
                    del at[8], at[15]
                    at[12] = "\n".join([f"v_add_f32{'_e64' if cfg.updm == 1 else ''} v{CC}, v{CC}, v5"] + mv)
                    at[13] = sl[2]
                if cfg.updl: at[3] = f"v_sub_u32 v4, {17 - int(cfg.shift)}, v4\nv_max_i32 v4, 0xffffff82, v4\nv_cvt_f32_i32_e64 v5, v4\nv_ldexp_f32 v4, 1.0, v4"
            if t - 2 in cfg.upd and not cfg.pair:
                assert len(sl) == 3
                at = {2: sl[0], 6: sl[1], 13: "\n".join((f"v_mul_f32{'_e64' if i == 0 else ''} v{OO+i}, v{OO+i}, v4" if cfg.updl else f"v_ldexp_f32 v{OO+i}, v{OO+i}, v4") for i in range(9)), 15: sl[2]}
            a(".p2align 3")
            odd = False
            for i in range(16):
                if i in at: a(at[i])
                if midb and i == (cfg.bmid if t < 63 else cfg.bm63): a(f"s_waitcnt vmcnt({cnt('D')}) lgkmcnt(0)\ns_barrier")
                if cfg.pair and half and t == 63 and i == cfg.p_mrg:
                    for l in mrg: a(l)
                pr = i == (cfg.pp if half else cfg.pa) and not (cfg.ladder and t % 3)
                wide = (i + 1 in at) and (odd == pr)
                a(f"v_exp_f32{'_e64' if wide else ''} v{sd+i}, v{sd+i}")
                if not wide: odd = not odd
                if pr: a(f"s_setprio {3 if cfg.ladder else cfg.pv[half]}"); odd = not odd
            if cfg.stamps == 3: a(f"s_waitcnt lgkmcnt(0)\nv_writelane_b32 v253, s{S_TS}, {t}\nv_writelane_b32 v254, s{S_TS2}, {t}\ns_memtime {sr(S_TS2,2)}")
            if t == cfg.t_chk - 1: a("v_cmp_ne_u32 vcc, 1, v3")
            if cfg.ladder and t < 63:
                if half == 0 or t % 3 != 2: a(f"s_setprio {2 - t % 3}")
            elif (cfg.pp if half else cfg.pa) is not None and not (half and cfg.pp < 0 and t < 63): a("s_setprio 0")
            if cfg.t_tr <= t < cfg.t_tr + 9: cstamp(9)
        if cfg.pair and not half:
            a(f"s_waitcnt vmcnt({cnt('D')}) lgkmcnt(0)\ns_barrier")
            for l in mrg: a(l)
        else: a("s_nop 1" if cfg.pair else "s_waitcnt lgkmcnt(0)\ns_nop 0")
        a(smf(OO, VF + 12, S1 + 8))
    OF, SS, XU, TT = (16, 64, 224, 232) if cfg.pair else (16, 64, 160, 168)
    def oload(j):
        h = cfg.oord[j]
        return f"buffer_load_dwordx4 {vr(OF+4*j,4)}, v{V_L16}, {sr(R_WS,4)}, s{S_OLD if h < 4 else S_T1} offen offset:{1024*(h&3)} sc1"
    def chk(j): return f"v_max3_u32 v8, v{OF+4*j}, v{OF+4*j+1}, v{OF+4*j+2}\nv_max_u32 v8, v{OF+4*j+3}, v8\nv_cmp_eq_u32 vcc, -1, v8"
    F = f"L_ofix:\ns_mov_b32 s{S_T2}, 0\ns_waitcnt vmcnt(0)\n"
    for j in range(8):
        F += (f"s_bitcmp1_b32 s{S_CNT}, {j}\ns_cbranch_scc0 L_ofb{j}\n{chk(j)}\ns_cmp_lg_u32 s{S_T2}, 0\ns_cbranch_vccz L_ofa{j}\n{oload(j)}\ns_mov_b32 s{S_T2}, 1\ns_branch L_ofb{j}\nL_ofa{j}:\ns_cbranch_scc1 L_ofb{j}\ns_bitset0_b32 s{S_CNT}, {j}\n"
              + mfma32(SS, OF + 4*j, WOF[2*j], SS) + "\n" + mfma32(SS + 16, OF + 4*j, WOF[2*j + 1], SS + 16) + f"\nL_ofb{j}:\n")
    F += (f"s_add_u32 s{S_SPIN}, s{S_SPIN}, 1\ns_cmp_ge_u32 s{S_SPIN}, {SPIN_MAX}\ns_cselect_b32 s{S_CNT}, 0, s{S_CNT}\n"
          f"s_cmp_lg_u32 s{S_CNT}, 0\ns_cbranch_scc1 L_ofix\ns_setpc_b64 {sr(S_RET,2)}")
    late.insert(0, F)
    def normalize():
        for i in range(0, 8, 2): a(f"v_pk_mul_f32 {vr(OO+i,2)}, {vr(OO+i,2)}, v[10:11]")
        for i in range(4): a(f"v_cvt_pk_bf16_f32 v{12+i}, v{OO+2*i}, v{OO+2*i+1}")
    def tail(half):
        sfx = "AB"[half]
        if cfg.stamps == 8: ncs[0] = 0
        if cfg.stamps == 5: a(f"v_writelane_b32 v{V_STAMP}, s{S_SPIN}, 62")
        stamp(name="att1"); pad("att1")
        cstamp()
        a(f"s_mov_b32 s{S_T2}, {hex(f2u(2.0**120))}\ns_mov_b32 s{S_T3}, {hex(f2u(2.0**-106))}")
        a(f"s_add_u32 s{S_T1}, s{S_OLD}, 4096\ns_mov_b32 s{S_SPIN}, 0\ns_lshl_b32 s{S_T0}, s{S_W}, 13\ns_mov_b32 m0, s{S_T0}")
        if cfg.pair:
            a("s_waitcnt lgkmcnt(0)"); a.nop(5)
            for i in (8, 0, 1, 2, 3, 4, 5, 6, 7): a(f"v_add_f32 v{OO+i}, v{OO+i}, v{DF+i}")
        else: a.nop(6)
        a(f"""
        v_rcp_f32 v10, v{OO+8}
        v_maximum3_f32 v8, abs(v{OO}), abs(v{OO+1}), abs(v{OO+2})
        v_maximum3_f32 v9, abs(v{OO+3}), abs(v{OO+4}), abs(v{OO+5})
        v_maximum3_f32 v8, abs(v{OO+6}), abs(v{OO+7}), v8
        v_maximum3_f32 v6, v8, v9, v{OO+8}
        v_max_f32 v8, v8, v9
        v_cmp_ngt_f32 vcc, s{S_T2}, v6
        v_cmp_gt_f32 {sr(S_EX,2)}, s{S_T3}, v8
        v_mov_b32 v11, v10
        s_or_b64 vcc, vcc, {sr(S_EX,2)}
        """)
        a("s_branch L_fb" if cfg.force_fb else "s_nop 0" if cfg.ab else "s_cbranch_scc1 L_fb")
        normalize()
        a.label(f"L_ost{sfx}")
        a(f"buffer_store_dwordx4 v[12:15], v{V_L16}, {sr(R_WS,4)}, s{S_OST} offen sc1")
        cstamp()
        if half == 0:
            for l in wo_rd[cfg.n_wo63:]: a(l)
        for i in range(32): a(f"ds_write_addtid_b32 v{YY+i} offset:{32768 + 256*i}")
        cstamp()
        a(f"""
        v_xor_b32 v5, 16, v{V_GA}
        v_add_u32 v6, 0x10000, v{V_GA}
        v_add_u32 v7, 0x10000, v5
        s_mov_b32 s{S_EX}, 0xff00ff00
        s_mov_b32 s{S_EX+1}, 0xff00ff00
        s_mov_b64 exec, {sr(S_EX,2)}
        v_swap_b32 v{V_XR}, v{V_XR+2}
        v_swap_b32 v{V_XR+1}, v{V_XR+3}
        s_mov_b64 exec, -1
        """)
        for i in range(4): a(f"v_lshlrev_b32 v{XU+2*i}, 16, v{V_XR+i}\nv_and_b32 v{XU+2*i+1}, 0xffff0000, v{V_XR+i}")
        for i in range(0, 32, 2): a(f"v_mov_b64 {vr(SS+i,2)}, 0")
        if not half:
            for j in range(cfg.oearly): a(oload(j))
        a("s_waitcnt lgkmcnt(0)\ns_barrier")
        if half: a(f"s_add_u32 m0, s{S_T0}, 7940")
        if half and cfg.tprio == 2: a("s_setprio 1")
        cstamp()
        yr = [f"ds_read_b128 {vr(YY+8*p+4*e,4)}, v{((V_GA, 5), (6, 7))[p >> 1][e]} offset:{(32768 + 16384*p) & 0xffff}" for p in range(4) for e in range(2)]
        G = ["s_waitcnt lgkmcnt(0)"]
        for p in (1, 2, 3): G += [f"v_add_f32 v{YY+i}, v{YY+i}, v{YY+8*p+i}" for i in range(8)]
        G += [f"v_mul_f32 v{TT+i}, {hex(f2u(-math.log2(math.e)))}, v{YY+i}" for i in range(8)]
        G += [f"v_exp_f32 v{TT+i}, v{TT+i}" for i in range(8)]
        G += [f"v_add_f32 v{TT+i}, 1.0, v{TT+i}" for i in range(8)]
        G += [f"v_rcp_f32 v{TT+i}, v{TT+i}" for i in range(8)]
        G += [f"v_mul_f32 v{YY+i}, v{YY+i}, v{TT+i}" for i in range(8)]
        if half:
            for l in yr: a(l)
            if cfg.tprio == 3: a("s_setprio 1")
            for j in range(cfg.n_b0): a(oload(j))
            for l in G[:cfg.n_gb]: a(l)
            G = G[cfg.n_gb:]
            for j in range(cfg.n_b0, 8):
                a(oload(j))
                for l in G[:cfg.n_gp]: a(l)
                G = G[cfg.n_gp:]
            for l in G: a(l)
        elif cfg.odelay:
            for l in yr + G[:int(cfg.odelay)]: a(l)
            G = G[int(cfg.odelay):]
            for j in range(8): a(oload(j))
        else:
            for j in range(8):
                if j + cfg.oearly < 8: a(oload(j + cfg.oearly))
                a(yr[j])
            for l in G[:cfg.n_ga]: a(l)
            G = G[cfg.n_ga:]
        cstamp()
        def nxt(j): return f"s_waitcnt vmcnt({7-j})\n" + chk(j) + f"\ns_movk_i32 s{S_CNT}, {(0xff << j) & 0xff}"
        if half and cfg.tprio == 1: a("s_setprio 1")
        a(nxt(0))
        for j in range(8):
            a(f"s_cbranch_vccnz L_omiss{sfx}")
            if j in (0, 3, 7): cstamp()
            a(mfma32(SS, OF + 4*j, WOF[2*j], SS))
            if j < 7: a(nxt(j + 1))
            a(mfma32(SS + 16, OF + 4*j, WOF[2*j + 1], SS + 16))
        late[0] = f"L_omiss{sfx}:\ns_call_b64 {sr(S_RET,2)}, L_ofix\ns_branch L_ook{sfx}\n" + late[0]
        a.label(f"L_ook{sfx}")
        pg = [f"ds_read_b128 {vr(192+8*p+4*e,4)}, v{(V_GA, 5)[e]} offset:{16384*p}" for p in range(2) for e in range(2)]
        if half and cfg.pgath:
            a("s_barrier")
            for l in pg: a(l)
            a.nop(6)
        else: a.nop(11)
        for i in range(32): a(f"ds_write_addtid_b32 v{SS+i} offset:{(57596 if half else 0) + 256*i}")
        if not half:
            for l in G: a(l)
            if cfg.pgath:
                a("s_waitcnt lgkmcnt(0)\ns_barrier")
                for l in pg: a(l)
    far("L_attA")
    n0 = nst[0]
    attention(0)
    tail(0)
    a("s_branch L_fin2")
    far("L_attB")
    nst[0] = n0
    attention(1)
    tail(1)
    far("L_fin2", True)
    a("s_waitcnt lgkmcnt(0)\ns_barrier")
    if cfg.stamps == 6: stamp()
    cstamp()
    for p in range(2 if cfg.pgath else 0, 4):
        for e in range(2): a(f"ds_read_b128 {vr(OF+8*p+4*e,4)}, v{((V_GA, 5), (6, 7))[p >> 1][e]} offset:{16384*p}")
    if cfg.pgath:
        for i in range(0, 8, 2): a(f"v_pk_add_f32 {vr(OF+i,2)}, {vr(192+i,2)}, {vr(200+i,2)}")
    else:
        a("s_waitcnt lgkmcnt(0)" if cfg.stamps == 8 else "s_waitcnt lgkmcnt(4)")
        for i in range(0, 8, 2): a(f"v_pk_add_f32 {vr(OF+i,2)}, {vr(OF+i,2)}, {vr(OF+8+i,2)}")
    a("s_waitcnt lgkmcnt(0)")
    for i in range(0, 8, 2): a(f"v_pk_add_f32 {vr(OF+16+i,2)}, {vr(OF+16+i,2)}, {vr(OF+24+i,2)}")
    for i in range(0, 8, 2): a(f"v_pk_add_f32 {vr(OF+i,2)}, {vr(OF+i,2)}, {vr(OF+16+i,2)}")
    for i in range(0, 8, 2): a(f"v_pk_fma_f32 {vr(OF+i,2)}, {vr(OF+i,2)}, {vr(YY+i,2)}, {vr(XU+i,2)}")
    for i in range(4): a(f"v_cvt_pk_bf16_f32 v{12+i}, v{OF+2*i}, v{OF+2*i+1}")
    a(f"s_mov_b64 exec, {sr(S_EX,2)}\nv_swap_b32 v12, v14\nv_swap_b32 v13, v15\ns_mov_b64 exec, -1")
    a(f"buffer_store_dwordx4 v[12:15], v{V_FO}, {sr(R_OUT,4)}, 0 offen {cfg.oflag}")
    if cfg.stamps == 6: stamp()
    cstamp()
    if cfg.stamps:
        a("s_waitcnt vmcnt(0)")
        cstamp()
        stamp(True)
        for i in range(ncs[0]): a(f"v_writelane_b32 v{V_STAMP}, s{CSR[i]}, {40+i}")
        if cfg.stamps in (10, 12):
            for i in range(6): a(f"v_writelane_b32 v{V_STAMP}, s{[32, 34, 92, 94, 96, 98][i]}, {40+i}")
        if cfg.stamps in (5, 6): a(f"v_writelane_b32 v{V_STAMP}, s{S_SPIN}, 63")
        a(f"s_lshl_b32 s{S_T0}, s2, 3\ns_add_u32 s{S_T0}, s{S_T0}, s{S_W}\ns_lshl_b32 s{S_T0}, s{S_T0}, 8\ns_add_u32 s{S_T0}, s{S_T0}, {WS_DBG}")
        a(f"v_lshlrev_b32 v2, 2, v{V_LANE}\nbuffer_store_dword v{V_STAMP}, v2, {sr(R_WS,4)}, s{S_T0} offen")
        if cfg.stamps == 3:
            a(f"s_add_u32 s{S_T0}, s{S_T0}, 0x80000\nbuffer_store_dword v253, v2, {sr(R_WS,4)}, s{S_T0} offen\ns_add_u32 s{S_T0}, s{S_T0}, 0x80000\nbuffer_store_dword v254, v2, {sr(R_WS,4)}, s{S_T0} offen")
    pad("end")
    a.label("L_end")
    a("s_endpgm")
    a(late[0])
    if cfg.brks is None: brk("x")
    for l in late[1:]: a(l)
    a.label("L_fb")
    a(f"v_mov_b32 v8, 0xff800000\ns_mov_b32 s{S_CNT}, {WS_KV}")
    a(f"v_subrev_u32 v10, {L_KV}, v{V_VA}")
    a.label("L_fb1")
    a(f"buffer_load_dwordx4 {vr(KF,4)}, v{V_L16}, {sr(R_WS,4)}, s{S_CNT} offen sc1\ns_waitcnt vmcnt(0)")
    a(mfma32(S0, KF, QF, None)); a.nop(12)
    for l in maxtree(S0, 8, init=True): a(l)
    a(f"s_add_u32 s{S_CNT}, s{S_CNT}, 2048\ns_cmp_lt_u32 s{S_CNT}, {WS_KV + 64*2048}\ns_cbranch_scc1 L_fb1")
    setC(8, 0.0)
    for i in range(16): a(f"v_mov_b32 v{OO+i}, 0")
    a(f"s_mov_b32 s{S_CNT}, {WS_KV}")
    a.label("L_fb2")
    a(f"buffer_load_dwordx4 {vr(KF,4)}, v{V_L16}, {sr(R_WS,4)}, s{S_CNT} offen sc1")
    a(f"s_mov_b64 exec, {sr(S_VM,2)}")
    a(f"buffer_load_dwordx4 {vr(VF,4)}, v10, {sr(R_WS,4)}, s{S_CNT} offen sc1")
    a(f"buffer_load_dwordx4 {vr(VF+4,4)}, v10, {sr(R_WS,4)}, s{S_CNT} offen offset:512 sc1")
    a("s_mov_b64 exec, -1\ns_waitcnt vmcnt(0)")
    a(mfma32(S0, KF, QF, CC)); a.nop(12)
    for i in range(16): a(f"v_exp_f32 v{S0+i}, v{S0+i}")
    a.nop(2)
    a(smf(OO, VF, S0)); a(smf(OO, VF + 4, S0 + 8))
    a(f"s_add_u32 s{S_CNT}, s{S_CNT}, 2048\ns_cmp_lt_u32 s{S_CNT}, {WS_KV + 64*2048}\ns_cbranch_scc1 L_fb2")
    a.nop(12)
    a(f"v_rcp_f32 v10, v{OO+8}\ns_nop 0\nv_mov_b32 v11, v10")
    normalize()
    for i in range(4): a(f"v_min_u32 v{12+i}, -2, v{12+i}")
    a(f"s_cmp_ge_u32 s{S_W}, 4\ns_cbranch_scc1 L_ostB\ns_branch L_ostA")
    a.label("L_code_end")
    return a

HEADER = open(f"cdna_kernels/{NAME}.s.ref").read().split("; Override launch")[0]
def wrap(a):
    s = HEADER + """; One persistent launch, one 8-wave workgroup per CU (all 256 are resident: 160 KiB LDS each). Generated by the author's script.
;  1. K/V rows, LayerNorm statistics and column sums of W are shared out over the workgroups, published in d_ws, arrival counted in d_debug.
;  2. [w_gate | w_up | w_q] projection on raw x, 128 x 256 tile; LayerNorm applied in the epilogue; h and q go to d_ws.
;  3. MQA attention with the down projection interleaved; 4. o exchange, w_o projection, gate, residual.
; Hand-offs use write-through stores and L1-bypassing loads; flags and 'not yet written' patterns are initialised inside the launch.
""" + "; @launch grid=(256,1,1) block=(512,1,1) lds=163840\n"
    s += f""".amdgcn_target "amdgcn-amd-amdhsa--gfx950"
.text
.globl {NAME}_kernel
.p2align 8
.type {NAME}_kernel,@function
{NAME}_kernel:
"""
    s += a.text()
    s += f""".section .rodata,"a"
.p2align 6
.amdhsa_kernel {NAME}_kernel
  .amdhsa_next_free_vgpr 256
  .amdhsa_next_free_sgpr 102
  .amdhsa_accum_offset 256
  .amdhsa_group_segment_fixed_size 0
  .amdhsa_kernarg_size 96
  .amdhsa_user_sgpr_count 2
  .amdhsa_user_sgpr_kernarg_segment_ptr 1
  .amdhsa_system_sgpr_workgroup_id_x 1
.end_amdhsa_kernel
"""
    return s

if __name__ == "__main__":
    cfg = Cfg()
    out = sys.argv[1]
    if "pair=False" not in sys.argv:
        cfg.sizes = [8, 8] + [6]*8; cfg.n_wo63 = 0; cfg.t_wd0 = (12, 15, 16, 16); cfg.mb0 = (3, 4, 5, 5, 6, 6, 7, 7); cfg.t_h0 = (18, 18, 19, 19)
        cfg.t_wo = (9, 10, 12, 13, 16, 17, 17, 28); cfg.t_code = (10, 42); cfg.t_chk = 18; cfg.t_poll = 15; cfg.t_flag = 10
    for kv in sys.argv[2:]:
        k, v = kv.split("=")
        setattr(cfg, k, eval(v))
    g0 = gen
    def gen(cfg):
        a = g0(cfg)
        if 'E' in cfg.ab or 'S' in cfg.ab:
            n = a.lines.index("L_qt:")
            for i in range(n):
                if a.lines[i].startswith("buffer_store") or ('E' in cfg.ab and a.lines[i].startswith("buffer_")): a.lines[i] = "s_nop 0"
            h = a.lines.index("L_helper:")
            k = 0
            for i in range(h, len(a.lines)):
                if a.lines[i].startswith("buffer_store") and k < 3:
                    a.lines[i] = f"buffer_load_dword v9, off, {sr(R_X,4)}, 0"; k += 1
        if cfg.jitter:
            import random
            rnd = random.Random(cfg.jitter)
            out_ = []; k = 0; started = False
            for i, l in enumerate(a.lines):
                if l.startswith("s_cbranch_scc1 L_helper"): started = True
                if started and (l == "s_barrier" or ("sc1" in l and rnd.random() < 0.3)) and rnd.random() < 0.5:
                    k += 1
                    out_ += ["s_cselect_b32 s101, 1, 0", f"s_lshl_b32 s100, s2, 3", f"s_add_u32 s100, s100, s{S_W}" if rnd.random() < 0.5 else "s_nop 0",
                             f"s_mul_i32 s100, s100, {rnd.randrange(1, 1 << 30) | 1}", "s_lshr_b32 s100, s100, 28", f"s_cmp_lt_u32 s100, {rnd.choice([1, 2, 4])}",
                             f"s_cbranch_scc0 L_jit{k}", f"s_sleep {rnd.choice([5, 20, 60, 120])}", f"L_jit{k}:", "s_cmp_eq_u32 s101, 1"]
                out_.append(l)
            a.lines = out_
        return a
    a = gen(cfg)
    if cfg.pages:
        import subprocess, re
        open("_p1.s", "w").write(wrap(a))
        subprocess.run(["clang", "-x", "assembler", "-target", "amdgcn-amd-amdhsa", "-mcpu=gfx950", "-c", "_p1.s", "-o", "_p1.o"], check=True)
        t = subprocess.run(["llvm-objdump", "-t", "_p1.o"], capture_output=True, text=True).stdout
        pts = sorted((int(m.group(1), 16), m.group(2), int(m.group(3))) for m in re.finditer(r"^([0-9a-f]+) .* L_brk_(\w)_(\d+)$", t, re.M))
        brks = {}; start = -0x300
        for (ad, k, i), (nx, _, _) in zip(pts, pts[1:]):
            if nx - start > 4096 - 112:
                brks[i] = k; start = ad
        cfg.brks = brks
        a = gen(cfg)
    else:
        cfg.brks = {}
        a = gen(cfg)
    errs = check(a.lines)
    for e in errs: print("HAZARD need %d have %d:\n   %s\n   %s" % (e[2], e[3], e[0], e[1]))
    open(out, "w").write(wrap(a))
    print("wrote", out, len(a.lines), "lines", len(errs), "hazards")
```

```python
import sys, math
from asmlib import Asm, vr, sr, f2u, check

NAME = "recurrent_scan__grouped_kv_mqa__glu_gated_geglu__prompt"

class Cfg:
    stamps = False
    stop = None
    force_fb = False
    shift = 101.0
    upd = (5,)
    brks = None
    pages = True
    touch = True
    far = ('L_attA', 'L_attB')
    odelay = 0
    xmap = 0
    krot = 8
    hnop = False
    ssl = 4
    lag = 0
    pair = True
    tbx = 13
    p_mrg = 9
    mb0 = None
    bm63 = 6
    t_wr = (52, 54, 56, 57, 58, 58, 60, 60, 61, 61, 62, 62, 62, 62, 62, 63)
    n_ga = 0
    pgath = False
    tprio = 1
    oord = (0, 1, 4, 5, 2, 3, 6, 7)
    oearly = 0
    sfl = ('sc1', 'sc1')
    hfl = 'sc1 nt'
    t_sb = 4
    e7 = 0
    itr = ()
    qsl = 2
    p0 = (4, 6)
    cs_in = False
    jitter = 0
    t_out = 0
    cs_late = False
    n_cs0 = 2
    n_csb = 4
    wfix = False
    stub = 's_nop 0\n'
    updm = 1
    updl = True
    cf = ('', '', '')
    nodot = False
    nodma = False
    nord = False
    sizes = [8, 8, 7] + [6]*6 + [5]
    ilen = 6
    g_init = 2
    t_pf = -1
    t_wo = (9, 10, 12, 13, 14, 15, 16, 17)
    t_wd0 = (15, 15, 16, 17)
    t_poll = 16
    bmid = 3
    lh = (1, 2, 3, 3, 4, 5, 6, 6)
    mb = (2, 3, 4, 5, 5, 6, 7, 7)
    dpos = (1, 1, 2, 2, 3, 4)
    hpos = (4, 5, 5, 6)
    hwait = {0: 0, 1: 3}
    t_h0 = (19, 19, 20, 20)
    t_chk = 19
    pbar = 1
    n_csa = 4
    lead0 = 10
    oflag = 'sc1'
    n_wo63 = 6
    nt = ''
    t_code = (12, 43)
    ofast = 0
    olate = 1
    yfirst = True
    n_gb = 1
    n_b0 = 0
    oswap = False
    t_tr = 30
    n_gp = 5
    i_q = 5
    i_qb = 2
    n_poll = 0
    e6 = 0
    pf_first = True
    bp = 0
    g_h = 29
    c_st = (-2, 0)
    c_q = (2, 99, 4, 0)
    gpos = 0
    g_tr = 4
    mord = 0
    g_early = True
    mswap = False
    c_arr = 1
    lead = [8, 10, 12, 9, 12, 12]
    n_pre = (2, 4)
    n_fin = (7, 6)
    g_cs = (3, 4, 5, 6)
    g_csc = 9
    bprio = 3
    st_rate = 0.5
    t_flag = 11
    t_kv2 = 6
    m16 = False
    ladder = True
    pp = -1
    pos = [(2, 6, 12), (2, 6, 10, 14), (1, 4, 7, 10, 13)]
    pa = 2
    pv = (1, 1)
    ab = ''
    pad = None

WS_KV, WS_ST, WS_FL, WS_CS, WS_O, WS_H, WS_DBG, WS_Q = 0, 0x80000, 0x28000, 0x40000, 0x100000, 0x400000, 0xC00000, 0xE00000
WS_SIZE = 0x1000000
L_X, L_W, L_R = 0, 49152, 147456
L_KV, L_WD, L_WO = 0, 65536, 98304
P_X, P_WQ, P_WK, P_WV, P_WO, P_WG, P_WU, P_WD, P_OUT, P_DBG, P_WS = 4, 6, 8, 10, 12, 16, 18, 20, 22, 24, 26
R_X, R_WKV, R_WD, R_WO, R_OUT, R_DBG, R_WS = 28, 32, 36, 40, 44, 48, 52
S_W, S_RB, S_CB, S_RT64, S_CT8 = 56, 57, 58, 59, 60
S_T16 = 61
S_VM = 62
S_XOFF = 64
S_WOFF = 65
S_HW = 66
S_ONES = 67
S_T0, S_T1, S_T2, S_T3 = 68, 69, 70, 71
S_OST = 72
S_FLG = 73
S_HST = 74
S_KQ, S_RT = 75, 76
S_WDO = 77
S_HLD = 78
S_W4K = 79
S_W2K = 80
S_SPIN = 81
S_WOO = 82
S_OLD = 83
S_EX = 84
S_TS = 86
S_CNT = 88
S_WSTEP = 89
S_TS2 = 90
S_RET = 0
R_W, R_CW = 92, 96
S_H4K = 3
S_HSB = 14
S_M0W = 15
SPIN_MAX = 1 << 18

V_LANE = 1
V_STAMP = 255
V_L16, V_KA, V_WDD, V_VA, V_DA, V_PO, V_FO, V_XR, QF = 208, 209, 210, 211, 212, 214, 215, 216, 220
V_GA = 0

def mfma32(d, a, b, c):
    cs = "0" if c is None else vr(c, 16)
    return f"v_mfma_f32_32x32x16_bf16 {vr(d,16)}, {vr(a,4)}, {vr(b,4)}, {cs}"
V_IDX = 124
def smf(d, a, b):
    return f"v_smfmac_f32_32x32x32_bf16 {vr(d,16)}, {vr(a,4)}, {vr(b,8)}, v{V_IDX}"
def mfma16(d, a, b, c):
    cs = "0" if c is None else vr(c, 4)
    return f"v_mfma_f32_16x16x32_bf16 {vr(d,4)}, {vr(a,4)}, {vr(b,4)}, {cs}"

def gen(cfg):
    a = Asm()
    nst = [0]
    def stamp(final=False, name=None):
        if not cfg.stamps: return
        i = nst[0]; nst[0] += 1
        if cfg.stamps in (8, 9, 10, 11, 12) and i and not final: return
        if cfg.stamps == 7:
            if isinstance(name, int): i = name
            elif final: i = 9
            elif name == "b0": i = 7
            elif name == "g1": i = 8
            elif i: return
        elif isinstance(name, int):
            nst[0] -= 1; return
        if cfg.stamps == 5:
            marks = {"b0": 2, "g1": 3, "att0": 4, "att1": 5}
            if final: i = 1
            elif name in marks: i = marks[name]
            elif i: return
        a(f"s_memrealtime {sr(S_TS,2)}\ns_memtime {sr(S_TS2,2)}\ns_waitcnt lgkmcnt(0)\nv_writelane_b32 v{V_STAMP}, s{S_TS}, {i}\nv_writelane_b32 v{V_STAMP}, s{S_TS2}, {32+i}")
    nbrk = [0]
    def brk(kind):
        i = nbrk[0]; nbrk[0] += 1
        if cfg.brks is None: a.label(f"L_brk_{kind}_{i}")
        elif i in cfg.brks:
            a(f"s_branch L_pg{i}\n.p2align 12\nL_stub{i}:\n" + cfg.stub + f"s_setpc_b64 {sr(S_RET,2)}\nL_pg{i}:")
    FAR = {"L_qt": "e", "L_joinA": "e", "L_attA": "a", "L_attB": "a", "L_fin2": "a"}
    def far(label, fall=False):
        if label in cfg.far:
            if fall: a(f"s_branch {label}")
            a(f".p2align 6\nL_stub{label}:\ns_nop 0\ns_setpc_b64 {sr(S_RET,2)}")
        a.label(label)
    def touch(kinds, first, n, maxn):
        ids = [] if cfg.brks is None else [i for i, k in cfg.brks.items() if k in kinds] + [l for l, k in FAR.items() if k in kinds and l in cfg.far]
        assert len(ids) <= maxn
        for j in range(maxn):
            if j < len(ids) and cfg.touch: a(f"s_cmp_eq_u32 s{S_HW}, {first + j % n}\ns_cbranch_scc0 L_nt{ids[j]}\ns_call_b64 {sr(S_RET,2)}, L_stub{ids[j]}\nL_nt{ids[j]}:")
            elif cfg.brks is None: a("s_nop 0\ns_nop 0\ns_nop 0")
    ncs = [0]
    CSR = [4, 6, 8, 10, 12] + list(range(16, 28, 2)) + [32, 34, 92, 94, 96, 98, 48]
    def cstamp(mode=8):
        if cfg.stamps != mode: return
        a(f"s_memtime {sr(CSR[ncs[0]], 2)}"); ncs[0] += 1
    def c12(k):
        if cfg.stamps == 12: a(f"s_memtime {sr([32, 34, 92, 94, 96, 98][k], 2)}\ns_waitcnt lgkmcnt(0)")
    def pad(pt):
        if not cfg.pad or cfg.pad[0] != pt: return
        if len(cfg.pad) > 2:
            inv = cfg.pad[2] == 2
            a(f"s_and_b32 s{S_T0}, s{S_TS}, 0x7fffffff")
            if inv: a(f"s_not_b32 s{S_T0}, s{S_T0}")
            a(f"v_mov_b32 v2, s{S_T0}\ns_mov_b64 exec, 1\nbuffer_atomic_umax v2, off, {sr(R_DBG,4)}, 0 offset:4 sc1\ns_mov_b64 exec, -1")
            a(f"L_pad0:\ns_memrealtime {sr(S_TS2,2)}\ns_waitcnt lgkmcnt(0)\ns_sub_u32 s{S_TS2}, s{S_TS2}, s{S_TS}\ns_cmp_lt_u32 s{S_TS2}, {int(cfg.pad[1]*100) - 1500}\ns_cbranch_scc1 L_pad0")
            a(f"buffer_load_dword v2, off, {sr(R_DBG,4)}, 0 offset:4 sc1\ns_waitcnt vmcnt(0)\nv_readfirstlane_b32 s{S_T0}, v2\ns_nop 3")
            if inv: a(f"s_not_b32 s{S_T0}, s{S_T0}")
            a(f"s_and_b32 s{S_TS}, s{S_TS}, 0x80000000\ns_or_b32 s{S_TS}, s{S_TS}, s{S_T0}")
        a(f"L_pad{len(a.lines)}:\ns_memrealtime {sr(S_TS2,2)}\ns_waitcnt lgkmcnt(0)\ns_sub_u32 s{S_TS2}, s{S_TS2}, s{S_TS}\ns_cmp_lt_u32 s{S_TS2}, {int(cfg.pad[1]*100)}\ns_cbranch_scc1 L_pad{len(a.lines)}")
    def srd(r, p, size):
        a(f"s_mov_b32 s{r}, s{p}\ns_and_b32 s{r+1}, s{p+1}, 0xffff\ns_mov_b32 s{r+2}, {hex(size)}\ns_mov_b32 s{r+3}, 0x20000")

    a(f"s_cmp_ge_u32 s2, 256\ns_cbranch_scc1 L_end")
    if cfg.pad: a(f"s_memrealtime {sr(S_TS,2)}")
    a(f"s_load_dwordx16 s[4:19], s[0:1], 0\ns_load_dwordx8 s[20:27], s[0:1], 64")
    if cfg.stamps:
        a(f"v_mov_b32 v{V_STAMP}, 0")
    a(f"v_lshrrev_b32 v2, 6, v0\nv_and_b32 v{V_LANE}, 63, v0")
    a(f"s_getpc_b64 {sr(S_EX,2)}")
    a.label("L_pc")
    a(f"""
    v_readfirstlane_b32 s{S_W}, v2
    s_and_b32 s{S_T0}, s2, 0xf8
    v_add_u32 v2, s{S_T0}, v2
    v_lshl_add_u32 v2, v2, 1, v{V_LANE}
    v_lshlrev_b32 v252, 7, v2
    v_min_u32 v252, L_code_end-L_pc-4, v252
    v_mov_b32 v253, 0
    v_lshl_add_u64 v[252:253], v[252:253], 0, {sr(S_EX,2)}
    s_mov_b64 exec, 3
    global_load_dword v9, v[252:253], off
    s_mov_b64 exec, -1
    """)
    if cfg.lag: a(f"s_and_b32 s{S_T0}, s2, 7\ns_cmp_lg_u32 s{S_T0}, 3\ns_cbranch_scc1 L_nolag\ns_sleep {cfg.lag}\nL_nolag:")
    a(f"""
    s_and_b32 s{S_T0}, s2, 7
    s_lshr_b32 s{S_T1}, s2, 3
    s_and_b32 s{S_CT8}, s{S_T1}, 7
    """)
    if cfg.xmap == 1:
        a(f"""
        s_and_b32 s{S_RB}, s{S_T1}, 15
        s_lshr_b32 s{S_T2}, s2, 7
        s_lshl_b32 s{S_CB}, s{S_T0}, 1
        s_add_u32 s{S_CB}, s{S_CB}, s{S_T2}
        s_lshr_b32 s{S_T1}, s{S_T1}, 3
        """)
    elif cfg.xmap == 2:
        a(f"""
        s_and_b32 s{S_T2}, s{S_T0}, 3
        s_lshl_b32 s{S_T2}, s{S_T2}, 2
        s_and_b32 s{S_RB}, s{S_T1}, 3
        s_add_u32 s{S_RB}, s{S_RB}, s{S_T2}
        s_and_b32 s{S_T2}, s{S_T0}, 4
        s_lshl_b32 s{S_T2}, s{S_T2}, 1
        s_lshr_b32 s{S_CB}, s{S_T1}, 2
        s_add_u32 s{S_CB}, s{S_CB}, s{S_T2}
        s_lshr_b32 s{S_T1}, s{S_T1}, 3
        """)
    else:
        a(f"""
        s_and_b32 s{S_T2}, s{S_T0}, 1
        s_lshl_b32 s{S_T2}, s{S_T2}, 3
        s_add_u32 s{S_RB}, s{S_T2}, s{S_CT8}
        s_lshr_b32 s{S_T1}, s{S_T1}, 3
        s_lshr_b32 s{S_T2}, s{S_T0}, 1
        s_lshl_b32 s{S_T2}, s{S_T2}, 2
        s_add_u32 s{S_CB}, s{S_T2}, s{S_T1}
        """)
    a(f"""
    s_lshl_b32 s{S_T2}, s{S_T0}, 2
    s_add_u32 s{S_RT64}, s{S_T2}, s{S_T1}
    s_and_b32 s{S_HW}, s{S_W}, 3
    s_lshl_b32 s{S_H4K}, s{S_HW}, 12
    v_lshlrev_b32 v{V_L16}, 4, v{V_LANE}
    s_mov_b32 s{R_X+2}, 0x200000
    s_mov_b32 s{R_X+3}, 0x20000
    s_cmp_ge_u32 s{S_W}, 4
    s_cbranch_scc1 L_helper
    """)

    sizes = cfg.sizes
    assert sum(sizes) == 64
    starts = [sum(sizes[:i]) for i in range(len(sizes))]
    S0, S1, PP, OO, CC, KF, VF = 16, 32, 48, 64, 80, 100, 108
    YY, HF, DF = 128, 160, 192
    HO = 160
    V_OA, V_PA = 126, 125
    OX, CX, QX = 224, 48, 96
    if cfg.pair: WOF = [240, 244, 248, 176, 180, 184, 188, 160, 48, 52, 164, 56, 60, 168, 96, 172]
    else: WOF = [48, 52, 56, 96, 60] + list(range(224, 252, 4)) + [176, 180, 184, 188]
    wo_rd = [f"ds_read_b64_tr_b16 {vr(WOF[2*j+ct] + 2*t,2)}, v{V_OA+ct} offset:{cfg.oord[j]*2048 + t*512}" for j in range(8) for ct in range(2) for t in range(2)]
    def kv_off(t):
        c = max(i for i in range(len(starts)) if starts[i] <= t)
        return ((c + 1) % 3) * 16384 + (t - starts[c]) * 2048
    qload = f"buffer_load_dwordx4 {vr(QF,4)}, v{V_L16}, {sr(R_WS,4)}, s{S_T2} offen sc1"

    XS = [2, 0, 1, 2, 0, 1, 2, 0]
    L_PX = L_X + XS[2]*16384
    def setup_ids():
        a(f"""
        s_lshr_b32 s{S_KQ}, s{S_W}, 1
        s_and_b32 s{S_RT}, s{S_W}, 1
        s_lshl_b32 s{S_T2}, s{S_RT64}, 1
        s_add_u32 s{S_T2}, s{S_T2}, s{S_RT}
        s_lshl_b32 s{S_T0}, s{S_T2}, 3
        s_add_u32 s{S_T0}, s{S_T0}, s{S_CT8}
        s_lshl_b32 s{S_T0}, s{S_T0}, 2
        s_add_u32 s{S_T0}, s{S_T0}, s{S_KQ}
        s_lshl_b32 s{S_T0}, s{S_T0}, 10
        s_add_u32 s{S_OST}, s{S_T0}, {WS_O}
        s_lshl_b32 s{S_T0}, s2, 7
        s_lshl_b32 s{S_T1}, s{S_W}, 2
        s_add_u32 s{S_T0}, s{S_T0}, s{S_T1}
        s_add_u32 s{S_FLG}, s{S_T0}, {WS_FL}
        """)
    def common_setup():
        srd(R_WD, P_WD, 1792 * 1024)
        srd(R_WO, P_WO, 512 * 1024)
        srd(R_OUT, P_OUT, 0x200000)
        a(f"""
        s_lshl_b32 s{S_W4K}, s{S_W}, 12
        s_lshl_b32 s{S_W2K}, s{S_W}, 11
        s_mov_b32 s{S_VM}, 0xffff
        s_mov_b32 s{S_VM+1}, 0xffff
        s_lshl_b32 s{S_T2}, s{S_RT64}, 1
        s_add_u32 s{S_T2}, s{S_T2}, s{S_RT}
        s_mul_i32 s{S_T0}, s{S_KQ}, {448*1024}
        s_lshl_b32 s{S_T1}, s{S_RT}, 15
        s_add_u32 s{S_T0}, s{S_T0}, s{S_T1}
        s_lshl_b32 s{S_T1}, s{S_CT8}, 7
        s_add_u32 s{S_WDO}, s{S_T0}, s{S_T1}
        s_lshl_b32 s{S_T0}, s{S_W}, 15
        s_add_u32 s{S_WOO}, s{S_T0}, s{S_T1}
        s_and_b32 s{S_T0}, s{S_CT8}, {1 if cfg.oswap else 0}
        s_lshl_b32 s{S_T16}, s{S_T0}, 18
        s_add_u32 s{S_WOO}, s{S_WOO}, s{S_T16}
        s_mul_i32 s{S_T0}, s{S_T2}, 112
        s_mul_i32 s{S_T3}, s{S_KQ}, 28
        s_add_u32 s{S_T0}, s{S_T0}, s{S_T3}
        s_lshl_b32 s{S_T0}, s{S_T0}, 10
        s_add_u32 s{S_HLD}, s{S_T0}, {WS_H}
        s_lshl_b32 s{S_T0}, s{S_T2}, 15
        s_lshl_b32 s{S_T3}, s{S_KQ}, 13
        s_add_u32 s{S_T3}, s{S_T0}, s{S_T3}
        s_lshr_b32 s{S_T0}, s{S_T16}, 4
        s_xor_b32 s{S_OLD}, s{S_T3}, s{S_T0}
        s_add_u32 s{S_OLD}, s{S_OLD}, {WS_O}
        s_add_u32 s{S_T0}, s{S_T3}, s{S_T1}
        v_lshrrev_b32 v3, 5, v{V_LANE}
        v_bfe_u32 v5, v{V_LANE}, 3, 1
        v_lshl_add_u32 v2, v3, 1, v5
        v_bfe_u32 v7, v{V_LANE}, 4, 1
        v_lshl_add_u32 v4, v7, 2, v2
        v_and_b32 v6, 7, v{V_LANE}
        v_lshlrev_b32 v8, 4, v6
        v_lshl_add_u32 v4, v4, 10, v8
        v_add_u32 v{V_FO}, s{S_T0}, v4
        v_lshlrev_b32 v2, 8, v2
        v_lshl_add_u32 v2, v7, 7, v2
        v_lshl_add_u32 v2, v5, 4, v2
        v_and_b32 v4, 3, v6
        v_lshl_add_u32 v2, v4, 5, v2
        v_lshrrev_b32 v4, 2, v6
        v_lshl_add_u32 v2, v4, 12, v2
        s_lshl_b32 s{S_T0}, s{S_RT}, 13
        s_lshl_b32 s{S_T1}, s{S_KQ}, 10
        s_add_u32 s{S_T0}, s{S_T0}, s{S_T1}
        v_add_u32 v{V_GA}, s{S_T0}, v2
        v_add_u32 v{V_KA}, {L_KV}, v{V_L16}
        v_and_b32 v2, 15, v{V_LANE}
        v_lshl_add_u32 v2, v3, 4, v2
        v_lshlrev_b32 v2, 4, v2
        v_add_u32 v{V_VA}, {L_KV + 1024}, v2
        v_lshrrev_b32 v5, 3, v{V_LANE}
        v_and_b32 v6, 7, v{V_LANE}
        v_bfe_u32 v7, v{V_LANE}, 4, 1
        v_lshlrev_b32 v8, 2, v7
        v_xor_b32 v6, v6, v8
        v_lshlrev_b32 v6, 4, v6
        v_lshl_add_u32 v{V_WDD}, v5, 10, v6
        v_and_b32 v2, 1, v{V_LANE}
        v_bfe_u32 v4, v{V_LANE}, 1, 1
        v_lshl_add_u32 v2, v2, 1, v4
        v_bfe_u32 v5, v{V_LANE}, 2, 2
        v_lshl_add_u32 v4, v3, 3, v5
        v_lshlrev_b32 v4, 7, v4
        v_and_b32 v6, 2, v5
        v_xor_b32 v6, v6, v7
        v_lshl_add_u32 v6, v6, 5, v4
        v_and_b32 v8, 3, v{V_LANE}
        v_lshl_add_u32 v6, v8, 3, v6
        v_lshl_add_u32 v4, v2, 3, v4
        s_lshl_b32 s{S_T0}, s{S_KQ}, 13
        s_add_u32 s{S_T0}, s{S_T0}, {L_WD}
        v_add_u32 v{V_DA}, s{S_T0}, v6
        v_xor_b32 v{V_DA+1}, 64, v{V_DA}
        """)
        a(f"""
        s_lshr_b32 s{S_T0}, s{S_RT64}, 1
        s_lshl_b32 s{S_T0}, s{S_T0}, 3
        s_lshl_b32 s{S_T1}, s{S_KQ}, 1
        s_add_u32 s{S_T0}, s{S_T0}, s{S_T1}
        s_lshl_b32 s{S_T0}, s{S_T0}, 7
        v_and_b32 v2, 3, v{V_LANE}
        v_lshlrev_b32 v6, 2, v2
        v_and_b32 v8, 1, v5
        v_lshl_add_u32 v6, v8, 14, v6
        v_lshrrev_b32 v8, 1, v5
        v_lshl_add_u32 v6, v8, 7, v6
        """ if cfg.xmap == 1 else f"""
        s_lshr_b32 s{S_T0}, s{S_RT64}, 3
        s_and_b32 s{S_T1}, s{S_KQ}, 2
        s_lshl_b32 s{S_T1}, s{S_T1}, 1
        s_add_u32 s{S_T0}, s{S_T0}, s{S_T1}
        s_bfe_u32 s{S_T2}, s{S_RT64}, 0x20001
        s_lshl_b32 s{S_T2}, s{S_T2}, 3
        s_add_u32 s{S_T0}, s{S_T0}, s{S_T2}
        s_and_b32 s{S_T1}, s{S_KQ}, 1
        s_lshl_b32 s{S_T1}, s{S_T1}, 7
        s_add_u32 s{S_T0}, s{S_T0}, s{S_T1}
        s_lshl_b32 s{S_T0}, s{S_T0}, 7
        s_lshl_b32 s{S_T1}, s{S_KQ}, 1
        v_and_b32 v2, 3, v{V_LANE}
        v_lshlrev_b32 v6, 2, v2
        v_lshl_add_u32 v6, v5, 12, v6
        """ if cfg.xmap == 2 else f"""
        s_lshr_b32 s{S_T0}, s{S_RT64}, 4
        s_lshl_b32 s{S_T1}, s{S_KQ}, 1
        s_add_u32 s{S_T0}, s{S_T0}, s{S_T1}
        s_bfe_u32 s{S_T2}, s{S_RT64}, 0x30001
        s_lshl_b32 s{S_T2}, s{S_T2}, 3
        s_add_u32 s{S_T0}, s{S_T0}, s{S_T2}
        s_lshl_b32 s{S_T0}, s{S_T0}, 7
        v_and_b32 v2, 3, v{V_LANE}
        v_lshlrev_b32 v6, 2, v2
        v_lshl_add_u32 v6, v5, 13, v6
        """)
        a(f"""
        v_add_u32 v6, s{S_T0}, v6
        s_lshr_b32 s{S_T0}, s{S_T16}, 16
        s_xor_b32 s{S_T1}, s{S_T1}, s{S_T0}
        s_and_b32 s{S_T0}, s2, 0xc7
        s_lshl_b32 s{S_T1}, s{S_T1}, 3
        s_add_u32 s{S_T0}, s{S_T0}, s{S_T1}
        s_lshl_b32 s{S_T0}, s{S_T0}, 7
        s_lshl_b32 s{S_T1}, s{S_RT}, 2
        s_add_u32 s{S_T0}, s{S_T0}, s{S_T1}
        v_and_b32 v8, 1, v5
        v_lshlrev_b32 v8, 10, v8
        v_lshl_add_u32 v8, v2, 3, v8
        v_cmp_gt_u32 vcc, 16, v{V_LANE}
        v_add_u32 v8, s{S_T0}, v8
        s_nop 0
        v_cndmask_b32 v{V_PO}, v8, v6, vcc
        """)

    def img_params(simg, sstride, soff):
        a(f"""
        s_lshr_b32 s{S_T0}, s{S_CB}, 2
        s_and_b32 s{S_T1}, s{S_CB}, 3
        s_mul_i32 s{soff}, s{S_T0}, 896
        s_lshl_b32 s{S_T2}, s{S_T1}, 8
        s_add_u32 s{soff}, s{soff}, s{S_T2}
        s_lshr_b32 s{S_T2}, s{simg}, 1
        s_lshl_b32 s{S_T1}, s{S_T1}, 1
        s_add_u32 s{S_T1}, s{S_T1}, s{S_T2}
        s_lshl_b32 s{S_T2}, s{S_T2}, 7
        s_add_u32 s{soff}, s{soff}, s{S_T2}
        s_lshl_b32 s{S_T0}, s{S_T0}, 1
        s_and_b32 s{S_T2}, s{simg}, 1
        s_add_u32 s{S_T0}, s{S_T0}, s{S_T2}
        s_lshl_b32 s{S_T0}, s{S_T0}, 7
        s_movk_i32 s{sstride}, 3584
        s_cmp_eq_u32 s{S_T1}, 7
        s_cselect_b32 s{soff}, s{S_T0}, s{soff}
        s_cselect_b32 s{sstride}, 1024, s{sstride}
        """)
    def img_srd(r, sstride):
        a(f"""
        s_cmp_eq_u32 s{S_T2}, 0
        s_cselect_b32 s{r}, s{P_WG}, s{P_WU}
        s_cselect_b32 s{r+1}, s{P_WG+1}, s{P_WU+1}
        s_cmp_eq_u32 s{S_T1}, 7
        s_cselect_b32 s{r}, s{P_WQ}, s{r}
        s_cselect_b32 s{r+1}, s{P_WQ+1}, s{r+1}
        s_and_b32 s{r+1}, s{r+1}, 0xffff
        s_lshl_b32 s{r+2}, s{sstride}, 9
        s_mov_b32 s{r+3}, 0x20000
        """)

    ACC, XF, WF, V_XA, V_WR = 16, 144, 176, 248, 250
    RWP, RWQ, RA = 216, 232, 2
    L_RA = L_W + 8192
    def acc(ti, rt): return ACC + 64*ti + 16*rt
    KG = 2.0 * math.sqrt(2.0 / math.pi) * math.log2(math.e)
    a('; ==== waves 0..3, start: K or V tile of 16 rows (LayerNorm folded in), row statistics, share of the W column sums ====')
    assert cfg.krot == 8 and cfg.g_init in (-1, 0, 2)
    CL, CSUM = 16, 40
    a(f"""
    v_and_b32 v5, 15, v{V_LANE}
    v_lshrrev_b32 v6, 4, v{V_LANE}
    v_lshrrev_b32 v7, 3, v{V_LANE}
    v_and_b32 v4, 7, v{V_LANE}
    s_lshl_b32 s{S_T16}, s{S_RB}, 3
    s_lshr_b32 s{S_T2}, s{S_CB}, 1
    s_add_u32 s{S_T16}, s{S_T16}, s{S_T2}
    s_cmp_lg_u32 s{S_HW}, 0
    s_cbranch_scc1 L_csld
    v_xor_b32 v2, v6, v4
    v_lshlrev_b32 v2, 4, v2
    v_lshl_add_u32 v132, v7, 10, v2
    v_xor_b32 v133, 64, v132
    v_add_u32 v133, {8192-1024}, v133
    s_lshl_b32 s{S_XOFF}, s{S_T16}, 14
    s_mov_b32 s{R_WKV+2}, 0x4000
    s_mov_b32 s{R_WKV+3}, 0x20000
    s_mov_b32 m0, {L_PX}
    s_and_b32 s{S_T3}, s{S_CB}, 1
    s_waitcnt lgkmcnt(0)
    """)
    stamp()
    a(f"s_mov_b32 s{R_X}, s{P_X}\ns_and_b32 s{R_X+1}, s{P_X+1}, 0xffff")
    for gq in range(4):
        for kb in (2*gq, 2*gq + 1):
            if kb: a(f"s_mov_b32 m0, {L_PX + 2048*kb}\ns_add_u32 s{S_XOFF}, s{S_XOFF}, 128")
            a(f"buffer_load_dwordx4 v132, {sr(R_X,4)}, s{S_XOFF} offen lds\nbuffer_load_dwordx4 v133, {sr(R_X,4)}, s{S_XOFF} offen offset:1024 lds")
        if gq == 0:
            a(f"s_cmp_eq_u32 s{S_T3}, 0\ns_cselect_b32 s{R_WKV}, s{P_WK}, s{P_WV}\ns_cselect_b32 s{R_WKV+1}, s{P_WK+1}, s{P_WV+1}\ns_and_b32 s{R_WKV+1}, s{R_WKV+1}, 0xffff")
        a(f"s_mov_b32 m0, {L_R + 4096*gq}\ns_movk_i32 s{S_T0}, {4096*gq}")
        for e in range(4): a(f"buffer_load_dwordx4 v{V_L16}, {sr(R_WKV,4)}, s{S_T0} offen offset:{1024*e} lds")
        if cfg.p0 and gq + 1 == cfg.p0[0]:
            stamp(name=1); a("s_barrier"); stamp(name=2)
    n_ool = len(a.lines)
    if cfg.cs_in: a("s_branch L_ld_done")
    a.label("L_csld")
    a(f"s_and_b32 s{S_CNT}, s{S_RB}, 3")
    img_params(S_CNT, S_WSTEP, S_WOFF)
    a(f"""
    s_and_b32 s{S_T0}, s{S_RB}, 4
    s_and_b32 s{S_T3}, s{S_RB}, 8
    s_lshl_b32 s{S_T3}, s{S_T3}, 2
    s_add_u32 s{S_T0}, s{S_T0}, s{S_T3}
    s_lshl_b32 s{S_T0}, s{S_T0}, 3
    s_mul_i32 s{S_T0}, s{S_T0}, s{S_WSTEP}
    s_add_u32 s{S_WOFF}, s{S_T0}, s{S_WOFF}
    v_mul_u32_u24 v8, s{S_WSTEP}, v7
    v_lshl_add_u32 v219, v4, 4, v8
    s_waitcnt lgkmcnt(0)
    """)
    nst[0] = 0
    stamp()
    a(f"s_mov_b32 s{R_X}, s{P_X}\ns_and_b32 s{R_X+1}, s{P_X+1}, 0xffff")
    img_srd(R_CW, S_WSTEP)
    a(f"s_lshl_b32 s{S_WSTEP}, s{S_WSTEP}, 3")
    def csload(i):
        t = (f"s_add_u32 s{S_T0}, s{S_HW}, {3*i - 1}\ns_and_b32 s{S_T1}, s{S_T0}, 28\ns_add_u32 s{S_T1}, s{S_T1}, s{S_T0}\ns_mul_i32 s{S_T1}, s{S_T1}, s{S_WSTEP}\ns_add_u32 s{S_T1}, s{S_T1}, s{S_WOFF}\n")
        if i == 5: t += f"s_cmp_gt_u32 s{S_T0}, 15\ns_cselect_b32 s{S_T1}, s{R_CW+2}, s{S_T1}\n"
        return t + f"buffer_load_dwordx4 {vr(CL+4*i,4)}, v219, {sr(R_CW,4)}, s{S_T1} offen"
    for i in range(6):
        a(csload(i))
        if cfg.p0 and i + 1 == cfg.p0[1]:
            stamp(name=1); a("s_barrier"); stamp(name=2)
    if not cfg.cs_in:
        a("s_branch L_ld_done")
        ool = a.lines[n_ool:]; del a.lines[n_ool:]
    a.label("L_ld_done")
    a(f"""
    s_mov_b32 s{S_ONES}, 0x3f803f80
    v_lshlrev_b32 v2, 3, v5
    v_lshl_add_u32 v2, v6, 8, v2
    v_add_u32 v130, {L_R}, v2
    v_lshrrev_b32 v3, 1, v5
    v_xor_b32 v3, v3, v6
    v_lshlrev_b32 v3, 4, v3
    v_lshl_add_u32 v3, v5, 7, v3
    v_mov_b32 v{V_XA}, v3
    v_xor_b32 v{V_XA+1}, 64, v3
    v_lshrrev_b32 v3, 5, v{V_LANE}
    v_and_b32 v7, 1, v6
    v_bfe_u32 v8, v{V_LANE}, 2, 2
    v_lshl_add_u32 v4, v6, 3, v8
    v_lshlrev_b32 v4, 7, v4
    v_and_b32 v2, 3, v{V_LANE}
    v_lshl_add_u32 v4, v2, 3, v4
    v_lshrrev_b32 v8, 1, v8
    v_lshl_add_u32 v8, v7, 1, v8
    v_xor_b32 v8, s{S_HW}, v8
    v_lshl_add_u32 v8, v8, 5, v4
    v_add_u32 v{V_WR}, {L_W}, v8
    v_add_u32 v{V_WR+1}, {L_W + 49152}, v8
    s_lshr_b32 s{S_EX}, s{S_T16}, 1
    s_lshl_b32 s{S_EX}, s{S_EX}, 11
    s_and_b32 s{S_T3}, s{S_T16}, 1
    s_and_b32 s{S_T2}, s{S_CB}, 1
    s_cmp_eq_u32 s{S_T2}, 0
    s_cbranch_scc0 L_pubV
    s_lshl_b32 s{S_T3}, s{S_T3}, 8
    s_add_u32 s{S_EX}, s{S_EX}, s{S_T3}
    v_lshl_add_u32 v2, v3, 5, v5
    s_lshl_b32 s{S_EX+1}, s{S_T16}, 10
    s_add_u32 s{S_EX+1}, s{S_EX+1}, {WS_ST}
    s_branch L_pub
    """)
    a.label("L_pubV")
    a(f"""
    s_lshl_b32 s{S_T3}, s{S_T3}, 9
    s_add_u32 s{S_EX}, s{S_EX}, s{S_T3}
    s_add_u32 s{S_EX}, s{S_EX}, 1024
    v_and_b32 v2, 3, v5
    v_bfe_u32 v4, v5, 2, 1
    v_lshl_add_u32 v2, v4, 3, v2
    v_bfe_u32 v4, v5, 3, 1
    v_lshl_add_u32 v2, v4, 2, v2
    v_lshl_add_u32 v2, v3, 4, v2
    s_mov_b32 s{S_EX+1}, {WS_SIZE}
    """)
    a.label("L_pub")
    a("v_lshlrev_b32 v2, 4, v2\nv_lshl_add_u32 v220, v7, 3, v2")
    def capture(fn):
        n = len(a.lines); fn(); L = a.lines[n:]; del a.lines[n:]; return L
    def part1():
        srd(R_WS, P_WS, WS_SIZE)
        a(f"""
        v_and_b32 v6, 7, v{V_LANE}
        v_lshrrev_b32 v4, 4, v{V_LANE}
        v_lshl_add_u32 v6, v6, 2, v4
        v_bfe_u32 v4, v{V_LANE}, 3, 1
        v_lshl_add_u32 v6, v6, 1, v4
        v_lshlrev_b32 v222, 2, v6
        s_lshl_b32 s{S_T0}, s{S_CB}, 14
        s_lshl_b32 s{S_T1}, s{S_RB}, 10
        s_add_u32 s{S_T0}, s{S_T0}, s{S_T1}
        s_lshl_b32 s{S_T1}, s{S_HW}, 8
        s_add_u32 s{S_T0}, s{S_T0}, s{S_T1}
        s_add_u32 s{S_CNT}, s{S_T0}, {WS_CS}
        """)
    def part2():
        setup_ids()
        for i in range(4): a(f"v_mov_b32 v{12+i}, -1")
        common_setup()
        a(f"""
        v_and_b32 v2, 0xff, v{V_L16}
        v_add_u32 v11, {L_R + 256}, v2
        v_xor_b32 v6, v3, v7
        v_lshl_add_u32 v2, v6, 9, v2
        v_add_u32 v10, {L_R}, v2
        s_lshl_b32 s{S_T0}, s{S_HW}, 11
        v_add_u32 v254, s{S_T0}, v{V_L16}
        s_mul_i32 s{S_T0}, s{S_HW}, 2208
        v_lshl_add_u32 v9, v3, 4, v{V_L16}
        v_add_u32 v9, s{S_T0}, v9
        s_lshr_b32 s{S_T0}, s{S_CB}, 2
        s_and_b32 s{S_T1}, s{S_CB}, 3
        s_mul_i32 s{S_T2}, s{S_RB}, 448
        s_mul_i32 s{S_T3}, s{S_T0}, 28
        s_add_u32 s{S_T2}, s{S_T2}, s{S_T3}
        s_lshl_b32 s{S_T3}, s{S_T1}, 3
        s_add_u32 s{S_T2}, s{S_T2}, s{S_T3}
        s_add_u32 s{S_T2}, s{S_T2}, s{S_HW}
        s_lshl_b32 s{S_T2}, s{S_T2}, 10
        s_add_u32 s{S_HST}, s{S_T2}, {WS_H}
        s_add_u32 s{S_HSB}, s{S_HST}, 4096
        s_lshl_b32 s{S_T2}, s{S_RB}, 7
        s_lshl_b32 s{S_T3}, s{S_T0}, 3
        s_add_u32 s{S_T2}, s{S_T2}, s{S_T3}
        s_add_u32 s{S_T2}, s{S_T2}, s{S_HW}
        s_lshl_b32 s{S_T2}, s{S_T2}, 10
        s_add_u32 s{S_T2}, s{S_T2}, {WS_Q}
        """)
    defer1 = capture(part1)
    defer2 = capture(part2) + [f"s_cmp_eq_u32 s{S_T1}, 3\ns_cselect_b32 s{S_HSB}, s{S_T2}, s{S_HSB}"]
    for l in defer1: a(l)
    defer1.clear()
    a(f"s_cmp_lg_u32 s{S_HW}, 0\ns_cbranch_scc1 L_cs")
    PF, PACC, PCS, PRS, PG, PSQ, PONE, PID, PSQP, PF1 = 16, 80, 84, 88, 92, 96, 100, 104, 106, 107
    for i in range(4): a(f"v_mov_b32 v{PONE+i}, s{S_ONES}")
    a(f"v_mov_b32 v{PF1}, 1.0\nv_mov_b32 v{PSQP}, 0\nv_mov_b32 v{PID}, 0\nv_mov_b32 v{PID+1}, 0\nv_mov_b32 v221, 0")
    a(f"s_mov_b32 s{S_T0}, 0x00100001\ns_mov_b32 s{S_T1}, 0x10000100")
    for r in range(4): a(f"s_lshl_b64 exec, {sr(S_T0,2)}, {r}\nv_mov_b32 v{PID + (r >> 1)}, {hex(0x4780 << (16*(r & 1)))}")
    a("s_mov_b64 exec, -1")
    if not cfg.p0: a("s_barrier")
    stamp(name=3)
    def p_reads(gq):
        f = PF + 32*(gq & 1); L = []
        for s in range(4):
            L.append(f"ds_read_b128 {vr(f+8*s,4)}, v{V_XA + (s & 1)} offset:{L_PX + 4096*gq + 2048*(s >> 1)}")
            L += [f"ds_read_b64_tr_b16 {vr(f+8*s+4+2*t,2)}, v130 offset:{4096*gq + 1024*s + 128*t}" for t in range(2)]
        return L
    a("s_waitcnt vmcnt(24)")
    for l in p_reads(0): a(l)
    for gq in range(4):
        a("s_waitcnt lgkmcnt(0)")
        rd = p_reads(gq + 1) if gq < 3 else []
        k = 0
        for s in range(4):
            x, w = PF + 32*(gq & 1) + 8*s, PF + 32*(gq & 1) + 8*s + 4
            for d, A_, B_ in ((PG, x, x), (PRS, PONE, x), (PCS, w, PONE), (PACC, w, x)):
                a(mfma16(d, A_, B_, None if gq + s == 0 else d))
                if k == 3 and gq < 3:
                    a(f"s_waitcnt vmcnt({16 - 8*gq})")
                    if gq == 2: stamp(); stamp(name=4)
                if k >= 3 and rd: a(rd.pop(0))
                k += 1
    a.nop(4)
    for r in range(4): a(f"s_lshl_b64 exec, {sr(S_T0,2)}, {r}\nv_mov_b32 v{PSQP}, v{PG+r}")
    a(f"""
    s_mov_b64 exec, -1
    v_mul_f32 v{PRS}, {hex(f2u(-1.0/512))}, v{PRS}
    v_mfma_f32_16x16x4_f32 {vr(PSQ,4)}, v{PF1}, v{PSQP}, 0
    """)
    for i in range(4): a(f"v_fmac_f32 v{PACC+i}, v{PRS}, v{PCS+i}")
    a(f"""
    v_cvt_pk_bf16_f32 v12, v{PRS}, v{PRS}
    v_and_b32 v2, 0xffff0000, v12
    v_sub_f32 v2, v{PRS}, v2
    v_cvt_pk_bf16_f32 v12, v{PRS}, v2
    s_and_b32 s{S_T2}, s{S_CB}, 1
    s_cmp_eq_u32 s{S_T2}, 0
    v_mul_f32 v14, {hex(f2u(1.0/512))}, v{PSQ}
    v_fma_f32 v14, -v{PRS}, v{PRS}, v14
    v_max_f32 v14, 0, v14
    v_add_f32 v14, {hex(f2u(1e-5))}, v14
    v_rsq_f32 v3, v14
    s_nop 0
    """)
    for i in range(4): a(f"v_mul_f32 v{PACC+i}, v{PACC+i}, v3")
    a(f"""
    v_cvt_pk_bf16_f32 v216, v{PACC}, v{PACC+1}
    v_cvt_pk_bf16_f32 v217, v{PACC+2}, v{PACC+3}
    s_cbranch_scc0 L_preV
    s_mov_b32 exec_lo, 0
    v_mov_b32 v12, 0
    s_and_b32 s{S_T0}, s{S_T16}, 1
    s_sub_u32 exec_lo, s{S_T0}, 1
    s_mov_b32 exec_hi, exec_lo
    v_swap_b32 v12, v14
    s_mov_b32 exec_lo, 0xffff0000
    s_mov_b32 exec_hi, 0
    v_mul_f32 v12, {hex(f2u(-KG))}, v3
    v_mul_f32 v2, v3, v3
    v_mul_f32 v14, {hex(f2u(0.044715))}, v12
    v_mul_f32 v14, v14, v2
    s_mov_b64 exec, -1
    v_mov_b32 v13, v12
    v_mov_b32 v15, v14
    s_branch L_nofin
    """)
    a.label("L_preV")
    a(f"s_nop 0\nv_mfma_f32_16x16x16_bf16 {vr(PACC,4)}, v[216:217], {vr(PID,2)}, 0")
    a.nop(8)
    a(f"v_cvt_pk_bf16_f32 v216, v{PACC}, v{PACC+1}\nv_cvt_pk_bf16_f32 v217, v{PACC+2}, v{PACC+3}\ns_branch L_nofin")
    n_ool = len(a.lines)
    a.label("L_cs")
    if not cfg.p0: a("s_barrier")
    stamp(name=3)
    touch("g", 1, 3, 4)
    for e in range(6):
        a(f"s_waitcnt vmcnt({5 - e})")
        for i in range(4):
            if e == 0: a(f"v_lshlrev_b32 v{CSUM+2*i}, 16, v{CL+i}\nv_and_b32 v{CSUM+2*i+1}, 0xffff0000, v{CL+i}")
            else: a(f"v_lshlrev_b32 v2, 16, v{CL+4*e+i}\nv_and_b32 v3, 0xffff0000, v{CL+4*e+i}\nv_add_f32 v{CSUM+2*i}, v{CSUM+2*i}, v2\nv_add_f32 v{CSUM+2*i+1}, v{CSUM+2*i+1}, v3")
    stamp(name=4)
    for j in range(4): a(f"v_permlane32_swap_b32 v{CSUM+j}, v{CSUM+4+j}")
    for j in (0, 2, 1, 3): a(f"v_add_f32 v{CSUM+j}, v{CSUM+j}, v{CSUM+4+j}")
    a(f"v_permlane16_swap_b32 v{CSUM}, v{CSUM+2}\ns_nop 0\nv_permlane16_swap_b32 v{CSUM+1}, v{CSUM+3}")
    a(f"v_add_f32 v{CSUM}, v{CSUM}, v{CSUM+2}\nv_add_f32 v{CSUM+1}, v{CSUM+1}, v{CSUM+3}\ns_nop 0")
    a(f"v_add_f32_dpp v221, v{CSUM}, v{CSUM} row_ror:8 row_mask:0xf bank_mask:0xf\nv_add_f32_dpp v221, v{CSUM+1}, v{CSUM+1} row_ror:8 row_mask:0xf bank_mask:0xc")
    if cfg.cs_in:
        a("s_branch L_nofin")
        ool = a.lines[n_ool:]; del a.lines[n_ool:]
    a.label("L_nofin")
    stamp(name=5)
    init = [f"buffer_store_dword v221, v222, {sr(R_WS,4)}, s{S_CNT} offen sc1",
            f"s_cmp_lg_u32 s{S_HW}, 0\ns_cbranch_scc1 L_nopub\n"
            f"buffer_store_dwordx2 v[216:217], v220, {sr(R_WS,4)}, s{S_EX} offen sc1\n"
            f"buffer_store_dwordx4 v[12:15], v{V_L16}, {sr(R_WS,4)}, s{S_EX+1} offen sc1\nL_nopub:"]
    if cfg.g_init == -1:
        for l in init: a(l)
    brk("g")
    stamp(name=6)
    a("s_barrier")
    nst[0] = 2
    stamp(name="b0"); pad("b0"); c12(0)
    HS = [divmod(g, 2) for g in range(28)] + [(14, 0), (15, 0), (14, 1), (15, 1)]
    def wf(K, mt): return WF + 16*((K + 1) & 1) + 4*mt
    def x_reads(g):
        K, nh = HS[g]
        return [f"ds_read_b128 {vr(XF+16*(g&1)+4*i,4)}, v{V_XA+(K&1)} offset:{XS[K>>1]*16384 + (4*nh+i)*2048}" for i in range(4)]
    def w_reads(K):
        slot = ((K >> 1) + 2) % 3
        return [f"ds_read_b64_tr_b16 {vr(wf(K,mt)+2*t,2)}, v{V_WR+(mt>>1)} offset:{(mt&1)*24576 + slot*8192 + (K&1)*4096 + t*512}" for mt in range(4) for t in range(2)]
    def mm(g, mt, i):
        K, nh = HS[g]; nt = 4*nh + i
        d = acc(mt >> 1, nt >> 1) + 8*(mt & 1) + 4*(nt & 1)
        return mfma16(d, wf(K, mt), XF + 16*(g&1) + 4*i, None if K == 0 else d)
    def rw_reads(rt, dst): return [f"ds_read_b128 {vr(dst+4*i,4)}, v{10 + (i >> 1)} offset:{2048*rt + 1024*(i & 1)}" for i in range(4)]
    op_reads = [f"ds_read_b128 {vr(RA+4*i,4)}, v9 offset:{L_RA + 1056*i}" for i in range(2)] + rw_reads(0, RWP) + rw_reads(1, RWQ)
    def rank1(ti, rt, rw): return mfma32(acc(ti, rt), RA + 4*ti, rw + 2, acc(ti, rt))
    def split2(src, dst, dup):
        if dup:
            return [f"v_cvt_pk_bf16_f32 v{dst}, v{src}, v{src}", f"v_and_b32 v2, 0xffff0000, v{dst}", f"v_sub_f32 v2, v{src}, v2", f"v_cvt_pk_bf16_f32 v{dst+1}, v2, v2"]
        return [f"v_cvt_pk_bf16_f32 v{dst}, v{src}, v{src}", f"v_and_b32 v2, 0xffff0000, v{dst}", f"v_sub_f32 v2, v{src}, v2", f"v_cvt_pk_bf16_f32 v{dst}, v{src}, v2", f"v_mov_b32 v{dst+1}, v{dst}"]
    w = w_reads(0)
    for l in w[:2] + x_reads(0) + w[2:]: a(l)
    def half_step(g):
        K, nh = HS[g]
        neww = g == 0 or HS[g-1][0] < K and g != 31
        gaps = [[] for _ in range(16)]
        o = 0
        if g & 3 == 3 and g < 28 or g == cfg.g_h:
            gaps[0] = ["s_barrier"]; o = 1
        rd = x_reads(g + 1) if g < 31 else rw_reads(2, WF + 16)
        if g < 29 and HS[g+1][0] > K:
            w = w_reads(K + 1); rd = w[:2] + rd + w[2:]
        if g == cfg.g_h: rd += op_reads
        if cfg.nord: rd = []
        for i, l in enumerate(rd): gaps[o + i].append(l)
        if neww:
            top = "lgkmcnt(4)"
            gaps[7].append(f"s_waitcnt lgkmcnt({min(len(rd), 8 - o)})")
        else: top = "lgkmcnt(10)" if g == cfg.g_h + 1 else "lgkmcnt(0)"
        brk("g" if g < 28 else "e")
        a("s_waitcnt " + ("vmcnt(0) " if g == 4*cfg.c_arr + 3 else "") + top)
        if g == cfg.g_init: gaps[9].append(init[0]); gaps[12].append(init[1])
        dl = defer1 if g <= cfg.g_init else defer2
        for k in range(16):
            if not gaps[k]:
                gaps[k] = dl[:2]; del dl[:2]
        assert not (g >= 2 and defer1) and not (g >= 27 and defer2)
        for k in range(16):
            a(mm(g, k >> 2, k & 3))
            for l in gaps[k]: a(l)
            if g == 31 and k == 3: a(("s_waitcnt lgkmcnt(4)\n" if cfg.g_h == 30 else "") + rank1(0, 0, RWP))
            if k == 0 and (g == 27 or (cfg.stamps == 4 and g & 3 == 3)): stamp()
            if k == 0 and g in (3, 27): c12(1 if g == 3 else 2)
            if k == 15 and g >= cfg.g_tr and g & 1 == 0 and cfg.stamps == 10 and ncs[0] < 6: a(f"s_memtime {sr([32, 34, 92, 94, 96, 98][ncs[0]], 2)}"); ncs[0] += 1
    for g in range(30): half_step(g)
    def swaps(o): return [f"v_permlane16_swap_b32 v{o}, v{o+2}", f"v_permlane16_swap_b32 v{o+1}, v{o+3}"]
    def gelu(ti, rt, rw, mf=(), pre=()):
        A = acc(ti, rt)
        def b(i): return rw + 8 + 4*(i >> 2)
        def vp(i): return rw + 6*(i >> 2)
        t1, t2, o = 144, 152, HO + 16*ti + 4*rt
        L = [".p2align 3"]
        for i in range(0, 8, 2): L.append(f"v_pk_mul_f32 {vr(t1+i,2)}, {vr(A+i,2)}, {vr(A+i,2)}")
        L += pre
        for i in range(0, 8, 2): L.append(f"v_pk_fma_f32 {vr(t1+i,2)}, {vr(t1+i,2)}, {vr(b(i)+2,2)}, {vr(b(i),2)}")
        for i in range(0, 8, 2): L.append(f"v_pk_mul_f32 {vr(t1+i,2)}, {vr(t1+i,2)}, {vr(A+i,2)}")
        L += mf
        for i in range(8): L.append(f"v_exp_f32 v{t1+i}, v{t1+i}")
        for i in range(0, 8, 2): L.append(f"v_pk_mul_f32 {vr(t2+i,2)}, {vr(A+i,2)}, {vr(A+8+i,2)}")
        for i in range(0, 8, 2): L.append(f"v_pk_fma_f32 {vr(t1+i,2)}, {vr(t1+i,2)}, {vr(vp(i),2)}, {vr(vp(i),2)}")
        for i in range(8): L.append(f"v_rcp_f32 v{t1+i}, v{t1+i}")
        for i in range(0, 8, 2): L.append(f"v_pk_mul_f32 {vr(t2+i,2)}, {vr(t2+i,2)}, {vr(t1+i,2)}")
        for i in range(4): L.append(f"v_cvt_pk_bf16_f32 v{o+i}, v{t2+2*i}, v{t2+2*i+1}")
        return L
    def qtile(rt, rw):
        A = acc(1, rt); qs = hex(f2u(-0.25*math.log2(math.e)/KG))
        L = [f"v_mul_f32 v{12+i}, {qs}, v{rw + 8 + 4*(i >> 1)}" for i in range(4)]
        L += [f"s_add_u32 s{S_T0}, s{S_HSB}, {32768*rt}", f"s_add_u32 s{S_T1}, s{S_T0}, 4096"]
        for hd in range(2):
            h = A + 8*hd
            for i in range(0, 8, 2): L.append(f"v_pk_mul_f32 {vr(h+i,2)}, {vr(h+i,2)}, {vr(12 + 2*(i >> 2),2)}")
            for i in range(4): L.append(f"v_cvt_pk_bf16_f32 v{h+i}, v{h+2*i}, v{h+2*i+1}")
            for i in (0, 2, 1, 3): L.append(f"v_min_u32 v{h+i}, -2, v{h+i}")
            L += [swaps(h)[0], "s_nop 0", swaps(h)[1]]
            L.append(f"buffer_store_dwordx4 {vr(h,4)}, v{V_L16}, {sr(R_WS,4)}, s{S_T0 + hd} offen sc1")
        return L
    L_HQ = L_KV + 49152
    def att_regs():
        a(f"""
        v_and_b32 v5, 27, v{V_LANE}
        v_cmp_eq_u32 vcc, 16, v5
        v_mov_b32 v6, 0x47804780
        v_mov_b32 v{V_IDX}, 0xdddddddd
        v_mov_b32 v11, 1
        v_cndmask_b32 v{VF}, 0, v6, vcc
        v_mov_b32 v{VF+1}, v{VF}
        """)
        for i in range(2, 16, 2): a(f"v_mov_b64 {vr(VF+i,2)}, {vr(VF,2)}")
        for i in range(0, 16, 2): a(f"v_mov_b64 {vr(OO+i,2)}, 0")
        if cfg.pair:
            for i in range(0, 16, 2): a(f"v_mov_b64 {vr(OX+i,2)}, 0")
            a(f"s_lshl_b32 s{S_T0}, s{S_HW}, 11\nv_add_u32 v{V_PA}, s{S_T0}, v{V_L16}")
        a(f"s_lshl_b32 s{S_T0}, s{S_KQ}, 13\ns_add_u32 s{S_T0}, s{S_T0}, {L_WO - L_WD}\nv_add_u32 v{V_OA}, s{S_T0}, v{V_DA}\nv_xor_b32 v{V_OA+1}, 64, v{V_OA}")
    def kv_first(half=0):
        if cfg.pair:
            a(f"ds_read_b128 {vr(KF,4)}, v{V_KA} offset:{kv_off(half)}")
            if half: a(f"ds_read_b128 {vr(KF+4,4)}, v{V_KA} offset:{kv_off(0)}")
            a(f"s_mov_b64 exec, {sr(S_VM,2)}\nds_read_b128 {vr(VF,4)}, v{V_VA} offset:{kv_off(half)}\nds_read_b128 {vr(VF+4,4)}, v{V_VA} offset:{kv_off(half) + 512}\ns_mov_b64 exec, -1")
            return
        a(f"ds_read_b128 {vr(KF,4)}, v{V_KA} offset:{kv_off(0)}\nds_read_b128 {vr(KF+4,4)}, v{V_KA} offset:{kv_off(1)}")
        a(f"s_mov_b64 exec, {sr(S_VM,2)}\nds_read_b128 {vr(VF,4)}, v{V_VA} offset:{kv_off(0)}\ns_mov_b64 exec, -1")
    a(f"s_and_b32 s{S_T1}, s{S_CB}, 3\ns_cmp_eq_u32 s{S_T1}, 3\ns_cbranch_scc1 L_qt")
    half_step(30); half_step(31)
    n0 = nst[0]
    stamp(name="g1"); pad("g1"); c12(3)
    RWS = [RWP, RWQ, WF + 16, RWP]
    order = [(ti, rt) for rt in range(4) for ti in range(2)]
    for i, (ti, rt) in enumerate(order):
        if i == 2:
            for l in rw_reads(3, RWS[3]): a(l)
        brk("e")
        if i in (3, 5): a("s_waitcnt lgkmcnt(0)")
        if i == cfg.i_q or (cfg.e7 and i == 1): a("s_barrier")
        nx = order[i+1] if i < 7 else None
        pv = order[i-1] if i else None
        for l in gelu(ti, rt, RWS[rt], [rank1(*nx, RWS[nx[1]])] if nx else [], swaps(HO + 16*pv[0] + 4*pv[1]) if pv else []): a(l)
    a("s_nop 1")
    for l in swaps(HO + 16 + 12): a(l)
    a("s_branch L_joinA")
    far("L_qt")
    RWS = [RWP, RWQ, acc(1, 0), acc(1, 1)]
    if cfg.g_h == 30:
        a("s_barrier")
        for l in op_reads: a(l)
    for l in x_reads(31): a(l)
    a("s_waitcnt lgkmcnt(4)\ns_nop 0")
    a(rank1(1, 0, RWP)); a(rank1(1, 1, RWQ))
    a.nop(5)
    for rt in range(2):
        for l in qtile(rt, RWS[rt]): a(l)
        brk("e")
    a("s_waitcnt lgkmcnt(0)")
    rd = rw_reads(2, RWS[2]) + rw_reads(3, RWS[3])
    for g in (30, 31):
        for k in range(8, 16):
            a(mm(g, k >> 2, k & 3))
            if rd: a(rd.pop(0))
    a("s_waitcnt lgkmcnt(0)\ns_nop 3")
    a(rank1(1, 2, RWS[2])); a(rank1(1, 3, RWS[3]))
    a.nop(5)
    for rt in (2, 3):
        for l in qtile(rt, RWS[rt]): a(l)
        brk("e")
    a(rank1(0, 0, RWP))
    for g in (30, 31):
        for k in range(8): a(mm(g, k >> 2, k & 3))
    nst[0] = n0
    stamp(name="g1")
    a(f"s_mov_b32 s{S_HSB}, {WS_SIZE}")
    for i in range(4): a(f"v_mov_b32 v{12+i}, -1")
    for rt in range(4):
        brk("e")
        if cfg.e7 and rt == 0: a("s_barrier")
        if rt == cfg.i_qb: a("s_barrier")
        for l in gelu(0, rt, RWS[rt], [rank1(0, rt + 1, RWS[rt + 1])] if rt < 3 else [], swaps(HO + 4*(rt - 1)) if rt else []): a(l)
    a("s_nop 1")
    for l in swaps(HO + 12): a(l)
    far("L_joinA", True)
    nst[0] = 12 if cfg.stamps == 4 else 5
    stamp()
    c12(4)
    if not cfg.gpos:
        att_regs()
        kv_first()
    a("s_barrier")
    stamp(name="att0"); pad("att0")
    a(f"ds_read_b128 {vr(QF,4)}, v254 offset:{L_HQ}")
    for i in range(4): a(f"ds_read_b128 {vr(CC+4*i,4)}, v254 offset:{L_HQ + 1024}")
    if cfg.gpos:
        att_regs()
        kv_first()
    if cfg.pair:
        a(f"ds_read_b128 {vr(QX,4)}, v254 offset:{L_HQ + 8192}")
        for i in range(4): a(f"ds_read_b128 {vr(CX+4*i,4)}, v254 offset:{L_HQ + 8192 + 1024}")
    a("s_waitcnt lgkmcnt(5)" if cfg.pair else "s_waitcnt lgkmcnt(0)")
    a(mfma32(S0, KF, QF, CC))
    if cfg.pair: a.nop(4)
    c12(5)
    a("s_nop 3\ns_branch L_attA")

    a.lines += ool
    a.label("L_helper")
    V_XD, V_WD = 192, 194
    PX, PW = 8, 24
    PACC, PCS, PRS, PSQ = 40, 44, 48, 52
    PONE, PSQP, PF1 = 56, 60, 61
    RD = 64
    a(f"""
    s_lshl_b32 s{S_XOFF}, s{S_RB}, 17
    s_lshl_b32 s{S_T0}, s{S_HW}, 15
    s_add_u32 s{S_XOFF}, s{S_XOFF}, s{S_T0}
    v_and_b32 v5, 15, v{V_LANE}
    v_lshrrev_b32 v6, 4, v{V_LANE}
    v_lshrrev_b32 v7, 3, v{V_LANE}
    v_and_b32 v63, 7, v{V_LANE}
    v_xor_b32 v62, v6, v63
    v_lshlrev_b32 v62, 4, v62
    v_lshl_add_u32 v{V_XD}, v7, 10, v62
    v_xor_b32 v{V_XD+1}, 64, v{V_XD}
    v_add_u32 v{V_XD+1}, {8192-1024}, v{V_XD+1}
    """)
    img_params(S_HW, S_WSTEP, S_WOFF)
    a(f"""
    v_and_b32 v62, 1, v6
    v_lshlrev_b32 v62, 1, v62
    v_xor_b32 v62, v62, v63
    v_lshlrev_b32 v62, 4, v62
    v_mul_u32_u24 v{V_WD}, s{S_WSTEP}, v7
    v_add_u32 v{V_WD}, v{V_WD}, v62
    v_xor_b32 v{V_WD+1}, 64, v{V_WD}
    s_waitcnt lgkmcnt(0)
    """)
    nst[0] = 0
    stamp()
    a(f"s_mov_b32 s{R_X}, s{P_X}\ns_and_b32 s{R_X+1}, s{P_X+1}, 0xffff")
    Q = []
    def issue(tag, text): a(text); Q.append(tag)
    def vwait(tag, more=""):
        n = len(Q) - 1 - max(i for i, t in enumerate(Q) if t == tag)
        a(f"s_waitcnt vmcnt({n})" + more)
    def xitems(c):
        slot = XS[c]
        return [(f"C{c}", f"s_add_u32 m0, s{S_H4K}, {L_X + slot*16384}\ns_add_u32 s{S_CNT}, s{S_XOFF}, {c*128 + (16384 - 2048)*(e >> 1)}\n"
                 f"buffer_load_dwordx4 v{V_XD + (e & 1)}, {sr(R_X,4)}, s{S_CNT} offen offset:{1024*e} {cfg.cf[1]} lds") for e in range(4)]
    def witems(c):
        slot = (c + 2) % 3
        return [(f"C{c}", f"s_add_u32 m0, s{S_M0W}, {slot*8192 + e*1024}\n" + (f"s_add_u32 s{S_WOFF}, s{S_WOFF}, s{S_WSTEP}" if c + e else "s_nop 0") +
                 f"\nbuffer_load_dwordx4 v{V_WD + (e & 1)}, {sr(R_W,4)}, s{S_WOFF} offen {cfg.cf[0]} lds") for e in range(8)]
    stream = []
    for c in range(1, 8): stream += [(t, x if c < 3 or not cfg.nodma else 's_nop 0') for t, x in witems(c) + xitems(c)]
    for c in {0: (), 8: (4,), 12: (2, 4, 6)}[cfg.krot]:
        i = 12*(c - 1)
        stream[i] = (stream[i][0], stream[i][1].replace("\nbuffer_load", f"\ns_cmp_eq_u32 s{S_HST}, {16 - 2*c}\ns_cselect_b32 s{S_CNT}, s{R_W+2}, 0\ns_cselect_b32 s{S_HSB}, 1024, 0\n"
                     f"s_sub_u32 s{S_WOFF}, s{S_WOFF}, s{S_CNT}\ns_sub_u32 s{S_XOFF}, s{S_XOFF}, s{S_HSB}\nbuffer_load"))
    pos = [0]
    def take(n):
        for _ in range(n):
            if pos[0] < len(stream): issue(*stream[pos[0]]); pos[0] += 1
    def upto(c):
        return min(len(stream), 12*(c + 1) + cfg.lead[c])
    def mix(lines, n):
        k = 0
        for i, l in enumerate(lines):
            while k < n and k * len(lines) <= i * n: take(1); k += 1
            a(l)
        take(n - k)
    img_srd(R_W, S_WSTEP)
    if cfg.krot:
        a(f"""
        s_and_b32 s{S_HST}, s{S_RB}, {cfg.krot}
        s_lshl_b32 s{S_T0}, s{S_HST}, 6
        s_add_u32 s{S_XOFF}, s{S_XOFF}, s{S_T0}
        s_mul_i32 s{S_T0}, s{S_T0}, s{S_WSTEP}
        s_lshr_b32 s{S_T0}, s{S_T0}, 1
        s_add_u32 s{S_WOFF}, s{S_WOFF}, s{S_T0}
        """)
    a(f"s_lshl_b32 s{S_WSTEP}, s{S_WSTEP}, 3\ns_mul_i32 s{S_M0W}, s{S_HW}, 24576\ns_add_u32 s{S_M0W}, s{S_M0W}, {L_W}")
    def b_init():
        srd(R_WS, P_WS, WS_SIZE)
        setup_ids()
        for i in range(4): a(f"v_mov_b32 v{12+i}, -1")
        a(f"v_mov_b32 v10, 0\nv_mov_b32 v11, 1\ns_sub_u32 s{S_T3}, s{S_FLG}, 16")
    def q_stores(tag):
        a(f"s_add_u32 s{S_CNT}, s{S_OST}, {WS_Q - WS_O - 2048}")
        issue(tag, f"buffer_store_dwordx4 v[12:15], v{V_L16}, {sr(R_WS,4)}, s{S_CNT} offen {cfg.sfl[0]}")
        issue(tag, f"buffer_store_dwordx4 v[12:15], v{V_L16}, {sr(R_WS,4)}, s{S_CNT} offen offset:2048 {cfg.sfl[0]}")
    def b_stores():
        if not cfg.c_q: q_stores("ST")
        issue("ST", f"s_mov_b64 exec, 7\nbuffer_store_dword v10, v{V_L16}, {sr(R_WS,4)}, s{S_T3} offen sc1\ns_mov_b64 exec, -1")
    if cfg.c_st[0] < 0: b_init()
    if cfg.c_st[0] == -2: b_stores()
    stamp(name=1)
    a("s_barrier")
    for i, it in enumerate(xitems(0) + witems(0)):
        if cfg.c_st == (-1, i): b_stores()
        issue(*it)
    stamp(name=3)
    def bar():
        brk("g")
        if cfg.stamps == 4: stamp()
        a("s_barrier")
    take(cfg.lead0)
    stamp(name=4)
    nst[0] = 2; vwait("C0"); stamp(name=6); bar()
    BC, BO, BZ = 132, 224, 240
    def b_setup():
        srd(R_DBG, P_DBG, 256)
        a(f"s_mov_b32 s{S_ONES}, 0x3f803f80")
        common_setup()
        a(f"""
        v_lshrrev_b32 v6, 4, v{V_LANE}
        v_bfe_u32 v2, v{V_LANE}, 1, 1
        v_lshl_add_u32 v6, v2, 2, v6
        v_and_b32 v2, 1, v{V_LANE}
        v_mad_u32_u24 v6, v2, 33, v6
        v_lshlrev_b32 v6, 4, v6
        v_bfe_u32 v2, v{V_LANE}, 2, 2
        v_mul_u32_u24 v2, 2208, v2
        v_add_u32 v6, v6, v2
        s_lshr_b32 s{S_T0}, s{S_HW}, 1
        s_mul_i32 s{S_T0}, s{S_T0}, 1056
        s_and_b32 s{S_T1}, s{S_HW}, 1
        s_lshl_b32 s{S_T1}, s{S_T1}, 8
        s_add_u32 s{S_T0}, s{S_T0}, s{S_T1}
        v_add_u32 v204, s{S_T0}, v6
        s_lshr_b32 s{S_T0}, s{S_RB}, 1
        s_and_b32 s{S_T1}, s{S_CB}, 12
        s_lshl_b32 s{S_T1}, s{S_T1}, 2
        s_add_u32 s{S_T0}, s{S_T0}, s{S_T1}
        s_and_b32 s{S_T1}, s{S_RB}, 1
        s_lshl_b32 s{S_T1}, s{S_T1}, 7
        s_add_u32 s{S_T0}, s{S_T0}, s{S_T1}
        s_lshl_b32 s{S_T0}, s{S_T0}, 7
        s_add_u32 s{S_T0}, s{S_T0}, {WS_FL + 32}
        v_and_b32 v6, 3, v{V_LANE}
        v_lshlrev_b32 v6, 2, v6
        v_bfe_u32 v2, v{V_LANE}, 2, 1
        v_lshl_add_u32 v6, v2, 10, v6
        v_bfe_u32 v2, v{V_LANE}, 3, 1
        v_lshl_add_u32 v6, v2, 13, v6
        v_add_u32 v205, s{S_T0}, v6
        """)
        for i in (0, 1, 4, 5): a(f"v_mov_b32 v{BZ+i}, 0")
        att_regs()
        a(f"s_lshl_b32 s{S_T0}, s{S_HW}, 11\nv_add_u32 v7, s{S_T0}, v{V_L16}")
    bs = capture(b_setup)
    nbs = -(-len(bs) // 3)
    pfl = [f"s_mul_i32 s{S_T0}, s2, 7168\ns_lshl_b32 s{S_T1}, s{S_HW}, 11\ns_add_u32 s{S_T0}, s{S_T0}, s{S_T1}\nbuffer_load_dwordx4 {vr(176,4)}, v{V_L16}, {sr(R_WD,4)}, s{S_T0} offen",
           f"buffer_load_dwordx4 {vr(180,4)}, v{V_L16}, {sr(R_WD,4)}, s{S_T0} offen offset:1024",
           f"s_lshl_b32 s{S_T1}, s2, 11\ns_lshl_b32 s{S_T3}, s{S_HW}, 9\ns_add_u32 s{S_T1}, s{S_T1}, s{S_T3}\ns_mov_b32 exec_hi, 0\nbuffer_load_dwordx4 {vr(184,4)}, v{V_L16}, {sr(R_WO,4)}, s{S_T1} offen\ns_mov_b64 exec, -1"]
    spoll = f"buffer_load_dword v8, v6, {sr(R_DBG,4)}, s{S_T2} offen sc1"
    for c in range(6):
        if c == cfg.c_st[0]:
            mix(capture(b_init), cfg.c_st[1]); b_stores()
        def q_flag():
            vwait("SQ")
            issue("F", f"s_mov_b64 exec, 1\nbuffer_store_dword v11, off, {sr(R_WS,4)}, s{S_FLG} offset:16 sc1\ns_mov_b64 exec, -1")
        if cfg.c_q and c == cfg.c_q[0] and cfg.c_q[1] < 99:
            take(cfg.c_q[1]); q_stores("SQ")
        if cfg.c_q and c == cfg.c_q[2] and cfg.c_q[3] < 99:
            take(cfg.c_q[3]); q_flag()
        if c in (2, 3, 4): mix(bs[(c-2)*nbs:(c-1)*nbs], upto(c) - pos[0])
        if c == 5:
            take(cfg.n_poll)
            a(f"v_and_b32 v6, 7, v{V_LANE}\nv_lshlrev_b32 v6, 5, v6\ns_lshl_b32 s{S_T2}, s{S_HW}, 8")
            issue("P", spoll)
        take(upto(c) - pos[0])
        if cfg.c_q and cfg.c_q[:2] == (c, 99): q_stores("SQ")
        if cfg.c_q and cfg.c_q[2:] == (c, 99): q_flag()
        if c == cfg.c_arr: vwait("ST")
        if c == 5:
            vwait("P")
            a(f"s_cmp_lg_u32 s{S_HW}, 0\ns_cbranch_scc1 L_sync1\ns_mov_b32 s{S_SPIN}, 0")
            a.label("L_sync1_chk")
            a(f"""
            v_cmp_gt_u32 vcc, 32, v8
            s_add_u32 s{S_SPIN}, s{S_SPIN}, 1
            s_cbranch_vccz L_sync1
            s_cmp_ge_u32 s{S_SPIN}, {SPIN_MAX}
            s_cbranch_scc1 L_sync1
            s_sleep {cfg.ssl}
            {spoll}
            s_waitcnt vmcnt(0)
            s_branch L_sync1_chk
            """)
            a.label("L_sync1")
        vwait(f"C{c+1}"); bar()
        if c == cfg.c_arr:
            a(f"s_cmp_lg_u32 s{S_HW}, 0\ns_cbranch_scc1 L_noarr\ns_and_b32 s{S_EX}, s2, 7\ns_lshl_b32 s{S_EX}, s{S_EX}, 5\ns_mov_b32 s{S_EX+1}, 1\n"
              f"s_atomic_add s{S_EX+1}, {sr(P_DBG,2)}, s{S_EX}\nL_noarr:")
    assert pos[0] == len(stream)
    ncs[0] = 0; cstamp(11)
    a(f"""
    s_lshl_b32 s{S_T3}, s{S_HW}, 11
    s_add_u32 m0, s{S_T3}, {L_R}
    s_lshl_b32 s{S_EX}, s{S_RB}, 13
    s_add_u32 s{S_EX}, s{S_EX}, s{S_T3}
    s_add_u32 s{S_EX}, s{S_EX}, {WS_ST}
    s_lshl_b32 s{S_T3}, s{S_HW}, 10
    s_lshl_b32 s{S_EX+1}, s{S_CB}, 14
    s_add_u32 s{S_EX+1}, s{S_EX+1}, s{S_T3}
    s_add_u32 s{S_EX+1}, s{S_EX+1}, {WS_CS}
    """)
    if cfg.stamps != 4: nst[0] = 3
    stamp(); cstamp(11)
    def maxtree(src, dst, init=None):
        L = []
        if init is None:
            L.append(f"v_max3_f32 v{dst}, v{src}, v{src+1}, v{src+2}")
            L.append(f"v_max_f32 v{dst}, v{src+3}, v{dst}")
            k = 4
        else:
            k = 0
        for i in range(k, 16, 2): L.append(f"v_max3_f32 v{dst}, v{src+i}, v{src+i+1}, v{dst}")
        return L
    def setC(m, shift):
        a(f"v_mov_b32 v{m+1}, v{m}\ns_nop 1\nv_permlane32_swap_b32 v{m}, v{m+1}\nv_max_f32 v{m}, v{m}, v{m+1}")
        a(f"v_sub_f32 v{CC}, {hex(f2u(-shift)) if shift else 0}, v{m}")
        a(f"v_mov_b32 v{CC+1}, v{CC}")
        for i in range(2, 16, 2): a(f"v_mov_b64 {vr(CC+i,2)}, {vr(CC,2)}")
    for e in range(4):
        if e: a(f"s_add_u32 s{S_EX+1}, s{S_EX+1}, 4096")
        a(f"buffer_load_dwordx4 {vr(BC+4*e,4)}, v{V_L16}, {sr(R_WS,4)}, s{S_EX+1} offen sc1")
    for i in range(2): a(f"buffer_load_dwordx4 v{V_L16}, {sr(R_WS,4)}, s{S_EX} offen offset:{1024*i} sc1 lds")
    assert cfg.e6 != 2
    qpoll = f"buffer_load_dword v9, v205, {sr(R_WS,4)}, s{S_T2} offen sc1"
    if cfg.c_q:
        a(f"s_and_b32 s{S_T2}, s{S_CB}, 3\ns_sub_u32 s{S_T2}, s{S_T2}, s{S_H4K}\ns_cmp_eq_u32 s{S_T2}, 3\ns_cselect_b32 s{S_T2}, 0, {WS_SIZE}\n" + qpoll)
    nq = 1 if cfg.c_q else 0
    npf = 3 if cfg.pf_first else 0
    for x in pfl[:npf]: a(x)
    touch("e", 0, 4, 5)
    cstamp(11)
    if cfg.e6 == 0: a(f"s_waitcnt vmcnt({6 + nq + npf})\ns_barrier")
    a(f"s_setprio {cfg.bp}\ns_waitcnt vmcnt({2 + nq + npf})")
    cstamp(11)
    for e in range(1, 4):
        for i in (0, 2, 1, 3): a(f"v_add_f32 v{BC+i}, v{BC+i}, v{BC+4*e+i}")
    if cfg.e6 == 1: a("s_barrier")
    a(f"""
    v_permlane32_swap_b32 v{BC}, v{BC+2}
    s_nop 0
    v_permlane32_swap_b32 v{BC+1}, v{BC+3}
    v_add_f32 v{BC}, v{BC}, v{BC+2}
    v_add_f32 v{BC+1}, v{BC+1}, v{BC+3}
    s_nop 1
    v_permlane16_swap_b32 v{BC}, v{BC+1}
    v_add_f32 v{BC}, v{BC}, v{BC+1}
    """)
    for l in split2(BC, BZ + 2, True): a(l)
    if cfg.e6 == 3: a("s_barrier")
    a(f"ds_write_b128 v204, {vr(BZ+2,4)} offset:{L_RA}\nds_write_b128 v204, {vr(BZ,4)} offset:{L_RA + 128}")
    cstamp(11)
    for x in pfl[npf:]: a(x)
    a("s_waitcnt vmcnt(3)")
    ncs[0] += 1; cstamp(11)
    if cfg.c_q:
        a(f"""
        s_cmp_lg_u32 s{S_T2}, 0
        s_cbranch_scc1 L_qrdy
        s_mov_b32 s{S_SPIN}, 0
        L_qrchk:
        v_cmp_ne_u32 vcc, 1, v9
        s_add_u32 s{S_SPIN}, s{S_SPIN}, 1
        s_cbranch_vccz L_qrdy
        s_cmp_ge_u32 s{S_SPIN}, {SPIN_MAX}
        s_cbranch_scc1 L_qrdy
        {qpoll}
        s_waitcnt vmcnt(0)
        s_branch L_qrchk
        L_qrdy:
        """)
    a("s_setprio 0\ns_waitcnt lgkmcnt(0)")
    cstamp(11)
    if cfg.e6 == 2: a("s_barrier")
    cstamp(11)
    a("s_barrier")
    for c in range(2):
        slot = (c + 1) % 3
        a(f"s_add_u32 m0, s{S_H4K}, {L_KV + slot*16384}\ns_add_u32 s{S_T0}, s{S_H4K}, {WS_KV + starts[c]*2048}")
        for e in range(4):
            a(f"buffer_load_dwordx4 v{V_L16}, {sr(R_WS,4)}, s{S_T0} offen offset:{1024*e} sc1 lds")
    touch("a", 0, 4, 12)
    if cfg.wfix:
        a(f"s_mov_b32 s{S_CNT}, 0\ns_mov_b32 s{S_SPIN}, 0\ns_cmp_eq_u32 s{S_HW}, 3\ns_cbranch_scc0 L_nowfix\ns_call_b64 {sr(S_RET,2)}, L_ofix\nL_nowfix:")
    if cfg.e7:
        a("s_barrier")
        a(f"s_add_u32 m0, s{S_H4K}, {L_KV}\ns_add_u32 s{S_T0}, s{S_H4K}, {WS_KV + starts[2]*2048}")
        for e in range(4): a(f"buffer_load_dwordx4 v{V_L16}, {sr(R_WS,4)}, s{S_T0} offen offset:{1024*e} sc1 lds")
        if cfg.e7 == 2:
            a(f"s_mul_i32 s{S_T1}, s{S_HW}, {448*1024}\ns_lshl_b32 s{S_T0}, s{S_CT8}, 7\ns_add_u32 s{S_T1}, s{S_T1}, s{S_T0}\ns_lshl_b32 s{S_T3}, s{S_H4K}, 1")
            for e in range(8):
                a(f"s_add_u32 m0, s{S_T3}, {L_WD + e*1024}\ns_add_u32 s{S_T0}, s{S_T1}, {e*8192}\nbuffer_load_dwordx4 v{V_WDD}, {sr(R_WD,4)}, s{S_T0} offen lds")
    QP = QX if cfg.pair else 128
    qload = (f"buffer_load_dwordx4 {vr(QP,4)}, v{V_L16}, {sr(R_WS,4)}, s{S_T2} offen sc1\n"
             f"buffer_load_dwordx4 {vr(QF,4)}, v{V_L16}, {sr(R_WS,4)}, s{S_T2} offen offset:2048 sc1")
    a(f"s_add_u32 s{S_T2}, s{S_OST}, {WS_Q - WS_O - 2048}\ns_mov_b32 s{S_SPIN}, 0\ns_waitcnt vmcnt(0)\ns_barrier\ns_setprio 2")
    a(qload)
    kv_first(1)
    nst[0] = 12 if cfg.stamps == 4 else 5
    stamp()
    a.label("L_qchk")
    a(f"""
    s_waitcnt vmcnt(0) lgkmcnt(0)
    v_max3_u32 v8, v{QF}, v{QF+1}, v{QF+2}
    v_max3_u32 v8, v8, v{QF+3}, v{QP}
    v_max3_u32 v8, v8, v{QP+1}, v{QP+2}
    v_max_u32 v8, v8, v{QP+3}
    v_cmp_eq_u32 vcc, -1, v8
    s_add_u32 s{S_SPIN}, s{S_SPIN}, 1
    s_cbranch_vccz L_qok
    s_cmp_ge_u32 s{S_SPIN}, {SPIN_MAX}
    s_cbranch_scc1 L_qok
    s_sleep {cfg.qsl}
    {qload}
    s_branch L_qchk
    """)
    a.label("L_qok")
    if cfg.stamps == 1:
        n0 = nst[0]; nst[0] = 4; stamp(); nst[0] = n0
        a(f"v_writelane_b32 v{V_STAMP}, s{S_SPIN}, 63")
    a('; ---- softmax reference point: maximum over the first 32 keys (a lower bound of the row maximum), scores are taken relative to it minus a fixed shift.')
    if cfg.pair:
        a(mfma32(S0, KF + 4, QP, None)); a(mfma32(S1, KF + 4, QF, None))
        a(f"ds_write_b128 v7, {vr(QP,4)} offset:{L_HQ}\nds_write_b128 v7, {vr(QF,4)} offset:{L_HQ + 8192}")
        a.nop(9)
        for q, sx, cx in ((0, S0, CX), (1, S1, CC)):
            for l in maxtree(sx, 8): a(l)
            a(f"v_mov_b32 v9, v8\ns_nop 1\nv_permlane32_swap_b32 v8, v9\nv_max_f32 v8, v8, v9\nv_sub_f32 v{cx}, {hex(f2u(-cfg.shift))}, v8")
            a(f"v_mov_b32 v{cx+1}, v{cx}\nv_mov_b64 {vr(cx+2,2)}, {vr(cx,2)}\nds_write_b128 v7, {vr(cx,4)} offset:{L_HQ + 8192*q + 1024}")
            for i in range(1, 4): a(f"ds_read_b128 {vr(cx+4*i,4)}, v7 offset:{L_HQ + 8192*q + 1024}")
        a("s_waitcnt lgkmcnt(3)\ns_barrier")
        stamp(name="att0"); pad("att0")
        a("s_setprio 1")
        a(mfma32(S0, KF, QP, CX))
        a.nop(4)
    else:
        a(mfma32(S0, KF, QP, None)); a(mfma32(S1, KF, QF, None))
        a(f"ds_write_b128 v7, {vr(QP,4)} offset:{L_HQ}")
        a.nop(10)
        for l in maxtree(S0, 8): a(l)
        a(f"v_mov_b32 v9, v8\ns_nop 1\nv_permlane32_swap_b32 v8, v9\nv_max_f32 v8, v8, v9\nv_sub_f32 v{QP+4}, {hex(f2u(-cfg.shift))}, v8")
        a(f"v_mov_b32 v{QP+5}, v{QP+4}\nv_mov_b64 {vr(QP+6,2)}, {vr(QP+4,2)}\nds_write_b128 v7, {vr(QP+4,4)} offset:{L_HQ + 1024}")
        for l in maxtree(S1, 8): a(l)
        if cfg.g_early:
            a("s_waitcnt lgkmcnt(0)\ns_barrier")
            stamp(name="att0"); pad("att0")
        setC(8, cfg.shift)
        a(f"s_waitcnt lgkmcnt(0)\ns_setprio {1 if cfg.pp < 0 else 0}")
        a(mfma32(S0, KF, QF, CC))
        if not cfg.g_early:
            a("s_barrier")
            stamp(name="att0"); pad("att0")
    a("s_nop 5\ns_branch L_attB")

    def kvdma(c, half):
        slot = (c + 1) % 3
        L = (f"s_add_u32 m0, s{S_W2K}, {L_KV + slot*16384}\ns_add_u32 s{S_T0}, s{S_W2K}, {WS_KV + starts[c]*2048}\n")
        if half == 1 and sizes[c] < 8:
            L += f"s_cmp_ge_u32 s{S_W}, {sizes[c]}\ns_cselect_b32 s{S_T0}, {WS_SIZE}, s{S_T0}\n"
        return [L + f"buffer_load_dwordx4 v{V_L16}, {sr(R_WS,4)}, s{S_T0} offen sc1 lds",
                f"buffer_load_dwordx4 v{V_L16}, {sr(R_WS,4)}, s{S_T0} offen offset:1024 sc1 lds"]
    def rowdma(rs, sbase, add, ldsbase, e):
        pre = f"s_add_u32 m0, s{S_W4K}, {ldsbase}\n"
        return pre + f"s_add_u32 s{S_T0}, s{sbase}, {add + e*7168}\nbuffer_load_dwordx4 v{V_WDD}, {sr(rs,4)}, s{S_T0} offen offset:{1024*e} {cfg.cf[2]} lds"
    tbs = [starts[c] - 3 for c in range(1, len(starts))]
    late = []
    def attention(half):
        sfx = "AB"[half]
        if cfg.stamps == 5: a(f"s_mov_b32 s{S_SPIN}, 0")
        head = {t: [] for t in range(66)}
        vm = {t: [] for t in range(66)}
        pre = {t: [] for t in range(66)}
        bg = {t: [] for t in range(66)}
        nb = len(tbs); c0 = nb - 7
        lh, mb = cfg.lh, cfg.mb
        for ci, tb in enumerate(tbs):
            q = []
            if ci + 2 < len(starts) and not (cfg.e7 and ci == 0): q += [("D", x) for x in kvdma(ci + 2, half)]
            dload = ci - c0 + 1
            if 0 <= dload <= 6:
                wq_ = [rowdma(R_WD, S_WDO, dload*65536, L_WD + (dload & 1)*32768, e) for e in range(4)]
                if dload == 0:
                    for e in range(4 if cfg.e7 < 2 else 0): vm[cfg.t_wd0[e]].append(("D" if e == 3 else "X", wq_[e]))
                else: q += [("D", x) for x in wq_]
                hl = [f"buffer_load_dwordx4 {vr(HF + 16*(dload&1) + 4*j,4)}, v{V_L16}, {sr(R_WS,4)}, s{S_T1} offen offset:{1024*j} sc1" for j in range(4)]
                hl[0] = f"s_add_u32 s{S_T1}, s{S_HLD}, {dload*4096}\n" + hl[0]
            elif dload == 7:
                q += [("D", rowdma(R_WO, S_WOO, 0, L_WO, e)) for e in range(4)]
                q += [("D", f"buffer_load_dwordx4 {vr(V_XR,4)}, v{V_FO}, {sr(R_X,4)}, 0 offen")]
            for i, x in enumerate(q): vm[tb + cfg.dpos[i] if ci else cfg.t_kv2].append(x)
            if 0 <= dload <= 6:
                for j in range(4):
                    vm[cfg.t_h0[j] if dload == 0 else tb + cfg.hpos[j]].append((f"H{dload}{j}", hl[j]))
                    if j in cfg.hwait: pre[tbs[ci + 1] + (cfg.mb0 or mb)[2*j] if dload == 0 else tbs[ci + 1] + mb[2*j]].append(("wait", f"H{dload}{cfg.hwait[j]}"))
            d = dload - 1
            if d >= 0:
                for k in range(8):
                    j, ct = divmod(k, 2); fr = DF + 4 * (k & 3)
                    for t in range(2):
                        head[tb + lh[k]].append(f"ds_read_b64_tr_b16 {vr(fr+2*t,2)}, v{V_DA+ct} offset:{(d&1)*32768 + j*2048 + t*512}")
                    bg[tb + (cfg.mb0 if d == 0 and cfg.mb0 else mb)[k]].append(mfma32(YY + 16*ct, HF + 16*(d&1) + 4*j, fr, None if (d == 0 and j == 0) else YY + 16*ct))
        assert min(cfg.t_h0) >= cfg.t_chk and max(lh) <= 6 and max(mb) <= 7 and all(m > l for m, l in zip(mb, lh))
        assert all(lh[k+4] > mb[k] and lh[k] + 6 > mb[k+4] for k in range(4)) and all(cfg.hpos[j] + 6 > mb[2*j+1] for j in range(4))
        st = []
        if half == 0:
            for rt in range(4):
                for ti in range(2):
                    st.append(f"s_add_u32 s{S_T3}, s{S_HSB if ti else S_HST}, {112*1024*rt}\n"
                              f"buffer_store_dwordx4 {vr(HO + 16*ti + 4*rt,4)}, v{V_L16}, {sr(R_WS,4)}, s{S_T3} offen {cfg.hfl}")
        st.append(f"buffer_store_dwordx4 v[12:15], v{V_L16}, {sr(R_WS,4)}, s{S_OST} offen {cfg.sfl[1]}")
        hs = list(range(64))
        for i, x in enumerate(st): vm[hs[int(i * cfg.st_rate)] if half == 0 else cfg.t_sb].append(("S", x))
        if half == 1:
            if cfg.t_pf >= 0: vm[cfg.t_pf] += [("X", x) for x in pfl]
            for e in range(8):
                x = f"s_add_u32 m0, s{S_EX}, {L_WO + 32768 + e*1024}\ns_add_u32 s{S_T0}, s{S_EX+1}, {e*8192}\nbuffer_load_dwordx4 v{V_WDD}, {sr(R_WO,4)}, s{S_T0} offen lds"
                if e == 0: x = f"s_lshl_b32 s{S_EX+1}, s{S_HW}, 16\ns_lshl_b32 s{S_T0}, s{S_CT8}, 7\ns_add_u32 s{S_EX+1}, s{S_EX+1}, s{S_T0}\ns_xor_b32 s{S_T0}, s{S_T16}, 0x40000\ns_add_u32 s{S_EX+1}, s{S_EX+1}, s{S_T0}\ns_lshl_b32 s{S_EX}, s{S_H4K}, 1\n" + x
                vm[cfg.t_wo[e]].append(("D" if e == 7 else "X", x))
            tw = min(t for t in tbs if t >= max(cfg.t_wo))
            if cfg.pair:
                for i, t in enumerate(cfg.t_wr): head[t] += wo_rd[2*i:2*i+2]
            elif tw == tbs[1]:
                for i in range(6): head[tw + 2 + i] += wo_rd[4*i:4*i+4]
            else:
                hs_ = [tb + o for tb in tbs if tb >= tw for o in (4, 5)]
                for i in range(12): head[hs_[i]] += wo_rd[2*i:2*i+2]
            if not cfg.pair: head[61] += wo_rd[24:26]; head[63] += wo_rd[26:]
        else:
            head[63] += wo_rd[:cfg.n_wo63]
        if cfg.t_out: vm[cfg.t_out].append(("X", f"s_mov_b64 exec, 1\nbuffer_load_dword v254, v{V_FO}, {sr(R_OUT,4)}, 0 offen\ns_mov_b64 exec, -1"))
        for t in cfg.t_code: vm[t].append(("X", "s_mov_b64 exec, 3\nglobal_load_dword v2, v[252:253], off\ns_mov_b64 exec, -1"))
        pre[cfg.t_flag].append(("wait", "S"))
        vm[cfg.t_flag].insert(0, ("F", f"s_mov_b64 exec, 1\nbuffer_store_dword v11, off, {sr(R_WS,4)}, s{S_FLG} sc1\ns_mov_b64 exec, -1"))
        poll = f"buffer_load_dword v3, v{V_PO}, {sr(R_WS,4)}, s{S_T2} offen sc1"
        vm[cfg.t_poll].insert(0, ("P", f"s_mov_b32 s{S_T2}, {WS_FL}\n" + poll))
        assert cfg.t_poll <= cfg.t_chk - 2
        pre[cfg.t_chk - 1].append(("wait", "P"))
        pre[cfg.t_chk].append(("text", f"s_cbranch_vccnz L_hspin{sfx}\nL_hok{sfx}:"))
        late.append(f"L_hspin{sfx}:\ns_mov_b32 s{S_SPIN}, 0\nL_hchk{sfx}:\ns_sleep 2\n{poll}\ns_waitcnt vmcnt(0)\nv_cmp_ne_u32 vcc, 1, v3\ns_add_u32 s{S_SPIN}, s{S_SPIN}, 1\ns_cbranch_vccz L_hok{sfx}\n"
                    f"s_cmp_lt_u32 s{S_SPIN}, {SPIN_MAX}\ns_cbranch_scc1 L_hchk{sfx}\ns_branch L_hok{sfx}")
        VQ = []
        def cnt(tag):
            idx = [i for i, x in enumerate(VQ) if x == tag]
            return min(63, len(VQ) - 1 - max(idx)) if idx else 63
        def emit_vm(L):
            for tag, x in L: a(x); VQ.append(tag)
        for t in range(tbs[2] + 1, 64):
            if 'v' in cfg.ab: vm[t] = [x for x in vm[t] if 'sc1 lds' in x[1]]
            if 'h' in cfg.ab: vm[t] = [x for x in vm[t] if x[0] != 'H']
            if 'r' in cfg.ab: head[t] = []
            if 'm' in cfg.ab: bg[t] = []
        tl = 63 if cfg.pair else 62
        bars = set(tbs) | {tl} | ({cfg.tbx} if cfg.pair else set())
        BL = [(t >> 1, t & 1) for t in range(60)] + [(30, 1 - half), (31, 1 - half), (30, half), (31, half)]
        def oq(q): return OO if q == half else OX
        def cq(q): return CC if q == half else CX
        def qq(q): return QF if q == half else QX
        kvr = {t: [[], []] for t in range(64)}
        ins = {t: {} for t in range(64)}
        if cfg.pair:
            for i in range(1, 32):
                o = kv_off(2*i + half)
                tk, ta, tv = (2*i - 2, 2*i - 1, 2*i - 1) if i < 31 else (59, 60, 61)
                kvr[tk][0].append(f"ds_read_b128 {vr(KF+4*(i&1),4)}, v{V_KA} offset:{o}")
                kvr[ta][1].append(f"ds_read_b128 {vr(VF+8*(i&1),4)}, v{V_VA} offset:{o}")
                kvr[tv][1].append(f"ds_read_b128 {vr(VF+8*(i&1)+4,4)}, v{V_VA} offset:{o + 512}")
            if cfg.upd:
                u = max(t for t in range(cfg.tbx) if t & 1 == half)
                ins[u][3] = (f"v_max_f32 v4, {hex(f2u(2.0**(16 - cfg.shift)))}, v{OO+8}\nv_frexp_exp_i32_f32_e64 v4, v4\nv_sub_u32 v4, {17 - int(cfg.shift)}, v4\nv_max_i32 v4, 0xffffff82, v4\n"
                             f"v_cvt_f32_i32 v5, v4\nv_add_f32 v6, v{CC}, v5\nv_ldexp_f32 v4, 1.0, v4\nv_mov_b32 v7, v6\nv_mov_b64 v[8:9], v[6:7]")
                head[u + 1] += [f"ds_write_b128 v{V_PA}, v[6:9] offset:{L_HQ + 8192*half + 1024}", f"ds_write_b32 v{V_PA}, v4 offset:{L_HQ + 8192*half}"]
                head[cfg.tbx + 1].append(f"ds_read_b32 v5, v{V_PA} offset:{L_HQ + 8192*(1 - half)}")
                for t in (cfg.tbx + 1, cfg.tbx + 2):
                    q = t & 1
                    head[t] += [f"ds_read_b128 {vr(cq(q)+4*i,4)}, v{V_PA} offset:{L_HQ + 8192*q + 1024}" for i in range(4)]
                    ins[t + 2][3] = "\n".join(f"v_mul_f32{'_e64' if i == 0 else ''} v{oq(q)+i}, v{oq(q)+i}, v{4 if q == half else 5}" for i in range(9))
            head[63] = [f"ds_write_b128 v{V_PA}, {vr(OX,4)} offset:{8192*half}", f"ds_write_b128 v{V_PA}, {vr(OX+4,4)} offset:{8192*half + 1024}",
                        f"ds_write_b32 v3, v{OX+8} offset:{28672 + 4*half}"] + head[63]
            ins[61][3] = f"v_lshrrev_b32_e64 v3, 1, v{V_PA}"
        mrg = [f"ds_read_b128 {vr(DF,4)}, v{V_PA} offset:{8192*(1-half)}", f"ds_read_b128 {vr(DF+4,4)}, v{V_PA} offset:{8192*(1-half) + 1024}", f"ds_read_b32 v{DF+8}, v3 offset:{28672 + 4*(1-half)}"]
        for t in range(64):
            par = t & 1
            sd, sn = (S0, S1) if par == 0 else (S1, S0)
            p, pp = PP + 8*par, PP + 8*(1 - par)
            isb = t in bars
            if cfg.stamps == 2 and t - 1 in tbs: stamp()
            brk("a")
            if cfg.itr:
                if t == 0: ncs[0] = 0
                if t in cfg.itr: cstamp(5)
            midb = isb and half == 1
            if half == 0 and t - 1 in bars: a(f"s_waitcnt vmcnt({cnt('D')}) lgkmcnt(0)\ns_barrier")
            else: a("s_waitcnt lgkmcnt(0)")
            for k, x in pre[t]: a(x if k == "text" else f"s_waitcnt vmcnt({cnt(x)})")
            emit_vm(vm[t][:1])
            if cfg.pair:
                for l in kvr[t][0]: a(l)
                if kvr[t][1]:
                    a(f"s_mov_b64 exec, {sr(S_VM,2)}")
                    for l in kvr[t][1]: a(l)
                    a("s_mov_b64 exec, -1")
            elif not ('L' in cfg.ab and t & 2) and not ('Z' in cfg.ab and t > 2):
                if t + 2 < 64: a(f"ds_read_b128 {vr(KF+4*par,4)}, v{V_KA} offset:{kv_off(t+2)}")
                a(f"s_mov_b64 exec, {sr(S_VM,2)}")
                if t + 1 < 64: a(f"ds_read_b128 {vr(VF+8*(1-par),4)}, v{V_VA} offset:{kv_off(t+1)}")
                a(f"ds_read_b128 {vr(VF+8*par+4,4)}, v{V_VA} offset:{kv_off(t)+512}")
                a("s_mov_b64 exec, -1")
            for l in head[t]: a(l)
            emit_vm(vm[t][1:])
            if t == 0 and cfg.stamps == 9: ncs[0] = 0
            if cfg.t_tr <= t < cfg.t_tr + 9: cstamp(9)
            if cfg.ladder and half and t % 3 == 0:
                if cfg.hnop and cfg.pair and len(head[t]) + len(vm[t]) + len(kvr[t][1]) < 2: a("s_nop 5")
                a("s_setprio 3")
            if t in cfg.upd and not cfg.pair: a("s_nop 1")
            pos = cfg.pos[len(bg[t])]
            sl = [smf(OO, VF + 8*(1-par) + 4, sn + 8) if t >= 1 else None, mfma32(sn, KF + 4*(1-par), QF, CC) if t + 1 < 64 else None]
            sl += bg[t][:1] + [smf(OO, VF + 8*par, sd)] + bg[t][1:]
            if cfg.pair:
                i0_, q0_ = BL[t]
                sl = [smf(oq(BL[t-1][1]), VF + 8*(BL[t-1][0]&1) + 4, sn + 8) if t >= 1 else None,
                      mfma32(sn, KF + 4*(BL[t+1][0]&1), qq(BL[t+1][1]), cq(BL[t+1][1])) if t + 1 < 64 else None]
                sl += bg[t][:1] + [smf(oq(q0_), VF + 8*(i0_&1), sd)] + bg[t][1:]
            at = {p: m for p, m in zip(pos, sl) if m}
            for p_, x in ins[t].items():
                assert p_ not in at
                at[p_] = x
            if 'M' in cfg.ab:
                import re as _re
                for p in list(at):
                    if at[p] in bg[t]:
                        m = _re.match(r"\S+ v\[(\d+):\d+\], v\[(\d+):\d+\], v\[(\d+):\d+\]", at[p]); d_, a_, b_ = map(int, m.groups())
                        d_ += 8 * (t & 1)
                        at[p] = mfma16(d_, a_, b_, d_); at[p + 1] = mfma16(d_ + 4, b_, a_, d_ + 4)
            if t in cfg.upd and not cfg.pair:
                assert len(sl) == 3
                at = {1: f"v_frexp_exp_i32_f32_e64 v4, v{OO+8}", 2: sl[0], 3: f"v_sub_u32 v4, {17 - int(cfg.shift)}, v4\nv_cvt_f32_i32_e64 v5, v4", 5: sl[1],
                      8: f"v_mfma_f32_32x32x2_f32 {vr(CC,16)}, v49, v5, {vr(CC,16)}", 15: sl[2]}
                if cfg.updm >= 1:
                    mv = [f"v_mov_b32 v{CC+1}, v{CC}"] + [f"v_mov_b64 {vr(CC+i,2)}, {vr(CC,2)}" for i in range(2, 16, 2)] if cfg.updm == 1 else [f"v_mov_b32 v{CC+i}, v{CC}" for i in range(1, 16)]
                    del at[8], at[15]
                    at[12] = "\n".join([f"v_add_f32{'_e64' if cfg.updm == 1 else ''} v{CC}, v{CC}, v5"] + mv)
                    at[13] = sl[2]
                if cfg.updl: at[3] = f"v_sub_u32 v4, {17 - int(cfg.shift)}, v4\nv_max_i32 v4, 0xffffff82, v4\nv_cvt_f32_i32_e64 v5, v4\nv_ldexp_f32 v4, 1.0, v4"
            if t - 2 in cfg.upd and not cfg.pair:
                assert len(sl) == 3
                at = {2: sl[0], 6: sl[1], 13: "\n".join((f"v_mul_f32{'_e64' if i == 0 else ''} v{OO+i}, v{OO+i}, v4" if cfg.updl else f"v_ldexp_f32 v{OO+i}, v{OO+i}, v4") for i in range(9)), 15: sl[2]}
            a(".p2align 3")
            odd = False
            for i in range(16):
                if i in at: a(at[i])
                if midb and i == (cfg.bmid if t < 63 else cfg.bm63): a(f"s_waitcnt vmcnt({cnt('D')}) lgkmcnt(0)\ns_barrier")
                if cfg.pair and half and t == 63 and i == cfg.p_mrg:
                    for l in mrg: a(l)
                pr = i == (cfg.pp if half else cfg.pa) and not (cfg.ladder and t % 3)
                wide = (i + 1 in at) and (odd == pr)
                a(f"v_exp_f32{'_e64' if wide else ''} v{sd+i}, v{sd+i}")
                if not wide: odd = not odd
                if pr: a(f"s_setprio {3 if cfg.ladder else cfg.pv[half]}"); odd = not odd
            if cfg.stamps == 3: a(f"s_waitcnt lgkmcnt(0)\nv_writelane_b32 v253, s{S_TS}, {t}\nv_writelane_b32 v254, s{S_TS2}, {t}\ns_memtime {sr(S_TS2,2)}")
            if t == cfg.t_chk - 1: a("v_cmp_ne_u32 vcc, 1, v3")
            if cfg.ladder and t < 63:
                if half == 0 or t % 3 != 2: a(f"s_setprio {2 - t % 3}")
            elif (cfg.pp if half else cfg.pa) is not None and not (half and cfg.pp < 0 and t < 63): a("s_setprio 0")
            if cfg.t_tr <= t < cfg.t_tr + 9: cstamp(9)
        if cfg.pair and not half:
            a(f"s_waitcnt vmcnt({cnt('D')}) lgkmcnt(0)\ns_barrier")
            for l in mrg: a(l)
        else: a("s_nop 1" if cfg.pair else "s_waitcnt lgkmcnt(0)\ns_nop 0")
        a(smf(OO, VF + 12, S1 + 8))
    OF, SS, XU, TT = (16, 64, 224, 232) if cfg.pair else (16, 64, 160, 168)
    def oload(j):
        h = cfg.oord[j]
        return f"buffer_load_dwordx4 {vr(OF+4*j,4)}, v{V_L16}, {sr(R_WS,4)}, s{S_OLD if h < 4 else S_T1} offen offset:{1024*(h&3)} sc1"
    def chk(j): return f"v_max3_u32 v8, v{OF+4*j}, v{OF+4*j+1}, v{OF+4*j+2}\nv_max_u32 v8, v{OF+4*j+3}, v8\nv_cmp_eq_u32 vcc, -1, v8"
    F = f"L_ofix:\ns_mov_b32 s{S_T2}, 0\ns_waitcnt vmcnt(0)\n"
    for j in range(8):
        F += (f"s_bitcmp1_b32 s{S_CNT}, {j}\ns_cbranch_scc0 L_ofb{j}\n{chk(j)}\ns_cmp_lg_u32 s{S_T2}, 0\ns_cbranch_vccz L_ofa{j}\n{oload(j)}\ns_mov_b32 s{S_T2}, 1\ns_branch L_ofb{j}\nL_ofa{j}:\ns_cbranch_scc1 L_ofb{j}\ns_bitset0_b32 s{S_CNT}, {j}\n"
              + mfma32(SS, OF + 4*j, WOF[2*j], SS) + "\n" + mfma32(SS + 16, OF + 4*j, WOF[2*j + 1], SS + 16) + f"\nL_ofb{j}:\n")
    F += (f"s_add_u32 s{S_SPIN}, s{S_SPIN}, 1\ns_cmp_ge_u32 s{S_SPIN}, {SPIN_MAX}\ns_cselect_b32 s{S_CNT}, 0, s{S_CNT}\n"
          f"s_cmp_lg_u32 s{S_CNT}, 0\ns_cbranch_scc1 L_ofix\ns_setpc_b64 {sr(S_RET,2)}")
    late.insert(0, F)
    def normalize():
        for i in range(0, 8, 2): a(f"v_pk_mul_f32 {vr(OO+i,2)}, {vr(OO+i,2)}, v[10:11]")
        for i in range(4): a(f"v_cvt_pk_bf16_f32 v{12+i}, v{OO+2*i}, v{OO+2*i+1}")
    def tail(half):
        sfx = "AB"[half]
        if cfg.stamps == 8: ncs[0] = 0
        if cfg.stamps == 5: a(f"v_writelane_b32 v{V_STAMP}, s{S_SPIN}, 62")
        stamp(name="att1"); pad("att1")
        cstamp()
        a(f"s_mov_b32 s{S_T2}, {hex(f2u(2.0**120))}\ns_mov_b32 s{S_T3}, {hex(f2u(2.0**-106))}")
        a(f"s_add_u32 s{S_T1}, s{S_OLD}, 4096\ns_mov_b32 s{S_SPIN}, 0\ns_lshl_b32 s{S_T0}, s{S_W}, 13\ns_mov_b32 m0, s{S_T0}")
        if cfg.pair:
            a("s_waitcnt lgkmcnt(0)"); a.nop(5)
            for i in (8, 0, 1, 2, 3, 4, 5, 6, 7): a(f"v_add_f32 v{OO+i}, v{OO+i}, v{DF+i}")
        else: a.nop(6)
        a(f"""
        v_rcp_f32 v10, v{OO+8}
        v_maximum3_f32 v8, abs(v{OO}), abs(v{OO+1}), abs(v{OO+2})
        v_maximum3_f32 v9, abs(v{OO+3}), abs(v{OO+4}), abs(v{OO+5})
        v_maximum3_f32 v8, abs(v{OO+6}), abs(v{OO+7}), v8
        v_maximum3_f32 v6, v8, v9, v{OO+8}
        v_max_f32 v8, v8, v9
        v_cmp_ngt_f32 vcc, s{S_T2}, v6
        v_cmp_gt_f32 {sr(S_EX,2)}, s{S_T3}, v8
        v_mov_b32 v11, v10
        s_or_b64 vcc, vcc, {sr(S_EX,2)}
        """)
        a("s_branch L_fb" if cfg.force_fb else "s_nop 0" if cfg.ab else "s_cbranch_scc1 L_fb")
        normalize()
        a.label(f"L_ost{sfx}")
        a(f"buffer_store_dwordx4 v[12:15], v{V_L16}, {sr(R_WS,4)}, s{S_OST} offen sc1")
        cstamp()
        if half == 0:
            for l in wo_rd[cfg.n_wo63:]: a(l)
        for i in range(32): a(f"ds_write_addtid_b32 v{YY+i} offset:{32768 + 256*i}")
        cstamp()
        a(f"""
        v_xor_b32 v5, 16, v{V_GA}
        v_add_u32 v6, 0x10000, v{V_GA}
        v_add_u32 v7, 0x10000, v5
        s_mov_b32 s{S_EX}, 0xff00ff00
        s_mov_b32 s{S_EX+1}, 0xff00ff00
        s_mov_b64 exec, {sr(S_EX,2)}
        v_swap_b32 v{V_XR}, v{V_XR+2}
        v_swap_b32 v{V_XR+1}, v{V_XR+3}
        s_mov_b64 exec, -1
        """)
        for i in range(4): a(f"v_lshlrev_b32 v{XU+2*i}, 16, v{V_XR+i}\nv_and_b32 v{XU+2*i+1}, 0xffff0000, v{V_XR+i}")
        for i in range(0, 32, 2): a(f"v_mov_b64 {vr(SS+i,2)}, 0")
        if not half:
            for j in range(cfg.oearly): a(oload(j))
        a("s_waitcnt lgkmcnt(0)\ns_barrier")
        if half: a(f"s_add_u32 m0, s{S_T0}, 7940")
        if half and cfg.tprio == 2: a("s_setprio 1")
        cstamp()
        yr = [f"ds_read_b128 {vr(YY+8*p+4*e,4)}, v{((V_GA, 5), (6, 7))[p >> 1][e]} offset:{(32768 + 16384*p) & 0xffff}" for p in range(4) for e in range(2)]
        G = ["s_waitcnt lgkmcnt(0)"]
        for p in (1, 2, 3): G += [f"v_add_f32 v{YY+i}, v{YY+i}, v{YY+8*p+i}" for i in range(8)]
        G += [f"v_mul_f32 v{TT+i}, {hex(f2u(-math.log2(math.e)))}, v{YY+i}" for i in range(8)]
        G += [f"v_exp_f32 v{TT+i}, v{TT+i}" for i in range(8)]
        G += [f"v_add_f32 v{TT+i}, 1.0, v{TT+i}" for i in range(8)]
        G += [f"v_rcp_f32 v{TT+i}, v{TT+i}" for i in range(8)]
        G += [f"v_mul_f32 v{YY+i}, v{YY+i}, v{TT+i}" for i in range(8)]
        if half:
            for l in yr: a(l)
            if cfg.tprio == 3: a("s_setprio 1")
            for j in range(cfg.n_b0): a(oload(j))
            for l in G[:cfg.n_gb]: a(l)
            G = G[cfg.n_gb:]
            for j in range(cfg.n_b0, 8):
                a(oload(j))
                for l in G[:cfg.n_gp]: a(l)
                G = G[cfg.n_gp:]
            for l in G: a(l)
        elif cfg.odelay:
            for l in yr + G[:int(cfg.odelay)]: a(l)
            G = G[int(cfg.odelay):]
            for j in range(8): a(oload(j))
        else:
            for j in range(8):
                if j + cfg.oearly < 8: a(oload(j + cfg.oearly))
                a(yr[j])
            for l in G[:cfg.n_ga]: a(l)
            G = G[cfg.n_ga:]
        cstamp()
        def nxt(j): return f"s_waitcnt vmcnt({7-j})\n" + chk(j) + f"\ns_movk_i32 s{S_CNT}, {(0xff << j) & 0xff}"
        if half and cfg.tprio == 1: a("s_setprio 1")
        a(nxt(0))
        for j in range(8):
            a(f"s_cbranch_vccnz L_omiss{sfx}")
            if j in (0, 3, 7): cstamp()
            a(mfma32(SS, OF + 4*j, WOF[2*j], SS))
            if j < 7: a(nxt(j + 1))
            a(mfma32(SS + 16, OF + 4*j, WOF[2*j + 1], SS + 16))
        late[0] = f"L_omiss{sfx}:\ns_call_b64 {sr(S_RET,2)}, L_ofix\ns_branch L_ook{sfx}\n" + late[0]
        a.label(f"L_ook{sfx}")
        pg = [f"ds_read_b128 {vr(192+8*p+4*e,4)}, v{(V_GA, 5)[e]} offset:{16384*p}" for p in range(2) for e in range(2)]
        if half and cfg.pgath:
            a("s_barrier")
            for l in pg: a(l)
            a.nop(6)
        else: a.nop(11)
        for i in range(32): a(f"ds_write_addtid_b32 v{SS+i} offset:{(57596 if half else 0) + 256*i}")
        if not half:
            for l in G: a(l)
            if cfg.pgath:
                a("s_waitcnt lgkmcnt(0)\ns_barrier")
                for l in pg: a(l)
    far("L_attA")
    n0 = nst[0]
    attention(0)
    tail(0)
    a("s_branch L_fin2")
    far("L_attB")
    nst[0] = n0
    attention(1)
    tail(1)
    far("L_fin2", True)
    a("s_waitcnt lgkmcnt(0)\ns_barrier")
    if cfg.stamps == 6: stamp()
    cstamp()
    for p in range(2 if cfg.pgath else 0, 4):
        for e in range(2): a(f"ds_read_b128 {vr(OF+8*p+4*e,4)}, v{((V_GA, 5), (6, 7))[p >> 1][e]} offset:{16384*p}")
    if cfg.pgath:
        for i in range(0, 8, 2): a(f"v_pk_add_f32 {vr(OF+i,2)}, {vr(192+i,2)}, {vr(200+i,2)}")
    else:
        a("s_waitcnt lgkmcnt(0)" if cfg.stamps == 8 else "s_waitcnt lgkmcnt(4)")
        for i in range(0, 8, 2): a(f"v_pk_add_f32 {vr(OF+i,2)}, {vr(OF+i,2)}, {vr(OF+8+i,2)}")
    a("s_waitcnt lgkmcnt(0)")
    for i in range(0, 8, 2): a(f"v_pk_add_f32 {vr(OF+16+i,2)}, {vr(OF+16+i,2)}, {vr(OF+24+i,2)}")
    for i in range(0, 8, 2): a(f"v_pk_add_f32 {vr(OF+i,2)}, {vr(OF+i,2)}, {vr(OF+16+i,2)}")
    for i in range(0, 8, 2): a(f"v_pk_fma_f32 {vr(OF+i,2)}, {vr(OF+i,2)}, {vr(YY+i,2)}, {vr(XU+i,2)}")
    for i in range(4): a(f"v_cvt_pk_bf16_f32 v{12+i}, v{OF+2*i}, v{OF+2*i+1}")
    a(f"s_mov_b64 exec, {sr(S_EX,2)}\nv_swap_b32 v12, v14\nv_swap_b32 v13, v15\ns_mov_b64 exec, -1")
    a(f"buffer_store_dwordx4 v[12:15], v{V_FO}, {sr(R_OUT,4)}, 0 offen {cfg.oflag}")
    if cfg.stamps == 6: stamp()
    cstamp()
    if cfg.stamps:
        a("s_waitcnt vmcnt(0)")
        cstamp()
        stamp(True)
        for i in range(ncs[0]): a(f"v_writelane_b32 v{V_STAMP}, s{CSR[i]}, {40+i}")
        if cfg.stamps in (10, 12):
            for i in range(6): a(f"v_writelane_b32 v{V_STAMP}, s{[32, 34, 92, 94, 96, 98][i]}, {40+i}")
        if cfg.stamps in (5, 6): a(f"v_writelane_b32 v{V_STAMP}, s{S_SPIN}, 63")
        a(f"s_lshl_b32 s{S_T0}, s2, 3\ns_add_u32 s{S_T0}, s{S_T0}, s{S_W}\ns_lshl_b32 s{S_T0}, s{S_T0}, 8\ns_add_u32 s{S_T0}, s{S_T0}, {WS_DBG}")
        a(f"v_lshlrev_b32 v2, 2, v{V_LANE}\nbuffer_store_dword v{V_STAMP}, v2, {sr(R_WS,4)}, s{S_T0} offen")
        if cfg.stamps == 3:
            a(f"s_add_u32 s{S_T0}, s{S_T0}, 0x80000\nbuffer_store_dword v253, v2, {sr(R_WS,4)}, s{S_T0} offen\ns_add_u32 s{S_T0}, s{S_T0}, 0x80000\nbuffer_store_dword v254, v2, {sr(R_WS,4)}, s{S_T0} offen")
    pad("end")
    a.label("L_end")
    a("s_endpgm")
    a(late[0])
    if cfg.brks is None: brk("x")
    for l in late[1:]: a(l)
    a.label("L_fb")
    a(f"v_mov_b32 v8, 0xff800000\ns_mov_b32 s{S_CNT}, {WS_KV}")
    a(f"v_subrev_u32 v10, {L_KV}, v{V_VA}")
    a.label("L_fb1")
    a(f"buffer_load_dwordx4 {vr(KF,4)}, v{V_L16}, {sr(R_WS,4)}, s{S_CNT} offen sc1\ns_waitcnt vmcnt(0)")
    a(mfma32(S0, KF, QF, None)); a.nop(12)
    for l in maxtree(S0, 8, init=True): a(l)
    a(f"s_add_u32 s{S_CNT}, s{S_CNT}, 2048\ns_cmp_lt_u32 s{S_CNT}, {WS_KV + 64*2048}\ns_cbranch_scc1 L_fb1")
    setC(8, 0.0)
    for i in range(16): a(f"v_mov_b32 v{OO+i}, 0")
    a(f"s_mov_b32 s{S_CNT}, {WS_KV}")
    a.label("L_fb2")
    a(f"buffer_load_dwordx4 {vr(KF,4)}, v{V_L16}, {sr(R_WS,4)}, s{S_CNT} offen sc1")
    a(f"s_mov_b64 exec, {sr(S_VM,2)}")
    a(f"buffer_load_dwordx4 {vr(VF,4)}, v10, {sr(R_WS,4)}, s{S_CNT} offen sc1")
    a(f"buffer_load_dwordx4 {vr(VF+4,4)}, v10, {sr(R_WS,4)}, s{S_CNT} offen offset:512 sc1")
    a("s_mov_b64 exec, -1\ns_waitcnt vmcnt(0)")
    a(mfma32(S0, KF, QF, CC)); a.nop(12)
    for i in range(16): a(f"v_exp_f32 v{S0+i}, v{S0+i}")
    a.nop(2)
    a(smf(OO, VF, S0)); a(smf(OO, VF + 4, S0 + 8))
    a(f"s_add_u32 s{S_CNT}, s{S_CNT}, 2048\ns_cmp_lt_u32 s{S_CNT}, {WS_KV + 64*2048}\ns_cbranch_scc1 L_fb2")
    a.nop(12)
    a(f"v_rcp_f32 v10, v{OO+8}\ns_nop 0\nv_mov_b32 v11, v10")
    normalize()
    for i in range(4): a(f"v_min_u32 v{12+i}, -2, v{12+i}")
    a(f"s_cmp_ge_u32 s{S_W}, 4\ns_cbranch_scc1 L_ostB\ns_branch L_ostA")
    a.label("L_code_end")
    return a

HEADER = open(f"cdna_kernels/{NAME}.s.ref").read().split("; Override launch")[0]
def wrap(a):
    s = HEADER + """; One persistent launch, one 8-wave workgroup per CU (all 256 are resident: 160 KiB LDS each). Generated by the author's script.
;  1. K/V rows, LayerNorm statistics and column sums of W are shared out over the workgroups, published in d_ws, arrival counted in d_debug.
;  2. [w_gate | w_up | w_q] projection on raw x, 128 x 256 tile; LayerNorm applied in the epilogue; h and q go to d_ws.
;  3. MQA attention with the down projection interleaved; 4. o exchange, w_o projection, gate, residual.
; Hand-offs use write-through stores and L1-bypassing loads; flags and 'not yet written' patterns are initialised inside the launch.
""" + "; @launch grid=(256,1,1) block=(512,1,1) lds=163840\n"
    s += f""".amdgcn_target "amdgcn-amd-amdhsa--gfx950"
.text
.globl {NAME}_kernel
.p2align 8
.type {NAME}_kernel,@function
{NAME}_kernel:
"""
    s += a.text()
    s += f""".section .rodata,"a"
.p2align 6
.amdhsa_kernel {NAME}_kernel
  .amdhsa_next_free_vgpr 256
  .amdhsa_next_free_sgpr 102
  .amdhsa_accum_offset 256
  .amdhsa_group_segment_fixed_size 0
  .amdhsa_kernarg_size 96
  .amdhsa_user_sgpr_count 2
  .amdhsa_user_sgpr_kernarg_segment_ptr 1
  .amdhsa_system_sgpr_workgroup_id_x 1
.end_amdhsa_kernel
"""
    return s

if __name__ == "__main__":
    cfg = Cfg()
    out = sys.argv[1]
    if "pair=False" not in sys.argv:
        cfg.sizes = [8, 8] + [6]*8; cfg.n_wo63 = 0; cfg.t_wd0 = (12, 15, 16, 16); cfg.mb0 = (3, 4, 5, 5, 6, 6, 7, 7); cfg.t_h0 = (18, 18, 19, 19)
        cfg.t_wo = (9, 10, 12, 13, 16, 17, 17, 28); cfg.t_code = (10, 42); cfg.t_chk = 18; cfg.t_poll = 15; cfg.t_flag = 10
    for kv in sys.argv[2:]:
        k, v = kv.split("=")
        setattr(cfg, k, eval(v))
    g0 = gen
    def gen(cfg):
        a = g0(cfg)
        if 'E' in cfg.ab or 'S' in cfg.ab:
            n = a.lines.index("L_qt:")
            for i in range(n):
                if a.lines[i].startswith("buffer_store") or ('E' in cfg.ab and a.lines[i].startswith("buffer_")): a.lines[i] = "s_nop 0"
            h = a.lines.index("L_helper:")
            k = 0
            for i in range(h, len(a.lines)):
                if a.lines[i].startswith("buffer_store") and k < 3:
                    a.lines[i] = f"buffer_load_dword v9, off, {sr(R_X,4)}, 0"; k += 1
        if cfg.jitter:
            import random
            rnd = random.Random(cfg.jitter)
            out_ = []; k = 0; started = False
            for i, l in enumerate(a.lines):
                if l.startswith("s_cbranch_scc1 L_helper"): started = True
                if started and (l == "s_barrier" or ("sc1" in l and rnd.random() < 0.3)) and rnd.random() < 0.5:
                    k += 1
                    out_ += ["s_cselect_b32 s101, 1, 0", f"s_lshl_b32 s100, s2, 3", f"s_add_u32 s100, s100, s{S_W}" if rnd.random() < 0.5 else "s_nop 0",
                             f"s_mul_i32 s100, s100, {rnd.randrange(1, 1 << 30) | 1}", "s_lshr_b32 s100, s100, 28", f"s_cmp_lt_u32 s100, {rnd.choice([1, 2, 4])}",
                             f"s_cbranch_scc0 L_jit{k}", f"s_sleep {rnd.choice([5, 20, 60, 120])}", f"L_jit{k}:", "s_cmp_eq_u32 s101, 1"]
                out_.append(l)
            a.lines = out_
        return a
    a = gen(cfg)
    if cfg.pages:
        import subprocess, re
        open("_p1.s", "w").write(wrap(a))
        subprocess.run(["clang", "-x", "assembler", "-target", "amdgcn-amd-amdhsa", "-mcpu=gfx950", "-c", "_p1.s", "-o", "_p1.o"], check=True)
        t = subprocess.run(["llvm-objdump", "-t", "_p1.o"], capture_output=True, text=True).stdout
        pts = sorted((int(m.group(1), 16), m.group(2), int(m.group(3))) for m in re.finditer(r"^([0-9a-f]+) .* L_brk_(\w)_(\d+)$", t, re.M))
        brks = {}; start = -0x300
        for (ad, k, i), (nx, _, _) in zip(pts, pts[1:]):
            if nx - start > 4096 - 112:
                brks[i] = k; start = ad
        cfg.brks = brks
        a = gen(cfg)
    else:
        cfg.brks = {}
        a = gen(cfg)
    errs = check(a.lines)
    for e in errs: print("HAZARD need %d have %d:\n   %s\n   %s" % (e[2], e[3], e[0], e[1]))
    open(out, "w").write(wrap(a))
    print("wrote", out, len(a.lines), "lines", len(errs), "hazards")
```

```python
import sys, math
from asmlib import Asm, vr, sr, f2u, check

NAME = "recurrent_scan__grouped_kv_mqa__glu_gated_geglu__prompt"

class Cfg:
    stamps = False
    stop = None
    force_fb = False
    shift = 101.0
    upd = (5,)
    brks = None
    pages = True
    touch = True
    far = ('L_attA', 'L_attB')
    odelay = 0
    xmap = 0
    krot = 8
    bs0 = (0, 0)
    bsc = (2, 3, 4)
    bgadj = False
    hint = None
    bprep = False
    yfirst2 = False
    hnop = False
    ssl = 4
    lag = 0
    pair = True
    tbx = 13
    p_mrg = 9
    mb0 = None
    bm63 = 6
    t_wr = (52, 54, 56, 57, 58, 58, 60, 60, 61, 61, 62, 62, 62, 62, 62, 63)
    n_ga = 0
    pgath = False
    tprio = 1
    oord = (0, 1, 4, 5, 2, 3, 6, 7)
    oearly = 0
    sfl = ('sc1', 'sc1')
    hfl = 'sc1 nt'
    t_sb = 4
    e7 = 0
    itr = ()
    qsl = 2
    p0 = (4, 6)
    cs_in = False
    jitter = 0
    t_out = 0
    cs_late = False
    n_cs0 = 2
    n_csb = 4
    wfix = False
    stub = 's_nop 0\n'
    updm = 1
    updl = True
    cf = ('', '', '')
    nodot = False
    nodma = False
    nord = False
    sizes = [8, 8, 7] + [6]*6 + [5]
    ilen = 6
    g_init = 2
    t_pf = -1
    t_wo = (9, 10, 12, 13, 14, 15, 16, 17)
    t_wd0 = (15, 15, 16, 17)
    t_poll = 16
    bmid = 3
    lh = (1, 2, 3, 3, 4, 5, 6, 6)
    mb = (2, 3, 4, 5, 5, 6, 7, 7)
    dpos = (1, 1, 2, 2, 3, 4)
    hpos = (4, 5, 5, 6)
    hwait = {0: 0, 1: 3}
    t_h0 = (19, 19, 20, 20)
    t_chk = 19
    pbar = 1
    n_csa = 4
    lead0 = 10
    oflag = 'sc1'
    n_wo63 = 6
    nt = ''
    t_code = (12, 43)
    ofast = 0
    olate = 1
    yfirst = True
    n_gb = 1
    n_b0 = 0
    oswap = False
    t_tr = 30
    n_gp = 5
    i_q = 5
    i_qb = 2
    n_poll = 0
    e6 = 0
    pf_first = True
    bp = 0
    g_h = 29
    c_st = (-2, 0)
    c_q = (2, 99, 4, 0)
    gpos = 0
    g_tr = 4
    mord = 3
    g_early = True
    mswap = False
    c_arr = 1
    lead = [8, 10, 12, 9, 12, 12]
    n_pre = (2, 4)
    n_fin = (7, 6)
    g_cs = (3, 4, 5, 6)
    g_csc = 9
    bprio = 3
    st_rate = 0.5
    t_flag = 11
    t_kv2 = 6
    m16 = False
    ladder = True
    pp = -1
    pos = [(2, 6, 12), (2, 6, 10, 14), (1, 4, 7, 10, 13)]
    pa = 2
    pv = (1, 1)
    ab = ''
    pad = None

WS_KV, WS_ST, WS_FL, WS_CS, WS_O, WS_H, WS_DBG, WS_Q = 0, 0x80000, 0x28000, 0x40000, 0x100000, 0x400000, 0xC00000, 0xE00000
WS_HINT = 0xA0000
WS_SIZE = 0x1000000
L_X, L_W, L_R = 0, 49152, 147456
L_KV, L_WD, L_WO = 0, 65536, 98304
P_X, P_WQ, P_WK, P_WV, P_WO, P_WG, P_WU, P_WD, P_OUT, P_DBG, P_WS = 4, 6, 8, 10, 12, 16, 18, 20, 22, 24, 26
R_X, R_WKV, R_WD, R_WO, R_OUT, R_DBG, R_WS = 28, 32, 36, 40, 44, 48, 52
S_W, S_RB, S_CB, S_RT64, S_CT8 = 56, 57, 58, 59, 60
S_T16 = 61
S_VM = 62
S_XOFF = 64
S_WOFF = 65
S_HW = 66
S_ONES = 67
S_T0, S_T1, S_T2, S_T3 = 68, 69, 70, 71
S_OST = 72
S_FLG = 73
S_HST = 74
S_KQ, S_RT = 75, 76
S_WDO = 77
S_HLD = 78
S_W4K = 79
S_W2K = 80
S_SPIN = 81
S_WOO = 82
S_OLD = 83
S_EX = 84
S_TS = 86
S_CNT = 88
S_WSTEP = 89
S_TS2 = 90
S_RET = 0
R_W, R_CW = 92, 96
S_H4K = 3
S_HSB = 14
S_M0W = 15
SPIN_MAX = 1 << 18

V_LANE = 1
V_STAMP = 255
V_L16, V_KA, V_WDD, V_VA, V_DA, V_PO, V_FO, V_XR, QF = 208, 209, 210, 211, 212, 214, 215, 216, 220
V_GA = 0

def mfma32(d, a, b, c):
    cs = "0" if c is None else vr(c, 16)
    return f"v_mfma_f32_32x32x16_bf16 {vr(d,16)}, {vr(a,4)}, {vr(b,4)}, {cs}"
V_IDX = 124
def smf(d, a, b):
    return f"v_smfmac_f32_32x32x32_bf16 {vr(d,16)}, {vr(a,4)}, {vr(b,8)}, v{V_IDX}"
def mfma16(d, a, b, c):
    cs = "0" if c is None else vr(c, 4)
    return f"v_mfma_f32_16x16x32_bf16 {vr(d,4)}, {vr(a,4)}, {vr(b,4)}, {cs}"

def gen(cfg):
    a = Asm()
    nst = [0]
    def stamp(final=False, name=None):
        if not cfg.stamps: return
        i = nst[0]; nst[0] += 1
        if cfg.stamps in (8, 9, 10, 11, 12) and i and not final: return
        if cfg.stamps == 7:
            if isinstance(name, int): i = name
            elif final: i = 9
            elif name == "b0": i = 7
            elif name == "g1": i = 8
            elif i: return
        elif isinstance(name, int):
            nst[0] -= 1; return
        if cfg.stamps == 5:
            marks = {"b0": 2, "g1": 3, "att0": 4, "att1": 5}
            if final: i = 1
            elif name in marks: i = marks[name]
            elif i: return
        a(f"s_memrealtime {sr(S_TS,2)}\ns_memtime {sr(S_TS2,2)}\ns_waitcnt lgkmcnt(0)\nv_writelane_b32 v{V_STAMP}, s{S_TS}, {i}\nv_writelane_b32 v{V_STAMP}, s{S_TS2}, {32+i}")
    nbrk = [0]
    def brk(kind):
        i = nbrk[0]; nbrk[0] += 1
        if cfg.brks is None: a.label(f"L_brk_{kind}_{i}")
        elif i in cfg.brks:
            a(f"s_branch L_pg{i}\n.p2align 12\nL_stub{i}:\n" + cfg.stub + f"s_setpc_b64 {sr(S_RET,2)}\nL_pg{i}:")
    FAR = {"L_qt": "e", "L_joinA": "e", "L_attA": "a", "L_attB": "a", "L_fin2": "a"}
    def far(label, fall=False):
        if label in cfg.far:
            if fall: a(f"s_branch {label}")
            a(f".p2align 6\nL_stub{label}:\ns_nop 0\ns_setpc_b64 {sr(S_RET,2)}")
        a.label(label)
    def touch(kinds, first, n, maxn):
        ids = [] if cfg.brks is None else [i for i, k in cfg.brks.items() if k in kinds] + [l for l, k in FAR.items() if k in kinds and l in cfg.far]
        assert len(ids) <= maxn
        for j in range(maxn):
            if j < len(ids) and cfg.touch: a(f"s_cmp_eq_u32 s{S_HW}, {first + j % n}\ns_cbranch_scc0 L_nt{ids[j]}\ns_call_b64 {sr(S_RET,2)}, L_stub{ids[j]}\nL_nt{ids[j]}:")
            elif cfg.brks is None: a("s_nop 0\ns_nop 0\ns_nop 0")
    ncs = [0]
    CSR = [4, 6, 8, 10, 12] + list(range(16, 28, 2)) + [32, 34, 92, 94, 96, 98, 48]
    def cstamp(mode=8):
        if cfg.stamps != mode: return
        a(f"s_memtime {sr(CSR[ncs[0]], 2)}"); ncs[0] += 1
    def c12(k):
        if cfg.stamps == 12: a(f"s_memtime {sr([32, 34, 92, 94, 96, 98][k], 2)}\ns_waitcnt lgkmcnt(0)")
    def pad(pt):
        if not cfg.pad or cfg.pad[0] != pt: return
        if len(cfg.pad) > 2:
            inv = cfg.pad[2] == 2
            a(f"s_and_b32 s{S_T0}, s{S_TS}, 0x7fffffff")
            if inv: a(f"s_not_b32 s{S_T0}, s{S_T0}")
            a(f"v_mov_b32 v2, s{S_T0}\ns_mov_b64 exec, 1\nbuffer_atomic_umax v2, off, {sr(R_DBG,4)}, 0 offset:4 sc1\ns_mov_b64 exec, -1")
            a(f"L_pad0:\ns_memrealtime {sr(S_TS2,2)}\ns_waitcnt lgkmcnt(0)\ns_sub_u32 s{S_TS2}, s{S_TS2}, s{S_TS}\ns_cmp_lt_u32 s{S_TS2}, {int(cfg.pad[1]*100) - 1500}\ns_cbranch_scc1 L_pad0")
            a(f"buffer_load_dword v2, off, {sr(R_DBG,4)}, 0 offset:4 sc1\ns_waitcnt vmcnt(0)\nv_readfirstlane_b32 s{S_T0}, v2\ns_nop 3")
            if inv: a(f"s_not_b32 s{S_T0}, s{S_T0}")
            a(f"s_and_b32 s{S_TS}, s{S_TS}, 0x80000000\ns_or_b32 s{S_TS}, s{S_TS}, s{S_T0}")
        a(f"L_pad{len(a.lines)}:\ns_memrealtime {sr(S_TS2,2)}\ns_waitcnt lgkmcnt(0)\ns_sub_u32 s{S_TS2}, s{S_TS2}, s{S_TS}\ns_cmp_lt_u32 s{S_TS2}, {int(cfg.pad[1]*100)}\ns_cbranch_scc1 L_pad{len(a.lines)}")
    def srd(r, p, size):
        a(f"s_mov_b32 s{r}, s{p}\ns_and_b32 s{r+1}, s{p+1}, 0xffff\ns_mov_b32 s{r+2}, {hex(size)}\ns_mov_b32 s{r+3}, 0x20000")

    a(f"s_cmp_ge_u32 s2, 256\ns_cbranch_scc1 L_end")
    if cfg.pad: a(f"s_memrealtime {sr(S_TS,2)}")
    a(f"s_load_dwordx16 s[4:19], s[0:1], 0\ns_load_dwordx8 s[20:27], s[0:1], 64")
    if cfg.stamps:
        a(f"v_mov_b32 v{V_STAMP}, 0")
    a(f"v_lshrrev_b32 v2, 6, v0\nv_and_b32 v{V_LANE}, 63, v0")
    a(f"s_getpc_b64 {sr(S_EX,2)}")
    a.label("L_pc")
    a(f"""
    v_readfirstlane_b32 s{S_W}, v2
    s_and_b32 s{S_T0}, s2, 0xf8
    v_add_u32 v2, s{S_T0}, v2
    v_lshl_add_u32 v2, v2, 1, v{V_LANE}
    v_lshlrev_b32 v252, 7, v2
    v_min_u32 v252, L_code_end-L_pc-4, v252
    v_mov_b32 v253, 0
    v_lshl_add_u64 v[252:253], v[252:253], 0, {sr(S_EX,2)}
    s_mov_b64 exec, 3
    global_load_dword v9, v[252:253], off
    s_mov_b64 exec, -1
    """)
    if cfg.lag: a(f"s_and_b32 s{S_T0}, s2, 7\ns_cmp_lg_u32 s{S_T0}, 3\ns_cbranch_scc1 L_nolag\ns_sleep {cfg.lag}\nL_nolag:")
    a(f"""
    s_and_b32 s{S_T0}, s2, 7
    s_lshr_b32 s{S_T1}, s2, 3
    s_and_b32 s{S_CT8}, s{S_T1}, 7
    """)
    if cfg.xmap == 1:
        a(f"""
        s_and_b32 s{S_RB}, s{S_T1}, 15
        s_lshr_b32 s{S_T2}, s2, 7
        s_lshl_b32 s{S_CB}, s{S_T0}, 1
        s_add_u32 s{S_CB}, s{S_CB}, s{S_T2}
        s_lshr_b32 s{S_T1}, s{S_T1}, 3
        """)
    elif cfg.xmap == 2:
        a(f"""
        s_and_b32 s{S_T2}, s{S_T0}, 3
        s_lshl_b32 s{S_T2}, s{S_T2}, 2
        s_and_b32 s{S_RB}, s{S_T1}, 3
        s_add_u32 s{S_RB}, s{S_RB}, s{S_T2}
        s_and_b32 s{S_T2}, s{S_T0}, 4
        s_lshl_b32 s{S_T2}, s{S_T2}, 1
        s_lshr_b32 s{S_CB}, s{S_T1}, 2
        s_add_u32 s{S_CB}, s{S_CB}, s{S_T2}
        s_lshr_b32 s{S_T1}, s{S_T1}, 3
        """)
    else:
        a(f"""
        s_and_b32 s{S_T2}, s{S_T0}, 1
        s_lshl_b32 s{S_T2}, s{S_T2}, 3
        s_add_u32 s{S_RB}, s{S_T2}, s{S_CT8}
        s_lshr_b32 s{S_T1}, s{S_T1}, 3
        s_lshr_b32 s{S_T2}, s{S_T0}, 1
        s_lshl_b32 s{S_T2}, s{S_T2}, 2
        s_add_u32 s{S_CB}, s{S_T2}, s{S_T1}
        """)
    a(f"""
    s_lshl_b32 s{S_T2}, s{S_T0}, 2
    s_add_u32 s{S_RT64}, s{S_T2}, s{S_T1}
    s_and_b32 s{S_HW}, s{S_W}, 3
    s_lshl_b32 s{S_H4K}, s{S_HW}, 12
    v_lshlrev_b32 v{V_L16}, 4, v{V_LANE}
    s_mov_b32 s{R_X+2}, 0x200000
    s_mov_b32 s{R_X+3}, 0x20000
    s_cmp_ge_u32 s{S_W}, 4
    s_cbranch_scc1 L_helper
    """)

    sizes = cfg.sizes
    assert sum(sizes) == 64
    starts = [sum(sizes[:i]) for i in range(len(sizes))]
    S0, S1, PP, OO, CC, KF, VF = 16, 32, 48, 64, 80, 100, 108
    YY, HF, DF = 128, 160, 192
    HO = 160
    V_OA, V_PA = 126, 125
    OX, CX, QX = 224, 48, 96
    if cfg.pair: WOF = [240, 244, 248, 176, 180, 184, 188, 160, 48, 52, 164, 56, 60, 168, 96, 172]
    else: WOF = [48, 52, 56, 96, 60] + list(range(224, 252, 4)) + [176, 180, 184, 188]
    wo_rd = [f"ds_read_b64_tr_b16 {vr(WOF[2*j+ct] + 2*t,2)}, v{V_OA+ct} offset:{cfg.oord[j]*2048 + t*512}" for j in range(8) for ct in range(2) for t in range(2)]
    def kv_off(t):
        c = max(i for i in range(len(starts)) if starts[i] <= t)
        return ((c + 1) % 3) * 16384 + (t - starts[c]) * 2048
    qload = f"buffer_load_dwordx4 {vr(QF,4)}, v{V_L16}, {sr(R_WS,4)}, s{S_T2} offen sc1"

    XS = [2, 0, 1, 2, 0, 1, 2, 0]
    L_PX = L_X + XS[2]*16384
    def setup_ids():
        a(f"""
        s_lshr_b32 s{S_KQ}, s{S_W}, 1
        s_and_b32 s{S_RT}, s{S_W}, 1
        s_lshl_b32 s{S_T2}, s{S_RT64}, 1
        s_add_u32 s{S_T2}, s{S_T2}, s{S_RT}
        s_lshl_b32 s{S_T0}, s{S_T2}, 3
        s_add_u32 s{S_T0}, s{S_T0}, s{S_CT8}
        s_lshl_b32 s{S_T0}, s{S_T0}, 2
        s_add_u32 s{S_T0}, s{S_T0}, s{S_KQ}
        s_lshl_b32 s{S_T0}, s{S_T0}, 10
        s_add_u32 s{S_OST}, s{S_T0}, {WS_O}
        s_lshl_b32 s{S_T0}, s2, 7
        s_lshl_b32 s{S_T1}, s{S_W}, 2
        s_add_u32 s{S_T0}, s{S_T0}, s{S_T1}
        s_add_u32 s{S_FLG}, s{S_T0}, {WS_FL}
        """)
    def common_setup():
        srd(R_WD, P_WD, 1792 * 1024)
        srd(R_WO, P_WO, 512 * 1024)
        srd(R_OUT, P_OUT, 0x200000)
        a(f"""
        s_lshl_b32 s{S_W4K}, s{S_W}, 12
        s_lshl_b32 s{S_W2K}, s{S_W}, 11
        s_mov_b32 s{S_VM}, 0xffff
        s_mov_b32 s{S_VM+1}, 0xffff
        s_lshl_b32 s{S_T2}, s{S_RT64}, 1
        s_add_u32 s{S_T2}, s{S_T2}, s{S_RT}
        s_mul_i32 s{S_T0}, s{S_KQ}, {448*1024}
        s_lshl_b32 s{S_T1}, s{S_RT}, 15
        s_add_u32 s{S_T0}, s{S_T0}, s{S_T1}
        s_lshl_b32 s{S_T1}, s{S_CT8}, 7
        s_add_u32 s{S_WDO}, s{S_T0}, s{S_T1}
        s_lshl_b32 s{S_T0}, s{S_W}, 15
        s_add_u32 s{S_WOO}, s{S_T0}, s{S_T1}
        s_and_b32 s{S_T0}, s{S_CT8}, {1 if cfg.oswap else 0}
        s_lshl_b32 s{S_T16}, s{S_T0}, 18
        s_add_u32 s{S_WOO}, s{S_WOO}, s{S_T16}
        s_mul_i32 s{S_T0}, s{S_T2}, 112
        s_mul_i32 s{S_T3}, s{S_KQ}, 28
        s_add_u32 s{S_T0}, s{S_T0}, s{S_T3}
        s_lshl_b32 s{S_T0}, s{S_T0}, 10
        s_add_u32 s{S_HLD}, s{S_T0}, {WS_H}
        s_lshl_b32 s{S_T0}, s{S_T2}, 15
        s_lshl_b32 s{S_T3}, s{S_KQ}, 13
        s_add_u32 s{S_T3}, s{S_T0}, s{S_T3}
        s_lshr_b32 s{S_T0}, s{S_T16}, 4
        s_xor_b32 s{S_OLD}, s{S_T3}, s{S_T0}
        s_add_u32 s{S_OLD}, s{S_OLD}, {WS_O}
        s_add_u32 s{S_T0}, s{S_T3}, s{S_T1}
        v_lshrrev_b32 v3, 5, v{V_LANE}
        v_bfe_u32 v5, v{V_LANE}, 3, 1
        v_lshl_add_u32 v2, v3, 1, v5
        v_bfe_u32 v7, v{V_LANE}, 4, 1
        v_lshl_add_u32 v4, v7, 2, v2
        v_and_b32 v6, 7, v{V_LANE}
        v_lshlrev_b32 v8, 4, v6
        v_lshl_add_u32 v4, v4, 10, v8
        v_add_u32 v{V_FO}, s{S_T0}, v4
        v_lshlrev_b32 v2, 8, v2
        v_lshl_add_u32 v2, v7, 7, v2
        v_lshl_add_u32 v2, v5, 4, v2
        v_and_b32 v4, 3, v6
        v_lshl_add_u32 v2, v4, 5, v2
        v_lshrrev_b32 v4, 2, v6
        v_lshl_add_u32 v2, v4, 12, v2
        s_lshl_b32 s{S_T0}, s{S_RT}, 13
        s_lshl_b32 s{S_T1}, s{S_KQ}, 10
        s_add_u32 s{S_T0}, s{S_T0}, s{S_T1}
        v_add_u32 v{V_GA}, s{S_T0}, v2
        v_add_u32 v{V_KA}, {L_KV}, v{V_L16}
        v_and_b32 v2, 15, v{V_LANE}
        v_lshl_add_u32 v2, v3, 4, v2
        v_lshlrev_b32 v2, 4, v2
        v_add_u32 v{V_VA}, {L_KV + 1024}, v2
        v_lshrrev_b32 v5, 3, v{V_LANE}
        v_and_b32 v6, 7, v{V_LANE}
        v_bfe_u32 v7, v{V_LANE}, 4, 1
        v_lshlrev_b32 v8, 2, v7
        v_xor_b32 v6, v6, v8
        v_lshlrev_b32 v6, 4, v6
        v_lshl_add_u32 v{V_WDD}, v5, 10, v6
        v_and_b32 v2, 1, v{V_LANE}
        v_bfe_u32 v4, v{V_LANE}, 1, 1
        v_lshl_add_u32 v2, v2, 1, v4
        v_bfe_u32 v5, v{V_LANE}, 2, 2
        v_lshl_add_u32 v4, v3, 3, v5
        v_lshlrev_b32 v4, 7, v4
        v_and_b32 v6, 2, v5
        v_xor_b32 v6, v6, v7
        v_lshl_add_u32 v6, v6, 5, v4
        v_and_b32 v8, 3, v{V_LANE}
        v_lshl_add_u32 v6, v8, 3, v6
        v_lshl_add_u32 v4, v2, 3, v4
        s_lshl_b32 s{S_T0}, s{S_KQ}, 13
        s_add_u32 s{S_T0}, s{S_T0}, {L_WD}
        v_add_u32 v{V_DA}, s{S_T0}, v6
        v_xor_b32 v{V_DA+1}, 64, v{V_DA}
        """)
        a(f"""
        s_lshr_b32 s{S_T0}, s{S_RT64}, 1
        s_lshl_b32 s{S_T0}, s{S_T0}, 3
        s_lshl_b32 s{S_T1}, s{S_KQ}, 1
        s_add_u32 s{S_T0}, s{S_T0}, s{S_T1}
        s_lshl_b32 s{S_T0}, s{S_T0}, 7
        v_and_b32 v2, 3, v{V_LANE}
        v_lshlrev_b32 v6, 2, v2
        v_and_b32 v8, 1, v5
        v_lshl_add_u32 v6, v8, 14, v6
        v_lshrrev_b32 v8, 1, v5
        v_lshl_add_u32 v6, v8, 7, v6
        """ if cfg.xmap == 1 else f"""
        s_lshr_b32 s{S_T0}, s{S_RT64}, 3
        s_and_b32 s{S_T1}, s{S_KQ}, 2
        s_lshl_b32 s{S_T1}, s{S_T1}, 1
        s_add_u32 s{S_T0}, s{S_T0}, s{S_T1}
        s_bfe_u32 s{S_T2}, s{S_RT64}, 0x20001
        s_lshl_b32 s{S_T2}, s{S_T2}, 3
        s_add_u32 s{S_T0}, s{S_T0}, s{S_T2}
        s_and_b32 s{S_T1}, s{S_KQ}, 1
        s_lshl_b32 s{S_T1}, s{S_T1}, 7
        s_add_u32 s{S_T0}, s{S_T0}, s{S_T1}
        s_lshl_b32 s{S_T0}, s{S_T0}, 7
        s_lshl_b32 s{S_T1}, s{S_KQ}, 1
        v_and_b32 v2, 3, v{V_LANE}
        v_lshlrev_b32 v6, 2, v2
        v_lshl_add_u32 v6, v5, 12, v6
        """ if cfg.xmap == 2 else f"""
        s_lshr_b32 s{S_T0}, s{S_RT64}, 4
        s_lshl_b32 s{S_T1}, s{S_KQ}, 1
        s_add_u32 s{S_T0}, s{S_T0}, s{S_T1}
        s_bfe_u32 s{S_T2}, s{S_RT64}, 0x30001
        s_lshl_b32 s{S_T2}, s{S_T2}, 3
        s_add_u32 s{S_T0}, s{S_T0}, s{S_T2}
        s_lshl_b32 s{S_T0}, s{S_T0}, 7
        v_and_b32 v2, 3, v{V_LANE}
        v_lshlrev_b32 v6, 2, v2
        v_lshl_add_u32 v6, v5, 13, v6
        """)
        a(f"""
        v_add_u32 v6, s{S_T0}, v6
        s_lshr_b32 s{S_T0}, s{S_T16}, 16
        s_xor_b32 s{S_T1}, s{S_T1}, s{S_T0}
        s_and_b32 s{S_T0}, s2, 0xc7
        s_lshl_b32 s{S_T1}, s{S_T1}, 3
        s_add_u32 s{S_T0}, s{S_T0}, s{S_T1}
        s_lshl_b32 s{S_T0}, s{S_T0}, 7
        s_lshl_b32 s{S_T1}, s{S_RT}, 2
        s_add_u32 s{S_T0}, s{S_T0}, s{S_T1}
        v_and_b32 v8, 1, v5
        v_lshlrev_b32 v8, 10, v8
        v_lshl_add_u32 v8, v2, 3, v8
        v_cmp_gt_u32 vcc, 16, v{V_LANE}
        v_add_u32 v8, s{S_T0}, v8
        s_nop 0
        v_cndmask_b32 v{V_PO}, v8, v6, vcc
        """)

    def img_params(simg, sstride, soff):
        a(f"""
        s_lshr_b32 s{S_T0}, s{S_CB}, 2
        s_and_b32 s{S_T1}, s{S_CB}, 3
        s_mul_i32 s{soff}, s{S_T0}, 896
        s_lshl_b32 s{S_T2}, s{S_T1}, 8
        s_add_u32 s{soff}, s{soff}, s{S_T2}
        s_lshr_b32 s{S_T2}, s{simg}, 1
        s_lshl_b32 s{S_T1}, s{S_T1}, 1
        s_add_u32 s{S_T1}, s{S_T1}, s{S_T2}
        s_lshl_b32 s{S_T2}, s{S_T2}, 7
        s_add_u32 s{soff}, s{soff}, s{S_T2}
        s_lshl_b32 s{S_T0}, s{S_T0}, 1
        s_and_b32 s{S_T2}, s{simg}, 1
        s_add_u32 s{S_T0}, s{S_T0}, s{S_T2}
        s_lshl_b32 s{S_T0}, s{S_T0}, 7
        s_movk_i32 s{sstride}, 3584
        s_cmp_eq_u32 s{S_T1}, 7
        s_cselect_b32 s{soff}, s{S_T0}, s{soff}
        s_cselect_b32 s{sstride}, 1024, s{sstride}
        """)
    def img_srd(r, sstride):
        a(f"""
        s_cmp_eq_u32 s{S_T2}, 0
        s_cselect_b32 s{r}, s{P_WG}, s{P_WU}
        s_cselect_b32 s{r+1}, s{P_WG+1}, s{P_WU+1}
        s_cmp_eq_u32 s{S_T1}, 7
        s_cselect_b32 s{r}, s{P_WQ}, s{r}
        s_cselect_b32 s{r+1}, s{P_WQ+1}, s{r+1}
        s_and_b32 s{r+1}, s{r+1}, 0xffff
        s_lshl_b32 s{r+2}, s{sstride}, 9
        s_mov_b32 s{r+3}, 0x20000
        """)

    ACC, XF, WF, V_XA, V_WR = 16, 144, 176, 248, 250
    RWP, RWQ, RA = 216, 232, 2
    L_RA = L_W + 8192
    def acc(ti, rt): return ACC + 64*ti + 16*rt
    KG = 2.0 * math.sqrt(2.0 / math.pi) * math.log2(math.e)
    a('; ==== waves 0..3, start: K or V tile of 16 rows (LayerNorm folded in), row statistics, share of the W column sums ====')
    assert cfg.krot == 8 and cfg.g_init in (-1, 0, 2)
    CL, CSUM = 16, 40
    a(f"""
    v_and_b32 v5, 15, v{V_LANE}
    v_lshrrev_b32 v6, 4, v{V_LANE}
    v_lshrrev_b32 v7, 3, v{V_LANE}
    v_and_b32 v4, 7, v{V_LANE}
    s_lshl_b32 s{S_T16}, s{S_RB}, 3
    s_lshr_b32 s{S_T2}, s{S_CB}, 1
    s_add_u32 s{S_T16}, s{S_T16}, s{S_T2}
    s_cmp_lg_u32 s{S_HW}, 0
    s_cbranch_scc1 L_csld
    v_xor_b32 v2, v6, v4
    v_lshlrev_b32 v2, 4, v2
    v_lshl_add_u32 v132, v7, 10, v2
    v_xor_b32 v133, 64, v132
    v_add_u32 v133, {8192-1024}, v133
    s_lshl_b32 s{S_XOFF}, s{S_T16}, 14
    s_mov_b32 s{R_WKV+2}, 0x4000
    s_mov_b32 s{R_WKV+3}, 0x20000
    s_mov_b32 m0, {L_PX}
    s_and_b32 s{S_T3}, s{S_CB}, 1
    s_waitcnt lgkmcnt(0)
    """)
    stamp()
    a(f"s_mov_b32 s{R_X}, s{P_X}\ns_and_b32 s{R_X+1}, s{P_X+1}, 0xffff")
    for gq in range(4):
        for kb in (2*gq, 2*gq + 1):
            if kb: a(f"s_mov_b32 m0, {L_PX + 2048*kb}\ns_add_u32 s{S_XOFF}, s{S_XOFF}, 128")
            a(f"buffer_load_dwordx4 v132, {sr(R_X,4)}, s{S_XOFF} offen lds\nbuffer_load_dwordx4 v133, {sr(R_X,4)}, s{S_XOFF} offen offset:1024 lds")
        if gq == 0:
            a(f"s_cmp_eq_u32 s{S_T3}, 0\ns_cselect_b32 s{R_WKV}, s{P_WK}, s{P_WV}\ns_cselect_b32 s{R_WKV+1}, s{P_WK+1}, s{P_WV+1}\ns_and_b32 s{R_WKV+1}, s{R_WKV+1}, 0xffff")
        a(f"s_mov_b32 m0, {L_R + 4096*gq}\ns_movk_i32 s{S_T0}, {4096*gq}")
        for e in range(4): a(f"buffer_load_dwordx4 v{V_L16}, {sr(R_WKV,4)}, s{S_T0} offen offset:{1024*e} lds")
        if cfg.p0 and gq + 1 == cfg.p0[0]:
            stamp(name=1); a("s_barrier"); stamp(name=2)
    n_ool = len(a.lines)
    if cfg.cs_in: a("s_branch L_ld_done")
    a.label("L_csld")
    a(f"s_and_b32 s{S_CNT}, s{S_RB}, 3")
    img_params(S_CNT, S_WSTEP, S_WOFF)
    a(f"""
    s_and_b32 s{S_T0}, s{S_RB}, 4
    s_and_b32 s{S_T3}, s{S_RB}, 8
    s_lshl_b32 s{S_T3}, s{S_T3}, 2
    s_add_u32 s{S_T0}, s{S_T0}, s{S_T3}
    s_lshl_b32 s{S_T0}, s{S_T0}, 3
    s_mul_i32 s{S_T0}, s{S_T0}, s{S_WSTEP}
    s_add_u32 s{S_WOFF}, s{S_T0}, s{S_WOFF}
    v_mul_u32_u24 v8, s{S_WSTEP}, v7
    v_lshl_add_u32 v219, v4, 4, v8
    s_waitcnt lgkmcnt(0)
    """)
    nst[0] = 0
    stamp()
    a(f"s_mov_b32 s{R_X}, s{P_X}\ns_and_b32 s{R_X+1}, s{P_X+1}, 0xffff")
    img_srd(R_CW, S_WSTEP)
    a(f"s_lshl_b32 s{S_WSTEP}, s{S_WSTEP}, 3")
    def csload(i):
        t = (f"s_add_u32 s{S_T0}, s{S_HW}, {3*i - 1}\ns_and_b32 s{S_T1}, s{S_T0}, 28\ns_add_u32 s{S_T1}, s{S_T1}, s{S_T0}\ns_mul_i32 s{S_T1}, s{S_T1}, s{S_WSTEP}\ns_add_u32 s{S_T1}, s{S_T1}, s{S_WOFF}\n")
        if i == 5: t += f"s_cmp_gt_u32 s{S_T0}, 15\ns_cselect_b32 s{S_T1}, s{R_CW+2}, s{S_T1}\n"
        return t + f"buffer_load_dwordx4 {vr(CL+4*i,4)}, v219, {sr(R_CW,4)}, s{S_T1} offen"
    for i in range(6):
        a(csload(i))
        if cfg.p0 and i + 1 == cfg.p0[1]:
            stamp(name=1); a("s_barrier"); stamp(name=2)
    if not cfg.cs_in:
        a("s_branch L_ld_done")
        ool = a.lines[n_ool:]; del a.lines[n_ool:]
    a.label("L_ld_done")
    a(f"""
    s_mov_b32 s{S_ONES}, 0x3f803f80
    v_lshlrev_b32 v2, 3, v5
    v_lshl_add_u32 v2, v6, 8, v2
    v_add_u32 v130, {L_R}, v2
    v_lshrrev_b32 v3, 1, v5
    v_xor_b32 v3, v3, v6
    v_lshlrev_b32 v3, 4, v3
    v_lshl_add_u32 v3, v5, 7, v3
    v_mov_b32 v{V_XA}, v3
    v_xor_b32 v{V_XA+1}, 64, v3
    v_lshrrev_b32 v3, 5, v{V_LANE}
    v_and_b32 v7, 1, v6
    v_bfe_u32 v8, v{V_LANE}, 2, 2
    v_lshl_add_u32 v4, v6, 3, v8
    v_lshlrev_b32 v4, 7, v4
    v_and_b32 v2, 3, v{V_LANE}
    v_lshl_add_u32 v4, v2, 3, v4
    v_lshrrev_b32 v8, 1, v8
    v_lshl_add_u32 v8, v7, 1, v8
    v_xor_b32 v8, s{S_HW}, v8
    v_lshl_add_u32 v8, v8, 5, v4
    v_add_u32 v{V_WR}, {L_W}, v8
    v_add_u32 v{V_WR+1}, {L_W + 49152}, v8
    s_lshr_b32 s{S_EX}, s{S_T16}, 1
    s_lshl_b32 s{S_EX}, s{S_EX}, 11
    s_and_b32 s{S_T3}, s{S_T16}, 1
    s_and_b32 s{S_T2}, s{S_CB}, 1
    s_cmp_eq_u32 s{S_T2}, 0
    s_cbranch_scc0 L_pubV
    s_lshl_b32 s{S_T3}, s{S_T3}, 8
    s_add_u32 s{S_EX}, s{S_EX}, s{S_T3}
    v_lshl_add_u32 v2, v3, 5, v5
    s_lshl_b32 s{S_EX+1}, s{S_T16}, 10
    s_add_u32 s{S_EX+1}, s{S_EX+1}, {WS_ST}
    s_branch L_pub
    """)
    a.label("L_pubV")
    a(f"""
    s_lshl_b32 s{S_T3}, s{S_T3}, 9
    s_add_u32 s{S_EX}, s{S_EX}, s{S_T3}
    s_add_u32 s{S_EX}, s{S_EX}, 1024
    v_and_b32 v2, 3, v5
    v_bfe_u32 v4, v5, 2, 1
    v_lshl_add_u32 v2, v4, 3, v2
    v_bfe_u32 v4, v5, 3, 1
    v_lshl_add_u32 v2, v4, 2, v2
    v_lshl_add_u32 v2, v3, 4, v2
    s_mov_b32 s{S_EX+1}, {WS_SIZE}
    """)
    a.label("L_pub")
    a("v_lshlrev_b32 v2, 4, v2\nv_lshl_add_u32 v220, v7, 3, v2")
    def capture(fn):
        n = len(a.lines); fn(); L = a.lines[n:]; del a.lines[n:]; return L
    def part1():
        srd(R_WS, P_WS, WS_SIZE)
        a(f"""
        v_and_b32 v6, 7, v{V_LANE}
        v_lshrrev_b32 v4, 4, v{V_LANE}
        v_lshl_add_u32 v6, v6, 2, v4
        v_bfe_u32 v4, v{V_LANE}, 3, 1
        v_lshl_add_u32 v6, v6, 1, v4
        v_lshlrev_b32 v222, 2, v6
        s_lshl_b32 s{S_T0}, s{S_CB}, 14
        s_lshl_b32 s{S_T1}, s{S_RB}, 10
        s_add_u32 s{S_T0}, s{S_T0}, s{S_T1}
        s_lshl_b32 s{S_T1}, s{S_HW}, 8
        s_add_u32 s{S_T0}, s{S_T0}, s{S_T1}
        s_add_u32 s{S_CNT}, s{S_T0}, {WS_CS}
        """)
    def part2():
        setup_ids()
        for i in range(4): a(f"v_mov_b32 v{12+i}, -1")
        common_setup()
        a(f"""
        v_and_b32 v2, 0xff, v{V_L16}
        v_add_u32 v11, {L_R + 256}, v2
        v_xor_b32 v6, v3, v7
        v_lshl_add_u32 v2, v6, 9, v2
        v_add_u32 v10, {L_R}, v2
        s_lshl_b32 s{S_T0}, s{S_HW}, 11
        v_add_u32 v254, s{S_T0}, v{V_L16}
        s_mul_i32 s{S_T0}, s{S_HW}, 2208
        v_lshl_add_u32 v9, v3, 4, v{V_L16}
        v_add_u32 v9, s{S_T0}, v9
        s_lshr_b32 s{S_T0}, s{S_CB}, 2
        s_and_b32 s{S_T1}, s{S_CB}, 3
        s_mul_i32 s{S_T2}, s{S_RB}, 448
        s_mul_i32 s{S_T3}, s{S_T0}, 28
        s_add_u32 s{S_T2}, s{S_T2}, s{S_T3}
        s_lshl_b32 s{S_T3}, s{S_T1}, 3
        s_add_u32 s{S_T2}, s{S_T2}, s{S_T3}
        s_add_u32 s{S_T2}, s{S_T2}, s{S_HW}
        s_lshl_b32 s{S_T2}, s{S_T2}, 10
        s_add_u32 s{S_HST}, s{S_T2}, {WS_H}
        s_add_u32 s{S_HSB}, s{S_HST}, 4096
        s_lshl_b32 s{S_T2}, s{S_RB}, 7
        s_lshl_b32 s{S_T3}, s{S_T0}, 3
        s_add_u32 s{S_T2}, s{S_T2}, s{S_T3}
        s_add_u32 s{S_T2}, s{S_T2}, s{S_HW}
        s_lshl_b32 s{S_T2}, s{S_T2}, 10
        s_add_u32 s{S_T2}, s{S_T2}, {WS_Q}
        """)
    defer1 = capture(part1)
    defer2 = capture(part2) + [f"s_cmp_eq_u32 s{S_T1}, 3\ns_cselect_b32 s{S_HSB}, s{S_T2}, s{S_HSB}"]
    for l in defer1: a(l)
    defer1.clear()
    a(f"s_cmp_lg_u32 s{S_HW}, 0\ns_cbranch_scc1 L_cs")
    PF, PACC, PCS, PRS, PG, PSQ, PONE, PID, PSQP, PF1 = 16, 80, 84, 88, 92, 96, 100, 104, 106, 107
    for i in range(4): a(f"v_mov_b32 v{PONE+i}, s{S_ONES}")
    a(f"v_mov_b32 v{PF1}, 1.0\nv_mov_b32 v{PSQP}, 0\nv_mov_b32 v{PID}, 0\nv_mov_b32 v{PID+1}, 0\nv_mov_b32 v221, 0")
    a(f"s_mov_b32 s{S_T0}, 0x00100001\ns_mov_b32 s{S_T1}, 0x10000100")
    for r in range(4): a(f"s_lshl_b64 exec, {sr(S_T0,2)}, {r}\nv_mov_b32 v{PID + (r >> 1)}, {hex(0x4780 << (16*(r & 1)))}")
    a("s_mov_b64 exec, -1")
    if not cfg.p0: a("s_barrier")
    stamp(name=3)
    def p_reads(gq):
        f = PF + 32*(gq & 1); L = []
        for s in range(4):
            L.append(f"ds_read_b128 {vr(f+8*s,4)}, v{V_XA + (s & 1)} offset:{L_PX + 4096*gq + 2048*(s >> 1)}")
            L += [f"ds_read_b64_tr_b16 {vr(f+8*s+4+2*t,2)}, v130 offset:{4096*gq + 1024*s + 128*t}" for t in range(2)]
        return L
    a("s_waitcnt vmcnt(24)")
    for l in p_reads(0): a(l)
    for gq in range(4):
        a("s_waitcnt lgkmcnt(0)")
        rd = p_reads(gq + 1) if gq < 3 else []
        k = 0
        for s in range(4):
            x, w = PF + 32*(gq & 1) + 8*s, PF + 32*(gq & 1) + 8*s + 4
            for d, A_, B_ in ((PG, x, x), (PRS, PONE, x), (PCS, w, PONE), (PACC, w, x)):
                a(mfma16(d, A_, B_, None if gq + s == 0 else d))
                if k == 3 and gq < 3:
                    a(f"s_waitcnt vmcnt({16 - 8*gq})")
                    if gq == 2: stamp(); stamp(name=4)
                if k >= 3 and rd: a(rd.pop(0))
                k += 1
    a.nop(4)
    for r in range(4): a(f"s_lshl_b64 exec, {sr(S_T0,2)}, {r}\nv_mov_b32 v{PSQP}, v{PG+r}")
    a(f"""
    s_mov_b64 exec, -1
    v_mul_f32 v{PRS}, {hex(f2u(-1.0/512))}, v{PRS}
    v_mfma_f32_16x16x4_f32 {vr(PSQ,4)}, v{PF1}, v{PSQP}, 0
    """)
    for i in range(4): a(f"v_fmac_f32 v{PACC+i}, v{PRS}, v{PCS+i}")
    a(f"""
    v_cvt_pk_bf16_f32 v12, v{PRS}, v{PRS}
    v_and_b32 v2, 0xffff0000, v12
    v_sub_f32 v2, v{PRS}, v2
    v_cvt_pk_bf16_f32 v12, v{PRS}, v2
    s_and_b32 s{S_T2}, s{S_CB}, 1
    s_cmp_eq_u32 s{S_T2}, 0
    v_mul_f32 v14, {hex(f2u(1.0/512))}, v{PSQ}
    v_fma_f32 v14, -v{PRS}, v{PRS}, v14
    v_max_f32 v14, 0, v14
    v_add_f32 v14, {hex(f2u(1e-5))}, v14
    v_rsq_f32 v3, v14
    s_nop 0
    """)
    for i in range(4): a(f"v_mul_f32 v{PACC+i}, v{PACC+i}, v3")
    a(f"""
    v_cvt_pk_bf16_f32 v216, v{PACC}, v{PACC+1}
    v_cvt_pk_bf16_f32 v217, v{PACC+2}, v{PACC+3}
    s_cbranch_scc0 L_preV
    s_mov_b32 exec_lo, 0
    v_mov_b32 v12, 0
    s_and_b32 s{S_T0}, s{S_T16}, 1
    s_sub_u32 exec_lo, s{S_T0}, 1
    s_mov_b32 exec_hi, exec_lo
    v_swap_b32 v12, v14
    s_mov_b32 exec_lo, 0xffff0000
    s_mov_b32 exec_hi, 0
    v_mul_f32 v12, {hex(f2u(-KG))}, v3
    v_mul_f32 v2, v3, v3
    v_mul_f32 v14, {hex(f2u(0.044715))}, v12
    v_mul_f32 v14, v14, v2
    s_mov_b64 exec, -1
    v_mov_b32 v13, v12
    v_mov_b32 v15, v14
    s_branch L_nofin
    """)
    a.label("L_preV")
    a(f"s_nop 0\nv_mfma_f32_16x16x16_bf16 {vr(PACC,4)}, v[216:217], {vr(PID,2)}, 0")
    a.nop(8)
    a(f"v_cvt_pk_bf16_f32 v216, v{PACC}, v{PACC+1}\nv_cvt_pk_bf16_f32 v217, v{PACC+2}, v{PACC+3}\ns_branch L_nofin")
    n_ool = len(a.lines)
    a.label("L_cs")
    if not cfg.p0: a("s_barrier")
    stamp(name=3)
    touch("g", 1, 3, 4)
    for e in range(6):
        a(f"s_waitcnt vmcnt({5 - e})")
        for i in range(4):
            if e == 0: a(f"v_lshlrev_b32 v{CSUM+2*i}, 16, v{CL+i}\nv_and_b32 v{CSUM+2*i+1}, 0xffff0000, v{CL+i}")
            else: a(f"v_lshlrev_b32 v2, 16, v{CL+4*e+i}\nv_and_b32 v3, 0xffff0000, v{CL+4*e+i}\nv_add_f32 v{CSUM+2*i}, v{CSUM+2*i}, v2\nv_add_f32 v{CSUM+2*i+1}, v{CSUM+2*i+1}, v3")
    stamp(name=4)
    for j in range(4): a(f"v_permlane32_swap_b32 v{CSUM+j}, v{CSUM+4+j}")
    for j in (0, 2, 1, 3): a(f"v_add_f32 v{CSUM+j}, v{CSUM+j}, v{CSUM+4+j}")
    a(f"v_permlane16_swap_b32 v{CSUM}, v{CSUM+2}\ns_nop 0\nv_permlane16_swap_b32 v{CSUM+1}, v{CSUM+3}")
    a(f"v_add_f32 v{CSUM}, v{CSUM}, v{CSUM+2}\nv_add_f32 v{CSUM+1}, v{CSUM+1}, v{CSUM+3}\ns_nop 0")
    a(f"v_add_f32_dpp v221, v{CSUM}, v{CSUM} row_ror:8 row_mask:0xf bank_mask:0xf\nv_add_f32_dpp v221, v{CSUM+1}, v{CSUM+1} row_ror:8 row_mask:0xf bank_mask:0xc")
    if cfg.cs_in:
        a("s_branch L_nofin")
        ool = a.lines[n_ool:]; del a.lines[n_ool:]
    a.label("L_nofin")
    stamp(name=5)
    init = [f"buffer_store_dword v221, v222, {sr(R_WS,4)}, s{S_CNT} offen sc1",
            f"s_cmp_lg_u32 s{S_HW}, 0\ns_cbranch_scc1 L_nopub\n"
            f"buffer_store_dwordx2 v[216:217], v220, {sr(R_WS,4)}, s{S_EX} offen sc1\n"
            f"buffer_store_dwordx4 v[12:15], v{V_L16}, {sr(R_WS,4)}, s{S_EX+1} offen sc1\nL_nopub:"]
    if cfg.g_init == -1:
        for l in init: a(l)
    brk("g")
    stamp(name=6)
    a("s_barrier")
    nst[0] = 2
    stamp(name="b0"); pad("b0"); c12(0)
    def wf(K, mt): return WF + 8*mt + 4*K
    def x_reads(g):
        c, rt = divmod(g, 4)
        return [f"ds_read_b128 {vr(XF+16*(g&1)+8*nu+4*K,4)}, v{V_XA+K} offset:{XS[c]*16384 + (2*rt+nu)*2048}" for nu in range(2) for K in range(2)]
    def w_reads(c, mt):
        slot = (c + 2) % 3
        return [f"ds_read_b64_tr_b16 {vr(wf(K,mt)+2*t,2)}, v{V_WR+(mt>>1)} offset:{(mt&1)*24576 + slot*8192 + K*4096 + t*512}" for K in range(2) for t in range(2)]
    def mm(g, k, rev=False):
        nu, K = ((k >> 1) & 1) ^ ((k >> 2) & 1), (k & 1) ^ ((k >> 1) & 1)
        mt = 3 - (k >> 2) if rev else k >> 2
        d = acc(mt >> 1, g & 3) + 8*(mt & 1) + 4*nu
        return mfma16(d, wf(K, mt), XF + 16*(g&1) + 8*nu + 4*K, None if g < 4 and k & 1 == 0 else d)
    def rw_reads(rt, dst): return [f"ds_read_b128 {vr(dst+4*i,4)}, v{10 + (i >> 1)} offset:{2048*rt + 1024*(i & 1)}" for i in range(4)]
    op_reads = [f"ds_read_b128 {vr(RA+4*i,4)}, v9 offset:{L_RA + 1056*i}" for i in range(2)] + rw_reads(0, RWP) + rw_reads(1, RWQ)
    def rank1(ti, rt, rw): return mfma32(acc(ti, rt), RA + 4*ti, rw + 2, acc(ti, rt))
    def split2(src, dst, dup):
        if dup:
            return [f"v_cvt_pk_bf16_f32 v{dst}, v{src}, v{src}", f"v_and_b32 v2, 0xffff0000, v{dst}", f"v_sub_f32 v2, v{src}, v2", f"v_cvt_pk_bf16_f32 v{dst+1}, v2, v2"]
        return [f"v_cvt_pk_bf16_f32 v{dst}, v{src}, v{src}", f"v_and_b32 v2, 0xffff0000, v{dst}", f"v_sub_f32 v2, v{src}, v2", f"v_cvt_pk_bf16_f32 v{dst}, v{src}, v2", f"v_mov_b32 v{dst+1}, v{dst}"]
    for l in x_reads(0) + w_reads(0, 0) + w_reads(0, 1) + w_reads(0, 2): a(l)
    assert cfg.g_h == 29
    def half_step(g):
        c, rt = divmod(g, 4)
        gaps = [[] for _ in range(16)]
        if rt == 3 and g < 28 or g == cfg.g_h: gaps[0] = ["s_barrier"]
        top = "lgkmcnt(0)"
        if rt == 0:
            rd = dict(enumerate(w_reads(c, 3))); rd.update({4 + i: l for i, l in enumerate(x_reads(g + 1))})
            top = "lgkmcnt(8)"
        elif g == 31: rd = {8 + i: l for i, l in enumerate(rw_reads(2, WF + 16))}
        elif rt == 3: rd = dict(enumerate(x_reads(g + 1) + w_reads(c + 1, 0) + w_reads(c + 1, 1) + w_reads(c + 1, 2)))
        elif g == cfg.g_h: rd = {1 + i: l for i, l in enumerate(x_reads(g + 1) + op_reads)}
        else: rd = {2*i: l for i, l in enumerate(x_reads(g + 1))}
        if g == cfg.g_h + 1: top = "lgkmcnt(10)"
        for i, l in rd.items(): gaps[i].append(l)
        if rt == 0:
            gaps[3].append("s_waitcnt lgkmcnt(4)")
            gaps[11].append("s_waitcnt lgkmcnt(4)")
        brk("g" if g < 28 else "e")
        a("s_waitcnt " + ("vmcnt(0) " if g == 4*cfg.c_arr + 3 else "") + top)
        if g == cfg.g_init: gaps[9].append(init[0]); gaps[12].append(init[1])
        dl = defer1 if g <= cfg.g_init else defer2
        for k in range(16):
            if not gaps[k]:
                gaps[k] = dl[:2]; del dl[:2]
        assert not (g >= 2 and defer1) and not (g >= 27 and defer2)
        for k in range(16):
            a(mm(g, k, g == 31))
            for l in gaps[k]: a(l)
            if g == 31 and k == 3: a(("s_waitcnt lgkmcnt(4)\n" if cfg.g_h == 30 else "") + rank1(0, 0, RWP))
            if k == 0 and (g == 27 or (cfg.stamps == 4 and g & 3 == 3)): stamp()
            if k == 0 and g in (3, 27): c12(1 if g == 3 else 2)
            if k == 15 and g >= cfg.g_tr and g & 1 == 0 and cfg.stamps == 10 and ncs[0] < 6: a(f"s_memtime {sr([32, 34, 92, 94, 96, 98][ncs[0]], 2)}"); ncs[0] += 1
    for g in range(30): half_step(g)
    def swaps(o): return [f"v_permlane16_swap_b32 v{o}, v{o+2}", f"v_permlane16_swap_b32 v{o+1}, v{o+3}"]
    def gelu(ti, rt, rw, mf=(), pre=()):
        A = acc(ti, rt)
        def b(i): return rw + 8 + 4*(i >> 2)
        def vp(i): return rw + 6*(i >> 2)
        t1, t2, o = 144, 152, HO + 16*ti + 4*rt
        L = [".p2align 3"]
        for i in range(0, 8, 2): L.append(f"v_pk_mul_f32 {vr(t1+i,2)}, {vr(A+i,2)}, {vr(A+i,2)}")
        L += pre
        for i in range(0, 8, 2): L.append(f"v_pk_fma_f32 {vr(t1+i,2)}, {vr(t1+i,2)}, {vr(b(i)+2,2)}, {vr(b(i),2)}")
        for i in range(0, 8, 2): L.append(f"v_pk_mul_f32 {vr(t1+i,2)}, {vr(t1+i,2)}, {vr(A+i,2)}")
        L += mf
        for i in range(8): L.append(f"v_exp_f32 v{t1+i}, v{t1+i}")
        for i in range(0, 8, 2): L.append(f"v_pk_mul_f32 {vr(t2+i,2)}, {vr(A+i,2)}, {vr(A+8+i,2)}")
        for i in range(0, 8, 2): L.append(f"v_pk_fma_f32 {vr(t1+i,2)}, {vr(t1+i,2)}, {vr(vp(i),2)}, {vr(vp(i),2)}")
        for i in range(8): L.append(f"v_rcp_f32 v{t1+i}, v{t1+i}")
        for i in range(0, 8, 2): L.append(f"v_pk_mul_f32 {vr(t2+i,2)}, {vr(t2+i,2)}, {vr(t1+i,2)}")
        for i in range(4): L.append(f"v_cvt_pk_bf16_f32 v{o+i}, v{t2+2*i}, v{t2+2*i+1}")
        return L
    def qtile(rt, rw):
        A = acc(1, rt); qs = hex(f2u(-0.25*math.log2(math.e)/KG))
        L = [f"v_mul_f32 v{12+i}, {qs}, v{rw + 8 + 4*(i >> 1)}" for i in range(4)]
        L += [f"s_add_u32 s{S_T0}, s{S_HSB}, {32768*rt}", f"s_add_u32 s{S_T1}, s{S_T0}, 4096"]
        for hd in range(2):
            h = A + 8*hd
            for i in range(0, 8, 2): L.append(f"v_pk_mul_f32 {vr(h+i,2)}, {vr(h+i,2)}, {vr(12 + 2*(i >> 2),2)}")
            for i in range(4): L.append(f"v_cvt_pk_bf16_f32 v{h+i}, v{h+2*i}, v{h+2*i+1}")
            for i in (0, 2, 1, 3): L.append(f"v_min_u32 v{h+i}, -2, v{h+i}")
            L += [swaps(h)[0], "s_nop 0", swaps(h)[1]]
            L.append(f"buffer_store_dwordx4 {vr(h,4)}, v{V_L16}, {sr(R_WS,4)}, s{S_T0 + hd} offen sc1")
        return L
    L_HQ = L_KV + 49152
    def att_regs():
        a(f"""
        v_and_b32 v5, 27, v{V_LANE}
        v_cmp_eq_u32 vcc, 16, v5
        v_mov_b32 v6, 0x47804780
        v_mov_b32 v{V_IDX}, 0xdddddddd
        v_mov_b32 v11, 1
        {'v_mov_b32 v10, 0' if cfg.hint else ''}
        v_cndmask_b32 v{VF}, 0, v6, vcc
        v_mov_b32 v{VF+1}, v{VF}
        """)
        for i in range(2, 16, 2): a(f"v_mov_b64 {vr(VF+i,2)}, {vr(VF,2)}")
        for i in range(0, 16, 2): a(f"v_mov_b64 {vr(OO+i,2)}, 0")
        if cfg.pair:
            for i in range(0, 16, 2): a(f"v_mov_b64 {vr(OX+i,2)}, 0")
            a(f"s_lshl_b32 s{S_T0}, s{S_HW}, 11\nv_add_u32 v{V_PA}, s{S_T0}, v{V_L16}")
        a(f"s_lshl_b32 s{S_T0}, s{S_KQ}, 13\ns_add_u32 s{S_T0}, s{S_T0}, {L_WO - L_WD}\nv_add_u32 v{V_OA}, s{S_T0}, v{V_DA}\nv_xor_b32 v{V_OA+1}, 64, v{V_OA}")
    def kv_first(half=0):
        if cfg.pair:
            a(f"ds_read_b128 {vr(KF,4)}, v{V_KA} offset:{kv_off(half)}")
            if half: a(f"ds_read_b128 {vr(KF+4,4)}, v{V_KA} offset:{kv_off(0)}")
            a(f"s_mov_b64 exec, {sr(S_VM,2)}\nds_read_b128 {vr(VF,4)}, v{V_VA} offset:{kv_off(half)}\nds_read_b128 {vr(VF+4,4)}, v{V_VA} offset:{kv_off(half) + 512}\ns_mov_b64 exec, -1")
            return
        a(f"ds_read_b128 {vr(KF,4)}, v{V_KA} offset:{kv_off(0)}\nds_read_b128 {vr(KF+4,4)}, v{V_KA} offset:{kv_off(1)}")
        a(f"s_mov_b64 exec, {sr(S_VM,2)}\nds_read_b128 {vr(VF,4)}, v{V_VA} offset:{kv_off(0)}\ns_mov_b64 exec, -1")
    a(f"s_and_b32 s{S_T1}, s{S_CB}, 3\ns_cmp_eq_u32 s{S_T1}, 3\ns_cbranch_scc1 L_qt")
    half_step(30); half_step(31)
    n0 = nst[0]
    stamp(name="g1"); pad("g1"); c12(3)
    RWS = [RWP, RWQ, WF + 16, RWP]
    order = [(ti, rt) for rt in range(4) for ti in range(2)]
    for i, (ti, rt) in enumerate(order):
        if i == 2:
            for l in rw_reads(3, RWS[3]): a(l)
        brk("e")
        if i in (3, 5): a("s_waitcnt lgkmcnt(0)")
        if i == cfg.i_q or (cfg.e7 and i == 1): a("s_barrier")
        nx = order[i+1] if i < 7 else None
        pv = order[i-1] if i else None
        for l in gelu(ti, rt, RWS[rt], [rank1(*nx, RWS[nx[1]])] if nx else [], swaps(HO + 16*pv[0] + 4*pv[1]) if pv else []): a(l)
    a("s_nop 1")
    for l in swaps(HO + 16 + 12): a(l)
    a("s_branch L_joinA")
    far("L_qt")
    RWS = [RWP, RWQ, acc(1, 0), acc(1, 1)]
    if cfg.g_h == 30:
        a("s_barrier")
        for l in op_reads: a(l)
    for l in x_reads(31): a(l)
    a("s_waitcnt lgkmcnt(4)\ns_nop 0")
    a(rank1(1, 0, RWP)); a(rank1(1, 1, RWQ))
    a.nop(5)
    for rt in range(2):
        for l in qtile(rt, RWS[rt]): a(l)
        brk("e")
    a("s_waitcnt lgkmcnt(0)")
    rd = rw_reads(2, RWS[2]) + rw_reads(3, RWS[3])
    for g in (30, 31):
        for k in range(8, 16):
            a(mm(g, k))
            if rd: a(rd.pop(0))
    a("s_waitcnt lgkmcnt(0)\ns_nop 4")
    a(rank1(1, 2, RWS[2])); a(rank1(1, 3, RWS[3]))
    a.nop(5)
    for rt in (2, 3):
        for l in qtile(rt, RWS[rt]): a(l)
        brk("e")
    a(rank1(0, 0, RWP))
    for g in (30, 31):
        for k in range(8): a(mm(g, k))
    nst[0] = n0
    stamp(name="g1")
    a(f"s_mov_b32 s{S_HSB}, {WS_SIZE}")
    for i in range(4): a(f"v_mov_b32 v{12+i}, -1")
    for rt in range(4):
        brk("e")
        if cfg.e7 and rt == 0: a("s_barrier")
        if rt == cfg.i_qb: a("s_barrier")
        for l in gelu(0, rt, RWS[rt], [rank1(0, rt + 1, RWS[rt + 1])] if rt < 3 else [], swaps(HO + 4*(rt - 1)) if rt else []): a(l)
    a("s_nop 1")
    for l in swaps(HO + 12): a(l)
    far("L_joinA", True)
    nst[0] = 12 if cfg.stamps == 4 else 5
    stamp()
    c12(4)
    if not cfg.gpos:
        att_regs()
        kv_first()
    a("s_barrier")
    stamp(name="att0"); pad("att0")
    a(f"ds_read_b128 {vr(QF,4)}, v254 offset:{L_HQ}")
    for i in range(4): a(f"ds_read_b128 {vr(CC+4*i,4)}, v254 offset:{L_HQ + 1024}")
    if cfg.gpos:
        att_regs()
        kv_first()
    if cfg.pair:
        a(f"ds_read_b128 {vr(QX,4)}, v254 offset:{L_HQ + 8192}")
        for i in range(4): a(f"ds_read_b128 {vr(CX+4*i,4)}, v254 offset:{L_HQ + 8192 + 1024}")
    a("s_waitcnt lgkmcnt(5)" if cfg.pair else "s_waitcnt lgkmcnt(0)")
    a(mfma32(S0, KF, QF, CC))
    if cfg.pair: a.nop(4)
    c12(5)
    a("s_nop 3\ns_branch L_attA")

    a.lines += ool
    a.label("L_helper")
    V_XD, V_WD = 192, 194
    PX, PW = 8, 24
    PACC, PCS, PRS, PSQ = 40, 44, 48, 52
    PONE, PSQP, PF1 = 56, 60, 61
    RD = 64
    a(f"""
    s_lshl_b32 s{S_XOFF}, s{S_RB}, 17
    s_lshl_b32 s{S_T0}, s{S_HW}, 15
    s_add_u32 s{S_XOFF}, s{S_XOFF}, s{S_T0}
    v_and_b32 v5, 15, v{V_LANE}
    v_lshrrev_b32 v6, 4, v{V_LANE}
    v_lshrrev_b32 v7, 3, v{V_LANE}
    v_and_b32 v63, 7, v{V_LANE}
    v_xor_b32 v62, v6, v63
    v_lshlrev_b32 v62, 4, v62
    v_lshl_add_u32 v{V_XD}, v7, 10, v62
    v_xor_b32 v{V_XD+1}, 64, v{V_XD}
    v_add_u32 v{V_XD+1}, {8192-1024}, v{V_XD+1}
    """)
    img_params(S_HW, S_WSTEP, S_WOFF)
    a(f"""
    v_and_b32 v62, 1, v6
    v_lshlrev_b32 v62, 1, v62
    v_xor_b32 v62, v62, v63
    v_lshlrev_b32 v62, 4, v62
    v_mul_u32_u24 v{V_WD}, s{S_WSTEP}, v7
    v_add_u32 v{V_WD}, v{V_WD}, v62
    v_xor_b32 v{V_WD+1}, 64, v{V_WD}
    s_waitcnt lgkmcnt(0)
    """)
    nst[0] = 0
    stamp()
    a(f"s_mov_b32 s{R_X}, s{P_X}\ns_and_b32 s{R_X+1}, s{P_X+1}, 0xffff")
    Q = []
    def issue(tag, text): a(text); Q.append(tag)
    def vwait(tag, more=""):
        n = len(Q) - 1 - max(i for i, t in enumerate(Q) if t == tag)
        a(f"s_waitcnt vmcnt({n})" + more)
    def xitems(c):
        slot = XS[c]
        return [(f"C{c}", f"s_add_u32 m0, s{S_H4K}, {L_X + slot*16384}\ns_add_u32 s{S_CNT}, s{S_XOFF}, {c*128 + (16384 - 2048)*(e >> 1)}\n"
                 f"buffer_load_dwordx4 v{V_XD + (e & 1)}, {sr(R_X,4)}, s{S_CNT} offen offset:{1024*e} {cfg.cf[1]} lds") for e in range(4)]
    def witems(c):
        slot = (c + 2) % 3
        return [(f"C{c}", f"s_add_u32 m0, s{S_M0W}, {slot*8192 + e*1024}\n" + (f"s_add_u32 s{S_WOFF}, s{S_WOFF}, s{S_WSTEP}" if c + e else "s_nop 0") +
                 f"\nbuffer_load_dwordx4 v{V_WD + (e & 1)}, {sr(R_W,4)}, s{S_WOFF} offen {cfg.cf[0]} lds") for e in range(8)]
    stream = []
    for c in range(1, 8): stream += [(t, x if c < 3 or not cfg.nodma else 's_nop 0') for t, x in witems(c) + xitems(c)]
    for c in {0: (), 8: (4,), 12: (2, 4, 6)}[cfg.krot]:
        i = 12*(c - 1)
        stream[i] = (stream[i][0], stream[i][1].replace("\nbuffer_load", f"\ns_cmp_eq_u32 s{S_HST}, {16 - 2*c}\ns_cselect_b32 s{S_CNT}, s{R_W+2}, 0\ns_cselect_b32 s{S_HSB}, 1024, 0\n"
                     f"s_sub_u32 s{S_WOFF}, s{S_WOFF}, s{S_CNT}\ns_sub_u32 s{S_XOFF}, s{S_XOFF}, s{S_HSB}\nbuffer_load"))
    pos = [0]
    def take(n):
        for _ in range(n):
            if pos[0] < len(stream): issue(*stream[pos[0]]); pos[0] += 1
    def upto(c):
        return min(len(stream), 12*(c + 1) + cfg.lead[c])
    def mix(lines, n):
        k = 0
        for i, l in enumerate(lines):
            while k < n and k * len(lines) <= i * n: take(1); k += 1
            a(l)
        take(n - k)
    img_srd(R_W, S_WSTEP)
    if cfg.krot:
        a(f"""
        s_and_b32 s{S_HST}, s{S_RB}, {cfg.krot}
        s_lshl_b32 s{S_T0}, s{S_HST}, 6
        s_add_u32 s{S_XOFF}, s{S_XOFF}, s{S_T0}
        s_mul_i32 s{S_T0}, s{S_T0}, s{S_WSTEP}
        s_lshr_b32 s{S_T0}, s{S_T0}, 1
        s_add_u32 s{S_WOFF}, s{S_WOFF}, s{S_T0}
        """)
    a(f"s_lshl_b32 s{S_WSTEP}, s{S_WSTEP}, 3\ns_mul_i32 s{S_M0W}, s{S_HW}, 24576\ns_add_u32 s{S_M0W}, s{S_M0W}, {L_W}")
    def b_init():
        srd(R_WS, P_WS, WS_SIZE)
        setup_ids()
        for i in range(4): a(f"v_mov_b32 v{12+i}, -1")
        a(f"v_mov_b32 v10, 0\nv_mov_b32 v11, 1\ns_sub_u32 s{S_T3}, s{S_FLG}, 16")
    def q_stores(tag):
        a(f"s_add_u32 s{S_CNT}, s{S_OST}, {WS_Q - WS_O - 2048}")
        issue(tag, f"buffer_store_dwordx4 v[12:15], v{V_L16}, {sr(R_WS,4)}, s{S_CNT} offen {cfg.sfl[0]}")
        issue(tag, f"buffer_store_dwordx4 v[12:15], v{V_L16}, {sr(R_WS,4)}, s{S_CNT} offen offset:2048 {cfg.sfl[0]}")
    def b_stores():
        if not cfg.c_q: q_stores("ST")
        issue("ST", f"s_mov_b64 exec, 7\nbuffer_store_dword v10, v{V_L16}, {sr(R_WS,4)}, s{S_T3} offen sc1\ns_mov_b64 exec, -1")
    if cfg.c_st[0] < 0: b_init()
    if cfg.c_st[0] == -2: b_stores()
    stamp(name=1)
    a("s_barrier")
    BC, BO, BZ = 132, 224, 240
    def b_setup():
        srd(R_DBG, P_DBG, 256)
        a(f"s_mov_b32 s{S_ONES}, 0x3f803f80")
        common_setup()
        a(f"""
        v_lshrrev_b32 v6, 4, v{V_LANE}
        v_bfe_u32 v2, v{V_LANE}, 1, 1
        v_lshl_add_u32 v6, v2, 2, v6
        v_and_b32 v2, 1, v{V_LANE}
        v_mad_u32_u24 v6, v2, 33, v6
        v_lshlrev_b32 v6, 4, v6
        v_bfe_u32 v2, v{V_LANE}, 2, 2
        v_mul_u32_u24 v2, 2208, v2
        v_add_u32 v6, v6, v2
        s_lshr_b32 s{S_T0}, s{S_HW}, 1
        s_mul_i32 s{S_T0}, s{S_T0}, 1056
        s_and_b32 s{S_T1}, s{S_HW}, 1
        s_lshl_b32 s{S_T1}, s{S_T1}, 8
        s_add_u32 s{S_T0}, s{S_T0}, s{S_T1}
        v_add_u32 v204, s{S_T0}, v6
        s_lshr_b32 s{S_T0}, s{S_RB}, 1
        s_and_b32 s{S_T1}, s{S_CB}, 12
        s_lshl_b32 s{S_T1}, s{S_T1}, 2
        s_add_u32 s{S_T0}, s{S_T0}, s{S_T1}
        s_and_b32 s{S_T1}, s{S_RB}, 1
        s_lshl_b32 s{S_T1}, s{S_T1}, 7
        s_add_u32 s{S_T0}, s{S_T0}, s{S_T1}
        s_lshl_b32 s{S_T0}, s{S_T0}, 7
        s_add_u32 s{S_T0}, s{S_T0}, {WS_FL + 32}
        v_and_b32 v6, 3, v{V_LANE}
        v_lshlrev_b32 v6, 2, v6
        v_bfe_u32 v2, v{V_LANE}, 2, 1
        v_lshl_add_u32 v6, v2, 10, v6
        v_bfe_u32 v2, v{V_LANE}, 3, 1
        v_lshl_add_u32 v6, v2, 13, v6
        v_add_u32 v205, s{S_T0}, v6
        """)
        for i in (0, 1, 4, 5): a(f"v_mov_b32 v{BZ+i}, 0")
        att_regs()
        a(f"s_lshl_b32 s{S_T0}, s{S_HW}, 11\nv_add_u32 v7, s{S_T0}, v{V_L16}")
    bs = capture(b_setup)
    for i, it in enumerate(xitems(0) + witems(0)):
        if cfg.c_st == (-1, i): b_stores()
        issue(*it)
        if i < cfg.bs0[0]:
            for l in bs[:cfg.bs0[1]]: a(l)
            del bs[:cfg.bs0[1]]
    stamp(name=3)
    def bar():
        brk("g")
        if cfg.stamps == 4: stamp()
        a("s_barrier")
    take(cfg.lead0)
    stamp(name=4)
    nst[0] = 2; vwait("C0"); stamp(name=6); bar()
    nbs = -(-len(bs) // len(cfg.bsc))
    pfl = [f"s_mul_i32 s{S_T0}, s2, 7168\ns_lshl_b32 s{S_T1}, s{S_HW}, 11\ns_add_u32 s{S_T0}, s{S_T0}, s{S_T1}\nbuffer_load_dwordx4 {vr(176,4)}, v{V_L16}, {sr(R_WD,4)}, s{S_T0} offen",
           f"buffer_load_dwordx4 {vr(180,4)}, v{V_L16}, {sr(R_WD,4)}, s{S_T0} offen offset:1024",
           f"s_lshl_b32 s{S_T1}, s2, 11\ns_lshl_b32 s{S_T3}, s{S_HW}, 9\ns_add_u32 s{S_T1}, s{S_T1}, s{S_T3}\ns_mov_b32 exec_hi, 0\nbuffer_load_dwordx4 {vr(184,4)}, v{V_L16}, {sr(R_WO,4)}, s{S_T1} offen\ns_mov_b64 exec, -1"]
    spoll = f"buffer_load_dword v8, v6, {sr(R_DBG,4)}, s{S_T2} offen sc1"
    for c in range(6):
        if c == cfg.c_st[0]:
            mix(capture(b_init), cfg.c_st[1]); b_stores()
        def q_flag():
            vwait("SQ")
            issue("F", f"s_mov_b64 exec, 1\nbuffer_store_dword v11, off, {sr(R_WS,4)}, s{S_FLG} offset:16 sc1\ns_mov_b64 exec, -1")
        if cfg.c_q and c == cfg.c_q[0] and cfg.c_q[1] < 99:
            take(cfg.c_q[1]); q_stores("SQ")
        if cfg.c_q and c == cfg.c_q[2] and cfg.c_q[3] < 99:
            take(cfg.c_q[3]); q_flag()
        if c in cfg.bsc and bs: mix(bs[cfg.bsc.index(c)*nbs:(cfg.bsc.index(c)+1)*nbs], upto(c) - pos[0])
        if c == 5:
            take(cfg.n_poll)
            a(f"v_and_b32 v6, 7, v{V_LANE}\nv_lshlrev_b32 v6, 5, v6\ns_lshl_b32 s{S_T2}, s{S_HW}, 8")
            issue("P", spoll)
        take(upto(c) - pos[0])
        if cfg.c_q and cfg.c_q[:2] == (c, 99): q_stores("SQ")
        if cfg.c_q and cfg.c_q[2:] == (c, 99): q_flag()
        if c == cfg.c_arr: vwait("ST")
        if c == 5:
            vwait("P")
            a(f"s_cmp_lg_u32 s{S_HW}, 0\ns_cbranch_scc1 L_sync1\ns_mov_b32 s{S_SPIN}, 0")
            a.label("L_sync1_chk")
            a(f"""
            v_cmp_gt_u32 vcc, 32, v8
            s_add_u32 s{S_SPIN}, s{S_SPIN}, 1
            s_cbranch_vccz L_sync1
            s_cmp_ge_u32 s{S_SPIN}, {SPIN_MAX}
            s_cbranch_scc1 L_sync1
            s_sleep {cfg.ssl}
            {spoll}
            s_waitcnt vmcnt(0)
            s_branch L_sync1_chk
            """)
            a.label("L_sync1")
        vwait(f"C{c+1}"); bar()
        if c == cfg.c_arr:
            a(f"s_cmp_lg_u32 s{S_HW}, 0\ns_cbranch_scc1 L_noarr\ns_and_b32 s{S_EX}, s2, 7\ns_lshl_b32 s{S_EX}, s{S_EX}, 5\ns_mov_b32 s{S_EX+1}, 1\n"
              f"s_atomic_add s{S_EX+1}, {sr(P_DBG,2)}, s{S_EX}\nL_noarr:")
    assert pos[0] == len(stream)
    ncs[0] = 0; cstamp(11)
    a(f"""
    s_lshl_b32 s{S_T3}, s{S_HW}, 11
    s_add_u32 m0, s{S_T3}, {L_R}
    s_lshl_b32 s{S_EX}, s{S_RB}, 13
    s_add_u32 s{S_EX}, s{S_EX}, s{S_T3}
    s_add_u32 s{S_EX}, s{S_EX}, {WS_ST}
    s_lshl_b32 s{S_T3}, s{S_HW}, 10
    s_lshl_b32 s{S_EX+1}, s{S_CB}, 14
    s_add_u32 s{S_EX+1}, s{S_EX+1}, s{S_T3}
    s_add_u32 s{S_EX+1}, s{S_EX+1}, {WS_CS}
    """)
    if cfg.stamps != 4: nst[0] = 3
    stamp(); cstamp(11)
    def maxtree(src, dst, init=None):
        L = []
        if init is None:
            L.append(f"v_max3_f32 v{dst}, v{src}, v{src+1}, v{src+2}")
            L.append(f"v_max_f32 v{dst}, v{src+3}, v{dst}")
            k = 4
        else:
            k = 0
        for i in range(k, 16, 2): L.append(f"v_max3_f32 v{dst}, v{src+i}, v{src+i+1}, v{dst}")
        return L
    def setC(m, shift):
        a(f"v_mov_b32 v{m+1}, v{m}\ns_nop 1\nv_permlane32_swap_b32 v{m}, v{m+1}\nv_max_f32 v{m}, v{m}, v{m+1}")
        a(f"v_sub_f32 v{CC}, {hex(f2u(-shift)) if shift else 0}, v{m}")
        a(f"v_mov_b32 v{CC+1}, v{CC}")
        for i in range(2, 16, 2): a(f"v_mov_b64 {vr(CC+i,2)}, {vr(CC,2)}")
    for e in range(4):
        if e: a(f"s_add_u32 s{S_EX+1}, s{S_EX+1}, 4096")
        a(f"buffer_load_dwordx4 {vr(BC+4*e,4)}, v{V_L16}, {sr(R_WS,4)}, s{S_EX+1} offen sc1")
    for i in range(2): a(f"buffer_load_dwordx4 v{V_L16}, {sr(R_WS,4)}, s{S_EX} offen offset:{1024*i} sc1 lds")
    assert cfg.e6 != 2
    qpoll = f"buffer_load_dword v9, v205, {sr(R_WS,4)}, s{S_T2} offen sc1"
    if cfg.c_q:
        a(f"s_and_b32 s{S_T2}, s{S_CB}, 3\ns_sub_u32 s{S_T2}, s{S_T2}, s{S_H4K}\ns_cmp_eq_u32 s{S_T2}, 3\ns_cselect_b32 s{S_T2}, 0, {WS_SIZE}\n" + qpoll)
    nq = 1 if cfg.c_q else 0
    npf = 3 if cfg.pf_first else 0
    for x in pfl[:npf]: a(x)
    touch("e", 0, 4, 5)
    cstamp(11)
    if cfg.e6 == 0: a(f"s_waitcnt vmcnt({6 + nq + npf})\ns_barrier")
    a(f"s_setprio {cfg.bp}\ns_waitcnt vmcnt({2 + nq + npf})")
    cstamp(11)
    for e in range(1, 4):
        for i in (0, 2, 1, 3): a(f"v_add_f32 v{BC+i}, v{BC+i}, v{BC+4*e+i}")
    if cfg.e6 == 1: a("s_barrier")
    a(f"""
    v_permlane32_swap_b32 v{BC}, v{BC+2}
    s_nop 0
    v_permlane32_swap_b32 v{BC+1}, v{BC+3}
    v_add_f32 v{BC}, v{BC}, v{BC+2}
    v_add_f32 v{BC+1}, v{BC+1}, v{BC+3}
    s_nop 1
    v_permlane16_swap_b32 v{BC}, v{BC+1}
    v_add_f32 v{BC}, v{BC}, v{BC+1}
    """)
    for l in split2(BC, BZ + 2, True): a(l)
    if cfg.e6 == 3: a("s_barrier")
    a(f"ds_write_b128 v204, {vr(BZ+2,4)} offset:{L_RA}\nds_write_b128 v204, {vr(BZ,4)} offset:{L_RA + 128}")
    cstamp(11)
    for x in pfl[npf:]: a(x)
    a("s_waitcnt vmcnt(3)")
    ncs[0] += 1; cstamp(11)
    if cfg.c_q:
        a(f"""
        s_cmp_lg_u32 s{S_T2}, 0
        s_cbranch_scc1 L_qrdy
        s_mov_b32 s{S_SPIN}, 0
        L_qrchk:
        v_cmp_ne_u32 vcc, 1, v9
        s_add_u32 s{S_SPIN}, s{S_SPIN}, 1
        s_cbranch_vccz L_qrdy
        s_cmp_ge_u32 s{S_SPIN}, {SPIN_MAX}
        s_cbranch_scc1 L_qrdy
        {qpoll}
        s_waitcnt vmcnt(0)
        s_branch L_qrchk
        L_qrdy:
        """)
    a("s_setprio 0\ns_waitcnt lgkmcnt(0)")
    cstamp(11)
    if cfg.e6 == 2: a("s_barrier")
    cstamp(11)
    a("s_barrier")
    for c in range(2):
        slot = (c + 1) % 3
        a(f"s_add_u32 m0, s{S_H4K}, {L_KV + slot*16384}\ns_add_u32 s{S_T0}, s{S_H4K}, {WS_KV + starts[c]*2048}")
        for e in range(4):
            a(f"buffer_load_dwordx4 v{V_L16}, {sr(R_WS,4)}, s{S_T0} offen offset:{1024*e} sc1 lds")
    touch("a", 0, 4, 12)
    if cfg.wfix:
        a(f"s_mov_b32 s{S_CNT}, 0\ns_mov_b32 s{S_SPIN}, 0\ns_cmp_eq_u32 s{S_HW}, 3\ns_cbranch_scc0 L_nowfix\ns_call_b64 {sr(S_RET,2)}, L_ofix\nL_nowfix:")
    if cfg.e7:
        a("s_barrier")
        a(f"s_add_u32 m0, s{S_H4K}, {L_KV}\ns_add_u32 s{S_T0}, s{S_H4K}, {WS_KV + starts[2]*2048}")
        for e in range(4): a(f"buffer_load_dwordx4 v{V_L16}, {sr(R_WS,4)}, s{S_T0} offen offset:{1024*e} sc1 lds")
        if cfg.e7 == 2:
            a(f"s_mul_i32 s{S_T1}, s{S_HW}, {448*1024}\ns_lshl_b32 s{S_T0}, s{S_CT8}, 7\ns_add_u32 s{S_T1}, s{S_T1}, s{S_T0}\ns_lshl_b32 s{S_T3}, s{S_H4K}, 1")
            for e in range(8):
                a(f"s_add_u32 m0, s{S_T3}, {L_WD + e*1024}\ns_add_u32 s{S_T0}, s{S_T1}, {e*8192}\nbuffer_load_dwordx4 v{V_WDD}, {sr(R_WD,4)}, s{S_T0} offen lds")
    QP = QX if cfg.pair else 128
    qload = (f"buffer_load_dwordx4 {vr(QP,4)}, v{V_L16}, {sr(R_WS,4)}, s{S_T2} offen sc1\n"
             f"buffer_load_dwordx4 {vr(QF,4)}, v{V_L16}, {sr(R_WS,4)}, s{S_T2} offen offset:2048 sc1")
    a(f"s_add_u32 s{S_T2}, s{S_OST}, {WS_Q - WS_O - 2048}\ns_mov_b32 s{S_SPIN}, 0\ns_waitcnt vmcnt(0)\ns_barrier\ns_setprio 2")
    a(qload)
    kv_first(1)
    nst[0] = 12 if cfg.stamps == 4 else 5
    stamp()
    a.label("L_qchk")
    a(f"""
    s_waitcnt vmcnt(0) lgkmcnt(0)
    v_max3_u32 v8, v{QF}, v{QF+1}, v{QF+2}
    v_max3_u32 v8, v8, v{QF+3}, v{QP}
    v_max3_u32 v8, v8, v{QP+1}, v{QP+2}
    v_max_u32 v8, v8, v{QP+3}
    v_cmp_eq_u32 vcc, -1, v8
    s_add_u32 s{S_SPIN}, s{S_SPIN}, 1
    s_cbranch_vccz L_qok
    s_cmp_ge_u32 s{S_SPIN}, {SPIN_MAX}
    s_cbranch_scc1 L_qok
    s_sleep {cfg.qsl}
    {qload}
    s_branch L_qchk
    """)
    a.label("L_qok")
    if cfg.stamps == 1:
        n0 = nst[0]; nst[0] = 4; stamp(); nst[0] = n0
        a(f"v_writelane_b32 v{V_STAMP}, s{S_SPIN}, 63")
    a('; ---- softmax reference point: maximum over the first 32 keys (a lower bound of the row maximum), scores are taken relative to it minus a fixed shift.')
    if cfg.pair:
        a(mfma32(S0, KF + 4, QP, None)); a(mfma32(S1, KF + 4, QF, None))
        a(f"ds_write_b128 v7, {vr(QP,4)} offset:{L_HQ}\nds_write_b128 v7, {vr(QF,4)} offset:{L_HQ + 8192}")
        a.nop(9)
        for q, sx, cx in ((0, S0, CX), (1, S1, CC)):
            for l in maxtree(sx, 8): a(l)
            a(f"v_mov_b32 v9, v8\ns_nop 1\nv_permlane32_swap_b32 v8, v9\nv_max_f32 v8, v8, v9\nv_sub_f32 v{cx}, {hex(f2u(-cfg.shift))}, v8")
            a(f"v_mov_b32 v{cx+1}, v{cx}\nv_mov_b64 {vr(cx+2,2)}, {vr(cx,2)}\nds_write_b128 v7, {vr(cx,4)} offset:{L_HQ + 8192*q + 1024}")
            for i in range(1, 4): a(f"ds_read_b128 {vr(cx+4*i,4)}, v7 offset:{L_HQ + 8192*q + 1024}")
        a("s_waitcnt lgkmcnt(3)\ns_barrier")
        stamp(name="att0"); pad("att0")
        a("s_setprio 1")
        a(mfma32(S0, KF, QP, CX))
        a.nop(4)
    else:
        a(mfma32(S0, KF, QP, None)); a(mfma32(S1, KF, QF, None))
        a(f"ds_write_b128 v7, {vr(QP,4)} offset:{L_HQ}")
        a.nop(10)
        for l in maxtree(S0, 8): a(l)
        a(f"v_mov_b32 v9, v8\ns_nop 1\nv_permlane32_swap_b32 v8, v9\nv_max_f32 v8, v8, v9\nv_sub_f32 v{QP+4}, {hex(f2u(-cfg.shift))}, v8")
        a(f"v_mov_b32 v{QP+5}, v{QP+4}\nv_mov_b64 {vr(QP+6,2)}, {vr(QP+4,2)}\nds_write_b128 v7, {vr(QP+4,4)} offset:{L_HQ + 1024}")
        for l in maxtree(S1, 8): a(l)
        if cfg.g_early:
            a("s_waitcnt lgkmcnt(0)\ns_barrier")
            stamp(name="att0"); pad("att0")
        setC(8, cfg.shift)
        a(f"s_waitcnt lgkmcnt(0)\ns_setprio {1 if cfg.pp < 0 else 0}")
        a(mfma32(S0, KF, QF, CC))
        if not cfg.g_early:
            a("s_barrier")
            stamp(name="att0"); pad("att0")
    a("s_nop 5\ns_branch L_attB")

    def kvdma(c, half):
        slot = (c + 1) % 3
        L = (f"s_add_u32 m0, s{S_W2K}, {L_KV + slot*16384}\ns_add_u32 s{S_T0}, s{S_W2K}, {WS_KV + starts[c]*2048}\n")
        if half == 1 and sizes[c] < 8:
            L += f"s_cmp_ge_u32 s{S_W}, {sizes[c]}\ns_cselect_b32 s{S_T0}, {WS_SIZE}, s{S_T0}\n"
        return [L + f"buffer_load_dwordx4 v{V_L16}, {sr(R_WS,4)}, s{S_T0} offen sc1 lds",
                f"buffer_load_dwordx4 v{V_L16}, {sr(R_WS,4)}, s{S_T0} offen offset:1024 sc1 lds"]
    def rowdma(rs, sbase, add, ldsbase, e):
        pre = f"s_add_u32 m0, s{S_W4K}, {ldsbase}\n"
        return pre + f"s_add_u32 s{S_T0}, s{sbase}, {add + e*7168}\nbuffer_load_dwordx4 v{V_WDD}, {sr(rs,4)}, s{S_T0} offen offset:{1024*e} {cfg.cf[2]} lds"
    tbs = [starts[c] - 3 for c in range(1, len(starts))]
    late = []
    def attention(half):
        sfx = "AB"[half]
        if cfg.stamps == 5: a(f"s_mov_b32 s{S_SPIN}, 0")
        head = {t: [] for t in range(66)}
        vm = {t: [] for t in range(66)}
        pre = {t: [] for t in range(66)}
        bg = {t: [] for t in range(66)}
        nb = len(tbs); c0 = nb - 7
        lh, mb = cfg.lh, cfg.mb
        for ci, tb in enumerate(tbs):
            q = []
            if ci + 2 < len(starts) and not (cfg.e7 and ci == 0): q += [("D", x) for x in kvdma(ci + 2, half)]
            dload = ci - c0 + 1
            if 0 <= dload <= 6:
                wq_ = [rowdma(R_WD, S_WDO, dload*65536, L_WD + (dload & 1)*32768, e) for e in range(4)]
                if dload == 0:
                    for e in range(4 if cfg.e7 < 2 else 0): vm[cfg.t_wd0[e]].append(("D" if e == 3 else "X", wq_[e]))
                else: q += [("D", x) for x in wq_]
                hl = [f"buffer_load_dwordx4 {vr(HF + 16*(dload&1) + 4*j,4)}, v{V_L16}, {sr(R_WS,4)}, s{S_T1} offen offset:{1024*j} sc1" for j in range(4)]
                hl[0] = f"s_add_u32 s{S_T1}, s{S_HLD}, {dload*4096}\n" + hl[0]
            elif dload == 7:
                q += [("D", rowdma(R_WO, S_WOO, 0, L_WO, e)) for e in range(4)]
                q += [("D", f"buffer_load_dwordx4 {vr(V_XR,4)}, v{V_FO}, {sr(R_X,4)}, 0 offen")]
            for i, x in enumerate(q): vm[tb + cfg.dpos[i] if ci else cfg.t_kv2].append(x)
            if 0 <= dload <= 6:
                for j in range(4):
                    vm[cfg.t_h0[j] if dload == 0 else tb + cfg.hpos[j]].append((f"H{dload}{j}", hl[j]))
                    if j in cfg.hwait: pre[tbs[ci + 1] + (cfg.mb0 or mb)[2*j] if dload == 0 else tbs[ci + 1] + mb[2*j]].append(("wait", f"H{dload}{cfg.hwait[j]}"))
            d = dload - 1
            if d >= 0:
                for k in range(8):
                    j, ct = divmod(k, 2); fr = DF + 4 * (k & 3)
                    for t in range(2):
                        head[tb + lh[k]].append(f"ds_read_b64_tr_b16 {vr(fr+2*t,2)}, v{V_DA+ct} offset:{(d&1)*32768 + j*2048 + t*512}")
                    bg[tb + (cfg.mb0 if d == 0 and cfg.mb0 else mb)[k]].append(mfma32(YY + 16*ct, HF + 16*(d&1) + 4*j, fr, None if (d == 0 and j == 0) else YY + 16*ct))
        assert min(cfg.t_h0) >= cfg.t_chk and max(lh) <= 6 and max(mb) <= 7 and all(m > l for m, l in zip(mb, lh))
        assert all(lh[k+4] > mb[k] and lh[k] + 6 > mb[k+4] for k in range(4)) and all(cfg.hpos[j] + 6 > mb[2*j+1] for j in range(4))
        st = []
        if half == 0:
            for rt in range(4):
                for ti in range(2):
                    st.append(f"s_add_u32 s{S_T3}, s{S_HSB if ti else S_HST}, {112*1024*rt}\n"
                              f"buffer_store_dwordx4 {vr(HO + 16*ti + 4*rt,4)}, v{V_L16}, {sr(R_WS,4)}, s{S_T3} offen {cfg.hfl}")
        st.append(f"buffer_store_dwordx4 v[12:15], v{V_L16}, {sr(R_WS,4)}, s{S_OST} offen {cfg.sfl[1]}")
        hs = list(range(64))
        for i, x in enumerate(st): vm[hs[int(i * cfg.st_rate)] if half == 0 else cfg.t_sb].append(("S", x))
        if half == 1:
            if cfg.t_pf >= 0: vm[cfg.t_pf] += [("X", x) for x in pfl]
            for e in range(8):
                x = f"s_add_u32 m0, s{S_EX}, {L_WO + 32768 + e*1024}\ns_add_u32 s{S_T0}, s{S_EX+1}, {e*8192}\nbuffer_load_dwordx4 v{V_WDD}, {sr(R_WO,4)}, s{S_T0} offen lds"
                if e == 0: x = f"s_lshl_b32 s{S_EX+1}, s{S_HW}, 16\ns_lshl_b32 s{S_T0}, s{S_CT8}, 7\ns_add_u32 s{S_EX+1}, s{S_EX+1}, s{S_T0}\ns_xor_b32 s{S_T0}, s{S_T16}, 0x40000\ns_add_u32 s{S_EX+1}, s{S_EX+1}, s{S_T0}\ns_lshl_b32 s{S_EX}, s{S_H4K}, 1\n" + x
                vm[cfg.t_wo[e]].append(("D" if e == 7 else "X", x))
            tw = min(t for t in tbs if t >= max(cfg.t_wo))
            if cfg.pair:
                for i, t in enumerate(cfg.t_wr): head[t] += wo_rd[2*i:2*i+2]
            elif tw == tbs[1]:
                for i in range(6): head[tw + 2 + i] += wo_rd[4*i:4*i+4]
            else:
                hs_ = [tb + o for tb in tbs if tb >= tw for o in (4, 5)]
                for i in range(12): head[hs_[i]] += wo_rd[2*i:2*i+2]
            if not cfg.pair: head[61] += wo_rd[24:26]; head[63] += wo_rd[26:]
        elif not cfg.pair:
            head[63] += wo_rd[:cfg.n_wo63]
        if cfg.t_out: vm[cfg.t_out].append(("X", f"s_mov_b64 exec, 1\nbuffer_load_dword v254, v{V_FO}, {sr(R_OUT,4)}, 0 offen\ns_mov_b64 exec, -1"))
        if cfg.hint:
            vm[cfg.hint[0]].append(("X", f"s_add_u32 s{S_HST}, s{S_FLG}, {WS_HINT - WS_FL}\ns_mov_b64 exec, 3\nbuffer_store_dword v10, v{V_L16}, {sr(R_WS,4)}, s{S_HST} offen\ns_mov_b64 exec, -1"))
            if half: vm[cfg.hint[2]].append(("X", f"s_mov_b64 exec, 1\nbuffer_store_dword v{V_IDX}, off, {sr(R_WS,4)}, s{S_HST} offset:16\ns_mov_b64 exec, -1"))
            hp1 = (f"s_and_b32 s{S_HSB}, s2, 0xc7\ns_lshl_b32 s{S_HSB}, s{S_HSB}, 7\ns_add_u32 s{S_HSB}, s{S_HSB}, {WS_HINT}\ns_cmp_eq_u32 s{S_W}, 0\ns_cselect_b32 s{S_HSB}, s{S_HSB}, {WS_SIZE}\n"
                   f"buffer_load_dword v254, v2, {sr(R_WS,4)}, s{S_HSB} offen offset:32 sc1")
            if not half and cfg.hint[3] < 64: vm[cfg.hint[3]].append(("X", hp1))
        for t in cfg.t_code: vm[t].append(("X", "s_mov_b64 exec, 3\nglobal_load_dword v2, v[252:253], off\ns_mov_b64 exec, -1"))
        pre[cfg.t_flag].append(("wait", "S"))
        vm[cfg.t_flag].insert(0, ("F", f"s_mov_b64 exec, 1\nbuffer_store_dword v11, off, {sr(R_WS,4)}, s{S_FLG} sc1\ns_mov_b64 exec, -1"))
        poll = f"buffer_load_dword v3, v{V_PO}, {sr(R_WS,4)}, s{S_T2} offen sc1"
        vm[cfg.t_poll].insert(0, ("P", f"s_mov_b32 s{S_T2}, {WS_FL}\n" + poll))
        assert cfg.t_poll <= cfg.t_chk - 2
        pre[cfg.t_chk - 1].append(("wait", "P"))
        pre[cfg.t_chk].append(("text", f"s_cbranch_vccnz L_hspin{sfx}\nL_hok{sfx}:"))
        late.append(f"L_hspin{sfx}:\ns_mov_b32 s{S_SPIN}, 0\nL_hchk{sfx}:\ns_sleep 2\n{poll}\ns_waitcnt vmcnt(0)\nv_cmp_ne_u32 vcc, 1, v3\ns_add_u32 s{S_SPIN}, s{S_SPIN}, 1\ns_cbranch_vccz L_hok{sfx}\n"
                    f"s_cmp_lt_u32 s{S_SPIN}, {SPIN_MAX}\ns_cbranch_scc1 L_hchk{sfx}\ns_branch L_hok{sfx}")
        VQ = []
        def cnt(tag):
            idx = [i for i, x in enumerate(VQ) if x == tag]
            return min(63, len(VQ) - 1 - max(idx)) if idx else 63
        def emit_vm(L):
            for tag, x in L: a(x); VQ.append(tag)
        for t in range(tbs[2] + 1, 64):
            if 'v' in cfg.ab: vm[t] = [x for x in vm[t] if 'sc1 lds' in x[1]]
            if 'h' in cfg.ab: vm[t] = [x for x in vm[t] if x[0] != 'H']
            if 'r' in cfg.ab: head[t] = []
            if 'm' in cfg.ab: bg[t] = []
        tl = 63 if cfg.pair else 62
        bars = set(tbs) | {tl} | ({cfg.tbx} if cfg.pair else set())
        BL = [(t >> 1, t & 1) for t in range(60)] + [(30, 1 - half), (31, 1 - half), (30, half), (31, half)]
        def oq(q): return OO if q == half else OX
        def cq(q): return CC if q == half else CX
        def qq(q): return QF if q == half else QX
        kvr = {t: [[], []] for t in range(64)}
        ins = {t: {} for t in range(64)}
        if cfg.pair:
            for i in range(1, 32):
                o = kv_off(2*i + half)
                tk, ta, tv = (2*i - 2, 2*i - 1, 2*i - 1) if i < 31 else (59, 60, 61)
                kvr[tk][0].append(f"ds_read_b128 {vr(KF+4*(i&1),4)}, v{V_KA} offset:{o}")
                kvr[ta][1].append(f"ds_read_b128 {vr(VF+8*(i&1),4)}, v{V_VA} offset:{o}")
                kvr[tv][1].append(f"ds_read_b128 {vr(VF+8*(i&1)+4,4)}, v{V_VA} offset:{o + 512}")
            if cfg.upd:
                u = max(t for t in range(cfg.tbx) if t & 1 == half)
                ins[u][3] = (f"v_max_f32 v4, {hex(f2u(2.0**(16 - cfg.shift)))}, v{OO+8}\nv_frexp_exp_i32_f32_e64 v4, v4\nv_sub_u32 v4, {17 - int(cfg.shift)}, v4\nv_max_i32 v4, 0xffffff82, v4\n"
                             f"v_cvt_f32_i32 v5, v4\nv_add_f32 v6, v{CC}, v5\nv_ldexp_f32 v4, 1.0, v4\nv_mov_b32 v7, v6\nv_mov_b64 v[8:9], v[6:7]")
                head[u + 1] += [f"ds_write_b128 v{V_PA}, v[6:9] offset:{L_HQ + 8192*half + 1024}", f"ds_write_b32 v{V_PA}, v4 offset:{L_HQ + 8192*half}"]
                head[cfg.tbx + 1].append(f"ds_read_b32 v5, v{V_PA} offset:{L_HQ + 8192*(1 - half)}")
                for t in (cfg.tbx + 1, cfg.tbx + 2):
                    q = t & 1
                    head[t] += [f"ds_read_b128 {vr(cq(q)+4*i,4)}, v{V_PA} offset:{L_HQ + 8192*q + 1024}" for i in range(4)]
                    ins[t + 2][3] = "\n".join(f"v_mul_f32{'_e64' if i == 0 else ''} v{oq(q)+i}, v{oq(q)+i}, v{4 if q == half else 5}" for i in range(9))
            head[63] = [f"ds_write_b128 v{V_PA}, {vr(OX,4)} offset:{8192*half}", f"ds_write_b128 v{V_PA}, {vr(OX+4,4)} offset:{8192*half + 1024}",
                        f"ds_write_b32 v3, v{OX+8} offset:{28672 + 4*half}"] + head[63]
            ins[61][3] = f"v_lshrrev_b32_e64 v3, 1, v{V_PA}"
            if cfg.hint and not half: ins[59][3] = f"v_lshrrev_b32 v2, 3, v{V_LANE}\nv_and_b32 v4, 3, v{V_LANE}\nv_lshlrev_b32_e64 v4, 2, v4\nv_lshl_add_u32 v2, v2, 10, v4"
        mrg = [f"ds_read_b128 {vr(DF,4)}, v{V_PA} offset:{8192*(1-half)}", f"ds_read_b128 {vr(DF+4,4)}, v{V_PA} offset:{8192*(1-half) + 1024}", f"ds_read_b32 v{DF+8}, v3 offset:{28672 + 4*(1-half)}"]
        for t in range(64):
            par = t & 1
            sd, sn = (S0, S1) if par == 0 else (S1, S0)
            p, pp = PP + 8*par, PP + 8*(1 - par)
            isb = t in bars
            if cfg.stamps == 2 and t - 1 in tbs: stamp()
            brk("a")
            if cfg.itr:
                if t == 0: ncs[0] = 0
                if t in cfg.itr: cstamp(5)
            midb = isb and half == 1
            if half == 0 and t - 1 in bars: a(f"s_waitcnt vmcnt({cnt('D')}) lgkmcnt(0)\ns_barrier")
            else: a("s_waitcnt lgkmcnt(0)")
            for k, x in pre[t]: a(x if k == "text" else f"s_waitcnt vmcnt({cnt(x)})")
            emit_vm(vm[t][:1])
            if cfg.pair:
                for l in kvr[t][0]: a(l)
                if kvr[t][1]:
                    a(f"s_mov_b64 exec, {sr(S_VM,2)}")
                    for l in kvr[t][1]: a(l)
                    a("s_mov_b64 exec, -1")
            elif not ('L' in cfg.ab and t & 2) and not ('Z' in cfg.ab and t > 2):
                if t + 2 < 64: a(f"ds_read_b128 {vr(KF+4*par,4)}, v{V_KA} offset:{kv_off(t+2)}")
                a(f"s_mov_b64 exec, {sr(S_VM,2)}")
                if t + 1 < 64: a(f"ds_read_b128 {vr(VF+8*(1-par),4)}, v{V_VA} offset:{kv_off(t+1)}")
                a(f"ds_read_b128 {vr(VF+8*par+4,4)}, v{V_VA} offset:{kv_off(t)+512}")
                a("s_mov_b64 exec, -1")
            for l in head[t]: a(l)
            emit_vm(vm[t][1:])
            if t == 0 and cfg.stamps == 9: ncs[0] = 0
            if cfg.t_tr <= t < cfg.t_tr + 9: cstamp(9)
            if cfg.ladder and half and t % 3 == 0:
                if cfg.hnop and cfg.pair and len(head[t]) + len(vm[t]) + len(kvr[t][1]) < 2: a("s_nop 5")
                a("s_setprio 3")
            if t in cfg.upd and not cfg.pair: a("s_nop 1")
            pos = cfg.pos[len(bg[t])]
            sl = [smf(OO, VF + 8*(1-par) + 4, sn + 8) if t >= 1 else None, mfma32(sn, KF + 4*(1-par), QF, CC) if t + 1 < 64 else None]
            sl += bg[t][:1] + [smf(OO, VF + 8*par, sd)] + bg[t][1:]
            if cfg.pair:
                i0_, q0_ = BL[t]
                sl = [smf(oq(BL[t-1][1]), VF + 8*(BL[t-1][0]&1) + 4, sn + 8) if t >= 1 else None,
                      mfma32(sn, KF + 4*(BL[t+1][0]&1), qq(BL[t+1][1]), cq(BL[t+1][1])) if t + 1 < 64 else None]
                nb_ = 2 if cfg.bgadj else 1
                sl += bg[t][:nb_] + [smf(oq(q0_), VF + 8*(i0_&1), sd)] + bg[t][nb_:]
            at = {p: m for p, m in zip(pos, sl) if m}
            for p_, x in ins[t].items():
                assert p_ not in at
                at[p_] = x
            if 'M' in cfg.ab:
                import re as _re
                for p in list(at):
                    if at[p] in bg[t]:
                        m = _re.match(r"\S+ v\[(\d+):\d+\], v\[(\d+):\d+\], v\[(\d+):\d+\]", at[p]); d_, a_, b_ = map(int, m.groups())
                        d_ += 8 * (t & 1)
                        at[p] = mfma16(d_, a_, b_, d_); at[p + 1] = mfma16(d_ + 4, b_, a_, d_ + 4)
            if t in cfg.upd and not cfg.pair:
                assert len(sl) == 3
                at = {1: f"v_frexp_exp_i32_f32_e64 v4, v{OO+8}", 2: sl[0], 3: f"v_sub_u32 v4, {17 - int(cfg.shift)}, v4\nv_cvt_f32_i32_e64 v5, v4", 5: sl[1],
                      8: f"v_mfma_f32_32x32x2_f32 {vr(CC,16)}, v49, v5, {vr(CC,16)}", 15: sl[2]}
                if cfg.updm >= 1:
                    mv = [f"v_mov_b32 v{CC+1}, v{CC}"] + [f"v_mov_b64 {vr(CC+i,2)}, {vr(CC,2)}" for i in range(2, 16, 2)] if cfg.updm == 1 else [f"v_mov_b32 v{CC+i}, v{CC}" for i in range(1, 16)]
                    del at[8], at[15]
                    at[12] = "\n".join([f"v_add_f32{'_e64' if cfg.updm == 1 else ''} v{CC}, v{CC}, v5"] + mv)
                    at[13] = sl[2]
                if cfg.updl: at[3] = f"v_sub_u32 v4, {17 - int(cfg.shift)}, v4\nv_max_i32 v4, 0xffffff82, v4\nv_cvt_f32_i32_e64 v5, v4\nv_ldexp_f32 v4, 1.0, v4"
            if t - 2 in cfg.upd and not cfg.pair:
                assert len(sl) == 3
                at = {2: sl[0], 6: sl[1], 13: "\n".join((f"v_mul_f32{'_e64' if i == 0 else ''} v{OO+i}, v{OO+i}, v4" if cfg.updl else f"v_ldexp_f32 v{OO+i}, v{OO+i}, v4") for i in range(9)), 15: sl[2]}
            a(".p2align 3")
            odd = False
            for i in range(16):
                if i in at: a(at[i])
                if midb and i == (cfg.bmid if t < 63 else cfg.bm63): a(f"s_waitcnt vmcnt({cnt('D')}) lgkmcnt(0)\ns_barrier")
                if cfg.pair and half and t == 63 and i == cfg.p_mrg:
                    for l in mrg: a(l)
                pr = i == (cfg.pp if half else cfg.pa) and not (cfg.ladder and t % 3)
                wide = (i + 1 in at) and (odd == pr)
                a(f"v_exp_f32{'_e64' if wide else ''} v{sd+i}, v{sd+i}")
                if not wide: odd = not odd
                if pr: a(f"s_setprio {3 if cfg.ladder else cfg.pv[half]}"); odd = not odd
            if cfg.stamps == 3: a(f"s_waitcnt lgkmcnt(0)\nv_writelane_b32 v253, s{S_TS}, {t}\nv_writelane_b32 v254, s{S_TS2}, {t}\ns_memtime {sr(S_TS2,2)}")
            if t == cfg.t_chk - 1: a("v_cmp_ne_u32 vcc, 1, v3")
            if cfg.ladder and t < 63:
                if half == 0 or t % 3 != 2: a(f"s_setprio {2 - t % 3}")
            elif (cfg.pp if half else cfg.pa) is not None and not (half and cfg.pp < 0 and t < 63): a("s_setprio 0")
            if cfg.t_tr <= t < cfg.t_tr + 9: cstamp(9)
        if cfg.pair and not half:
            a(f"s_waitcnt vmcnt({cnt('D')}) lgkmcnt(0)\ns_barrier")
            if cfg.hint and cfg.hint[3] == 64: a(hp1)
            for l in mrg + wo_rd[:cfg.n_wo63]: a(l)
        else: a("s_nop 1" if cfg.pair else "s_waitcnt lgkmcnt(0)\ns_nop 0")
        a(smf(OO, VF + 12, S1 + 8))
    OF, SS, XU, TT = (16, 64, 224, 232) if cfg.pair else (16, 64, 160, 168)
    def oload(j):
        h = cfg.oord[j]
        return f"buffer_load_dwordx4 {vr(OF+4*j,4)}, v{V_L16}, {sr(R_WS,4)}, s{S_OLD if h < 4 else S_T1} offen offset:{1024*(h&3)} sc1"
    def chk(j): return f"v_max3_u32 v8, v{OF+4*j}, v{OF+4*j+1}, v{OF+4*j+2}\nv_max_u32 v8, v{OF+4*j+3}, v8\nv_cmp_eq_u32 vcc, -1, v8"
    F = f"L_ofix:\ns_mov_b32 s{S_T2}, 0\ns_waitcnt vmcnt(0)\n"
    for j in range(8):
        F += (f"s_bitcmp1_b32 s{S_CNT}, {j}\ns_cbranch_scc0 L_ofb{j}\n{chk(j)}\ns_cmp_lg_u32 s{S_T2}, 0\ns_cbranch_vccz L_ofa{j}\n{oload(j)}\ns_mov_b32 s{S_T2}, 1\ns_branch L_ofb{j}\nL_ofa{j}:\ns_cbranch_scc1 L_ofb{j}\ns_bitset0_b32 s{S_CNT}, {j}\n"
              + mfma32(SS, OF + 4*j, WOF[2*j], SS) + "\n" + mfma32(SS + 16, OF + 4*j, WOF[2*j + 1], SS + 16) + f"\nL_ofb{j}:\n")
    F += (f"s_add_u32 s{S_SPIN}, s{S_SPIN}, 1\ns_cmp_ge_u32 s{S_SPIN}, {SPIN_MAX}\ns_cselect_b32 s{S_CNT}, 0, s{S_CNT}\n"
          f"s_cmp_lg_u32 s{S_CNT}, 0\ns_cbranch_scc1 L_ofix\ns_setpc_b64 {sr(S_RET,2)}")
    late.insert(0, F)
    def normalize():
        for i in range(0, 8, 2): a(f"v_pk_mul_f32 {vr(OO+i,2)}, {vr(OO+i,2)}, v[10:11]")
        for i in range(4): a(f"v_cvt_pk_bf16_f32 v{12+i}, v{OO+2*i}, v{OO+2*i+1}")
    def tail(half):
        sfx = "AB"[half]
        if cfg.stamps == 8: ncs[0] = 0
        if cfg.stamps == 5: a(f"v_writelane_b32 v{V_STAMP}, s{S_SPIN}, 62")
        stamp(name="att1"); pad("att1")
        cstamp()
        a(f"s_mov_b32 s{S_T2}, {hex(f2u(2.0**120))}\ns_mov_b32 s{S_T3}, {hex(f2u(2.0**-106))}")
        a(f"s_add_u32 s{S_T1}, s{S_OLD}, 4096\ns_mov_b32 s{S_SPIN}, 0\ns_lshl_b32 s{S_T0}, s{S_W}, 13\ns_mov_b32 m0, s{S_T0}")
        if cfg.pair:
            a("s_waitcnt lgkmcnt(0)"); a.nop(5)
            for i in (8, 0, 1, 2, 3, 4, 5, 6, 7): a(f"v_add_f32 v{OO+i}, v{OO+i}, v{DF+i}")
        else: a.nop(6)
        a(f"""
        v_rcp_f32 v10, v{OO+8}
        v_maximum3_f32 v8, abs(v{OO}), abs(v{OO+1}), abs(v{OO+2})
        v_maximum3_f32 v9, abs(v{OO+3}), abs(v{OO+4}), abs(v{OO+5})
        v_maximum3_f32 v8, abs(v{OO+6}), abs(v{OO+7}), v8
        v_maximum3_f32 v6, v8, v9, v{OO+8}
        v_max_f32 v8, v8, v9
        v_cmp_ngt_f32 vcc, s{S_T2}, v6
        v_cmp_gt_f32 {sr(S_EX,2)}, s{S_T3}, v8
        v_mov_b32 v11, v10
        s_or_b64 vcc, vcc, {sr(S_EX,2)}
        """)
        a("s_branch L_fb" if cfg.force_fb else "s_nop 0" if cfg.ab else "s_cbranch_scc1 L_fb")
        normalize()
        a.label(f"L_ost{sfx}")
        a(f"buffer_store_dwordx4 v[12:15], v{V_L16}, {sr(R_WS,4)}, s{S_OST} offen sc1")
        if cfg.hint:
            a("; speed hint only (seen by workgroups on the same die): this wave's o is on its way, reading it earlier would collide with the write")
            a(f"s_mov_b64 exec, 1\nbuffer_store_dword v{V_IDX}, off, {sr(R_WS,4)}, s{S_HST}\ns_mov_b64 exec, -1")
        cstamp()
        if half == 0 and not cfg.yfirst2:
            for l in wo_rd[cfg.n_wo63:]: a(l)
        for i in range(32): a(f"ds_write_addtid_b32 v{YY+i} offset:{32768 + 256*i}")
        if half == 0 and cfg.yfirst2:
            for l in wo_rd[cfg.n_wo63:]: a(l)
        cstamp()
        a(f"""
        v_xor_b32 v5, 16, v{V_GA}
        v_add_u32 v6, 0x10000, v{V_GA}
        v_add_u32 v7, 0x10000, v5
        """)
        def prep():
            a(f"""
            s_mov_b32 s{S_EX}, 0xff00ff00
            s_mov_b32 s{S_EX+1}, 0xff00ff00
            s_mov_b64 exec, {sr(S_EX,2)}
            v_swap_b32 v{V_XR}, v{V_XR+2}
            v_swap_b32 v{V_XR+1}, v{V_XR+3}
            s_mov_b64 exec, -1
            """)
            for i in range(4): a(f"v_lshlrev_b32 v{XU+2*i}, 16, v{V_XR+i}\nv_and_b32 v{XU+2*i+1}, 0xffff0000, v{V_XR+i}")
            for i in range(0, 32, 2): a(f"v_mov_b64 {vr(SS+i,2)}, 0")
        if not (half and cfg.bprep): prep()
        if cfg.hint and not half:
            a(f"s_cmp_lg_u32 s{S_W}, 0\ns_cbranch_scc1 L_hint_ok\ns_waitcnt vmcnt(2)\nv_cmp_eq_u32 vcc, 0, v254\ns_mov_b32 s{S_T3}, 0\ns_cbranch_vccz L_hint_ok")
            a(f"""
            L_hint:
            buffer_load_dword v254, v2, {sr(R_WS,4)}, s{S_HSB} offen offset:16 sc1
            s_waitcnt vmcnt(0)
            v_cmp_eq_u32 vcc, 0, v254
            s_add_u32 s{S_T3}, s{S_T3}, 1
            s_cbranch_vccz L_hint_ok
            s_cmp_lt_u32 s{S_T3}, {cfg.hint[1]}
            s_cbranch_scc1 L_hint
            L_hint_ok:
            """)
        if not half:
            for j in range(cfg.oearly): a(oload(j))
        a("s_waitcnt lgkmcnt(0)\ns_barrier")
        if half: a(f"s_add_u32 m0, s{S_T0}, 7940")
        if half and cfg.tprio == 2: a("s_setprio 1")
        cstamp()
        yr = [f"ds_read_b128 {vr(YY+8*p+4*e,4)}, v{((V_GA, 5), (6, 7))[p >> 1][e]} offset:{(32768 + 16384*p) & 0xffff}" for p in range(4) for e in range(2)]
        G = ["s_waitcnt lgkmcnt(0)"]
        for p in (1, 2, 3): G += [f"v_add_f32 v{YY+i}, v{YY+i}, v{YY+8*p+i}" for i in range(8)]
        G += [f"v_mul_f32 v{TT+i}, {hex(f2u(-math.log2(math.e)))}, v{YY+i}" for i in range(8)]
        G += [f"v_exp_f32 v{TT+i}, v{TT+i}" for i in range(8)]
        G += [f"v_add_f32 v{TT+i}, 1.0, v{TT+i}" for i in range(8)]
        G += [f"v_rcp_f32 v{TT+i}, v{TT+i}" for i in range(8)]
        G += [f"v_mul_f32 v{YY+i}, v{YY+i}, v{TT+i}" for i in range(8)]
        if half:
            for l in yr: a(l)
            if cfg.bprep: prep()
            if cfg.tprio == 3: a("s_setprio 1")
            for j in range(cfg.n_b0): a(oload(j))
            for l in G[:cfg.n_gb]: a(l)
            G = G[cfg.n_gb:]
            for j in range(cfg.n_b0, 8):
                a(oload(j))
                for l in G[:cfg.n_gp]: a(l)
                G = G[cfg.n_gp:]
            for l in G: a(l)
        elif cfg.odelay:
            for l in yr + G[:int(cfg.odelay)]: a(l)
            G = G[int(cfg.odelay):]
            for j in range(8): a(oload(j))
        else:
            for j in range(8):
                if j + cfg.oearly < 8: a(oload(j + cfg.oearly))
                a(yr[j])
            for l in G[:cfg.n_ga]: a(l)
            G = G[cfg.n_ga:]
        cstamp()
        def nxt(j): return f"s_waitcnt vmcnt({7-j})\n" + chk(j) + f"\ns_movk_i32 s{S_CNT}, {(0xff << j) & 0xff}"
        if half and cfg.tprio == 1: a("s_setprio 1")
        a(nxt(0))
        for j in range(8):
            a(f"s_cbranch_vccnz L_omiss{sfx}")
            if j in (0, 3, 7): cstamp()
            a(mfma32(SS, OF + 4*j, WOF[2*j], SS))
            if j < 7: a(nxt(j + 1))
            a(mfma32(SS + 16, OF + 4*j, WOF[2*j + 1], SS + 16))
        late[0] = f"L_omiss{sfx}:\ns_call_b64 {sr(S_RET,2)}, L_ofix\ns_branch L_ook{sfx}\n" + late[0]
        a.label(f"L_ook{sfx}")
        pg = [f"ds_read_b128 {vr(192+8*p+4*e,4)}, v{(V_GA, 5)[e]} offset:{16384*p}" for p in range(2) for e in range(2)]
        if half and cfg.pgath:
            a("s_barrier")
            for l in pg: a(l)
            a.nop(6)
        else: a.nop(11)
        for i in range(32): a(f"ds_write_addtid_b32 v{SS+i} offset:{(57596 if half else 0) + 256*i}")
        if not half:
            for l in G: a(l)
            if cfg.pgath:
                a("s_waitcnt lgkmcnt(0)\ns_barrier")
                for l in pg: a(l)
    far("L_attA")
    n0 = nst[0]
    attention(0)
    tail(0)
    a("s_branch L_fin2")
    far("L_attB")
    nst[0] = n0
    attention(1)
    tail(1)
    far("L_fin2", True)
    a("s_waitcnt lgkmcnt(0)\ns_barrier")
    if cfg.stamps == 6: stamp()
    cstamp()
    for p in range(2 if cfg.pgath else 0, 4):
        for e in range(2): a(f"ds_read_b128 {vr(OF+8*p+4*e,4)}, v{((V_GA, 5), (6, 7))[p >> 1][e]} offset:{16384*p}")
    if cfg.pgath:
        for i in range(0, 8, 2): a(f"v_pk_add_f32 {vr(OF+i,2)}, {vr(192+i,2)}, {vr(200+i,2)}")
    else:
        a("s_waitcnt lgkmcnt(0)" if cfg.stamps == 8 else "s_waitcnt lgkmcnt(4)")
        for i in range(0, 8, 2): a(f"v_pk_add_f32 {vr(OF+i,2)}, {vr(OF+i,2)}, {vr(OF+8+i,2)}")
    a("s_waitcnt lgkmcnt(0)")
    for i in range(0, 8, 2): a(f"v_pk_add_f32 {vr(OF+16+i,2)}, {vr(OF+16+i,2)}, {vr(OF+24+i,2)}")
    for i in range(0, 8, 2): a(f"v_pk_add_f32 {vr(OF+i,2)}, {vr(OF+i,2)}, {vr(OF+16+i,2)}")
    for i in range(0, 8, 2): a(f"v_pk_fma_f32 {vr(OF+i,2)}, {vr(OF+i,2)}, {vr(YY+i,2)}, {vr(XU+i,2)}")
    for i in range(4): a(f"v_cvt_pk_bf16_f32 v{12+i}, v{OF+2*i}, v{OF+2*i+1}")
    a(f"s_mov_b64 exec, {sr(S_EX,2)}\nv_swap_b32 v12, v14\nv_swap_b32 v13, v15\ns_mov_b64 exec, -1")
    a(f"buffer_store_dwordx4 v[12:15], v{V_FO}, {sr(R_OUT,4)}, 0 offen {cfg.oflag}")
    if cfg.stamps == 6: stamp()
    cstamp()
    if cfg.stamps:
        a("s_waitcnt vmcnt(0)")
        cstamp()
        stamp(True)
        for i in range(ncs[0]): a(f"v_writelane_b32 v{V_STAMP}, s{CSR[i]}, {40+i}")
        if cfg.stamps in (10, 12):
            for i in range(6): a(f"v_writelane_b32 v{V_STAMP}, s{[32, 34, 92, 94, 96, 98][i]}, {40+i}")
        if cfg.stamps in (5, 6): a(f"v_writelane_b32 v{V_STAMP}, s{S_SPIN}, 63")
        a(f"s_lshl_b32 s{S_T0}, s2, 3\ns_add_u32 s{S_T0}, s{S_T0}, s{S_W}\ns_lshl_b32 s{S_T0}, s{S_T0}, 8\ns_add_u32 s{S_T0}, s{S_T0}, {WS_DBG}")
        a(f"v_lshlrev_b32 v2, 2, v{V_LANE}\nbuffer_store_dword v{V_STAMP}, v2, {sr(R_WS,4)}, s{S_T0} offen")
        if cfg.stamps == 3:
            a(f"s_add_u32 s{S_T0}, s{S_T0}, 0x80000\nbuffer_store_dword v253, v2, {sr(R_WS,4)}, s{S_T0} offen\ns_add_u32 s{S_T0}, s{S_T0}, 0x80000\nbuffer_store_dword v254, v2, {sr(R_WS,4)}, s{S_T0} offen")
    pad("end")
    a.label("L_end")
    a("s_endpgm")
    a(late[0])
    if cfg.brks is None: brk("x")
    for l in late[1:]: a(l)
    a.label("L_fb")
    a(f"v_mov_b32 v8, 0xff800000\ns_mov_b32 s{S_CNT}, {WS_KV}")
    a(f"v_subrev_u32 v10, {L_KV}, v{V_VA}")
    a.label("L_fb1")
    a(f"buffer_load_dwordx4 {vr(KF,4)}, v{V_L16}, {sr(R_WS,4)}, s{S_CNT} offen sc1\ns_waitcnt vmcnt(0)")
    a(mfma32(S0, KF, QF, None)); a.nop(12)
    for l in maxtree(S0, 8, init=True): a(l)
    a(f"s_add_u32 s{S_CNT}, s{S_CNT}, 2048\ns_cmp_lt_u32 s{S_CNT}, {WS_KV + 64*2048}\ns_cbranch_scc1 L_fb1")
    setC(8, 0.0)
    for i in range(16): a(f"v_mov_b32 v{OO+i}, 0")
    a(f"s_mov_b32 s{S_CNT}, {WS_KV}")
    a.label("L_fb2")
    a(f"buffer_load_dwordx4 {vr(KF,4)}, v{V_L16}, {sr(R_WS,4)}, s{S_CNT} offen sc1")
    a(f"s_mov_b64 exec, {sr(S_VM,2)}")
    a(f"buffer_load_dwordx4 {vr(VF,4)}, v10, {sr(R_WS,4)}, s{S_CNT} offen sc1")
    a(f"buffer_load_dwordx4 {vr(VF+4,4)}, v10, {sr(R_WS,4)}, s{S_CNT} offen offset:512 sc1")
    a("s_mov_b64 exec, -1\ns_waitcnt vmcnt(0)")
    a(mfma32(S0, KF, QF, CC)); a.nop(12)
    for i in range(16): a(f"v_exp_f32 v{S0+i}, v{S0+i}")
    a.nop(2)
    a(smf(OO, VF, S0)); a(smf(OO, VF + 4, S0 + 8))
    a(f"s_add_u32 s{S_CNT}, s{S_CNT}, 2048\ns_cmp_lt_u32 s{S_CNT}, {WS_KV + 64*2048}\ns_cbranch_scc1 L_fb2")
    a.nop(12)
    a(f"v_rcp_f32 v10, v{OO+8}\ns_nop 0\nv_mov_b32 v11, v10")
    normalize()
    for i in range(4): a(f"v_min_u32 v{12+i}, -2, v{12+i}")
    a(f"s_cmp_ge_u32 s{S_W}, 4\ns_cbranch_scc1 L_ostB\ns_branch L_ostA")
    a.label("L_code_end")
    return a

HEADER = open(f"cdna_kernels/{NAME}.s.ref").read().split("; Override launch")[0]
def wrap(a):
    s = HEADER + """; One persistent launch, one 8-wave workgroup per CU (all 256 are resident: 160 KiB LDS each). Generated by the author's script.
;  1. K/V rows, LayerNorm statistics and column sums of W are shared out over the workgroups, published in d_ws, arrival counted in d_debug.
;  2. [w_gate | w_up | w_q] projection on raw x, 128 x 256 tile; LayerNorm applied in the epilogue; h and q go to d_ws.
;  3. MQA attention with the down projection interleaved; 4. o exchange, w_o projection, gate, residual.
; Hand-offs use write-through stores and L1-bypassing loads; flags and 'not yet written' patterns are initialised inside the launch.
""" + "; @launch grid=(256,1,1) block=(512,1,1) lds=163840\n"
    s += f""".amdgcn_target "amdgcn-amd-amdhsa--gfx950"
.text
.globl {NAME}_kernel
.p2align 8
.type {NAME}_kernel,@function
{NAME}_kernel:
"""
    s += a.text()
    s += f""".section .rodata,"a"
.p2align 6
.amdhsa_kernel {NAME}_kernel
  .amdhsa_next_free_vgpr 256
  .amdhsa_next_free_sgpr 102
  .amdhsa_accum_offset 256
  .amdhsa_group_segment_fixed_size 0
  .amdhsa_kernarg_size 96
  .amdhsa_user_sgpr_count 2
  .amdhsa_user_sgpr_kernarg_segment_ptr 1
  .amdhsa_system_sgpr_workgroup_id_x 1
.end_amdhsa_kernel
"""
    return s

if __name__ == "__main__":
    cfg = Cfg()
    out = sys.argv[1]
    if "pair=False" not in sys.argv:
        cfg.sizes = [8, 8] + [6]*8; cfg.n_wo63 = 0; cfg.t_wd0 = (12, 15, 16, 16); cfg.mb0 = (3, 4, 5, 5, 6, 6, 7, 7); cfg.t_h0 = (18, 18, 19, 19)
        cfg.t_wo = (9, 10, 12, 13, 16, 17, 17, 28); cfg.t_code = (10, 42); cfg.t_chk = 18; cfg.t_poll = 15; cfg.t_flag = 10
    for kv in sys.argv[2:]:
        k, v = kv.split("=")
        setattr(cfg, k, eval(v))
    g0 = gen
    def gen(cfg):
        a = g0(cfg)
        if 'E' in cfg.ab or 'S' in cfg.ab:
            n = a.lines.index("L_qt:")
            for i in range(n):
                if a.lines[i].startswith("buffer_store") or ('E' in cfg.ab and a.lines[i].startswith("buffer_")): a.lines[i] = "s_nop 0"
            h = a.lines.index("L_helper:")
            k = 0
            for i in range(h, len(a.lines)):
                if a.lines[i].startswith("buffer_store") and k < 3:
                    a.lines[i] = f"buffer_load_dword v9, off, {sr(R_X,4)}, 0"; k += 1
        if cfg.jitter:
            import random
            rnd = random.Random(cfg.jitter)
            out_ = []; k = 0; started = False
            for i, l in enumerate(a.lines):
                if l.startswith("s_cbranch_scc1 L_helper"): started = True
                if started and (l == "s_barrier" or ("sc1" in l and rnd.random() < 0.3)) and rnd.random() < 0.5:
                    k += 1
                    out_ += ["s_cselect_b32 s101, 1, 0", f"s_lshl_b32 s100, s2, 3", f"s_add_u32 s100, s100, s{S_W}" if rnd.random() < 0.5 else "s_nop 0",
                             f"s_mul_i32 s100, s100, {rnd.randrange(1, 1 << 30) | 1}", "s_lshr_b32 s100, s100, 28", f"s_cmp_lt_u32 s100, {rnd.choice([1, 2, 4])}",
                             f"s_cbranch_scc0 L_jit{k}", f"s_sleep {rnd.choice([5, 20, 60, 120])}", f"L_jit{k}:", "s_cmp_eq_u32 s101, 1"]
                out_.append(l)
            a.lines = out_
        return a
    a = gen(cfg)
    if cfg.pages:
        import subprocess, re
        open("_p1.s", "w").write(wrap(a))
        subprocess.run(["clang", "-x", "assembler", "-target", "amdgcn-amd-amdhsa", "-mcpu=gfx950", "-c", "_p1.s", "-o", "_p1.o"], check=True)
        t = subprocess.run(["llvm-objdump", "-t", "_p1.o"], capture_output=True, text=True).stdout
        pts = sorted((int(m.group(1), 16), m.group(2), int(m.group(3))) for m in re.finditer(r"^([0-9a-f]+) .* L_brk_(\w)_(\d+)$", t, re.M))
        brks = {}; start = -0x300
        for (ad, k, i), (nx, _, _) in zip(pts, pts[1:]):
            if nx - start > 4096 - 112:
                brks[i] = k; start = ad
        cfg.brks = brks
        a = gen(cfg)
    else:
        cfg.brks = {}
        a = gen(cfg)
    errs = check(a.lines)
    for e in errs: print("HAZARD need %d have %d:\n   %s\n   %s" % (e[2], e[3], e[0], e[1]))
    open(out, "w").write(wrap(a))
    print("wrote", out, len(a.lines), "lines", len(errs), "hazards")
```

```python
import sys
HEAD = """; @launch grid=({grid},1,1) block=({block},1,1) lds={lds}
; meta div={div}
.amdgcn_target "amdgcn-amd-amdhsa--gfx950"
.text
.globl mb_kernel
.p2align 8
.type mb_kernel,@function
mb_kernel:
    s_load_dwordx2 s[4:5], s[0:1], 0
    s_load_dwordx2 s[6:7], s[0:1], 8
    v_lshrrev_b32 v1, 6, v0
    s_nop 1
    v_readfirstlane_b32 s20, v1
    s_waitcnt lgkmcnt(0)
    s_mov_b32 s8, s4
    s_and_b32 s9, s5, 0xffff
    s_mov_b32 s10, 0x1000000
    s_mov_b32 s11, 0x20000
    s_mov_b32 s12, s6
    s_and_b32 s13, s7, 0xffff
    s_mov_b32 s14, 0x4000000
    s_mov_b32 s15, 0x20000
    v_lshlrev_b32 v2, 4, v0
"""
TAIL = """
    s_waitcnt vmcnt(0) lgkmcnt(0)
    s_memtime s[26:27]
    s_memrealtime s[30:31]
    s_waitcnt lgkmcnt(0)
    s_sub_u32 s26, s26, s24
    s_sub_u32 s30, s30, s28
    s_mul_i32 s21, s2, {wpb}
    s_add_u32 s21, s21, s20
    s_lshl_b32 s21, s21, 4
    v_mov_b32 v4, s26
    v_mov_b32 v5, s30
    v_mov_b32 v6, s21
    v_and_b32 v7, 63, v0
    v_cmp_eq_u32 vcc, 0, v7
    s_and_saveexec_b64 s[22:23], vcc
    buffer_store_dwordx2 v[4:5], v6, s[12:15], 0 offen
    s_waitcnt vmcnt(0)
    s_endpgm
.section .rodata,"a"
.p2align 6
.amdhsa_kernel mb_kernel
  .amdhsa_next_free_vgpr {vgpr}
  .amdhsa_next_free_sgpr 102
  .amdhsa_accum_offset {acc}
  .amdhsa_group_segment_fixed_size 0
  .amdhsa_kernarg_size 16
  .amdhsa_user_sgpr_count 2
  .amdhsa_user_sgpr_kernarg_segment_ptr 1
  .amdhsa_system_sgpr_workgroup_id_x 1
.end_amdhsa_kernel
"""
def init_regs(n0, n1):
    s = ""
    for r in range(n0, n1, 4):
        s += f"    buffer_load_dwordx4 v[{r}:{r+3}], v2, s[8:11], 0 offen offset:{(r*16)%4096}\n"
    s += "    s_waitcnt vmcnt(0)\n"
    return s

def make(name, body, iters, units, block=256, grid=256, lds=0, vgpr=128, pre="", bodies=None):
    wpb = block // 64
    s = HEAD.format(grid=grid, block=block, lds=lds, div=iters * units)
    s += init_regs(8, vgpr)
    s += pre
    s += "    s_barrier\n    s_memtime s[24:25]\n    s_memrealtime s[28:29]\n    s_waitcnt lgkmcnt(0)\n"
    s += f"    s_mov_b32 s16, {iters}\n"
    if bodies is None:
        s += ".p2align 3\nL0:\n" + body + "    s_sub_u32 s16, s16, 1\n    s_cmp_lg_u32 s16, 0\n    s_cbranch_scc1 L0\n"
    else:
        s += f"    s_cmp_ge_u32 s20, {wpb//2}\n    s_cbranch_scc1 LB\n"
        s += ".p2align 3\nL0:\n" + bodies[0] + "    s_sub_u32 s16, s16, 1\n    s_cmp_lg_u32 s16, 0\n    s_cbranch_scc1 L0\n    s_branch LE\n"
        s += ".p2align 3\nLB:\n" + bodies[1] + "    s_sub_u32 s16, s16, 1\n    s_cmp_lg_u32 s16, 0\n    s_cbranch_scc1 LB\nLE:\n"
    s += TAIL.format(wpb=wpb, vgpr=vgpr, acc=vgpr)
    open(name + ".s", "w").write(s)

if __name__ == "__main__":
    names = []
    def rep(fmt, n, base=16, stride=1):
        return "".join("    " + fmt.format(d=base + (i * stride) % 32, a=64 + (i*stride) % 32, b=65 + (i*stride) % 32, d1=base + (i*stride) % 32 + 1, a1=64 + (i*stride) % 32 + 1) + "\n" for i in range(n))
    ops = {
        "exp": ("v_exp_f32 v{d}, v{a}", 1),
        "exp16": ("v_exp_f16 v{d}, v{a}", 1),
        "fma": ("v_fma_f32 v{d}, v{a}, v{b}, v{a}", 1),
        "add": ("v_add_f32 v{d}, v{a}, v{b}", 1),
        "cvt": ("v_cvt_pk_bf16_f32 v{d}, v{a}, v{b}", 1),
        "perm": ("v_perm_b32 v{d}, v{a}, v{b}, v{a}", 1),
        "pkfma": ("v_pk_fma_f32 v[{d}:{d1}], v[{a}:{a1}], v[{a}:{a1}], v[{a}:{a1}]", 2),
        "pkmul": ("v_pk_mul_f32 v[{d}:{d1}], v[{a}:{a1}], v[{a}:{a1}]", 2),
        "max3": ("v_max3_f32 v{d}, v{a}, v{b}, v{a}", 1),
        "mov": ("v_mov_b32 v{d}, v{a}", 1),
    }
    for op, (fmt, st) in ops.items():
        for blk in (256, 512, 1024):
            n = f"valu_{op}_{blk}"
            make(n, rep(fmt, 64, stride=st), 200, 64, block=blk, vgpr=128)
            names.append(n + ".s")
    for ratio in (1, 2, 3):
        body = ""
        for i in range(32):
            body += f"    v_exp_f32 v{16+i}, v{64+i}\n"
            for j in range(ratio):
                body += f"    v_fma_f32 v{96+(i*ratio+j)%16}, v{112+(i+j)%16}, v{113+(i+j)%15}, v{112+(i)%16}\n"
        for blk in (256, 512, 1024):
            n = f"valu_mix_exp1_fma{ratio}_{blk}"
            make(n, body, 200, 32, block=blk, vgpr=128)
            names.append(n + ".s")
    for blk in (512, 1024):
        n = f"valu_split_exp_fma_{blk}"
        make(n, None, 200, 64, block=blk, vgpr=128, bodies=[rep(ops["exp"][0], 64), rep(ops["fma"][0], 128)])
        names.append(n + ".s")
    print(" ".join(names))
```

```python
from gen_valu import make
names = []
pre = "".join(f"    v_mov_b32 v{16+i}, 0\n" for i in range(64)) + "    v_mov_b32 v144, 0xdddddddd\n"
def M(d, A, B): return f"    v_mfma_f32_32x32x16_bf16 v[{d}:{d+15}], v[{A}:{A+3}], v[{B}:{B+3}], v[{d}:{d+15}]\n"
def S(d, A, B): return f"    v_smfmac_f32_32x32x32_bf16 v[{d}:{d+15}], v[{A}:{A+3}], v[{B}:{B+7}], v144\n"
def seq(op, chain, k):
    s = ""; n = 0
    for j in range(16):
        d = 16 + 16*((j >> 1) & 3 if chain else j & 3)
        s += op(d, 80 + 4*(j & 7), 112 + 8*(j & 3))
        for i in range(k): s += f"    v_exp_f32_e64 v{146 + n % 8}, v{154 + n % 4}\n"; n += 1
    return s * 2
for nm, op in (("M", M), ("S", S)):
    for k in (0, 3, 4):
        for ch in (0, 1):
            n = f"ch_{nm}_k{k}_c{ch}"; make(n, seq(op, ch, k), 50, 32, block=256, vgpr=160, pre=pre); names.append(n + ".s")
print(" ".join(names))
```
